```python
import torch

def _softmax(x, axis=-1):
    return torch.softmax(x, dim=axis)
def _gelu(x):
    return torch.nn.functional.gelu(x, approximate="tanh")
def _silu(x):
    return torch.nn.functional.silu(x)
def _sigmoid(x):
    return torch.sigmoid(x)
def _layernorm(x, axis=-1, eps=1e-5):
    m = x.mean(dim=axis, keepdim=True)
    v = x.var(dim=axis, keepdim=True, unbiased=False)
    return (x - m) / torch.sqrt(v + eps)
def _scatter_add(tgt, idx, src, axis=0):
    return tgt.clone().index_add_(axis, idx, src)
def _segment_sum(src, seg, n):
    out = torch.zeros((n,) + src.shape[1:], dtype=src.dtype)
    return out.index_add_(0, seg, src)
def _pad(x, pw):
    flat = tuple(v for pair in reversed(pw) for v in pair)
    return torch.nn.functional.pad(x, flat)

kernel_name = 'concat_heads__compressed_kv_cla__sliding_local_dilated__prompt'

def setup_inputs():

    _w = (lambda a: (lambda t: t.to(torch.bfloat16) if t.is_floating_point() else t)(torch.as_tensor(a)))
    def _A_setup():
        B, H, Sq, Sk, D, M = 1, 32, 2048, 2048, 128, 1024
        Dc = 4 * D
        return {
            "x": _w((lambda *s: torch.randn(*s, dtype=torch.bfloat16) * 0.2)(B, Sq, M)),
            "c_kv": _w((lambda *s: torch.randn(*s, dtype=torch.bfloat16) * 1.6)(B, Sk, Dc)),
            "w_q": _w((lambda *s: torch.randn(*s, dtype=torch.bfloat16) * 3.2)(M, H, D) * (M ** -0.5)),
            "w_uk": _w((lambda *s: torch.randn(*s, dtype=torch.bfloat16) * 3.2)(Dc, H, D) * (Dc ** -0.5)),
            "w_uv": _w((lambda *s: torch.randn(*s, dtype=torch.bfloat16) * 1.6)(Dc, H, D) * (Dc ** -0.5)),
            "w_o": _w((lambda *s: torch.randn(*s, dtype=torch.bfloat16) * 1.6)(H, D, M) * ((H * D) ** -0.5)),
        }
    _A_in = _A_setup()

    def _B_setup():
        B, S, D = 1, 2048, 1024
        return {
            "x": _w((lambda *s: torch.randn(*s, dtype=torch.bfloat16) * 0.2)(B, S, D)),
            "wqkv": _w((lambda *s: torch.randn(*s, dtype=torch.bfloat16) * 0.2)(D, 3 * D)),
            "wo": _w((lambda *s: torch.randn(*s, dtype=torch.bfloat16) * 0.05)(D, D)),
        }
    _B_in = _B_setup()

    return {
        "A_x": _A_in["x"],
        "A_c_kv": _A_in["c_kv"],
        "A_w_q": _A_in["w_q"],
        "A_w_uk": _A_in["w_uk"],
        "A_w_uv": _A_in["w_uv"],
        "A_w_o": _A_in["w_o"],
        "B_x": _B_in["x"],
        "B_wqkv": _B_in["wqkv"],
        "B_wo": _B_in["wo"],
    }

def reference(A_x, A_c_kv, A_w_q, A_w_uk, A_w_uv, A_w_o, B_x, B_wqkv, B_wo):
    def _A_ref(x, c_kv, w_q, w_uk, w_uv, w_o):
        B, Sq, M = x.shape[0], x.shape[1], x.shape[2]
        Sk = c_kv.shape[1]
        H, D = w_q.shape[1], w_q.shape[2]
        q = torch.einsum("bqm,mhd->bhqd", x, w_q)
        k = torch.einsum("bkc,chd->bhkd", c_kv, w_uk)
        v = torch.einsum("bkc,chd->bhkd", c_kv, w_uv)
        scores = torch.einsum("bhqd,bhkd->bhqk", q, k) * (D ** -0.5)
        off = Sk - Sq
        qi = torch.arange(Sq)[:, None]
        kj = torch.arange(Sk)[None, :]
        cmask = kj <= (qi + off)
        scores = torch.where(cmask[None, None], scores, -1e9)
        p = _softmax(scores, axis=-1)
        ctx = torch.einsum("bhqk,bhkd->bhqd", p, v)
        return torch.einsum("bhqd,hdm->bqm", ctx, w_o)

    def _B_ref(x, wqkv, wo):
        B, S, D = x.shape
        H = 32; Dh = D // H
        W, dil = 8, 2
        qkv = (lambda x, *d: x.permute(*d))((x @ wqkv).reshape(B, S, 3, H, Dh), 2, 0, 3, 1, 4)
        q, k, v = qkv[0], qkv[1], qkv[2]
        scale = Dh ** -0.5
        pos = torch.arange(S)
        off = torch.arange(W) * dil
        idx = pos[:, None] - off[None, :]
        mask = idx >= 0
        idx_c = torch.where(mask, idx, 0).reshape(-1)
        kg = k[:, :, idx_c, :].reshape(B, H, S, W, Dh)
        vg = v[:, :, idx_c, :].reshape(B, H, S, W, Dh)
        logits = torch.einsum("bhsd,bhswd->bhsw", q, kg) * scale
        logits = torch.where(mask[None, None, :, :], logits, -1e9)
        attn = _softmax(logits, axis=-1)
        o = torch.einsum("bhsw,bhswd->bhsd", attn, vg)
        return (lambda x, *d: x.permute(*d))(o, 0, 2, 1, 3).reshape(B, S, D) @ wo

    a = _A_ref(A_x, A_c_kv, A_w_q, A_w_uk, A_w_uv, A_w_o)
    b = _B_ref(B_x, B_wqkv, B_wo)
    return torch.concatenate([a, b], axis=-1)
```

```python
import re

TRANS = ("v_exp_f32", "v_log_f32", "v_rcp_f32", "v_rsq_f32", "v_sqrt_f32", "v_sin_f32", "v_cos_f32")

_reg_re = re.compile(r"(?<![\w.])([vsa])(\d+)(?![\w])|(?<![\w.])([vsa])\[(\d+):(\d+)\]|\b(vcc|exec|m0|scc)\b")


def regs_of(text):
    out = []
    for m in _reg_re.finditer(text):
        if m.group(1):
            out.append((m.group(1), int(m.group(2))))
        elif m.group(3):
            for i in range(int(m.group(4)), int(m.group(5)) + 1):
                out.append((m.group(3), i))
        else:
            out.append((m.group(6), 0))
    return out


def split_ops(s):
    ops, depth, cur = [], 0, ""
    for ch in s:
        if ch == "[":
            depth += 1
        elif ch == "]":
            depth -= 1
        if ch == "," and depth == 0:
            ops.append(cur.strip())
            cur = ""
        else:
            cur += ch
    if cur.strip():
        ops.append(cur.strip())
    return ops


class Ins:
    __slots__ = ("text", "mn", "kind", "wr", "rd", "states", "label", "target", "passes",
                 "srcc", "dst", "trans", "dpp", "wide_store_data", "ab")

    def __init__(self, text):
        self.text = text
        self.label = None
        self.target = None
        self.wr = set()
        self.rd = set()
        self.states = 1
        self.kind = "other"
        self.passes = 0
        self.srcc = ()
        self.dst = ()
        self.ab = set()
        self.trans = False
        self.dpp = False
        self.wide_store_data = set()
        t = text.split(";")[0].strip()
        if t.endswith(":"):
            self.label = t[:-1]
            self.kind = "label"
            self.states = 0
            self.mn = ""
            return
        if not t or t.startswith("."):
            self.kind = "directive"
            self.states = 0
            self.mn = ""
            return
        parts = t.split(None, 1)
        mn = parts[0]
        self.mn = mn
        rest = parts[1] if len(parts) > 1 else ""
        ops = split_ops(rest)
        R = regs_of
        if mn == "s_nop":
            self.kind = "nop"
            self.states = int(ops[0], 0) + 1
        elif mn.startswith("s_cbranch") or mn == "s_branch":
            self.kind = "branch"
            self.target = ops[0]
            if "vcc" in mn:
                self.rd.add(("vcc", 0))
        elif mn.startswith("v_mfma"):
            self.kind = "mfma"
            self.passes = 8 if "32x32x16" in mn else 4
            self.dst = tuple(R(ops[0]))
            self.wr = set(self.dst)
            self.ab = set(R(ops[1])) | set(R(ops[2]))
            self.srcc = tuple(R(ops[3]))
            self.rd = self.ab | set(self.srcc)
        elif mn.startswith("v_"):
            self.kind = "valu"
            self.trans = any(mn.startswith(x) for x in TRANS)
            self.dpp = "dpp" in mn or "quad_perm" in t or "row_" in t
            if mn.startswith("v_permlane32_swap") or mn.startswith("v_permlane16_swap"):
                self.kind = "permlane"
                self.wr = set(R(ops[0])) | set(R(ops[1]))
                self.rd = set(self.wr)
            elif mn.startswith("v_add_co") or mn.startswith("v_addc_co") or mn.startswith("v_sub_co"):
                self.wr = set(R(ops[0])) | set(R(ops[1]))
                for o in ops[2:]:
                    self.rd |= set(R(o))
            else:
                self.wr = set(R(ops[0]))
                for o in ops[1:]:
                    self.rd |= set(R(o))
                if mn.startswith("v_fmac") or mn.startswith("v_pk_fmac") or mn.startswith("v_dot2c"):
                    self.rd |= self.wr
                if mn.startswith("v_cndmask") and len(ops) == 3:
                    self.rd.add(("vcc", 0))
                if mn.startswith("v_readfirstlane") or mn.startswith("v_readlane"):
                    self.kind = "readlane"
        elif mn.startswith("ds_"):
            self.kind = "ds"
            if mn.startswith("ds_read") or mn.startswith("ds_bpermute") or mn.startswith("ds_swizzle"):
                self.wr = set(R(ops[0]))
                for o in ops[1:]:
                    self.rd |= set(R(o))
            else:
                for o in ops:
                    self.rd |= set(R(o))
        elif mn.startswith("buffer_") or mn.startswith("global_"):
            self.kind = "vmem"
            is_lds = re.search(r"\blds\b", t) is not None or "load_lds" in mn
            if is_lds:
                self.kind = "ldsdma"
                for o in ops:
                    self.rd |= set(R(o))
                self.rd.add(("m0", 0))
            elif "load" in mn:
                self.wr = set(R(ops[0]))
                for o in ops[1:]:
                    self.rd |= set(R(o))
            else:
                for o in ops:
                    self.rd |= set(R(o))
                if "x4" in mn or "x3" in mn:
                    d = ops[0] if mn.startswith("buffer_") else ops[1]
                    self.wide_store_data = set(R(d))
        elif mn.startswith("s_"):
            self.kind = "salu"
            if mn.startswith("s_cmp") or mn in ("s_barrier", "s_waitcnt", "s_endpgm", "s_setprio", "s_sleep"):
                for o in ops:
                    self.rd |= set(R(o))
            elif ops:
                self.wr = set(R(ops[0]))
                for o in ops[1:]:
                    self.rd |= set(R(o))


VALUISH = ("valu", "permlane", "readlane")


def need(p, c):
    n = 0
    if p.kind in VALUISH:
        vw = {r for r in p.wr if r[0] in "va"}
        sw = {r for r in p.wr if r[0] in ("s", "vcc")}
        if vw:
            if c.kind == "mfma" and vw & c.rd:
                n = max(n, 2)
            if c.kind == "permlane" and vw & c.rd:
                n = max(n, 2)
            if c.kind == "valu" and c.dpp and vw & c.rd:
                n = max(n, 2)
            if c.kind == "readlane" and vw & c.rd:
                n = max(n, 1)
            if p.trans and c.kind in VALUISH and not c.trans and vw & (c.rd | c.wr):
                n = max(n, 1)
        if sw:
            if c.kind in VALUISH and sw & c.rd:
                n = max(n, 2)
            if c.kind in ("vmem", "ldsdma") and sw & c.rd:
                n = max(n, 5)
            if c.kind in ("salu", "branch") and sw & c.rd:
                n = max(n, 1)
    if p.kind == "valu" and p.mn.startswith("v_dot"):
        d = p.wr
        if d & (c.rd | c.wr):
            if c.mn == p.mn:
                ops = split_ops(c.text.split(";")[0].strip().split(None, 1)[1])
                ab = set(regs_of(ops[1])) | set(regs_of(ops[2]))
                if d & ab:
                    n = max(n, 3)
            else:
                n = max(n, 3)
    if p.kind == "mfma":
        d = p.wr
        if c.kind == "mfma":
            if d & c.ab:
                n = max(n, p.passes + 4)
            if d & set(c.srcc):
                if c.srcc == p.dst and c.passes == p.passes:
                    pass
                else:
                    n = max(n, p.passes + 2)
            elif d & c.wr:
                n = max(n, p.passes + 4)
        elif c.kind in VALUISH + ("vmem", "ds", "ldsdma"):
            if d & (c.rd | c.wr):
                n = max(n, p.passes + 4)
        if c.kind in VALUISH and set(p.srcc) & c.wr:
            n = max(n, p.passes - 1)
    if p.kind == "salu" and ("m0", 0) in p.wr and c.kind == "ldsdma":
        n = max(n, 1)
    if p.wide_store_data and p.wide_store_data & c.wr:
        n = max(n, 2 if c.kind in VALUISH else 1)
    return n


WIN = 24


class Asm:
    def __init__(self):
        self.ins = []
        self.nlab = 0

    def __call__(self, text):
        for line in text.split("\n"):
            line = line.strip()
            if line:
                self.ins.append(Ins(line))

    def label(self, name):
        self.ins.append(Ins(name + ":"))

    _glab = [0]

    def newlabel(self, prefix="L"):
        Asm._glab[0] += 1
        return "%s_%d" % (prefix, Asm._glab[0])

    def _fix_linear(self):
        out = []
        for c in self.ins:
            if c.states > 0 and c.kind != "nop":
                dist = 0
                req = 0
                k = len(out) - 1
                cnt = 0
                while k >= 0 and cnt < WIN:
                    p = out[k]
                    if p.states > 0:
                        r = need(p, c) - dist
                        req = max(req, r)
                        dist += p.states
                        cnt += 1
                    k -= 1
                while req > 0:
                    n = min(req, 16)
                    out.append(Ins("s_nop %d" % (n - 1)))
                    req -= n
            out.append(c)
        self.ins = out

    def _fix_branches(self):
        changed = True
        while changed:
            changed = False
            lab = {x.label: i for i, x in enumerate(self.ins) if x.label}
            for j, b in enumerate(self.ins):
                if b.kind != "branch" or b.target not in lab:
                    continue
                i = lab[b.target]
                pre = [x for x in self.ins[max(0, j - 3 * WIN):j + 1] if x.states > 0][-WIN:]
                post = [x for x in self.ins[i:i + 3 * WIN] if x.states > 0][:WIN]
                worst = 0
                d_post = 0
                for c in post:
                    dist = d_post
                    for p in reversed(pre):
                        worst = max(worst, need(p, c) - dist)
                        dist += p.states
                    d_post += c.states
                if worst > 0:
                    self.ins.insert(j, Ins("s_nop %d" % (worst - 1)))
                    changed = True
                    break

    def _auto_lgkm(self):
        out = []
        pend = []
        for c in self.ins:
            if c.kind in ("label", "branch") or c.mn in ("s_barrier", "s_endpgm"):
                if any(pend):
                    out.append(Ins("s_waitcnt lgkmcnt(0)"))
                pend = []
                out.append(c)
                continue
            if c.mn == "s_waitcnt":
                m = re.search(r"lgkmcnt\((\d+)\)", c.text)
                if m:
                    n = int(m.group(1))
                    pend = pend[max(0, len(pend) - n):] if n else []
                out.append(c)
                continue
            touch = c.rd | c.wr
            last = -1
            for i, d in enumerate(pend):
                if d & touch:
                    last = i
            if last >= 0:
                n = len(pend) - 1 - last
                n = min(n, 15)
                out.append(Ins("s_waitcnt lgkmcnt(%d)" % n))
                pend = pend[len(pend) - n:] if n else []
            if c.kind == "ds":
                pend.append(set(c.wr))
            out.append(c)
        self.ins = out

    def finish(self, auto_lgkm=False):
        if auto_lgkm:
            self._auto_lgkm()
        self._fix_linear()
        self._fix_branches()
        s = []
        for x in self.ins:
            if x.kind == "label":
                s.append(x.text)
            else:
                s.append("  " + x.text)
        return "\n".join(s) + "\n"


def interleave(main, fill, per=None):
    out = []
    nm = len(main)
    nf = len(fill)
    if nm == 0:
        return list(fill)
    k = 0
    for i, m in enumerate(main):
        out.append(m)
        tgt = (nf * (i + 1) + nm - 1) // nm if per is None else min(nf, per * (i + 1))
        while k < tgt:
            out.append(fill[k])
            k += 1
    out.extend(fill[k:])
    return out


def cost(ins):
    mn = ins.split(None, 1)[0]
    if any(mn.startswith(x) for x in TRANS):
        return 2.0
    if mn.startswith("s_"):
        return 0.5
    return 1.0


def weave(items, fill, lead=0.0):
    tot = sum(cost(x) for x in fill)
    out = []
    k = 0
    acc = 0.0
    n = len(items)
    while k < len(fill) and acc < lead * tot:
        out.append(fill[k]); acc += cost(fill[k]); k += 1
    base = acc
    for i, it in enumerate(items):
        out.extend(it)
        tgt = base + (tot - base) * (i + 1) / n
        while k < len(fill) and acc + cost(fill[k]) * 0.5 <= tgt:
            out.append(fill[k]); acc += cost(fill[k]); k += 1
    out.extend(fill[k:])
    return out
```

```python
import math
import struct
from asmlib import Asm, interleave, weave

MB = 1 << 20
import os
FL = set(os.environ.get('AFLAGS', '').split(','))
SF = os.environ.get('SF', '')
if SF:
    SF = ' ' + SF.replace('_', ' ')


def f32bits(x):
    return struct.unpack("<I", struct.pack("<f", x))[0]


def srd(a, d, lo, hi, size, off=0):
    if off:
        a("s_add_u32 s%d, s%d, %d" % (d, lo, off))
        a("s_addc_u32 s%d, s%d, 0" % (d + 1, hi))
    else:
        a("s_mov_b32 s%d, s%d" % (d, lo))
        a("s_mov_b32 s%d, s%d" % (d + 1, hi))
    a("s_mov_b32 s%d, %d" % (d + 2, size))
    a("s_mov_b32 s%d, 0x00020000" % (d + 3))


def battn_body(a, NP, R0, sq, so, S0, mid=None, wait=None):
    NR = NP + 7
    a("s_mov_b32 s%d, 2048" % S0)
    a("s_mov_b32 s%d, 4096" % (S0 + 1))
    a("s_mov_b32 s%d, 6144" % (S0 + 2))
    a("s_mov_b32 s%d, 0x05040100" % (S0 + 5))
    a("s_mov_b32 s%d, 0x07060302" % (S0 + 6))
    vQ, vK, vV = R0, R0 + 4 * NP, R0 + 4 * NP + 4 * NR
    vF = vV + 4 * NR
    vLg = vF + 8
    vX = vLg + 8
    vAcc = vX + 8
    NV = vAcc + 8
    Q = "s[%d:%d]" % (sq, sq + 3)
    for r in range(NR):
        a("v_add_u32 v5, %d, v2" % (2 * r - 14)) if 2 * r - 14 >= 0 else a("v_subrev_u32 v5, %d, v2" % (14 - 2 * r))
        a("v_max_i32 v5, 0, v5")
        a("v_mul_lo_u32 v5, v5, s%d" % (S0 + 2))
        a("v_add_u32 v5, v5, v3")
        if r >= 7:
            a("buffer_load_dwordx4 v[%d:%d], v5, %s, 0 offen" % (vQ + 4 * (r - 7), vQ + 4 * (r - 7) + 3, Q))
        a("buffer_load_dwordx4 v[%d:%d], v5, %s, s%d offen" % (vK + 4 * r, vK + 4 * r + 3, Q, S0))
        a("buffer_load_dwordx4 v[%d:%d], v5, %s, s%d offen" % (vV + 4 * r, vV + 4 * r + 3, Q, S0 + 1))
    if mid:
        mid()
    c = (32 ** -0.5) * math.log2(math.e)
    sc = "s%d" % (S0 + 3)
    a("s_mov_b32 %s, 0x%08x" % (sc, f32bits(c)))
    a("v_mov_b32 v7, 0xff800000")
    a("v_lshl_add_u32 v4, v2, 11, v3")
    for pidx in range(NP):
        if wait:
            wait(3 * (NP - 1 - pidx) + pidx)
        else:
            a("s_waitcnt vmcnt(%d)" % (3 * (NP - 1 - pidx)))
        for i in range(4):
            for w in range(8):
                r = pidx + 7 - w
                a("v_dot2_f32_bf16 v%d, v%d, v%d, %s" % (vLg + w, vK + 4 * r + i, vQ + 4 * pidx + i, "0" if i == 0 else "v%d" % (vLg + w)))
        for w in range(8):
            a("v_add_f32_dpp v%d, v%d, v%d quad_perm:[1,0,3,2] row_mask:0xf bank_mask:0xf" % (vX + w, vLg + w, vLg + w))
        for w in range(8):
            a("v_add_f32_dpp v%d, v%d, v%d quad_perm:[2,3,0,1] row_mask:0xf bank_mask:0xf" % (vLg + w, vX + w, vX + w))
        for w in range(1, 8):
            if 2 * w - 2 * pidx > 0:
                a("v_cmp_gt_u32 vcc, %d, v2" % (2 * w - 2 * pidx))
                a("v_cndmask_b32 v%d, v%d, v7, vcc" % (vLg + w, vLg + w))
        a("v_max3_f32 v6, v%d, v%d, v%d" % (vLg, vLg + 1, vLg + 2))
        a("v_max3_f32 v6, v6, v%d, v%d" % (vLg + 3, vLg + 4))
        a("v_max3_f32 v6, v6, v%d, v%d" % (vLg + 5, vLg + 6))
        a("v_max_f32 v6, v6, v%d" % (vLg + 7))
        a("v_mul_f32 v6, %s, v6" % sc)
        for w in range(8):
            a("v_fma_f32 v%d, v%d, %s, -v6" % (vLg + w, vLg + w, sc))
        for w in range(8):
            a("v_exp_f32 v%d, v%d" % (vLg + w, vLg + w))
        a("v_add_f32 v6, v%d, v%d" % (vLg, vLg + 1))
        for w in range(2, 8):
            a("v_add_f32 v6, v6, v%d" % (vLg + w))
        a("v_rcp_f32 v6, v6")
        for w in range(8):
            a("v_mul_f32 v%d, v%d, v6" % (vLg + w, vLg + w))
        for wp in range(4):
            a("v_cvt_pk_bf16_f32 v%d, v%d, v%d" % (vX + 4 + wp, vLg + 2 * wp, vLg + 2 * wp + 1))
        for wp in range(4):
            r0, r1 = pidx + 7 - 2 * wp, pidx + 6 - 2 * wp
            for i in range(4):
                a("v_perm_b32 v%d, v%d, v%d, s%d" % (vF + 2 * i, vV + 4 * r1 + i, vV + 4 * r0 + i, S0 + 5))
                a("v_perm_b32 v%d, v%d, v%d, s%d" % (vF + 2 * i + 1, vV + 4 * r1 + i, vV + 4 * r0 + i, S0 + 6))
            for e in range(8):
                a("v_dot2_f32_bf16 v%d, v%d, v%d, %s" % (vAcc + e, vF + e, vX + 4 + wp, "0" if wp == 0 else "v%d" % (vAcc + e)))
        for i in range(4):
            a("v_cvt_pk_bf16_f32 v%d, v%d, v%d" % (vX + i, vAcc + 2 * i, vAcc + 1 + 2 * i))
        a("s_mov_b32 s%d, %d" % (S0 + 4, 4096 * pidx))
        a("buffer_store_dwordx4 v[%d:%d], v4, s[%d:%d], s%d offen" % (vX, vX + 3, so, so + 3, S0 + 4))
    return NV


def gen_attn(ws_q, ws_kv, ws_ctx, ws_qkvb, ws_ob):
    a = Asm()
    PS = 32768
    KBASE, VBASE = 0, 3 * PS
    lds = 5 * PS
    NEG = 0xce800000
    vKb, vVb, vKw, vVw, vDma, vQa, vDiff = 4, 5, 6, 7, 8, 9, 10
    vM, vL, vAl, vMc, vNI = 11, 12, 13, 14, 15
    vT = 16
    vP = 32
    vSa = 48
    vSb = 80
    vO = 112
    NVARCH = 176
    NR = 6
    aQ = 0
    aK = 32
    aV = 32 + 4 * NR
    NA = 32 + 8 * NR
    AHEAD = int(os.environ.get('AHEAD', NR - 1))

    def v4(b):
        return "v[%d:%d]" % (b, b + 3)

    def a4(b):
        return "a[%d:%d]" % (b, b + 3)

    def v16(b):
        return "v[%d:%d]" % (b, b + 15)

    def stamp(k):
        if 'st' in FL:
            a("%s s[%d:%d]" % ("s_memtime" if 'cyc' in FL else "s_memrealtime", 60 + 2 * k, 61 + 2 * k))
            a("s_waitcnt lgkmcnt(0)")
    a("s_cmp_ge_u32 s2, 256")
    a("s_cbranch_scc1 Lka_end")
    stamp(0)
    a("s_load_dwordx2 s[4:5], s[0:1], 88")
    a("s_waitcnt lgkmcnt(0)")
    srd(a, 8, 4, 5, 16 * MB, ws_q)
    srd(a, 12, 4, 5, 32 * MB, ws_kv)
    srd(a, 16, 4, 5, 16 * MB, ws_ctx)
    a("s_and_b32 s20, s2, 7")
    a("s_lshr_b32 s30, s2, 6")
    a("s_lshl_b32 s30, s30, 3")
    a("s_add_u32 s20, s20, s30")
    a("s_lshr_b32 s21, s2, 3")
    a("s_and_b32 s21, s21, 7")
    a("v_lshrrev_b32 v%d, 6, v0" % vT)
    a("v_readfirstlane_b32 s33, v%d" % vT)
    a("s_and_b32 s25, s33, 3")
    a("s_lshr_b32 s38, s33, 2")
    a("v_and_b32 v1, 63, v0")
    a("v_and_b32 v2, 31, v0")
    a("v_lshrrev_b32 v3, 5, v1")
    a("s_lshl_b32 s26, s20, 20")
    a("s_lshl_b32 s30, s38, 14")
    a("s_add_u32 s26, s26, s30")
    a("s_and_b32 s30, s33, 1")
    a("s_lshl_b32 s30, s30, 13")
    a("s_add_u32 s26, s26, s30")
    a("s_bfe_u32 s31, s33, 0x10001")
    a("s_lshl_b32 s32, s31, 15")
    a("s_add_u32 s26, s26, s32")
    a("s_lshl_b32 s27, s31, 14")
    a("s_add_u32 s27, s27, s30")
    a("s_mul_i32 s30, s38, %d" % VBASE)
    a("s_add_u32 s27, s27, s30")
    a("s_mov_b32 s39, %d" % (3 * PS))
    a("s_cmp_eq_u32 s38, 1")
    a("s_cselect_b32 s39, %d, s39" % (2 * PS))
    cst = (128 ** -0.5) * math.log2(math.e)
    a("s_mov_b32 s28, 0x%08x" % f32bits(cst))
    a("v_lshlrev_b32 v%d, 4, v1" % vDma)
    a("v_lshlrev_b32 v%d, 4, v2" % vT)
    a("s_lshl_b32 s30, s38, 14")
    a("v_add_u32 v%d, s30, v%d" % (vT, vT))
    a("v_lshl_add_u32 v%d, v3, 10, v%d" % (vKb, vT))
    a("v_lshl_add_u32 v%d, v3, 11, v%d" % (vVb, vT))
    a("v_add_u32 v%d, %d, v%d" % (vVb, VBASE, vVb))
    a("v_mov_b32 v%d, 0x%08x" % (vNI, NEG))
    a("s_add_u32 s24, s21, 1")
    a("s_mov_b32 s29, 0")
    if 'wt' in FL:
        a("s_mov_b32 s86, 0")
        a("s_mov_b32 s87, 0")
    a("s_mov_b32 s22, s21")
    a("s_mov_b32 s34, 0")
    a("s_mov_b32 s35, 0")
    a("s_mov_b32 s36, 0")
    a("s_mov_b32 s37, 0")

    def dma():
        L = []
        L.append("s_sub_u32 s30, s34, s24")
        L.append("s_cmp_lt_u32 s34, s24")
        L.append("s_cselect_b32 s30, s34, s30")
        L.append("s_min_u32 s30, s30, 15")
        L.append("s_lshl_b32 s57, s30, 16")
        L.append("s_add_u32 s57, s57, s26")
        L.append("s_add_u32 s59, s35, s27")
        L.append("s_add_u32 s58, s57, 4096")
        L.append("s_add_u32 s34, s34, 1")
        L.append("s_add_u32 s35, s35, %d" % PS)
        L.append("s_cmp_eq_u32 s35, s39")
        L.append("s_cselect_b32 s35, 0, s35")
        for half in range(2):
            L.append("s_add_u32 m0, s59, %d" % (4096 * half))
            for j in range(4):
                L.append("buffer_load_dwordx4 v%d, s[12:15], %s offen offset:%d lds" % (vDma, "s58" if half else "s57", j * 1024))
        return L

    def spread(fill, d):
        pre = d[:12]
        rest = d[12:]
        out = list(pre)
        n = len(rest)
        if n == 0:
            return out + fill
        step = len(fill) / float(n)
        k = 0
        for i, x in enumerate(rest):
            tgt = int(i * step)
            out += fill[k:tgt]
            k = max(k, tgt)
            out.append(x)
        out += fill[k:]
        return out

    def qaddr(qb_sreg):
        a("s_lshl_b32 s30, s20, 5")
        a("s_lshl_b32 s31, %s, 1" % qb_sreg)
        a("s_add_u32 s30, s30, s31")
        a("s_lshr_b32 s31, s25, 1")
        a("s_add_u32 s30, s30, s31")
        a("s_lshl_b32 s30, s30, 14")
        a("s_and_b32 s31, s25, 1")
        a("s_lshl_b32 s31, s31, 9")
        a("s_add_u32 s30, s30, s31")
        a("v_lshlrev_b32 v%d, 4, v2" % (vT + 1))
        a("v_lshl_add_u32 v%d, v3, 10, v%d" % (vT + 1, vT + 1))
        for ds in range(8):
            a("s_add_u32 s31, s30, %d" % (ds * 2048))
            a("buffer_load_dwordx4 %s, v%d, s[8:11], s31 offen" % (a4(aQ + 4 * ds), vT + 1))

    def kread(i):
        b, ds = i >> 3, i & 7
        return "ds_read_b128 %s, v%d offset:%d" % (a4(aK + 4 * (i % NR)), vKw, ds * 2048 + b * 512)

    def vread(i):
        db, g = i >> 2, i & 3
        return "ds_read_b128 %s, v%d offset:%d" % (a4(aV + 4 * (i % NR)), vVw, g * 4096 + db * 512)

    def qk_items(S):
        items = []
        for i in range(16):
            b, ds = i >> 3, i & 7
            it = []
            if i + AHEAD < 16:
                it.append(kread(i + AHEAD))
            it.append("v_mfma_f32_32x32x16_bf16 %s, %s, %s, %s" % (
                v16(S + 16 * b), a4(aK + 4 * (i % NR)), a4(aQ + 4 * ds), "0" if ds == 0 else v16(S + 16 * b)))
            if 'nomfma' in FL:
                it = it[:-1]
            items.append(it)
        return items

    def mask_list(S):
        L = []
        for b in range(2):
            for r in range(16):
                kvo = 32 * b + (r & 3) + 8 * (r >> 2)
                L.append("v_cmp_gt_i32 vcc, %d, v%d" % (kvo, vT + 2))
                L.append("v_cndmask_b32 v%d, v%d, v%d, vcc" % (S + 16 * b + r, S + 16 * b + r, vNI))
        return L

    LAZY = 'nolazy' not in FL

    def sm_head(S):
        L = []
        L.append("v_max3_f32 v%d, v%d, v%d, v%d" % (vT, S, S + 1, S + 2))
        L.append("v_max3_f32 v%d, v%d, v%d, v%d" % (vT + 1, S + 3, S + 4, S + 5))
        for i in range(6, 30, 4):
            L.append("v_max3_f32 v%d, v%d, v%d, v%d" % (vT, vT, S + i, S + i + 1))
            L.append("v_max3_f32 v%d, v%d, v%d, v%d" % (vT + 1, vT + 1, S + i + 2, S + i + 3))
        L.append("v_max3_f32 v%d, v%d, v%d, v%d" % (vT, vT, S + 30, S + 31))
        L.append("v_max_f32 v%d, v%d, v%d" % (vT, vT, vT + 1))
        L.append("v_mov_b32 v%d, v%d" % (vT + 1, vT))
        L.append("v_permlane32_swap_b32 v%d, v%d" % (vT, vT + 1))
        L.append("v_max3_f32 v%d, v%d, v%d, v%d" % (vT, vT, vT + 1, vM))
        L.append("v_sub_f32 v%d, v%d, v%d" % (vAl, vM, vT))
        L.append("v_mul_f32 v%d, s28, v%d" % (vAl, vAl))
        return L

    def sm_update():
        L = []
        L.append("v_mul_f32 v%d, s28, v%d" % (vMc, vT))
        L.append("v_mov_b32 v%d, v%d" % (vM, vT))
        L.append("v_exp_f32 v%d, v%d" % (vAl, vAl))
        return L

    def sm_tail(S):
        L = []
        for i in range(0, 32, 4):
            for j in range(4):
                L.append("v_fma_f32 v%d, v%d, s28, -v%d" % (S + i + j, S + i + j, vMc))
            for j in range(4):
                L.append("v_exp_f32 v%d, v%d" % (S + i + j, S + i + j))
            if i >= 4:
                L.append("v_cvt_pk_bf16_f32 v%d, v%d, v%d" % (vP + i // 2 - 2, S + i - 4, S + i - 3))
                L.append("v_cvt_pk_bf16_f32 v%d, v%d, v%d" % (vP + i // 2 - 1, S + i - 2, S + i - 1))
        L.append("v_cvt_pk_bf16_f32 v%d, v%d, v%d" % (vP + 14, S + 28, S + 29))
        L.append("v_cvt_pk_bf16_f32 v%d, v%d, v%d" % (vP + 15, S + 30, S + 31))
        return L

    def resc(db):
        return ["v_mul_f32 v%d, v%d, v%d" % (vO + 16 * db + i, vO + 16 * db + i, vAl) for i in range(16)]

    def phase2(S, extra=None, tail=None):
        out = []
        for db in range(4):
            items = []
            for g in range(4):
                i = db * 4 + g
                it = []
                if i + AHEAD < 16:
                    it.append(vread(i + AHEAD))
                it.append("v_mfma_f32_32x32x16_bf16 %s, %s, %s, %s" % (
                    v16(vO + 16 * db), a4(aV + 4 * (i % NR)), v4(vP + 4 * g), v16(vO + 16 * db)))
                items.append(it)
            fill = []
            if not LAZY:
                if db < 3:
                    fill += resc(db + 1)
                if db == 0:
                    fill.append("v_mul_f32 v%d, v%d, v%d" % (vL, vL, vAl))
            if 'dotsum' in FL:
                fill += ["v_dot2_f32_bf16 v%d, v%d, s41, v%d" % (vL, vP + 4 * db + i, vL) for i in range(4)]
            else:
                fill += ["v_add_f32 v%d, v%d, v%d" % (vL, vL, S + 8 * db + i) for i in range(8)]
            if 'novalu' in FL:
                fill = []
            if extra:
                part = (extra[:12] if db == 0 else []) + extra[12 + (db * 10) // 4: 12 + ((db + 1) * 10) // 4]
                fill = spread(fill, [None] * 0 + part) if db else part[:12] + spread(fill, [None] * 12 + part[12:])[12:]
                if db:
                    fill = [x for x in spread([y for y in fill[len(part):]], [None] * 12 + part) if x is not None]
            if db == 3 and tail:
                fill = fill + tail
            if 'nomfma' in FL:
                items = [[y for y in x if not y.startswith('v_mfma')] for x in items]
            out += weave(items, fill)
        return out

    def kadv():
        a("s_add_u32 s37, s37, %d" % PS)
        a("s_cmp_eq_u32 s37, %d" % (3 * PS))
        a("s_cselect_b32 s37, 0, s37")

    rare = []

    def dmal():
        d = dma()
        if 'nodma' in FL:
            d = [x for x in d if not x.startswith('buffer')]
        if 'vload' in FL:
            d = [x.replace("buffer_load_dwordx4 v%d," % vDma, "buffer_load_dwordx4 v[28:31], v%d," % vDma).replace(" lds", "") if x.startswith('buffer') else x for x in d]
        if 'halfdma' in FL:
            k = [i for i, x in enumerate(d) if x.startswith('buffer')]
            d = [x for i, x in enumerate(d) if i not in k[::2]]
        return d

    def bar():
        if 'wt' in FL:
            a("s_memtime s[80:81]")
            a("s_waitcnt lgkmcnt(0)")
            a("s_waitcnt vmcnt(0)")
            a("s_memtime s[82:83]")
            a("s_waitcnt lgkmcnt(0)")
            a("s_barrier")
            a("s_memtime s[84:85]")
            a("s_waitcnt lgkmcnt(0)")
            a("s_sub_u32 s80, s82, s80")
            a("s_sub_u32 s82, s84, s82")
            a("s_add_u32 s86, s86, s80")
            a("s_add_u32 s87, s87, s82")
            return
        a("s_waitcnt vmcnt(0)")
        if 'nobar' not in FL:
            a("s_barrier")

    def p1(S, Sn, masked, qk, with_dma, kpre=False, vpre=True):
        if 'prioA' in FL:
            a("s_setprio 1")
        if 'prioB' in FL:
            a("s_setprio 0")
        if qk and not kpre:
            a("v_add_u32 v%d, s37, v%d" % (vKw, vKb))
            for i in range(AHEAD):
                a(kread(i))
        head = []
        if masked:
            a("s_lshl_b32 s30, s22, 7")
            a("s_lshl_b32 s31, s38, 6")
            a("s_add_u32 s30, s30, s31")
            a("v_subrev_u32 v%d, s30, v%d" % (vT + 2, vDiff))
            head += mask_list(S)
        head += sm_head(S)
        if 'novalu' in FL:
            head = []
        for x in head:
            a(x)
        if LAZY:
            Lr = a.newlabel("Lrs")
            Lb = a.newlabel("Lrb")
            a("v_cmp_gt_f32 vcc, 0xc1000000, v%d" % vAl)
            a("s_cbranch_vccnz %s" % Lr)
            rare.append((Lr, Lb))
            a.label(Lb)
            fill = []
        else:
            fill = sm_update()
        if 'novalu' not in FL:
            fill += sm_tail(S)
            if not LAZY:
                fill += resc(0)
        if with_dma:
            fill = spread(fill, dmal())
        if vpre:
            fill += [vread(i) for i in range(AHEAD)]
        if qk:
            for x in weave(qk_items(Sn), fill):
                a(x)
            kadv()
        else:
            for x in fill:
                a(x)

    def p2(S, with_dma, vpre_done, kpre):
        if 'prioA' in FL:
            a("s_setprio 0")
        if 'prioB' in FL:
            a("s_setprio 1")
        if not vpre_done:
            for i in range(AHEAD):
                a(vread(i))
        tail = None
        if kpre:
            tail = ["v_add_u32 v%d, s37, v%d" % (vKw, vKb)] + [kread(i) for i in range(AHEAD)]
        for x in phase2(S, extra=(dmal() if with_dma else None), tail=tail):
            a(x)
        a("s_xor_b32 s36, s36, %d" % PS)

    def vaddr():
        a("v_add_u32 v%d, s36, v%d" % (vVw, vVb))

    def loadq_next():
        a("s_sub_u32 s33, 15, s21")
        qaddr("s33")

    if 'bg1' in FL:
        a("s_cmp_eq_u32 s38, 1")
        a("s_cbranch_scc1 Lka_init_v")
        for x in dma():
            a(x)
        qaddr("s22")
        for t in range(2):
            for x in dma():
                a(x)
        a("s_branch Lka_init_end")
        a.label("Lka_init_v")

        def init_loads_v():
            a("v_and_b32 v2, 31, v0")
            a("v_lshrrev_b32 v3, 5, v1")
            for i in range(4):
                a("v_mov_b32 v%d, v%d" % (4 + i, vT + 8 + i))
            qaddr("s22")
            for x in dma():
                a(x)
            a("v_mov_b32 v2, v%d" % (vT + 12))
            a("v_mov_b32 v3, v%d" % (vT + 13))
        for i in range(4):
            a("v_mov_b32 v%d, v%d" % (vT + 8 + i, 4 + i))
        srd(a, 40, 4, 5, 12 * MB, ws_qkvb)
        srd(a, 44, 4, 5, 4 * MB, ws_ob)
        a("v_bfe_u32 v2, v0, 7, 1")
        a("s_lshl_b32 s30, s2, 3")
        a("v_add_u32 v2, s30, v2")
        a("v_and_b32 v3, 127, v0")
        a("v_lshlrev_b32 v3, 4, v3")
        a("v_mov_b32 v%d, v2" % (vT + 12))
        a("v_mov_b32 v%d, v3" % (vT + 13))
        nvb = battn_body(a, 4, 32, 40, 44, 48, mid=init_loads_v, wait=lambda n: a("s_waitcnt vmcnt(%d)" % (n + 16)))
        assert nvb <= NVARCH
        a("v_and_b32 v2, 31, v0")
        a("v_lshrrev_b32 v3, 5, v1")
        for i in range(4):
            a("v_mov_b32 v%d, v%d" % (4 + i, vT + 8 + i))
        a.label("Lka_init_end")
    else:
        def init_loads():
            a("v_and_b32 v2, 31, v0")
            a("v_lshrrev_b32 v3, 5, v1")
            for i in range(4):
                a("v_mov_b32 v%d, v%d" % (4 + i, vT + 8 + i))
            qaddr("s22")
            for x in dma():
                a(x)
            a("s_cmp_eq_u32 s38, 1")
            a("s_cbranch_scc1 Lka_init_done")
            for t in range(2):
                for x in dma():
                    a(x)
            a.label("Lka_init_done")
            a("v_mov_b32 v2, v%d" % (vT + 12))
            a("v_mov_b32 v3, v%d" % (vT + 13))

        def bwait(n):
            Lw = a.newlabel("Lbw")
            a("s_cmp_eq_u32 s38, 0")
            a("s_waitcnt vmcnt(%d)" % (n + 32))
            a("s_cbranch_scc1 %s" % Lw)
            a("s_waitcnt vmcnt(%d)" % (n + 16))
            a.label(Lw)

        for i in range(4):
            a("v_mov_b32 v%d, v%d" % (vT + 8 + i, 4 + i))
        srd(a, 40, 4, 5, 12 * MB, ws_qkvb)
        srd(a, 44, 4, 5, 4 * MB, ws_ob)
        a("v_bfe_u32 v2, v0, 7, 1")
        a("v_lshrrev_b32 v3, 8, v0")
        a("v_lshl_add_u32 v2, v3, 2, v2")
        a("s_lshl_b32 s30, s2, 3")
        a("v_add_u32 v2, s30, v2")
        a("v_and_b32 v3, 127, v0")
        a("v_lshlrev_b32 v3, 4, v3")
        a("v_mov_b32 v%d, v2" % (vT + 12))
        a("v_mov_b32 v%d, v3" % (vT + 13))
        nvb = battn_body(a, 2, 32, 40, 44, 48, mid=init_loads, wait=bwait)
        assert nvb <= NVARCH
        a("v_and_b32 v2, 31, v0")
        a("v_lshrrev_b32 v3, 5, v1")
        for i in range(4):
            a("v_mov_b32 v%d, v%d" % (4 + i, vT + 8 + i))
    a("s_mov_b32 s41, 0x3f803f80")
    a.label("Lka_block")
    a("s_lshl_b32 s30, s22, 7")
    a("s_lshl_b32 s31, s25, 5")
    a("s_add_u32 s30, s30, s31")
    a("v_add_u32 v%d, s30, v2" % vT)
    a("v_lshlrev_b32 v%d, 2, v3" % (vT + 1))
    a("v_sub_u32 v%d, v%d, v%d" % (vDiff, vT, vT + 1))
    a("v_lshlrev_b32 v%d, 13, v%d" % (vQa, vT))
    a("v_lshl_add_u32 v%d, v3, 4, v%d" % (vQa, vQa))
    a("s_lshl_b32 s30, s20, 8")
    a("v_add_u32 v%d, s30, v%d" % (vQa, vQa))
    for r in range(64):
        a("v_mov_b32 v%d, 0" % (vO + r))
    a("v_mov_b32 v%d, 0x%08x" % (vM, NEG))
    a("v_mul_f32 v%d, s28, v%d" % (vMc, vM))
    a("v_mov_b32 v%d, 0" % vL)
    a("s_waitcnt vmcnt(8)")
    a("s_barrier")
    if 'st' in FL:
        a("s_cmp_eq_u32 s29, 0")
        a("s_cbranch_scc1 Lst_a")
        stamp(4)
        a("s_branch Lst_b")
        a.label("Lst_a")
        stamp(1)
        a.label("Lst_b")
    a("s_lshl_b32 s30, s38, 1")
    a("s_add_u32 s30, s30, s29")
    a("s_cmp_lg_u32 s30, 1")
    a("s_cbranch_scc1 Lka_nodef")
    for x in dmal():
        a(x)
    a.label("Lka_nodef")
    a("v_add_u32 v%d, s37, v%d" % (vKw, vKb))
    for i in range(AHEAD):
        a(kread(i))
    for it in qk_items(vSa):
        for x in it:
            a(x)
    kadv()
    KPRE = 'nokpre' not in FL
    if KPRE:
        a("v_add_u32 v%d, s37, v%d" % (vKw, vKb))
        for i in range(AHEAD):
            a(kread(i))
    a("s_mov_b32 s23, s22")
    a("s_cmp_eq_u32 s38, 1")
    a("s_cbranch_scc1 Lka_g1")
    def body0(S, Sn, masked, qk):
        bar()
        vaddr()
        p1(S, Sn, masked, qk, qk, kpre=KPRE)
        p2(S, False, True, KPRE and qk)
    a("s_cmp_eq_u32 s23, 0")
    a("s_cbranch_scc1 Lka_finA")
    a.label("Lka_loop")
    body0(vSa, vSb, False, True)
    a("s_sub_u32 s23, s23, 1")
    a("s_cmp_eq_u32 s23, 0")
    a("s_cbranch_scc1 Lka_finB")
    body0(vSb, vSa, False, True)
    a("s_sub_u32 s23, s23, 1")
    a("s_cmp_lg_u32 s23, 0")
    a("s_cbranch_scc1 Lka_loop")
    a.label("Lka_finA")
    loadq_next()
    body0(vSa, None, True, False)
    a("s_branch Lka_merge")
    a.label("Lka_finB")
    loadq_next()
    body0(vSb, None, True, False)
    a("s_branch Lka_merge")
    a.label("Lka_g1")
    if 'prioG' in FL:
        a("s_setprio 1")
    a("s_cmp_eq_u32 s23, 0")
    a("s_cbranch_scc1 Lka_g1finA")
    p1(vSa, vSb, False, True, False, kpre=KPRE, vpre=False)
    a.label("Lka_g1loop")
    bar()
    vaddr()
    p2(vSa, True, False, KPRE)
    a("s_sub_u32 s23, s23, 1")
    a("s_cmp_eq_u32 s23, 0")
    a("s_cbranch_scc1 Lka_g1finB")
    p1(vSb, vSa, False, True, False, kpre=KPRE, vpre=False)
    bar()
    vaddr()
    p2(vSb, True, False, KPRE)
    a("s_sub_u32 s23, s23, 1")
    a("s_cmp_eq_u32 s23, 0")
    a("s_cbranch_scc1 Lka_g1finA")
    p1(vSa, vSb, False, True, False, kpre=KPRE, vpre=False)
    a("s_branch Lka_g1loop")
    a.label("Lka_g1finA")
    loadq_next()
    p1(vSa, None, True, False, False, vpre=False)
    bar()
    vaddr()
    p2(vSa, True, False, False)
    a("s_branch Lka_merge")
    a.label("Lka_g1finB")
    loadq_next()
    p1(vSb, None, True, False, False, vpre=False)
    bar()
    vaddr()
    p2(vSb, True, False, False)
    a.label("Lka_merge")
    if 'st' in FL:
        a("s_cmp_eq_u32 s29, 0")
        a("s_cbranch_scc1 Lst_c")
        stamp(5)
        a("s_branch Lst_d")
        a.label("Lst_c")
        stamp(2)
        a.label("Lst_d")
    a("v_mov_b32 v%d, v%d" % (vT, vL))
    a("v_permlane32_swap_b32 v%d, v%d" % (vL, vT))
    a("v_add_f32 v%d, v%d, v%d" % (vL, vL, vT))
    a("s_xor_b32 s30, s36, %d" % PS)
    a("s_add_u32 s30, s30, %d" % VBASE)
    a("s_add_u32 s31, s37, %d" % (2 * PS))
    a("s_sub_u32 s32, s31, %d" % (3 * PS))
    a("s_cmp_ge_u32 s31, %d" % (3 * PS))
    a("s_cselect_b32 s31, s32, s31")
    a("v_lshrrev_b32 v%d, 1, v%d" % (vT + 6, vDma))
    a("s_lshl_b32 s32, s38, 2")
    a("s_add_u32 s32, s32, s25")
    a("s_lshl_b32 s33, s32, 9")
    a("s_add_u32 s33, s33, s30")
    a("v_add_u32 v%d, s33, v%d" % (vT + 7, vT + 6))
    a("s_xor_b32 s32, s32, 4")
    a("s_lshl_b32 s33, s32, 9")
    a("s_add_u32 s33, s33, s30")
    a("v_add_u32 v%d, s33, v%d" % (vT + 6, vT + 6))
    a("s_lshl_b32 s32, s25, 13")
    a("s_add_u32 s30, s30, s32")
    a("s_add_u32 s31, s31, s32")
    a("s_cmp_eq_u32 s38, 0")
    a("s_cselect_b32 s32, s30, s31")
    a("s_cselect_b32 s33, s31, s30")
    a("v_add_u32 v%d, s32, v%d" % (vKw, vDma))
    a("v_add_u32 v%d, s33, v%d" % (vVw, vDma))
    a("v_mov_b32 v%d, v%d" % (vT + 4, vM))
    a("v_mov_b32 v%d, v%d" % (vT + 5, vL))
    a("s_barrier")
    a("ds_write_b64 v%d, v[%d:%d]" % (vT + 7, vT + 4, vT + 5))
    a("s_waitcnt lgkmcnt(0)")
    a("s_barrier")
    a("ds_read_b64 v[%d:%d], v%d" % (vT + 8, vT + 9, vT + 6))
    a("v_max_f32 v%d, v%d, v%d" % (vT, vM, vT + 8))
    a("v_sub_f32 v%d, v%d, v%d" % (vT + 1, vM, vT))
    a("v_sub_f32 v%d, v%d, v%d" % (vT + 2, vT + 8, vT))
    a("v_mul_f32 v%d, s28, v%d" % (vT + 1, vT + 1))
    a("v_mul_f32 v%d, s28, v%d" % (vT + 2, vT + 2))
    a("v_exp_f32 v%d, v%d" % (vT + 1, vT + 1))
    a("v_exp_f32 v%d, v%d" % (vT + 2, vT + 2))
    a("v_mul_f32 v%d, v%d, v%d" % (vL, vL, vT + 1))
    a("v_fmac_f32 v%d, v%d, v%d" % (vL, vT + 9, vT + 2))
    a("v_rcp_f32 v%d, v%d" % (vL, vL))
    a("v_mul_f32 v%d, v%d, v%d" % (vAl, vT + 1, vL))
    a("s_barrier")
    for g in range(2):
        Lg = "Lka_mg%d" % g
        if g == 0:
            a("s_cmp_eq_u32 s38, 1")
            a("s_cbranch_scc1 Lka_mg1")
        else:
            a.label(Lg)
        out_b, keep_b = vO + 32 * (1 - g), vO + 32 * g
        for q in range(8):
            for e in range(4):
                a("v_mul_f32 v%d, v%d, v%d" % (out_b + 4 * q + e, out_b + 4 * q + e, vAl))
            a("ds_write_b128 v%d, %s offset:%d" % (vKw, v4(out_b + 4 * q), q * 1024))
        a("s_waitcnt lgkmcnt(0)")
        a("s_barrier")
        for q in range(8):
            a("ds_read_b128 %s, v%d offset:%d" % (v4(vSa + 4 * q), vVw, q * 1024))
        k = 0
        for dd in range(2):
            db = 2 * g + dd
            for jp in range(2):
                t = vT + 4 * (k % 4)
                k += 1
                r = vO + 16 * db + 8 * jp
                for e in range(8):
                    a("v_fma_f32 v%d, v%d, v%d, v%d" % (r + e, r + e, vAl, vSa + 16 * dd + 8 * jp + e))
                a("v_cvt_pk_bf16_f32 v%d, v%d, v%d" % (t, r, r + 1))
                a("v_cvt_pk_bf16_f32 v%d, v%d, v%d" % (t + 1, r + 2, r + 3))
                a("v_cvt_pk_bf16_f32 v%d, v%d, v%d" % (t + 2, r + 4, r + 5))
                a("v_cvt_pk_bf16_f32 v%d, v%d, v%d" % (t + 3, r + 6, r + 7))
                a("v_permlane32_swap_b32 v%d, v%d" % (t, t + 2))
                a("v_permlane32_swap_b32 v%d, v%d" % (t + 1, t + 3))
                a("buffer_store_dwordx4 v[%d:%d], v%d, s[16:19], 0 offen offset:%d%s" % (t, t + 3, vQa, db * 64 + jp * 32, SF))
        if g == 0:
            a("s_branch Lka_mdone")
    a.label("Lka_mdone")
    if 'st' in FL:
        a("s_cmp_eq_u32 s29, 0")
        a("s_cbranch_scc1 Lst_e")
        stamp(6)
        a("s_branch Lst_f")
        a.label("Lst_e")
        stamp(3)
        a.label("Lst_f")
    a("s_sub_u32 s22, 15, s21")
    a("s_add_u32 s29, s29, 1")
    a("s_cmp_lt_u32 s29, 2")
    a("s_cbranch_scc1 Lka_block")
    if 'st' in FL:
        a("s_waitcnt vmcnt(0)")
        stamp(7)
        a("s_load_dwordx2 s[48:49], s[0:1], 80")
        a("s_waitcnt lgkmcnt(0)")
        a("s_mov_b32 s50, 256")
        a("s_mov_b32 s51, 0x00020000")
        for k in range(8):
            a("s_sub_u32 s30, s%d, s60" % (60 + 2 * k))
            a("v_mov_b32 v%d, s30" % (vT + k))
        a("v_mov_b32 v%d, 0" % (vT + 8))
        a("s_and_b32 s30, s2, 0xc7")
        a("s_cmp_lg_u32 s30, 0")
        a("s_cbranch_scc1 Lka_end")
        a("s_cmp_lg_u32 s33, 15")
        a("s_lshl_b32 s30, s21, 5")
        a("v_readfirstlane_b32 s31, v0")
        a("s_cmp_lg_u32 s31, 0")
        a("s_cbranch_scc1 Lka_end")
        a("buffer_store_dwordx4 v[%d:%d], v%d, s[48:51], s30 offen" % (vT, vT + 3, vT + 8))
        a("buffer_store_dwordx4 v[%d:%d], v%d, s[48:51], s30 offen offset:16" % (vT + 4, vT + 7, vT + 8))
    if 'wt' in FL:
        a("s_load_dwordx2 s[48:49], s[0:1], 80")
        a("s_waitcnt lgkmcnt(0)")
        a("s_mov_b32 s50, 256")
        a("s_mov_b32 s51, 0x00020000")
        a("v_mov_b32 v%d, s86" % vT)
        a("v_mov_b32 v%d, s87" % (vT + 1))
        a("v_mov_b32 v%d, 0" % (vT + 2))
        a("v_lshrrev_b32 v%d, 6, v0" % (vT + 3))
        a("v_readfirstlane_b32 s30, v%d" % (vT + 3))
        a("s_lshl_b32 s30, s30, 3")
        a("s_cmp_lg_u32 s2, 8")
        a("s_cbranch_scc1 Lka_end")
        a("buffer_store_dwordx2 v[%d:%d], v%d, s[48:51], s30 offen" % (vT, vT + 1, vT + 2))
    a.label("Lka_end")
    a("s_endpgm")
    for Lr, Lb in rare:
        a.label(Lr)
        for x in sm_update():
            a(x)
        a("v_mul_f32 v%d, v%d, v%d" % (vL, vL, vAl))
        for db in range(4):
            for x in resc(db):
                a(x)
        a("s_branch %s" % Lb)
    if 'noreads' in FL:
        a.ins = [x for x in a.ins if not (x.mn == 'ds_read_b128' and ' a[' in x.text)]
    if 'noexp' in FL:
        from asmlib import Ins
        a.ins = [Ins(x.text.replace('v_exp_f32', 'v_mov_b32')) if x.mn == 'v_exp_f32' else x for x in a.ins]
    return a.finish(auto_lgkm=True), (NVARCH + NA, NVARCH), lds
```

```python
from asmlib import interleave


import os
FL = set(os.environ.get("GFLAGS", "").split(","))


class Cfg:
    def __init__(self, TM, TN, WM, WN, NS=2):
        self.TM, self.TN, self.WM, self.WN = TM, TN, WM, WN
        self.NS = NS
        self.NW = WM * WN
        self.wtm, self.wtn = TM // WM, TN // WN
        self.MI, self.NI = self.wtm // 32, self.wtn // 32
        self.XS = TM * 128
        self.WS = TN * 128
        self.lds = NS * (self.XS + self.WS)
        self.nxd = TM // 8 // self.NW
        self.nwd = TN // 8 // self.NW
        self.wrows = 512 // TN
        self.vXrd = 10
        self.vWrd = 14
        self.vXg = 20
        self.vWg = 20 + self.nxd
        self.vPf = 30
        self.vT = 32
        self.fr = 64
        self.fsz = 4 * (self.MI + self.NI)
        self.acc = self.fr + 2 * self.fsz
        self.acc = (self.acc + 15) // 16 * 16
        self.nv = self.acc + 16 * self.MI * self.NI

    def xf(self, st, mi):
        b = self.fr + st * self.fsz + 4 * mi
        return "v[%d:%d]" % (b, b + 3)

    def wfb(self, st, ni):
        return self.fr + st * self.fsz + 4 * self.MI + 4 * ni

    def wf(self, st, ni):
        b = self.wfb(st, ni)
        return "v[%d:%d]" % (b, b + 3)

    def accr(self, mi, ni):
        b = self.acc + 16 * (mi * self.NI + ni)
        return "v[%d:%d]" % (b, b + 15)

    def accb(self, mi, ni):
        return self.acc + 16 * (mi * self.NI + ni)


def log2(x):
    n = x.bit_length() - 1
    assert 1 << n == x
    return n


def gemm_setup(a, c):
    T = c.vT
    a("v_lshrrev_b32 v%d, 6, v0" % T)
    a("v_readfirstlane_b32 s29, v%d" % T)
    a("s_lshr_b32 s30, s29, %d" % log2(c.WN))
    a("s_and_b32 s31, s29, %d" % (c.WN - 1))
    a("v_and_b32 v1, 63, v0")
    a("v_and_b32 v2, 31, v0")
    a("v_lshrrev_b32 v3, 5, v1")
    a("s_mul_i32 s4, s30, %d" % (c.wtm * 128))
    a("v_lshlrev_b32 v%d, 7, v2" % T)
    a("v_add_u32 v%d, s4, v%d" % (T, T))
    a("v_lshrrev_b32 v%d, 1, v2" % (T + 1))
    a("v_and_b32 v%d, 7, v%d" % (T + 1, T + 1))
    a("v_xor_b32 v%d, v%d, v3" % (T + 1, T + 1))
    for sub in range(4):
        a("v_xor_b32 v%d, %d, v%d" % (T + 2, sub * 2, T + 1))
        a("v_lshl_add_u32 v%d, v%d, 4, v%d" % (c.vXrd + sub, T + 2, T))
    rs = 2 * c.TN
    a("v_lshrrev_b32 v%d, 2, v1" % T)
    a("v_and_b32 v%d, 3, v%d" % (T, T))
    a("v_lshl_add_u32 v%d, v3, 3, v%d" % (T + 1, T))
    a("v_mul_u32_u24 v%d, %d, v%d" % (T + 1, rs, T + 1))
    a("v_and_b32 v%d, 3, v1" % (T + 2))
    a("v_lshl_add_u32 v%d, v%d, 3, v%d" % (T + 1, T + 2, T + 1))
    a("v_lshrrev_b32 v%d, 4, v1" % (T + 2))
    a("v_and_b32 v%d, 1, v%d" % (T + 2, T + 2))
    a("v_lshl_add_u32 v%d, v%d, 5, v%d" % (T + 1, T + 2, T + 1))
    a("v_add_u32 v%d, %d, v%d" % (T + 1, c.NS * c.XS, T + 1))
    if c.TN >= 128:
        pass
    else:
        a("v_lshrrev_b32 v%d, 1, v%d" % (T, T))
    a("s_mul_i32 s4, s31, %d" % c.NI)
    for ni in range(c.NI):
        a("s_add_u32 s5, s4, %d" % ni)
        a("v_xor_b32 v%d, s5, v%d" % (T + 2, T))
        a("v_lshl_add_u32 v%d, v%d, 6, v%d" % (c.vWrd + ni, T + 2, T + 1))
    a("s_mul_i32 s4, s29, %d" % (c.TM // c.NW))
    a("v_lshrrev_b32 v%d, 3, v1" % T)
    a("v_add_u32 v%d, s4, v%d" % (T, T))
    a("v_and_b32 v%d, 7, v1" % (T + 1))
    for j in range(c.nxd):
        a("v_add_u32 v%d, %d, v%d" % (T + 2, 8 * j, T))
        a("v_lshrrev_b32 v%d, 1, v%d" % (T + 3, T + 2))
        a("v_and_b32 v%d, 7, v%d" % (T + 3, T + 3))
        a("v_xor_b32 v%d, v%d, v%d" % (T + 3, T + 3, T + 1))
        a("v_mul_lo_u32 v%d, v%d, s24" % (T + 2, T + 2))
        a("v_lshl_add_u32 v%d, v%d, 4, v%d" % (c.vXg + j, T + 3, T + 2))
    cpr = c.TN // 8
    a("s_mul_i32 s4, s29, %d" % (c.nwd * c.wrows))
    a("v_lshrrev_b32 v%d, %d, v1" % (T, log2(cpr)))
    a("v_add_u32 v%d, s4, v%d" % (T, T))
    a("v_and_b32 v%d, %d, v1" % (T + 1, cpr - 1))
    for j in range(c.nwd):
        a("v_add_u32 v%d, %d, v%d" % (T + 2, c.wrows * j, T))
        if c.TN >= 128:
            a("v_and_b32 v%d, 3, v%d" % (T + 3, T + 2))
        else:
            a("v_bfe_u32 v%d, v%d, 1, 1" % (T + 3, T + 2))
        a("v_lshlrev_b32 v%d, 2, v%d" % (T + 3, T + 3))
        a("v_xor_b32 v%d, v%d, v%d" % (T + 3, T + 3, T + 1))
        a("v_mul_lo_u32 v%d, v%d, s25" % (T + 2, T + 2))
        a("v_lshl_add_u32 v%d, v%d, 4, v%d" % (c.vWg + j, T + 3, T + 2))
    a("s_lshl_b32 s4, s29, 6")
    a("v_add_u32 v%d, s4, v1" % T)
    a("v_mul_lo_u32 v%d, v%d, s24" % (c.vPf, T))
    lpr = c.TN // 64
    a("v_lshrrev_b32 v%d, %d, v%d" % (T + 1, log2(lpr), T))
    a("v_mul_lo_u32 v%d, v%d, s25" % (T + 1, T + 1))
    a("v_and_b32 v%d, %d, v%d" % (T + 2, lpr - 1, T))
    a("v_lshl_add_u32 v%d, v%d, 7, v%d" % (c.vPf + 1, T + 2, T + 1))
    a("s_mul_i32 s6, s29, %d" % (c.nxd * 1024))
    a("s_mul_i32 s7, s29, %d" % (c.nwd * 1024))
    a("s_add_u32 s7, s7, %d" % (c.NS * c.XS))


def dma_list(c, st):
    L = []
    for j in range(c.nxd):
        L.append("s_add_u32 m0, s6, %d" % (st * c.XS + j * 1024))
        L.append("buffer_load_dwordx4 v%d, s[8:11], s20 offen lds" % (c.vXg + j))
    for j in range(c.nwd):
        L.append("s_add_u32 m0, s7, %d" % (st * c.WS + j * 1024))
        L.append("buffer_load_dwordx4 v%d, s[12:15], s21 offen lds" % (c.vWg + j))
    L.append("s_add_u32 s20, s20, 128")
    L.append("s_add_u32 s21, s21, s22")
    return L


def pf_list(c, dist):
    L = []
    L.append("s_add_u32 s4, s20, %d" % (128 * dist))
    L.append("s_mul_i32 s5, s22, %d" % dist)
    L.append("s_add_u32 s5, s5, s21")
    if c.NW * 64 > c.TM:
        pass
    L.append("buffer_load_dword v9, v%d, s[8:11], s4 offen" % c.vPf)
    L.append("buffer_load_dword v9, v%d, s[12:15], s5 offen" % (c.vPf + 1))
    return L


def reads(c, st, sub, fs):
    L = []
    if "noreads" in FL:
        return L
    rs = 2 * c.TN
    L.append("ds_read_b128 %s, v%d offset:%d" % (c.xf(fs, 0), c.vXrd + sub, st * c.XS))
    for ni in range(c.NI):
        b = c.wfb(fs, ni)
        for j in range(2):
            if "notr" in FL:
                continue
            L.append("ds_read_b64_tr_b16 v[%d:%d], v%d offset:%d" % (
                b + 2 * j, b + 2 * j + 1, c.vWrd + ni, st * c.WS + (sub * 16 + j * 4) * rs))
    for mi in range(1, c.MI):
        L.append("ds_read_b128 %s, v%d offset:%d" % (c.xf(fs, mi), c.vXrd + sub, st * c.XS + mi * 4096))
    return L


def mfmas(c, fs, swapped):
    L = []
    for mi in range(c.MI):
        for ni in range(c.NI):
            if swapped:
                L.append("v_mfma_f32_32x32x16_bf16 %s, %s, %s, %s" % (c.accr(mi, ni), c.xf(fs, mi), c.wf(fs, ni), c.accr(mi, ni)))
            else:
                L.append("v_mfma_f32_32x32x16_bf16 %s, %s, %s, %s" % (c.accr(mi, ni), c.wf(fs, ni), c.xf(fs, mi), c.accr(mi, ni)))
    return L


def gemm_main(a, c, swapped):
    NS = c.NS
    nd = c.nxd + c.nwd
    PD = int(os.environ.get("PD", "0"))
    npf = 2 if PD else 0
    for st in range(NS - 1):
        for x in dma_list(c, st):
            a(x)
    for d in range(PD):
        for x in pf_list(c, d):
            a(x)
    for r in range(c.acc, c.nv):
        a("v_mov_b32 v%d, 0" % r)
    for r in range(c.fr + c.fsz, c.fr + 2 * c.fsz):
        a("v_mov_b32 v%d, 0" % r)
    Lh = a.newlabel("Lg")
    a.label(Lh)
    mf = (lambda fs: []) if "nomfma" in FL else (lambda fs: mfmas(c, fs, swapped))
    for st in range(NS):
        a("s_waitcnt vmcnt(%d) lgkmcnt(0)" % ((nd + npf) * (NS - 2) + npf))
        a("s_barrier")
        rd = reads(c, st, 0, 0)
        dm = dma_list(c, (st + NS - 1) % NS)
        if PD:
            dm = dm + pf_list(c, PD - 1)
        if "nodma" in FL:
            dm = []
        for x in interleave(mf(1), rd + dm):
            a(x)
        for sub in range(1, 4):
            a("s_waitcnt lgkmcnt(0)")
            for x in interleave(mf((sub - 1) & 1), reads(c, st, sub, sub & 1), per=2):
                a(x)
    a("s_sub_u32 s23, s23, 1")
    a("s_cmp_lg_u32 s23, 0")
    a("s_cbranch_scc1 %s" % Lh)
    a("s_waitcnt lgkmcnt(0)")
    for x in mfmas(c, 1, swapped):
        a(x)


def epi_rowmajor(a, c):
    if 'noepi' in FL:
        return
    T = c.vT
    a("s_mul_i32 s4, s30, %d" % c.wtm)
    a("s_add_u32 s4, s4, s27")
    a("v_and_b32 v%d, 15, v1" % T)
    a("v_add_u32 v%d, s4, v%d" % (T, T))
    a("v_mul_lo_u32 v%d, v%d, s26" % (T, T))
    a("s_mul_i32 s4, s31, %d" % c.wtn)
    a("s_add_u32 s4, s4, s28")
    a("s_lshl_b32 s4, s4, 1")
    a("v_lshl_add_u32 v%d, v3, 4, v%d" % (T, T))
    a("v_bfe_u32 v%d, v1, 4, 1" % (T + 1))
    a("v_lshl_add_u32 v%d, v%d, 5, v%d" % (T, T + 1, T))
    a("v_add_u32 v%d, s4, v%d" % (T, T))
    a("s_lshl_b32 s5, s26, 4")
    a("s_mov_b32 s4, 0")
    a("s_mov_b32 s3, s5")
    k = 0
    for mi in range(c.MI):
        for ni in range(c.NI):
            b = c.accb(mi, ni)
            t = T + 4 + 8 * (k % 3)
            k += 1
            for jp in range(2):
                r = b + 8 * jp
                u = t + 4 * jp
                a("v_cvt_pk_bf16_f32 v%d, v%d, v%d" % (u, r, r + 1))
                a("v_cvt_pk_bf16_f32 v%d, v%d, v%d" % (u + 1, r + 2, r + 3))
                a("v_cvt_pk_bf16_f32 v%d, v%d, v%d" % (u + 2, r + 4, r + 5))
                a("v_cvt_pk_bf16_f32 v%d, v%d, v%d" % (u + 3, r + 6, r + 7))
                a("v_permlane32_swap_b32 v%d, v%d" % (u, u + 2))
                a("v_permlane32_swap_b32 v%d, v%d" % (u + 1, u + 3))
            for e in range(4):
                a("v_permlane16_swap_b32 v%d, v%d" % (t + e, t + 4 + e))
            a("buffer_store_dwordx4 v[%d:%d], v%d, s[16:19], s4 offen offset:%d" % (t, t + 3, T, ni * 64))
            a("buffer_store_dwordx4 v[%d:%d], v%d, s[16:19], s3 offen offset:%d" % (t + 4, t + 7, T, ni * 64))
        if mi + 1 < c.MI:
            a("s_lshl_b32 s5, s26, 5")
            a("s_add_u32 s4, s4, s5")
            a("s_add_u32 s3, s3, s5")


def epi_kimage(a, c, sh=15):
    if 'noepi' in FL:
        return
    assert c.wtn == 64 and c.wtm == 128
    T = c.vT
    a("v_lshlrev_b32 v%d, 10, v3" % T)
    a("v_lshl_add_u32 v%d, v2, 4, v%d" % (T, T))
    a("s_lshl_b32 s4, s31, 6")
    a("s_add_u32 s4, s4, s28")
    a("s_lshr_b32 s4, s4, 7")
    a("s_lshl_b32 s4, s4, 5")
    a("s_lshl_b32 s5, s30, 7")
    a("s_add_u32 s5, s5, s27")
    a("s_lshr_b32 s5, s5, 6")
    a("s_add_u32 s4, s4, s5")
    a("s_lshl_b32 s4, s4, %d" % sh)
    a("s_and_b32 s5, s31, 1")
    a("s_lshl_b32 s5, s5, 13")
    a("s_add_u32 s4, s4, s5")
    k = 0
    for mi in range(c.MI):
        for ni in range(c.NI):
            b = c.accb(mi, ni)
            for jp in range(2):
                t = T + 4 + 4 * (k % 6)
                k += 1
                r = b + 8 * jp
                a("s_add_u32 s5, s4, %d" % ((mi >> 1) * (1 << sh) + (mi & 1) * 512 + (ni * 4 + jp * 2) * 1024))
                a("v_cvt_pk_bf16_f32 v%d, v%d, v%d" % (t, r, r + 1))
                a("v_cvt_pk_bf16_f32 v%d, v%d, v%d" % (t + 1, r + 2, r + 3))
                a("v_cvt_pk_bf16_f32 v%d, v%d, v%d" % (t + 2, r + 4, r + 5))
                a("v_cvt_pk_bf16_f32 v%d, v%d, v%d" % (t + 3, r + 6, r + 7))
                a("v_permlane32_swap_b32 v%d, v%d" % (t, t + 2))
                a("v_permlane32_swap_b32 v%d, v%d" % (t + 1, t + 3))
                a("buffer_store_dwordx4 v[%d:%d], v%d, s[16:19], s5 offen" % (t, t + 3, T))


def epi_vimage(a, c):
    if 'noepi' in FL:
        return
    assert c.wtn == 64 and c.wtm == 128
    T = c.vT
    a("v_lshlrev_b32 v%d, 11, v3" % T)
    a("v_lshl_add_u32 v%d, v2, 4, v%d" % (T, T))
    a("s_lshl_b32 s4, s31, 6")
    a("s_add_u32 s4, s4, s28")
    a("s_lshr_b32 s4, s4, 7")
    a("s_lshl_b32 s4, s4, 5")
    a("s_lshl_b32 s5, s30, 7")
    a("s_add_u32 s5, s5, s27")
    a("s_lshr_b32 s5, s5, 6")
    a("s_add_u32 s4, s4, s5")
    a("s_lshl_b32 s4, s4, 15")
    a("s_and_b32 s5, s31, 1")
    a("s_lshl_b32 s5, s5, 10")
    a("s_add_u32 s4, s4, s5")
    k = 0
    for mi in range(c.MI):
        for ni in range(c.NI):
            b = c.accb(mi, ni)
            for s in range(2):
                t = T + 4 + 4 * (k % 6)
                k += 1
                r = b + 8 * s
                a("s_add_u32 s5, s4, %d" % ((mi >> 1) * 32768 + 16384 + ((mi & 1) * 2 + s) * 4096 + ni * 512))
                a("v_cvt_pk_bf16_f32 v%d, v%d, v%d" % (t, r, r + 1))
                a("v_cvt_pk_bf16_f32 v%d, v%d, v%d" % (t + 1, r + 2, r + 3))
                a("v_cvt_pk_bf16_f32 v%d, v%d, v%d" % (t + 2, r + 4, r + 5))
                a("v_cvt_pk_bf16_f32 v%d, v%d, v%d" % (t + 3, r + 6, r + 7))
                a("buffer_store_dwordx4 v[%d:%d], v%d, s[16:19], s5 offen" % (t, t + 3, T))
```

```python
import os
from asmlib import Asm, interleave

MB = 1 << 20
FL = set(os.environ.get("GFLAGS", "").split(","))
SF = os.environ.get("SF", "")
if SF:
    SF = " " + SF.replace("_", " ")


def log2(x):
    n = x.bit_length() - 1
    assert 1 << n == x, x
    return n


def srd(a, d, lo, hi, size, off=0):
    if off:
        a("s_add_u32 s%d, s%d, %d" % (d, lo, off))
        a("s_addc_u32 s%d, s%d, 0" % (d + 1, hi))
    else:
        a("s_mov_b32 s%d, s%d" % (d, lo))
        a("s_mov_b32 s%d, s%d" % (d + 1, hi))
    a("s_mov_b32 s%d, %d" % (d + 2, size))
    a("s_mov_b32 s%d, 0x00020000" % (d + 3))


class P:
    pass


def gen(pfx, TM, TN, WM, WN, NSX, NSW, jobs, njobs, prologue, job_of_wg, grid, pre=None, tail=None, post_pro=None, rot=1):
    assert NSW <= NSX
    global ROT
    ROT = rot
    NW = WM * WN
    wtm, wtn = TM // WM, TN // WN
    MI, NI = wtm // 16, wtn // 16
    MH = MI // 2
    XS, WS = TM * 128, TN * 128
    WB = NSX * XS
    nxd, nwd = TM // 8 // NW, TN // 8 // NW
    wrows = 512 // TN
    cpr = TN // 8
    T = 32
    vXrd, vWrd = 8, 10
    vXw, vWw = 14, 16
    vXg, vWg = 20, 26
    assert nxd <= 6 and nwd <= 6
    XA = 64
    XB = XA + 4 * MH
    W0 = XB + 4 * MH
    ACC = (W0 + 8 * NI + 15) // 16 * 16
    NV = ACC + 4 * MI * NI
    E = 64 if W0 + 8 * NI - 64 >= 32 else NV
    if E == NV:
        NV += 32
    a = Asm()
    ST = 'st' in FL

    def r4(b):
        return "v[%d:%d]" % (b, b + 3)

    def accr(mi, ni):
        return r4(ACC + 4 * (mi * NI + ni))

    def mfmas(half, wp, swapped):
        L = []
        xb = XB if half else XA
        for m4 in range(MH):
            for ni in range(NI):
                x, w, d = r4(xb + 4 * m4), r4(W0 + 4 * NI * wp + 4 * ni), accr(half * MH + m4, ni)
                if swapped:
                    L.append("v_mfma_f32_16x16x32_bf16 %s, %s, %s, %s" % (d, x, w, d))
                else:
                    L.append("v_mfma_f32_16x16x32_bf16 %s, %s, %s, %s" % (d, w, x, d))
        return L

    def wswz(dst, k, tmp):
        if TN >= 128:
            a("v_and_b32 v%d, 3, v%d" % (dst, k))
            a("v_lshlrev_b32 v%d, 1, v%d" % (dst, dst))
            a("v_and_or_b32 v%d, v%d, 8, v%d" % (dst, k, dst))
        else:
            a("v_lshrrev_b32 v%d, 1, v%d" % (tmp, k))
            a("v_and_b32 v%d, 4, v%d" % (tmp, tmp))
            a("v_and_or_b32 v%d, v%d, 2, v%d" % (dst, k, tmp))

    def dispatch(jid, body, none=None):
        Lc = a.newlabel("Lj")
        labs = [a.newlabel("Lj") for _ in jobs]
        for jb, L in zip(jobs, labs):
            a("s_cmp_lt_u32 %s, %d" % (jid, jb['hi']))
            a("s_cbranch_scc1 %s" % L)
        if none:
            none()
        a("s_branch %s" % Lc)
        for i, (jb, L) in enumerate(zip(jobs, labs)):
            a.label(L)
            body(jb)
            if i + 1 < len(jobs):
                a("s_branch %s" % Lc)
        a.label(Lc)

    def dma_job_x(jid):
        def body(jb):
            a("s_sub_u32 s3, %s, %d" % (jid, jb['lo']))
            jb['xy'](a)
            srd(a, 8, *jb['X'])
            a("s_mov_b32 s24, %d\ns_mov_b32 s52, %d\ns_mov_b32 s78, %d" % (jb['ldx'], jb['K'] // 64, jb['K'] * 2))
            a("s_mul_i32 s92, s92, %d" % (jb['K'] // 64 // ROT))

        def none():
            srd(a, 8, jobs[0]['X'][0], jobs[0]['X'][1], 0)
            a("s_mov_b32 s24, 0\ns_mov_b32 s52, 0x7fffffff\ns_mov_b32 s54, 0\ns_mov_b32 s55, 0\ns_mov_b32 s78, 0\ns_mov_b32 s92, 0")
        dispatch(jid, body, none)
        a("s_mul_i32 s20, s54, s24")
        a("s_sub_u32 s76, s52, s92")
        a("s_lshl_b32 s92, s92, 7")
        a("s_add_u32 s20, s20, s92")
        a("s_mul_i32 s4, s29, %d" % (8 * nxd))
        a("v_lshrrev_b32 v%d, 3, v1" % T)
        a("v_add_u32 v%d, s4, v%d" % (T, T))
        a("v_and_b32 v%d, 7, v1" % (T + 1))
        for j in range(nxd):
            a("v_add_u32 v%d, %d, v%d" % (T + 2, 8 * j, T))
            a("v_bfe_u32 v%d, v%d, 1, 3" % (T + 3, T + 2))
            a("v_xor_b32 v%d, v%d, v%d" % (T + 3, T + 3, T + 1))
            a("v_mul_lo_u32 v%d, v%d, s24" % (T + 2, T + 2))
            a("v_lshl_add_u32 v%d, v%d, 4, v%d" % (vXg + j, T + 3, T + 2))

    def dma_job_w(jid):
        def body(jb):
            a("s_sub_u32 s3, %s, %d" % (jid, jb['lo']))
            jb['xy'](a)
            srd(a, 12, *jb['W'])
            a("s_mov_b32 s25, %d\ns_mov_b32 s72, %d\ns_mov_b32 s79, %d" % (jb['ldw'], jb['K'] // 64, jb['K'] * jb['ldw']))
            a("s_mul_i32 s92, s92, %d" % (jb['K'] // 64 // ROT))

        def none():
            srd(a, 12, jobs[0]['W'][0], jobs[0]['W'][1], 0)
            a("s_mov_b32 s25, 0\ns_mov_b32 s72, 0x7fffffff\ns_mov_b32 s54, 0\ns_mov_b32 s55, 0\ns_mov_b32 s79, 0\ns_mov_b32 s92, 0")
        dispatch(jid, body, none)
        a("s_lshl_b32 s21, s55, 1")
        a("s_lshl_b32 s22, s25, 6")
        a("s_sub_u32 s77, s72, s92")
        a("s_mul_i32 s92, s92, s22")
        a("s_add_u32 s21, s21, s92")
        a("s_mul_i32 s4, s29, %d" % (wrows * nwd))
        a("v_lshrrev_b32 v%d, %d, v1" % (T, log2(cpr)))
        a("v_add_u32 v%d, s4, v%d" % (T, T))
        a("v_and_b32 v%d, %d, v1" % (T + 1, cpr - 1))
        for j in range(nwd):
            a("v_add_u32 v%d, %d, v%d" % (T + 2, wrows * j, T))
            wswz(T + 3, T + 2, T + 4)
            a("v_xor_b32 v%d, v%d, v%d" % (T + 3, T + 3, T + 1))
            a("v_mul_lo_u32 v%d, v%d, s25" % (T + 2, T + 2))
            a("v_lshl_add_u32 v%d, v%d, 4, v%d" % (vWg + j, T + 3, T + 2))

    def dma_x():
        L = []
        L.append("s_add_u32 s5, s6, s56")
        for j in range(nxd):
            L.append("s_add_u32 m0, s5, %d" % (j * 1024))
            L.append("buffer_load_dwordx4 v%d, s[8:11], s20 offen lds" % (vXg + j))
        L.append("s_add_u32 s20, s20, 128")
        if rot > 1:
            L.append("s_sub_u32 s76, s76, 1")
            L.append("s_cmp_eq_u32 s76, 0")
            L.append("s_cselect_b32 s5, s78, 0")
            L.append("s_sub_u32 s20, s20, s5")
        L.append("s_add_u32 s56, s56, %d" % XS)
        L.append("s_cmp_eq_u32 s56, %d" % (NSX * XS))
        L.append("s_cselect_b32 s56, 0, s56")
        L.append("s_sub_u32 s52, s52, 1")
        if 'nodma' in FL:
            L = [x for x in L if not x.startswith('buffer')]
        return L

    def dma_w():
        L = []
        L.append("s_add_u32 s4, s7, s74")
        for j in range(nwd):
            L.append("s_add_u32 m0, s4, %d" % (j * 1024))
            L.append("buffer_load_dwordx4 v%d, s[12:15], s21 offen lds" % (vWg + j))
        L.append("s_add_u32 s21, s21, s22")
        if rot > 1:
            L.append("s_sub_u32 s77, s77, 1")
            L.append("s_cmp_eq_u32 s77, 0")
            L.append("s_cselect_b32 s4, s79, 0")
            L.append("s_sub_u32 s21, s21, s4")
        L.append("s_add_u32 s74, s74, %d" % WS)
        L.append("s_cmp_eq_u32 s74, %d" % (NSW * WS))
        L.append("s_cselect_b32 s74, 0, s74")
        L.append("s_sub_u32 s72, s72, 1")
        if 'nodma' in FL:
            L = [x for x in L if not x.startswith('buffer')]
        return L

    def dma_switch():
        Ls = a.newlabel("Ldsw")
        a("s_cmp_lg_u32 s52, 0")
        a("s_cbranch_scc1 %s" % Ls)
        dma_job_x("s53")
        a("s_mov_b32 s53, %d" % njobs)
        a.label(Ls)
        Ls = a.newlabel("Ldsw")
        a("s_cmp_lg_u32 s72, 0")
        a("s_cbranch_scc1 %s" % Ls)
        dma_job_w("s73")
        a("s_mov_b32 s73, %d" % njobs)
        a.label(Ls)

    def reads(hs, half, wp):
        L = []
        if 'noreads' in FL:
            return L
        xb = XB if half else XA
        L.append("ds_read_b128 %s, v%d offset:%d" % (r4(xb), vXw + hs, half * MH * 2048))
        if half == 0:
            for ni in range(NI):
                b = W0 + 4 * NI * wp + 4 * ni
                for j in range(2):
                    L.append("ds_read_b64_tr_b16 v[%d:%d], v%d offset:%d" % (b + 2 * j, b + 2 * j + 1, vWw + ni, (hs * 32 + j * 4) * 2 * TN))
        for m4 in range(1, MH):
            L.append("ds_read_b128 %s, v%d offset:%d" % (r4(xb + 4 * m4), vXw + hs, (half * MH + m4) * 2048))
        return L

    def cvt2(u, r):
        a("v_cvt_pk_bf16_f32 v%d, v%d, v%d" % (u, r, r + 1))
        a("v_cvt_pk_bf16_f32 v%d, v%d, v%d" % (u + 1, r + 2, r + 3))

    def tile_base(sh):
        assert wtm == 128 and wtn == 64
        a("s_lshl_b32 s4, s31, 6")
        a("s_add_u32 s4, s4, s28")
        a("s_lshr_b32 s4, s4, 7")
        a("s_lshl_b32 s4, s4, 5")
        a("s_lshl_b32 s5, s30, 7")
        a("s_add_u32 s5, s5, s27")
        a("s_lshr_b32 s5, s5, 6")
        a("s_add_u32 s4, s4, s5")
        a("s_lshl_b32 s4, s4, %d" % sh)

    def epi_n(kind, sh=15):
        a("v_bfe_u32 v%d, v1, 4, 1" % T)
        a("v_lshl_or_b32 v%d, v%d, 1, v3" % (T, T))
        a("v_and_b32 v%d, 15, v1" % (T + 1))
        if kind == 'img':
            a("v_lshlrev_b32 v%d, 10, v%d" % (T, T))
            a("v_lshl_add_u32 v%d, v%d, 4, v%d" % (T, T + 1, T))
            tile_base(sh)
            a("s_and_b32 s5, s31, 1")
            a("s_lshl_b32 s5, s5, 13")
            a("s_add_u32 s4, s4, s5")
        else:
            a("s_mul_i32 s4, s30, %d" % wtm)
            a("s_add_u32 s4, s4, s27")
            a("v_add_u32 v%d, s4, v%d" % (T + 1, T + 1))
            a("v_mul_lo_u32 v%d, v%d, s26" % (T + 1, T + 1))
            a("v_lshl_add_u32 v%d, v%d, 4, v%d" % (T, T, T + 1))
            a("s_mul_i32 s4, s31, %d" % wtn)
            a("s_add_u32 s4, s4, s28")
            a("s_lshl_b32 s4, s4, 1")
            a("s_lshl_b32 s3, s26, 4")
        k = 0
        for mi in range(MI):
            for np_ in range(NI // 2):
                u = E + 4 * (k % 8)
                k += 1
                if kind == 'img':
                    a("s_add_u32 s5, s4, %d" % ((mi >> 2) * (1 << sh) + (mi & 3) * 256 + np_ * 4096))
                cvt2(u, ACC + 4 * (mi * NI + 2 * np_))
                cvt2(u + 2, ACC + 4 * (mi * NI + 2 * np_ + 1))
                a("v_permlane16_swap_b32 v%d, v%d" % (u, u + 2))
                a("v_permlane16_swap_b32 v%d, v%d" % (u + 1, u + 3))
                if kind == 'img':
                    a("buffer_store_dwordx4 %s, v%d, s[16:19], s5 offen%s" % (r4(u), T, SF))
                else:
                    a("buffer_store_dwordx4 %s, v%d, s[16:19], s4 offen offset:%d%s" % (r4(u), T, np_ * 64, SF))
            if kind == 'row' and mi < MI - 1:
                a("s_add_u32 s4, s4, s3")

    def epi_v():
        a("v_lshrrev_b32 v%d, 4, v1" % T)
        a("v_lshlrev_b32 v%d, 11, v%d" % (T, T))
        a("v_and_b32 v%d, 15, v1" % (T + 1))
        a("v_lshl_add_u32 v%d, v%d, 4, v%d" % (T, T + 1, T))
        tile_base(15)
        a("s_and_b32 s5, s31, 1")
        a("s_lshl_b32 s5, s5, 10")
        a("s_add_u32 s4, s4, s5")
        k = 0
        for mi in range(0, MI, 2):
            for ni in range(NI):
                u = E + 4 * (k % 8)
                k += 1
                a("s_add_u32 s5, s4, %d" % ((mi >> 2) * 32768 + 16384 + (mi & 3) * 4096 + ni * 256))
                cvt2(u, ACC + 4 * (mi * NI + ni))
                cvt2(u + 2, ACC + 4 * ((mi + 1) * NI + ni))
                a("v_permlane32_swap_b32 v%d, v%d" % (u, u + 2))
                a("v_permlane32_swap_b32 v%d, v%d" % (u + 1, u + 3))
                a("buffer_store_dwordx4 %s, v%d, s[16:19], s5 offen%s" % (r4(u), T, SF))

    def stamp():
        if ST:
            a("s_memrealtime s[62:63]")
            a("s_memtime s[64:65]")
            a("s_waitcnt lgkmcnt(0)")
            a("s_sub_u32 s62, s62, s60")
            a("s_sub_u32 s64, s64, s61")
            a("v_mov_b32 v4, s62")
            a("v_mov_b32 v5, s64")
            a("v_mov_b32 v6, 0")
            Lx = a.newlabel("Lstx")
            a("s_and_b32 s66, s2, 63")
            a("s_cmp_lg_u32 s66, %d" % int(os.environ.get("STWG", "5")))
            a("s_cbranch_scc1 %s" % Lx)
            a("s_cmp_lg_u32 s29, 0")
            a("s_cbranch_scc1 %s" % Lx)
            a("buffer_store_dwordx2 v[4:5], v6, s[68:71], s59 offen")
            a.label(Lx)
            a("s_add_u32 s59, s59, 8")

    a("s_cmp_ge_u32 s2, %d" % grid)
    a("s_cbranch_scc1 %s_end" % pfx)
    if ST:
        a("s_memrealtime s[60:61]")
        a("s_memtime s[64:65]")
        a("s_load_dwordx2 s[68:69], s[0:1], 80")
        a("s_waitcnt lgkmcnt(0)")
        a("s_mov_b32 s61, s64")
        a("s_mov_b32 s70, 256")
        a("s_mov_b32 s71, 0x00020000")
        a("s_lshr_b32 s59, s2, 6")
        a("s_lshl_b32 s59, s59, 6")
    AB = 'abs' in FL
    if AB:
        a("s_memrealtime s[76:77]")
    prologue(a)
    a("v_lshrrev_b32 v%d, 6, v0" % T)
    a("v_readfirstlane_b32 s29, v%d" % T)
    a("s_lshr_b32 s30, s29, %d" % log2(WN))
    a("s_and_b32 s31, s29, %d" % (WN - 1))
    a("v_and_b32 v1, 63, v0")
    a("v_and_b32 v2, 31, v0")
    a("v_lshrrev_b32 v3, 5, v1")
    job_of_wg(a)
    a("s_mov_b32 s57, s53")
    a("s_mov_b32 s73, s53")
    a("s_mul_i32 s6, s29, %d" % (nxd * 1024))
    a("s_mul_i32 s7, s29, %d" % (nwd * 1024))
    a("s_add_u32 s7, s7, %d" % WB)
    a("s_mov_b32 s56, 0")
    a("s_mov_b32 s74, 0")
    a("s_mov_b32 s58, 0")
    a("s_mov_b32 s75, 0")
    a("s_waitcnt lgkmcnt(0)")
    if pre:
        pre(a)
    dma_job_w("s51")
    dma_job_x("s51")
    for it in range(-(NSX - 1), 0):
        if it + NSW - 1 >= 0:
            for x in dma_w():
                a(x)
        for x in dma_x():
            a(x)
    if post_pro:
        post_pro(a)
    a("s_mul_i32 s4, s30, %d" % (wtm * 128))
    a("v_and_b32 v%d, 15, v1" % T)
    a("v_lshlrev_b32 v%d, 7, v%d" % (T, T))
    a("v_add_u32 v%d, s4, v%d" % (T, T))
    a("v_bfe_u32 v%d, v1, 1, 3" % (T + 1))
    a("v_lshrrev_b32 v%d, 4, v1" % (T + 2))
    a("v_xor_b32 v%d, v%d, v%d" % (T + 1, T + 1, T + 2))
    a("v_lshl_add_u32 v%d, v%d, 4, v%d" % (vXrd, T + 1, T))
    a("v_xor_b32 v%d, 64, v%d" % (vXrd + 1, vXrd))
    a("v_bfe_u32 v%d, v1, 2, 2" % T)
    a("v_lshrrev_b32 v%d, 4, v1" % (T + 2))
    a("v_lshl_add_u32 v%d, v%d, 3, v%d" % (T + 5, T + 2, T))
    a("v_mul_u32_u24 v%d, %d, v%d" % (T + 1, 2 * TN, T + 5))
    a("v_and_b32 v%d, 1, v1" % (T + 3))
    a("v_lshl_add_u32 v%d, v%d, 3, v%d" % (T + 1, T + 3, T + 1))
    a("v_add_u32 v%d, %d, v%d" % (T + 1, WB, T + 1))
    wswz(T, T + 5, T + 4)
    a("v_bfe_u32 v%d, v1, 1, 1" % (T + 2))
    a("s_mul_i32 s4, s31, %d" % (wtn // 8))
    for ni in range(NI):
        a("s_add_u32 s5, s4, %d" % (2 * ni))
        a("v_add_u32 v%d, s5, v%d" % (T + 3, T + 2))
        a("v_xor_b32 v%d, v%d, v%d" % (T + 3, T + 3, T))
        a("v_lshl_add_u32 v%d, v%d, 4, v%d" % (vWrd + ni, T + 3, T + 1))

    a.label("%s_job" % pfx)
    KINDS = {'row': 0, 'kimg': 1, 'vimg': 2, 'qimg': 3}

    def cbody(jb):
        a("s_sub_u32 s3, s51, %d" % jb['lo'])
        jb['xy'](a)
        srd(a, 16, *jb['O'])
        a("s_mov_b32 s26, %d\ns_mov_b32 s23, %d\ns_mov_b32 s50, %d" % (jb['ldo'], jb['K'] // 64, KINDS[jb['kind']]))
    dispatch("s51", cbody, lambda: cbody(jobs[-1]))
    a("s_mov_b32 s27, s54")
    a("s_mov_b32 s28, s55")
    for r in range(ACC, ACC + 4 * MI * NI):
        a("v_mov_b32 v%d, 0" % r)
    for r in range(XB, XB + 4 * MH):
        a("v_mov_b32 v%d, 0" % r)
    for r in range(W0 + 4 * NI, W0 + 8 * NI):
        a("v_mov_b32 v%d, 0" % r)
    stamp()
    kinds = {jb['kind'] for jb in jobs}
    if 'vimg' in kinds:
        a("s_cmp_eq_u32 s50, 2")
        a("s_cbranch_scc1 %s_loopS" % pfx)

    def loop(name, swapped):
        a.label(name)
        a("s_waitcnt vmcnt(%d) lgkmcnt(0)" % (nxd + (NSW - 2) * (nxd + nwd)))
        if 'nobar' not in FL:
            a("s_barrier")
        mf = (lambda h, wp: []) if 'nomfma' in FL else (lambda h, wp: mfmas(h, wp, swapped))
        dma_switch()
        for i in range(2):
            a("v_add_u32 v%d, s58, v%d" % (vXw + i, vXrd + i))
        for i in range(NI):
            a("v_add_u32 v%d, s75, v%d" % (vWw + i, vWrd + i))
        dl = dma_w() + dma_x()
        units = []
        cur = []
        for x in dl:
            cur.append(x)
            if x.startswith("buffer") or 'nodma' in FL:
                units.append(cur)
                cur = []
        units[-1] += cur
        nu = len(units)

        def grp(M, R, gi):
            U = units[gi * nu // 4:(gi + 1) * nu // 4]
            if not M:
                return R + [y for u in U for y in u]
            out = []
            n = len(M)
            rpos = {}
            for k, r in enumerate(R):
                rpos.setdefault(min(n - 1, k * (n // 2) // max(1, len(R))), []).append(r)
            upos = {}
            for k, u in enumerate(U):
                upos.setdefault(min(n - 1, (2 * k + 1) * n // (2 * len(U))), []).extend(u)
            for i, m in enumerate(M):
                out.append(m)
                out += rpos.get(i, [])
                out += upos.get(i, [])
            return out
        for hs in range(2):
            if hs:
                a("s_waitcnt lgkmcnt(0)")
            for x in grp(mf(1, hs ^ 1), reads(hs, 0, hs), 2 * hs):
                a(x)
            a("s_waitcnt lgkmcnt(0)")
            for x in grp(mf(0, hs), reads(hs, 1, hs), 2 * hs + 1):
                a(x)
        a("s_add_u32 s58, s58, %d" % XS)
        a("s_cmp_eq_u32 s58, %d" % (NSX * XS))
        a("s_cselect_b32 s58, 0, s58")
        a("s_add_u32 s75, s75, %d" % WS)
        a("s_cmp_eq_u32 s75, %d" % (NSW * WS))
        a("s_cselect_b32 s75, 0, s75")
        a("s_sub_u32 s23, s23, 1")
        a("s_cmp_lg_u32 s23, 0")
        a("s_cbranch_scc1 %s" % name)
        a("s_waitcnt lgkmcnt(0)")
        for x in mfmas(1, 1, swapped):
            a(x)
        stamp()

    loop("%s_loopN" % pfx, False)
    nk = [k for k in ('kimg', 'qimg', 'row') if k in kinds]
    for k in nk[:-1]:
        a("s_cmp_eq_u32 s50, %d" % KINDS[k])
        a("s_cbranch_scc1 %s_e%s" % (pfx, k))
    for i, k in enumerate([nk[-1]] + nk[:-1]):
        if i:
            a.label("%s_e%s" % (pfx, k))
        if k == 'row':
            epi_n('row')
        else:
            epi_n('img', 15 if k == 'kimg' else 14)
        a("s_branch %s_next" % pfx)
    if 'vimg' in kinds:
        loop("%s_loopS" % pfx, True)
        epi_v()
    a.label("%s_next" % pfx)
    a("s_mov_b32 s51, s57")
    a("s_mov_b32 s57, %d" % njobs)
    a("s_cmp_lt_u32 s51, %d" % njobs)
    a("s_cbranch_scc1 %s_job" % pfx)
    if tail:
        tail(a)
    stamp()
    if ST:
        a("s_waitcnt vmcnt(0)")
    stamp()
    if AB:
        a("s_waitcnt vmcnt(0)")
        a("s_memrealtime s[78:79]")
        a("s_waitcnt lgkmcnt(0)")
        srd(a, 80, 48, 49, 1 << 20, 200 * MB + (0 if pfx == "Lk1" else 65536))
        a("v_mov_b32 v4, s76")
        a("v_mov_b32 v5, s78")
        a("v_mov_b32 v6, 0")
        a("s_lshl_b32 s4, s2, 3")
        a("s_cmp_lg_u32 s29, 0")
        a("s_cbranch_scc1 %s_end" % pfx)
        a("buffer_store_dwordx2 v[4:5], v6, s[80:83], s4 offen")
    a.label("%s_end" % pfx)
    a("s_endpgm")
    p = P()
    p.nv, p.lds, p.grid, p.NW = NV, NSX * XS + NSW * WS, grid, NW
    return a.finish(), p


ROT = 1


def xy_xcd(TM, TN, mblk, nblk):
    def f(a, TM=TM, TN=TN):
        ntm = 2048 // TM
        xm = ntm // mblk
        a("s_and_b32 s4, s3, 7")
        a("s_lshr_b32 s5, s3, 3")
        a("s_and_b32 s54, s4, %d" % (xm - 1))
        a("s_mul_i32 s54, s54, %d" % mblk)
        a("s_and_b32 s3, s5, %d" % (mblk - 1))
        a("s_lshr_b32 s92, s5, %d" % log2(mblk))
        a("s_add_u32 s92, s92, s3")
        a("s_and_b32 s92, s92, %d" % (ROT - 1))
        a("s_add_u32 s54, s54, s3")
        a("s_mul_i32 s54, s54, %d" % TM)
        a("s_lshr_b32 s4, s4, %d" % log2(xm))
        a("s_mul_i32 s4, s4, %d" % nblk)
        a("s_lshr_b32 s5, s5, %d" % log2(mblk))
        a("s_add_u32 s55, s4, s5")
        a("s_mul_i32 s55, s55, %d" % TN)
    return f


def gen_k1(WS_Q, WS_KV, WS_QKVB):
    jobs = [
        dict(lo=0, hi=128, X=(32, 33, 2048 * 1024 * 2), W=(36, 37, 1024 * 4096 * 2), O=(48, 49, 16 * MB, WS_Q),
             ldx=2048, ldw=8192, ldo=0, K=1024, kind='qimg', xy=xy_xcd(256, 256, 4, 4)),
        dict(lo=128, hi=224, X=(44, 45, 2048 * 1024 * 2), W=(46, 47, 1024 * 3072 * 2), O=(48, 49, 12 * MB, WS_QKVB),
             ldx=2048, ldw=6144, ldo=6144, K=1024, kind='row', xy=xy_xcd(256, 256, 4, 3)),
        dict(lo=224, hi=352, X=(34, 35, 2048 * 512 * 2), W=(38, 39, 512 * 4096 * 2), O=(48, 49, 32 * MB, WS_KV),
             ldx=1024, ldw=8192, ldo=0, K=512, kind='kimg', xy=xy_xcd(256, 256, 4, 4)),
        dict(lo=352, hi=480, X=(34, 35, 2048 * 512 * 2), W=(40, 41, 512 * 4096 * 2), O=(48, 49, 32 * MB, WS_KV),
             ldx=1024, ldw=8192, ldo=0, K=512, kind='vimg', xy=xy_xcd(256, 256, 4, 4)),
    ]

    def prologue(a):
        a("s_load_dwordx16 s[32:47], s[0:1], 0")
        a("s_load_dwordx2 s[48:49], s[0:1], 88")

    def job_of_wg(a):
        if os.environ.get("ORDER", "0") == "1":
            a("s_add_u32 s51, s2, 224")
            a("s_cmp_lt_u32 s2, 224")
            a("s_cselect_b32 s53, s2, 480")
        elif os.environ.get("ORDER", "0") == "2":
            a("s_add_u32 s53, s2, 352")
            a("s_add_u32 s4, s2, 96")
            a("s_cmp_lt_u32 s2, 128")
            a("s_cselect_b32 s53, s53, s4")
            a("s_mov_b32 s51, s2")
            a("s_cmp_lt_u32 s2, 224")
            a("s_cselect_b32 s51, s51, s53")
            a("s_cselect_b32 s53, s53, 480")
        else:
            a("s_add_u32 s53, s2, 224")
            a("s_mov_b32 s51, s2")
            a("s_cmp_lt_u32 s2, 224")
            a("s_cselect_b32 s51, s51, s53")
            a("s_cselect_b32 s53, s53, 480")

    def touch(a, lo, hi, nbytes):
        srd(a, 84, lo, hi, nbytes)
        L = a.newlabel("Ltch")
        a("s_mov_b32 s4, s88")
        a.label(L)
        for j in range(8):
            a("s_add_u32 s5, s4, %d" % (j * 262144))
            a("buffer_load_dwordx4 v[%d:%d], v7, s[84:87], s5 offen" % (64 + 4 * j, 67 + 4 * j))
        a("s_waitcnt vmcnt(8)")
        a("s_add_u32 s4, s4, %d" % (8 * 262144))
        a("s_cmp_lt_u32 s4, %d" % nbytes)
        a("s_cbranch_scc1 %s" % L)

    def setup(a):
        a("s_sub_u32 s88, s2, 224")
        a("s_lshl_b32 s88, s88, 3")
        a("s_add_u32 s88, s88, s29")
        a("s_lshl_b32 s88, s88, 10")
        a("v_lshlrev_b32 v7, 4, v1")

    PF = os.environ.get("PF", "1")
    NEWORD = os.environ.get("ORDER", "0") == "1"
    PQ = os.environ.get("PQ", "0")

    def post_pro(a):
        if PQ == "0":
            return
        a("s_lshl_b32 s88, s2, 3")
        a("s_add_u32 s88, s88, s29")
        a("s_lshl_b32 s88, s88, 10")
        a("v_lshlrev_b32 v7, 4, v1")
        for lo, hi, n in ((36, 37, 8), (46, 47, 6), (32, 33, 4), (44, 45, 4)):
            srd(a, 84, lo, hi, n * MB)
            for j in range(n // 2):
                a("s_add_u32 s5, s88, %d" % (j * 2 * MB))
                a("buffer_load_dwordx4 v[40:43], v7, s[84:87], s5 offen")

    def pre(a):
        if PF < "2":
            return
        a("s_cmp_lt_u32 s2, 224")
        a("s_cbranch_scc1 Lk1_pre_end")
        setup(a)
        touch(a, 36, 37, 8 * MB)
        touch(a, 46, 47, 6 * MB)
        touch(a, 32, 33, 4 * MB)
        touch(a, 44, 45, 4 * MB)
        a.label("Lk1_pre_end")

    def tail(a):
        if PF < "1":
            return
        a("s_cmp_lt_u32 s2, 224")
        a("s_cbranch_scc1 Lk1_tail_end")
        setup(a)
        a("s_load_dwordx2 s[90:91], s[0:1], 64")
        a("s_waitcnt lgkmcnt(0)")
        if not NEWORD:
            touch(a, 38, 39, 4 * MB)
            touch(a, 40, 41, 4 * MB)
        touch(a, 42, 43, 8 * MB)
        touch(a, 90, 91, 2 * MB)
        a.label("Lk1_tail_end")
    return gen("Lk1", 256, 256, 2, 4, 3, 2, jobs, 480, prologue, job_of_wg, 256, pre, tail, post_pro, rot=2)


def gen_k3(WS_CTX, WS_OB):
    TM, TN, WM, WN, NS, HS = [int(x) for x in os.environ.get("K3CFG", "128,64,2,2,6,6").split(",")]
    nt = (2048 // TM) * (1024 // TN)
    mb = 4
    nb = nt // 8 // mb
    jobs = [
        dict(lo=0, hi=nt, X=(48, 49, 16 * MB, WS_CTX), W=(32, 33, 4096 * 1024 * 2), O=(38, 39, 8 * MB),
             ldx=8192, ldw=2048, ldo=4096, K=4096, kind='row', xy=xy_xcd(TM, TN, mb, nb)),
        dict(lo=nt, hi=2 * nt, X=(48, 49, 4 * MB, WS_OB), W=(36, 37, 1024 * 1024 * 2), O=(38, 39, 8 * MB - 2048, 2048),
             ldx=2048, ldw=2048, ldo=4096, K=1024, kind='row', xy=xy_xcd(TM, TN, mb, nb)),
    ]

    def prologue(a):
        a("s_load_dwordx2 s[32:33], s[0:1], 40")
        a("s_load_dwordx4 s[36:39], s[0:1], 64")
        a("s_load_dwordx2 s[48:49], s[0:1], 88")

    def job_of_wg(a):
        a("s_mov_b32 s51, s2")
        a("s_add_u32 s53, s2, %d" % nt)
    return gen("Lk3", TM, TN, WM, WN, NS, HS, jobs, 2 * nt, prologue, job_of_wg, nt)
```

```python
import os
import sys
sys.path.insert(0, os.path.dirname(os.path.abspath(__file__)))
from asmlib import Asm
import gemm
from gemm import Cfg
import attn
import pgemm

NAME = "concat_heads__compressed_kv_cla__sliding_local_dilated__prompt"
MB = 1 << 20
WS_Q = 0
WS_KV = 16 * MB
WS_QKVB = 48 * MB
WS_CTX = 64 * MB
WS_OB = 80 * MB

HEADER = """; Kernarg layout for this problem (96 bytes, ptrs only, base s[0:1]):
"""


def srd(a, d, lo, hi, size, off=0):
    if off:
        a("s_add_u32 s%d, s%d, %d" % (d, lo, off))
        a("s_addc_u32 s%d, s%d, 0" % (d + 1, hi))
    else:
        a("s_mov_b32 s%d, s%d" % (d, lo))
        a("s_mov_b32 s%d, s%d" % (d + 1, hi))
    a("s_mov_b32 s%d, %d" % (d + 2, size))
    a("s_mov_b32 s%d, 0x00020000" % (d + 3))


def kdesc(name, nv, ns=102, acc=None):
    if acc is None:
        acc = (nv + 3) // 4 * 4
    return """.amdhsa_kernel %s
  .amdhsa_next_free_vgpr %d
  .amdhsa_next_free_sgpr %d
  .amdhsa_accum_offset %d
  .amdhsa_group_segment_fixed_size 0
  .amdhsa_kernarg_size 96
  .amdhsa_user_sgpr_count 2
  .amdhsa_user_sgpr_kernarg_segment_ptr 1
  .amdhsa_system_sgpr_workgroup_id_x 1
.end_amdhsa_kernel
""" % (name, nv, ns, acc)


def kstart(name):
    return ".globl %s\n.p2align 8\n.type %s,@function\n%s:\n" % (name, name, name)


def gen_k1():
    c = Cfg(256, 256, 2, 4)
    a = Asm()
    a("s_cmp_ge_u32 s2, 480")
    a("s_cbranch_scc1 Lk1_end")
    a("s_load_dwordx16 s[32:47], s[0:1], 0")
    a("s_load_dwordx2 s[48:49], s[0:1], 88")
    a("s_waitcnt lgkmcnt(0)")
    a("s_cmp_lt_u32 s2, 128")
    a("s_cbranch_scc1 Lk1_q")
    a("s_cmp_lt_u32 s2, 224")
    a("s_cbranch_scc1 Lk1_b")
    a("s_cmp_lt_u32 s2, 352")
    a("s_cbranch_scc1 Lk1_k")
    a("s_sub_u32 s3, s2, 352")
    srd(a, 8, 34, 35, 2048 * 512 * 2)
    srd(a, 12, 40, 41, 512 * 4096 * 2)
    srd(a, 16, 48, 49, 32 * MB, WS_KV)
    a("s_mov_b32 s24, 1024\ns_mov_b32 s25, 8192\ns_mov_b32 s26, 0\ns_mov_b32 s23, 4\ns_mov_b32 s50, 2")
    a("s_branch Lk1_common")
    a.label("Lk1_k")
    a("s_sub_u32 s3, s2, 224")
    srd(a, 8, 34, 35, 2048 * 512 * 2)
    srd(a, 12, 38, 39, 512 * 4096 * 2)
    srd(a, 16, 48, 49, 32 * MB, WS_KV)
    a("s_mov_b32 s24, 1024\ns_mov_b32 s25, 8192\ns_mov_b32 s26, 0\ns_mov_b32 s23, 4\ns_mov_b32 s50, 1")
    a("s_branch Lk1_common")
    a.label("Lk1_b")
    a("s_sub_u32 s3, s2, 128")
    srd(a, 8, 44, 45, 2048 * 1024 * 2)
    srd(a, 12, 46, 47, 1024 * 3072 * 2)
    srd(a, 16, 48, 49, 12 * MB, WS_QKVB)
    a("s_mov_b32 s24, 2048\ns_mov_b32 s25, 6144\ns_mov_b32 s26, 6144\ns_mov_b32 s23, 8\ns_mov_b32 s50, 0")
    a("s_branch Lk1_common")
    a.label("Lk1_q")
    a("s_mov_b32 s3, s2")
    srd(a, 8, 32, 33, 2048 * 1024 * 2)
    srd(a, 12, 36, 37, 1024 * 4096 * 2)
    srd(a, 16, 48, 49, 16 * MB, WS_Q)
    a("s_mov_b32 s24, 2048\ns_mov_b32 s25, 8192\ns_mov_b32 s26, 8192\ns_mov_b32 s23, 8\ns_mov_b32 s50, 0")
    a.label("Lk1_common")
    a("s_and_b32 s27, s3, 7")
    a("s_lshl_b32 s27, s27, 8")
    a("s_lshr_b32 s28, s3, 3")
    a("s_lshl_b32 s28, s28, 8")
    a("s_mul_i32 s20, s27, s24")
    a("s_lshl_b32 s21, s28, 1")
    a("s_lshl_b32 s22, s25, 6")
    gemm.gemm_setup(a, c)
    a("s_cmp_eq_u32 s50, 2")
    a("s_cbranch_scc1 Lk1_vpath")
    gemm.gemm_main(a, c, False)
    a("s_cmp_eq_u32 s50, 1")
    a("s_cbranch_scc1 Lk1_kepi")
    gemm.epi_rowmajor(a, c)
    a("s_endpgm")
    a.label("Lk1_kepi")
    gemm.epi_kimage(a, c)
    a("s_endpgm")
    a.label("Lk1_vpath")
    gemm.gemm_main(a, c, True)
    gemm.epi_vimage(a, c)
    a.label("Lk1_end")
    a("s_endpgm")
    return a.finish(), c


def gen_k3():
    cfg = [int(x) for x in os.environ.get("K3CFG", "128,64,2,2,4").split(",")]
    c = Cfg(*cfg)
    ntm, ntn = 2048 // c.TM, 1024 // c.TN
    nt = ntm * ntn
    c.grid = 2 * nt
    a = Asm()
    a("s_cmp_ge_u32 s2, %d" % (2 * nt))
    a("s_cbranch_scc1 Lk3_end")
    a("s_load_dwordx2 s[32:33], s[0:1], 40")
    a("s_load_dwordx4 s[36:39], s[0:1], 64")
    a("s_load_dwordx2 s[48:49], s[0:1], 88")
    a("s_waitcnt lgkmcnt(0)")
    a("s_cmp_lt_u32 s2, %d" % nt)
    a("s_cbranch_scc1 Lk3_a")
    a("s_sub_u32 s3, s2, %d" % nt)
    srd(a, 8, 48, 49, 4 * MB, WS_OB)
    srd(a, 12, 36, 37, 1024 * 1024 * 2)
    srd(a, 16, 38, 39, 8 * MB - 2048, 2048)
    a("s_mov_b32 s24, 2048\ns_mov_b32 s25, 2048\ns_mov_b32 s26, 4096\ns_mov_b32 s23, %d" % (16 // c.NS))
    a("s_branch Lk3_common")
    a.label("Lk3_a")
    a("s_mov_b32 s3, s2")
    srd(a, 8, 48, 49, 16 * MB, WS_CTX)
    srd(a, 12, 32, 33, 4096 * 1024 * 2)
    srd(a, 16, 38, 39, 8 * MB)
    a("s_mov_b32 s24, 8192\ns_mov_b32 s25, 2048\ns_mov_b32 s26, 4096\ns_mov_b32 s23, %d" % (64 // c.NS))
    a.label("Lk3_common")
    a("s_and_b32 s27, s3, %d" % (ntm - 1))
    a("s_mul_i32 s27, s27, %d" % c.TM)
    a("s_lshr_b32 s28, s3, %d" % gemm.log2(ntm))
    a("s_mul_i32 s28, s28, %d" % c.TN)
    a("s_mul_i32 s20, s27, s24")
    a("s_lshl_b32 s21, s28, 1")
    a("s_lshl_b32 s22, s25, 6")
    gemm.gemm_setup(a, c)
    gemm.gemm_main(a, c, False)
    gemm.epi_rowmajor(a, c)
    a.label("Lk3_end")
    a("s_endpgm")
    return a.finish(), c


def main():
    if os.environ.get('OLDK1'):
        k1, c1 = gen_k1()
        c1.grid = 480
    else:
        k1, c1 = pgemm.gen_k1(WS_Q, WS_KV, WS_QKVB)
    k3, c3 = pgemm.gen_k3(WS_CTX, WS_OB)
    ka, ka_nv, ka_lds = attn.gen_attn(WS_Q, WS_KV, WS_CTX, WS_QKVB, WS_OB)
    out = HEADER
    out += "; @launch kernel=k1_proj_kernel grid=(%d,1,1) block=(%d,1,1) lds=%d\n" % (c1.grid, c1.NW * 64, c1.lds)
    out += "; @launch kernel=k2_attn_kernel grid=(256,1,1) block=(512,1,1) lds=%d\n" % ka_lds
    out += "; @launch kernel=k3_oproj_kernel grid=(%d,1,1) block=(%d,1,1) lds=%d\n" % (c3.grid, c3.NW * 64, c3.lds)
    out += '.amdgcn_target "amdgcn-amd-amdhsa--gfx950"\n.text\n'
    out += kstart("k1_proj_kernel") + k1
    out += kstart("k2_attn_kernel") + ka
    out += kstart("k3_oproj_kernel") + k3
    out += '.section .rodata,"a"\n.p2align 6\n'
    out += kdesc("k1_proj_kernel", c1.nv)
    out += ".p2align 6\n" + kdesc("k2_attn_kernel", ka_nv[0], acc=ka_nv[1])
    out += ".p2align 6\n" + kdesc("k3_oproj_kernel", c3.nv)
    dst = os.path.join(os.path.dirname(os.path.abspath(__file__)), "..", NAME + ".s")
    if len(sys.argv) > 1:
        dst = sys.argv[1]
    open(dst, "w").write(out)


if __name__ == "__main__":
    main()
```

```python
from lib import *
from gemm4 import *

FL = set(os.environ.get("AFLAGS", "").split(","))
THR = float(os.environ.get("LTHR", 2.0 ** 64))
AH = int(os.environ.get("AH", 11))
WG_ = int(os.environ.get("WGRP", 8))

vLane, vL16, vK, vV, vNEG = 1, 2, 3, 4, 5
vT = 6
vNM = 16
vP = 32
vS = 64
vO = 128
aF = 0
aQ = 128
aL = 192
aOne = 208
sHead, sPair = 24, 25
sKV = 20
sCtx = 16
sKm, sVm, sKo, sVo = 26, 27, 28, 29
sMa, sMb, sCnt, sFail = 30, 31, 88, 89
sMask = 32
sT0, sT1 = 4, 5
CST = (128 ** -0.5) * math.log2(math.e)


def Oreg(g, db):
    return ('v', vO + 4 * (8 * g + db))


def Qreg(g, ds):
    return ('a', aQ + 4 * (4 * g + ds))


def ids(a):
    a("s_and_b32 s%d, s2, 7" % sHead)
    a("s_lshr_b32 s4, s2, 6")
    a("s_lshl_b32 s4, s4, 3")
    a("s_add_u32 s%d, s%d, s4" % (sHead, sHead))
    a("s_lshr_b32 s%d, s2, 3" % sPair)
    a("s_and_b32 s%d, s%d, 7" % (sPair, sPair))


def qproj(a):
    g = Gemm()
    g.name, g.nst, g.woff = "q", 16, 32 * KB
    R = Ring(3, 48 * KB, 40)
    R.regs = [16, 17, 18, 19, 20, 21]
    g.rings = [R]
    g.xrd, g.wrd = [(16, 17)], [18, 19, 20, 21]
    g.xfr = [(0, 2048 * i) for i in range(4)]
    g.wfr = [(ni & 3, (ni >> 2) * 8192) for ni in range(8)]
    g.mf = [(Oreg(mi, ni), mi, ni, 'wx') for ni in range(8) for mi in range(4)]
    g.fx, g.fw = 0, 32
    g.sCnt = 45
    sXA, sXB, sW, sWw = 46, 47, 48, 49
    xv, wv = 24, 28
    T = 32
    srd(a, 8, P_AX, 2048 * 1024 * 2)
    srd(a, 12, P_WQ, 1024 * 4096 * 2)
    lane_setup(a, T)
    a("v_lshlrev_b32 v%d, 2, v%d" % (T + 2, T))
    a("v_add_u32 v%d, s%d, v%d" % (T + 2, S_WAVE, T + 2))
    a("v_lshl_add_u32 v%d, v%d, 11, v%d" % (T + 2, T + 2, T + 1))
    for j in range(4):
        a("v_add_u32 v%d, %d, v%d" % (xv + j, (32 * j) * 2048 - 1024 * j, T + 2))
    a("v_lshrrev_b32 v%d, 2, v%d" % (T + 2, T))
    a("v_and_b32 v%d, 3, v%d" % (T + 3, T))
    a("v_lshl_add_u32 v%d, v%d, 3, v%d" % (T + 2, T + 2, T + 3))
    a("s_and_b32 s4, s%d, 1" % S_WAVE)
    a("s_lshl_b32 s4, s4, 18")
    a("s_lshr_b32 s5, s%d, 1" % S_WAVE)
    a("s_lshl_b32 s5, s5, 7")
    a("s_add_u32 s4, s4, s5")
    a("v_lshl_add_u32 v%d, v%d, 13, v%d" % (T + 2, T + 2, T + 1))
    a("v_add_u32 v%d, s4, v%d" % (T + 2, T + 2))
    for j in range(4):
        a("v_add_u32 v%d, %d, v%d" % (wv + j, (16 * (j & 1) + 4 * (j >> 1)) * 8192 - 1024 * j, T + 2))
    a("s_lshl_b32 s%d, s%d, 18" % (sXA, sPair))
    a("s_sub_u32 s%d, %d, s%d" % (sXB, 15 << 18, sXA))
    a("s_lshl_b32 s%d, s%d, 8" % (sW, sHead))
    a("s_lshl_b32 s%d, s%d, 13" % (R.sWr, S_WAVE))
    a("s_lshl_b32 s%d, s%d, 12" % (sWw, S_WAVE))
    a("s_sub_u32 s%d, %d, s%d" % (sWw, g.woff, sWw))
    g.dma = [
        (R, 0, ["buffer_load_dwordx4 v%d, s[8:11], s%d offen offset:%d lds" % (xv + j, sXA, 1024 * j) for j in range(4)],
         ["s_add_u32 s%d, s%d, 128" % (sXA, sXA)]),
        (R, 4096, ["buffer_load_dwordx4 v%d, s[8:11], s%d offen offset:%d lds" % (xv + j, sXB, 1024 * j) for j in range(4)],
         ["s_add_u32 s%d, s%d, 128" % (sXB, sXB)]),
        (R, ('s', sWw), ["buffer_load_dwordx4 v%d, s[12:15], s%d offen offset:%d lds" % (wv + j, sW, 1024 * j) for j in range(4)],
         ["s_add_u32 s%d, s%d, %d" % (sW, sW, 64 * 8192)]),
    ]
    g.dma = [g.dma[2], g.dma[0], g.dma[1]]
    return g, T


def qproj_rd(a, g, T):
    a("s_lshl_b32 s4, s%d, 13" % S_WAVE)
    xread_base(a, 16, 17, T, "s4")
    wread_base(a, g.wrd, range(4), T, "0")


def kv_dma(which):
    m, o = (sKm, sKo) if which == 'K' else (sVm, sVo)
    return ["s_mov_b32 m0, s%d" % m] + \
           ["buffer_load_dwordx4 v%d, s[%d:%d], s%d offen offset:%d lds" % (vL16, sKV, sKV + 3, o, 1024 * j) for j in range(4)]


def gray_mask(t):
    return 0x4000 if t % 2 == 0 else 0x8000


def kv_setup(a):
    a("s_lshl_b32 s4, s%d, 20" % sHead)
    a("s_lshl_b32 s5, s%d, 16" % sPair)
    a("s_sub_u32 s5, %d, s5" % (32 * 32768))
    srd(a, sKV, P_WS, "s5", WS_KV, 4)
    a("s_lshl_b32 s%d, s%d, 12" % (sKm, S_WAVE))
    a("s_add_u32 s%d, s%d, 0x10000" % (sVm, sKm))
    a("s_mov_b32 s%d, s%d" % (sKo, sKm))
    a("s_add_u32 s%d, s%d, 0x4000" % (sVo, sKm))


NPF = 0 if 'nopf' in FL else 10


def q_loads():
    L = []
    for blk in range(2):
        for i in range(8):
            if i % 4 == 0:
                L.append("s_add_u32 s5, s%d, %d" % (6 + blk, (i // 4) * 4096))
            L.append("buffer_load_dwordx4 %s, v%d, s[8:11], s5 offen offset:%d" % (a4(aQ + 32 * blk + 4 * i), vL16, (i % 4) * 1024))
    return L


def q_setup(a):
    srd(a, 8, P_WS, 16 * MB)
    a("s_lshl_b32 s4, s%d, 15" % sHead)
    a("s_lshl_b32 s5, s%d, 13" % S_WAVE)
    a("s_add_u32 s4, s4, s5")
    a("s_lshl_b32 s5, s%d, 20" % sPair)
    a("s_add_u32 s6, s4, s5")
    a("s_sub_u32 s7, s4, s5")
    a("s_add_u32 s7, s7, %d" % (15 * MB))


def pf_items(a):
    if not NPF:
        return
    a("s_lshl_b32 s4, s2, 2")
    a("s_add_u32 s4, s4, s%d" % S_WAVE)
    a("s_lshl_b32 s5, s4, 13")
    srd(a, 12, P_WO, 8 * MB)
    for i in range(8):
        if i == 4:
            a("s_add_u32 s5, s5, 4096")
        a("buffer_load_dwordx4 a[64:67], v%d, s[12:15], s5 offen offset:%d" % (vL16, (i % 4) * 1024))
    a("s_lshl_b32 s5, s4, 11")
    srd(a, 12, P_BWO, 2 * MB)
    for i in range(2):
        a("buffer_load_dwordx4 a[64:67], v%d, s[12:15], s5 offen offset:%d" % (vL16, i * 1024))


def kv_prologue_items(withq=False):
    L = []
    tk = tv = 0
    for w in "KKVKVKV":
        if withq and tk == 1 and tv == 0:
            L += q_loads()
        L += kv_dma(w)
        if w == 'K':
            L += ["s_xor_b32 s%d, s%d, 0x%x" % (sKm, sKm, gray_mask(tk)), "s_add_u32 s%d, s%d, 0x8000" % (sKo, sKo)]
            tk += 1
        else:
            L += ["s_xor_b32 s%d, s%d, 0x%x" % (sVm, sVm, gray_mask(tv)), "s_add_u32 s%d, s%d, 0x8000" % (sVo, sVo)]
            tv += 1
    return L


def qk_frags(kindq, half, sb):
    F = []
    if kindq is None:
        return F
    dbl = kindq[0] == 'D'
    gs = [0, 1, 2, 3] if dbl else [2, 3]
    if kindq.endswith("'"):
        gs = gs[1:]
    c0 = kindq.endswith("0")
    for jb in range(2 if dbl else 4):
        for ds in range(4):
            ms = []
            for g in gs:
                blk = (2 * g + jb) if dbl else (2 * (2 * (jb >> 1) + g - 2) + (jb & 1))
                ms.append((('v', sb + 4 * blk), Qreg(g, ds), ("0" if c0 else ('v', vNM + 4 * g)) if ds == 0 else None))
            F.append(('K', ((2 * half + jb) if dbl else jb) * 4096 + ds * 1024, ms))
    return F


def pv_frags(kindp, half, pb):
    F = []
    if kindp is None:
        return F, []
    dbl = kindp[0] == 'D'
    gs = [0, 1, 2, 3] if dbl else [2, 3]
    if kindp.endswith("'"):
        gs = gs[1:]
    sums = []
    for kc in range(1 if dbl else 2):
        for g in gs:
            pi = g if dbl else 2 * kc + g - 2
            sums.append(mfma(('a', aL + 4 * g), ('a', aOne), ('v', pb + 4 * pi)))
        for db in range(8):
            ms = [(Oreg(g, db), ('v', pb + 4 * (g if dbl else 2 * kc + g - 2)), None) for g in gs]
            F.append(('V', (half if dbl else kc) * 8192 + db * 1024, ms))
    return F, sums


def sm_items(sm, sb, pb):
    out = []
    if sm is None:
        return out
    for i in range(4):
        masks = []
        if sm != 'p':
            if sm[0] == 'D':
                gq, jbs = i, [2 * sm[1], 2 * sm[1] + 1]
                lvl = sm[1] >> 1
                if i >= 2:
                    gq = 99
            else:
                gq, jbs = i & 1, [4 * sm[1] + 2 * (i >> 1), 4 * sm[1] + 2 * (i >> 1) + 1]
                lvl = sm[1]
            if lvl > gq:
                continue
            if lvl == gq:
                for e, j16 in enumerate(jbs):
                    for r in range(4):
                        x = sb + 8 * i + 4 * e + r
                        m = sMask + 2 * (4 * (j16 & 3) + r)
                        masks.append((x, "v_cndmask_b32 v%d, v%d, v%d, s[%d:%d]" % (x, x, vNEG, m, m + 1)))
        exps = ["v_exp_f32 v%d, v%d" % (sb + 8 * i + e, sb + 8 * i + e) for e in range(8)]
        cvts = ["v_cvt_pk_bf16_f32 v%d, v%d, v%d" % (pb + 4 * i + e, sb + 8 * i + 2 * e, sb + 8 * i + 2 * e + 1) for e in range(4)]
        out.append((dict(masks), exps, cvts))
    return out


class Rnd:
    def __init__(self, par, qk, sm, pv, bar=False, issK=None, issV=None, togK=None, togV=None, togVpre=None):
        self.par, self.qk, self.sm, self.pv, self.bar = par, qk, sm, pv, bar
        self.issK, self.issV, self.togK, self.togV, self.togVpre = issK, issV, togK, togV, togVpre
        self.vm = None

    def frags(self):
        par = self.par
        Fq = qk_frags(self.qk, par ^ 1, vS + 32 * (par ^ 1))
        Fp, sums = pv_frags(self.pv, par ^ 1, vP + 16 * (par ^ 1))
        return Fq, Fp, sums


def fread(ring, off, slot, tag):
    return "ds_read_b128 %s, v%d offset:%d ; @%s" % (a4(aF + 4 * (slot % 16)), vK if ring == 'K' else vV, off, tag)


def tog(reg, m):
    return "v_xor_b32 v%d, %s, v%d" % (reg, m, reg)


def emit_round(a, R, nxt, ph, pend, extra_scal=None):
    Fq, Fp, sums = R.frags()
    F = Fq + Fp
    nF = len(F)
    Fn = []
    if nxt is not None:
        q, p, _ = nxt.frags()
        Fn = (q + p)[:AH]
    mf = []
    first = []
    si = 0
    for i, (ring, off, ms) in enumerate(F):
        first.append(len(mf))
        for d, b, c in ms:
            mf.append(mfma(d, ('a', aF + 4 * ((ph + i) % 16)), b, c))
        if ring == 'V' and si < len(sums):
            per = len(sums) * 8 // len(Fp)
            k = i - len(Fq)
            if (k % 8) < per:
                mf.append(sums[si])
                si += 1
    assert si == len(sums)
    sg = Seg(mf)
    n = sg.n
    if R.bar:
        sg.pre.append("s_waitcnt vmcnt(%d)" % R.vm)
        sg.pre.append("s_barrier")
    grp = 4 if len(F[0][2]) >= 3 else WG_
    i = 0
    dead = {}
    while i < nF:
        gsz = 4 if len(F[i][2]) != 2 else WG_
        j = min(nF - 1, i + gsz - 1, i + AH - 3)
        for x in range(i, j + 1):
            dead[x] = first[i] - 2
        w = "WAIT f%d" % (ph + j)
        if first[i] == 0:
            sg.pre.append(w)
        else:
            sg.put(first[i] - 1, w)
        i = j + 1
    SM = sm_items(R.sm, vS + 32 * R.par, vP + 16 * R.par)
    nexp = 8 * len(SM)
    eg = []
    if nexp:
        last = 0
        k = 0
        for masks, exps, cvts in SM:
            for e, x in enumerate(exps):
                want = (k * (n - 2)) // nexp
                reg = int(x.split()[1][1:-1])
                want = max(want, last)
                if reg in masks:
                    want = max(want, 1)
                g = sg.place(x, want, lo=last)
                eg.append(g)
                last = g
                k += 1
    items = []
    if R.issK is not None:
        items += kv_dma('K') + ["s_xor_b32 s%d, s%d, %s" % (sKm, sKm, R.issK), "s_add_u32 s%d, s%d, 0x8000" % (sKo, sKo)]
    if R.issV is not None:
        items += kv_dma('V') + ["s_xor_b32 s%d, s%d, %s" % (sVm, sVm, R.issV), "s_add_u32 s%d, s%d, 0x8000" % (sVo, sVo)]
    if 'nodma' in FL:
        items = [x for x in items if kind(x) != 'd']
    if items:
        place_dma(sg, items, 0, n - 3) if any(kind(x) == 'd' for x in items) else [sg.place(x, 0) for x in items]
    last = 0
    seq = [(j, F[j], False) for j in range(min(AH, nF), nF)] + [(nF + j, f, True) for j, f in enumerate(Fn)]
    prevK = prevV = False
    doneTK = doneTV = doneTVp = False
    lastV = max([j for j, f, nx in seq if f[0] == 'V' and not nx], default=-1)
    for j, f, nx in seq:
        src = j - AH
        want = first[src] if src < nF else n - 1
        lo = last
        if j - 16 >= 0:
            lo = max(lo, (first[j - 15] - 1) if j - 15 < nF else n - 1)
        tg = None
        if f[0] == 'K' and nx and R.togK and not doneTK:
            tg, doneTK = tog(vK, R.togK), True
        if f[0] == 'V' and nx and R.togV and not doneTV:
            tg, doneTV = tog(vV, R.togV), True
        if tg:
            g = sg.place(tg, max(lo, want - 1), lo=lo)
            lo = min(n - 1, g + 1)
            if g == n - 1:
                sg.end[g].append(fread(f[0], f[1], ph + j, "f%d" % (ph + j)))
                last = g
                continue
        if sg.end[last] and any(x.startswith("ds_") for x in sg.end[last]):
            sg.end[last].append(fread(f[0], f[1], ph + j, "f%d" % (ph + j)))
            continue
        hi = dead.get(j)
        assert hi is None or hi >= lo, (j, lo, hi)
        g = sg.place(fread(f[0], f[1], ph + j, "f%d" % (ph + j)), max(want, lo), lo=lo, hi=hi)
        last = g
        if j == lastV and R.togV and not doneTV and not any(x[1][0] == 'V' and x[2] for x in seq):
            doneTV = True
            sg.place(tog(vV, R.togV), g, lo=g)
    if R.togV and not doneTV:
        sg.place(tog(vV, R.togV), 0)
    assert not (R.togK and not doneTK and nxt is not None and nxt.qk), "togK unused"
    k = 0
    for masks, exps, cvts in SM:
        for e, x in enumerate(exps):
            reg = int(x.split()[1][1:-1])
            if reg in masks:
                g = eg[k + e]
                q = g - 1
                while q >= 0 and not sg.room(q, 'c'):
                    q -= 1
                if q < 0:
                    sg.c[g].insert(0, masks[reg])
                    sg.used[g] += 4
                else:
                    sg.put(q, masks[reg])
        for e, x in enumerate(cvts):
            g = eg[k + 2 * e + 1]
            if g + 1 <= n - 1:
                sg.place(x, g + 1, lo=g + 1)
            else:
                sg.end[n - 1].append(x)
        k += 8
    for x in (extra_scal or []):
        if x.startswith("s_cmp"):
            sg.end[n - 1].append(x)
        else:
            sg.place(x, n // 2)
    L, pend = resolve_waits(sg.lines(), pend)
    for x in L:
        a(x)
    nph = (ph + nF) % 16
    pend = ["f%d" % (int(t[1:]) - (ph + nF) + nph) for t in pend]
    R.cost = sg.cost()
    return nph, pend


def epilogue(a, gs, srow):
    a("s_lshl_b32 s4, s%d, 20" % srow)
    a("s_lshl_b32 s5, s%d, 15" % sHead)
    a("s_add_u32 s4, s4, s5")
    a("s_lshl_b32 s5, s%d, 11" % S_WAVE)
    a("s_add_u32 s4, s4, s5")
    for k, g in enumerate(gs):
        a("v_accvgpr_read_b32 v%d, a%d" % (vT + 2 * k, aL + 4 * g))
    a("s_mov_b32 s5, 0x%08x" % f32bits(THR))
    for k, g in enumerate(gs):
        a("v_cmp_nlt_f32 vcc, v%d, s5" % (vT + 2 * k)) if False else a("v_cmp_ngt_f32 vcc, s5, v%d" % (vT + 2 * k))
        a("v_rcp_f32 v%d, v%d" % (vT + 2 * k, vT + 2 * k))
        a("s_or_b32 s%d, s%d, vcc_lo" % (sFail, sFail))
        a("s_or_b32 s%d, s%d, vcc_hi" % (sFail, sFail))
        a("v_mov_b32 v%d, v%d" % (vT + 2 * k + 1, vT + 2 * k))
    store_O(a, gs)


def store_O(a, gs):
    for ds in range(4):
        for k, g in enumerate(gs):
            b = vO + 4 * (8 * g + 2 * ds)
            for e in range(0, 8, 2):
                a("v_pk_mul_f32 v[%d:%d], v[%d:%d], v[%d:%d]" % (b + e, b + e + 1, b + e, b + e + 1, vT + 2 * k, vT + 2 * k + 1))
            for e in range(4):
                a("v_cvt_pk_bf16_f32 v%d, v%d, v%d" % (b + e, b + 2 * e, b + 2 * e + 1))
            a("buffer_store_dwordx4 %s, v%d, s[%d:%d], s4 offen offset:%d" % (v4(b), vL16, sCtx, sCtx + 3, (g & 1) * 1024))
        if ds < 3:
            a("s_add_u32 s4, s4, 8192")


def rowmax(a, src, t0, t1):
    a("v_max3_f32 v%d, v%d, v%d, v%d" % (t0, src, src + 1, src + 2))
    a("v_max3_f32 v%d, v%d, v%d, v%d" % (t1, src + 3, src + 4, src + 5))
    a("v_max3_f32 v%d, v%d, v%d, v%d" % (t0, t0, src + 6, src + 7))
    a("v_max_f32 v%d, v%d, v%d" % (t0, t0, t1))


def xmax(a, pairs):
    for op in ("v_permlane32_swap_b32", "v_permlane16_swap_b32"):
        for t0, t1 in pairs:
            a("v_mov_b32 v%d, v%d" % (t1, t0))
        for t0, t1 in pairs:
            a("%s v%d, v%d" % (op, t0, t1))
        for t0, t1 in pairs:
            a("v_max_f32 v%d, v%d, v%d" % (t0, t0, t1))


def plan(p):
    pass


def build_rounds():
    g0, g1 = "0x4000", "0x8000"
    R = {}
    R['c0'] = Rnd(0, 'D', 'p', None, bar=True, togK=g0)
    R['lo'] = Rnd(1, 'D', 'p', 'D')
    R['le'] = Rnd(0, 'D', 'p', 'D', bar=True, issK="s%d" % sMb, issV="s%d" % sMa, togK="s%d" % sMa, togV="s%d" % sMb)
    R['d0'] = Rnd(0, 'D', ('D', 0), 'D', bar=True, issK=g1, issV=g0, togK=g0, togV=g1)
    R['d1'] = Rnd(1, "D'", ('D', 1), 'D')
    R['d2'] = Rnd(0, "D'", ('D', 2), 'D', bar=True, issK=g0, issV=g1, togK=g1, togV=g0)
    R['d3'] = Rnd(1, 'S', ('D', 3), "D'", bar=True, issK=g1, issV=g0, togK=g0)
    R['t0'] = Rnd(0, 'S', 'p', "D'", bar=True, issK=g0, togK=g1, togV=g1)
    R['t7'] = Rnd(0, "S'", ('S', 0), "D'", bar=True, togV=g1)
    R['so'] = Rnd(1, 'S', 'p', 'S', bar=True, issK=g1, issV=g1, togK=g0, togV=g0)
    R['se'] = Rnd(0, 'S', 'p', 'S', bar=True, issK=g0, issV=g0, togK=g1, togV=g1)
    R['e0'] = Rnd(0, "S'", ('S', 0), 'S', bar=True, togV=g1)
    R['e1'] = Rnd(1, None, ('S', 1), 'S', bar=True, togV=g0)
    R['e2'] = Rnd(0, None, None, "S'")
    return R


def path(p):
    seq = ['c0']
    if p:
        seq += ['lo', 'le'] * (2 * p - 1) + ['lo', 'd0']
    seq += ['d1', 'd2', 'd3']
    if p == 7:
        seq += ['t7', 'EPI']
    else:
        ns = 2 * (15 - 2 * p)
        seq += ['t0', 'EPI'] + ['so', 'se'] * ((ns - 4) // 2) + ['so', 'e0']
    seq += ['e1', 'e2']
    return seq


def simulate(R):
    need = {}
    for p in range(8):
        seq = path(p)
        nd = 4 * p + 4
        ktile = lambda c: c // 2 if c < nd else nd // 2 + (c - nd)
        q = [('K', 0), ('K', 1), ('V', 0), ('K', 2), ('V', 1), ('K', 3), ('V', 2)]
        q = [x for x in q for _ in range(4)] + [('pf', 0)] * NPF
        nk, nv = 4, 3
        rounds = [k for k in seq if k != 'EPI']
        reads = []
        for c, k in enumerate(rounds):
            r = set()
            if R[k].qk:
                r.add(('K', ktile(c + 1)))
            if R[k].pv:
                r.add(('V', ktile(c - 1)))
            reads.append(r)
        full = []
        for c, k in enumerate(rounds):
            r = set(reads[c])
            if c + 1 < len(rounds):
                nx = R[rounds[c + 1]]
                fq, fp, _ = nx.frags()
                for f in (fq + fp)[:AH]:
                    r.add(('K', ktile(c + 2)) if f[0] == 'K' else ('V', ktile(c)))
            full.append(r)
        c = 0
        slotK = {}
        kaddr, vaddr = 0, 0
        for k in seq:
            if k == 'EPI':
                q += [('st', 0)] * 8
                continue
            r = R[k]
            if r.bar:
                e = c + 1
                while e < len(rounds) and not R[rounds[e]].bar:
                    e += 1
                req = set().union(*full[c:e])
                idx = max(i for i, x in enumerate(q) if x in req)
                assert all(x in q for x in req), (p, k, req)
                need[k] = min(need.get(k, 63), len(q) - 1 - idx)
                lastbar = c
            for w, iss in (('K', r.issK), ('V', r.issV)):
                if iss is not None:
                    t = nk if w == 'K' else nv
                    for cc in range(lastbar, len(rounds)):
                        assert (w, t - 4) not in full[cc], (p, k, w, t)
                    if iss.startswith("0x"):
                        assert int(iss, 16) == gray_mask(t), (p, k, w, t)
                    q += [(w, t)] * 4
                    if w == 'K':
                        nk += 1
                    else:
                        nv += 1
            if r.qk:
                assert kaddr == ktile(c + 1), (p, k, kaddr)
            if r.pv:
                assert vaddr == ktile(c - 1), (p, k, vaddr, ktile(c - 1))
            if r.togK:
                if r.togK.startswith("0x"):
                    assert int(r.togK, 16) == gray_mask(kaddr), (p, k)
                kaddr += 1
            if r.togV:
                if r.togV.startswith("0x"):
                    assert int(r.togV, 16) == gray_mask(vaddr), (p, k)
                vaddr += 1
            c += 1
    for k, v in need.items():
        R[k].vm = v
    return need


def attention(a, st):
    R = build_rounds()
    simulate(R)
    srd(a, sCtx, P_WS, 16 * MB, WS_CTX)
    a("v_mov_b32 v%d, v%d" % (vK, vL16))
    a("v_add_u32 v%d, 0x10000, v%d" % (vV, vL16))
    a("v_mov_b32 v%d, 0xf149f2ca" % vNEG)
    a("s_mov_b32 s%d, 0" % sFail)
    a("v_mov_b32 v%d, 0x3f803f80" % vT)
    for i in range(4):
        a("v_accvgpr_write_b32 a%d, v%d" % (aOne + i, vT))
    for i in range(16):
        a("v_accvgpr_write_b32 a%d, 0" % (aL + i))
    for i in range(128):
        a("v_mov_b32 v%d, 0" % (vO + i))
    a("v_and_b32 v%d, 15, v1" % vT)
    a("v_lshrrev_b32 v%d, 4, v1" % (vT + 1))
    a("v_sub_u32 v%d, v%d, v%d" % (vT, vT, vT + 1))
    a("v_lshlrev_b32 v%d, 2, v%d" % (vT, vT))
    a("v_add_u32 v%d, s%d, v%d" % (vT, S_WAVE, vT))
    for j in range(4):
        for r in range(4):
            m = sMask + 2 * (4 * j + r)
            a("v_cmp_gt_i32 s[%d:%d], %d, v%d" % (m, m + 1, 16 * j + r, vT))
    a("s_mov_b32 s%d, 0x8000" % sMa)
    a("s_mov_b32 s%d, 0x4000" % sMb)
    a("s_waitcnt vmcnt(%d)" % (24 + NPF))
    a("s_barrier")
    st(a)
    P0 = Rnd(1, 'D0', None, None)
    fq = qk_frags('D0', 0, vS)
    L = [fread('K', fq[j][1], 8 + j, "f%d" % (8 + j)) for j in range(8)]
    c0q, c0p, _ = R['c0'].frags()
    nx = (c0q + c0p)[:AH]
    assert len(nx) == 8
    for j, (ring, off, ms) in enumerate(fq):
        if j % 2 == 0:
            L.append("WAIT f%d" % (9 + j))
        for d, b, c in ms:
            L.append(mfma(d, ('a', aF + 4 * (8 + j)), b, c))
        L.append(fread('K', nx[j][1], 16 + j, "f%d" % (16 + j)))
    L, pend = resolve_waits(L, [])
    for x in L:
        a(x)
    pend = ["f%d" % (int(t[1:]) - 16) for t in pend]
    a("s_cmp_lg_u32 s%d, 0" % sPair)
    a("s_cbranch_scc1 La_nomask0")
    for reg, x in sm_items(('D', 0), vS, vP)[0][0].items():
        a(x)
    a.label("La_nomask0")
    for g in range(4):
        rowmax(a, vS + 8 * g, vT + 2 * g, vT + 2 * g + 1)
    xmax(a, [(vT + 2 * g, vT + 2 * g + 1) for g in range(4)])
    for g in range(4):
        for r in range(4):
            a("v_sub_f32 v%d, 0, v%d" % (vNM + 4 * g + r, vT + 2 * g))
    for g in range(4):
        for e in range(0, 8, 2):
            b = vS + 8 * g + e
            a("v_pk_add_f32 v[%d:%d], v[%d:%d], v[%d:%d]" % (b, b + 1, b, b + 1, vNM + 4 * g, vNM + 4 * g + 1))
    state = {}

    def rnd(k, nk, ph, pend, extra=None):
        assert len(pend) <= 15
        return emit_round(a, R[k], R[nk] if nk else None, ph, pend, extra)

    def join(k, ph, pend):
        if k in state:
            assert state[k] == (ph, pend), (k, state[k], ph, pend)
        state[k] = (ph, list(pend))
    a("s_lshl_b32 s%d, s%d, 1" % (sCnt, sPair))
    ph, pend = rnd('c0', 'lo', 0, pend, ["s_cmp_eq_u32 s%d, 0" % sPair])
    join('lo', ph, pend)
    join('d1', ph, pend)
    a("s_cbranch_scc1 La_d1")
    a(".p2align 6")
    a.label("La_lo")
    ph, pend = rnd('lo', 'le', ph, pend, ["s_sub_u32 s%d, s%d, 1" % (sCnt, sCnt), "s_cmp_eq_u32 s%d, 0" % sCnt])
    join('d0', ph, pend)
    a("s_cbranch_scc1 La_d0")
    ph, pend = rnd('le', 'lo', ph, pend)
    a("s_xor_b32 s%d, s%d, 0xc000" % (sMa, sMa))
    a("s_xor_b32 s%d, s%d, 0xc000" % (sMb, sMb))
    join('lo', ph, pend)
    a("s_branch La_lo")
    a.label("La_d0")
    ph, pend = state['d0']
    ph, pend = rnd('d0', 'd1', ph, pend)
    join('d1', ph, pend)
    a.label("La_d1")
    ph, pend = rnd('d1', 'd2', ph, pend)
    ph, pend = rnd('d2', 'd3', ph, pend)
    ph, pend = rnd('d3', 't0', ph, pend, ["s_cmp_eq_u32 s%d, 7" % sPair])
    join('t7', ph, pend)
    a("s_cbranch_scc1 La_t7")
    ph, pend = rnd('t0', 'so', ph, pend)
    st(a)
    epilogue(a, [0, 1], sPair)
    st(a)
    a("s_lshl_b32 s%d, s%d, 1" % (sCnt, sPair))
    a("s_sub_u32 s%d, 14, s%d" % (sCnt, sCnt))
    join('so', ph, pend)
    a(".p2align 6")
    a.label("La_so")
    ph, pend = rnd('so', 'se', ph, pend, ["s_sub_u32 s%d, s%d, 1" % (sCnt, sCnt), "s_cmp_eq_u32 s%d, 0" % sCnt])
    join('e0', ph, pend)
    a("s_cbranch_scc1 La_e0")
    ph, pend = rnd('se', 'so', ph, pend)
    join('so', ph, pend)
    a("s_branch La_so")
    a.label("La_t7")
    ph, pend = state['t7']
    ph, pend = rnd('t7', 'e1', ph, pend)
    if st.on:
        st.k -= 2
    st(a)
    epilogue(a, [0, 1], sPair)
    st(a)
    join('e1', ph, pend)
    a("s_branch La_e1")
    a.label("La_e0")
    ph, pend = state['e0']
    ph, pend = rnd('e0', 'e1', ph, pend)
    join('e1', ph, pend)
    a.label("La_e1")
    ph, pend = rnd('e1', 'e2', ph, pend)
    ph, pend = rnd('e2', None, ph, pend)
    st(a)
    a("s_sub_u32 s%d, 15, s%d" % (sCnt, sPair))
    epilogue(a, [2, 3], sCnt)
    if 'v' in FL:
        for k, r in R.items():
            print(k, "vm", r.vm, "cost", r.cost, file=sys.stderr)


def q_epilogue(a):
    a("s_mov_b32 s4, 0x%08x" % f32bits(CST))
    a("s_mov_b32 s5, s4")
    for g in range(4):
        for ds in range(4):
            b = vO + 4 * (8 * g + 2 * ds)
            for e in range(0, 8, 2):
                a("v_pk_mul_f32 v[%d:%d], v[%d:%d], s[4:5]" % (b + e, b + e + 1, b + e, b + e + 1))
            for e in range(4):
                a("v_cvt_pk_bf16_f32 v%d, v%d, v%d" % (b + e, b + 2 * e, b + 2 * e + 1))
            for e in range(4):
                a("v_accvgpr_write_b32 a%d, v%d" % (aQ + 4 * (4 * g + ds) + e, b + e))


def gen_k2(stamp=False):
    a = Asm()
    st = Stamps(stamp, 1)
    a("s_cmp_ge_u32 s2, 256")
    a("s_cbranch_scc1 Lk2_end")
    a("s_load_dwordx16 s[64:79], s[0:1], 0")
    a("s_load_dwordx8 s[80:87], s[0:1], 64")
    a("v_lshrrev_b32 v2, 6, v0")
    a("v_and_b32 v1, 63, v0")
    a("v_readfirstlane_b32 s%d, v2" % S_WAVE)
    a("v_lshlrev_b32 v%d, 4, v1" % vL16)
    ids(a)
    a("s_waitcnt lgkmcnt(0)")
    st(a)
    if 'fuseq' in FL:
        g, T = qproj(a)
        for x in g.prologue_items():
            a(x)
        qproj_rd(a, g, T)
        kv_setup(a)
        st(a)
        g.run(a, tail=lambda sg: place_dma(sg, kv_prologue_items(), 0, sg.n - 1))
        st(a)
        q_epilogue(a)
    else:
        kv_setup(a)
        q_setup(a)
        for x in kv_prologue_items(True):
            a(x)
    pf_items(a)
    attention(a, st)
    st(a)
    a("s_waitcnt vmcnt(0)")
    st(a)
    st.flush(a)
    a.label("Lk2_end")
    a("s_endpgm")
    return a.finish()
```

```python
from lib import *
from gemm4 import *

CB = (32 ** -0.5) * math.log2(math.e)
xv, hv, wv = 24, 28, 8
sX, sW = 46, 47
sRb, sHp = 54, 55
T = 32
A0 = 128
XCH = 132 * KB


def accq(mi, b): return ('v', A0 + 4 * (2 * mi + b))
def acck(mi, b): return ('v', A0 + 32 + 4 * (2 * mi + b))
def accv(mi, b): return ('v', A0 + 64 + 4 * (2 * mi + b))
def acch(b): return ('v', A0 + 96 + 4 * b)


def make(rh):
    g = Gemm()
    g.name, g.nst, g.woff = "p2r%d" % rh, 16, 20 * KB
    R = Ring(3, 44 * KB, 36)
    R.regs = [16, 17, 18, 19, 20, 21]
    g.rings = [R]
    g.xrd, g.wrd = [(16, 17), (18, 19)], [20, 21]
    g.xfr = [(0, 2048 * i) for i in range(4)] + [(1, 0)]
    g.wfr = [(b, p * 8192) for p in range(3) for b in range(2)]
    mf = []
    for b in range(2):
        mf += [(accq(mi, b), mi, b, 'wx') for mi in range(4)]
    for b in range(2):
        mf += [(acck(mi, b), mi, 2 + b, 'wx') for mi in range(4)]
        if rh == 0:
            mf.append((acch(b), 4, 2 + b, 'wx'))
    for b in range(2):
        mf += [(accv(mi, b), mi, 4 + b, 'xw') for mi in range(4)]
        if rh == 1:
            mf.append((acch(b), 4, 4 + b, 'xw'))
    g.mf = mf
    g.fx, g.fw = 0, 40
    g.sCnt = 35
    ld = lambda v, s, o, j: "buffer_load_dwordx4 v%d, s[%d:%d], s%d offen offset:%d lds" % (v, s, s + 3, o, 1024 * j)
    g.dma = [
        (R, ('s', 48), [ld(wv + j, 12, sW, j) for j in range(3)], []),
        (R, ('s', 49), [ld(wv + 3 + j, 12, sW, j) for j in range(3)], ["s_add_u32 s%d, s%d, %d" % (sW, sW, 64 * 6144)]),
        (R, 0, [ld(xv + j, 8, sX, j) for j in range(4)], []),
        (R, ('s', 52), [ld(hv, 8, sX, 0)], ["s_add_u32 s%d, s%d, 128" % (sX, sX)]),
    ]
    return g


def setup(a, g):
    R = g.rings[0]
    a("s_and_b32 s4, s2, 1")
    a("s_lshl_b32 s4, s4, 3")
    a("s_bfe_u32 s5, s2, 0x30003")
    a("s_add_u32 s%d, s4, s5" % sRb)
    a("s_bfe_u32 s4, s2, 0x20001")
    a("s_lshl_b32 s4, s4, 2")
    a("s_lshr_b32 s5, s2, 6")
    a("s_add_u32 s%d, s4, s5" % sHp)
    a("s_lshl_b32 s4, s%d, 18" % sRb)
    a("s_add_u32 s8, s%d, s4" % P_BX)
    a("s_addc_u32 s9, s%d, 0" % (P_BX + 1))
    a("s_sub_u32 s8, s8, %d" % (16 * 2048))
    a("s_subb_u32 s9, s9, 0")
    a("s_mov_b32 s10, %d" % (144 * 2048))
    a("s_mov_b32 s11, 0x00020000")
    srd(a, 12, P_WQKV, 1024 * 6144)
    a("s_mov_b32 s%d, 0" % sX)
    a("s_lshl_b32 s%d, s%d, 7" % (sW, sHp))
    a("s_lshl_b32 s%d, s%d, 12" % (R.sWr, S_WAVE))
    a("s_lshl_b32 s4, s%d, 11" % S_WAVE)
    a("s_add_u32 s48, s4, %d" % g.woff)
    a("s_add_u32 s49, s48, 3072")
    a("s_mul_i32 s4, s%d, 3072" % S_WAVE)
    a("s_sub_u32 s52, %d, s4" % (16 * KB))
    lane_setup(a, T)
    a("s_lshl_b32 s4, s%d, 5" % S_WAVE)
    a("s_add_u32 s4, s4, 16")
    a("v_add_u32 v%d, s4, v%d" % (T + 2, T))
    a("v_lshl_add_u32 v%d, v%d, 11, v%d" % (T + 2, T + 2, T + 1))
    for j in range(4):
        a("v_add_u32 v%d, %d, v%d" % (xv + j, 8 * j * 2048 - 1024 * j, T + 2))
    a("s_lshl_b32 s4, s%d, 14" % S_WAVE)
    a("s_cmp_ge_u32 s%d, 2" % S_WAVE)
    a("s_cselect_b32 s4, 0x40000000, s4")
    a("s_cmp_eq_u32 s%d, 0" % sRb)
    a("s_cselect_b32 s4, 0x40000000, s4")
    a("v_lshl_add_u32 v%d, v%d, 11, v%d" % (T + 2, T, T + 1))
    a("v_add_u32 v%d, s4, v%d" % (hv, T + 2))
    a("v_lshrrev_b32 v%d, 2, v%d" % (T + 2, T))
    a("v_and_b32 v%d, 3, v%d" % (T + 3, T))
    a("v_lshl_add_u32 v%d, v%d, 3, v%d" % (T + 2, T + 2, T + 3))
    a("v_mul_u32_u24 v%d, 6144, v%d" % (T + 2, T + 2))
    a("v_add_u32 v%d, v%d, v%d" % (T + 2, T + 2, T + 1))
    a("s_mul_i32 s6, s%d, 6" % S_WAVE)
    for j in range(6):
        a("s_add_u32 s7, s6, %d" % j)
        a("s_bfe_u32 s4, s7, 0x10002")
        a("s_lshl_b32 s4, s4, 5")
        a("s_and_b32 s5, s7, 1")
        a("s_lshl_b32 s5, s5, 4")
        a("s_add_u32 s4, s4, s5")
        a("s_bfe_u32 s5, s7, 0x10001")
        a("s_lshl_b32 s5, s5, 2")
        a("s_add_u32 s4, s4, s5")
        a("s_mul_i32 s4, s4, 6144")
        a("s_lshr_b32 s5, s7, 3")
        a("s_lshl_b32 s5, s5, 11")
        a("s_add_u32 s4, s4, s5")
        a("s_add_u32 s4, s4, %d" % (2048 - 1024 * (j % 3)))
        a("v_add_u32 v%d, s4, v%d" % (wv + j, T + 2))
    a("s_sub_u32 s12, s12, 2048")
    a("s_subb_u32 s13, s13, 0")
    a("s_add_u32 s14, s14, 2048")


def read_bases(a, g):
    a("s_lshr_b32 s4, s%d, 1" % S_WAVE)
    a("s_lshl_b32 s4, s4, 13")
    xread_base(a, 16, 17, T, "s4")
    xread_base(a, 18, 19, T, "%d" % (16 * KB))
    wread_base(a, [20, 21], [0, 1], T, "0")
    a("s_and_b32 s4, s%d, 1" % S_WAVE)
    a("s_lshl_b32 s4, s4, 6")
    a("v_xor_b32 v20, s4, v20")
    a("v_xor_b32 v21, s4, v21")


def local_attn(a, rh, SF=""):
    QP, KP, VP, MC, MP, MP0 = 48, 64, 84, 104, 108, 112
    S0 = 16
    TM = 116
    cvt = lambda d, s: (a("v_cvt_pk_bf16_f32 v%d, v%d, v%d" % (d, s, s + 1)), a("v_cvt_pk_bf16_f32 v%d, v%d, v%d" % (d + 1, s + 2, s + 3)))
    a("s_and_b32 s4, s%d, 1" % S_WAVE)
    a("s_mul_i32 s4, s4, 3072")
    a("s_add_u32 s4, s4, %d" % XCH)
    a("v_add_u32 v%d, s4, v2" % TM)
    if rh == 0:
        for b in range(2):
            cvt(KP + 16 + 2 * b, acck(3, b)[1])
            cvt(VP + 10 * b + 8, accv(3, b)[1])
        a("ds_write_b128 v%d, %s" % (TM, v4(KP + 16)))
        a("ds_write_b64 v%d, v[%d:%d] offset:1024" % (TM, VP + 8, VP + 9))
        a("ds_write_b64 v%d, v[%d:%d] offset:1032" % (TM, VP + 18, VP + 19))
    else:
        for b in range(2):
            cvt(TM + 4 + 2 * b, acch(b)[1])
        a("ds_write_b128 v%d, %s offset:2048" % (TM, v4(TM + 4)))
    a("v_and_b32 v%d, 15, v1" % (TM + 1))
    a("v_lshrrev_b32 v%d, 4, v1" % (TM + 2))
    a("v_lshlrev_b32 v%d, 2, v%d" % (TM + 2, TM + 2))
    a("v_sub_u32 v%d, v%d, v%d" % (TM + 1, TM + 1, TM + 2))
    a("v_mov_b32 v%d, 0xf149f2ca" % (TM + 2))
    for r in range(4):
        a("v_subrev_u32 v%d, %d, v%d" % (TM + 3, r, TM + 1))
        a("v_and_b32 v%d, 0x80000001, v%d" % (MC + r, TM + 3))
        a("v_cmp_ne_u32 vcc, 0, v%d" % (MC + r))
        a("v_cndmask_b32 v%d, 0, v%d, vcc" % (MC + r, TM + 2))
        a("v_add_u32 v%d, 1, v%d" % (TM + 3, TM + 3))
        a("v_and_b32 v%d, 0x80000001, v%d" % (MP + r, TM + 3))
        a("v_cmp_ne_u32 vcc, 0x80000001, v%d" % (MP + r))
        a("v_cndmask_b32 v%d, 0, v%d, vcc" % (MP + r, TM + 2))
    if rh == 0:
        a("s_cmp_eq_u32 s%d, 0" % sRb)
        a("s_cselect_b64 vcc, -1, 0")
        for r in range(4):
            a("v_cndmask_b32 v%d, v%d, v%d, vcc" % (MP0 + r, MP + r, TM + 2))
    a("s_mov_b32 s6, 0x%08x" % f32bits(CB))
    a("s_mov_b32 s7, s6")
    for mi in range(4):
        for b in range(2):
            s = accq(mi, b)[1]
            a("v_pk_mul_f32 v[%d:%d], v[%d:%d], s[6:7]" % (s, s + 1, s, s + 1))
            a("v_pk_mul_f32 v[%d:%d], v[%d:%d], s[6:7]" % (s + 2, s + 3, s + 2, s + 3))
        for b in range(2):
            cvt(QP + 4 * mi + 2 * b, accq(mi, b)[1])
    for mi in range(4):
        for b in range(2):
            if not (rh == 0 and mi == 3):
                cvt(KP + 4 * (mi + 1) + 2 * b, acck(mi, b)[1])
                cvt(VP + 10 * b + 2 * (mi + 1), accv(mi, b)[1])
    if rh == 0:
        for b in range(2):
            cvt(KP + 2 * b, acch(b)[1])
    a("v_mov_b32 v%d, 0x3f803f80" % (TM + 4))
    for i in range(1, 4):
        a("v_mov_b32 v%d, v%d" % (TM + 4 + i, TM + 4))
    a("s_waitcnt lgkmcnt(0)")
    a("s_barrier")
    if rh == 0:
        a("ds_read_b64 v[%d:%d], v%d offset:2048" % (VP, VP + 1, TM))
        a("ds_read_b64 v[%d:%d], v%d offset:2056" % (VP + 10, VP + 11, TM))
    else:
        a("ds_read_b128 %s, v%d" % (v4(KP), TM))
        a("ds_read_b64 v[%d:%d], v%d offset:1024" % (VP, VP + 1, TM))
        a("ds_read_b64 v[%d:%d], v%d offset:1032" % (VP + 10, VP + 11, TM))
    order = [3, 2, 1, 0]
    for mi in order:
        if mi == 0:
            a("s_waitcnt lgkmcnt(0)")
        a(mfma(('v', S0 + 8 * mi), ('v', KP + 4 * mi), ('v', QP + 4 * mi), ('v', MP0 if (rh == 0 and mi == 0) else MP)))
        a(mfma(('v', S0 + 8 * mi + 4), ('v', KP + 4 * mi + 4), ('v', QP + 4 * mi), ('v', MC)))
    M = A0
    from attn4 import rowmax, xmax
    for mi in order:
        rowmax(a, S0 + 8 * mi, M + 2 * mi, M + 2 * mi + 1)
    xmax(a, [(M + 2 * mi, M + 2 * mi + 1) for mi in order])
    for mi in order:
        for e in range(8):
            a("v_sub_f32 v%d, v%d, v%d" % (S0 + 8 * mi + e, S0 + 8 * mi + e, M + 2 * mi))
        for e in range(8):
            a("v_exp_f32 v%d, v%d" % (S0 + 8 * mi + e, S0 + 8 * mi + e))
    PP, LL, OO = M + 8, M + 24, M + 40
    for mi in order:
        for e in range(4):
            a("v_cvt_pk_bf16_f32 v%d, v%d, v%d" % (PP + 4 * mi + e, S0 + 8 * mi + 2 * e, S0 + 8 * mi + 2 * e + 1))
    for mi in order:
        a(mfma(('v', LL + 4 * mi), ('v', TM + 4), ('v', PP + 4 * mi), "0"))
        for b in range(2):
            a(mfma(('v', OO + 8 * mi + 4 * b), ('v', VP + 10 * b + 2 * mi), ('v', PP + 4 * mi), "0"))
    srd(a, 16, P_WS, 4 * MB, WS_OB)
    a("s_lshl_b32 s4, s%d, 18" % sRb)
    a("s_lshl_b32 s5, s%d, 14" % sHp)
    a("s_add_u32 s4, s4, s5")
    a("s_and_b32 s5, s%d, 1" % S_WAVE)
    a("s_lshl_b32 s5, s5, 13")
    a("s_add_u32 s4, s4, s5")
    if rh:
        a("s_add_u32 s4, s4, 4096")
    for mi in order:
        a("v_rcp_f32 v%d, v%d" % (LL + 4 * mi, LL + 4 * mi))
    for mi in order:
        a("v_mov_b32 v%d, v%d" % (LL + 4 * mi + 1, LL + 4 * mi))
    for mi in order:
        o = OO + 8 * mi
        for e in range(0, 8, 2):
            a("v_pk_mul_f32 v[%d:%d], v[%d:%d], v[%d:%d]" % (o + e, o + e + 1, o + e, o + e + 1, LL + 4 * mi, LL + 4 * mi + 1))
        for e in range(4):
            a("v_cvt_pk_bf16_f32 v%d, v%d, v%d" % (o + e, o + 2 * e, o + 2 * e + 1))
        a("buffer_store_dwordx4 %s, v2, s[16:19], s4 offen offset:%d%s" % (v4(o), mi * 1024, SF))


def run(a, st, extra0):
    g0, g1 = make(0), make(1)
    read_bases(a, g0)
    st(a)
    a("s_cmp_ge_u32 s%d, 2" % S_WAVE)
    a("s_cbranch_scc1 Lp2_r1")
    g0.run(a, extra0=extra0, tail_bar=False)
    st(a)
    local_attn(a, 0)
    a("s_branch Lp2_done")
    a.label("Lp2_r1")
    g1.run(a, extra0=extra0, tail_bar=False)
    local_attn(a, 1)
    a.label("Lp2_done")
```

```python
from lib import *


class Ring:
    def __init__(self, NS, slot, sbase):
        self.NS, self.slot = NS, slot
        self.sWr, self.sRd, self.sRdD, self.sC = sbase, sbase + 1, sbase + 2, sbase + 3
        self.regs = []

    def init(self):
        return ["s_mov_b32 s%d, 0" % self.sRd,
                "s_mov_b32 s%d, %d" % (self.sC, (-(self.NS - 1) * self.slot) & 0xffffffff),
                "s_mov_b32 s%d, %d" % (self.sC + 1, self.slot)]

    def adv(self, wr):
        sc = []
        if wr:
            sc.append("s_add_u32 s%d, s%d, s%d" % (self.sWr, self.sWr, self.sRdD))
        if self.NS == 2:
            sc.append("s_sub_u32 s%d, 0, s%d" % (self.sRdD, self.sRdD))
        else:
            sc += ["s_add_u32 s%d, s%d, 1" % (self.sRd, self.sRd),
                   "s_cmp_eq_u32 s%d, %d\ns_cselect_b32 s%d, 0, s%d\ns_cselect_b32 s%d, s%d, s%d" % (
                       self.sRd, self.NS, self.sRd, self.sRd, self.sRdD, self.sC, self.sC + 1)]
        return sc, ["v_add_u32 v%d, s%d, v%d" % (r, self.sRdD, r) for r in self.regs]


def place_dma(sg, items, g0, g1):
    nd = sum(1 for x in items if kind(x) == 'd')
    k = 0
    last = g0
    for x in items:
        if kind(x) == 'd':
            want = g0 + (k * (g1 - g0 + 1)) // nd
            k += 1
            if sg.end[last]:
                sg.end[last].append(x)
                continue
            g = sg.place(x, max(want, last), lo=last)
            last = g
        else:
            g = min(last + 1, sg.n - 1) if sg.d[last] else last
            if sg.d[g] or sg.end[g]:
                sg.end[g].append(x)
            else:
                g = sg.place(x, g, lo=g)
                if sg.d[g]:
                    raise RuntimeError("scalar placed before an earlier load")
            last = g
            if "m0" in x and not sg.end[g]:
                last = min(g + 1, sg.n - 1)
                if last == g:
                    sg.end[g].append("s_nop 0")
    return last


class Gemm:
    xlin = False
    woff = 0
    pf = []

    def fxr(self, h, i):
        return ('a', self.fx + 4 * (h * len(self.xfr) + i))

    def fwr(self, h, i):
        return ('a', self.fw + 4 * (h * len(self.wfr) + i))

    def mfmas(self, h, first=False):
        L = []
        for acc, xi, wi, o in self.mf:
            x, w = self.fxr(h, xi), self.fwr(h, wi)
            L.append(mfma(acc, w, x, "0" if first else None) if o == 'wx' else mfma(acc, x, w, "0" if first else None))
        return L

    def reads(self, h):
        L = []
        seen = set()
        for acc, xi, wi, o in self.mf:
            if ('x', xi) not in seen:
                seen.add(('x', xi))
                st, imm = self.xfr[xi]
                if self.xlin:
                    L.append("ds_read_b128 %s, v%d offset:%d" % (r4(self.fxr(h, xi)), self.xrd[st][0], imm + h * self.xhs))
                else:
                    L.append("ds_read_b128 %s, v%d offset:%d" % (r4(self.fxr(h, xi)), self.xrd[st][h], imm))
            if ('w', wi) not in seen:
                seen.add(('w', wi))
                nb, imm = self.wfr[wi]
                b = self.fwr(h, wi)[1]
                for j in range(2):
                    L.append("ds_read_b64_tr_b16 a[%d:%d], v%d offset:%d" % (b + 2 * j, b + 2 * j + 1, self.wrd[nb], self.woff + imm + h * 4096 + j * 2048))
        return L

    def group_items(self, grp, off=0):
        ring, m0, ins, post = grp
        if isinstance(m0, tuple):
            L = ["s_add_u32 m0, s%d, s%d" % (ring.sWr, m0[1]) + ("\ns_add_u32 m0, m0, %d" % off if off else "")]
        else:
            m0 += off
            L = ["s_add_u32 m0, s%d, %d" % (ring.sWr, m0) if m0 else "s_mov_b32 m0, s%d" % ring.sWr]
        if 'nodma' in GFL:
            ins = []
        return L + ins + post

    def dma_items(self):
        return [x for g in self.dma for x in self.group_items(g)]

    def issue_seq(self, it):
        return [(g, it - 1 + g[0].NS) for g in self.dma if it - 1 + g[0].NS >= 0]

    def prologue_items(self):
        L = []
        for it in range(-(max(r.NS for r in self.rings) - 1), 1):
            for g, s in self.issue_seq(it):
                L += self.group_items(g, s * g[0].slot)
        return L

    def nprologue(self):
        return sum(1 for x in self.prologue_items() if kind(x) == 'd')

    def vm(self, s, nst):
        q = []
        for it in range(-8, max(s, 1)):
            for g, st in self.issue_seq(it):
                if st < nst:
                    q += [st] * len(g[2])
        idx = max(i for i, st in enumerate(q) if st <= s)
        return len(q) - 1 - idx

    def half(self, a, h, first=False, rd=True, dma=None, adv=False, extra=None):
        sg = Seg(self.mfmas(h, first))
        n = sg.n
        lastd = 0
        nadv = sum(len(r.regs) for r in self.rings)
        if dma:
            lastd = place_dma(sg, dma, 0, n - 2 - ((nadv // 2 + 3) if adv and n > 16 else 0))
        lastr = 0
        if rd and 'noreads' not in GFL:
            R = self.reads(h ^ 1)
            g1 = max(len(R) // 2, n - 1 - min(10, n // 3))
            lastr = max(sg.stream(R, 0, g1))
        if adv:
            g = min(n - 1, lastd + 1) if dma else 0
            vas = []
            for r in self.rings:
                sc, va = r.adv(dma is not None)
                vas += va
                for x in sc:
                    if (sg.d[g] and g == n - 1) or sg.end[g]:
                        sg.end[g].append(x)
                    else:
                        g = sg.place(x, g, lo=g)
            g = max(lastr + 1, g + 1)
            for x in vas:
                if g < n:
                    sg.place(x, g, lo=g)
                else:
                    sg.end[n - 1].append(x)
        if extra:
            extra(sg)
        for x in sg.lines():
            a(x)

    def run(self, a, extra0=0, tail=None, tail_bar=True, fill=None):
        NS = max(r.NS for r in self.rings)
        NSm = min(r.NS for r in self.rings)
        BIG = 64
        it = self.dma_items()
        n = sum(1 for x in it if kind(x) == 'd')
        cut = cnt = 0
        for i, x in enumerate(it):
            if kind(x) == 'd':
                cnt += 1
                if cnt == (n + 1) // 2:
                    cut = i + 1
        while cut < len(it) and kind(it[cut]) == 's' and "m0" not in it[cut]:
            cut += 1
        d0, d1 = it[:cut], it[cut:]
        for r in self.rings:
            for x in r.init():
                a(x)
            if r.NS == 2:
                a("s_mov_b32 s%d, s%d" % (r.sRdD, r.sC))
        a("s_waitcnt vmcnt(%d)" % min(63, self.vm(0, BIG) + extra0))
        a("s_barrier")
        for x in self.reads(0):
            a(x)
        a("s_waitcnt lgkmcnt(0)")
        self.half(a, 0, first=True, adv=True)
        if isinstance(self.nst, int):
            a("s_mov_b32 s%d, %d" % (self.sCnt, self.nst - NS))
        else:
            a("s_sub_u32 s%d, %s, %d" % (self.sCnt, self.nst, NS))
        a(".p2align 6")
        a.label("L%s_loop" % self.name)
        assert self.vm(1, BIG) == self.vm(5, BIG)
        a("s_waitcnt vmcnt(%d) lgkmcnt(0)" % self.vm(5, BIG))
        a("s_barrier")
        self.half(a, 1, dma=self.pf + d0)
        a("s_waitcnt lgkmcnt(0)")

        def cnt_(sg):
            sg.place("s_sub_u32 s%d, s%d, 1" % (self.sCnt, self.sCnt), sg.n - 2, lo=sg.n - 2)
            sg.end[sg.n - 1].append("s_cmp_lg_u32 s%d, 0" % self.sCnt)
        self.half(a, 0, dma=d1, adv=True, extra=cnt_)
        a("s_cbranch_scc1 L%s_loop" % self.name)
        for s in range(BIG - NS + 1, BIG):
            a("s_waitcnt vmcnt(%d) lgkmcnt(0)" % self.vm(s, BIG))
            a("s_barrier")
            its = [x for g, st in self.issue_seq(s) if st < BIG for x in self.group_items(g)]
            self.half(a, 1, dma=its)
            a("s_waitcnt lgkmcnt(0)")
            self.half(a, 0, adv=(s < BIG - 1), dma=[] if its else None)
        a("s_waitcnt lgkmcnt(0)")
        if tail_bar:
            a("s_barrier")
        self.half(a, 1, rd=False, extra=tail)


GFL = set(os.environ.get("GFLAGS", "").split(","))


def lane_setup(a, T):
    a("v_lshrrev_b32 v%d, 3, v1" % T)
    a("v_and_b32 v%d, 6, v%d" % (T + 1, T))
    a("v_and_b32 v%d, 7, v1" % (T + 2))
    a("v_xor_b32 v%d, v%d, v%d" % (T + 1, T + 1, T + 2))
    a("v_lshlrev_b32 v%d, 4, v%d" % (T + 1, T + 1))


def xread_base(a, d0, d1, T, sbase):
    a("v_and_b32 v%d, 15, v1" % T)
    a("v_lshlrev_b32 v%d, 7, v%d" % (T, T))
    a("v_lshrrev_b32 v%d, 4, v1" % (T + 1))
    a("v_and_b32 v%d, 6, v1" % (T + 2))
    a("v_xor_b32 v%d, v%d, v%d" % (T + 1, T + 1, T + 2))
    a("v_lshl_add_u32 v%d, v%d, 4, v%d" % (T, T + 1, T))
    a("v_add_u32 v%d, %s, v%d" % (d0, sbase, T))
    a("v_xor_b32 v%d, 64, v%d" % (d1, d0))


def wread_base(a, regs, nbs, T, sbase):
    a("v_lshrrev_b32 v%d, 2, v1" % T)
    a("v_and_b32 v%d, 6, v%d" % (T + 1, T))
    a("v_lshlrev_b32 v%d, 7, v%d" % (T, T))
    a("v_and_b32 v%d, 1, v1" % (T + 2))
    a("v_lshl_add_u32 v%d, v%d, 3, v%d" % (T, T + 2, T))
    a("v_add_u32 v%d, %s, v%d" % (T, sbase, T))
    a("v_bfe_u32 v%d, v1, 1, 1" % (T + 2))
    a("v_xor_b32 v%d, v%d, v%d" % (T + 1, T + 1, T + 2))
    for r, nb in zip(regs, nbs):
        a("v_xor_b32 v%d, %d, v%d" % (T + 2, 2 * nb, T + 1))
        a("v_lshl_add_u32 v%d, v%d, 4, v%d" % (r, T + 2, T))
```

```python
import os, sys, struct, math
sys.path.insert(0, os.path.join(os.path.dirname(os.path.abspath(__file__)), "..", "gen"))
from asmlib import Asm, Ins

MB = 1 << 20
KB = 1024
WS_KV = 16 * MB
WS_CTX = 64 * MB
WS_OB = 80 * MB
WS_DBG = 200 * MB

S_WAVE = 3
S_PTR = 64
P_AX, P_CKV, P_WQ, P_WUK, P_WUV, P_WO, P_BX, P_WQKV, P_BWO, P_OUT, P_DBG, P_WS = [S_PTR + 2 * i for i in range(12)]


def f32bits(x):
    return struct.unpack("<I", struct.pack("<f", x))[0]


def log2(x):
    n = x.bit_length() - 1
    assert 1 << n == x, x
    return n


def v4(b):
    return "v[%d:%d]" % (b, b + 3)


def a4(b):
    return "a[%d:%d]" % (b, b + 3)


def r4(x):
    return "%s[%d:%d]" % (x[0], x[1], x[1] + 3)


def mfma(d, a, b, c=None):
    return "v_mfma_f32_16x16x32_bf16 %s, %s, %s, %s" % (r4(d), r4(a), r4(b), r4(d) if c is None else (c if isinstance(c, str) else r4(c)))


def srd(a, d, p, size, off=0, soff=None):
    if off:
        a("s_add_u32 s%d, s%d, %d" % (d, p, off))
        a("s_addc_u32 s%d, s%d, 0" % (d + 1, p + 1))
    if soff is not None:
        a("s_add_u32 s%d, s%d, s%d" % (d, d if off else p, soff))
        a("s_addc_u32 s%d, s%d, 0" % (d + 1, d + 1 if off else p + 1))
    if not off and soff is None:
        a("s_mov_b32 s%d, s%d" % (d, p))
        a("s_mov_b32 s%d, s%d" % (d + 1, p + 1))
    a("s_mov_b32 s%d, %s" % (d + 2, size if isinstance(size, str) else "%d" % size))
    a("s_mov_b32 s%d, 0x00020000" % (d + 3))


def kind(t):
    mn = t.split(None, 1)[0]
    if mn.startswith("s_") or mn == "WAIT":
        return 's'
    if mn.startswith("ds_"):
        return 'r'
    if mn.startswith("buffer_") or mn.startswith("global_"):
        return 'd'
    if mn.startswith(("v_exp", "v_rcp", "v_log")):
        return 'e'
    return 'c'


class Seg:
    def __init__(self, mf):
        self.mf = mf
        self.n = len(mf)
        self.pre = []
        self.sc = [[] for _ in mf]
        self.d = [[] for _ in mf]
        self.r = [[] for _ in mf]
        self.c = [[] for _ in mf]
        self.end = [[] for _ in mf]
        self.used = [0] * self.n

    def room(self, g, k):
        if k == 's':
            return len(self.sc[g]) == 0 or self.used[g] <= 4
        if k == 'e':
            return self.used[g] == 0
        if k == 'd':
            return self.used[g] <= 4 and not self.d[g] and not any(kind(x) == 'e' for x in self.c[g])
        return self.used[g] <= 4

    def put(self, g, t):
        k = kind(t)
        if k == 's':
            nl = t.count("\n") + 1
            self.used[g] += 4 * (nl - (0 if self.sc[g] else 1))
            self.sc[g].append(t)
        elif k == 'd':
            self.d[g].append(t)
            self.used[g] += 4
        elif k == 'r':
            self.r[g].append(t)
            self.used[g] += 4
        else:
            self.c[g].append(t)
            self.used[g] += 8 if k == 'e' else 4
        return g

    def place(self, t, want, lo=0, hi=None):
        hi = self.n - 1 if hi is None else min(hi, self.n - 1)
        want = max(lo, min(want, hi))
        k = kind(t)
        for g in range(want, hi + 1):
            if self.room(g, k):
                return self.put(g, t)
        for g in range(want - 1, lo - 1, -1):
            if self.room(g, k):
                return self.put(g, t)
        g = min(range(lo, hi + 1), key=lambda q: (self.used[q], abs(q - want)))
        return self.put(g, t)

    def stream(self, items, g0, g1, strict=False):
        out = []
        n = len(items)
        last = g0
        for i, t in enumerate(items):
            want = g0 + (i * (g1 - g0 + 1)) // n
            g = self.place(t, max(want, last), lo=last, hi=g1 if strict else None)
            last = g
            out.append(g)
        return out

    def lines(self):
        L = list(self.pre)
        for g in range(self.n):
            L.append(self.mf[g])
            for t in self.sc[g] + self.d[g] + self.r[g] + self.c[g] + self.end[g]:
                L += t.split("\n")
        return L

    def cost(self):
        return sum(16 + max(0, self.used[g] - 8) + (4 if self.d[g] else 0) for g in range(self.n))


def resolve_waits(lines, pend):
    out = []
    pend = list(pend)
    later = set(t.split("@")[1].strip() for t in lines if t.startswith("ds_") and "@" in t)
    for t in lines:
        if t.startswith("ds_") and "@" in t:
            later.discard(t.split("@")[1].strip())
        if t.startswith("WAIT"):
            assert t.split()[1] not in later, "wait before its read: " + t
            parts = t.split()
            tag = parts[1]
            extra = " ".join(parts[2:])
            if tag == '*':
                n = 0
            elif tag in pend:
                n = len(pend) - 1 - pend.index(tag)
            else:
                n = None
            if n is None:
                if extra:
                    out.append("s_waitcnt " + extra)
                continue
            assert n <= 15, (n, tag)
            pend = pend[len(pend) - n:] if n else []
            out.append(("s_waitcnt %s lgkmcnt(%d)" % (extra, n)).replace("  ", " "))
            continue
        if t.startswith("ds_"):
            pend.append(t.split("@")[1].strip() if "@" in t else "?")
        out.append(t)
    return out, pend


def kdesc(name, nv, acc, ns=102):
    return """.p2align 6
.amdhsa_kernel %s
  .amdhsa_next_free_vgpr %d
  .amdhsa_next_free_sgpr %d
  .amdhsa_accum_offset %d
  .amdhsa_group_segment_fixed_size 0
  .amdhsa_kernarg_size 96
  .amdhsa_user_sgpr_count 2
  .amdhsa_user_sgpr_kernarg_segment_ptr 1
  .amdhsa_system_sgpr_workgroup_id_x 1
.end_amdhsa_kernel
""" % (name, nv, ns, acc)


def kstart(name):
    return ".globl %s\n.p2align 8\n.type %s,@function\n%s:\n" % (name, name, name)


class Stamps:
    def __init__(self, on, kern):
        self.on, self.kern, self.k = on, kern, 0

    def __call__(self, a):
        if not self.on:
            return
        k = self.k
        self.k += 1
        assert k < 16
        a("s_memrealtime s[96:97]")
        a("s_memtime s[98:99]")
        a("s_waitcnt lgkmcnt(0)")
        a("v_writelane_b32 v15, s96, %d" % (2 * k))
        a("v_writelane_b32 v15, s98, %d" % (2 * k + 1))

    def flush(self, a):
        if not self.on:
            return
        L = a.newlabel("Lst")
        a("s_cmp_lg_u32 s%d, 0" % S_WAVE)
        a("s_cbranch_scc1 %s" % L)
        srd(a, 92, P_WS, 1 * MB, WS_DBG + self.kern * 65536)
        a("s_lshl_b32 s96, s2, 8")
        a("v_mbcnt_lo_u32_b32 v14, -1, 0")
        a("v_mbcnt_hi_u32_b32 v14, -1, v14")
        a("v_lshlrev_b32 v14, 2, v14")
        a("buffer_store_dword v15, v14, s[92:95], s96 offen")
        a.label(L)
```

```python
from lib import *
from gemm4 import *

wv = 24
sX, sW = 46, 47
sRb, sCt = 54, 55
T = 32
A0 = 64
NS = int(os.environ.get("ONS", 5))


def acc(mi, ni): return ('v', A0 + 4 * (2 * mi + ni))


def make(name, nst):
    g = Gemm()
    g.name, g.nst, g.woff = name, nst, 16 * KB
    g.xlin, g.xhs = True, 8192
    R = Ring(NS, 24 * KB, 36)
    R.regs = [16, 20, 21]
    g.rings = [R]
    g.xrd, g.wrd = [(16, 16)], [20, 21]
    g.xfr = [(0, 1024 * i) for i in range(4)]
    g.wfr = [(b, 0) for b in range(2)]
    g.mf = [(acc(mi, ni), mi, ni, 'wx') for ni in range(2) for mi in range(4)]
    g.fx, g.fw = 0, 32
    g.sCnt = 35
    ld = lambda v, s, o, j: "buffer_load_dwordx4 v%d, s[%d:%d], s%d offen offset:%d lds" % (v, s, s + 3, o, 1024 * j)
    g.dma = [
        (R, ('s', 48), [ld(wv + j, 12, sW, j) for j in range(2)], ["s_add_u32 s%d, s%d, %d" % (sW, sW, 64 * 2048)]),
        (R, 0, [ld(2, 8, sX, j) for j in range(4)], ["s_add_u32 s%d, s%d, %d" % (sX, sX, 16 * KB)]),
    ]
    return g


def ids(a):
    a("s_and_b32 s4, s2, 3")
    a("s_lshl_b32 s4, s4, 2")
    a("s_bfe_u32 s5, s2, 0x20003")
    a("s_add_u32 s%d, s4, s5" % sRb)
    a("s_bfe_u32 s4, s2, 0x10002")
    a("s_lshl_b32 s4, s4, 3")
    a("s_lshr_b32 s5, s2, 5")
    a("s_add_u32 s%d, s4, s5" % sCt)


def lanes(a):
    lane_setup(a, T)
    a("s_lshl_b32 s4, s%d, 4" % S_WAVE)
    a("v_add_u32 v%d, s4, v%d" % (T + 2, T))
    a("v_lshl_add_u32 v%d, v%d, 11, v%d" % (wv, T + 2, T + 1))
    a("v_add_u32 v%d, %d, v%d" % (wv + 1, 8 * 2048 - 1024, wv))
    a("s_lshl_b32 s4, s%d, 11" % S_WAVE)
    a("s_sub_u32 s48, %d, s4" % (16 * KB))


def job(g, isA):
    L = []

    class Col:
        def __call__(self, t):
            L.extend(t.split("\n"))
    c = Col()
    R = g.rings[0]
    srd(c, 8, P_WS, (16 if isA else 4) * MB, WS_CTX if isA else WS_OB)
    srd(c, 12, P_WO if isA else P_BWO, (4096 if isA else 1024) * 2048)
    c("s_lshl_b32 s%d, s%d, 12" % (R.sWr, S_WAVE))
    c("s_lshl_b32 s%d, s%d, %d" % (sX, sRb, 20 if isA else 18))
    c("s_add_u32 s%d, s%d, s%d" % (sX, sX, R.sWr))
    c("s_lshl_b32 s%d, s%d, 7" % (sW, sCt))
    return L


def read_bases(a):
    a("s_lshr_b32 s4, s%d, 1" % S_WAVE)
    a("s_lshl_b32 s4, s4, 12")
    a("v_add_u32 v16, s4, v2")
    wread_base(a, [20, 21], [0, 1], T, "0")
    a("s_and_b32 s4, s%d, 1" % S_WAVE)
    a("s_lshl_b32 s4, s4, 6")
    a("v_xor_b32 v20, s4, v20")
    a("v_xor_b32 v21, s4, v21")


def epilogue(a, isA):
    srd(a, 16, P_OUT, 8 * MB)
    a("v_and_b32 v%d, 15, v1" % T)
    a("v_lshlrev_b32 v%d, %d, v%d" % (T, 14 if isA else 12, T))
    a("v_bfe_u32 v%d, v1, 4, 1" % (T + 1))
    a("v_lshrrev_b32 v%d, 5, v1" % (T + 2))
    a("v_lshl_or_b32 v%d, v%d, 1, v%d" % (T + 1, T + 1, T + 2))
    a("v_lshl_add_u32 v%d, v%d, 4, v%d" % (T, T + 1, T))
    a("s_lshl_b32 s4, s%d, 19" % sRb)
    a("s_lshl_b32 s5, s%d, 7" % sCt)
    a("s_add_u32 s4, s4, s5")
    a("s_and_b32 s5, s%d, 1" % S_WAVE)
    a("s_lshl_b32 s5, s5, 6")
    a("s_add_u32 s4, s4, s5")
    a("s_lshr_b32 s5, s%d, 1" % S_WAVE)
    a("s_lshl_b32 s5, s5, %d" % (13 if isA else 18))
    a("s_add_u32 s4, s4, s5")
    if not isA:
        a("s_add_u32 s4, s4, 2048")
    for mi in range(4):
        u = T + 4 + 4 * mi
        for ni in range(2):
            s = acc(mi, ni)[1]
            a("v_cvt_pk_bf16_f32 v%d, v%d, v%d" % (u + 2 * ni, s, s + 1))
            a("v_cvt_pk_bf16_f32 v%d, v%d, v%d" % (u + 2 * ni + 1, s + 2, s + 3))
    for mi in range(4):
        u = T + 4 + 4 * mi
        a("v_permlane16_swap_b32 v%d, v%d" % (u, u + 2))
        a("v_permlane16_swap_b32 v%d, v%d" % (u + 1, u + 3))
        off = ((mi >> 1) + 64 * (mi & 1)) * 4096 if isA else 16 * mi * 4096
        a("s_add_u32 s5, s4, %d" % off)
        a("buffer_store_dwordx4 %s, v%d, s[16:19], s5 offen" % (v4(u), T))


def gen_k3(stamp=False):
    a = Asm()
    st = Stamps(stamp, 2)
    a("s_cmp_ge_u32 s2, 256")
    a("s_cbranch_scc1 Lk3_end")
    a("s_load_dwordx16 s[64:79], s[0:1], 0")
    a("s_load_dwordx8 s[80:87], s[0:1], 64")
    a("v_lshrrev_b32 v2, 6, v0")
    a("v_and_b32 v1, 63, v0")
    a("v_readfirstlane_b32 s%d, v2" % S_WAVE)
    a("v_lshlrev_b32 v2, 4, v1")
    ids(a)
    lanes(a)
    a("s_waitcnt lgkmcnt(0)")
    st(a)
    gb, ga = make("p6", 16), make("p7", 64)
    for x in job(gb, False) + gb.prologue_items():
        a(x)
    read_bases(a)
    st(a)
    gb.run(a)
    for x in job(ga, True) + ga.prologue_items():
        a(x)
    st(a)
    epilogue(a, False)
    read_bases(a)
    st(a)
    ga.run(a, extra0=4, tail_bar=False)
    st(a)
    epilogue(a, True)
    st(a)
    a("s_waitcnt vmcnt(0)")
    st(a)
    st.flush(a)
    a.label("Lk3_end")
    a("s_endpgm")
    return a.finish()
```

```python
from lib import *
from gemm4 import *
import bfront

WS_Q = 0
CST = (128 ** -0.5) * math.log2(math.e)
xv, wv = 24, 28
sX0, sX1, sW0, sW1 = 46, 47, 48, 49
sM0, sN0, sKind, sNst = 50, 51, 52, 53
T = 32


def acc(mi, ni):
    b = mi * 8 + ni
    return ('v', 64 + 4 * b) if b < 48 else ('a', 128 + 4 * (b - 48))


def make(orient):
    g = Gemm()
    g.name = "p1" + orient
    g.nst = "s%d" % sNst
    RX, RW = Ring(3, 32 * KB, 36), Ring(2, 32 * KB, 41)
    RX.regs, RW.regs = [16, 17], [18, 19, 20, 21]
    g.rings = [RX, RW]
    g.xrd, g.wrd = [(16, 17)], [18, 19, 20, 21]
    g.xfr = [(0, 2048 * i) for i in range(8)]
    g.wfr = [(ni & 3, (ni >> 2) * 8192) for ni in range(8)]
    g.mf = [(acc(mi, ni), mi, ni, orient) for ni in range(8) for mi in range(8)]
    g.fx, g.fw = 0, 64
    g.sCnt = 35
    ld = lambda v, s, o, j: "buffer_load_dwordx4 v%d, s[%d:%d], s%d offen offset:%d lds" % (v + j, s, s + 3, o, 1024 * j)
    g.dma = [
        (RW, 0, [ld(wv, 12, sW0, j) for j in range(4)], ["s_add_u32 s%d, s%d, %d" % (sW0, sW0, 64 * 8192)]),
        (RW, 4096, [ld(wv, 12, sW1, j) for j in range(4)], ["s_add_u32 s%d, s%d, %d" % (sW1, sW1, 64 * 8192)]),
        (RX, 0, [ld(xv, 8, sX0, j) for j in range(4)], ["s_add_u32 s%d, s%d, 128" % (sX0, sX0)]),
        (RX, 4096, [ld(xv, 8, sX1, j) for j in range(4)], ["s_add_u32 s%d, s%d, 128" % (sX1, sX1)]),
    ]
    if 'nopf' not in GFL:
        g.pf = ["buffer_load_dwordx4 v[4:7], v2, s[56:59], s60 offen", "s_add_u32 s60, s60, 1024"]
    return g


def pf_setup(a):
    a("s_cmp_lt_u32 s2, 154")
    a("s_cselect_b32 s56, s%d, s%d" % (P_WQKV, P_BX))
    a("s_cselect_b32 s57, s%d, s%d" % (P_WQKV + 1, P_BX + 1))
    a("s_cselect_b32 s58, %d, %d" % (6 * MB, 4 * MB) if False else "s_cselect_b32 s60, 0, 154")
    a("s_mov_b32 s58, %d" % (4 * MB))
    a("s_cselect_b32 s58, %d, s58" % (6 * MB))
    a("s_mov_b32 s59, 0x00020000")
    a("s_sub_u32 s60, s2, s60")
    a("s_lshl_b32 s60, s60, 2")
    a("s_add_u32 s60, s60, s%d" % S_WAVE)
    a("s_mul_i32 s60, s60, 10240")


def tile_xy(a, sidx):
    a("s_and_b32 s4, %s, 1" % sidx)
    a("s_lshl_b32 s4, s4, 2")
    a("s_bfe_u32 s5, %s, 0x20003" % sidx)
    a("s_add_u32 s%d, s4, s5" % sM0)
    a("s_bfe_u32 s4, %s, 0x20001" % sidx)
    a("s_lshl_b32 s4, s4, 2")
    a("s_bfe_u32 s5, %s, 0x20005" % sidx)
    a("s_add_u32 s%d, s4, s5" % sN0)


def job_setup(a, g, kind_):
    L = []
    e = L.append
    RX, RW = g.rings
    q = kind_ == 'q'
    ldx = 2048 if q else 1024

    class Col:
        def __call__(self, t):
            L.extend(t.split("\n"))
    c = Col()
    srd(c, 8, P_AX if q else P_CKV, 2048 * ldx)
    srd(c, 12, {'q': P_WQ, 'k': P_WUK, 'v': P_WUV}[kind_], (1024 if q else 512) * 8192)
    e("s_mul_i32 s%d, s%d, %d" % (sX0, sM0, 256 * ldx))
    e("s_add_u32 s%d, s%d, %d" % (sX1, sX0, ldx if q else 32 * ldx))
    e("s_lshl_b32 s%d, s%d, 9" % (sW0, sN0))
    e("s_add_u32 s%d, s%d, %d" % (sW1, sW0, 32 * 8192))
    e("s_lshl_b32 s%d, s%d, 13" % (RX.sWr, S_WAVE))
    e("s_add_u32 s%d, s%d, %d" % (RW.sWr, RX.sWr, 96 * KB))
    e("s_mov_b32 s%d, %d" % (sNst, 16 if q else 8))
    return L


def lane_offsets(a, q):
    ldx = 2048 if q else 1024
    lane_setup(a, T)
    if q:
        a("s_lshr_b32 s4, s%d, 1" % S_WAVE)
        a("s_lshl_b32 s4, s4, 7")
        a("s_and_b32 s5, s%d, 1" % S_WAVE)
        a("s_lshl_b32 s5, s5, 1")
        a("s_add_u32 s4, s4, s5")
        a("v_lshlrev_b32 v%d, 2, v%d" % (T + 2, T))
        step = 32
    else:
        a("s_lshl_b32 s4, s%d, 6" % S_WAVE)
        a("v_mov_b32 v%d, v%d" % (T + 2, T))
        step = 8
    a("v_add_u32 v%d, s4, v%d" % (T + 2, T + 2))
    a("v_lshl_add_u32 v%d, v%d, %d, v%d" % (T + 2, T + 2, log2(ldx), T + 1))
    for j in range(4):
        a("v_add_u32 v%d, %d, v%d" % (xv + j, step * j * ldx - 1024 * j, T + 2))
    a("v_lshrrev_b32 v%d, 2, v%d" % (T + 2, T))
    a("v_and_b32 v%d, 3, v%d" % (T + 3, T))
    a("v_lshl_add_u32 v%d, v%d, 3, v%d" % (T + 2, T + 2, T + 3))
    a("s_lshl_b32 s4, s%d, 7" % S_WAVE)
    a("v_lshl_add_u32 v%d, v%d, 13, v%d" % (T + 2, T + 2, T + 1))
    a("v_add_u32 v%d, s4, v%d" % (T + 2, T + 2))
    for j in range(4):
        a("v_add_u32 v%d, %d, v%d" % (wv + j, (16 * (j & 1) + 4 * (j >> 1)) * 8192 - 1024 * j, T + 2))


def read_bases(a, g):
    a("s_lshr_b32 s4, s%d, 1" % S_WAVE)
    a("s_lshl_b32 s4, s4, 14")
    xread_base(a, 16, 17, T, "s4")
    a("s_and_b32 s4, s%d, 1" % S_WAVE)
    a("s_lshl_b32 s4, s4, 14")
    a("s_add_u32 s4, s4, %d" % (96 * KB))
    wread_base(a, g.wrd, range(4), T, "s4")


def epilogue(a, kind_, SF=""):
    a("s_and_b32 s4, s%d, 1" % S_WAVE)
    a("s_lshl_b32 s5, s%d, 1" % sN0)
    a("s_add_u32 s4, s4, s5")
    a("s_lshr_b32 s5, s%d, 1" % S_WAVE)
    a("s_lshl_b32 s6, s%d, 1" % sM0)
    a("s_add_u32 s5, s5, s6")
    if kind_ == 'q':
        srd(a, 16, P_WS, 16 * MB, WS_Q) if WS_Q else srd(a, 16, P_WS, 16 * MB)
        a("s_lshl_b32 s4, s4, 15")
        a("s_lshl_b32 s5, s5, 20")
        a("s_mov_b32 s6, 0x%08x" % f32bits(CST))
        a("s_mov_b32 s7, s6")
    else:
        srd(a, 16, P_WS, 32 * MB, WS_KV)
        a("s_lshl_b32 s4, s4, 20")
        a("s_lshl_b32 s5, s5, 16")
    a("s_add_u32 s4, s4, s5")
    if kind_ == 'v':
        a("s_add_u32 s4, s4, 0x4000")
        pairs = [(acc(2 * c, ni), acc(2 * c + 1, ni), (c >> 1) * 32768 + (c & 1) * 8192 + ni * 1024) for c in range(4) for ni in range(8)]
    elif kind_ == 'k':
        pairs = [(acc(mi, 2 * ds), acc(mi, 2 * ds + 1), (mi >> 2) * 32768 + (mi & 3) * 4096 + ds * 1024) for mi in range(8) for ds in range(4)]
    else:
        pairs = [(acc(mi, 2 * ds), acc(mi, 2 * ds + 1), mi * 4096 + ds * 1024) for mi in range(8) for ds in range(4)]
    cur = 0
    k = 0
    for p0, p1, off in pairs:
        if off // 4096 != cur // 4096:
            a("s_add_u32 s4, s4, %d" % ((off // 4096 - cur // 4096) * 4096))
            cur = off
        src = []
        for p in (p0, p1):
            if p[0] == 'a':
                t = T + 8 * (k % 2) + len(src)
                for e in range(4):
                    a("v_accvgpr_read_b32 v%d, a%d" % (t + e, p[1] + e))
                src += [t + e for e in range(4)]
            else:
                src += [p[1] + e for e in range(4)]
        if kind_ == 'q':
            for e in range(0, 8, 2):
                a("v_pk_mul_f32 v[%d:%d], v[%d:%d], s[6:7]" % (src[e], src[e] + 1, src[e], src[e] + 1))
        d = src[0] if p0[0] == 'v' else T + 16 + 4 * (k % 4)
        for e in range(4):
            a("v_cvt_pk_bf16_f32 v%d, v%d, v%d" % (d + e, src[2 * e], src[2 * e + 1]))
        a("buffer_store_dwordx4 %s, v2, s[16:19], s4 offen offset:%d%s" % (v4(d), off % 4096, SF))
        k += 1


def p1(a, st, nxt=None):
    gk, gv = make('wx'), make('xw')
    a("s_and_b32 s6, s2, 127")
    tile_xy(a, "s6")
    a("s_cmp_lt_u32 s2, 128")
    a("s_cbranch_scc1 Lp1_q")
    for x in job_setup(a, gk, 'k'):
        a(x)
    lane_offsets(a, False)
    a("s_branch Lp1_go")
    a.label("Lp1_q")
    for x in job_setup(a, gk, 'q'):
        a(x)
    lane_offsets(a, True)
    a.label("Lp1_go")
    for x in gk.prologue_items():
        a(x)
    read_bases(a, gk)
    pf_setup(a)
    st(a)
    gk.run(a, tail=None)
    a("s_cmp_lt_u32 s2, 128")
    a("s_cbranch_scc1 Lp1_qe")
    for x in job_setup(a, gv, 'v') + gv.prologue_items():
        a(x)
    st(a)
    epilogue(a, 'k')
    read_bases(a, gv)
    st(a)
    gv.run(a, extra0=32)
    if nxt:
        nxt()
    st(a)
    epilogue(a, 'v')
    a("s_branch Lp1_done")
    a.label("Lp1_qe")
    if st.on:
        st.k -= 3
    st(a)
    st(a)
    if nxt:
        nxt()
    st(a)
    epilogue(a, 'q')
    a.label("Lp1_done")


def gen_k1(stamp=False):
    a = Asm()
    st = Stamps(stamp, 0)
    a("s_cmp_ge_u32 s2, 256")
    a("s_cbranch_scc1 Lk1_end")
    a("s_load_dwordx16 s[64:79], s[0:1], 0")
    a("s_load_dwordx8 s[80:87], s[0:1], 64")
    a("v_lshrrev_b32 v2, 6, v0")
    a("v_and_b32 v1, 63, v0")
    a("v_readfirstlane_b32 s%d, v2" % S_WAVE)
    a("v_lshlrev_b32 v2, 4, v1")
    a("s_waitcnt lgkmcnt(0)")
    st(a)
    g2 = bfront.make(0)

    def nxt():
        bfront.setup(a, g2)
        for x in g2.prologue_items():
            a(x)
    p1(a, st, nxt)
    bfront.run(a, st, 32)
    st(a)
    a("s_waitcnt vmcnt(0)")
    st(a)
    st.flush(a)
    a.label("Lk1_end")
    a("s_endpgm")
    return a.finish()
```

```python
import sys, os
sys.path.insert(0, os.path.dirname(os.path.abspath(__file__)))
from lib import *
import attn4 as attn
import proj4, oproj

def main():
    which = os.environ.get("KERNELS", "k2").split(",")
    stamp = bool(os.environ.get("STAMP"))
    ks = []
    if "k1" in which:
        ks.append(("k1_proj_kernel", proj4.gen_k1(stamp)))
    if "k2" in which:
        ks.append(("k2_attn_kernel", attn.gen_k2(stamp)))
    if "k3" in which:
        ks.append(("k3_oproj_kernel", oproj.gen_k3(stamp)))
    out = "; GENERATED by gen2/build.py - do not edit by hand\n"
    for n, _ in ks:
        out += "; @launch kernel=%s grid=(256,1,1) block=(256,1,1) lds=163840\n" % n
    out += '.amdgcn_target "amdgcn-amd-amdhsa--gfx950"\n.text\n'
    for n, t in ks:
        out += kstart(n) + t
    out += '.section .rodata,"a"\n'
    for n, _ in ks:
        out += kdesc(n, 512, 256)
    open(sys.argv[1], "w").write(out)
main()
```

```python
from lib import *
from gemm4 import *

FL = set(os.environ.get("AFLAGS", "").split(","))
THR = float(os.environ.get("LTHR", 2.0 ** 64))
AH = int(os.environ.get("AH", 11))
WG_ = int(os.environ.get("WGRP", 8))

vLane, vL16, vK, vV, vNEG = 1, 2, 3, 4, 5
vT = 6
vNM = 16
vP = 32
vS = 64
vO = 128
aF = 0
aQ = 128
aL = 192
aOne = 208
sHead, sPair = 24, 25
sKV = 20
sCtx = 16
sKm, sVm, sKo, sVo = 26, 27, 28, 29
sMa, sMb, sCnt, sFail = 30, 31, 88, 89
sMask = 32
sT0, sT1 = 4, 5
CST = (128 ** -0.5) * math.log2(math.e)


def Oreg(g, db):
    return ('v', vO + 4 * (8 * g + db))


def Qreg(g, ds):
    return ('a', aQ + 4 * (4 * g + ds))


def ids(a):
    a("s_and_b32 s%d, s2, 7" % sHead)
    a("s_lshr_b32 s4, s2, 6")
    a("s_lshl_b32 s4, s4, 3")
    a("s_add_u32 s%d, s%d, s4" % (sHead, sHead))
    a("s_lshr_b32 s%d, s2, 3" % sPair)
    a("s_and_b32 s%d, s%d, 7" % (sPair, sPair))


def qproj(a):
    g = Gemm()
    g.name, g.nst, g.woff = "q", 16, 32 * KB
    R = Ring(3, 48 * KB, 40)
    R.regs = [16, 17, 18, 19, 20, 21]
    g.rings = [R]
    g.xrd, g.wrd = [(16, 17)], [18, 19, 20, 21]
    g.xfr = [(0, 2048 * i) for i in range(4)]
    g.wfr = [(ni & 3, (ni >> 2) * 8192) for ni in range(8)]
    g.mf = [(Oreg(mi, ni), mi, ni, 'wx') for ni in range(8) for mi in range(4)]
    g.fx, g.fw = 0, 32
    g.sCnt = 45
    sXA, sXB, sW, sWw = 46, 47, 48, 49
    xv, wv = 24, 28
    T = 32
    srd(a, 8, P_AX, 2048 * 1024 * 2)
    srd(a, 12, P_WQ, 1024 * 4096 * 2)
    lane_setup(a, T)
    a("v_lshlrev_b32 v%d, 2, v%d" % (T + 2, T))
    a("v_add_u32 v%d, s%d, v%d" % (T + 2, S_WAVE, T + 2))
    a("v_lshl_add_u32 v%d, v%d, 11, v%d" % (T + 2, T + 2, T + 1))
    for j in range(4):
        a("v_add_u32 v%d, %d, v%d" % (xv + j, (32 * j) * 2048 - 1024 * j, T + 2))
    a("v_lshrrev_b32 v%d, 2, v%d" % (T + 2, T))
    a("v_and_b32 v%d, 3, v%d" % (T + 3, T))
    a("v_lshl_add_u32 v%d, v%d, 3, v%d" % (T + 2, T + 2, T + 3))
    a("s_and_b32 s4, s%d, 1" % S_WAVE)
    a("s_lshl_b32 s4, s4, 18")
    a("s_lshr_b32 s5, s%d, 1" % S_WAVE)
    a("s_lshl_b32 s5, s5, 7")
    a("s_add_u32 s4, s4, s5")
    a("v_lshl_add_u32 v%d, v%d, 13, v%d" % (T + 2, T + 2, T + 1))
    a("v_add_u32 v%d, s4, v%d" % (T + 2, T + 2))
    for j in range(4):
        a("v_add_u32 v%d, %d, v%d" % (wv + j, (16 * (j & 1) + 4 * (j >> 1)) * 8192 - 1024 * j, T + 2))
    a("s_lshl_b32 s%d, s%d, 18" % (sXA, sPair))
    a("s_sub_u32 s%d, %d, s%d" % (sXB, 15 << 18, sXA))
    a("s_lshl_b32 s%d, s%d, 8" % (sW, sHead))
    a("s_lshl_b32 s%d, s%d, 13" % (R.sWr, S_WAVE))
    a("s_lshl_b32 s%d, s%d, 12" % (sWw, S_WAVE))
    a("s_sub_u32 s%d, %d, s%d" % (sWw, g.woff, sWw))
    g.dma = [
        (R, 0, ["buffer_load_dwordx4 v%d, s[8:11], s%d offen offset:%d lds" % (xv + j, sXA, 1024 * j) for j in range(4)],
         ["s_add_u32 s%d, s%d, 128" % (sXA, sXA)]),
        (R, 4096, ["buffer_load_dwordx4 v%d, s[8:11], s%d offen offset:%d lds" % (xv + j, sXB, 1024 * j) for j in range(4)],
         ["s_add_u32 s%d, s%d, 128" % (sXB, sXB)]),
        (R, ('s', sWw), ["buffer_load_dwordx4 v%d, s[12:15], s%d offen offset:%d lds" % (wv + j, sW, 1024 * j) for j in range(4)],
         ["s_add_u32 s%d, s%d, %d" % (sW, sW, 64 * 8192)]),
    ]
    g.dma = [g.dma[2], g.dma[0], g.dma[1]]
    return g, T


def qproj_rd(a, g, T):
    a("s_lshl_b32 s4, s%d, 13" % S_WAVE)
    xread_base(a, 16, 17, T, "s4")
    wread_base(a, g.wrd, range(4), T, "0")


def kv_dma(which):
    m, o = (sKm, sKo) if which == 'K' else (sVm, sVo)
    return ["s_mov_b32 m0, s%d" % m] + \
           ["buffer_load_dwordx4 v%d, s[%d:%d], s%d offen offset:%d lds" % (vL16, sKV, sKV + 3, o, 1024 * j) for j in range(4)]


def gray_mask(t):
    return 0x4000 if t % 2 == 0 else 0x8000


def kv_setup(a):
    a("s_lshl_b32 s4, s%d, 20" % sHead)
    a("s_lshl_b32 s5, s%d, 16" % sPair)
    a("s_sub_u32 s5, %d, s5" % (32 * 32768))
    srd(a, sKV, P_WS, "s5", WS_KV, 4)
    a("s_lshl_b32 s%d, s%d, 12" % (sKm, S_WAVE))
    a("s_add_u32 s%d, s%d, 0x10000" % (sVm, sKm))
    a("s_mov_b32 s%d, s%d" % (sKo, sKm))
    a("s_add_u32 s%d, s%d, 0x4000" % (sVo, sKm))


NPF = 0 if 'nopf' in FL else 10


def q_loads():
    L = []
    for blk in range(2):
        for i in range(8):
            if i % 4 == 0:
                L.append("s_add_u32 s5, s%d, %d" % (6 + blk, (i // 4) * 4096))
            L.append("buffer_load_dwordx4 %s, v%d, s[8:11], s5 offen offset:%d" % (a4(aQ + 32 * blk + 4 * i), vL16, (i % 4) * 1024))
    return L


def q_setup(a):
    srd(a, 8, P_WS, 16 * MB)
    a("s_lshl_b32 s4, s%d, 15" % sHead)
    a("s_lshl_b32 s5, s%d, 13" % S_WAVE)
    a("s_add_u32 s4, s4, s5")
    a("s_lshl_b32 s5, s%d, 20" % sPair)
    a("s_add_u32 s6, s4, s5")
    a("s_sub_u32 s7, s4, s5")
    a("s_add_u32 s7, s7, %d" % (15 * MB))


def pf_setup(a):
    a("s_lshl_b32 s4, s2, 2")
    a("s_add_u32 s4, s4, s%d" % S_WAVE)
    a("s_lshl_b32 s6, s4, 13")
    a("s_lshl_b32 s7, s4, 11")
    srd(a, 8, P_WO, 8 * MB)
    srd(a, 12, P_BWO, 2 * MB)


def pf_items():
    L = []
    for i in range(8):
        if i == 4:
            L.append("s_add_u32 s6, s6, 4096")
        L.append("buffer_load_dwordx4 a[64:67], v%d, s[8:11], s6 offen offset:%d" % (vL16, (i % 4) * 1024))
    for i in range(2):
        L.append("buffer_load_dwordx4 a[64:67], v%d, s[12:15], s7 offen offset:%d" % (vL16, i * 1024))
    return L if NPF else []


def kv_prologue_items(withq=False, part=None):
    L = []
    tk = tv = 0
    for i, w in enumerate("KKVKVKV"):
        if i == 3 and part is not None:
            if part == 0:
                return L
            L = []
        if withq and i == 1:
            L += q_loads()
        L += kv_dma(w)
        if w == 'K':
            L += ["s_xor_b32 s%d, s%d, 0x%x" % (sKm, sKm, gray_mask(tk)), "s_add_u32 s%d, s%d, 0x8000" % (sKo, sKo)]
            tk += 1
        else:
            L += ["s_xor_b32 s%d, s%d, 0x%x" % (sVm, sVm, gray_mask(tv)), "s_add_u32 s%d, s%d, 0x8000" % (sVo, sVo)]
            tv += 1
    return L


def qk_frags(kindq, half, sb):
    F = []
    if kindq is None:
        return F
    dbl = kindq[0] == 'D'
    gs = [0, 1, 2, 3] if dbl else [2, 3]
    if kindq.endswith("'"):
        gs = gs[1:]
    c0 = kindq.endswith("0")
    for jb in range(2 if dbl else 4):
        for ds in range(4):
            ms = []
            for g in gs:
                blk = (2 * g + jb) if dbl else (2 * (2 * (jb >> 1) + g - 2) + (jb & 1))
                ms.append((('v', sb + 4 * blk), Qreg(g, ds), ("0" if c0 else ('v', vNM + 4 * g)) if ds == 0 else None))
            F.append(('K', ((2 * half + jb) if dbl else jb) * 4096 + ds * 1024, ms))
    return F


def pv_frags(kindp, half, pb):
    F = []
    if kindp is None:
        return F, []
    dbl = kindp[0] == 'D'
    gs = [0, 1, 2, 3] if dbl else [2, 3]
    if kindp.endswith("'"):
        gs = gs[1:]
    sums = []
    for kc in range(1 if dbl else 2):
        for g in gs:
            pi = g if dbl else 2 * kc + g - 2
            sums.append(mfma(('a', aL + 4 * g), ('a', aOne), ('v', pb + 4 * pi)))
        for db in range(8):
            ms = [(Oreg(g, db), ('v', pb + 4 * (g if dbl else 2 * kc + g - 2)), None) for g in gs]
            F.append(('V', (half if dbl else kc) * 8192 + db * 1024, ms))
    return F, sums


def sm_items(sm, sb, pb):
    out = []
    if sm is None:
        return out
    for i in range(4):
        masks = []
        if sm != 'p':
            if sm[0] == 'D':
                gq, jbs = i, [2 * sm[1], 2 * sm[1] + 1]
                lvl = sm[1] >> 1
                if i >= 2:
                    gq = 99
            else:
                gq, jbs = i & 1, [4 * sm[1] + 2 * (i >> 1), 4 * sm[1] + 2 * (i >> 1) + 1]
                lvl = sm[1]
            if lvl > gq:
                continue
            if lvl == gq:
                for e, j16 in enumerate(jbs):
                    for r in range(4):
                        x = sb + 8 * i + 4 * e + r
                        m = sMask + 2 * (4 * (j16 & 3) + r)
                        masks.append((x, "v_cndmask_b32 v%d, v%d, v%d, s[%d:%d]" % (x, x, vNEG, m, m + 1)))
        exps = ["v_exp_f32 v%d, v%d" % (sb + 8 * i + e, sb + 8 * i + e) for e in range(8)]
        cvts = ["v_cvt_pk_bf16_f32 v%d, v%d, v%d" % (pb + 4 * i + e, sb + 8 * i + 2 * e, sb + 8 * i + 2 * e + 1) for e in range(4)]
        out.append((dict(masks), exps, cvts))
    return out


class Rnd:
    def __init__(self, par, qk, sm, pv, bar=False, issK=None, issV=None, togK=None, togV=None, togVpre=None):
        self.par, self.qk, self.sm, self.pv, self.bar = par, qk, sm, pv, bar
        self.issK, self.issV, self.togK, self.togV, self.togVpre = issK, issV, togK, togV, togVpre
        self.vm = None
        self.xdma = []
        self.xq = []

    def frags(self):
        par = self.par
        Fq = qk_frags(self.qk, par ^ 1, vS + 32 * (par ^ 1))
        Fp, sums = pv_frags(self.pv, par ^ 1, vP + 16 * (par ^ 1))
        return Fq, Fp, sums


def fread(ring, off, slot, tag):
    return "ds_read_b128 %s, v%d offset:%d ; @%s" % (a4(aF + 4 * (slot % 16)), vK if ring == 'K' else vV, off, tag)


def tog(reg, m):
    return "v_xor_b32 v%d, %s, v%d" % (reg, m, reg)


def emit_round(a, R, nxt, ph, pend, extra_scal=None):
    Fq, Fp, sums = R.frags()
    F = Fq + Fp
    nF = len(F)
    Fn = []
    if nxt is not None:
        q, p, _ = nxt.frags()
        Fn = (q + p)[:AH]
    mf = []
    first = []
    si = 0
    for i, (ring, off, ms) in enumerate(F):
        first.append(len(mf))
        for d, b, c in ms:
            mf.append(mfma(d, ('a', aF + 4 * ((ph + i) % 16)), b, c))
        if ring == 'V' and si < len(sums):
            per = len(sums) * 8 // len(Fp)
            k = i - len(Fq)
            if (k % 8) < per:
                mf.append(sums[si])
                si += 1
    assert si == len(sums)
    sg = Seg(mf)
    n = sg.n
    if R.bar:
        sg.pre.append("s_waitcnt vmcnt(%d)" % R.vm)
        sg.pre.append("s_barrier")
    grp = 4 if len(F[0][2]) >= 3 else WG_
    i = 0
    dead = {}
    while i < nF:
        gsz = 4 if len(F[i][2]) != 2 else WG_
        j = min(nF - 1, i + gsz - 1, i + AH - 3)
        for x in range(i, j + 1):
            dead[x] = first[i] - 2
        w = "WAIT f%d" % (ph + j)
        if first[i] == 0:
            sg.pre.append(w)
        else:
            sg.put(first[i] - 1, w)
        i = j + 1
    SM = sm_items(R.sm, vS + 32 * R.par, vP + 16 * R.par)
    nexp = 8 * len(SM)
    eg = []
    if nexp:
        last = 0
        k = 0
        for masks, exps, cvts in SM:
            for e, x in enumerate(exps):
                want = (k * (n - 2)) // nexp
                reg = int(x.split()[1][1:-1])
                want = max(want, last)
                if reg in masks:
                    want = max(want, 1)
                g = sg.place(x, want, lo=last)
                eg.append(g)
                last = g
                k += 1
    items = list(R.xdma)
    if R.issK is not None:
        items += kv_dma('K') + ["s_xor_b32 s%d, s%d, %s" % (sKm, sKm, R.issK), "s_add_u32 s%d, s%d, 0x8000" % (sKo, sKo)]
    if R.issV is not None:
        items += kv_dma('V') + ["s_xor_b32 s%d, s%d, %s" % (sVm, sVm, R.issV), "s_add_u32 s%d, s%d, 0x8000" % (sVo, sVo)]
    if 'nodma' in FL:
        items = [x for x in items if kind(x) != 'd']
    if items:
        place_dma(sg, items, 0, n - 3) if any(kind(x) == 'd' for x in items) else [sg.place(x, 0) for x in items]
    last = 0
    seq = [(j, F[j], False) for j in range(min(AH, nF), nF)] + [(nF + j, f, True) for j, f in enumerate(Fn)]
    prevK = prevV = False
    doneTK = doneTV = doneTVp = False
    lastV = max([j for j, f, nx in seq if f[0] == 'V' and not nx], default=-1)
    for j, f, nx in seq:
        src = j - AH
        want = first[src] if src < nF else n - 1
        lo = last
        if j - 16 >= 0:
            lo = max(lo, (first[j - 15] - 1) if j - 15 < nF else n - 1)
        tg = None
        if f[0] == 'K' and nx and R.togK and not doneTK:
            tg, doneTK = tog(vK, R.togK), True
        if f[0] == 'V' and nx and R.togV and not doneTV:
            tg, doneTV = tog(vV, R.togV), True
        if tg:
            g = sg.place(tg, max(lo, want - 1), lo=lo)
            lo = min(n - 1, g + 1)
            if g == n - 1:
                sg.end[g].append(fread(f[0], f[1], ph + j, "f%d" % (ph + j)))
                last = g
                continue
        if sg.end[last] and any(x.startswith("ds_") for x in sg.end[last]):
            sg.end[last].append(fread(f[0], f[1], ph + j, "f%d" % (ph + j)))
            continue
        hi = dead.get(j)
        assert hi is None or hi >= lo, (j, lo, hi)
        g = sg.place(fread(f[0], f[1], ph + j, "f%d" % (ph + j)), max(want, lo), lo=lo, hi=hi)
        last = g
        if j == lastV and R.togV and not doneTV and not any(x[1][0] == 'V' and x[2] for x in seq):
            doneTV = True
            sg.place(tog(vV, R.togV), g, lo=g)
    if R.togV and not doneTV:
        sg.place(tog(vV, R.togV), 0)
    assert not (R.togK and not doneTK and nxt is not None and nxt.qk), "togK unused"
    k = 0
    for masks, exps, cvts in SM:
        for e, x in enumerate(exps):
            reg = int(x.split()[1][1:-1])
            if reg in masks:
                g = eg[k + e]
                q = g - 1
                while q >= 0 and not sg.room(q, 'c'):
                    q -= 1
                if q < 0:
                    sg.c[g].insert(0, masks[reg])
                    sg.used[g] += 4
                else:
                    sg.put(q, masks[reg])
        for e, x in enumerate(cvts):
            g = eg[k + 2 * e + 1]
            if g + 1 <= n - 1:
                sg.place(x, g + 1, lo=g + 1)
            else:
                sg.end[n - 1].append(x)
        k += 8
    for x in (extra_scal or []):
        if x.startswith("s_cmp"):
            sg.end[n - 1].append(x)
        else:
            sg.place(x, n // 2)
    L, pend = resolve_waits(sg.lines(), pend)
    for x in L:
        a(x)
    nph = (ph + nF) % 16
    pend = ["f%d" % (int(t[1:]) - (ph + nF) + nph) for t in pend]
    R.cost = sg.cost()
    return nph, pend


def ctx_base(a, srow):
    a("s_lshl_b32 s4, s%d, 20" % srow)
    a("s_lshl_b32 s5, s%d, 15" % sHead)
    a("s_add_u32 s4, s4, s5")
    a("s_lshl_b32 s5, s%d, 11" % S_WAVE)
    a("s_add_u32 s4, s4, s5")


def epilogue(a, gs, srow):
    ctx_base(a, srow)
    for k, g in enumerate(gs):
        a("v_accvgpr_read_b32 v%d, a%d" % (vT + 2 * k, aL + 4 * g))
    a("s_mov_b32 s5, 0x%08x" % f32bits(THR))
    for k, g in enumerate(gs):
        a("v_cmp_ngt_f32 vcc, s5, v%d" % (vT + 2 * k))
        a("v_rcp_f32 v%d, v%d" % (vT + 2 * k, vT + 2 * k))
        a("s_or_b32 s%d, s%d, vcc_lo" % (sFail, sFail))
        a("s_or_b32 s%d, s%d, vcc_hi" % (sFail, sFail))
        a("v_mov_b32 v%d, v%d" % (vT + 2 * k + 1, vT + 2 * k))
    store_O(a, gs)


def store_O(a, gs):
    for ds in range(4):
        for k, g in enumerate(gs):
            b = vO + 4 * (8 * g + 2 * ds)
            for e in range(0, 8, 2):
                a("v_pk_mul_f32 v[%d:%d], v[%d:%d], v[%d:%d]" % (b + e, b + e + 1, b + e, b + e + 1, vT + 2 * k, vT + 2 * k + 1))
            for e in range(4):
                a("v_cvt_pk_bf16_f32 v%d, v%d, v%d" % (b + e, b + 2 * e, b + 2 * e + 1))
            a("buffer_store_dwordx4 %s, v%d, s[%d:%d], s4 offen offset:%d" % (v4(b), vL16, sCtx, sCtx + 3, (g & 1) * 1024))
        if ds < 3:
            a("s_add_u32 s4, s4, 8192")


def rowmax(a, src, t0, t1):
    a("v_max3_f32 v%d, v%d, v%d, v%d" % (t0, src, src + 1, src + 2))
    a("v_max3_f32 v%d, v%d, v%d, v%d" % (t1, src + 3, src + 4, src + 5))
    a("v_max3_f32 v%d, v%d, v%d, v%d" % (t0, t0, src + 6, src + 7))
    a("v_max_f32 v%d, v%d, v%d" % (t0, t0, t1))


def xmax(a, pairs):
    for op in ("v_permlane32_swap_b32", "v_permlane16_swap_b32"):
        for t0, t1 in pairs:
            a("v_mov_b32 v%d, v%d" % (t1, t0))
        for t0, t1 in pairs:
            a("%s v%d, v%d" % (op, t0, t1))
        for t0, t1 in pairs:
            a("v_max_f32 v%d, v%d, v%d" % (t0, t0, t1))


def plan(p):
    pass


def build_rounds():
    g0, g1 = "0x4000", "0x8000"
    R = {}
    R['c0'] = Rnd(0, 'D', 'p', None, bar=True, togK=g0)
    R['lo'] = Rnd(1, 'D', 'p', 'D')
    R['le'] = Rnd(0, 'D', 'p', 'D', bar=True, issK="s%d" % sMb, issV="s%d" % sMa, togK="s%d" % sMa, togV="s%d" % sMb)
    R['d0'] = Rnd(0, 'D', ('D', 0), 'D', bar=True, issK=g1, issV=g0, togK=g0, togV=g1)
    R['d1'] = Rnd(1, "D'", ('D', 1), 'D')
    R['d2'] = Rnd(0, "D'", ('D', 2), 'D', bar=True, issK=g0, issV=g1, togK=g1, togV=g0)
    R['d3'] = Rnd(1, 'S', ('D', 3), "D'", bar=True, issK=g1, issV=g0, togK=g0)
    R['t0'] = Rnd(0, 'S', 'p', "D'", bar=True, issK=g0, togK=g1, togV=g1)
    R['t7'] = Rnd(0, "S'", ('S', 0), "D'", bar=True, togV=g1)
    R['so'] = Rnd(1, 'S', 'p', 'S', bar=True, issK=g1, issV=g1, togK=g0, togV=g0)
    R['se'] = Rnd(0, 'S', 'p', 'S', bar=True, issK=g0, issV=g0, togK=g1, togV=g1)
    R['e0'] = Rnd(0, "S'", ('S', 0), 'S', bar=True, togV=g1)
    R['e1'] = Rnd(1, None, ('S', 1), 'S', bar=True, togV=g0)
    R['e2'] = Rnd(0, None, None, "S'")
    R['c0'].xdma = kv_prologue_items(part=1)
    R['c0'].xq = [x for x in [('K', 2), ('V', 1), ('K', 3), ('V', 2)] for _ in range(4)]
    R['d1'].xdma = pf_items()
    R['d1'].xq = [('pf', 0)] * NPF
    return R


def path(p):
    seq = ['c0']
    if p:
        seq += ['lo', 'le'] * (2 * p - 1) + ['lo', 'd0']
    seq += ['d1', 'd2', 'd3']
    if p == 7:
        seq += ['t7', 'EPI']
    else:
        ns = 2 * (15 - 2 * p)
        seq += ['t0', 'EPI'] + ['so', 'se'] * ((ns - 4) // 2) + ['so', 'e0']
    seq += ['e1', 'e2']
    return seq


def simulate(R):
    need = {}
    for p in range(8):
        seq = path(p)
        nd = 4 * p + 4
        ktile = lambda c: c // 2 if c < nd else nd // 2 + (c - nd)
        q = [('K', 0), ('K', 1), ('V', 0)]
        q = [x for x in q for _ in range(4)]
        nk, nv = 4, 3
        rounds = [k for k in seq if k != 'EPI']
        reads = []
        for c, k in enumerate(rounds):
            r = set()
            if R[k].qk:
                r.add(('K', ktile(c + 1)))
            if R[k].pv:
                r.add(('V', ktile(c - 1)))
            reads.append(r)
        full = []
        for c, k in enumerate(rounds):
            r = set(reads[c])
            if c + 1 < len(rounds):
                nx = R[rounds[c + 1]]
                fq, fp, _ = nx.frags()
                for f in (fq + fp)[:AH]:
                    r.add(('K', ktile(c + 2)) if f[0] == 'K' else ('V', ktile(c)))
            full.append(r)
        c = 0
        slotK = {}
        kaddr, vaddr = 0, 0
        for k in seq:
            if k == 'EPI':
                q += [('st', 0)] * 8
                continue
            r = R[k]
            if r.bar:
                e = c + 1
                while e < len(rounds) and not R[rounds[e]].bar:
                    e += 1
                req = set().union(*full[c:e])
                idx = max(i for i, x in enumerate(q) if x in req)
                assert all(x in q for x in req), (p, k, req)
                need[k] = min(need.get(k, 63), len(q) - 1 - idx)
                lastbar = c
            q += r.xq
            for w, iss in (('K', r.issK), ('V', r.issV)):
                if iss is not None:
                    t = nk if w == 'K' else nv
                    for cc in range(lastbar, len(rounds)):
                        assert (w, t - 4) not in full[cc], (p, k, w, t)
                    if iss.startswith("0x"):
                        assert int(iss, 16) == gray_mask(t), (p, k, w, t)
                    q += [(w, t)] * 4
                    if w == 'K':
                        nk += 1
                    else:
                        nv += 1
            if r.qk:
                assert kaddr == ktile(c + 1), (p, k, kaddr)
            if r.pv:
                assert vaddr == ktile(c - 1), (p, k, vaddr, ktile(c - 1))
            if r.togK:
                if r.togK.startswith("0x"):
                    assert int(r.togK, 16) == gray_mask(kaddr), (p, k)
                kaddr += 1
            if r.togV:
                if r.togV.startswith("0x"):
                    assert int(r.togV, 16) == gray_mask(vaddr), (p, k)
                vaddr += 1
            c += 1
    for k, v in need.items():
        R[k].vm = v
    return need


def attention(a, st):
    R = build_rounds()
    simulate(R)
    srd(a, sCtx, P_WS, 16 * MB, WS_CTX)
    a("v_mov_b32 v%d, v%d" % (vK, vL16))
    a("v_add_u32 v%d, 0x10000, v%d" % (vV, vL16))
    a("v_mov_b32 v%d, 0xf149f2ca" % vNEG)
    a("s_mov_b32 s%d, 0" % sFail)
    a("v_mov_b32 v%d, 0x3f803f80" % vT)
    for i in range(4):
        a("v_accvgpr_write_b32 a%d, v%d" % (aOne + i, vT))
    for i in range(16):
        a("v_accvgpr_write_b32 a%d, 0" % (aL + i))
    for i in range(128):
        a("v_mov_b32 v%d, 0" % (vO + i))
    a("v_and_b32 v%d, 15, v1" % vT)
    a("v_lshrrev_b32 v%d, 4, v1" % (vT + 1))
    a("v_sub_u32 v%d, v%d, v%d" % (vT, vT, vT + 1))
    a("v_lshlrev_b32 v%d, 2, v%d" % (vT, vT))
    a("v_add_u32 v%d, s%d, v%d" % (vT, S_WAVE, vT))
    for j in range(4):
        for r in range(4):
            m = sMask + 2 * (4 * j + r)
            a("v_cmp_gt_i32 s[%d:%d], %d, v%d" % (m, m + 1, 16 * j + r, vT))
    a("s_mov_b32 s%d, 0x8000" % sMa)
    a("s_mov_b32 s%d, 0x4000" % sMb)
    a("s_waitcnt vmcnt(8)")
    a("s_barrier")
    st(a)
    P0 = Rnd(1, 'D0', None, None)
    fq = qk_frags('D0', 0, vS)
    L = [fread('K', fq[j][1], 8 + j, "f%d" % (8 + j)) for j in range(8)]
    c0q, c0p, _ = R['c0'].frags()
    nx = (c0q + c0p)[:AH]
    assert len(nx) == 8
    for j, (ring, off, ms) in enumerate(fq):
        if j % 2 == 0:
            L.append("WAIT f%d" % (9 + j))
        for d, b, c in ms:
            L.append(mfma(d, ('a', aF + 4 * (8 + j)), b, c))
        L.append(fread('K', nx[j][1], 16 + j, "f%d" % (16 + j)))
    L, pend = resolve_waits(L, [])
    for x in L:
        a(x)
    pend = ["f%d" % (int(t[1:]) - 16) for t in pend]
    a("s_cmp_lg_u32 s%d, 0" % sPair)
    a("s_cbranch_scc1 La_nomask0")
    for reg, x in sm_items(('D', 0), vS, vP)[0][0].items():
        a(x)
    a.label("La_nomask0")
    for g in range(4):
        rowmax(a, vS + 8 * g, vT + 2 * g, vT + 2 * g + 1)
    xmax(a, [(vT + 2 * g, vT + 2 * g + 1) for g in range(4)])
    for g in range(4):
        for r in range(4):
            a("v_sub_f32 v%d, 0, v%d" % (vNM + 4 * g + r, vT + 2 * g))
    for g in range(4):
        for e in range(0, 8, 2):
            b = vS + 8 * g + e
            a("v_pk_add_f32 v[%d:%d], v[%d:%d], v[%d:%d]" % (b, b + 1, b, b + 1, vNM + 4 * g, vNM + 4 * g + 1))
    state = {}

    def rnd(k, nk, ph, pend, extra=None):
        assert len(pend) <= 15
        return emit_round(a, R[k], R[nk] if nk else None, ph, pend, extra)

    def join(k, ph, pend):
        if k in state:
            assert state[k] == (ph, pend), (k, state[k], ph, pend)
        state[k] = (ph, list(pend))
    a("s_lshl_b32 s%d, s%d, 1" % (sCnt, sPair))
    ph, pend = rnd('c0', 'lo', 0, pend, ["s_cmp_eq_u32 s%d, 0" % sPair])
    join('lo', ph, pend)
    join('d1', ph, pend)
    a("s_cbranch_scc1 La_d1")
    a(".p2align 6")
    a.label("La_lo")
    ph, pend = rnd('lo', 'le', ph, pend, ["s_sub_u32 s%d, s%d, 1" % (sCnt, sCnt), "s_cmp_eq_u32 s%d, 0" % sCnt])
    join('d0', ph, pend)
    a("s_cbranch_scc1 La_d0")
    ph, pend = rnd('le', 'lo', ph, pend)
    a("s_xor_b32 s%d, s%d, 0xc000" % (sMa, sMa))
    a("s_xor_b32 s%d, s%d, 0xc000" % (sMb, sMb))
    join('lo', ph, pend)
    a("s_branch La_lo")
    a.label("La_d0")
    ph, pend = state['d0']
    ph, pend = rnd('d0', 'd1', ph, pend)
    join('d1', ph, pend)
    a.label("La_d1")
    ph, pend = rnd('d1', 'd2', ph, pend)
    ph, pend = rnd('d2', 'd3', ph, pend)
    ph, pend = rnd('d3', 't0', ph, pend, ["s_cmp_eq_u32 s%d, 7" % sPair])
    join('t7', ph, pend)
    a("s_cbranch_scc1 La_t7")
    ph, pend = rnd('t0', 'so', ph, pend)
    st(a)
    epilogue(a, [0, 1], sPair)
    st(a)
    a("s_lshl_b32 s%d, s%d, 1" % (sCnt, sPair))
    a("s_sub_u32 s%d, 14, s%d" % (sCnt, sCnt))
    join('so', ph, pend)
    a(".p2align 6")
    a.label("La_so")
    ph, pend = rnd('so', 'se', ph, pend, ["s_sub_u32 s%d, s%d, 1" % (sCnt, sCnt), "s_cmp_eq_u32 s%d, 0" % sCnt])
    join('e0', ph, pend)
    a("s_cbranch_scc1 La_e0")
    ph, pend = rnd('se', 'so', ph, pend)
    join('so', ph, pend)
    a("s_branch La_so")
    a.label("La_t7")
    ph, pend = state['t7']
    ph, pend = rnd('t7', 'e1', ph, pend)
    if st.on:
        st.k -= 2
    st(a)
    epilogue(a, [0, 1], sPair)
    st(a)
    join('e1', ph, pend)
    a("s_branch La_e1")
    a.label("La_e0")
    ph, pend = state['e0']
    ph, pend = rnd('e0', 'e1', ph, pend)
    join('e1', ph, pend)
    a.label("La_e1")
    ph, pend = rnd('e1', 'e2', ph, pend)
    ph, pend = rnd('e2', None, ph, pend)
    st(a)
    a("s_sub_u32 s%d, 15, s%d" % (sCnt, sPair))
    epilogue(a, [2, 3], sCnt)
    slow_path(a)
    if 'v' in FL:
        for k, r in R.items():
            print(k, "vm", r.vm, "cost", r.cost, file=sys.stderr)


def slow_path(a):
    vM, vLs, vD = vNM, vNM + 8, vNM + 4
    sRbk, sCh, sOff = 6, 7, 90
    a("s_cmp_eq_u32 s%d, 0" % sFail)
    a("s_cbranch_scc1 La_done")
    a("s_waitcnt vmcnt(0)")
    a("s_sub_u32 s%d, 15, s%d" % (sRbk, sPair))
    a.label("La_sl_blk")
    for i in range(64):
        a("v_mov_b32 v%d, 0" % (vO + 64 + i))
    for i in range(8):
        a("v_mov_b32 v%d, 0" % (vLs + i))
    a("v_mov_b32 v%d, v%d" % (vM, vNEG))
    a("v_mov_b32 v%d, v%d" % (vM + 1, vNEG))
    a("v_and_b32 v%d, 15, v1" % vD)
    a("v_lshrrev_b32 v%d, 4, v1" % (vD + 1))
    a("v_sub_u32 v%d, v%d, v%d" % (vD, vD, vD + 1))
    a("v_lshlrev_b32 v%d, 2, v%d" % (vD, vD))
    a("s_lshl_b32 s4, s%d, 7" % sRbk)
    a("s_add_u32 s4, s4, s%d" % S_WAVE)
    a("v_add_u32 v%d, s4, v%d" % (vD, vD))
    a("v_add_u32 v%d, 64, v%d" % (vD + 1, vD))
    a("s_add_u32 s%d, s%d, 1" % (sCh, sRbk))
    a("s_lshl_b32 s%d, s%d, 2" % (sCh, sCh))
    a("s_mov_b32 s%d, 0" % sOff)
    a.label("La_sl_loop")
    for i in range(16):
        if i % 4 == 0:
            a("s_add_u32 s4, s%d, %d" % (sOff, (i // 8) * 16384 + ((i // 4) & 1) * 4096))
        a("buffer_load_dwordx4 %s, v%d, s[%d:%d], s4 offen offset:%d" % (a4(4 * i), vL16, sKV, sKV + 3, (i % 4) * 1024))
    a("s_waitcnt vmcnt(0)")
    for jb in range(2):
        for ds in range(4):
            for k in range(2):
                a(mfma(('v', vS + 8 * k + 4 * jb), ('a', 4 * (4 * jb + ds)), Qreg(2 + k, ds), "0" if ds == 0 else None))
    for k in range(2):
        for jb in range(2):
            for r in range(4):
                x = vS + 8 * k + 4 * jb + r
                a("v_cmp_gt_i32 vcc, %d, v%d" % (16 * jb + r, vD + k))
                a("v_cndmask_b32 v%d, v%d, v%d, vcc" % (x, x, vNEG))
        a("v_subrev_u32 v%d, 32, v%d" % (vD + k, vD + k))
        rowmax(a, vS + 8 * k, vT + 2 * k, vT + 2 * k + 1)
    xmax(a, [(vT + 2 * k, vT + 2 * k + 1) for k in range(2)])
    for k in range(2):
        a("v_max_f32 v%d, v%d, v%d" % (vT + 2 * k, vT + 2 * k, vM + k))
        a("v_sub_f32 v%d, v%d, v%d" % (vT + 2 * k + 1, vM + k, vT + 2 * k))
        a("v_exp_f32 v%d, v%d" % (vT + 2 * k + 1, vT + 2 * k + 1))
        a("v_mov_b32 v%d, v%d" % (vM + k, vT + 2 * k))
        for e in range(8):
            a("v_sub_f32 v%d, v%d, v%d" % (vS + 8 * k + e, vS + 8 * k + e, vM + k))
        for e in range(8):
            a("v_exp_f32 v%d, v%d" % (vS + 8 * k + e, vS + 8 * k + e))
        for e in range(4):
            a("v_mul_f32 v%d, v%d, v%d" % (vLs + 4 * k + e, vLs + 4 * k + e, vT + 2 * k + 1))
        for e in range(32):
            x = vO + 64 + 32 * k + e
            a("v_mul_f32 v%d, v%d, v%d" % (x, x, vT + 2 * k + 1))
        for e in range(4):
            a("v_cvt_pk_bf16_f32 v%d, v%d, v%d" % (vP + 4 * k + e, vS + 8 * k + 2 * e, vS + 8 * k + 2 * e + 1))
    for k in range(2):
        a(mfma(('v', vLs + 4 * k), ('a', aOne), ('v', vP + 4 * k)))
        for db in range(8):
            a(mfma(Oreg(2 + k, db), ('a', 32 + 4 * db), ('v', vP + 4 * k)))
    a("s_add_u32 s%d, s%d, 8192" % (sOff, sOff))
    a("s_and_b32 s4, s%d, 0x4000" % sOff)
    a("s_add_u32 s%d, s%d, s4" % (sOff, sOff))
    a("s_sub_u32 s%d, s%d, 1" % (sCh, sCh))
    a("s_cmp_lg_u32 s%d, 0" % sCh)
    a("s_cbranch_scc1 La_sl_loop")
    ctx_base(a, sRbk)
    for k in range(2):
        a("v_rcp_f32 v%d, v%d" % (vT + 2 * k, vLs + 4 * k))
        a("v_mov_b32 v%d, v%d" % (vT + 2 * k + 1, vT + 2 * k))
    store_O(a, [2, 3])
    a("s_cmp_eq_u32 s%d, s%d" % (sRbk, sPair))
    a("s_cbranch_scc1 La_done")
    for i in range(32):
        a("v_accvgpr_read_b32 v%d, a%d" % (vS + i, aQ + i))
    for i in range(32):
        a("v_accvgpr_write_b32 a%d, v%d" % (aQ + 32 + i, vS + i))
    a("s_mov_b32 s%d, s%d" % (sRbk, sPair))
    a("s_branch La_sl_blk")
    a.label("La_done")


def q_epilogue(a):
    a("s_mov_b32 s4, 0x%08x" % f32bits(CST))
    a("s_mov_b32 s5, s4")
    for g in range(4):
        for ds in range(4):
            b = vO + 4 * (8 * g + 2 * ds)
            for e in range(0, 8, 2):
                a("v_pk_mul_f32 v[%d:%d], v[%d:%d], s[4:5]" % (b + e, b + e + 1, b + e, b + e + 1))
            for e in range(4):
                a("v_cvt_pk_bf16_f32 v%d, v%d, v%d" % (b + e, b + 2 * e, b + 2 * e + 1))
            for e in range(4):
                a("v_accvgpr_write_b32 a%d, v%d" % (aQ + 4 * (4 * g + ds) + e, b + e))


def gen_k2(stamp=False):
    a = Asm()
    st = Stamps(stamp, 1)
    a("s_cmp_ge_u32 s2, 256")
    a("s_cbranch_scc1 Lk2_end")
    a("s_load_dwordx16 s[64:79], s[0:1], 0")
    a("s_load_dwordx8 s[80:87], s[0:1], 64")
    a("v_lshrrev_b32 v2, 6, v0")
    a("v_and_b32 v1, 63, v0")
    a("v_readfirstlane_b32 s%d, v2" % S_WAVE)
    a("v_lshlrev_b32 v%d, 4, v1" % vL16)
    ids(a)
    a("s_waitcnt lgkmcnt(0)")
    st(a)
    if 'fuseq' in FL:
        g, T = qproj(a)
        for x in g.prologue_items():
            a(x)
        qproj_rd(a, g, T)
        kv_setup(a)
        st(a)
        g.run(a, tail=lambda sg: place_dma(sg, kv_prologue_items(part=0), 0, sg.n - 1))
        st(a)
        q_epilogue(a)
    else:
        kv_setup(a)
        q_setup(a)
        for x in kv_prologue_items(True, 0):
            a(x)
    pf_setup(a)
    attention(a, st)
    st(a)
    a("s_waitcnt vmcnt(0)")
    st(a)
    st.flush(a)
    a.label("Lk2_end")
    a("s_endpgm")
    return a.finish()
```

```python
import sys, os
sys.path.insert(0, os.path.dirname(os.path.abspath(__file__)))
from lib import *
import attn4 as attn
import proj4, oproj

HEADER = """; Kernarg layout for this problem (96 bytes, ptrs only, base s[0:1]):
"""


def main():
    which = os.environ.get("KERNELS", "k1,k2,k3").split(",")
    stamp = bool(os.environ.get("STAMP"))
    ks = []
    if "k1" in which:
        ks.append(("k1_proj_kernel", proj4.gen_k1(stamp)))
    if "k2" in which:
        ks.append(("k2_attn_kernel", attn.gen_k2(stamp)))
    if "k3" in which:
        ks.append(("k3_oproj_kernel", oproj.gen_k3(stamp)))
    out = HEADER
    for n, _ in ks:
        out += "; @launch kernel=%s grid=(256,1,1) block=(256,1,1) lds=163840\n" % n
    out += '.amdgcn_target "amdgcn-amd-amdhsa--gfx950"\n.text\n'
    for n, t in ks:
        out += kstart(n) + t
    out += '.section .rodata,"a"\n'
    for n, _ in ks:
        out += kdesc(n, 512, 256)
    open(sys.argv[1], "w").write(out)
main()
```

```python
from lib import *
from gemm4 import *

FL = set(os.environ.get("AFLAGS", "").split(","))
THR = float(os.environ.get("LTHR", 2.0 ** 64))
AH = int(os.environ.get("AH", 11))
WG_ = int(os.environ.get("WGRP", 8))

vLane, vL16, vK, vV, vNEG = 1, 2, 3, 4, 5
vT = 6
vNM = 16
vP = 32
vS = 64
vO = 128
aF = 0
aQ = 128
aL = 192
aOne = 208
sHead, sPair = 24, 25
sKV = 20
sCtx = 16
sKm, sVm, sKo, sVo = 26, 27, 28, 29
sMa, sMb, sCnt, sFail = 30, 31, 88, 89
sMask = 32
sT0, sT1 = 4, 5
CST = (128 ** -0.5) * math.log2(math.e)


def Oreg(g, db):
    return ('v', vO + 4 * (8 * g + db))


def Qreg(g, ds):
    return ('a', aQ + 4 * (4 * g + ds))


def ids(a):
    a("s_and_b32 s%d, s2, 7" % sHead)
    a("s_lshr_b32 s4, s2, 6")
    a("s_lshl_b32 s4, s4, 3")
    a("s_add_u32 s%d, s%d, s4" % (sHead, sHead))
    a("s_lshr_b32 s%d, s2, 3" % sPair)
    a("s_and_b32 s%d, s%d, 7" % (sPair, sPair))


def kv_dma(which):
    m, o = (sKm, sKo) if which == 'K' else (sVm, sVo)
    return ["s_mov_b32 m0, s%d" % m] + \
           ["buffer_load_dwordx4 v%d, s[%d:%d], s%d offen offset:%d%s lds" % (vL16, sKV, sKV + 3, o, 1024 * j, SC1L) for j in range(4)]


def gray_mask(t):
    return 0x4000 if t % 2 == 0 else 0x8000


def kv_setup(a):
    a("s_lshl_b32 s4, s%d, 20" % sHead)
    a("s_lshl_b32 s5, s%d, 16" % sPair)
    a("s_sub_u32 s5, %d, s5" % (32 * 32768))
    srd(a, sKV, P_WS, "s5", WS_KV, 4)
    a("s_lshl_b32 s%d, s%d, 12" % (sKm, S_WAVE))
    a("s_add_u32 s%d, s%d, 0x18000" % (sVm, sKm))
    a("s_mov_b32 s%d, s%d" % (sKo, sKm))
    a("s_add_u32 s%d, s%d, 0x4000" % (sVo, sKm))


NPF = 0 if 'nopf' in FL else 10


def q_loads():
    L = []
    for blk in range(2):
        for i in range(8):
            if i % 4 == 0:
                L.append("s_add_u32 s5, s%d, %d" % (6 + blk, (i // 4) * 4096))
            L.append("buffer_load_dwordx4 %s, v%d, s[8:11], s5 offen offset:%d%s" % (a4(aQ + 32 * blk + 4 * i), vL16, (i % 4) * 1024, SC1))
    return L


def q_setup(a):
    srd(a, 8, P_WS, 16 * MB)
    a("s_lshl_b32 s4, s%d, 15" % sHead)
    a("s_lshl_b32 s5, s%d, 13" % S_WAVE)
    a("s_add_u32 s4, s4, s5")
    a("s_lshl_b32 s5, s%d, 20" % sPair)
    a("s_add_u32 s6, s4, s5")
    a("s_sub_u32 s7, s4, s5")
    a("s_add_u32 s7, s7, %d" % (15 * MB))


def pf_setup(a):
    a("s_lshl_b32 s4, s2, 2")
    a("s_add_u32 s4, s4, s%d" % S_WAVE)
    a("s_lshl_b32 s6, s4, 13")
    a("s_lshl_b32 s7, s4, 11")
    srd(a, 8, P_WO, 8 * MB)
    srd(a, 12, P_BWO, 2 * MB)


def pf_items():
    L = []
    for i in range(8):
        if i == 4:
            L.append("s_add_u32 s6, s6, 4096")
        L.append("buffer_load_dwordx4 a[64:67], v%d, s[8:11], s6 offen offset:%d ; @dummy" % (vL16, (i % 4) * 1024))
    for i in range(2):
        L.append("buffer_load_dwordx4 a[64:67], v%d, s[12:15], s7 offen offset:%d ; @dummy" % (vL16, i * 1024))
    return L if NPF else []


def kv_prologue_items(withq=False, part=None):
    L = []
    tk = tv = 0
    for i, w in enumerate("KKVKVKV"):
        if i == 3 and part is not None:
            if part == 0:
                return L
            L = []
        if withq and i == 1:
            L += q_loads()
        L += kv_dma(w)
        if w == 'K':
            L += ["s_xor_b32 s%d, s%d, 0x%x" % (sKm, sKm, gray_mask(tk)), "s_add_u32 s%d, s%d, 0x8000" % (sKo, sKo)]
            tk += 1
        else:
            L += ["s_xor_b32 s%d, s%d, 0x%x" % (sVm, sVm, gray_mask(tv)), "s_add_u32 s%d, s%d, 0x8000" % (sVo, sVo)]
            tv += 1
    return L


def qk_frags(kindq, half, sb):
    F = []
    if kindq is None:
        return F
    dbl = kindq[0] == 'D'
    gs = [0, 1, 2, 3] if dbl else [2, 3]
    if kindq.endswith("'"):
        gs = gs[1:]
    c0 = kindq.endswith("0")
    for jb in range(2 if dbl else 4):
        for ds in range(4):
            ms = []
            for g in gs:
                blk = (2 * g + jb) if dbl else (2 * (2 * (jb >> 1) + g - 2) + (jb & 1))
                ms.append((('v', sb + 4 * blk), Qreg(g, ds), ("0" if c0 else ('v', vNM + 4 * g)) if ds == 0 else None))
            F.append(('K', ((2 * half + jb) if dbl else jb) * 4096 + ds * 1024, ms))
    return F


def pv_frags(kindp, half, pb):
    F = []
    if kindp is None:
        return F, []
    dbl = kindp[0] == 'D'
    gs = [0, 1, 2, 3] if dbl else [2, 3]
    if kindp.endswith("'"):
        gs = gs[1:]
    sums = []
    for kc in range(1 if dbl else 2):
        for g in gs:
            pi = g if dbl else 2 * kc + g - 2
            sums.append(mfma(('a', aL + 4 * g), ('a', aOne), ('v', pb + 4 * pi)))
        for db in range(8):
            ms = [(Oreg(g, db), ('v', pb + 4 * (g if dbl else 2 * kc + g - 2)), None) for g in gs]
            F.append(('V', (half if dbl else kc) * 8192 + db * 1024, ms))
    return F, sums


def sm_items(sm, sb, pb):
    out = []
    if sm is None:
        return out
    for i in range(4):
        masks = []
        if sm != 'p':
            if sm[0] == 'D':
                gq, jbs = i, [2 * sm[1], 2 * sm[1] + 1]
                lvl = sm[1] >> 1
                if i >= 2:
                    gq = 99
            else:
                gq, jbs = i & 1, [4 * sm[1] + 2 * (i >> 1), 4 * sm[1] + 2 * (i >> 1) + 1]
                lvl = sm[1]
            if lvl > gq:
                continue
            if lvl == gq:
                for e, j16 in enumerate(jbs):
                    for r in range(4):
                        x = sb + 8 * i + 4 * e + r
                        m = sMask + 2 * (4 * (j16 & 3) + r)
                        masks.append((x, "v_cndmask_b32 v%d, v%d, v%d, s[%d:%d]" % (x, x, vNEG, m, m + 1)))
        exps = ["v_exp_f32 v%d, v%d" % (sb + 8 * i + e, sb + 8 * i + e) for e in range(8)]
        cvts = ["v_cvt_pk_bf16_f32 v%d, v%d, v%d" % (pb + 4 * i + e, sb + 8 * i + 2 * e, sb + 8 * i + 2 * e + 1) for e in range(4)]
        out.append((dict(masks), exps, cvts))
    return out


class Rnd:
    def __init__(self, par, qk, sm, pv, bar=False, issK=None, issV=None, togK=None, togV=None, togVpre=None):
        self.par, self.qk, self.sm, self.pv, self.bar = par, qk, sm, pv, bar
        self.issK, self.issV, self.togK, self.togV, self.togVpre = issK, issV, togK, togV, togVpre
        self.vm = None
        self.xdma = []
        self.xq = []
        self.after_bar = None

    def frags(self):
        par = self.par
        Fq = qk_frags(self.qk, par ^ 1, vS + 32 * (par ^ 1))
        Fp, sums = pv_frags(self.pv, par ^ 1, vP + 16 * (par ^ 1))
        return Fq, Fp, sums


def fread(ring, off, slot, tag):
    return "ds_read_b128 %s, v%d offset:%d ; @%s" % (a4(aF + 4 * (slot % 16)), vK if ring == 'K' else vV, off, tag)


def tog(reg, m):
    return "v_xor_b32 v%d, %s, v%d" % (reg, m, reg)


def emit_round(a, R, nxt, ph, pend, extra_scal=None):
    Fq, Fp, sums = R.frags()
    F = Fq + Fp
    nF = len(F)
    Fn = []
    if nxt is not None:
        q, p, _ = nxt.frags()
        Fn = (q + p)[:AH]
    mf = []
    first = []
    si = 0
    for i, (ring, off, ms) in enumerate(F):
        first.append(len(mf))
        for d, b, c in ms:
            mf.append(mfma(d, ('a', aF + 4 * ((ph + i) % 16)), b, c))
        if ring == 'V' and si < len(sums):
            per = len(sums) * 8 // len(Fp)
            k = i - len(Fq)
            if (k % 8) < per:
                mf.append(sums[si])
                si += 1
    assert si == len(sums)
    sg = Seg(mf)
    n = sg.n
    if R.bar:
        sg.pre.append("s_waitcnt vmcnt(%d)" % R.vm)
        sg.pre.append("s_barrier")
        sg.pre.append("AFTERBAR")
    grp = 4 if len(F[0][2]) >= 3 else WG_
    i = 0
    dead = {}
    while i < nF:
        gsz = 4 if len(F[i][2]) != 2 else WG_
        j = min(nF - 1, i + gsz - 1, i + AH - 3)
        for x in range(i, j + 1):
            dead[x] = first[i] - 2
        w = "WAIT f%d" % (ph + j)
        if first[i] == 0:
            sg.pre.append(w)
        else:
            sg.put(first[i] - 1, w)
        i = j + 1
    SM = sm_items(R.sm, vS + 32 * R.par, vP + 16 * R.par)
    nexp = 8 * len(SM)
    eg = []
    if nexp:
        last = 0
        k = 0
        for masks, exps, cvts in SM:
            for e, x in enumerate(exps):
                want = (k * (n - 2)) // nexp
                reg = int(x.split()[1][1:-1])
                want = max(want, last)
                if reg in masks:
                    want = max(want, 1)
                g = sg.place(x, want, lo=last)
                eg.append(g)
                last = g
                k += 1
    items = list(R.xdma)
    if R.issK is not None:
        items += kv_dma('K') + ["s_xor_b32 s%d, s%d, %s" % (sKm, sKm, R.issK), "s_add_u32 s%d, s%d, 0x8000" % (sKo, sKo)]
    if R.issV is not None:
        items += kv_dma('V') + ["s_xor_b32 s%d, s%d, %s" % (sVm, sVm, R.issV), "s_add_u32 s%d, s%d, 0x8000" % (sVo, sVo)]
    if 'nodma' in FL:
        items = [x for x in items if kind(x) != 'd']
    if items:
        place_dma(sg, items, 0, n - 3) if any(kind(x) == 'd' for x in items) else [sg.place(x, 0) for x in items]
    last = 0
    seq = [(j, F[j], False) for j in range(min(AH, nF), nF)] + [(nF + j, f, True) for j, f in enumerate(Fn)]
    prevK = prevV = False
    doneTK = doneTV = doneTVp = False
    lastV = max([j for j, f, nx in seq if f[0] == 'V' and not nx], default=-1)
    for j, f, nx in seq:
        src = j - AH
        want = first[src] if src < nF else n - 1
        lo = last
        if j - 16 >= 0:
            lo = max(lo, (first[j - 15] - 1) if j - 15 < nF else n - 1)
        tg = None
        if f[0] == 'K' and nx and R.togK and not doneTK:
            tg, doneTK = tog(vK, R.togK), True
        if f[0] == 'V' and nx and R.togV and not doneTV:
            tg, doneTV = tog(vV, R.togV), True
        if tg:
            g = sg.place(tg, max(lo, want - 1), lo=lo)
            lo = min(n - 1, g + 1)
            if g == n - 1:
                sg.end[g].append(fread(f[0], f[1], ph + j, "f%d" % (ph + j)))
                last = g
                continue
        if sg.end[last] and any(x.startswith("ds_") for x in sg.end[last]):
            sg.end[last].append(fread(f[0], f[1], ph + j, "f%d" % (ph + j)))
            continue
        hi = dead.get(j)
        assert hi is None or hi >= lo, (j, lo, hi)
        g = sg.place(fread(f[0], f[1], ph + j, "f%d" % (ph + j)), max(want, lo), lo=lo, hi=hi)
        last = g
        if j == lastV and R.togV and not doneTV and not any(x[1][0] == 'V' and x[2] for x in seq):
            doneTV = True
            sg.place(tog(vV, R.togV), g, lo=g)
    if R.togV and not doneTV:
        sg.place(tog(vV, R.togV), 0)
    assert not (R.togK and not doneTK and nxt is not None and nxt.qk), "togK unused"
    k = 0
    for masks, exps, cvts in SM:
        for e, x in enumerate(exps):
            reg = int(x.split()[1][1:-1])
            if reg in masks:
                g = eg[k + e]
                q = g - 1
                while q >= 0 and not sg.room(q, 'c'):
                    q -= 1
                if q < 0:
                    sg.c[g].insert(0, masks[reg])
                    sg.used[g] += 4
                else:
                    sg.put(q, masks[reg])
        for e, x in enumerate(cvts):
            g = eg[k + 2 * e + 1]
            if g + 1 <= n - 1:
                sg.place(x, g + 1, lo=g + 1)
            else:
                sg.end[n - 1].append(x)
        k += 8
    for x in (extra_scal or []):
        if x.startswith("s_cmp"):
            sg.end[n - 1].append(x)
        else:
            sg.place(x, n // 2)
    L, pend = resolve_waits(sg.lines(), pend)
    for x in L:
        if x == "AFTERBAR":
            if R.after_bar:
                R.after_bar()
            continue
        a(x)
    nph = (ph + nF) % 16
    pend = ["f%d" % (int(t[1:]) - (ph + nF) + nph) for t in pend]
    R.cost = sg.cost()
    return nph, pend


def ctx_base(a, srow):
    a("s_lshl_b32 s4, s%d, 20" % srow)
    a("s_lshl_b32 s5, s%d, 15" % sHead)
    a("s_add_u32 s4, s4, s5")
    a("s_lshl_b32 s5, s%d, 11" % S_WAVE)
    a("s_add_u32 s4, s4, s5")


def epilogue(a, gs, srow):
    ctx_base(a, srow)
    for k, g in enumerate(gs):
        a("v_accvgpr_read_b32 v%d, a%d" % (vT + 2 * k, aL + 4 * g))
    a("s_mov_b32 s5, 0x%08x" % f32bits(THR))
    for k, g in enumerate(gs):
        a("v_cmp_ngt_f32 vcc, s5, v%d" % (vT + 2 * k))
        a("v_rcp_f32 v%d, v%d" % (vT + 2 * k, vT + 2 * k))
        a("s_or_b32 s%d, s%d, vcc_lo" % (sFail, sFail))
        a("s_or_b32 s%d, s%d, vcc_hi" % (sFail, sFail))
        a("v_mov_b32 v%d, v%d" % (vT + 2 * k + 1, vT + 2 * k))
    store_O(a, gs)


def store_O(a, gs):
    for ds in range(4):
        for k, g in enumerate(gs):
            b = vO + 4 * (8 * g + 2 * ds)
            for e in range(0, 8, 2):
                a("v_pk_mul_f32 v[%d:%d], v[%d:%d], v[%d:%d]" % (b + e, b + e + 1, b + e, b + e + 1, vT + 2 * k, vT + 2 * k + 1))
            for e in range(4):
                a("v_cvt_pk_bf16_f32 v%d, v%d, v%d" % (b + e, b + 2 * e, b + 2 * e + 1))
            a("buffer_store_dwordx4 %s, v%d, s[%d:%d], s4 offen offset:%d%s" % (v4(b), vL16, sCtx, sCtx + 3, (g & 1) * 1024, SC1))
        if ds < 3:
            a("s_add_u32 s4, s4, 8192")


def rowmax(a, src, t0, t1):
    a("v_max3_f32 v%d, v%d, v%d, v%d" % (t0, src, src + 1, src + 2))
    a("v_max3_f32 v%d, v%d, v%d, v%d" % (t1, src + 3, src + 4, src + 5))
    a("v_max3_f32 v%d, v%d, v%d, v%d" % (t0, t0, src + 6, src + 7))
    a("v_max_f32 v%d, v%d, v%d" % (t0, t0, t1))


def xmax(a, pairs):
    for op in ("v_permlane32_swap_b32", "v_permlane16_swap_b32"):
        for t0, t1 in pairs:
            a("v_mov_b32 v%d, v%d" % (t1, t0))
        for t0, t1 in pairs:
            a("%s v%d, v%d" % (op, t0, t1))
        for t0, t1 in pairs:
            a("v_max_f32 v%d, v%d, v%d" % (t0, t0, t1))


def plan(p):
    pass


def build_rounds():
    g0, g1 = "0x4000", "0x8000"
    R = {}
    R['c0'] = Rnd(0, 'D', 'p', None, bar=True, togK=g0)
    R['lo'] = Rnd(1, 'D', 'p', 'D')
    R['le'] = Rnd(0, 'D', 'p', 'D', bar=True, issK="s%d" % sMb, issV="s%d" % sMa, togK="s%d" % sMa, togV="s%d" % sMb)
    R['d0'] = Rnd(0, 'D', ('D', 0), 'D', bar=True, issK=g1, issV=g0, togK=g0, togV=g1)
    R['d1'] = Rnd(1, "D'", ('D', 1), 'D')
    R['d2'] = Rnd(0, "D'", ('D', 2), 'D', bar=True, issK=g0, issV=g1, togK=g1, togV=g0)
    R['d3'] = Rnd(1, 'S', ('D', 3), "D'", bar=True, issK=g1, issV=g0, togK=g0)
    R['t0'] = Rnd(0, 'S', 'p', "D'", bar=True, issK=g0, togK=g1, togV=g1)
    R['t7'] = Rnd(0, "S'", ('S', 0), "D'", bar=True, togV=g1)
    R['so'] = Rnd(1, 'S', 'p', 'S', bar=True, issK=g1, issV=g1, togK=g0, togV=g0)
    R['se'] = Rnd(0, 'S', 'p', 'S', bar=True, issK=g0, issV=g0, togK=g1, togV=g1)
    R['e0'] = Rnd(0, "S'", ('S', 0), 'S', bar=True, togV=g1)
    R['e1'] = Rnd(1, None, ('S', 1), 'S', bar=True, togV=g0)
    R['e2'] = Rnd(0, None, None, "S'")
    R['c0'].xdma = kv_prologue_items(part=1)
    R['c0'].xq = [x for x in [('K', 2), ('V', 1), ('K', 3), ('V', 2)] for _ in range(4)]
    R['d1'].xdma = pf_items()
    R['d1'].xq = [('pf', 0)] * NPF
    return R


def path(p):
    seq = ['c0']
    if p:
        seq += ['lo', 'le'] * (2 * p - 1) + ['lo', 'd0']
    seq += ['d1', 'd2', 'd3']
    if p == 7:
        seq += ['t7', 'EPI']
    else:
        ns = 2 * (15 - 2 * p)
        seq += ['t0', 'EPI'] + ['so', 'se'] * ((ns - 4) // 2) + ['so', 'e0']
    seq += ['e1', 'e2']
    return seq


def simulate(R, pre=0):
    need = {}
    for p in range(8):
        seq = path(p)
        nd = 4 * p + 4
        ktile = lambda c: c // 2 if c < nd else nd // 2 + (c - nd)
        q = [('K', 0), ('K', 1), ('V', 0)]
        q = [x for x in q for _ in range(4)] + [('st', 0)] * pre
        nk, nv = 4, 3
        rounds = [k for k in seq if k != 'EPI']
        reads = []
        for c, k in enumerate(rounds):
            r = set()
            if R[k].qk:
                r.add(('K', ktile(c + 1)))
            if R[k].pv:
                r.add(('V', ktile(c - 1)))
            reads.append(r)
        full = []
        for c, k in enumerate(rounds):
            r = set(reads[c])
            if c + 1 < len(rounds):
                nx = R[rounds[c + 1]]
                fq, fp, _ = nx.frags()
                for f in (fq + fp)[:AH]:
                    r.add(('K', ktile(c + 2)) if f[0] == 'K' else ('V', ktile(c)))
            full.append(r)
        c = 0
        slotK = {}
        kaddr, vaddr = 0, 0
        for k in seq:
            if k == 'EPI':
                q += [('st', 0)] * 8
                continue
            r = R[k]
            if r.bar:
                e = c + 1
                while e < len(rounds) and not R[rounds[e]].bar:
                    e += 1
                req = set().union(*full[c:e])
                idx = max(i for i, x in enumerate(q) if x in req)
                assert all(x in q for x in req), (p, k, req)
                need[k] = min(need.get(k, 63), len(q) - 1 - idx)
                lastbar = c
            if k == 'e1':
                need[k] = 0
            q += r.xq
            if k == 'd2':
                q += [('st', 0)]
            for w, iss in (('K', r.issK), ('V', r.issV)):
                if iss is not None:
                    t = nk if w == 'K' else nv
                    for cc in range(lastbar, len(rounds)):
                        assert (w, t - 4) not in full[cc], (p, k, w, t)
                    if iss.startswith("0x"):
                        assert int(iss, 16) == gray_mask(t), (p, k, w, t)
                    q += [(w, t)] * 4
                    if w == 'K':
                        nk += 1
                    else:
                        nv += 1
            if r.qk:
                assert kaddr == ktile(c + 1), (p, k, kaddr)
            if r.pv:
                assert vaddr == ktile(c - 1), (p, k, vaddr, ktile(c - 1))
            if r.togK:
                if r.togK.startswith("0x"):
                    assert int(r.togK, 16) == gray_mask(kaddr), (p, k)
                kaddr += 1
            if r.togV:
                if r.togV.startswith("0x"):
                    assert int(r.togV, 16) == gray_mask(vaddr), (p, k)
                vaddr += 1
            c += 1
    for k, v in need.items():
        R[k].vm = v
    return need


def attention(a, st, H):
    R = build_rounds()
    for k in ('e0', 't7'):
        R[k].xdma, R[k].xq = H.pre_e1(), [('fl', 0)]
    R['e1'].xdma, R['e2'].xdma = H.e1_items(), H.e2_items()
    simulate(R, H.pre)
    pf_setup(a)
    srd(a, sCtx, P_WS, 16 * MB, WS_CTX)
    a("v_mov_b32 v%d, v%d" % (vK, vL16))
    a("v_add_u32 v%d, 0x18000, v%d" % (vV, vL16))
    a("v_mov_b32 v%d, 0xf149f2ca" % vNEG)
    a("s_mov_b32 s%d, 0" % sFail)
    a("v_mov_b32 v%d, 0x3f803f80" % vT)
    for i in range(4):
        a("v_accvgpr_write_b32 a%d, v%d" % (aOne + i, vT))
    for i in range(16):
        a("v_accvgpr_write_b32 a%d, 0" % (aL + i))
    for i in range(128):
        a("v_mov_b32 v%d, 0" % (vO + i))
    a("v_and_b32 v%d, 15, v1" % vT)
    a("v_lshrrev_b32 v%d, 4, v1" % (vT + 1))
    a("v_sub_u32 v%d, v%d, v%d" % (vT, vT, vT + 1))
    a("v_lshlrev_b32 v%d, 2, v%d" % (vT, vT))
    a("v_add_u32 v%d, s%d, v%d" % (vT, S_WAVE, vT))
    for j in range(4):
        for r in range(4):
            m = sMask + 2 * (4 * j + r)
            a("v_cmp_gt_i32 s[%d:%d], %d, v%d" % (m, m + 1, 16 * j + r, vT))
    a("s_mov_b32 s%d, 0x8000" % sMa)
    a("s_mov_b32 s%d, 0x4000" % sMb)
    a("s_waitcnt vmcnt(%d)" % (8 + H.pre))
    a("s_barrier")
    st(a)
    P0 = Rnd(1, 'D0', None, None)
    fq = qk_frags('D0', 0, vS)
    L = [fread('K', fq[j][1], 8 + j, "f%d" % (8 + j)) for j in range(8)]
    c0q, c0p, _ = R['c0'].frags()
    nx = (c0q + c0p)[:AH]
    assert len(nx) == 8
    for j, (ring, off, ms) in enumerate(fq):
        if j % 2 == 0:
            L.append("WAIT f%d" % (9 + j))
        for d, b, c in ms:
            L.append(mfma(d, ('a', aF + 4 * (8 + j)), b, c))
        L.append(fread('K', nx[j][1], 16 + j, "f%d" % (16 + j)))
    L, pend = resolve_waits(L, [])
    for x in L:
        a(x)
    pend = ["f%d" % (int(t[1:]) - 16) for t in pend]
    a("s_cmp_lg_u32 s%d, 0" % sPair)
    a("s_cbranch_scc1 La_nomask0")
    for reg, x in sm_items(('D', 0), vS, vP)[0][0].items():
        a(x)
    a.label("La_nomask0")
    for g in range(4):
        rowmax(a, vS + 8 * g, vT + 2 * g, vT + 2 * g + 1)
    xmax(a, [(vT + 2 * g, vT + 2 * g + 1) for g in range(4)])
    for g in range(4):
        for r in range(4):
            a("v_sub_f32 v%d, 0, v%d" % (vNM + 4 * g + r, vT + 2 * g))
    for g in range(4):
        for e in range(0, 8, 2):
            b = vS + 8 * g + e
            a("v_pk_add_f32 v[%d:%d], v[%d:%d], v[%d:%d]" % (b, b + 1, b, b + 1, vNM + 4 * g, vNM + 4 * g + 1))
    state = {}

    def rnd(k, nk, ph, pend, extra=None):
        assert len(pend) <= 15
        return emit_round(a, R[k], R[nk] if nk else None, ph, pend, extra)

    def join(k, ph, pend):
        if k in state:
            assert state[k] == (ph, pend), (k, state[k], ph, pend)
        state[k] = (ph, list(pend))
    a("s_lshl_b32 s%d, s%d, 1" % (sCnt, sPair))
    ph, pend = rnd('c0', 'lo', 0, pend, ["s_cmp_eq_u32 s%d, 0" % sPair])
    join('lo', ph, pend)
    join('d1', ph, pend)
    a("s_cbranch_scc1 La_d1")
    a(".p2align 6")
    a.label("La_lo")
    ph, pend = rnd('lo', 'le', ph, pend, ["s_sub_u32 s%d, s%d, 1" % (sCnt, sCnt), "s_cmp_eq_u32 s%d, 0" % sCnt])
    join('d0', ph, pend)
    a("s_cbranch_scc1 La_d0")
    ph, pend = rnd('le', 'lo', ph, pend)
    a("s_xor_b32 s%d, s%d, 0xc000" % (sMa, sMa))
    a("s_xor_b32 s%d, s%d, 0xc000" % (sMb, sMb))
    join('lo', ph, pend)
    a("s_branch La_lo")
    a.label("La_d0")
    ph, pend = state['d0']
    ph, pend = rnd('d0', 'd1', ph, pend)
    join('d1', ph, pend)
    a.label("La_d1")
    ph, pend = rnd('d1', 'd2', ph, pend)
    ph, pend = rnd('d2', 'd3', ph, pend)
    H.after_d2()
    ph, pend = rnd('d3', 't0', ph, pend, ["s_cmp_eq_u32 s%d, 7" % sPair])
    join('t7', ph, pend)
    a("s_cbranch_scc1 La_t7")
    ph, pend = rnd('t0', 'so', ph, pend)
    st(a)
    epilogue(a, [0, 1], sPair)
    st(a)
    a("s_lshl_b32 s%d, s%d, 1" % (sCnt, sPair))
    a("s_sub_u32 s%d, 14, s%d" % (sCnt, sCnt))
    join('so', ph, pend)
    a(".p2align 6")
    a.label("La_so")
    ph, pend = rnd('so', 'se', ph, pend, ["s_sub_u32 s%d, s%d, 1" % (sCnt, sCnt), "s_cmp_eq_u32 s%d, 0" % sCnt])
    join('e0', ph, pend)
    a("s_cbranch_scc1 La_e0")
    ph, pend = rnd('se', 'so', ph, pend)
    join('so', ph, pend)
    a("s_branch La_so")
    a.label("La_t7")
    ph, pend = state['t7']
    ph, pend = rnd('t7', 'e1', ph, pend)
    if st.on:
        st.k -= 2
    st(a)
    epilogue(a, [0, 1], sPair)
    st(a)
    join('e1', ph, pend)
    a("s_branch La_e1")
    a.label("La_e0")
    ph, pend = state['e0']
    ph, pend = rnd('e0', 'e1', ph, pend)
    join('e1', ph, pend)
    a.label("La_e1")
    R['e1'].after_bar = H.at_e1
    ph, pend = rnd('e1', 'e2', ph, pend)
    ph, pend = rnd('e2', None, ph, pend)
    st(a)
    a("s_sub_u32 s%d, 15, s%d" % (sCnt, sPair))
    epilogue(a, [2, 3], sCnt)
    slow_path(a)
    if 'v' in FL:
        for k, r in R.items():
            print(k, "vm", r.vm, "cost", r.cost, file=sys.stderr)


def slow_path(a):
    vM, vLs, vD = vNM, vNM + 8, vNM + 4
    sRbk, sCh, sOff = 6, 7, 90
    a("s_cmp_eq_u32 s%d, 0" % sFail)
    a("s_cbranch_scc1 La_done")
    a("s_waitcnt vmcnt(0)")
    a("s_sub_u32 s%d, 15, s%d" % (sRbk, sPair))
    a.label("La_sl_blk")
    for i in range(64):
        a("v_mov_b32 v%d, 0" % (vO + 64 + i))
    for i in range(8):
        a("v_mov_b32 v%d, 0" % (vLs + i))
    a("v_mov_b32 v%d, v%d" % (vM, vNEG))
    a("v_mov_b32 v%d, v%d" % (vM + 1, vNEG))
    a("v_and_b32 v%d, 15, v1" % vD)
    a("v_lshrrev_b32 v%d, 4, v1" % (vD + 1))
    a("v_sub_u32 v%d, v%d, v%d" % (vD, vD, vD + 1))
    a("v_lshlrev_b32 v%d, 2, v%d" % (vD, vD))
    a("s_lshl_b32 s4, s%d, 7" % sRbk)
    a("s_add_u32 s4, s4, s%d" % S_WAVE)
    a("v_add_u32 v%d, s4, v%d" % (vD, vD))
    a("v_add_u32 v%d, 64, v%d" % (vD + 1, vD))
    a("s_add_u32 s%d, s%d, 1" % (sCh, sRbk))
    a("s_lshl_b32 s%d, s%d, 2" % (sCh, sCh))
    a("s_mov_b32 s%d, 0" % sOff)
    a.label("La_sl_loop")
    for i in range(16):
        if i % 4 == 0:
            a("s_add_u32 s4, s%d, %d" % (sOff, (i // 8) * 16384 + ((i // 4) & 1) * 4096))
        a("buffer_load_dwordx4 %s, v%d, s[%d:%d], s4 offen offset:%d%s" % (a4(4 * i), vL16, sKV, sKV + 3, (i % 4) * 1024, SC1))
    a("s_waitcnt vmcnt(0)")
    for jb in range(2):
        for ds in range(4):
            for k in range(2):
                a(mfma(('v', vS + 8 * k + 4 * jb), ('a', 4 * (4 * jb + ds)), Qreg(2 + k, ds), "0" if ds == 0 else None))
    for k in range(2):
        for jb in range(2):
            for r in range(4):
                x = vS + 8 * k + 4 * jb + r
                a("v_cmp_gt_i32 vcc, %d, v%d" % (16 * jb + r, vD + k))
                a("v_cndmask_b32 v%d, v%d, v%d, vcc" % (x, x, vNEG))
        a("v_subrev_u32 v%d, 32, v%d" % (vD + k, vD + k))
        rowmax(a, vS + 8 * k, vT + 2 * k, vT + 2 * k + 1)
    xmax(a, [(vT + 2 * k, vT + 2 * k + 1) for k in range(2)])
    for k in range(2):
        a("v_max_f32 v%d, v%d, v%d" % (vT + 2 * k, vT + 2 * k, vM + k))
        a("v_sub_f32 v%d, v%d, v%d" % (vT + 2 * k + 1, vM + k, vT + 2 * k))
        a("v_exp_f32 v%d, v%d" % (vT + 2 * k + 1, vT + 2 * k + 1))
        a("v_mov_b32 v%d, v%d" % (vM + k, vT + 2 * k))
        for e in range(8):
            a("v_sub_f32 v%d, v%d, v%d" % (vS + 8 * k + e, vS + 8 * k + e, vM + k))
        for e in range(8):
            a("v_exp_f32 v%d, v%d" % (vS + 8 * k + e, vS + 8 * k + e))
        for e in range(4):
            a("v_mul_f32 v%d, v%d, v%d" % (vLs + 4 * k + e, vLs + 4 * k + e, vT + 2 * k + 1))
        for e in range(32):
            x = vO + 64 + 32 * k + e
            a("v_mul_f32 v%d, v%d, v%d" % (x, x, vT + 2 * k + 1))
        for e in range(4):
            a("v_cvt_pk_bf16_f32 v%d, v%d, v%d" % (vP + 4 * k + e, vS + 8 * k + 2 * e, vS + 8 * k + 2 * e + 1))
    for k in range(2):
        a(mfma(('v', vLs + 4 * k), ('a', aOne), ('v', vP + 4 * k)))
        for db in range(8):
            a(mfma(Oreg(2 + k, db), ('a', 32 + 4 * db), ('v', vP + 4 * k)))
    a("s_add_u32 s%d, s%d, 8192" % (sOff, sOff))
    a("s_and_b32 s4, s%d, 0x4000" % sOff)
    a("s_add_u32 s%d, s%d, s4" % (sOff, sOff))
    a("s_sub_u32 s%d, s%d, 1" % (sCh, sCh))
    a("s_cmp_lg_u32 s%d, 0" % sCh)
    a("s_cbranch_scc1 La_sl_loop")
    ctx_base(a, sRbk)
    for k in range(2):
        a("v_rcp_f32 v%d, v%d" % (vT + 2 * k, vLs + 4 * k))
        a("v_mov_b32 v%d, v%d" % (vT + 2 * k + 1, vT + 2 * k))
    store_O(a, [2, 3])
    a("s_cmp_eq_u32 s%d, s%d" % (sRbk, sPair))
    a("s_cbranch_scc1 La_done")
    for i in range(32):
        a("v_accvgpr_read_b32 v%d, a%d" % (vS + i, aQ + i))
    for i in range(32):
        a("v_accvgpr_write_b32 a%d, v%d" % (aQ + 32 + i, vS + i))
    a("s_mov_b32 s%d, s%d" % (sRbk, sPair))
    a("s_branch La_sl_blk")
    a.label("La_done")
```

```python
from lib import *
from gemm4 import *

CB = (32 ** -0.5) * math.log2(math.e)
xv, hv, wv = 36, 40, 8
rd = 22
sX, sW, sM1, sM2, sM3 = 24, 25, 26, 27, 28
sRb, sHp = 32, 33
T = 32
A0 = 128
BASE, SLOT, WOFF = 32 * KB, 42 * KB, 18 * KB
XCH = 32 * KB
WS_ = 20


def accq(mi, b): return ('v', A0 + 4 * (2 * mi + b))
def acck(mi, b): return ('v', A0 + 32 + 4 * (2 * mi + b))
def accv(mi, b): return ('v', A0 + 64 + 4 * (2 * mi + b))
def acch(b): return ('v', A0 + 96 + 4 * b)


def make(rh):
    g = Gemm()
    g.name, g.woff = "p2r%d" % rh, WOFF
    R = Ring(3, SLOT, 88)
    R.regs = list(range(rd, rd + 6))
    g.rings = [R]
    g.xrd, g.wrd = [(rd, rd + 1), (rd + 2, rd + 3)], [rd + 4, rd + 5]
    g.xfr = [(0, 2048 * i) for i in range(4)] + [(1, 0)]
    g.wfr = [(b, p * 8192) for p in range(3) for b in range(2)]
    mf = []
    for b in range(2):
        mf += [(accq(mi, b), mi, b, 'wx') for mi in range(4)]
    for b in range(2):
        mf += [(acck(mi, b), mi, 2 + b, 'wx') for mi in range(4)]
        if rh == 0:
            mf.append((acch(b), 4, 2 + b, 'wx'))
    for b in range(2):
        mf += [(accv(mi, b), mi, 4 + b, 'xw') for mi in range(4)]
        if rh == 1:
            mf.append((acch(b), 4, 4 + b, 'xw'))
    g.mf = mf
    g.fx, g.fw = 0, 40
    g.sCnt = 35
    ld = lambda v, s, o, j: "buffer_load_dwordx4 v%d, s[%d:%d], s%d offen offset:%d lds" % (v, s, s + 3, o, 1024 * j)
    g.dma = [
        (R, ('s', sM3), [ld(hv, 8, sX, 0)], []),
        (R, 0, [ld(xv + j, 8, sX, j) for j in range(4)], ["s_add_u32 s%d, s%d, 128" % (sX, sX)]),
        (R, ('s', sM1), [ld(wv + j, WS_, sW, j) for j in range(3)], []),
        (R, ('s', sM2), [ld(wv + 3 + j, WS_, sW, j) for j in range(3)], ["s_add_u32 s%d, s%d, %d" % (sW, sW, 64 * 6144)]),
    ]
    if rh:
        g.dma = g.dma[1:]
    return g


def stage_items(a, g0, s, what):
    L = []
    if 'x' in what:
        lab = a.newlabel("Lh")
        m, ld = g0.group_items(g0.dma[0], s * SLOT)
        L.append("s_cmp_ge_u32 s%d, 2\ns_cbranch_scc1 %s\n%s\ns_nop 0\n%s\n%s:" % (S_WAVE, lab, m, ld, lab))
        L += g0.group_items(g0.dma[1], s * SLOT)
    if 'w' in what:
        L += g0.group_items(g0.dma[2], s * SLOT) + g0.group_items(g0.dma[3], s * SLOT)
    return L


def xsrd():
    L = ["s_lshl_b32 s10, s%d, 18" % sRb,
         "s_add_u32 s8, s%d, s10\ns_addc_u32 s9, s%d, 0" % (P_BX, P_BX + 1),
         "s_sub_u32 s8, s8, %d\ns_subb_u32 s9, s9, 0" % (16 * 2048),
         "s_mov_b32 s10, %d" % (144 * 2048), "s_mov_b32 s11, 0x00020000"]
    return L


def setup(a, g):
    R = g.rings[0]
    a("s_and_b32 s4, s2, 1")
    a("s_lshl_b32 s4, s4, 3")
    a("s_bfe_u32 s5, s2, 0x30003")
    a("s_add_u32 s%d, s4, s5" % sRb)
    a("s_bfe_u32 s4, s2, 0x20001")
    a("s_lshl_b32 s4, s4, 2")
    a("s_lshr_b32 s5, s2, 6")
    a("s_add_u32 s%d, s4, s5" % sHp)
    srd(a, WS_, P_WQKV, 1024 * 6144)
    a("s_mov_b32 s%d, 0" % sX)
    a("s_lshl_b32 s%d, s%d, 7" % (sW, sHp))
    a("s_lshl_b32 s%d, s%d, 12" % (R.sWr, S_WAVE))
    a("s_add_u32 s%d, s%d, %d" % (R.sWr, R.sWr, BASE))
    a("s_lshl_b32 s4, s%d, 11" % S_WAVE)
    a("s_add_u32 s%d, s4, %d" % (sM1, WOFF))
    a("s_add_u32 s%d, s%d, 3072" % (sM2, sM1))
    a("s_mul_i32 s4, s%d, 3072" % S_WAVE)
    a("s_sub_u32 s%d, %d, s4" % (sM3, 16 * KB))
    lane_setup(a, T)
    a("s_lshl_b32 s4, s%d, 5" % S_WAVE)
    a("s_add_u32 s4, s4, 16")
    a("v_add_u32 v%d, s4, v%d" % (T + 2, T))
    a("v_lshl_add_u32 v%d, v%d, 11, v%d" % (T + 2, T + 2, T + 1))
    for j in range(4):
        a("v_add_u32 v%d, %d, v%d" % (xv + j, 8 * j * 2048 - 1024 * j, T + 2))
    a("s_lshl_b32 s4, s%d, 14" % S_WAVE)
    a("s_cmp_eq_u32 s%d, 0" % sRb)
    a("s_cselect_b32 s4, 0x40000000, s4")
    a("v_lshl_add_u32 v%d, v%d, 11, v%d" % (T + 2, T, T + 1))
    a("v_add_u32 v%d, s4, v%d" % (hv, T + 2))
    a("v_lshrrev_b32 v%d, 2, v%d" % (T + 2, T))
    a("v_and_b32 v%d, 3, v%d" % (T + 3, T))
    a("v_lshl_add_u32 v%d, v%d, 3, v%d" % (T + 2, T + 2, T + 3))
    a("v_mul_u32_u24 v%d, 6144, v%d" % (T + 2, T + 2))
    a("v_add_u32 v%d, v%d, v%d" % (T + 2, T + 2, T + 1))
    a("s_mul_i32 s6, s%d, 6" % S_WAVE)
    for j in range(6):
        a("s_add_u32 s7, s6, %d" % j)
        a("s_bfe_u32 s4, s7, 0x10002")
        a("s_lshl_b32 s4, s4, 5")
        a("s_and_b32 s5, s7, 1")
        a("s_lshl_b32 s5, s5, 4")
        a("s_add_u32 s4, s4, s5")
        a("s_bfe_u32 s5, s7, 0x10001")
        a("s_lshl_b32 s5, s5, 2")
        a("s_add_u32 s4, s4, s5")
        a("s_mul_i32 s4, s4, 6144")
        a("s_lshr_b32 s5, s7, 3")
        a("s_lshl_b32 s5, s5, 11")
        a("s_add_u32 s4, s4, s5")
        a("s_add_u32 s4, s4, %d" % (2048 - 1024 * (j % 3)))
        a("v_add_u32 v%d, s4, v%d" % (wv + j, T + 2))
    a("s_sub_u32 s%d, s%d, 2048" % (WS_, WS_))
    a("s_subb_u32 s%d, s%d, 0" % (WS_ + 1, WS_ + 1))
    a("s_add_u32 s%d, s%d, 2048" % (WS_ + 2, WS_ + 2))
    a("s_lshr_b32 s4, s%d, 1" % S_WAVE)
    a("s_lshl_b32 s4, s4, 13")
    a("s_add_u32 s4, s4, %d" % BASE)
    xread_base(a, rd, rd + 1, T, "s4")
    xread_base(a, rd + 2, rd + 3, T, "%d" % (BASE + 16 * KB))
    wread_base(a, [rd + 4, rd + 5], [0, 1], T, "%d" % BASE)
    a("s_and_b32 s4, s%d, 1" % S_WAVE)
    a("s_lshl_b32 s4, s4, 6")
    a("v_xor_b32 v%d, s4, v%d" % (rd + 4, rd + 4))
    a("v_xor_b32 v%d, s4, v%d" % (rd + 5, rd + 5))


def local_attn(a, rh, SF=SC1):
    QP, KP, VP, MC, MP, MP0 = 48, 64, 84, 104, 108, 112
    S0 = 16
    TM = 116
    cvt = lambda d, s: (a("v_cvt_pk_bf16_f32 v%d, v%d, v%d" % (d, s, s + 1)), a("v_cvt_pk_bf16_f32 v%d, v%d, v%d" % (d + 1, s + 2, s + 3)))
    a("s_and_b32 s4, s%d, 1" % S_WAVE)
    a("s_mul_i32 s4, s4, 3072")
    a("s_add_u32 s4, s4, %d" % XCH)
    a("v_add_u32 v%d, s4, v2" % TM)
    if rh == 0:
        for b in range(2):
            cvt(KP + 16 + 2 * b, acck(3, b)[1])
            cvt(VP + 10 * b + 8, accv(3, b)[1])
        a("ds_write_b128 v%d, %s" % (TM, v4(KP + 16)))
        a("ds_write_b64 v%d, v[%d:%d] offset:1024" % (TM, VP + 8, VP + 9))
        a("ds_write_b64 v%d, v[%d:%d] offset:1032" % (TM, VP + 18, VP + 19))
    else:
        for b in range(2):
            cvt(TM + 4 + 2 * b, acch(b)[1])
        a("ds_write_b128 v%d, %s offset:2048" % (TM, v4(TM + 4)))
    a("v_and_b32 v%d, 15, v1" % (TM + 1))
    a("v_lshrrev_b32 v%d, 4, v1" % (TM + 2))
    a("v_lshlrev_b32 v%d, 2, v%d" % (TM + 2, TM + 2))
    a("v_sub_u32 v%d, v%d, v%d" % (TM + 1, TM + 1, TM + 2))
    a("v_mov_b32 v%d, 0xf149f2ca" % (TM + 2))
    for r in range(4):
        a("v_subrev_u32 v%d, %d, v%d" % (TM + 3, r, TM + 1))
        a("v_and_b32 v%d, 0x80000001, v%d" % (MC + r, TM + 3))
        a("v_cmp_ne_u32 vcc, 0, v%d" % (MC + r))
        a("v_cndmask_b32 v%d, 0, v%d, vcc" % (MC + r, TM + 2))
        a("v_add_u32 v%d, 1, v%d" % (TM + 3, TM + 3))
        a("v_and_b32 v%d, 0x80000001, v%d" % (MP + r, TM + 3))
        a("v_cmp_ne_u32 vcc, 0x80000001, v%d" % (MP + r))
        a("v_cndmask_b32 v%d, 0, v%d, vcc" % (MP + r, TM + 2))
    if rh == 0:
        a("s_cmp_eq_u32 s%d, 0" % sRb)
        a("s_cselect_b64 vcc, -1, 0")
        for r in range(4):
            a("v_cndmask_b32 v%d, v%d, v%d, vcc" % (MP0 + r, MP + r, TM + 2))
    a("s_mov_b32 s6, 0x%08x" % f32bits(CB))
    a("s_mov_b32 s7, s6")
    for mi in range(4):
        for b in range(2):
            s = accq(mi, b)[1]
            a("v_pk_mul_f32 v[%d:%d], v[%d:%d], s[6:7]" % (s, s + 1, s, s + 1))
            a("v_pk_mul_f32 v[%d:%d], v[%d:%d], s[6:7]" % (s + 2, s + 3, s + 2, s + 3))
        for b in range(2):
            cvt(QP + 4 * mi + 2 * b, accq(mi, b)[1])
    for mi in range(4):
        for b in range(2):
            if not (rh == 0 and mi == 3):
                cvt(KP + 4 * (mi + 1) + 2 * b, acck(mi, b)[1])
                cvt(VP + 10 * b + 2 * (mi + 1), accv(mi, b)[1])
    if rh == 0:
        for b in range(2):
            cvt(KP + 2 * b, acch(b)[1])
    a("v_mov_b32 v%d, 0x3f803f80" % (TM + 4))
    for i in range(1, 4):
        a("v_mov_b32 v%d, v%d" % (TM + 4 + i, TM + 4))
    a("s_waitcnt lgkmcnt(0)")
    a("s_barrier")
    if rh == 0:
        a("ds_read_b64 v[%d:%d], v%d offset:2048" % (VP, VP + 1, TM))
        a("ds_read_b64 v[%d:%d], v%d offset:2056" % (VP + 10, VP + 11, TM))
    else:
        a("ds_read_b128 %s, v%d" % (v4(KP), TM))
        a("ds_read_b64 v[%d:%d], v%d offset:1024" % (VP, VP + 1, TM))
        a("ds_read_b64 v[%d:%d], v%d offset:1032" % (VP + 10, VP + 11, TM))
    order = [3, 2, 1, 0]
    for mi in order:
        if mi == 0:
            a("s_waitcnt lgkmcnt(0)")
        a(mfma(('v', S0 + 8 * mi), ('v', KP + 4 * mi), ('v', QP + 4 * mi), ('v', MP0 if (rh == 0 and mi == 0) else MP)))
        a(mfma(('v', S0 + 8 * mi + 4), ('v', KP + 4 * mi + 4), ('v', QP + 4 * mi), ('v', MC)))
    M = A0
    from attn4 import rowmax, xmax
    for mi in order:
        rowmax(a, S0 + 8 * mi, M + 2 * mi, M + 2 * mi + 1)
    xmax(a, [(M + 2 * mi, M + 2 * mi + 1) for mi in order])
    for mi in order:
        for e in range(8):
            a("v_sub_f32 v%d, v%d, v%d" % (S0 + 8 * mi + e, S0 + 8 * mi + e, M + 2 * mi))
        for e in range(8):
            a("v_exp_f32 v%d, v%d" % (S0 + 8 * mi + e, S0 + 8 * mi + e))
    PP, LL, OO = M + 8, M + 24, M + 40
    for mi in order:
        for e in range(4):
            a("v_cvt_pk_bf16_f32 v%d, v%d, v%d" % (PP + 4 * mi + e, S0 + 8 * mi + 2 * e, S0 + 8 * mi + 2 * e + 1))
    for mi in order:
        a(mfma(('v', LL + 4 * mi), ('v', TM + 4), ('v', PP + 4 * mi), "0"))
        for b in range(2):
            a(mfma(('v', OO + 8 * mi + 4 * b), ('v', VP + 10 * b + 2 * mi), ('v', PP + 4 * mi), "0"))
    srd(a, 16, P_WS, 4 * MB, WS_OB)
    a("s_lshl_b32 s4, s%d, 18" % sRb)
    a("s_lshl_b32 s5, s%d, 14" % sHp)
    a("s_add_u32 s4, s4, s5")
    a("s_and_b32 s5, s%d, 1" % S_WAVE)
    a("s_lshl_b32 s5, s5, 13")
    a("s_add_u32 s4, s4, s5")
    if rh:
        a("s_add_u32 s4, s4, 4096")
    for mi in order:
        a("v_rcp_f32 v%d, v%d" % (LL + 4 * mi, LL + 4 * mi))
    for mi in order:
        a("v_mov_b32 v%d, v%d" % (LL + 4 * mi + 1, LL + 4 * mi))
    for mi in order:
        o = OO + 8 * mi
        for e in range(0, 8, 2):
            a("v_pk_mul_f32 v[%d:%d], v[%d:%d], v[%d:%d]" % (o + e, o + e + 1, o + e, o + e + 1, LL + 4 * mi, LL + 4 * mi + 1))
        for e in range(4):
            a("v_cvt_pk_bf16_f32 v%d, v%d, v%d" % (o + e, o + 2 * e, o + 2 * e + 1))
        a("buffer_store_dwordx4 %s, v2, s[16:19], s4 offen offset:%d%s" % (v4(o), mi * 1024, SF))
```

```python
from lib import *


class Ring:
    def __init__(self, NS, slot, sbase):
        self.NS, self.slot = NS, slot
        self.sWr, self.sRd, self.sRdD, self.sC = sbase, sbase + 1, sbase + 2, sbase + 3
        self.regs = []

    def init(self):
        return ["s_mov_b32 s%d, 0" % self.sRd,
                "s_mov_b32 s%d, %d" % (self.sC, (-(self.NS - 1) * self.slot) & 0xffffffff),
                "s_mov_b32 s%d, %d" % (self.sC + 1, self.slot)]

    def adv(self, wr):
        sc = []
        if wr:
            sc.append("s_add_u32 s%d, s%d, s%d" % (self.sWr, self.sWr, self.sRdD))
        if self.NS == 2:
            sc.append("s_sub_u32 s%d, 0, s%d" % (self.sRdD, self.sRdD))
        else:
            sc += ["s_add_u32 s%d, s%d, 1" % (self.sRd, self.sRd),
                   "s_cmp_eq_u32 s%d, %d\ns_cselect_b32 s%d, 0, s%d\ns_cselect_b32 s%d, s%d, s%d" % (
                       self.sRd, self.NS, self.sRd, self.sRd, self.sRdD, self.sC, self.sC + 1)]
        return sc, ["v_add_u32 v%d, s%d, v%d" % (r, self.sRdD, r) for r in self.regs]


def place_dma(sg, items, g0, g1):
    nd = sum(1 for x in items if kind(x) == 'd')
    k = 0
    last = g0
    for x in items:
        if kind(x) == 'd':
            want = g0 + (k * (g1 - g0 + 1)) // nd
            k += 1
            if sg.end[last]:
                sg.end[last].append(x)
                continue
            g = sg.place(x, max(want, last), lo=last)
            last = g
        else:
            g = min(last + 1, sg.n - 1) if sg.d[last] else last
            if sg.d[g] or sg.end[g]:
                sg.end[g].append(x)
            else:
                g = sg.place(x, g, lo=g)
                if sg.d[g]:
                    raise RuntimeError("scalar placed before an earlier load")
            last = g
            if "m0" in x and not sg.end[g]:
                last = min(g + 1, sg.n - 1)
                if last == g:
                    sg.end[g].append("s_nop 0")
    return last


class Gemm:
    xlin = False
    woff = 0
    pf = []

    def fxr(self, h, i):
        return ('a', self.fx + 4 * (h * len(self.xfr) + i))

    def fwr(self, h, i):
        return ('a', self.fw + 4 * (h * len(self.wfr) + i))

    def mfmas(self, h, first=False):
        L = []
        for acc, xi, wi, o in self.mf:
            x, w = self.fxr(h, xi), self.fwr(h, wi)
            L.append(mfma(acc, w, x, "0" if first else None) if o == 'wx' else mfma(acc, x, w, "0" if first else None))
        return L

    def reads(self, h):
        L = []
        seen = set()
        for acc, xi, wi, o in self.mf:
            if ('x', xi) not in seen:
                seen.add(('x', xi))
                st, imm = self.xfr[xi]
                if self.xlin:
                    L.append("ds_read_b128 %s, v%d offset:%d" % (r4(self.fxr(h, xi)), self.xrd[st][0], imm + h * self.xhs))
                else:
                    L.append("ds_read_b128 %s, v%d offset:%d" % (r4(self.fxr(h, xi)), self.xrd[st][h], imm))
            if ('w', wi) not in seen:
                seen.add(('w', wi))
                nb, imm = self.wfr[wi]
                b = self.fwr(h, wi)[1]
                for j in range(2):
                    L.append("ds_read_b64_tr_b16 a[%d:%d], v%d offset:%d" % (b + 2 * j, b + 2 * j + 1, self.wrd[nb], self.woff + imm + h * 4096 + j * 2048))
        return L

    def group_items(self, grp, off=0):
        ring, m0, ins, post = grp
        if isinstance(m0, tuple):
            L = ["s_add_u32 m0, s%d, s%d" % (ring.sWr, m0[1]) + ("\ns_add_u32 m0, m0, %d" % off if off else "")]
        else:
            m0 += off
            L = ["s_add_u32 m0, s%d, %d" % (ring.sWr, m0) if m0 else "s_mov_b32 m0, s%d" % ring.sWr]
        if 'nodma' in GFL:
            ins = []
        return L + ins + post

    def dma_items(self):
        return [x for g in self.dma for x in self.group_items(g)]

    def issue_seq(self, it):
        return [(g, it - 1 + g[0].NS) for g in self.dma if it - 1 + g[0].NS >= 0]

    def prologue_items(self):
        L = []
        for it in range(-(max(r.NS for r in self.rings) - 1), 1):
            for g, s in self.issue_seq(it):
                L += self.group_items(g, s * g[0].slot)
        return L

    def nprologue(self):
        return sum(1 for x in self.prologue_items() if kind(x) == 'd')

    def vm(self, s, nst):
        q = []
        for it in range(-8, max(s, 1)):
            for g, st in self.issue_seq(it):
                if st < nst:
                    q += [st] * len(g[2])
        idx = max(i for i, st in enumerate(q) if st <= s)
        return len(q) - 1 - idx

    def half(self, a, h, first=False, rd=True, dma=None, adv=False, extra=None, wr=True):
        sg = Seg(self.mfmas(h, first))
        n = sg.n
        lastd = 0
        nadv = sum(len(r.regs) for r in self.rings)
        if dma:
            lastd = place_dma(sg, dma, 0, n - 2 - ((nadv // 2 + 3) if adv and n > 16 else 0))
        lastr = 0
        if rd and 'noreads' not in GFL:
            R = self.reads(h ^ 1)
            g1 = max(len(R) // 2, n - 1 - min(10, n // 3))
            lastr = max(sg.stream(R, 0, g1))
        if adv:
            g = min(n - 1, lastd + 1) if dma else 0
            vas = []
            for r in self.rings:
                sc, va = r.adv(wr)
                vas += va
                for x in sc:
                    if (sg.d[g] and g == n - 1) or sg.end[g]:
                        sg.end[g].append(x)
                    else:
                        g = sg.place(x, g, lo=g)
            g = max(lastr + 1, g + 1)
            for x in vas:
                if g < n:
                    sg.place(x, g, lo=g)
                else:
                    sg.end[n - 1].append(x)
        if extra:
            extra(sg)
        for x in sg.lines():
            a(x)

    def split(self, it):
        n = sum(1 for x in it if kind(x) == 'd')
        cut = cnt = 0
        for i, x in enumerate(it):
            if kind(x) == 'd':
                cnt += 1
                if cnt == (n + 1) // 2:
                    cut = i + 1
        while cut < len(it) and kind(it[cut]) == 's' and "m0" not in it[cut]:
            cut += 1
        return it[:cut], it[cut:]

    def init(self, a, start=0):
        for r in self.rings:
            for x in r.init():
                a(x)
            if start:
                a("s_mov_b32 s%d, %d" % (r.sRd, start))
            if r.NS == 2:
                a("s_mov_b32 s%d, s%d" % (r.sRdD, r.sC))

    def bar(self, a, N):
        a("s_waitcnt vmcnt(%d) lgkmcnt(0)" % min(63, N))
        a("s_barrier")

    def pro(self, a, N, dma=None):
        a("s_waitcnt vmcnt(%d)" % min(63, N))
        a("s_barrier")
        for x in self.reads(0):
            a(x)
        a("s_waitcnt lgkmcnt(0)")
        self.half(a, 0, first=True, adv=True, dma=dma, wr=False)

    def iter(self, a, N, items=None, wr=True, adv=True, after_bar=None, extra=None):
        self.bar(a, N)
        if after_bar:
            after_bar()
        d0, d1 = self.split(items or [])
        self.half(a, 1, dma=d0)
        a("s_waitcnt lgkmcnt(0)")
        self.half(a, 0, dma=d1, adv=adv, wr=wr, extra=extra)

    def loop(self, a, N, after_bar=None):
        a(".p2align 6")
        a.label("L%s_loop" % self.name)

        def cnt_(sg):
            sg.place("s_sub_u32 s%d, s%d, 1" % (self.sCnt, self.sCnt), sg.n - 2, lo=sg.n - 2)
            sg.end[sg.n - 1].append("s_cmp_lg_u32 s%d, 0" % self.sCnt)
        self.iter(a, N, self.pf + self.dma_items(), after_bar=after_bar, extra=cnt_)
        a("s_cbranch_scc1 L%s_loop" % self.name)

    def tail(self, a, items=None, bar=True, N=None, rd=False):
        a("s_waitcnt %slgkmcnt(0)" % ("" if N is None else "vmcnt(%d) " % N))
        if bar:
            a("s_barrier")
        self.half(a, 1, rd=rd, dma=items)


GFL = set(os.environ.get("GFLAGS", "").split(","))


def lane_setup(a, T):
    a("v_lshrrev_b32 v%d, 3, v1" % T)
    a("v_and_b32 v%d, 6, v%d" % (T + 1, T))
    a("v_and_b32 v%d, 7, v1" % (T + 2))
    a("v_xor_b32 v%d, v%d, v%d" % (T + 1, T + 1, T + 2))
    a("v_lshlrev_b32 v%d, 4, v%d" % (T + 1, T + 1))


def xread_base(a, d0, d1, T, sbase):
    a("v_and_b32 v%d, 15, v1" % T)
    a("v_lshlrev_b32 v%d, 7, v%d" % (T, T))
    a("v_lshrrev_b32 v%d, 4, v1" % (T + 1))
    a("v_and_b32 v%d, 6, v1" % (T + 2))
    a("v_xor_b32 v%d, v%d, v%d" % (T + 1, T + 1, T + 2))
    a("v_lshl_add_u32 v%d, v%d, 4, v%d" % (T, T + 1, T))
    a("v_add_u32 v%d, %s, v%d" % (d0, sbase, T))
    a("v_xor_b32 v%d, 64, v%d" % (d1, d0))


def wread_base(a, regs, nbs, T, sbase):
    a("v_lshrrev_b32 v%d, 2, v1" % T)
    a("v_and_b32 v%d, 6, v%d" % (T + 1, T))
    a("v_lshlrev_b32 v%d, 7, v%d" % (T, T))
    a("v_and_b32 v%d, 1, v1" % (T + 2))
    a("v_lshl_add_u32 v%d, v%d, 3, v%d" % (T, T + 2, T))
    a("v_add_u32 v%d, %s, v%d" % (T, sbase, T))
    a("v_bfe_u32 v%d, v1, 1, 1" % (T + 2))
    a("v_xor_b32 v%d, v%d, v%d" % (T + 1, T + 1, T + 2))
    for r, nb in zip(regs, nbs):
        a("v_xor_b32 v%d, %d, v%d" % (T + 2, 2 * nb, T + 1))
        a("v_lshl_add_u32 v%d, v%d, 4, v%d" % (r, T + 2, T))
```

```python
import os, sys, struct, math
sys.path.insert(0, os.path.join(os.path.dirname(os.path.abspath(__file__)), "..", "gen"))
from asmlib import Asm, Ins

MB = 1 << 20
KB = 1024
WS_KV = 16 * MB
WS_CTX = 64 * MB
WS_OB = 80 * MB
WS_XCH = 96 * MB
WS_DBG = 200 * MB
SC1 = "" if os.environ.get("NOSC1") else " sc1"
SC1L = " sc1" if os.environ.get("SC1L") else ""
WS_FLG = 120 * MB
S_FLG = 96
S_TAG = 94
F_QKV, F_OB, F_CTX, F_XA, F_XB, F_EPOCH = 0, 0x8000, 0x10000, 0x20000, 0x28000, 0x30000

S_WAVE = 3
S_PTR = 64
P_AX, P_CKV, P_WQ, P_WUK, P_WUV, P_WO, P_BX, P_WQKV, P_BWO, P_OUT, P_DBG, P_WS = [S_PTR + 2 * i for i in range(12)]


def f32bits(x):
    return struct.unpack("<I", struct.pack("<f", x))[0]


def log2(x):
    n = x.bit_length() - 1
    assert 1 << n == x, x
    return n


def v4(b):
    return "v[%d:%d]" % (b, b + 3)


def a4(b):
    return "a[%d:%d]" % (b, b + 3)


def r4(x):
    return "%s[%d:%d]" % (x[0], x[1], x[1] + 3)


def mfma(d, a, b, c=None):
    return "v_mfma_f32_16x16x32_bf16 %s, %s, %s, %s" % (r4(d), r4(a), r4(b), r4(d) if c is None else (c if isinstance(c, str) else r4(c)))


def srd(a, d, p, size, off=0, soff=None):
    if off:
        a("s_add_u32 s%d, s%d, %d" % (d, p, off))
        a("s_addc_u32 s%d, s%d, 0" % (d + 1, p + 1))
    if soff is not None:
        a("s_add_u32 s%d, s%d, s%d" % (d, d if off else p, soff))
        a("s_addc_u32 s%d, s%d, 0" % (d + 1, d + 1 if off else p + 1))
    if not off and soff is None:
        a("s_mov_b32 s%d, s%d" % (d, p))
        a("s_mov_b32 s%d, s%d" % (d + 1, p + 1))
    a("s_mov_b32 s%d, %s" % (d + 2, size if isinstance(size, str) else "%d" % size))
    a("s_mov_b32 s%d, 0x00020000" % (d + 3))


def kind(t):
    mn = t.split(None, 1)[0]
    if mn.startswith("s_") or mn == "WAIT":
        return 's'
    if mn.startswith("ds_"):
        return 'r'
    if mn.startswith("buffer_") or mn.startswith("global_"):
        return 'd'
    if mn.startswith(("v_exp", "v_rcp", "v_log")):
        return 'e'
    return 'c'


class Seg:
    def __init__(self, mf):
        self.mf = mf
        self.n = len(mf)
        self.pre = []
        self.sc = [[] for _ in mf]
        self.d = [[] for _ in mf]
        self.r = [[] for _ in mf]
        self.c = [[] for _ in mf]
        self.end = [[] for _ in mf]
        self.used = [0] * self.n

    def room(self, g, k):
        if k == 's':
            return len(self.sc[g]) == 0 or self.used[g] <= 4
        if k == 'e':
            return self.used[g] == 0
        if k == 'd':
            return self.used[g] <= 4 and not self.d[g] and not any(kind(x) == 'e' for x in self.c[g])
        return self.used[g] <= 4

    def put(self, g, t):
        k = kind(t)
        if k == 's':
            nl = t.count("\n") + 1
            self.used[g] += 4 * (nl - (0 if self.sc[g] else 1))
            self.sc[g].append(t)
        elif k == 'd':
            self.d[g].append(t)
            self.used[g] += 4
        elif k == 'r':
            self.r[g].append(t)
            self.used[g] += 4
        else:
            self.c[g].append(t)
            self.used[g] += 8 if k == 'e' else 4
        return g

    def place(self, t, want, lo=0, hi=None):
        hi = self.n - 1 if hi is None else min(hi, self.n - 1)
        want = max(lo, min(want, hi))
        k = kind(t)
        for g in range(want, hi + 1):
            if self.room(g, k):
                return self.put(g, t)
        for g in range(want - 1, lo - 1, -1):
            if self.room(g, k):
                return self.put(g, t)
        g = min(range(lo, hi + 1), key=lambda q: (self.used[q], abs(q - want)))
        return self.put(g, t)

    def stream(self, items, g0, g1, strict=False):
        out = []
        n = len(items)
        last = g0
        for i, t in enumerate(items):
            want = g0 + (i * (g1 - g0 + 1)) // n
            g = self.place(t, max(want, last), lo=last, hi=g1 if strict else None)
            last = g
            out.append(g)
        return out

    def lines(self):
        L = list(self.pre)
        for g in range(self.n):
            L.append(self.mf[g])
            for t in self.sc[g] + self.d[g] + self.r[g] + self.c[g] + self.end[g]:
                L += t.split("\n")
        return L

    def cost(self):
        return sum(16 + max(0, self.used[g] - 8) + (4 if self.d[g] else 0) for g in range(self.n))


def resolve_waits(lines, pend):
    out = []
    pend = list(pend)
    later = set(t.split("@")[1].strip() for t in lines if t.startswith("ds_") and "@" in t)
    for t in lines:
        if t.startswith("ds_") and "@" in t:
            later.discard(t.split("@")[1].strip())
        if t.startswith("WAIT"):
            assert t.split()[1] not in later, "wait before its read: " + t
            parts = t.split()
            tag = parts[1]
            extra = " ".join(parts[2:])
            if tag == '*':
                n = 0
            elif tag in pend:
                n = len(pend) - 1 - pend.index(tag)
            else:
                n = None
            if n is None:
                if extra:
                    out.append("s_waitcnt " + extra)
                continue
            assert n <= 15, (n, tag)
            pend = pend[len(pend) - n:] if n else []
            out.append(("s_waitcnt %s lgkmcnt(%d)" % (extra, n)).replace("  ", " "))
            continue
        if t.startswith("ds_"):
            pend.append(t.split("@")[1].strip() if "@" in t else "?")
        out.append(t)
    return out, pend


def kdesc(name, nv, acc, ns=102):
    return """.p2align 6
.amdhsa_kernel %s
  .amdhsa_next_free_vgpr %d
  .amdhsa_next_free_sgpr %d
  .amdhsa_accum_offset %d
  .amdhsa_group_segment_fixed_size 0
  .amdhsa_kernarg_size 96
  .amdhsa_user_sgpr_count 2
  .amdhsa_user_sgpr_kernarg_segment_ptr 1
  .amdhsa_system_sgpr_workgroup_id_x 1
.end_amdhsa_kernel
""" % (name, nv, ns, acc)


def kstart(name):
    return ".globl %s\n.p2align 8\n.type %s,@function\n%s:\n" % (name, name, name)


class Stamps:
    def __init__(self, on, kern):
        self.on, self.kern, self.k = on, kern, 0

    def __call__(self, a):
        if not self.on:
            return
        k = self.k
        self.k += 1
        assert k < 32
        a("s_memrealtime s[100:101]")
        a("s_waitcnt lgkmcnt(0)")
        a("v_writelane_b32 v15, s100, %d" % (2 * k))
        a("s_memtime s[100:101]")
        a("s_waitcnt lgkmcnt(0)")
        a("v_writelane_b32 v15, s100, %d" % (2 * k + 1))

    def flush(self, a):
        if not self.on:
            return
        L = a.newlabel("Lst")
        a("s_cmp_lg_u32 s%d, 0" % S_WAVE)
        a("s_cbranch_scc1 %s" % L)
        srd(a, 16, P_WS, 1 * MB, WS_DBG + self.kern * 65536)
        a("s_lshl_b32 s4, s2, 8")
        a("v_mbcnt_lo_u32_b32 v14, -1, 0")
        a("v_mbcnt_hi_u32_b32 v14, -1, v14")
        a("v_lshlrev_b32 v14, 2, v14")
        a("buffer_store_dword v15, v14, s[16:19], s4 offen")
        a.label(L)


class Col(list):
    def __call__(self, t):
        self.extend(x.strip() for x in t.split("\n") if x.strip())


def signal(a, vt, soffs):
    a("v_mov_b32 v%d, 0x40000000" % (vt + 2))
    a("v_mov_b32 v%d, s%d" % (vt, S_TAG))
    a("v_cmp_eq_u32 vcc, 0, v0")
    a("v_mov_b32 v%d, s%d" % (vt + 1, S_TAG + 1))
    a("v_cndmask_b32_e64 v%d, v%d, 0, vcc" % (vt + 2, vt + 2))
    for o in soffs:
        a("buffer_store_dwordx2 v[%d:%d], v%d, s[%d:%d], %s offen sc1 ; @signal" % (vt, vt + 1, vt + 2, S_FLG, S_FLG + 3, o))


def flag_addr(va):
    return ["v_and_b32 v%d, 15, v1" % va, "v_lshlrev_b32 v%d, 7, v%d" % (va, va)]


def flag_load(dst, soff, va=None):
    if va is None:
        return "buffer_load_dwordx2 v[%d:%d], off, s[%d:%d], %s sc1" % (dst, dst + 1, S_FLG, S_FLG + 3, soff)
    return "buffer_load_dwordx2 v[%d:%d], v%d, s[%d:%d], %s offen sc1" % (dst, dst + 1, va, S_FLG, S_FLG + 3, soff)


def tag_make(a, part, younger=0):
    L = a.newlabel("Ltag")
    a("s_or_b32 s4, s2, s%d" % S_WAVE)
    a("s_cbranch_scc1 %s" % L)
    a("s_mov_b32 s4, %d" % F_EPOCH)
    if part == 0:
        a(flag_load(4, "s4"))
    else:
        srd(a, 16, P_DBG, 256)
        a("s_waitcnt vmcnt(%d)" % younger)
        a("v_add_u32 v4, 1, v4")
        a("v_or_b32 v5, 0x80000000, v5")
        a("buffer_store_dwordx2 v[4:5], off, s[%d:%d], s4 sc1" % (S_FLG, S_FLG + 3))
        a("buffer_store_dwordx2 v[4:5], off, s[16:19], 0 sc1")
    a.label(L)


def tag_load(a, dst):
    srd(a, 16, P_DBG, 256)
    a("buffer_load_dwordx2 v[%d:%d], off, s[16:19], 0 sc1" % (dst, dst + 1))


def tag_get(a, dst):
    L, D = a.newlabel("Ltg"), a.newlabel("Lpolld")
    a("s_mov_b32 s5, 0x40000")
    a.label(L)
    a("v_readfirstlane_b32 s%d, v%d" % (S_TAG, dst))
    a("v_readfirstlane_b32 s%d, v%d" % (S_TAG + 1, dst + 1))
    a("s_cmp_lg_u32 s%d, 0" % (S_TAG + 1))
    a("s_cbranch_scc1 %s" % D)
    a("s_sleep 4")
    tag_load(a, dst)
    a("s_sub_u32 s5, s5, 1")
    a("s_waitcnt vmcnt(0)")
    a("s_cbranch_scc0 %s ; @poll" % L)
    a.label(D)


class VmQ:
    def __init__(self):
        self.q = []

    def push(self, tag, n):
        self.q += [tag] * n

    def need(self, *tags):
        idx = max([i for i, t in enumerate(self.q) if t in tags], default=-1)
        n = len(self.q) - 1 - idx
        self.q = self.q[idx + 1:]
        return n


def flag_check(a, dst, soff, va=None):
    L, D = a.newlabel("Lpoll"), a.newlabel("Lpolld")
    a("s_mov_b32 s5, 0x40000")
    a.label(L)
    a("v_cmp_ne_u64 vcc, s[%d:%d], v[%d:%d]" % (S_TAG, S_TAG + 1, dst, dst + 1))
    a("s_cbranch_vccz %s" % D)
    a("s_sleep 4")
    a(flag_load(dst, soff, va))
    a("s_sub_u32 s5, s5, 1")
    a("s_waitcnt vmcnt(0)")
    a("s_cbranch_scc0 %s ; @poll" % L)
    a.label(D)
```

```python
from lib import *
from gemm4 import *
import proj4, bfront, attn4, oproj

MFL = set(os.environ.get("MFLAGS", "").split(","))


def gen(stamp=False):
    a = Asm()
    st = Stamps(stamp, 0)
    a("s_cmp_ge_u32 s2, 256")
    a("s_cbranch_scc1 Lend")
    a("s_load_dwordx16 s[64:79], s[0:1], 0")
    a("s_load_dwordx8 s[80:87], s[0:1], 64")
    a("v_lshrrev_b32 v2, 6, v0")
    a("v_and_b32 v1, 63, v0")
    a("v_readfirstlane_b32 s%d, v2" % S_WAVE)
    a("v_lshlrev_b32 v2, 4, v1")
    st(a)
    gk, gv = proj4.make('wx'), proj4.make('xw')
    b0, b1 = bfront.make(0), bfront.make(1)
    proj4.setup(a, gk)
    srd(a, S_FLG, P_WS, 0x40000, WS_FLG)
    if 'inv' in MFL:
        a("buffer_inv sc1")
    tag_make(a, 0)
    for x in gk.prologue_items():
        a(x)
    tag_make(a, 1, 40)
    proj4.read_bases(a, gk)
    proj4.pf_setup(a)
    bfront.setup(a, b0)
    oproj.lanes(a, 28)
    gk.init(a)
    st(a)
    gk.pro(a, 24)
    a("s_cmp_lt_u32 s2, 128")
    a("s_cselect_b32 s%d, 13, 7" % gk.sCnt)
    gk.loop(a, 8)
    a("s_cmp_lt_u32 s2, 128")
    a("s_cbranch_scc1 Lp1_qt")

    def p1_end(g, kind_):
        W = g.group_items(g.dma[0]) + g.group_items(g.dma[1])
        g.iter(a, 8, W + bfront.xsrd() + bfront.stage_items(a, b0, 0, 'x'))
        g.iter(a, 4, bfront.stage_items(a, b0, 0, 'w') + bfront.stage_items(a, b0, 1, 'xw'), adv=False)
        tag_load(a, 30)
        g.tail(a, bfront.stage_items(a, b0, 2, 'xw'))
        st(a)
        proj4.epilogue(a, kind_)
    gk.bar(a, 8)
    gk.half(a, 1, dma=gk.dma_items())
    st(a)
    proj4.epilogue(a, 'k')
    a("s_waitcnt lgkmcnt(0)")
    st(a)
    gv.half(a, 0, first=True, adv=True)
    gv.iter(a, 40, gv.pf + gv.dma_items())
    a("s_mov_b32 s%d, 4" % gv.sCnt)
    gv.loop(a, 8)
    p1_end(gv, 'v')
    a("s_branch Lp2")
    a.label("Lp1_qt")
    if st.on:
        st.k -= 3
    st(a)
    st(a)
    p1_end(gk, 'q')
    a.label("Lp2")
    st(a)
    b0.init(a)
    a("s_lshl_b32 s34, s%d, 4" % proj4.sN0)
    a("s_add_u32 s34, s34, s%d" % proj4.sM0)
    a("s_lshr_b32 s4, s2, 7")
    a("s_lshl_b32 s4, s4, 3")
    a("s_add_u32 s34, s34, s4")
    a("s_lshl_b32 s34, s34, 7")
    a("s_cmp_ge_u32 s%d, 2" % S_WAVE)
    a("s_cbranch_scc1 Lp2_r1")
    k0 = st.k
    for rh, g in enumerate((b0, b1)):
        if rh:
            a.label("Lp2_r1")
        n = 10 if rh else 11
        g.pro(a, 2 * n + 32)
        g.iter(a, n + 32, g.dma_items())
        g.iter(a, n + 32, g.dma_items())
        g.iter(a, n, g.dma_items(), after_bar=lambda: (tag_get(a, 30), signal(a, 28, ["s34"])))
        a("s_mov_b32 s%d, 10" % g.sCnt)
        g.loop(a, n)

        def ids():
            attn4.ids(a)
            a("s_lshr_b32 s34, s%d, 1" % attn4.sHead)
            a("s_lshl_b32 s34, s34, 11")
            for x in flag_addr(3):
                a(x)
        g.iter(a, n, [flag_load(4, "s34", 3)], after_bar=ids)

        def go():
            flag_check(a, 4, "s34", 3)
            attn4.kv_setup(a)
            attn4.q_setup(a)
        it = attn4.kv_prologue_items(True, 0)
        cut = [i for i, x in enumerate(it) if "m0" in x][1]
        g.iter(a, 0, it[:cut], after_bar=go, adv=False)
        g.tail(a, it[cut:])
        st(a)
        bfront.local_attn(a, rh)
        if not rh:
            a("s_branch Lp5")
            st.k = k0
    a.label("Lp5")
    a("s_lshl_b32 s91, s%d, 4" % bfront.sRb)
    a("s_add_u32 s91, s91, s%d" % bfront.sHp)
    a("s_lshl_b32 s91, s91, 7")
    a("s_add_u32 s91, s91, %d" % F_OB)
    oproj.ids(a)
    st(a)
    g6, g7 = oproj.make("p6", oproj.AB), oproj.make("p7", oproj.AA)

    class H:
        pre = 4

        @staticmethod
        def after_d2():
            signal(a, attn4.vT, ["s91"])
            a("s_lshl_b32 s91, s%d, 11" % oproj.sRb)
            a("s_add_u32 s91, s91, %d" % F_OB)
            for x in flag_addr(14):
                a(x)

        @staticmethod
        def pre_e1():
            return [flag_load(12, "s91", 14)]

        @staticmethod
        def at_e1():
            flag_check(a, 12, "s91", 14)
            for j in range(4):
                a("v_accvgpr_read_b32 v%d, a%d" % (oproj.wv + j, oproj.aSave + j))
            for x in oproj.job_w(False) + oproj.job_x(False):
                a(x)

        @staticmethod
        def e1_items():
            return oproj.stage_items(g6, 0, 'wx') + oproj.stage_items(g6, 1, 'wx')

        @staticmethod
        def e2_items():
            return oproj.stage_items(g6, 2, 'wx')
    attn4.attention(a, st, H)
    st(a)
    q = VmQ()
    for s in range(3):
        q.push(s, 8)
    q.push('ctx', 8)
    oproj.read_bases(a, 4)
    g6.init(a, start=4)
    g6.pro(a, q.need(0), dma=oproj.stage_items(g6, 3, 'wx') + oproj.stage_items(g6, 4, 'wx'))
    q.push(3, 8)
    q.push(4, 8)

    def sig_ctx():
        a("s_lshl_b32 s4, s%d, 7" % attn4.sHead)
        a("s_lshl_b32 s5, s%d, 12" % attn4.sPair)
        a("s_add_u32 s6, s4, %d" % F_CTX)
        a("s_add_u32 s7, s6, %d" % (15 << 12))
        a("s_add_u32 s6, s6, s5")
        a("s_sub_u32 s7, s7, s5")
        signal(a, 6, ["s6", "s7"])
        a("s_lshl_b32 s91, s%d, 1" % oproj.sRb)
        a("s_add_u32 s91, s91, s%d" % oproj.sKh)
        a("s_lshl_b32 s91, s91, 11")
        a("s_add_u32 s91, s91, %d" % F_CTX)
    for s in range(1, 8):
        N = q.need(1, 'ctx') if s == 1 else q.need(s)
        if s == 1:
            q.push('sig', 2)
        if s <= 3:
            it = g6.dma_items()
            q.push(s + 4, 8)
        else:
            it = (oproj.job_w(True) if s == 4 else []) + g6.group_items(g6.dma[0])
            q.push(('w', s + 4), 4)
        if s == 7:
            it += [flag_load(6, "s91", 14)]
        g6.iter(a, N, it, after_bar=sig_ctx if s == 1 else None)
    a("s_waitcnt vmcnt(0) lgkmcnt(0)")
    a("s_barrier")
    st(a)
    flag_check(a, 6, "s91", 14)
    st(a)
    for x in oproj.job_x(True):
        a(x)
    it = []
    for s in range(8, 13):
        it += oproj.stage_items(g7, s, 'x' if s < 12 else 'wx')
    g6.half(a, 1, rd=False, dma=it)
    oproj.xch_srd(a)
    oproj.send(a, oproj.AB, False)
    st(a)
    a("s_waitcnt vmcnt(28)")
    a("s_barrier")
    for x in g7.reads(0):
        a(x)
    a("s_waitcnt lgkmcnt(0)")
    g7.half(a, 0, first=True, adv=True)
    g7.iter(a, 24, g7.dma_items())
    a("s_mov_b32 s%d, 26" % g7.sCnt)
    g7.loop(a, 24)

    def sig_b():
        oproj.flag_pos(a, False, True, 6)
        signal(a, 6, ["s6"])
        oproj.flag_pos(a, False, False, 90)
    g7.iter(a, 24, after_bar=sig_b)
    g7.iter(a, 17)
    g7.iter(a, 9, [flag_load(6, "s90")])
    g7.iter(a, 0, oproj.recv_items(False), adv=False, after_bar=lambda: flag_check(a, 6, "s90"))
    g7.tail(a, bar=False)
    st(a)
    oproj.send(a, oproj.AA, True)
    oproj.out_setup(a)
    a("s_waitcnt vmcnt(8)")
    oproj.finish(a, oproj.AB, False)
    oproj.flag_pos(a, True, True, 6)
    oproj.flag_pos(a, True, False, 90)
    a("s_waitcnt vmcnt(4)")
    a("s_barrier")
    signal(a, 6, ["s6"])
    a(flag_load(4, "s90"))
    a("s_waitcnt vmcnt(0)")
    st(a)
    flag_check(a, 4, "s90")
    st(a)
    for x in oproj.recv_items(True):
        a(x)
    a("s_waitcnt vmcnt(0)")
    oproj.finish(a, oproj.AA, True)
    st(a)
    if stamp:
        a("s_waitcnt vmcnt(0)")
    st(a)
    st.flush(a)
    a.label("Lend")
    a("s_endpgm")
    return a.finish()
```

```python
from lib import *
from gemm4 import *

wv = 10
rdx, rdw = 16, 17
sX, sW, sWv = 70, 71, 79
sRb, sCt, sKh, sTile = 73, 76, 77, 78
T = 24
AB, AA, PR = 32, 96, 160
NS = 5
aSave = 212


def acc(base, mi, ni): return ('v', base + 4 * (4 * mi + ni))


def make(name, base):
    g = Gemm()
    g.name, g.woff = name, 16 * KB
    g.xlin, g.xhs = True, 8192
    R = Ring(NS, 32 * KB, 64)
    R.regs = [rdx] + list(range(rdw, rdw + 4))
    g.rings = [R]
    g.xrd, g.wrd = [(rdx, rdx)], list(range(rdw, rdw + 4))
    g.xfr = [(0, 1024 * i) for i in range(4)]
    g.wfr = [(b, 0) for b in range(4)]
    g.mf = [(acc(base, mi, ni), mi, ni, 'wx') for ni in range(4) for mi in range(4)]
    g.fx, g.fw = 64, 96
    g.sCnt = 69
    ld = lambda v, s, o, j, f: "buffer_load_dwordx4 v%d, s[%d:%d], s%d offen offset:%d%s lds" % (v, s, s + 3, o, 1024 * j, f)
    g.dma = [
        (R, 16 * KB, [ld(wv + j, 12, sW, j, "") for j in range(4)], ["s_add_u32 s%d, s%d, %d" % (sW, sW, 64 * 2048)]),
        (R, 0, [ld(2, 8, sX, j, SC1L) for j in range(4)], ["s_add_u32 s%d, s%d, %d" % (sX, sX, 16 * KB)]),
    ]
    return g


def ids(a):
    a("s_and_b32 s4, s2, 1")
    a("s_lshl_b32 s4, s4, 3")
    a("s_bfe_u32 s5, s2, 0x30003")
    a("s_add_u32 s%d, s4, s5" % sRb)
    a("s_bfe_u32 s4, s2, 0x10001")
    a("s_lshl_b32 s4, s4, 2")
    a("s_lshr_b32 s5, s2, 6")
    a("s_add_u32 s%d, s4, s5" % sCt)
    a("s_bfe_u32 s%d, s2, 0x10002" % sKh)
    a("s_lshl_b32 s%d, s%d, 3" % (sTile, sRb))
    a("s_add_u32 s%d, s%d, s%d" % (sTile, sTile, sCt))
    a("s_lshl_b32 s%d, s%d, 12" % (sWv, S_WAVE))
    a("s_add_u32 s64, s%d, %d" % (sWv, 128 * KB))


def lanes(a, T):
    lane_setup(a, T)
    a("s_and_b32 s4, s%d, 1" % S_WAVE)
    a("s_lshl_b32 s4, s4, 16")
    a("s_lshr_b32 s5, s%d, 1" % S_WAVE)
    a("s_lshl_b32 s5, s5, 7")
    a("s_add_u32 s4, s4, s5")
    a("v_lshl_add_u32 v%d, v%d, 11, v%d" % (T, T, T + 1))
    a("v_add_u32 v%d, s4, v%d" % (T, T))
    for j in range(4):
        a("v_add_u32 v%d, %d, v%d" % (T + 1, j * (8 * 2048 - 1024), T))
        a("v_accvgpr_write_b32 a%d, v%d" % (aSave + j, T + 1))


def stage_items(g, s, what):
    L = []
    for i, w in enumerate("wx"):
        if w in what:
            ring, m0, ins, post = g.dma[i]
            L += ["s_add_u32 m0, s%d, %d" % (sWv, ((4 + s) % NS) * 32 * KB + m0)] + ins + post
    return L


def job_w(isA):
    c = Col()
    srd(c, 12, P_WO if isA else P_BWO, (4096 if isA else 1024) * 2048)
    c("s_lshl_b32 s%d, s%d, %d" % (sW, sKh, 22 if isA else 20))
    c("s_lshl_b32 s72, s%d, 8" % sCt)
    c("s_add_u32 s%d, s%d, s72" % (sW, sW))
    return list(c)


def job_x(isA):
    off = WS_CTX if isA else WS_OB
    L = ["s_add_u32 s8, s%d, %d\ns_addc_u32 s9, s%d, 0" % (P_WS, off, P_WS + 1),
         "s_mov_b32 s10, %d" % ((16 if isA else 4) * MB), "s_mov_b32 s11, 0x00020000",
         "s_lshl_b32 s%d, s%d, 1" % (sX, sRb), "s_add_u32 s%d, s%d, s%d" % (sX, sX, sKh),
         "s_lshl_b32 s%d, s%d, %d" % (sX, sX, 19 if isA else 17),
         "s_add_u32 s%d, s%d, s%d" % (sX, sX, sWv)]
    return L


def read_bases(a, slot):
    a("s_lshr_b32 s4, s%d, 1" % S_WAVE)
    a("s_lshl_b32 s4, s4, 12")
    a("s_add_u32 s4, s4, %d" % (slot * 32 * KB))
    a("v_add_u32 v%d, s4, v2" % rdx)
    a("s_and_b32 s4, s%d, 1" % S_WAVE)
    a("s_lshl_b32 s4, s4, 13")
    a("s_add_u32 s4, s4, %d" % (slot * 32 * KB))
    wread_base(a, list(range(rdw, rdw + 4)), range(4), T, "s4")


def xch_srd(a):
    srd(a, 16, P_WS, 16 * MB, WS_XCH)


def xch_off(a, d, isA, mine):
    a("s_lshl_b32 s%d, s%d, 1" % (d, sTile))
    a("s_add_u32 s%d, s%d, s%d" % (d, d, sKh))
    if not mine:
        a("s_xor_b32 s%d, s%d, 1" % (d, d))
    a("s_lshl_b32 s%d, s%d, 2" % (d, d))
    a("s_add_u32 s%d, s%d, s%d" % (d, d, S_WAVE))
    a("s_lshl_b32 s%d, s%d, 13" % (d, d))
    if not isA:
        a("s_add_u32 s%d, s%d, %d" % (d, d, 8 * MB))


def send(a, base, isA):
    xch_off(a, 6, isA, False)
    a("s_add_u32 s7, s6, 4096")
    L = a.newlabel("Lsend")
    a("s_cmp_eq_u32 s%d, 0" % sKh)
    a("s_cbranch_scc1 %s_0" % L)
    for kh in (1, 0):
        if kh == 0:
            a.label(L + "_0")
        for i in range(8):
            a("buffer_store_dwordx4 %s, v2, s[16:19], s%d offen offset:%d%s" % (
                v4(base + 32 * (1 - kh) + 4 * i), 6 + i // 4, 1024 * (i % 4), SC1))
        if kh == 1:
            a("s_branch %s_e" % L)
    a.label(L + "_e")


def recv_items(isA):
    c = Col()
    xch_off(c, 6, isA, True)
    c("s_add_u32 s7, s6, 4096")
    for i in range(8):
        c("buffer_load_dwordx4 %s, v2, s[16:19], s%d offen offset:%d%s" % (v4(PR + 4 * i), 6 + i // 4, 1024 * (i % 4), SC1))
    return list(c)


def flag_pos(a, isA, mine, d):
    a("s_lshl_b32 s%d, s%d, 1" % (d, sTile))
    a("s_add_u32 s%d, s%d, s%d" % (d, d, sKh))
    if not mine:
        a("s_xor_b32 s%d, s%d, 1" % (d, d))
    a("s_lshl_b32 s%d, s%d, 7" % (d, d))
    a("s_add_u32 s%d, s%d, %d" % (d, d, F_XA if isA else F_XB))


def out_setup(a):
    srd(a, 20, P_OUT, 8 * MB)
    a("v_bfe_u32 v%d, v1, 4, 1" % (T + 1))
    a("v_lshrrev_b32 v%d, 5, v1" % (T + 2))
    a("v_lshl_or_b32 v%d, v%d, 1, v%d" % (T + 1, T + 1, T + 2))
    a("v_lshlrev_b32 v%d, 4, v%d" % (T + 1, T + 1))
    a("v_and_b32 v%d, 15, v1" % T)
    a("v_lshl_add_u32 v%d, v%d, 14, v%d" % (T + 2, T, T + 1))
    a("v_lshl_add_u32 v%d, v%d, 12, v%d" % (T + 3, T, T + 1))


def finish(a, base, isA):
    a("s_lshl_b32 s4, s%d, 19" % sRb)
    a("s_lshl_b32 s5, s%d, 8" % sCt)
    a("s_add_u32 s4, s4, s5")
    a("s_and_b32 s5, s%d, 1" % S_WAVE)
    a("s_lshl_b32 s5, s5, 7")
    a("s_add_u32 s4, s4, s5")
    a("s_lshr_b32 s5, s%d, 1" % S_WAVE)
    a("s_lshl_b32 s5, s5, 1")
    a("s_add_u32 s5, s5, s%d" % sKh)
    a("s_lshl_b32 s5, s5, %d" % (12 if isA else 17))
    a("s_add_u32 s4, s4, s5")
    if not isA:
        a("s_add_u32 s4, s4, 2048")
    a("s_add_u32 s5, s4, %d" % ((64 if isA else 16) * 4096))
    L = a.newlabel("Lfin")
    a("s_cmp_eq_u32 s%d, 0" % sKh)
    a("s_cbranch_scc1 %s_0" % L)
    for kh in (1, 0):
        if kh == 0:
            a.label(L + "_0")
        for e in range(0, 32, 2):
            x = base + 32 * kh + e
            a("v_pk_add_f32 v[%d:%d], v[%d:%d], v[%d:%d]" % (PR + e, PR + e + 1, PR + e, PR + e + 1, x, x + 1))
        if kh == 1:
            a("s_branch %s_e" % L)
    a.label(L + "_e")
    for q in range(4):
        u = PR + 8 * q
        for e in range(4):
            a("v_cvt_pk_bf16_f32 v%d, v%d, v%d" % (u + e, u + 2 * e, u + 2 * e + 1))
    for q in range(4):
        u = PR + 8 * q
        a("v_permlane16_swap_b32 v%d, v%d" % (u, u + 2))
        a("v_permlane16_swap_b32 v%d, v%d" % (u + 1, u + 3))
        a("buffer_store_dwordx4 %s, v%d, s[20:23], s%d offen offset:%d" % (v4(u), T + (2 if isA else 3), 4 + (q >> 1), (q & 1) * 64))
```

```python
from lib import *
from gemm4 import *

CST = (128 ** -0.5) * math.log2(math.e)
xv, wv = 48, 56
sX, sW, sCx, sCw, sJ, sNk, sWrapX, sWrapW, sAlt = 46, 47, 48, 49, 50, 51, 52, 53, 54
sM0, sN0 = 61, 62
T = 32
ROT = int(os.environ.get("ROT", 1))


def acc(mi, ni):
    b = mi * 8 + ni
    return ('v', 64 + 4 * b) if b < 48 else ('a', 128 + 4 * (b - 48))


def make(orient):
    g = Gemm()
    g.name = "p1" + orient
    RX, RW = Ring(3, 32 * KB, 36), Ring(2, 32 * KB, 41)
    RX.regs, RW.regs = [16, 17], [18, 19, 20, 21]
    g.rings = [RX, RW]
    g.xrd, g.wrd = [(16, 17)], [18, 19, 20, 21]
    g.xfr = [(0, 2048 * i) for i in range(8)]
    g.wfr = [(ni & 3, (ni >> 2) * 8192) for ni in range(8)]
    g.mf = [(acc(mi, ni), mi, ni, orient) for ni in range(8) for mi in range(8)]
    g.fx, g.fw = 0, 64
    g.sCnt = 35
    ld = lambda v, s, o, j: "buffer_load_dwordx4 v%d, s[%d:%d], s%d offen offset:%d lds" % (v + j, s, s + 3, o, 1024 * (j & 3))

    def adv(o, c, wrap, step):
        return ["s_add_u32 s%d, s%d, %d" % (o, o, step), "s_sub_u32 s%d, s%d, 1" % (c, c),
                "s_cmp_eq_u32 s%d, 0\ns_cselect_b32 s34, s%d, 0\ns_cselect_b32 s%d, s%d, s%d" % (c, wrap, c, sNk, c),
                "s_sub_u32 s%d, s%d, s34" % (o, o)]
    sw = ["s_sub_u32 s%d, s%d, 1" % (sJ, sJ),
          "s_cmp_eq_u32 s%d, 0\ns_cselect_b32 s12, s%d, s12\ns_cselect_b32 s13, s%d, s13" % (sJ, sAlt, sAlt + 1)]
    g.dma = [
        (RW, 0, [ld(wv, 12, sW, j) for j in range(4)], []),
        (RW, 4096, [ld(wv, 12, sW, j) for j in range(4, 8)], adv(sW, sCw, sWrapW, 64 * 8192) + sw),
        (RX, 0, [ld(xv, 8, sX, j) for j in range(4)], []),
        (RX, 4096, [ld(xv, 8, sX, j) for j in range(4, 8)], adv(sX, sCx, sWrapX, 128)),
    ]
    if 'nopf' not in GFL:
        g.pf = ["buffer_load_dwordx4 v[4:7], v2, s[56:59], s60 offen ; @dummy", "s_add_u32 s60, s60, 1024"]
    return g


def pf_setup(a):
    a("s_cmp_lt_u32 s2, 154")
    a("s_cselect_b32 s56, s%d, s%d" % (P_WQKV, P_BX))
    a("s_cselect_b32 s57, s%d, s%d" % (P_WQKV + 1, P_BX + 1))
    a("s_cselect_b32 s60, 0, 154")
    a("s_mov_b32 s58, %d" % (4 * MB))
    a("s_cselect_b32 s58, %d, s58" % (6 * MB))
    a("s_mov_b32 s59, 0x00020000")
    a("s_sub_u32 s60, s2, s60")
    a("s_lshl_b32 s60, s60, 2")
    a("s_add_u32 s60, s60, s%d" % S_WAVE)
    a("s_mul_i32 s60, s60, 10240")


def setup(a, g):
    RX, RW = g.rings
    a("s_and_b32 s4, s2, 1")
    a("s_lshl_b32 s4, s4, 2")
    a("s_bfe_u32 s5, s2, 0x20003")
    a("s_add_u32 s%d, s4, s5" % sM0)
    a("s_bfe_u32 s4, s2, 0x20001")
    a("s_lshl_b32 s4, s4, 2")
    a("s_bfe_u32 s5, s2, 0x20005")
    a("s_add_u32 s%d, s4, s5" % sN0)
    a("s_lshl_b32 s%d, s%d, 13" % (RX.sWr, S_WAVE))
    a("s_add_u32 s%d, s%d, %d" % (RW.sWr, RX.sWr, 96 * KB))
    lane_setup(a, T)
    a("v_lshrrev_b32 v%d, 2, v%d" % (T + 2, T))
    a("v_and_b32 v%d, 3, v%d" % (T + 3, T))
    a("v_lshl_add_u32 v%d, v%d, 3, v%d" % (T + 2, T + 2, T + 3))
    a("s_lshl_b32 s4, s%d, 7" % S_WAVE)
    a("v_lshl_add_u32 v%d, v%d, 13, v%d" % (T + 2, T + 2, T + 1))
    a("v_add_u32 v%d, s4, v%d" % (T + 2, T + 2))
    for j in range(8):
        a("v_add_u32 v%d, %d, v%d" % (wv + j, (32 * (j >> 2) + 16 * (j & 1) + 4 * ((j >> 1) & 1)) * 8192 - 1024 * (j & 3), T + 2))
    a("s_waitcnt lgkmcnt(0)")
    a("s_bfe_u32 s6, s2, 0x20001")
    a("s_lshl_b32 s6, s6, 1")
    a("s_and_b32 s7, s2, 1")
    a("s_add_u32 s6, s6, s7")
    if not ROT:
        a("s_mov_b32 s6, 0")
    a("s_cmp_lt_u32 s2, 128")
    a("s_cbranch_scc1 Lp1_q")
    for q in (False, True):
        if q:
            a.label("Lp1_q")
        ldx = 2048 if q else 1024
        nk = 16 if q else 8
        srd(a, 8, P_AX if q else P_CKV, 2048 * ldx)
        srd(a, 12, P_WQ if q else P_WUK, nk * 64 * 8192)
        a("s_mov_b32 s%d, s%d" % (sAlt, P_WQ if q else P_WUV))
        a("s_mov_b32 s%d, s%d" % (sAlt + 1, (P_WQ if q else P_WUV) + 1))
        if q:
            a("s_lshl_b32 s6, s6, 1")
        a("s_mov_b32 s%d, %d" % (sNk, nk))
        a("s_mov_b32 s%d, %d" % (sWrapX, nk * 128))
        a("s_mov_b32 s%d, %d" % (sWrapW, nk * 64 * 8192))
        a("s_mul_i32 s%d, s%d, %d" % (sX, sM0, 256 * ldx))
        if q:
            a("s_lshr_b32 s4, s%d, 1" % S_WAVE)
            a("s_lshl_b32 s4, s4, 7")
            a("s_and_b32 s5, s%d, 1" % S_WAVE)
            a("s_lshl_b32 s5, s5, 1")
            a("s_add_u32 s4, s4, s5")
            a("v_lshlrev_b32 v%d, 2, v%d" % (T + 2, T))
            a("v_add_u32 v%d, s4, v%d" % (T + 2, T + 2))
            rows = [32 * (j & 3) + (j >> 2) for j in range(8)]
        else:
            a("s_lshl_b32 s4, s%d, 6" % S_WAVE)
            a("v_add_u32 v%d, s4, v%d" % (T + 2, T))
            rows = [8 * j for j in range(8)]
        a("v_lshl_add_u32 v%d, v%d, %d, v%d" % (T + 2, T + 2, log2(ldx), T + 1))
        for j in range(8):
            a("v_add_u32 v%d, %d, v%d" % (xv + j, rows[j] * ldx - 1024 * (j & 3), T + 2))
        if not q:
            a("s_branch Lp1_go")
    a.label("Lp1_go")
    a("s_sub_u32 s%d, s%d, s6" % (sCx, sNk))
    a("s_mov_b32 s%d, s%d" % (sCw, sCx))
    a("s_mov_b32 s%d, 8" % sJ)
    a("s_lshl_b32 s4, s6, 7")
    a("s_add_u32 s%d, s%d, s4" % (sX, sX))
    a("s_lshl_b32 s%d, s%d, 9" % (sW, sN0))
    a("s_lshl_b32 s4, s6, 19")
    a("s_add_u32 s%d, s%d, s4" % (sW, sW))


def read_bases(a, g):
    a("s_lshr_b32 s4, s%d, 1" % S_WAVE)
    a("s_lshl_b32 s4, s4, 14")
    xread_base(a, 16, 17, T, "s4")
    a("s_and_b32 s4, s%d, 1" % S_WAVE)
    a("s_lshl_b32 s4, s4, 14")
    a("s_add_u32 s4, s4, %d" % (96 * KB))
    wread_base(a, g.wrd, range(4), T, "s4")


def epilogue(a, kind_):
    a("s_and_b32 s4, s%d, 1" % S_WAVE)
    a("s_lshl_b32 s5, s%d, 1" % sN0)
    a("s_add_u32 s4, s4, s5")
    a("s_lshr_b32 s5, s%d, 1" % S_WAVE)
    a("s_lshl_b32 s6, s%d, 1" % sM0)
    a("s_add_u32 s5, s5, s6")
    if kind_ == 'q':
        srd(a, 16, P_WS, 16 * MB)
        a("s_lshl_b32 s4, s4, 15")
        a("s_lshl_b32 s5, s5, 20")
        a("s_mov_b32 s6, 0x%08x" % f32bits(CST))
        a("s_mov_b32 s7, s6")
    else:
        srd(a, 16, P_WS, 32 * MB, WS_KV)
        a("s_lshl_b32 s4, s4, 20")
        a("s_lshl_b32 s5, s5, 16")
    a("s_add_u32 s4, s4, s5")
    if kind_ == 'v':
        a("s_add_u32 s4, s4, 0x4000")
        pairs = [(acc(2 * c, ni), acc(2 * c + 1, ni), (c >> 1) * 32768 + (c & 1) * 8192 + ni * 1024) for c in range(4) for ni in range(8)]
    elif kind_ == 'k':
        pairs = [(acc(mi, 2 * ds), acc(mi, 2 * ds + 1), (mi >> 2) * 32768 + (mi & 3) * 4096 + ds * 1024) for mi in range(8) for ds in range(4)]
    else:
        pairs = [(acc(mi, 2 * ds), acc(mi, 2 * ds + 1), mi * 4096 + ds * 1024) for mi in range(8) for ds in range(4)]
    cur = 0
    k = 0
    for p0, p1, off in pairs:
        if off // 4096 != cur // 4096:
            a("s_add_u32 s4, s4, %d" % ((off // 4096 - cur // 4096) * 4096))
            cur = off
        src = []
        if p0[0] == 'a':
            t = 64 + 8 * (k - 24)
            for p in (p0, p1):
                for e in range(4):
                    a("v_accvgpr_read_b32 v%d, a%d" % (t + len(src), p[1] + e))
                    src.append(t + len(src))
        else:
            src = [p0[1] + e for e in range(4)] + [p1[1] + e for e in range(4)]
        if kind_ == 'q':
            for e in range(0, 8, 2):
                a("v_pk_mul_f32 v[%d:%d], v[%d:%d], s[6:7]" % (src[e], src[e] + 1, src[e], src[e] + 1))
        d = src[0]
        for e in range(4):
            a("v_cvt_pk_bf16_f32 v%d, v%d, v%d" % (d + e, src[2 * e], src[2 * e + 1]))
        a("buffer_store_dwordx4 %s, v2, s[16:19], s4 offen offset:%d%s" % (v4(d), off % 4096, SC1))
        k += 1
```

```python
import sys, os
sys.path.insert(0, os.path.dirname(os.path.abspath(__file__)))
from lib import *
import mega

HEADER = """; Kernarg layout for this problem (96 bytes, ptrs only, base s[0:1]):
"""


NAME = "concat_heads__compressed_kv_cla__sliding_local_dilated__prompt_kernel"


def main():
    stamp = bool(os.environ.get("STAMP"))
    out = HEADER
    out += "; @launch grid=(256,1,1) block=(256,1,1) lds=163840\n"
    out += '.amdgcn_target "amdgcn-amd-amdhsa--gfx950"\n.text\n'
    out += kstart(NAME) + mega.gen(stamp)
    out += '.section .rodata,"a"\n' + kdesc(NAME, 512, 256)
    open(sys.argv[1], "w").write(out)


main()
```

```python
import os, sys, struct, math
sys.path.insert(0, os.path.join(os.path.dirname(os.path.abspath(__file__)), "..", "gen"))
from asmlib import Asm, Ins

MB = 1 << 20
KB = 1024
WS_KV = 16 * MB
WS_CTX = 64 * MB
WS_OB = 80 * MB
WS_XCH = 96 * MB
WS_DBG = 200 * MB
SC1 = "" if os.environ.get("NOSC1") else " sc1"
SC1L = " sc1" if os.environ.get("SC1L") else ""
WS_FLG = 120 * MB
S_FLG = 96
S_TAG = 94
F_QKV, F_OB, F_CTX, F_XA, F_XB, F_EPOCH = 0, 0x8000, 0x10000, 0x20000, 0x28000, 0x30000

S_WAVE = 3
S_PTR = 64
P_AX, P_CKV, P_WQ, P_WUK, P_WUV, P_WO, P_BX, P_WQKV, P_BWO, P_OUT, P_DBG, P_WS = [S_PTR + 2 * i for i in range(12)]


def f32bits(x):
    return struct.unpack("<I", struct.pack("<f", x))[0]


def log2(x):
    n = x.bit_length() - 1
    assert 1 << n == x, x
    return n


def v4(b):
    return "v[%d:%d]" % (b, b + 3)


def a4(b):
    return "a[%d:%d]" % (b, b + 3)


def r4(x):
    return "%s[%d:%d]" % (x[0], x[1], x[1] + 3)


def mfma(d, a, b, c=None):
    return "v_mfma_f32_16x16x32_bf16 %s, %s, %s, %s" % (r4(d), r4(a), r4(b), r4(d) if c is None else (c if isinstance(c, str) else r4(c)))


def srd(a, d, p, size, off=0, soff=None):
    if off:
        a("s_add_u32 s%d, s%d, %d" % (d, p, off))
        a("s_addc_u32 s%d, s%d, 0" % (d + 1, p + 1))
    if soff is not None:
        a("s_add_u32 s%d, s%d, s%d" % (d, d if off else p, soff))
        a("s_addc_u32 s%d, s%d, 0" % (d + 1, d + 1 if off else p + 1))
    if not off and soff is None:
        a("s_mov_b32 s%d, s%d" % (d, p))
        a("s_mov_b32 s%d, s%d" % (d + 1, p + 1))
    a("s_mov_b32 s%d, %s" % (d + 2, size if isinstance(size, str) else "%d" % size))
    a("s_mov_b32 s%d, 0x00020000" % (d + 3))


def kind(t):
    mn = t.split(None, 1)[0]
    if mn.startswith("s_") or mn == "WAIT":
        return 's'
    if mn.startswith("ds_"):
        return 'r'
    if mn.startswith("buffer_") or mn.startswith("global_"):
        return 'd'
    if mn.startswith(("v_exp", "v_rcp", "v_log")):
        return 'e'
    return 'c'


class Seg:
    def __init__(self, mf):
        self.mf = mf
        self.n = len(mf)
        self.pre = []
        self.sc = [[] for _ in mf]
        self.d = [[] for _ in mf]
        self.r = [[] for _ in mf]
        self.c = [[] for _ in mf]
        self.end = [[] for _ in mf]
        self.used = [0] * self.n

    def room(self, g, k):
        if k == 's':
            return len(self.sc[g]) == 0 or self.used[g] <= 4
        if k == 'e':
            return self.used[g] == 0
        if k == 'd':
            return self.used[g] <= 4 and not self.d[g] and not any(kind(x) == 'e' for x in self.c[g])
        return self.used[g] <= 4

    def put(self, g, t):
        k = kind(t)
        if k == 's':
            nl = t.count("\n") + 1
            self.used[g] += 4 * (nl - (0 if self.sc[g] else 1))
            self.sc[g].append(t)
        elif k == 'd':
            self.d[g].append(t)
            self.used[g] += 4
        elif k == 'r':
            self.r[g].append(t)
            self.used[g] += 4
        else:
            self.c[g].append(t)
            self.used[g] += 8 if k == 'e' else 4
        return g

    def place(self, t, want, lo=0, hi=None):
        hi = self.n - 1 if hi is None else min(hi, self.n - 1)
        want = max(lo, min(want, hi))
        k = kind(t)
        for g in range(want, hi + 1):
            if self.room(g, k):
                return self.put(g, t)
        for g in range(want - 1, lo - 1, -1):
            if self.room(g, k):
                return self.put(g, t)
        g = min(range(lo, hi + 1), key=lambda q: (self.used[q], abs(q - want)))
        return self.put(g, t)

    def stream(self, items, g0, g1, strict=False):
        out = []
        n = len(items)
        last = g0
        for i, t in enumerate(items):
            want = g0 + (i * (g1 - g0 + 1)) // n
            g = self.place(t, max(want, last), lo=last, hi=g1 if strict else None)
            last = g
            out.append(g)
        return out

    def lines(self):
        L = list(self.pre)
        for g in range(self.n):
            L.append(self.mf[g])
            for t in self.sc[g] + self.d[g] + self.r[g] + self.c[g] + self.end[g]:
                L += t.split("\n")
        return L

    def cost(self):
        return sum(16 + max(0, self.used[g] - 8) + (4 if self.d[g] else 0) for g in range(self.n))


def resolve_waits(lines, pend):
    out = []
    pend = list(pend)
    later = set(t.split("@")[1].strip() for t in lines if t.startswith("ds_") and "@" in t)
    for t in lines:
        if t.startswith("ds_") and "@" in t:
            later.discard(t.split("@")[1].strip())
        if t.startswith("WAIT"):
            assert t.split()[1] not in later, "wait before its read: " + t
            parts = t.split()
            tag = parts[1]
            extra = " ".join(parts[2:])
            if tag == '*':
                n = 0
            elif tag in pend:
                n = len(pend) - 1 - pend.index(tag)
            else:
                n = None
            if n is None:
                if extra:
                    out.append("s_waitcnt " + extra)
                continue
            assert n <= 15, (n, tag)
            pend = pend[len(pend) - n:] if n else []
            out.append(("s_waitcnt %s lgkmcnt(%d)" % (extra, n)).replace("  ", " "))
            continue
        if t.startswith("ds_"):
            pend.append(t.split("@")[1].strip() if "@" in t else "?")
        out.append(t)
    return out, pend


def kdesc(name, nv, acc, ns=102):
    return """.p2align 6
.amdhsa_kernel %s
  .amdhsa_next_free_vgpr %d
  .amdhsa_next_free_sgpr %d
  .amdhsa_accum_offset %d
  .amdhsa_group_segment_fixed_size 0
  .amdhsa_kernarg_size 96
  .amdhsa_user_sgpr_count 2
  .amdhsa_user_sgpr_kernarg_segment_ptr 1
  .amdhsa_system_sgpr_workgroup_id_x 1
.end_amdhsa_kernel
""" % (name, nv, ns, acc)


def kstart(name):
    return ".globl %s\n.p2align 8\n.type %s,@function\n%s:\n" % (name, name, name)


class Stamps:
    def __init__(self, on, kern):
        self.on, self.kern, self.k = on, kern, 0

    def __call__(self, a):
        if not self.on:
            return
        k = self.k
        self.k += 1
        assert k < 32
        a("s_memrealtime s[100:101]")
        a("s_waitcnt lgkmcnt(0)")
        a("v_writelane_b32 v15, s100, %d" % (2 * k))
        a("s_memtime s[100:101]")
        a("s_waitcnt lgkmcnt(0)")
        a("v_writelane_b32 v15, s100, %d" % (2 * k + 1))

    def flush(self, a):
        if not self.on:
            return
        L = a.newlabel("Lst")
        a("s_cmp_lg_u32 s%d, 0" % S_WAVE)
        a("s_cbranch_scc1 %s" % L)
        srd(a, 16, P_WS, 1 * MB, WS_DBG + self.kern * 65536)
        a("s_lshl_b32 s4, s2, 8")
        a("v_mbcnt_lo_u32_b32 v14, -1, 0")
        a("v_mbcnt_hi_u32_b32 v14, -1, v14")
        a("v_lshlrev_b32 v14, 2, v14")
        a("buffer_store_dword v15, v14, s[16:19], s4 offen")
        if os.environ.get("DBGWG"):
            a("s_cmp_lg_u32 s2, %s" % os.environ["DBGWG"])
            a("s_cbranch_scc1 %s" % L)
            srd(a, 16, P_DBG, 256)
            sel = [int(x) for x in os.environ.get("DBGSEL", "0,1,2,3,4,5,6,8,11,12,13,15,16,20").split(",")]
            a("v_readlane_b32 s5, v15, 0")
            for i, k in enumerate(sel):
                a("v_readlane_b32 s4, v15, %d" % (2 * k))
                a("s_sub_u32 s4, s4, s5")
                a("v_mov_b32 v14, s4")
                a("buffer_store_dword v14, off, s[16:19], 0 offset:%d" % (8 + 4 * i))
        a.label(L)


class Col(list):
    def __call__(self, t):
        self.extend(x.strip() for x in t.split("\n") if x.strip())


def signal(a, vt, soffs):
    a("v_mov_b32 v%d, 0x40000000" % (vt + 2))
    a("v_mov_b32 v%d, s%d" % (vt, S_TAG))
    a("v_cmp_eq_u32 vcc, 0, v0")
    a("v_mov_b32 v%d, s%d" % (vt + 1, S_TAG + 1))
    a("v_cndmask_b32_e64 v%d, v%d, 0, vcc" % (vt + 2, vt + 2))
    for o in soffs:
        a("buffer_store_dwordx2 v[%d:%d], v%d, s[%d:%d], %s offen sc1 ; @signal" % (vt, vt + 1, vt + 2, S_FLG, S_FLG + 3, o))


def flag_addr(va):
    return ["v_and_b32 v%d, 15, v1" % va, "v_lshlrev_b32 v%d, 7, v%d" % (va, va)]


def flag_load(dst, soff, va=None):
    if va is None:
        return "buffer_load_dwordx2 v[%d:%d], off, s[%d:%d], %s sc1" % (dst, dst + 1, S_FLG, S_FLG + 3, soff)
    return "buffer_load_dwordx2 v[%d:%d], v%d, s[%d:%d], %s offen sc1" % (dst, dst + 1, va, S_FLG, S_FLG + 3, soff)


def tag_make(a, part, younger=0):
    L = a.newlabel("Ltag")
    a("s_or_b32 s4, s2, s%d" % S_WAVE)
    a("s_cbranch_scc1 %s" % L)
    a("s_mov_b32 s4, %d" % F_EPOCH)
    if part == 0:
        a(flag_load(4, "s4"))
    else:
        srd(a, 16, P_DBG, 256)
        a("s_waitcnt vmcnt(%d)" % younger)
        a("v_add_u32 v4, 1, v4")
        a("v_or_b32 v5, 0x80000000, v5")
        a("buffer_store_dwordx2 v[4:5], off, s[%d:%d], s4 sc1" % (S_FLG, S_FLG + 3))
        a("buffer_store_dwordx2 v[4:5], off, s[16:19], 0 sc1")
    a.label(L)


def tag_load(a, dst):
    srd(a, 16, P_DBG, 256)
    a("buffer_load_dwordx2 v[%d:%d], off, s[16:19], 0 sc1" % (dst, dst + 1))


def tag_get(a, dst):
    L, D = a.newlabel("Ltg"), a.newlabel("Lpolld")
    a("s_mov_b32 s5, 0x40000")
    a.label(L)
    a("v_readfirstlane_b32 s%d, v%d" % (S_TAG, dst))
    a("v_readfirstlane_b32 s%d, v%d" % (S_TAG + 1, dst + 1))
    a("s_cmp_lg_u32 s%d, 0" % (S_TAG + 1))
    a("s_cbranch_scc1 %s" % D)
    a("s_sleep 4")
    tag_load(a, dst)
    a("s_sub_u32 s5, s5, 1")
    a("s_waitcnt vmcnt(0)")
    a("s_cbranch_scc0 %s ; @poll" % L)
    a.label(D)


class VmQ:
    def __init__(self):
        self.q = []

    def push(self, tag, n):
        self.q += [tag] * n

    def need(self, *tags):
        idx = max([i for i, t in enumerate(self.q) if t in tags], default=-1)
        n = len(self.q) - 1 - idx
        self.q = self.q[idx + 1:]
        return n


def flag_check(a, dst, soff, va=None):
    L, D = a.newlabel("Lpoll"), a.newlabel("Lpolld")
    a("s_mov_b32 s5, 0x40000")
    a.label(L)
    a("v_cmp_ne_u64 vcc, s[%d:%d], v[%d:%d]" % (S_TAG, S_TAG + 1, dst, dst + 1))
    a("s_cbranch_vccz %s" % D)
    a("s_sleep 4")
    a(flag_load(dst, soff, va))
    a("s_sub_u32 s5, s5, 1")
    a("s_waitcnt vmcnt(0)")
    a("s_cbranch_scc0 %s ; @poll" % L)
    a.label(D)
```

```python
from lib import *
from gemm4 import *
import proj4, bfront, attn4, oproj

MFL = set(os.environ.get("MFLAGS", "").split(","))


def gen(stamp=False):
    a = Asm()
    st = Stamps(stamp, 0)
    a("s_cmp_ge_u32 s2, 256")
    a("s_cbranch_scc1 Lend")
    a("s_load_dwordx16 s[64:79], s[0:1], 0")
    a("s_load_dwordx8 s[80:87], s[0:1], 64")
    a("v_lshrrev_b32 v2, 6, v0")
    a("v_and_b32 v1, 63, v0")
    a("v_readfirstlane_b32 s%d, v2" % S_WAVE)
    a("v_lshlrev_b32 v2, 4, v1")
    if 'ipf' in MFL:
        a("s_getpc_b64 s[6:7]")
        a("s_lshr_b32 s4, s2, 3")
        a("s_lshl_b32 s4, s4, 2")
        a("s_add_u32 s4, s4, s%d" % S_WAVE)
        a("s_min_u32 s4, s4, CODE_KB")
        a("s_lshl_b32 s4, s4, 10")
        a("v_add_u32 v3, s4, v2")
        a("global_load_dwordx4 v[4:7], v3, s[6:7]")
    st(a)
    gk, gv = proj4.make('wx'), proj4.make('xw')
    b0, b1 = bfront.make(0), bfront.make(1)
    proj4.setup(a, gk)
    srd(a, S_FLG, P_WS, 0x40000, WS_FLG)
    if 'inv' in MFL:
        a("buffer_inv sc1")
    tag_make(a, 0)
    for x in gk.prologue_items():
        a(x)
    tag_make(a, 1, 40)
    proj4.read_bases(a, gk)
    proj4.pf_setup(a)
    bfront.setup(a, b0)
    oproj.lanes(a, 28)
    gk.init(a)
    st(a)
    gk.pro(a, 24)
    a("s_cmp_lt_u32 s2, 128")
    a("s_cselect_b32 s%d, 13, 7" % gk.sCnt)
    gk.loop(a, 8)
    a("s_cmp_lt_u32 s2, 128")
    a("s_cbranch_scc1 Lp1_qt")

    def p1_end(g, kind_):
        W = g.group_items(g.dma[0]) + g.group_items(g.dma[1])
        g.iter(a, 8, W + bfront.xsrd() + bfront.stage_items(a, b0, 0, 'x'))
        g.iter(a, 4, bfront.stage_items(a, b0, 0, 'w') + bfront.stage_items(a, b0, 1, 'xw'), adv=False)
        tag_load(a, 30)
        g.tail(a, bfront.stage_items(a, b0, 2, 'xw'))
        st(a)
        proj4.epilogue(a, kind_)
    gk.bar(a, 8)
    gk.half(a, 1, dma=gk.dma_items())
    st(a)
    proj4.epilogue(a, 'k')
    a("s_waitcnt lgkmcnt(0)")
    st(a)
    gv.half(a, 0, first=True, adv=True)
    gv.iter(a, 40, gv.pf + gv.dma_items())
    a("s_mov_b32 s%d, 4" % gv.sCnt)
    gv.loop(a, 8)
    p1_end(gv, 'v')
    a("s_branch Lp2")
    a.label("Lp1_qt")
    if st.on:
        st.k -= 3
    st(a)
    st(a)
    p1_end(gk, 'q')
    a.label("Lp2")
    st(a)
    b0.init(a)
    a("s_lshl_b32 s34, s%d, 4" % proj4.sN0)
    a("s_add_u32 s34, s34, s%d" % proj4.sM0)
    a("s_lshr_b32 s4, s2, 7")
    a("s_lshl_b32 s4, s4, 3")
    a("s_add_u32 s34, s34, s4")
    a("s_lshl_b32 s34, s34, 7")
    a("s_cmp_ge_u32 s%d, 2" % S_WAVE)
    a("s_cbranch_scc1 Lp2_r1")
    k0 = st.k
    for rh, g in enumerate((b0, b1)):
        if rh:
            a.label("Lp2_r1")
        n = 10 if rh else 11
        g.pro(a, 2 * n + 32)
        g.iter(a, n + 32, g.dma_items())
        g.iter(a, n + 32, g.dma_items())
        g.iter(a, n, g.dma_items(), after_bar=lambda: (tag_get(a, 30), signal(a, 28, ["s34"])))
        a("s_mov_b32 s%d, 10" % g.sCnt)
        g.loop(a, n)

        def ids():
            attn4.ids(a)
            a("s_lshr_b32 s34, s%d, 1" % attn4.sHead)
            a("s_lshl_b32 s34, s34, 11")
            for x in flag_addr(3):
                a(x)
        g.iter(a, n, [flag_load(4, "s34", 3)], after_bar=ids)

        def go():
            flag_check(a, 4, "s34", 3)
            attn4.kv_setup(a)
            attn4.q_setup(a)
        it = attn4.kv_prologue_items(True, 0)
        cut = [i for i, x in enumerate(it) if "m0" in x][1]
        g.iter(a, 0, it[:cut], after_bar=go, adv=False)
        g.tail(a, it[cut:])
        st(a)
        bfront.local_attn(a, rh)
        if not rh:
            a("s_branch Lp5")
            st.k = k0
    a.label("Lp5")
    a("s_lshl_b32 s91, s%d, 4" % bfront.sRb)
    a("s_add_u32 s91, s91, s%d" % bfront.sHp)
    a("s_lshl_b32 s91, s91, 7")
    a("s_add_u32 s91, s91, %d" % F_OB)
    oproj.ids(a)
    st(a)
    g6, g7 = oproj.make("p6", oproj.AB), oproj.make("p7", oproj.AA)

    class H:
        pre = 4

        @staticmethod
        def after_d2():
            signal(a, attn4.vT, ["s91"])
            a("s_lshl_b32 s91, s%d, 11" % oproj.sRb)
            a("s_add_u32 s91, s91, %d" % F_OB)
            for x in flag_addr(14):
                a(x)

        @staticmethod
        def pre_e1():
            return [flag_load(12, "s91", 14)]

        @staticmethod
        def at_e1():
            flag_check(a, 12, "s91", 14)
            for j in range(4):
                a("v_accvgpr_read_b32 v%d, a%d" % (oproj.wv + j, oproj.aSave + j))
            for x in oproj.job_w(False) + oproj.job_x(False):
                a(x)

        @staticmethod
        def e1_items():
            return oproj.stage_items(g6, 0, 'wx') + oproj.stage_items(g6, 1, 'wx')

        @staticmethod
        def e2_items():
            return oproj.stage_items(g6, 2, 'wx')
    attn4.attention(a, st, H)
    st(a)
    q = VmQ()
    for s in range(3):
        q.push(s, 8)
    q.push('ctx', 8)
    oproj.read_bases(a, 4)
    g6.init(a, start=4)
    g6.pro(a, q.need(0), dma=oproj.stage_items(g6, 3, 'wx') + oproj.stage_items(g6, 4, 'wx'))
    q.push(3, 8)
    q.push(4, 8)

    def sig_ctx():
        a("s_lshl_b32 s4, s%d, 7" % attn4.sHead)
        a("s_lshl_b32 s5, s%d, 12" % attn4.sPair)
        a("s_add_u32 s6, s4, %d" % F_CTX)
        a("s_add_u32 s7, s6, %d" % (15 << 12))
        a("s_add_u32 s6, s6, s5")
        a("s_sub_u32 s7, s7, s5")
        signal(a, 6, ["s6", "s7"])
        a("s_lshl_b32 s91, s%d, 1" % oproj.sRb)
        a("s_add_u32 s91, s91, s%d" % oproj.sKh)
        a("s_lshl_b32 s91, s91, 11")
        a("s_add_u32 s91, s91, %d" % F_CTX)
    for s in range(1, 8):
        N = q.need(1, 'ctx') if s == 1 else q.need(s)
        if s == 1:
            q.push('sig', 2)
        if s <= 3:
            it = g6.dma_items()
            q.push(s + 4, 8)
        else:
            it = (oproj.job_w(True) if s == 4 else []) + g6.group_items(g6.dma[0])
            q.push(('w', s + 4), 4)
        if s == 7:
            it += [flag_load(6, "s91", 14)]
        g6.iter(a, N, it, after_bar=sig_ctx if s == 1 else None)
    a("s_waitcnt vmcnt(0) lgkmcnt(0)")
    a("s_barrier")
    st(a)
    flag_check(a, 6, "s91", 14)
    st(a)
    for x in oproj.job_x(True):
        a(x)
    it = []
    for s in range(8, 13):
        it += oproj.stage_items(g7, s, 'x' if s < 12 else 'wx')
    g6.half(a, 1, rd=False, dma=it)
    oproj.xch_srd(a)
    oproj.send(a, oproj.AB, False)
    st(a)
    a("s_waitcnt vmcnt(28)")
    a("s_barrier")
    for x in g7.reads(0):
        a(x)
    a("s_waitcnt lgkmcnt(0)")
    g7.half(a, 0, first=True, adv=True)
    g7.iter(a, 24, g7.dma_items())
    a("s_mov_b32 s%d, 26" % g7.sCnt)
    g7.loop(a, 24)

    def sig_b():
        oproj.flag_pos(a, False, True, 6)
        signal(a, 6, ["s6"])
        oproj.flag_pos(a, False, False, 90)
    g7.iter(a, 24, after_bar=sig_b)
    g7.iter(a, 17)
    g7.iter(a, 9, [flag_load(6, "s90")])
    g7.iter(a, 0, oproj.recv_items(False), adv=False, after_bar=lambda: flag_check(a, 6, "s90"))
    g7.tail(a, bar=False)
    st(a)
    oproj.send(a, oproj.AA, True)
    oproj.out_setup(a)
    a("s_waitcnt vmcnt(8)")
    oproj.finish(a, oproj.AB, False)
    oproj.flag_pos(a, True, True, 6)
    oproj.flag_pos(a, True, False, 90)
    a("s_waitcnt vmcnt(4)")
    a("s_barrier")
    signal(a, 6, ["s6"])
    a(flag_load(4, "s90"))
    a("s_waitcnt vmcnt(0)")
    st(a)
    flag_check(a, 4, "s90")
    st(a)
    for x in oproj.recv_items(True):
        a(x)
    a("s_waitcnt vmcnt(0)")
    oproj.finish(a, oproj.AA, True)
    st(a)
    if stamp:
        a("s_waitcnt vmcnt(0)")
    st(a)
    st.flush(a)
    a.label("Lend")
    a("s_endpgm")
    t = a.finish()
    return t.replace("CODE_KB", os.environ.get("CODE_KB", "70"))
```

```python
from lib import *
from gemm4 import *

FL = set(os.environ.get("AFLAGS", "").split(","))
THR = float(os.environ.get("LTHR", 2.0 ** 64))
AH = int(os.environ.get("AH", 11))
WG_ = int(os.environ.get("WGRP", 8))

vLane, vL16, vK, vV, vNEG = 1, 2, 3, 4, 5
vT = 6
vNM = 16
vP = 32
vS = 64
vO = 128
aF = 0
aQ = 128
aL = 192
aOne = 208
sHead, sPair = 24, 25
sKV = 20
sCtx = 16
sKm, sVm, sKo, sVo = 26, 27, 28, 29
sMa, sMb, sCnt, sFail = 30, 31, 88, 89
sMask = 32
sT0, sT1 = 4, 5
CST = (128 ** -0.5) * math.log2(math.e)


def Oreg(g, db):
    return ('v', vO + 4 * (8 * g + db))


def Qreg(g, ds):
    return ('a', aQ + 4 * (4 * g + ds))


def ids(a):
    a("s_and_b32 s%d, s2, 7" % sHead)
    a("s_lshr_b32 s4, s2, 6")
    a("s_lshl_b32 s4, s4, 3")
    a("s_add_u32 s%d, s%d, s4" % (sHead, sHead))
    a("s_lshr_b32 s%d, s2, 3" % sPair)
    a("s_and_b32 s%d, s%d, 7" % (sPair, sPair))


def kv_dma(which):
    m, o = (sKm, sKo) if which == 'K' else (sVm, sVo)
    return ["s_mov_b32 m0, s%d" % m] + \
           ["buffer_load_dwordx4 v%d, s[%d:%d], s%d offen offset:%d%s lds" % (vL16, sKV, sKV + 3, o, 1024 * j, SC1L) for j in range(4)]


def gray_mask(t):
    return 0x4000 if t % 2 == 0 else 0x8000


def kv_setup(a):
    a("s_lshl_b32 s4, s%d, 20" % sHead)
    a("s_lshl_b32 s5, s%d, 16" % sPair)
    a("s_sub_u32 s5, %d, s5" % (32 * 32768))
    srd(a, sKV, P_WS, "s5", WS_KV, 4)
    a("s_lshl_b32 s%d, s%d, 12" % (sKo, S_WAVE))
    a("s_add_u32 s%d, s%d, 0xc000" % (sKm, sKo))
    a("s_add_u32 s%d, s%d, 0x10000" % (sVm, sKo))
    a("s_add_u32 s%d, s%d, 0x4000" % (sVo, sKo))


NPF = 0 if 'nopf' in FL else 10


def pf_setup(a):
    a("s_lshl_b32 s4, s2, 2")
    a("s_add_u32 s4, s4, s%d" % S_WAVE)
    a("s_lshl_b32 s6, s4, 13")
    a("s_lshl_b32 s7, s4, 11")
    srd(a, 8, P_WO, 8 * MB)
    srd(a, 12, P_BWO, 2 * MB)


def pf_items():
    L = []
    for i in range(8):
        if i == 4:
            L.append("s_add_u32 s6, s6, 4096")
        L.append("buffer_load_dwordx4 a[64:67], v%d, s[8:11], s6 offen offset:%d ; @dummy" % (vL16, (i % 4) * 1024))
    for i in range(2):
        L.append("buffer_load_dwordx4 a[64:67], v%d, s[12:15], s7 offen offset:%d ; @dummy" % (vL16, i * 1024))
    return L if NPF else []


def kv_prologue_items(part=None):
    L = []
    tk = tv = 0
    for i, w in enumerate("KKVKVKV"):
        if i == 3 and part is not None:
            if part == 0:
                return L
            L = []
        L += kv_dma(w)
        if w == 'K':
            L += ["s_xor_b32 s%d, s%d, 0x%x" % (sKm, sKm, gray_mask(tk)), "s_add_u32 s%d, s%d, 0x8000" % (sKo, sKo)]
            tk += 1
        else:
            L += ["s_xor_b32 s%d, s%d, 0x%x" % (sVm, sVm, gray_mask(tv)), "s_add_u32 s%d, s%d, 0x8000" % (sVo, sVo)]
            tv += 1
    return L


def qk_frags(kindq, half, sb):
    F = []
    if kindq is None:
        return F
    dbl = kindq[0] == 'D'
    gs = [0, 1, 2, 3] if dbl else [2, 3]
    if kindq.endswith("'"):
        gs = gs[1:]
    c0 = kindq.endswith("0")
    for jb in range(2 if dbl else 4):
        for ds in range(4):
            ms = []
            for g in gs:
                blk = (2 * g + jb) if dbl else (2 * (2 * (jb >> 1) + g - 2) + (jb & 1))
                ms.append((('v', sb + 4 * blk), Qreg(g, ds), ("0" if c0 else ('v', vNM + 4 * g)) if ds == 0 else None))
            F.append(('K', ((2 * half + jb) if dbl else jb) * 4096 + ds * 1024, ms))
    return F


def pv_frags(kindp, half, pb):
    F = []
    if kindp is None:
        return F, []
    dbl = kindp[0] == 'D'
    gs = [0, 1, 2, 3] if dbl else [2, 3]
    if kindp.endswith("'"):
        gs = gs[1:]
    sums = []
    for kc in range(1 if dbl else 2):
        for g in gs:
            pi = g if dbl else 2 * kc + g - 2
            sums.append(mfma(('a', aL + 4 * g), ('a', aOne), ('v', pb + 4 * pi)))
        for db in range(8):
            ms = [(Oreg(g, db), ('v', pb + 4 * (g if dbl else 2 * kc + g - 2)), None) for g in gs]
            F.append(('V', (half if dbl else kc) * 8192 + db * 1024, ms))
    return F, sums


def sm_items(sm, sb, pb):
    out = []
    if sm is None:
        return out
    for i in range(4):
        masks = []
        if sm != 'p':
            if sm[0] == 'D':
                gq, jbs = i, [2 * sm[1], 2 * sm[1] + 1]
                lvl = sm[1] >> 1
                if i >= 2:
                    gq = 99
            else:
                gq, jbs = i & 1, [4 * sm[1] + 2 * (i >> 1), 4 * sm[1] + 2 * (i >> 1) + 1]
                lvl = sm[1]
            if lvl > gq:
                continue
            if lvl == gq:
                for e, j16 in enumerate(jbs):
                    for r in range(4):
                        x = sb + 8 * i + 4 * e + r
                        m = sMask + 2 * (4 * (j16 & 3) + r)
                        masks.append((x, "v_cndmask_b32 v%d, v%d, v%d, s[%d:%d]" % (x, x, vNEG, m, m + 1)))
        exps = ["v_exp_f32 v%d, v%d" % (sb + 8 * i + e, sb + 8 * i + e) for e in range(8)]
        cvts = ["v_cvt_pk_bf16_f32 v%d, v%d, v%d" % (pb + 4 * i + e, sb + 8 * i + 2 * e, sb + 8 * i + 2 * e + 1) for e in range(4)]
        out.append((dict(masks), exps, cvts))
    return out


class Rnd:
    def __init__(self, par, qk, sm, pv, bar=False, issK=None, issV=None, togK=None, togV=None, togVpre=None):
        self.par, self.qk, self.sm, self.pv, self.bar = par, qk, sm, pv, bar
        self.issK, self.issV, self.togK, self.togV, self.togVpre = issK, issV, togK, togV, togVpre
        self.vm = None
        self.xdma = []
        self.xq = []
        self.after_bar = None

    def frags(self):
        par = self.par
        Fq = qk_frags(self.qk, par ^ 1, vS + 32 * (par ^ 1))
        Fp, sums = pv_frags(self.pv, par ^ 1, vP + 16 * (par ^ 1))
        return Fq, Fp, sums


def fread(ring, off, slot, tag):
    return "ds_read_b128 %s, v%d offset:%d ; @%s" % (a4(aF + 4 * (slot % 16)), vK if ring == 'K' else vV, off, tag)


def tog(reg, m):
    return "v_xor_b32 v%d, %s, v%d" % (reg, m, reg)


def emit_round(a, R, nxt, ph, pend, extra_scal=None):
    Fq, Fp, sums = R.frags()
    F = Fq + Fp
    nF = len(F)
    Fn = []
    if nxt is not None:
        q, p, _ = nxt.frags()
        Fn = (q + p)[:AH]
    mf = []
    first = []
    si = 0
    for i, (ring, off, ms) in enumerate(F):
        first.append(len(mf))
        for d, b, c in ms:
            mf.append(mfma(d, ('a', aF + 4 * ((ph + i) % 16)), b, c))
        if ring == 'V' and si < len(sums):
            per = len(sums) * 8 // len(Fp)
            k = i - len(Fq)
            if (k % 8) < per:
                mf.append(sums[si])
                si += 1
    assert si == len(sums)
    sg = Seg(mf)
    n = sg.n
    if R.bar:
        sg.pre.append("s_waitcnt vmcnt(%d)" % R.vm)
        sg.pre.append("s_barrier")
        sg.pre.append("AFTERBAR")
    grp = 4 if len(F[0][2]) >= 3 else WG_
    i = 0
    dead = {}
    while i < nF:
        gsz = 4 if len(F[i][2]) != 2 else WG_
        j = min(nF - 1, i + gsz - 1, i + AH - 3)
        for x in range(i, j + 1):
            dead[x] = first[i] - 2
        w = "WAIT f%d" % (ph + j)
        if first[i] == 0:
            sg.pre.append(w)
        else:
            sg.put(first[i] - 1, w)
        i = j + 1
    SM = sm_items(R.sm, vS + 32 * R.par, vP + 16 * R.par)
    nexp = 8 * len(SM)
    eg = []
    if nexp:
        last = 0
        k = 0
        for masks, exps, cvts in SM:
            for e, x in enumerate(exps):
                want = (k * (n - 2)) // nexp
                reg = int(x.split()[1][1:-1])
                want = max(want, last)
                if reg in masks:
                    want = max(want, 1)
                g = sg.place(x, want, lo=last)
                eg.append(g)
                last = g
                k += 1
    items = list(R.xdma)
    if R.issK is not None:
        items += kv_dma('K') + ["s_xor_b32 s%d, s%d, %s" % (sKm, sKm, R.issK), "s_add_u32 s%d, s%d, 0x8000" % (sKo, sKo)]
    if R.issV is not None:
        items += kv_dma('V') + ["s_xor_b32 s%d, s%d, %s" % (sVm, sVm, R.issV), "s_add_u32 s%d, s%d, 0x8000" % (sVo, sVo)]
    if 'nodma' in FL:
        items = [x for x in items if kind(x) != 'd']
    if items:
        place_dma(sg, items, 0, n - 3) if any(kind(x) == 'd' for x in items) else [sg.place(x, 0) for x in items]
    last = 0
    seq = [(j, F[j], False) for j in range(min(AH, nF), nF)] + [(nF + j, f, True) for j, f in enumerate(Fn)]
    prevK = prevV = False
    doneTK = doneTV = doneTVp = False
    lastV = max([j for j, f, nx in seq if f[0] == 'V' and not nx], default=-1)
    for j, f, nx in seq:
        src = j - AH
        want = first[src] if src < nF else n - 1
        lo = last
        if j - 16 >= 0:
            lo = max(lo, (first[j - 15] - 1) if j - 15 < nF else n - 1)
        tg = None
        if f[0] == 'K' and nx and R.togK and not doneTK:
            tg, doneTK = tog(vK, R.togK), True
        if f[0] == 'V' and nx and R.togV and not doneTV:
            tg, doneTV = tog(vV, R.togV), True
        if tg:
            g = sg.place(tg, max(lo, want - 1), lo=lo)
            lo = min(n - 1, g + 1)
            if g == n - 1:
                sg.end[g].append(fread(f[0], f[1], ph + j, "f%d" % (ph + j)))
                last = g
                continue
        if sg.end[last] and any(x.startswith("ds_") for x in sg.end[last]):
            sg.end[last].append(fread(f[0], f[1], ph + j, "f%d" % (ph + j)))
            continue
        hi = dead.get(j)
        assert hi is None or hi >= lo, (j, lo, hi)
        g = sg.place(fread(f[0], f[1], ph + j, "f%d" % (ph + j)), max(want, lo), lo=lo, hi=hi)
        last = g
        if j == lastV and R.togV and not doneTV and not any(x[1][0] == 'V' and x[2] for x in seq):
            doneTV = True
            sg.place(tog(vV, R.togV), g, lo=g)
    if R.togV and not doneTV:
        sg.place(tog(vV, R.togV), 0)
    assert not (R.togK and not doneTK and nxt is not None and nxt.qk), "togK unused"
    k = 0
    for masks, exps, cvts in SM:
        for e, x in enumerate(exps):
            reg = int(x.split()[1][1:-1])
            if reg in masks:
                g = eg[k + e]
                q = g - 1
                while q >= 0 and not sg.room(q, 'c'):
                    q -= 1
                if q < 0:
                    sg.c[g].insert(0, masks[reg])
                    sg.used[g] += 4
                else:
                    sg.put(q, masks[reg])
        for e, x in enumerate(cvts):
            g = eg[k + 2 * e + 1]
            if g + 1 <= n - 1:
                sg.place(x, g + 1, lo=g + 1)
            else:
                sg.end[n - 1].append(x)
        k += 8
    for x in (extra_scal or []):
        if x.startswith("s_cmp"):
            sg.end[n - 1].append(x)
        else:
            sg.place(x, n // 2)
    L, pend = resolve_waits(sg.lines(), pend)
    for x in L:
        if x == "AFTERBAR":
            if R.after_bar:
                R.after_bar()
            continue
        a(x)
    nph = (ph + nF) % 16
    pend = ["f%d" % (int(t[1:]) - (ph + nF) + nph) for t in pend]
    R.cost = sg.cost()
    return nph, pend


def ctx_base(a, srow):
    a("s_lshl_b32 s4, s%d, 20" % srow)
    a("s_lshl_b32 s5, s%d, 15" % sHead)
    a("s_add_u32 s4, s4, s5")
    a("s_lshl_b32 s5, s%d, 11" % S_WAVE)
    a("s_add_u32 s4, s4, s5")


def epilogue(a, gs, srow):
    ctx_base(a, srow)
    for k, g in enumerate(gs):
        a("v_accvgpr_read_b32 v%d, a%d" % (vT + 2 * k, aL + 4 * g))
    a("s_mov_b32 s5, 0x%08x" % f32bits(THR))
    for k, g in enumerate(gs):
        a("v_cmp_ngt_f32 vcc, s5, v%d" % (vT + 2 * k))
        a("v_rcp_f32 v%d, v%d" % (vT + 2 * k, vT + 2 * k))
        a("s_or_b32 s%d, s%d, vcc_lo" % (sFail, sFail))
        a("s_or_b32 s%d, s%d, vcc_hi" % (sFail, sFail))
        a("v_mov_b32 v%d, v%d" % (vT + 2 * k + 1, vT + 2 * k))
    store_O(a, gs)


def store_O(a, gs):
    for ds in range(4):
        for k, g in enumerate(gs):
            b = vO + 4 * (8 * g + 2 * ds)
            for e in range(0, 8, 2):
                a("v_pk_mul_f32 v[%d:%d], v[%d:%d], v[%d:%d]" % (b + e, b + e + 1, b + e, b + e + 1, vT + 2 * k, vT + 2 * k + 1))
            for e in range(4):
                a("v_cvt_pk_bf16_f32 v%d, v%d, v%d" % (b + e, b + 2 * e, b + 2 * e + 1))
            a("buffer_store_dwordx4 %s, v%d, s[%d:%d], s4 offen offset:%d%s" % (v4(b), vL16, sCtx, sCtx + 3, (g & 1) * 1024, SC1))
        if ds < 3:
            a("s_add_u32 s4, s4, 8192")


def rowmax(a, src, t0, t1):
    a("v_max3_f32 v%d, v%d, v%d, v%d" % (t0, src, src + 1, src + 2))
    a("v_max3_f32 v%d, v%d, v%d, v%d" % (t1, src + 3, src + 4, src + 5))
    a("v_max3_f32 v%d, v%d, v%d, v%d" % (t0, t0, src + 6, src + 7))
    a("v_max_f32 v%d, v%d, v%d" % (t0, t0, t1))


def xmax(a, pairs):
    for op in ("v_permlane32_swap_b32", "v_permlane16_swap_b32"):
        for t0, t1 in pairs:
            a("v_mov_b32 v%d, v%d" % (t1, t0))
        for t0, t1 in pairs:
            a("%s v%d, v%d" % (op, t0, t1))
        for t0, t1 in pairs:
            a("v_max_f32 v%d, v%d, v%d" % (t0, t0, t1))


def plan(p):
    pass


def build_rounds():
    g0, g1 = "0x4000", "0x8000"
    R = {}
    R['c0'] = Rnd(0, 'D', 'p', None, bar=True, togK=g0)
    R['lo'] = Rnd(1, 'D', 'p', 'D')
    R['le'] = Rnd(0, 'D', 'p', 'D', bar=True, issK="s%d" % sMb, issV="s%d" % sMa, togK="s%d" % sMa, togV="s%d" % sMb)
    R['d0'] = Rnd(0, 'D', ('D', 0), 'D', bar=True, issK=g1, issV=g0, togK=g0, togV=g1)
    R['d1'] = Rnd(1, "D'", ('D', 1), 'D')
    R['d2'] = Rnd(0, "D'", ('D', 2), 'D', bar=True, issK=g0, issV=g1, togK=g1, togV=g0)
    R['d3'] = Rnd(1, 'S', ('D', 3), "D'", bar=True, issK=g1, issV=g0, togK=g0)
    R['t0'] = Rnd(0, 'S', 'p', "D'", bar=True, issK=g0, togK=g1, togV=g1)
    R['t7'] = Rnd(0, "S'", ('S', 0), "D'", bar=True, togV=g1)
    R['so'] = Rnd(1, 'S', 'p', 'S', bar=True, issK=g1, issV=g1, togK=g0, togV=g0)
    R['se'] = Rnd(0, 'S', 'p', 'S', bar=True, issK=g0, issV=g0, togK=g1, togV=g1)
    R['e0'] = Rnd(0, "S'", ('S', 0), 'S', bar=True, togV=g1)
    R['e1'] = Rnd(1, None, ('S', 1), 'S', bar=True, togV=g0)
    R['e2'] = Rnd(0, None, None, "S'")
    R['c0'].xdma = kv_prologue_items(part=1)
    R['c0'].xq = [x for x in [('K', 2), ('V', 1), ('K', 3), ('V', 2)] for _ in range(4)]
    R['d1'].xdma = pf_items()
    R['d1'].xq = [('pf', 0)] * NPF
    return R


def path(p):
    seq = ['c0']
    if p:
        seq += ['lo', 'le'] * (2 * p - 1) + ['lo', 'd0']
    seq += ['d1', 'd2', 'd3']
    if p == 7:
        seq += ['t7', 'EPI']
    else:
        ns = 2 * (15 - 2 * p)
        seq += ['t0', 'EPI'] + ['so', 'se'] * ((ns - 4) // 2) + ['so', 'e0']
    seq += ['e1', 'e2']
    return seq


def simulate(R, q0):
    need = {}
    for p in range(8):
        seq = path(p)
        nd = 4 * p + 4
        ktile = lambda c: c // 2 if c < nd else nd // 2 + (c - nd)
        q = list(q0)
        nk, nv = 4, 3
        rounds = [k for k in seq if k != 'EPI']
        reads = []
        for c, k in enumerate(rounds):
            r = set()
            if R[k].qk:
                r.add(('K', ktile(c + 1)))
            if R[k].pv:
                r.add(('V', ktile(c - 1)))
            reads.append(r)
        full = []
        for c, k in enumerate(rounds):
            r = set(reads[c])
            if c + 1 < len(rounds):
                nx = R[rounds[c + 1]]
                fq, fp, _ = nx.frags()
                for f in (fq + fp)[:AH]:
                    r.add(('K', ktile(c + 2)) if f[0] == 'K' else ('V', ktile(c)))
            full.append(r)
        c = 0
        slotK = {}
        kaddr, vaddr = 0, 0
        for k in seq:
            if k == 'EPI':
                q += [('st', 0)] * 8
                continue
            r = R[k]
            if r.bar:
                e = c + 1
                while e < len(rounds) and not R[rounds[e]].bar:
                    e += 1
                req = set().union(*full[c:e])
                idx = max(i for i, x in enumerate(q) if x in req)
                assert all(x in q for x in req), (p, k, req)
                need[k] = min(need.get(k, 63), len(q) - 1 - idx)
                lastbar = c
            if k == 'e1':
                need[k] = 0
            q += r.xq
            if k == 'd2':
                pass
            for w, iss in (('K', r.issK), ('V', r.issV)):
                if iss is not None:
                    t = nk if w == 'K' else nv
                    for cc in range(lastbar, len(rounds)):
                        assert (w, t - 4) not in full[cc], (p, k, w, t)
                    if iss.startswith("0x"):
                        assert int(iss, 16) == gray_mask(t), (p, k, w, t)
                    q += [(w, t)] * 4
                    if w == 'K':
                        nk += 1
                    else:
                        nv += 1
            if r.qk:
                assert kaddr == ktile(c + 1), (p, k, kaddr)
            if r.pv:
                assert vaddr == ktile(c - 1), (p, k, vaddr, ktile(c - 1))
            if r.togK:
                if r.togK.startswith("0x"):
                    assert int(r.togK, 16) == gray_mask(kaddr), (p, k)
                kaddr += 1
            if r.togV:
                if r.togV.startswith("0x"):
                    assert int(r.togV, 16) == gray_mask(vaddr), (p, k)
                vaddr += 1
            c += 1
    for k, v in need.items():
        R[k].vm = v
    return need


def setup1(a):
    a("v_add_u32 v%d, 0xc000, v%d" % (vK, vL16))
    a("v_add_u32 v%d, 0x10000, v%d" % (vV, vL16))
    a("v_mov_b32 v%d, 0xf149f2ca" % vNEG)
    a("s_mov_b32 s%d, 0" % sFail)
    a("v_mov_b32 v%d, 0x3f803f80" % vT)
    for i in range(4):
        a("v_accvgpr_write_b32 a%d, v%d" % (aOne + i, vT))
    for i in range(16):
        a("v_accvgpr_write_b32 a%d, 0" % (aL + i))
    for i in range(128):
        a("v_mov_b32 v%d, 0" % (vO + i))


def setup2(a):
    if NPF:
        pf_setup(a)
    srd(a, sCtx, P_WS, 16 * MB, WS_CTX)
    a("v_and_b32 v%d, 15, v1" % vT)
    a("v_lshrrev_b32 v%d, 4, v1" % (vT + 1))
    a("v_sub_u32 v%d, v%d, v%d" % (vT, vT, vT + 1))
    a("v_lshlrev_b32 v%d, 2, v%d" % (vT, vT))
    a("v_add_u32 v%d, s%d, v%d" % (vT, S_WAVE, vT))
    for j in range(4):
        for r in range(4):
            m = sMask + 2 * (4 * j + r)
            a("v_cmp_gt_i32 s[%d:%d], %d, v%d" % (m, m + 1, 16 * j + r, vT))
    a("s_mov_b32 s%d, 0x8000" % sMa)
    a("s_mov_b32 s%d, 0x4000" % sMb)


def attention(a, st, H):
    R = build_rounds()
    for k in ('e0', 't7'):
        R[k].xdma, R[k].xq = H.pre_e1(), [('fl', 0)]
    R['e1'].xdma, R['e2'].xdma = H.e1_items(), H.e2_items()
    simulate(R, H.q0)
    setup2(a)
    a("s_waitcnt vmcnt(%d)" % (len(H.q0) - 1 - max(i for i, t in enumerate(H.q0) if t == ('K', 0))))
    a("s_barrier")
    st(a)
    P0 = Rnd(1, 'D0', None, None)
    fq = qk_frags('D0', 0, vS)
    L = [fread('K', fq[j][1], 8 + j, "f%d" % (8 + j)) for j in range(8)]
    c0q, c0p, _ = R['c0'].frags()
    nx = (c0q + c0p)[:AH]
    assert len(nx) == 8
    for j, (ring, off, ms) in enumerate(fq):
        if j % 2 == 0:
            L.append("WAIT f%d" % (9 + j))
        for d, b, c in ms:
            L.append(mfma(d, ('a', aF + 4 * (8 + j)), b, c))
        L.append(fread('K', nx[j][1], 16 + j, "f%d" % (16 + j)))
    L, pend = resolve_waits(L, [])
    for x in L:
        a(x)
    pend = ["f%d" % (int(t[1:]) - 16) for t in pend]
    a("s_cmp_lg_u32 s%d, 0" % sPair)
    a("s_cbranch_scc1 La_nomask0")
    for reg, x in sm_items(('D', 0), vS, vP)[0][0].items():
        a(x)
    a.label("La_nomask0")
    for g in range(4):
        rowmax(a, vS + 8 * g, vT + 2 * g, vT + 2 * g + 1)
    xmax(a, [(vT + 2 * g, vT + 2 * g + 1) for g in range(4)])
    for g in range(4):
        for r in range(4):
            a("v_sub_f32 v%d, 0, v%d" % (vNM + 4 * g + r, vT + 2 * g))
    for g in range(4):
        for e in range(0, 8, 2):
            b = vS + 8 * g + e
            a("v_pk_add_f32 v[%d:%d], v[%d:%d], v[%d:%d]" % (b, b + 1, b, b + 1, vNM + 4 * g, vNM + 4 * g + 1))
    state = {}

    def rnd(k, nk, ph, pend, extra=None):
        assert len(pend) <= 15
        return emit_round(a, R[k], R[nk] if nk else None, ph, pend, extra)

    def join(k, ph, pend):
        if k in state:
            assert state[k] == (ph, pend), (k, state[k], ph, pend)
        state[k] = (ph, list(pend))
    a("s_lshl_b32 s%d, s%d, 1" % (sCnt, sPair))
    ph, pend = rnd('c0', 'lo', 0, pend, ["s_cmp_eq_u32 s%d, 0" % sPair])
    join('lo', ph, pend)
    join('d1', ph, pend)
    a("s_cbranch_scc1 La_d1")
    a(".p2align 6")
    a.label("La_lo")
    ph, pend = rnd('lo', 'le', ph, pend, ["s_sub_u32 s%d, s%d, 1" % (sCnt, sCnt), "s_cmp_eq_u32 s%d, 0" % sCnt])
    join('d0', ph, pend)
    a("s_cbranch_scc1 La_d0")
    ph, pend = rnd('le', 'lo', ph, pend)
    a("s_xor_b32 s%d, s%d, 0xc000" % (sMa, sMa))
    a("s_xor_b32 s%d, s%d, 0xc000" % (sMb, sMb))
    join('lo', ph, pend)
    a("s_branch La_lo")
    a.label("La_d0")
    ph, pend = state['d0']
    ph, pend = rnd('d0', 'd1', ph, pend)
    join('d1', ph, pend)
    a.label("La_d1")
    ph, pend = rnd('d1', 'd2', ph, pend)
    ph, pend = rnd('d2', 'd3', ph, pend)
    H.after_d2()
    ph, pend = rnd('d3', 't0', ph, pend, ["s_cmp_eq_u32 s%d, 7" % sPair])
    join('t7', ph, pend)
    a("s_cbranch_scc1 La_t7")
    ph, pend = rnd('t0', 'so', ph, pend)
    st(a)
    epilogue(a, [0, 1], sPair)
    st(a)
    a("s_lshl_b32 s%d, s%d, 1" % (sCnt, sPair))
    a("s_sub_u32 s%d, 14, s%d" % (sCnt, sCnt))
    join('so', ph, pend)
    a(".p2align 6")
    a.label("La_so")
    ph, pend = rnd('so', 'se', ph, pend, ["s_sub_u32 s%d, s%d, 1" % (sCnt, sCnt), "s_cmp_eq_u32 s%d, 0" % sCnt])
    join('e0', ph, pend)
    a("s_cbranch_scc1 La_e0")
    ph, pend = rnd('se', 'so', ph, pend)
    join('so', ph, pend)
    a("s_branch La_so")
    a.label("La_t7")
    ph, pend = state['t7']
    ph, pend = rnd('t7', 'e1', ph, pend)
    if st.on:
        st.k -= 2
    st(a)
    epilogue(a, [0, 1], sPair)
    st(a)
    join('e1', ph, pend)
    a("s_branch La_e1")
    a.label("La_e0")
    ph, pend = state['e0']
    ph, pend = rnd('e0', 'e1', ph, pend)
    join('e1', ph, pend)
    a.label("La_e1")
    R['e1'].after_bar = H.at_e1
    ph, pend = rnd('e1', 'e2', ph, pend)
    ph, pend = rnd('e2', None, ph, pend)
    st(a)
    a("s_sub_u32 s%d, 15, s%d" % (sCnt, sPair))
    epilogue(a, [2, 3], sCnt)
    slow_path(a)
    if 'v' in FL:
        for k, r in R.items():
            print(k, "vm", r.vm, "cost", r.cost, file=sys.stderr)


def slow_path(a):
    vM, vLs, vD = vNM, vNM + 8, vNM + 4
    sRbk, sCh, sOff = 6, 7, 90
    a("s_cmp_eq_u32 s%d, 0" % sFail)
    a("s_cbranch_scc1 La_done")
    a("s_waitcnt vmcnt(0)")
    a("s_sub_u32 s%d, 15, s%d" % (sRbk, sPair))
    a.label("La_sl_blk")
    for i in range(64):
        a("v_mov_b32 v%d, 0" % (vO + 64 + i))
    for i in range(8):
        a("v_mov_b32 v%d, 0" % (vLs + i))
    a("v_mov_b32 v%d, v%d" % (vM, vNEG))
    a("v_mov_b32 v%d, v%d" % (vM + 1, vNEG))
    a("v_and_b32 v%d, 15, v1" % vD)
    a("v_lshrrev_b32 v%d, 4, v1" % (vD + 1))
    a("v_sub_u32 v%d, v%d, v%d" % (vD, vD, vD + 1))
    a("v_lshlrev_b32 v%d, 2, v%d" % (vD, vD))
    a("s_lshl_b32 s4, s%d, 7" % sRbk)
    a("s_add_u32 s4, s4, s%d" % S_WAVE)
    a("v_add_u32 v%d, s4, v%d" % (vD, vD))
    a("v_add_u32 v%d, 64, v%d" % (vD + 1, vD))
    a("s_add_u32 s%d, s%d, 1" % (sCh, sRbk))
    a("s_lshl_b32 s%d, s%d, 2" % (sCh, sCh))
    a("s_mov_b32 s%d, 0" % sOff)
    a.label("La_sl_loop")
    for i in range(16):
        if i % 4 == 0:
            a("s_add_u32 s4, s%d, %d" % (sOff, (i // 8) * 16384 + ((i // 4) & 1) * 4096))
        a("buffer_load_dwordx4 %s, v%d, s[%d:%d], s4 offen offset:%d%s" % (a4(4 * i), vL16, sKV, sKV + 3, (i % 4) * 1024, SC1))
    a("s_waitcnt vmcnt(0)")
    for jb in range(2):
        for ds in range(4):
            for k in range(2):
                a(mfma(('v', vS + 8 * k + 4 * jb), ('a', 4 * (4 * jb + ds)), Qreg(2 + k, ds), "0" if ds == 0 else None))
    for k in range(2):
        for jb in range(2):
            for r in range(4):
                x = vS + 8 * k + 4 * jb + r
                a("v_cmp_gt_i32 vcc, %d, v%d" % (16 * jb + r, vD + k))
                a("v_cndmask_b32 v%d, v%d, v%d, vcc" % (x, x, vNEG))
        a("v_subrev_u32 v%d, 32, v%d" % (vD + k, vD + k))
        rowmax(a, vS + 8 * k, vT + 2 * k, vT + 2 * k + 1)
    xmax(a, [(vT + 2 * k, vT + 2 * k + 1) for k in range(2)])
    for k in range(2):
        a("v_max_f32 v%d, v%d, v%d" % (vT + 2 * k, vT + 2 * k, vM + k))
        a("v_sub_f32 v%d, v%d, v%d" % (vT + 2 * k + 1, vM + k, vT + 2 * k))
        a("v_exp_f32 v%d, v%d" % (vT + 2 * k + 1, vT + 2 * k + 1))
        a("v_mov_b32 v%d, v%d" % (vM + k, vT + 2 * k))
        for e in range(8):
            a("v_sub_f32 v%d, v%d, v%d" % (vS + 8 * k + e, vS + 8 * k + e, vM + k))
        for e in range(8):
            a("v_exp_f32 v%d, v%d" % (vS + 8 * k + e, vS + 8 * k + e))
        for e in range(4):
            a("v_mul_f32 v%d, v%d, v%d" % (vLs + 4 * k + e, vLs + 4 * k + e, vT + 2 * k + 1))
        for e in range(32):
            x = vO + 64 + 32 * k + e
            a("v_mul_f32 v%d, v%d, v%d" % (x, x, vT + 2 * k + 1))
        for e in range(4):
            a("v_cvt_pk_bf16_f32 v%d, v%d, v%d" % (vP + 4 * k + e, vS + 8 * k + 2 * e, vS + 8 * k + 2 * e + 1))
    for k in range(2):
        a(mfma(('v', vLs + 4 * k), ('a', aOne), ('v', vP + 4 * k)))
        for db in range(8):
            a(mfma(Oreg(2 + k, db), ('a', 32 + 4 * db), ('v', vP + 4 * k)))
    a("s_add_u32 s%d, s%d, 8192" % (sOff, sOff))
    a("s_and_b32 s4, s%d, 0x4000" % sOff)
    a("s_add_u32 s%d, s%d, s4" % (sOff, sOff))
    a("s_sub_u32 s%d, s%d, 1" % (sCh, sCh))
    a("s_cmp_lg_u32 s%d, 0" % sCh)
    a("s_cbranch_scc1 La_sl_loop")
    ctx_base(a, sRbk)
    for k in range(2):
        a("v_rcp_f32 v%d, v%d" % (vT + 2 * k, vLs + 4 * k))
        a("v_mov_b32 v%d, v%d" % (vT + 2 * k + 1, vT + 2 * k))
    store_O(a, [2, 3])
    a("s_cmp_eq_u32 s%d, s%d" % (sRbk, sPair))
    a("s_cbranch_scc1 La_done")
    for i in range(32):
        a("v_accvgpr_read_b32 v%d, a%d" % (vS + i, aQ + i))
    for i in range(32):
        a("v_accvgpr_write_b32 a%d, v%d" % (aQ + 32 + i, vS + i))
    a("s_mov_b32 s%d, s%d" % (sRbk, sPair))
    a("s_branch La_sl_blk")
    a.label("La_done")
```

```python
from lib import *
from gemm4 import *

CB = (32 ** -0.5) * math.log2(math.e)
xv, hv, wv = 4, 14, 8
rd = 16
aRd = 216
sX, sW, sM1, sM2, sM3 = 30, 31, 26, 27, 28
sRb, sHp = 32, 33
T = 32
A0 = 24
BASE, SLOT, WOFF = 32 * KB, 42 * KB, 18 * KB
XCH = 48 * KB
WS_ = 20


def accq(mi, b): return ('v', A0 + 4 * (2 * mi + b))
def acck(mi, b): return ('v', A0 + 32 + 4 * (2 * mi + b))
def accv(mi, b): return ('v', A0 + 64 + 4 * (2 * mi + b))
def acch(b): return ('v', A0 + 96 + 4 * b)


def make(rh):
    g = Gemm()
    g.name, g.woff = "p2r%d" % rh, WOFF
    R = Ring(3, SLOT, 88)
    R.regs = list(range(rd, rd + 6))
    g.rings = [R]
    g.xrd, g.wrd = [(rd, rd + 1), (rd + 2, rd + 3)], [rd + 4, rd + 5]
    g.xfr = [(0, 2048 * i) for i in range(4)] + [(1, 0)]
    g.wfr = [(b, p * 8192) for p in range(3) for b in range(2)]
    mf = []
    for b in range(2):
        mf += [(accq(mi, b), mi, b, 'wx') for mi in range(4)]
    for b in range(2):
        mf += [(acck(mi, b), mi, 2 + b, 'wx') for mi in range(4)]
        if rh == 0:
            mf.append((acch(b), 4, 2 + b, 'wx'))
    for b in range(2):
        mf += [(accv(mi, b), mi, 4 + b, 'xw') for mi in range(4)]
        if rh == 1:
            mf.append((acch(b), 4, 4 + b, 'xw'))
    g.mf = mf
    g.fx, g.fw = 0, 40
    g.sCnt = 35
    ld = lambda v, s, o, j: "buffer_load_dwordx4 v%d, s[%d:%d], s%d offen offset:%d lds" % (v, s, s + 3, o, 1024 * j)
    g.dma = [
        (R, ('s', sM3), [ld(hv, 8, sX, 0)], []),
        (R, 0, [ld(xv + j, 8, sX, j) for j in range(4)], ["s_add_u32 s%d, s%d, 128" % (sX, sX), "s_and_b32 s%d, s%d, 2047" % (sX, sX)]),
        (R, ('s', sM1), [ld(wv + j, WS_, sW, j) for j in range(3)], []),
        (R, ('s', sM2), [ld(wv + 3 + j, WS_, sW, j) for j in range(3)],          ["s_add_u32 s%d, s%d, %d" % (sW, sW, 64 * 6144),
          "s_cmp_ge_u32 s%d, %d\ns_cselect_b32 s29, %d, 0" % (sW, 1024 * 6144, 1024 * 6144), "s_sub_u32 s%d, s%d, s29" % (sW, sW)]),
    ]
    if rh:
        g.dma = g.dma[1:]
    return g


def stage_items(a, g0, s, what):
    L = []
    if 'x' in what:
        lab = a.newlabel("Lh")
        m, ld = g0.group_items(g0.dma[0], s * SLOT)
        L.append("s_cmp_ge_u32 s%d, 2\ns_cbranch_scc1 %s\n%s\ns_nop 0\n%s\n%s:" % (S_WAVE, lab, m, ld, lab))
        L += g0.group_items(g0.dma[1], s * SLOT)
    if 'w' in what:
        L += g0.group_items(g0.dma[2], s * SLOT) + g0.group_items(g0.dma[3], s * SLOT)
    return L


def xsrd():
    L = ["s_lshl_b32 s10, s%d, 18" % sRb,
         "s_add_u32 s8, s%d, s10\ns_addc_u32 s9, s%d, 0" % (P_BX, P_BX + 1),
         "s_sub_u32 s8, s8, %d\ns_subb_u32 s9, s9, 0" % (16 * 2048),
         "s_mov_b32 s10, %d" % (144 * 2048), "s_mov_b32 s11, 0x00020000"]
    return L


def setup(a, g):
    R = g.rings[0]
    a("s_and_b32 s4, s2, 1")
    a("s_lshl_b32 s4, s4, 3")
    a("s_bfe_u32 s5, s2, 0x30003")
    a("s_add_u32 s%d, s4, s5" % sRb)
    a("s_bfe_u32 s4, s2, 0x20001")
    a("s_lshl_b32 s4, s4, 2")
    a("s_lshr_b32 s5, s2, 6")
    a("s_add_u32 s%d, s4, s5" % sHp)
    srd(a, WS_, P_WQKV, 1024 * 6144)
    a("s_and_b32 s4, s2, %d" % (7 if int(os.environ.get("ROT2", 1)) else 0))
    a("s_lshl_b32 s4, s4, 1")
    a("s_add_u32 s5, s%d, s%d" % (sRb, sHp))
    a("s_and_b32 s5, s5, %d" % int(os.environ.get("SK2M", 3)))
    a("s_mul_i32 s5, s5, %d" % int(os.environ.get("SK2", 1)))
    a("s_add_u32 s4, s4, s5")
    a("s_and_b32 s4, s4, 15")
    a("s_lshl_b32 s%d, s4, 7" % sX)
    a("s_mul_i32 s4, s4, %d" % (64 * 6144))
    a("s_lshl_b32 s%d, s%d, 7" % (sW, sHp))
    a("s_add_u32 s%d, s%d, s4" % (sW, sW))
    a("s_lshl_b32 s%d, s%d, 12" % (R.sWr, S_WAVE))
    a("s_add_u32 s%d, s%d, %d" % (R.sWr, R.sWr, BASE))
    a("s_lshl_b32 s4, s%d, 11" % S_WAVE)
    a("s_add_u32 s%d, s4, %d" % (sM1, WOFF))
    a("s_add_u32 s%d, s%d, 3072" % (sM2, sM1))
    a("s_mul_i32 s4, s%d, 3072" % S_WAVE)
    a("s_sub_u32 s%d, %d, s4" % (sM3, 16 * KB))
    lane_setup(a, T)
    a("s_lshl_b32 s4, s%d, 5" % S_WAVE)
    a("s_add_u32 s4, s4, 16")
    a("v_add_u32 v%d, s4, v%d" % (T + 2, T))
    a("v_lshl_add_u32 v%d, v%d, 11, v%d" % (T + 2, T + 2, T + 1))
    for j in range(4):
        a("v_add_u32 v%d, %d, v%d" % (xv + j, 8 * j * 2048 - 1024 * j, T + 2))
    a("s_lshl_b32 s4, s%d, 14" % S_WAVE)
    a("s_cmp_eq_u32 s%d, 0" % sRb)
    a("s_cselect_b32 s4, 0x40000000, s4")
    a("v_lshl_add_u32 v%d, v%d, 11, v%d" % (T + 2, T, T + 1))
    a("v_add_u32 v%d, s4, v%d" % (hv, T + 2))
    a("v_lshrrev_b32 v%d, 2, v%d" % (T + 2, T))
    a("v_and_b32 v%d, 3, v%d" % (T + 3, T))
    a("v_lshl_add_u32 v%d, v%d, 3, v%d" % (T + 2, T + 2, T + 3))
    a("v_mul_u32_u24 v%d, 6144, v%d" % (T + 2, T + 2))
    a("v_add_u32 v%d, v%d, v%d" % (T + 2, T + 2, T + 1))
    a("s_mul_i32 s6, s%d, 6" % S_WAVE)
    for j in range(6):
        a("s_add_u32 s7, s6, %d" % j)
        a("s_bfe_u32 s4, s7, 0x10002")
        a("s_lshl_b32 s4, s4, 5")
        a("s_and_b32 s5, s7, 1")
        a("s_lshl_b32 s5, s5, 4")
        a("s_add_u32 s4, s4, s5")
        a("s_bfe_u32 s5, s7, 0x10001")
        a("s_lshl_b32 s5, s5, 2")
        a("s_add_u32 s4, s4, s5")
        a("s_mul_i32 s4, s4, 6144")
        a("s_lshr_b32 s5, s7, 3")
        a("s_lshl_b32 s5, s5, 11")
        a("s_add_u32 s4, s4, s5")
        a("s_add_u32 s4, s4, %d" % (2048 - 1024 * (j % 3)))
        a("v_add_u32 v%d, s4, v%d" % (wv + j, T + 2))
    a("s_sub_u32 s%d, s%d, 2048" % (WS_, WS_))
    a("s_subb_u32 s%d, s%d, 0" % (WS_ + 1, WS_ + 1))
    a("s_add_u32 s%d, s%d, 2048" % (WS_ + 2, WS_ + 2))
    a("s_lshr_b32 s4, s%d, 1" % S_WAVE)
    a("s_lshl_b32 s4, s4, 13")
    a("s_add_u32 s4, s4, %d" % BASE)
    t = 40
    xread_base(a, t, t + 1, T, "s4")
    xread_base(a, t + 2, t + 3, T, "%d" % (BASE + 16 * KB))
    wread_base(a, [t + 4, t + 5], [0, 1], T, "%d" % BASE)
    a("s_and_b32 s4, s%d, 1" % S_WAVE)
    a("s_lshl_b32 s4, s4, 6")
    a("v_xor_b32 v%d, s4, v%d" % (t + 4, t + 4))
    a("v_xor_b32 v%d, s4, v%d" % (t + 5, t + 5))
    for i in range(6):
        a("v_accvgpr_write_b32 a%d, v%d" % (aRd + i, t + i))


def restore(a):
    for i in range(6):
        a("v_accvgpr_read_b32 v%d, a%d" % (rd + i, aRd + i))


def local_attn(a, rh, SF=SC1):
    QP, KP, VP, MC, MP, MP0 = 160, 176, 196, 216, 220, 224
    S0 = 128
    TM = 228
    cvt = lambda d, s: (a("v_cvt_pk_bf16_f32 v%d, v%d, v%d" % (d, s, s + 1)), a("v_cvt_pk_bf16_f32 v%d, v%d, v%d" % (d + 1, s + 2, s + 3)))
    a("s_and_b32 s4, s%d, 1" % S_WAVE)
    a("s_mul_i32 s4, s4, 3072")
    a("s_add_u32 s4, s4, %d" % XCH)
    a("v_add_u32 v%d, s4, v2" % TM)
    if rh == 0:
        for b in range(2):
            cvt(KP + 16 + 2 * b, acck(3, b)[1])
            cvt(VP + 10 * b + 8, accv(3, b)[1])
        a("ds_write_b128 v%d, %s" % (TM, v4(KP + 16)))
        a("ds_write_b64 v%d, v[%d:%d] offset:1024" % (TM, VP + 8, VP + 9))
        a("ds_write_b64 v%d, v[%d:%d] offset:1032" % (TM, VP + 18, VP + 19))
    else:
        for b in range(2):
            cvt(TM + 4 + 2 * b, acch(b)[1])
        a("ds_write_b128 v%d, %s offset:2048" % (TM, v4(TM + 4)))
    a("v_and_b32 v%d, 15, v1" % (TM + 1))
    a("v_lshrrev_b32 v%d, 4, v1" % (TM + 2))
    a("v_lshlrev_b32 v%d, 2, v%d" % (TM + 2, TM + 2))
    a("v_sub_u32 v%d, v%d, v%d" % (TM + 1, TM + 1, TM + 2))
    a("v_mov_b32 v%d, 0xf149f2ca" % (TM + 2))
    for r in range(4):
        a("v_subrev_u32 v%d, %d, v%d" % (TM + 3, r, TM + 1))
        a("v_and_b32 v%d, 0x80000001, v%d" % (MC + r, TM + 3))
        a("v_cmp_ne_u32 vcc, 0, v%d" % (MC + r))
        a("v_cndmask_b32 v%d, 0, v%d, vcc" % (MC + r, TM + 2))
        a("v_add_u32 v%d, 1, v%d" % (TM + 3, TM + 3))
        a("v_and_b32 v%d, 0x80000001, v%d" % (MP + r, TM + 3))
        a("v_cmp_ne_u32 vcc, 0x80000001, v%d" % (MP + r))
        a("v_cndmask_b32 v%d, 0, v%d, vcc" % (MP + r, TM + 2))
    if rh == 0:
        a("s_cmp_eq_u32 s%d, 0" % sRb)
        a("s_cselect_b64 vcc, -1, 0")
        for r in range(4):
            a("v_cndmask_b32 v%d, v%d, v%d, vcc" % (MP0 + r, MP + r, TM + 2))
    a("s_mov_b32 s6, 0x%08x" % f32bits(CB))
    a("s_mov_b32 s7, s6")
    for mi in range(4):
        for b in range(2):
            s = accq(mi, b)[1]
            a("v_pk_mul_f32 v[%d:%d], v[%d:%d], s[6:7]" % (s, s + 1, s, s + 1))
            a("v_pk_mul_f32 v[%d:%d], v[%d:%d], s[6:7]" % (s + 2, s + 3, s + 2, s + 3))
        for b in range(2):
            cvt(QP + 4 * mi + 2 * b, accq(mi, b)[1])
    for mi in range(4):
        for b in range(2):
            if not (rh == 0 and mi == 3):
                cvt(KP + 4 * (mi + 1) + 2 * b, acck(mi, b)[1])
                cvt(VP + 10 * b + 2 * (mi + 1), accv(mi, b)[1])
    if rh == 0:
        for b in range(2):
            cvt(KP + 2 * b, acch(b)[1])
    a("v_mov_b32 v%d, 0x3f803f80" % (TM + 4))
    for i in range(1, 4):
        a("v_mov_b32 v%d, v%d" % (TM + 4 + i, TM + 4))
    a("s_waitcnt lgkmcnt(0)")
    a("s_barrier")
    if rh == 0:
        a("ds_read_b64 v[%d:%d], v%d offset:2048" % (VP, VP + 1, TM))
        a("ds_read_b64 v[%d:%d], v%d offset:2056" % (VP + 10, VP + 11, TM))
    else:
        a("ds_read_b128 %s, v%d" % (v4(KP), TM))
        a("ds_read_b64 v[%d:%d], v%d offset:1024" % (VP, VP + 1, TM))
        a("ds_read_b64 v[%d:%d], v%d offset:1032" % (VP + 10, VP + 11, TM))
    order = [3, 2, 1, 0]
    for mi in order:
        if mi == 0:
            a("s_waitcnt lgkmcnt(0)")
        a(mfma(('v', S0 + 8 * mi), ('v', KP + 4 * mi), ('v', QP + 4 * mi), ('v', MP0 if (rh == 0 and mi == 0) else MP)))
        a(mfma(('v', S0 + 8 * mi + 4), ('v', KP + 4 * mi + 4), ('v', QP + 4 * mi), ('v', MC)))
    M = A0
    from attn4 import rowmax, xmax
    for mi in order:
        rowmax(a, S0 + 8 * mi, M + 2 * mi, M + 2 * mi + 1)
    xmax(a, [(M + 2 * mi, M + 2 * mi + 1) for mi in order])
    for mi in order:
        for e in range(8):
            a("v_sub_f32 v%d, v%d, v%d" % (S0 + 8 * mi + e, S0 + 8 * mi + e, M + 2 * mi))
        for e in range(8):
            a("v_exp_f32 v%d, v%d" % (S0 + 8 * mi + e, S0 + 8 * mi + e))
    PP, LL, OO = M + 8, M + 24, M + 40
    for mi in order:
        for e in range(4):
            a("v_cvt_pk_bf16_f32 v%d, v%d, v%d" % (PP + 4 * mi + e, S0 + 8 * mi + 2 * e, S0 + 8 * mi + 2 * e + 1))
    for mi in order:
        a(mfma(('v', LL + 4 * mi), ('v', TM + 4), ('v', PP + 4 * mi), "0"))
        for b in range(2):
            a(mfma(('v', OO + 8 * mi + 4 * b), ('v', VP + 10 * b + 2 * mi), ('v', PP + 4 * mi), "0"))
    srd(a, 16, P_WS, 4 * MB, WS_OB)
    a("s_lshl_b32 s4, s%d, 18" % sRb)
    a("s_lshl_b32 s5, s%d, 14" % sHp)
    a("s_add_u32 s4, s4, s5")
    a("s_and_b32 s5, s%d, 1" % S_WAVE)
    a("s_lshl_b32 s5, s5, 13")
    a("s_add_u32 s4, s4, s5")
    if rh:
        a("s_add_u32 s4, s4, 4096")
    for mi in order:
        a("v_rcp_f32 v%d, v%d" % (LL + 4 * mi, LL + 4 * mi))
    for mi in order:
        a("v_mov_b32 v%d, v%d" % (LL + 4 * mi + 1, LL + 4 * mi))
    for mi in order:
        o = OO + 8 * mi
        for e in range(0, 8, 2):
            a("v_pk_mul_f32 v[%d:%d], v[%d:%d], v[%d:%d]" % (o + e, o + e + 1, o + e, o + e + 1, LL + 4 * mi, LL + 4 * mi + 1))
        for e in range(4):
            a("v_cvt_pk_bf16_f32 v%d, v%d, v%d" % (o + e, o + 2 * e, o + 2 * e + 1))
        a("buffer_store_dwordx4 %s, v2, s[16:19], s4 offen offset:%d%s" % (v4(o), mi * 1024, SF))
```

```python
from lib import *


class Ring:
    def __init__(self, NS, slot, sbase):
        self.NS, self.slot = NS, slot
        self.sWr, self.sRd, self.sRdD, self.sC = sbase, sbase + 1, sbase + 2, sbase + 3
        self.regs = []

    def init(self):
        return ["s_mov_b32 s%d, 0" % self.sRd,
                "s_mov_b32 s%d, %d" % (self.sC, (-(self.NS - 1) * self.slot) & 0xffffffff),
                "s_mov_b32 s%d, %d" % (self.sC + 1, self.slot)]

    def adv(self, wr):
        sc = []
        if wr:
            sc.append("s_add_u32 s%d, s%d, s%d" % (self.sWr, self.sWr, self.sRdD))
        if self.NS == 2:
            sc.append("s_sub_u32 s%d, 0, s%d" % (self.sRdD, self.sRdD))
        else:
            sc += ["s_add_u32 s%d, s%d, 1" % (self.sRd, self.sRd),
                   "s_cmp_eq_u32 s%d, %d\ns_cselect_b32 s%d, 0, s%d\ns_cselect_b32 s%d, s%d, s%d" % (
                       self.sRd, self.NS, self.sRd, self.sRd, self.sRdD, self.sC, self.sC + 1)]
        return sc, ["v_add_u32 v%d, s%d, v%d" % (r, self.sRdD, r) for r in self.regs]


def place_dma(sg, items, g0, g1):
    nd = sum(1 for x in items if kind(x) == 'd')
    k = 0
    last = g0
    for x in items:
        if kind(x) == 'd':
            want = g0 + (k * (g1 - g0 + 1)) // nd
            k += 1
            if sg.end[last]:
                sg.end[last].append(x)
                continue
            g = sg.place(x, max(want, last), lo=last)
            last = g
        else:
            g = min(last + 1, sg.n - 1) if sg.d[last] else last
            if sg.d[g] or sg.end[g]:
                sg.end[g].append(x)
            else:
                g = sg.place(x, g, lo=g)
                if sg.d[g]:
                    raise RuntimeError("scalar placed before an earlier load")
            last = g
            if "m0" in x and not sg.end[g]:
                last = min(g + 1, sg.n - 1)
                if last == g:
                    sg.end[g].append("s_nop 0")
    return last


class Gemm:
    xlin = False
    woff = 0
    pf = []

    def fxr(self, h, i):
        return ('a', self.fx + 4 * (h * len(self.xfr) + i))

    def fwr(self, h, i):
        return ('a', self.fw + 4 * (h * len(self.wfr) + i))

    def mfmas(self, h, first=False):
        L = []
        for acc, xi, wi, o in self.mf:
            x, w = self.fxr(h, xi), self.fwr(h, wi)
            L.append(mfma(acc, w, x, "0" if first else None) if o == 'wx' else mfma(acc, x, w, "0" if first else None))
        return L

    def reads(self, h):
        L = []
        seen = set()
        for acc, xi, wi, o in self.mf:
            if ('x', xi) not in seen:
                seen.add(('x', xi))
                st, imm = self.xfr[xi]
                if self.xlin:
                    L.append("ds_read_b128 %s, v%d offset:%d" % (r4(self.fxr(h, xi)), self.xrd[st][0], imm + h * self.xhs))
                else:
                    L.append("ds_read_b128 %s, v%d offset:%d" % (r4(self.fxr(h, xi)), self.xrd[st][h], imm))
            if ('w', wi) not in seen:
                seen.add(('w', wi))
                nb, imm = self.wfr[wi]
                b = self.fwr(h, wi)[1]
                for j in range(2):
                    L.append("ds_read_b64_tr_b16 a[%d:%d], v%d offset:%d" % (b + 2 * j, b + 2 * j + 1, self.wrd[nb], self.woff + imm + h * 4096 + j * 2048))
        return L

    def group_items(self, grp, off=0):
        ring, m0, ins, post = grp
        if isinstance(m0, tuple):
            L = ["s_add_u32 m0, s%d, s%d" % (ring.sWr, m0[1]) + ("\ns_add_u32 m0, m0, %d" % off if off else "")]
        else:
            m0 += off
            L = ["s_add_u32 m0, s%d, %d" % (ring.sWr, m0) if m0 else "s_mov_b32 m0, s%d" % ring.sWr]
        return L + ins + post

    def dma_items(self):
        return [x for g in self.dma for x in self.group_items(g)]

    def issue_seq(self, it):
        return [(g, it - 1 + g[0].NS) for g in self.dma if it - 1 + g[0].NS >= 0]

    def prologue_items(self):
        L = []
        for it in range(-(max(r.NS for r in self.rings) - 1), 1):
            for g, s in self.issue_seq(it):
                L += self.group_items(g, s * g[0].slot)
        return L

    def nprologue(self):
        return sum(1 for x in self.prologue_items() if kind(x) == 'd')

    def vm(self, s, nst):
        q = []
        for it in range(-8, max(s, 1)):
            for g, st in self.issue_seq(it):
                if st < nst:
                    q += [st] * len(g[2])
        idx = max(i for i, st in enumerate(q) if st <= s)
        return len(q) - 1 - idx

    def half(self, a, h, first=False, rd=True, dma=None, adv=False, extra=None, wr=True, rdg=None):
        sg = Seg(self.mfmas(h, first))
        n = sg.n
        lastd = 0
        nadv = sum(len(r.regs) for r in self.rings)
        if dma:
            lastd = place_dma(sg, dma, 0, n - 2 - ((nadv // 2 + 3) if adv and n > 16 else 0))
        lastr = 0
        if rd and 'noreads' not in GFL:
            R = (rdg or self).reads(h ^ 1)
            g1 = max(len(R) // 2, n - int(os.environ.get('RDE', 11)))
            lastr = max(sg.stream(R, 0, g1))
        if adv:
            g = min(n - 1, lastd + 1) if dma else 0
            vas = []
            for r in self.rings:
                sc, va = r.adv(wr)
                vas += va
                for x in sc:
                    if (sg.d[g] and g == n - 1) or sg.end[g]:
                        sg.end[g].append(x)
                    else:
                        g = sg.place(x, g, lo=g)
            g = max(lastr + 1, g + 1)
            for x in vas:
                if g < n:
                    sg.place(x, g, lo=g)
                else:
                    sg.end[n - 1].append(x)
        if extra:
            extra(sg)
        for x in sg.lines():
            a(x)

    def split(self, it):
        n = sum(1 for x in it if kind(x) == 'd')
        cut = cnt = 0
        for i, x in enumerate(it):
            if kind(x) == 'd':
                cnt += 1
                if cnt == (n + 1) // 2:
                    cut = i + 1
        while cut < len(it) and kind(it[cut]) == 's' and "m0" not in it[cut]:
            cut += 1
        return it[:cut], it[cut:]

    def init(self, a, start=None):
        for i, r in enumerate(self.rings):
            for x in r.init():
                a(x)
            if start and start[i]:
                a("s_mov_b32 s%d, %d" % (r.sRd, start[i]))
            if r.NS == 2:
                a("s_mov_b32 s%d, s%d" % (r.sRdD, r.sC))

    def bar(self, a, N):
        a("s_waitcnt vmcnt(%d) lgkmcnt(0)" % min(63, N))
        a("s_barrier")

    def pro(self, a, N, dma=None):
        a("s_waitcnt vmcnt(%d)" % min(63, N))
        a("s_barrier")
        for x in self.reads(0):
            a(x)
        a("s_waitcnt lgkmcnt(0)")
        self.half(a, 0, first=True, adv=True, dma=dma, wr=False)

    def iter(self, a, N, items=None, wr=True, adv=True, after_bar=None, extra=None):
        self.bar(a, N)
        if after_bar:
            after_bar()
        d0, d1 = self.split(items or [])
        self.half(a, 1, dma=d0)
        a("s_waitcnt lgkmcnt(0)")
        self.half(a, 0, dma=d1, adv=adv, wr=wr, extra=extra)

    def loop(self, a, N, after_bar=None):
        a(".p2align 6")
        a.label("L%s_loop" % self.name)

        def cnt_(sg):
            sg.place("s_sub_u32 s%d, s%d, 1" % (self.sCnt, self.sCnt), sg.n - 2, lo=sg.n - 2)
            sg.end[sg.n - 1].append("s_cmp_lg_u32 s%d, 0" % self.sCnt)
        self.iter(a, N, self.pf + self.dma_items(), after_bar=after_bar, extra=cnt_)
        a("s_cbranch_scc1 L%s_loop" % self.name)

    def tail(self, a, items=None, bar=True, N=None, rd=False):
        a("s_waitcnt %slgkmcnt(0)" % ("" if N is None else "vmcnt(%d) " % N))
        if bar:
            a("s_barrier")
        self.half(a, 1, rd=rd, dma=items)


GFL = set(os.environ.get("GFLAGS", "").split(","))


def lane_setup(a, T):
    a("v_lshrrev_b32 v%d, 3, v1" % T)
    a("v_and_b32 v%d, 6, v%d" % (T + 1, T))
    a("v_and_b32 v%d, 7, v1" % (T + 2))
    a("v_xor_b32 v%d, v%d, v%d" % (T + 1, T + 1, T + 2))
    a("v_lshlrev_b32 v%d, 4, v%d" % (T + 1, T + 1))


def xread_base(a, d0, d1, T, sbase):
    a("v_and_b32 v%d, 15, v1" % T)
    a("v_lshlrev_b32 v%d, 7, v%d" % (T, T))
    a("v_lshrrev_b32 v%d, 4, v1" % (T + 1))
    a("v_and_b32 v%d, 6, v1" % (T + 2))
    a("v_xor_b32 v%d, v%d, v%d" % (T + 1, T + 1, T + 2))
    a("v_lshl_add_u32 v%d, v%d, 4, v%d" % (T, T + 1, T))
    a("v_add_u32 v%d, %s, v%d" % (d0, sbase, T))
    a("v_xor_b32 v%d, 64, v%d" % (d1, d0))


def wread_base(a, regs, nbs, T, sbase):
    a("v_lshrrev_b32 v%d, 2, v1" % T)
    a("v_and_b32 v%d, 6, v%d" % (T + 1, T))
    a("v_lshlrev_b32 v%d, 7, v%d" % (T, T))
    a("v_and_b32 v%d, 1, v1" % (T + 2))
    a("v_lshl_add_u32 v%d, v%d, 3, v%d" % (T, T + 2, T))
    a("v_add_u32 v%d, %s, v%d" % (T, sbase, T))
    a("v_bfe_u32 v%d, v1, 1, 1" % (T + 2))
    a("v_xor_b32 v%d, v%d, v%d" % (T + 1, T + 1, T + 2))
    for r, nb in zip(regs, nbs):
        a("v_xor_b32 v%d, %d, v%d" % (T + 2, 2 * nb, T + 1))
        a("v_lshl_add_u32 v%d, v%d, 4, v%d" % (r, T + 2, T))
```

```python
import os, sys, struct, math
sys.path.insert(0, os.path.join(os.path.dirname(os.path.abspath(__file__)), "..", "gen"))
from asmlib import Asm, Ins

MB = 1 << 20
KB = 1024
WS_KV = 16 * MB
WS_CTX = 64 * MB
WS_OB = 80 * MB
WS_XCH = 96 * MB
WS_DBG = 200 * MB
SC1 = "" if os.environ.get("NOSC1") else " sc1"
SC1L = " sc1" if os.environ.get("SC1L") else ""
WS_FLG = 120 * MB
S_FLG = 96
S_TAG = 94
F_QKV, F_OB, F_CTX, F_XA, F_XB, F_EPOCH = 0, 0x8000, 0x10000, 0x20000, 0x28000, 0x30000

S_WAVE = 3
S_PTR = 64
P_AX, P_CKV, P_WQ, P_WUK, P_WUV, P_WO, P_BX, P_WQKV, P_BWO, P_OUT, P_DBG, P_WS = [S_PTR + 2 * i for i in range(12)]


def f32bits(x):
    return struct.unpack("<I", struct.pack("<f", x))[0]


def log2(x):
    n = x.bit_length() - 1
    assert 1 << n == x, x
    return n


def v4(b):
    return "v[%d:%d]" % (b, b + 3)


def a4(b):
    return "a[%d:%d]" % (b, b + 3)


def r4(x):
    return "%s[%d:%d]" % (x[0], x[1], x[1] + 3)


def mfma(d, a, b, c=None):
    return "v_mfma_f32_16x16x32_bf16 %s, %s, %s, %s" % (r4(d), r4(a), r4(b), r4(d) if c is None else (c if isinstance(c, str) else r4(c)))


def srd(a, d, p, size, off=0, soff=None):
    if off:
        a("s_add_u32 s%d, s%d, %d" % (d, p, off))
        a("s_addc_u32 s%d, s%d, 0" % (d + 1, p + 1))
    if soff is not None:
        a("s_add_u32 s%d, s%d, s%d" % (d, d if off else p, soff))
        a("s_addc_u32 s%d, s%d, 0" % (d + 1, d + 1 if off else p + 1))
    if not off and soff is None:
        a("s_mov_b32 s%d, s%d" % (d, p))
        a("s_mov_b32 s%d, s%d" % (d + 1, p + 1))
    a("s_mov_b32 s%d, %s" % (d + 2, size if isinstance(size, str) else "%d" % size))
    a("s_mov_b32 s%d, 0x00020000" % (d + 3))


def kind(t):
    mn = t.split(None, 1)[0]
    if mn.startswith("s_") or mn == "WAIT":
        return 's'
    if mn.startswith("ds_"):
        return 'r'
    if mn.startswith("buffer_") or mn.startswith("global_"):
        return 'd'
    if mn.startswith(("v_exp", "v_rcp", "v_log")):
        return 'e'
    return 'c'


class Seg:
    def __init__(self, mf):
        self.mf = mf
        self.n = len(mf)
        self.pre = []
        self.sc = [[] for _ in mf]
        self.d = [[] for _ in mf]
        self.r = [[] for _ in mf]
        self.c = [[] for _ in mf]
        self.end = [[] for _ in mf]
        self.used = [0] * self.n

    def room(self, g, k):
        if k == 's':
            return len(self.sc[g]) == 0 or self.used[g] <= 4
        if k == 'e':
            return self.used[g] == 0
        if k == 'd':
            return self.used[g] <= 4 and not self.d[g] and not any(kind(x) == 'e' for x in self.c[g])
        return self.used[g] <= 4

    def put(self, g, t):
        k = kind(t)
        if k == 's':
            nl = t.count("\n") + 1
            self.used[g] += 4 * (nl - (0 if self.sc[g] else 1))
            self.sc[g].append(t)
        elif k == 'd':
            self.d[g].append(t)
            self.used[g] += 4
        elif k == 'r':
            self.r[g].append(t)
            self.used[g] += 4
        else:
            self.c[g].append(t)
            self.used[g] += 8 if k == 'e' else 4
        return g

    def place(self, t, want, lo=0, hi=None):
        hi = self.n - 1 if hi is None else min(hi, self.n - 1)
        want = max(lo, min(want, hi))
        k = kind(t)
        for g in range(want, hi + 1):
            if self.room(g, k):
                return self.put(g, t)
        for g in range(want - 1, lo - 1, -1):
            if self.room(g, k):
                return self.put(g, t)
        g = min(range(lo, hi + 1), key=lambda q: (self.used[q], abs(q - want)))
        return self.put(g, t)

    def stream(self, items, g0, g1, strict=False):
        out = []
        n = len(items)
        last = g0
        for i, t in enumerate(items):
            want = g0 + (i * (g1 - g0 + 1)) // n
            g = self.place(t, max(want, last), lo=last, hi=g1 if strict else None)
            last = g
            out.append(g)
        return out

    def lines(self):
        L = list(self.pre)
        for g in range(self.n):
            L.append(self.mf[g])
            for t in self.sc[g] + self.d[g] + self.r[g] + self.c[g] + self.end[g]:
                L += t.split("\n")
        return L

    def cost(self):
        return sum(16 + max(0, self.used[g] - 8) + (4 if self.d[g] else 0) for g in range(self.n))


def resolve_waits(lines, pend):
    out = []
    pend = list(pend)
    later = set(t.split("@")[1].strip() for t in lines if t.startswith("ds_") and "@" in t)
    for t in lines:
        if t.startswith("ds_") and "@" in t:
            later.discard(t.split("@")[1].strip())
        if t.startswith("WAIT"):
            assert t.split()[1] not in later, "wait before its read: " + t
            parts = t.split()
            tag = parts[1]
            extra = " ".join(parts[2:])
            if tag == '*':
                n = 0
            elif tag in pend:
                n = len(pend) - 1 - pend.index(tag)
            else:
                n = None
            if n is None:
                if extra:
                    out.append("s_waitcnt " + extra)
                continue
            assert n <= 15, (n, tag)
            pend = pend[len(pend) - n:] if n else []
            out.append(("s_waitcnt %s lgkmcnt(%d)" % (extra, n)).replace("  ", " "))
            continue
        if t.startswith("ds_"):
            pend.append(t.split("@")[1].strip() if "@" in t else "?")
        out.append(t)
    return out, pend


def kdesc(name, nv, acc, ns=102):
    return """.p2align 6
.amdhsa_kernel %s
  .amdhsa_next_free_vgpr %d
  .amdhsa_next_free_sgpr %d
  .amdhsa_accum_offset %d
  .amdhsa_group_segment_fixed_size 0
  .amdhsa_kernarg_size 96
  .amdhsa_user_sgpr_count 2
  .amdhsa_user_sgpr_kernarg_segment_ptr 1
  .amdhsa_system_sgpr_workgroup_id_x 1
.end_amdhsa_kernel
""" % (name, nv, ns, acc)


def kstart(name):
    return ".globl %s\n.p2align 8\n.type %s,@function\n%s:\n" % (name, name, name)


class Stamps:
    def __init__(self, on, kern):
        self.on, self.kern, self.k = on, kern, 0

    def __call__(self, a):
        if not self.on:
            return
        k = self.k
        self.k += 1
        assert k < 32
        a("s_memrealtime s[100:101]")
        a("s_waitcnt lgkmcnt(0)")
        a("v_writelane_b32 v15, s100, %d" % (2 * k))
        a("s_memtime s[100:101]")
        a("s_waitcnt lgkmcnt(0)")
        a("v_writelane_b32 v15, s100, %d" % (2 * k + 1))

    def flush(self, a):
        if not self.on:
            return
        L = a.newlabel("Lst")
        a("s_cmp_lg_u32 s%d, 0" % S_WAVE)
        a("s_cbranch_scc1 %s" % L)
        srd(a, 16, P_WS, 1 * MB, WS_DBG + self.kern * 65536)
        a("s_lshl_b32 s4, s2, 8")
        a("v_mbcnt_lo_u32_b32 v14, -1, 0")
        a("v_mbcnt_hi_u32_b32 v14, -1, v14")
        a("v_lshlrev_b32 v14, 2, v14")
        a("buffer_store_dword v15, v14, s[16:19], s4 offen")
        if os.environ.get("DBGWG"):
            a("s_cmp_lg_u32 s2, %s" % os.environ["DBGWG"])
            a("s_cbranch_scc1 %s" % L)
            srd(a, 16, P_DBG, 256)
            sel = [int(x) for x in os.environ.get("DBGSEL", "0,1,2,3,4,5,6,8,11,12,13,15,16,20").split(",")]
            a("v_readlane_b32 s5, v15, 0")
            for i, k in enumerate(sel):
                a("v_readlane_b32 s4, v15, %d" % (2 * k))
                a("s_sub_u32 s4, s4, s5")
                a("v_mov_b32 v14, s4")
                a("buffer_store_dword v14, off, s[16:19], 0 offset:%d" % (8 + 4 * i))
        a.label(L)


class Col(list):
    def __call__(self, t):
        self.extend(x.strip() for x in t.split("\n") if x.strip())


def signal(a, vt, soffs, va=None):
    va = vt + 2 if va is None else va
    a("v_mov_b32 v%d, 0x40000000" % va)
    a("v_mov_b32 v%d, s%d" % (vt, S_TAG))
    a("v_cmp_eq_u32 vcc, 0, v0")
    a("v_mov_b32 v%d, s%d" % (vt + 1, S_TAG + 1))
    a("v_cndmask_b32_e64 v%d, v%d, 0, vcc" % (va, va))
    for o in soffs:
        a("buffer_store_dwordx2 v[%d:%d], v%d, s[%d:%d], %s offen sc1 ; @signal" % (vt, vt + 1, va, S_FLG, S_FLG + 3, o))


def flag_addr(va, n=16):
    return ["v_and_b32 v%d, %d, v1" % (va, n - 1), "v_lshlrev_b32 v%d, 7, v%d" % (va, va)]


def flag_load(dst, soff, va=None):
    if va is None:
        return "buffer_load_dwordx2 v[%d:%d], off, s[%d:%d], %s sc1" % (dst, dst + 1, S_FLG, S_FLG + 3, soff)
    return "buffer_load_dwordx2 v[%d:%d], v%d, s[%d:%d], %s offen sc1" % (dst, dst + 1, va, S_FLG, S_FLG + 3, soff)


def tag_make(a, part, younger=0):
    L = a.newlabel("Ltag")
    a("s_or_b32 s4, s2, s%d" % S_WAVE)
    a("s_cbranch_scc1 %s" % L)
    a("s_mov_b32 s4, %d" % F_EPOCH)
    if part == 0:
        a(flag_load(22, "s4"))
    else:
        srd(a, 92, P_DBG, 256)
        a("s_waitcnt vmcnt(%d)" % younger)
        a("v_add_u32 v22, 1, v22")
        a("v_or_b32 v23, 0x80000000, v23")
        a("buffer_store_dwordx2 v[22:23], off, s[%d:%d], s4 sc1" % (S_FLG, S_FLG + 3))
        a("buffer_store_dwordx2 v[22:23], off, s[92:95], 0 sc1")
    a.label(L)


def tag_load(a, dst, d=12):
    srd(a, d, P_DBG, 256)
    a("buffer_load_dwordx2 v[%d:%d], off, s[%d:%d], 0 sc1" % (dst, dst + 1, d, d + 3))


def tag_get(a, dst, d=12):
    L, D = a.newlabel("Ltg"), a.newlabel("Lpolld")
    a("s_mov_b32 s5, 0x40000")
    a.label(L)
    a("v_readfirstlane_b32 s%d, v%d" % (S_TAG, dst))
    a("v_readfirstlane_b32 s%d, v%d" % (S_TAG + 1, dst + 1))
    a("s_cmp_lg_u32 s%d, 0" % (S_TAG + 1))
    a("s_cbranch_scc1 %s" % D)
    a("s_sleep 4")
    tag_load(a, dst, d)
    a("s_sub_u32 s5, s5, 1")
    a("s_waitcnt vmcnt(0)")
    a("s_cbranch_scc0 %s ; @poll" % L)
    a.label(D)


class VmQ:
    def __init__(self):
        self.q = []

    def push(self, tag, n):
        self.q += [tag] * n

    def need(self, *tags):
        idx = max([i for i, t in enumerate(self.q) if t in tags], default=-1)
        n = len(self.q) - 1 - idx
        self.q = self.q[idx + 1:]
        return n


def flag_check(a, dst, soff, va=None):
    L, D = a.newlabel("Lpoll"), a.newlabel("Lpolld")
    a("s_mov_b32 s5, 0x40000")
    a.label(L)
    a("v_cmp_ne_u64 vcc, s[%d:%d], v[%d:%d]" % (S_TAG, S_TAG + 1, dst, dst + 1))
    a("s_cbranch_vccz %s" % D)
    a("s_sleep 4")
    a(flag_load(dst, soff, va))
    a("s_sub_u32 s5, s5, 1")
    a("s_waitcnt vmcnt(0)")
    a("s_cbranch_scc0 %s ; @poll" % L)
    a.label(D)


def weave_lines(lines, items, f0=0.0, f1=1.0):
    spots = [i for i in range(1, len(lines)) if lines[i].startswith("v_") and lines[i - 1].startswith("v_") and "vcc" not in lines[i]]
    spots = spots[int(f0 * len(spots)):max(int(f1 * len(spots)), 1)]
    units, cur = [], []
    for x in items:
        cur.append(x)
        if kind(x) == 'd':
            units.append(cur)
            cur = []
    if cur:
        units[-1] += cur
    at = {}
    for k, u in enumerate(units):
        at.setdefault(spots[k * len(spots) // len(units)], []).extend(u)
    out = []
    for i, l in enumerate(lines):
        out += at.get(i, [])
        out.append(l)
    return out
```

```python
from lib import *
from gemm4 import *
import proj4, bfront, attn4, oproj, qproj

MFL = set(os.environ.get("MFLAGS", "").split(","))


def gen(stamp=False):
    a = Asm()
    st = Stamps(stamp, 0)
    a("s_cmp_ge_u32 s2, 256")
    a("s_cbranch_scc1 Lend")
    a("s_load_dwordx16 s[64:79], s[0:1], 0")
    a("s_load_dwordx8 s[80:87], s[0:1], 64")
    a("v_lshrrev_b32 v2, 6, v0")
    a("v_and_b32 v1, 63, v0")
    a("v_readfirstlane_b32 s%d, v2" % S_WAVE)
    a("v_lshlrev_b32 v2, 4, v1")
    if 'ipf' in MFL:
        a("s_getpc_b64 s[6:7]")
        a("s_lshr_b32 s4, s2, 3")
        a("s_lshl_b32 s4, s4, 2")
        a("s_add_u32 s4, s4, s%d" % S_WAVE)
        a("s_min_u32 s4, s4, CODE_KB")
        a("s_lshl_b32 s4, s4, 10")
        a("v_add_u32 v3, s4, v2")
        a("global_load_dwordx4 v[4:7], v3, s[6:7]")
    st(a)
    gk, gv = proj4.make('wx'), proj4.make('xw')
    b0, b1 = bfront.make(0), bfront.make(1)
    g3 = qproj.make()
    proj4.setup(a, gk)
    srd(a, S_FLG, P_WS, 0x40000, WS_FLG)
    tag_make(a, 0)
    for x in proj4.xitems(gk, 0) + proj4.witems(gk, 0):
        a(x)
    proj4.read_bases(a, gk)
    proj4.pf_setup(a, 56, 60, P_WQKV, 6, P_BX, 4)
    proj4.pf_setup(a, 52, 51, P_WQ, 8, P_AX, 4)
    attn4.ids(a)
    bfront.setup(a, b0)
    oproj.lanes(a, 28)
    qproj.lanes(a, 28)
    proj4.out_base(a)
    gk.init(a, [proj4.XS0, 0])
    for x in proj4.xitems(gk, 1) + proj4.witems(gk, 1):
        a(x)
    tag_make(a, 1, 32)
    st(a)
    if 'only2' in MFL:
        a("s_waitcnt vmcnt(0)")
        a("s_barrier")
        for x in bfront.xsrd() + [y for s in range(3) for y in bfront.stage_items(a, b0, s, 'xw')]:
            a(x)
        tag_load(a, 22)
        cut0 = len(a.ins)
    PF1 = [int(x) for x in os.environ.get("PF1", "2,1").split(",")]
    a("s_cmp_lt_u32 s2, 128")
    a("s_cbranch_scc1 Lp1_k")
    k0 = st.k
    for kind_, g in (('v', gv), ('k', gk)):
        if kind_ == 'k':
            a.label("Lp1_k")
            st.k = k0
        g.pf = proj4.pf_items(56, 60, PF1[0]) + proj4.pf_items(52, 51, PF1[1])
        g.pro(a, 16, dma=proj4.xitems(g, 2))
        a("s_mov_b32 s%d, 5" % g.sCnt)
        g.loop(a, 8)
        g.iter(a, 8, proj4.witems(g, 0) + bfront.xsrd() + bfront.stage_items(a, b0, 0, 'x'))
        g.iter(a, 4, bfront.stage_items(a, b0, 0, 'w') + bfront.stage_items(a, b0, 1, 'xw'), adv=False)
        tag_load(a, 22)
        g.tail(a, bfront.stage_items(a, b0, 2, 'xw'))
        st(a)
        proj4.pack(a, kind_)
        if kind_ == 'v':
            a("s_branch Lp2")
    if 'only2' in MFL:
        del a.ins[cut0:]
        st.k = 2
    if 'nost' in MFL:
        proj4.trickle = lambda a, b: ["s_nop 0"]
        VmQ.push0 = VmQ.push
        VmQ.push = lambda self, tag, n: VmQ.push0(self, tag, 0 if tag == 'st' else n)
    a.label("Lp2")
    st(a)
    b0.init(a)
    bfront.restore(a)
    a("s_cmp_ge_u32 s%d, 2" % S_WAVE)
    a("s_cbranch_scc1 Lp2_r1")
    k0 = st.k
    TRK = [int(x) for x in os.environ.get("TRK", "2,2,2,2,2,2,2,2,2,2,2,2,2,2,2,2").split(",")]
    TRK += [0] * (16 - len(TRK))
    cum = [sum(TRK[:k]) for k in range(17)]
    assert cum[-1] == 32
    Q3 = []
    for rh, g in enumerate((b0, b1)):
        if rh:
            a.label("Lp2_r1")
            st.k = k0
        n = 10 if rh else 11
        q = VmQ()
        q.push(0, n), q.push(1, n), q.push('t', 1), q.push(2, n)
        g.pro(a, q.need(0), dma=proj4.trickle(0, cum[1]))
        q.push('st', TRK[0])
        npf = 12 - 5 * PF1[1]
        for s in range(1, 16):
            N = q.need(s)
            it = []
            if s <= npf:
                it += proj4.pf_items(52, 51, 1)
                q.push('pf', 1)
            if s < 14:
                it += g.dma_items()
                q.push(s + 2, n)
            elif s == 14:
                it += qproj.witems(g3, 0) + qproj.witems(g3, 1)
                q.push('w0', 4), q.push('w1', 4)
            else:
                it += qproj.xitems(g3, 0)
                q.push('x0', 8)
            it += proj4.trickle(cum[s], cum[s + 1])
            q.push('st', TRK[s])
            g.iter(a, N, it, adv=s < 15, after_bar=(lambda: qproj.setup(a, g3)) if s == 14 else None)
            if 'st2' in MFL and s in (3, 7, 11):
                st(a)
        g.tail(a, qproj.xitems(g3, 1))
        q.push('x1', 8)
        st(a)
        c = Col()
        bfront.local_attn(c, rh)
        for x in weave_lines(c, qproj.witems(g3, 2) + qproj.xitems(g3, 2), 0.0, 0.7):
            a(x)
        q.push('w2', 4), q.push('x2', 8), q.push('o', 4)
        Q3.append(q)
        if not rh:
            a("s_branch Lp3")
    a.label("Lp3")
    st(a)
    if 'only2' in MFL:
        st.flush(a)
        return fin(a)
    q = Q3[0]
    k = q.q.index('w0')
    assert q.q[k:] == Q3[1].q[Q3[1].q.index('w0'):]
    qproj.restore(a)
    g3.init(a, [qproj.XS0, 0])
    a("s_lshl_b32 s34, s%d, 4" % proj4.sN0)
    a("s_add_u32 s34, s34, s%d" % proj4.sM0)
    a("s_lshr_b32 s4, s2, 7")
    a("s_lshl_b32 s4, s4, 3")
    a("s_add_u32 s34, s34, s4")
    a("s_lshl_b32 s34, s34, 7")
    a("s_lshl_b32 s91, s%d, 4" % bfront.sRb)
    a("s_add_u32 s91, s91, s%d" % bfront.sHp)
    a("s_lshl_b32 s91, s91, 7")
    a("s_add_u32 s91, s91, %d" % F_OB)
    g3.pro(a, q.need('w0', 'x0'))
    g3.iter(a, q.need('w1', 'x1'), g3.dma_items())
    q.push(3, 12)
    g3.iter(a, q.need('w2', 'x2', 'o', 'st'), g3.dma_items(), after_bar=lambda: (tag_get(a, 22, 20), signal(a, 22, ["s34", "s91"], 3)))
    a("s_mov_b32 s%d, 10" % g3.sCnt)
    g3.loop(a, 12)

    def ids():
        a("s_lshr_b32 s34, s%d, 1" % attn4.sHead)
        a("s_lshl_b32 s34, s34, 11")
        for x in flag_addr(3):
            a(x)
    g3.iter(a, 12, [flag_load(22, "s34", 3)] + g3.dma_items(), after_bar=ids)

    def go():
        flag_check(a, 22, "s34", 3)
        attn4.kv_setup(a)
        oproj.ids(a)
    it = attn4.kv_prologue_items(0)
    cut = [i for i, x in enumerate(it) if "m0" in x][1]
    g3.iter(a, 12, it[:cut], after_bar=go)
    g3.iter(a, 4, it[cut:], adv=False)
    g3.tail(a, bar=False)
    st(a)
    qproj.epilogue(a)
    attn4.setup1(a)
    st(a)
    g6, g7 = oproj.make("p6", oproj.AB), oproj.make("p7", oproj.AA)

    class H:
        q0 = [t for t in (('K', 0), ('K', 1), ('V', 0)) for _ in range(4)]

        @staticmethod
        def after_d2():
            a("s_lshl_b32 s91, s%d, 11" % oproj.sRb)
            a("s_add_u32 s91, s91, %d" % F_OB)
            for x in flag_addr(14):
                a(x)

        @staticmethod
        def pre_e1():
            return [flag_load(12, "s91", 14)]

        @staticmethod
        def at_e1():
            flag_check(a, 12, "s91", 14)
            for j in range(4):
                a("v_accvgpr_read_b32 v%d, a%d" % (oproj.wv + j, oproj.aSave + j))
            for x in oproj.job_w(False) + oproj.job_x(False):
                a(x)

        @staticmethod
        def e1_items():
            return oproj.stage_items(g6, 0, 'wx') + oproj.stage_items(g6, 1, 'wx')

        @staticmethod
        def e2_items():
            return oproj.stage_items(g6, 2, 'wx')
    attn4.attention(a, st, H)
    st(a)
    q = VmQ()
    for s in range(3):
        q.push(s, 8)
    q.push('ctx', 8)
    oproj.read_bases(a, 4)
    g6.init(a, [4])
    g6.pro(a, q.need(0), dma=oproj.stage_items(g6, 3, 'wx') + oproj.stage_items(g6, 4, 'wx'))
    q.push(3, 8)
    q.push(4, 8)

    def sig_ctx():
        a("s_lshl_b32 s4, s%d, 7" % attn4.sHead)
        a("s_lshl_b32 s5, s%d, 12" % attn4.sPair)
        a("s_add_u32 s6, s4, %d" % F_CTX)
        a("s_add_u32 s7, s6, %d" % (15 << 12))
        a("s_add_u32 s6, s6, s5")
        a("s_sub_u32 s7, s7, s5")
        signal(a, 6, ["s6", "s7"])
        a("s_lshl_b32 s91, s%d, 1" % oproj.sRb)
        a("s_add_u32 s91, s91, s%d" % oproj.sKh)
        a("s_lshl_b32 s91, s91, 11")
        a("s_add_u32 s91, s91, %d" % F_CTX)
    for s in range(1, 8):
        N = q.need(1, 'ctx') if s == 1 else q.need(s)
        if s == 1:
            q.push('sig', 2)
        if s <= 3:
            it = g6.dma_items()
            q.push(s + 4, 8)
        else:
            it = (oproj.job_w(True) if s == 4 else []) + g6.group_items(g6.dma[0])
            q.push(('w', s + 4), 4)
        if s == 7:
            it += [flag_load(6, "s91", 14)]
        g6.iter(a, N, it, after_bar=sig_ctx if s == 1 else None)
    a("s_waitcnt vmcnt(0) lgkmcnt(0)")
    a("s_barrier")
    st(a)
    flag_check(a, 6, "s91", 14)
    st(a)
    for x in oproj.job_x(True):
        a(x)
    it = []
    for s in range(8, 13):
        it += oproj.stage_items(g7, s, 'x' if s < 12 else 'wx')
    g6.half(a, 1, rd=False, dma=it)
    oproj.xch_srd(a)
    oproj.send(a, oproj.AB, False)
    st(a)
    a("s_waitcnt vmcnt(28)")
    a("s_barrier")
    for x in g7.reads(0):
        a(x)
    a("s_waitcnt lgkmcnt(0)")
    g7.half(a, 0, first=True, adv=True)
    g7.iter(a, 24, g7.dma_items())
    a("s_mov_b32 s%d, 26" % g7.sCnt)
    g7.loop(a, 24)

    def sig_b():
        oproj.flag_pos(a, False, True, 6)
        signal(a, 6, ["s6"])
        oproj.flag_pos(a, False, False, 90)
    g7.iter(a, 24, after_bar=sig_b)
    g7.iter(a, 17)
    g7.iter(a, 9, [flag_load(6, "s90")])
    g7.iter(a, 0, oproj.recv_items(False), adv=False, after_bar=lambda: flag_check(a, 6, "s90"))
    g7.tail(a, bar=False)
    st(a)
    oproj.send(a, oproj.AA, True)
    oproj.out_setup(a)
    a("s_waitcnt vmcnt(8)")
    oproj.finish(a, oproj.AB, False)
    oproj.flag_pos(a, True, True, 6)
    oproj.flag_pos(a, True, False, 90)
    a("s_waitcnt vmcnt(4)")
    a("s_barrier")
    signal(a, 6, ["s6"])
    a(flag_load(4, "s90"))
    a("s_waitcnt vmcnt(0)")
    st(a)
    flag_check(a, 4, "s90")
    st(a)
    for x in oproj.recv_items(True):
        a(x)
    a("s_waitcnt vmcnt(0)")
    oproj.finish(a, oproj.AA, True)
    st(a)
    if stamp:
        a("s_waitcnt vmcnt(0)")
    st(a)
    st.flush(a)
    return fin(a)


def fin(a):
    a.label("Lend")
    a("s_endpgm")
    t = a.finish()
    if 'nodma' in MFL:
        t = "\n".join(l for l in t.split("\n") if not l.rstrip().endswith(" lds"))
    return t.replace("CODE_KB", os.environ.get("CODE_KB", "70"))
```

```python
from lib import *
from gemm4 import *

xv, wv = 48, 56
sX, sW, sXb = 46, 47, 48
sM0, sN0 = 61, 62
sSt = 63
T = 32
ROT = int(os.environ.get("ROT", 1))
XS0 = 2


def acc(mi, ni):
    b = mi * 8 + ni
    return ('v', 64 + 4 * b) if b < 48 else ('a', 128 + 4 * (b - 48))


def make(orient):
    g = Gemm()
    g.name = "p1" + orient
    RX, RW = Ring(3, 32 * KB, 36), Ring(2, 32 * KB, 41)
    RX.regs, RW.regs = [16, 17], [18, 19, 20, 21]
    g.rings = [RX, RW]
    g.xrd, g.wrd = [(16, 17)], [18, 19, 20, 21]
    g.xfr = [(0, 2048 * i) for i in range(8)]
    g.wfr = [(ni & 3, (ni >> 2) * 8192) for ni in range(8)]
    g.mf = [(acc(mi, ni), mi, ni, orient) for ni in range(8) for mi in range(8)]
    g.fx, g.fw = 0, 64
    g.sCnt = 35
    ld = lambda v, s, o, j: "buffer_load_dwordx4 v%d, s[%d:%d], s%d offen offset:%d lds" % (v + j, s, s + 3, o, 1024 * (j & 3))
    g.dma = [
        (RW, 0, [ld(wv, 12, sW, j) for j in range(4)], []),
        (RW, 4096, [ld(wv, 12, sW, j) for j in range(4, 8)],
         ["s_add_u32 s%d, s%d, %d" % (sW, sW, 64 * 8192), "s_and_b32 s%d, s%d, %d" % (sW, sW, 512 * 8192 - 1)]),
        (RX, 0, [ld(xv, 8, sX, j) for j in range(4)], []),
        (RX, 4096, [ld(xv, 8, sX, j) for j in range(4, 8)],
         ["s_add_u32 s%d, s%d, 128" % (sX, sX), "s_and_b32 s%d, s%d, 1023" % (sX, sX)]),
    ]
    return g


def xitems(g, s):
    off = (((XS0 + s) % 3) - XS0) * 32 * KB
    return g.group_items(g.dma[2], off) + g.group_items(g.dma[3], off)


def witems(g, s):
    return g.group_items(g.dma[0], s * 32 * KB) + g.group_items(g.dma[1], s * 32 * KB)


def setup(a, g):
    RX, RW = g.rings
    a("s_and_b32 s4, s2, 1")
    a("s_lshl_b32 s4, s4, 2")
    a("s_bfe_u32 s5, s2, 0x20003")
    a("s_add_u32 s%d, s4, s5" % sM0)
    a("s_bfe_u32 s4, s2, 0x20001")
    a("s_lshl_b32 s4, s4, 2")
    a("s_bfe_u32 s5, s2, 0x20005")
    a("s_add_u32 s%d, s4, s5" % sN0)
    a("s_lshl_b32 s4, s%d, 13" % S_WAVE)
    a("s_add_u32 s%d, s4, %d" % (RX.sWr, XS0 * 32 * KB))
    a("s_add_u32 s%d, s4, %d" % (RW.sWr, 96 * KB))
    lane_setup(a, T)
    a("s_lshl_b32 s4, s%d, 2" % sM0)
    a("s_add_u32 s4, s4, s%d" % S_WAVE)
    a("s_lshl_b32 s4, s4, 6")
    a("v_add_u32 v%d, s4, v%d" % (T + 2, T))
    a("v_lshl_add_u32 v%d, v%d, 10, v%d" % (T + 2, T + 2, T + 1))
    for j in range(8):
        a("v_add_u32 v%d, %d, v%d" % (xv + j, 8 * j * 1024 - 1024 * (j & 3), T + 2))
    a("v_lshrrev_b32 v%d, 2, v%d" % (T + 2, T))
    a("v_and_b32 v%d, 3, v%d" % (T + 3, T))
    a("v_lshl_add_u32 v%d, v%d, 3, v%d" % (T + 2, T + 2, T + 3))
    a("s_lshl_b32 s4, s%d, 2" % sN0)
    a("s_add_u32 s4, s4, s%d" % S_WAVE)
    a("s_lshl_b32 s4, s4, 7")
    a("v_lshl_add_u32 v%d, v%d, 13, v%d" % (T + 2, T + 2, T + 1))
    a("v_add_u32 v%d, s4, v%d" % (T + 2, T + 2))
    for j in range(8):
        a("v_add_u32 v%d, %d, v%d" % (wv + j, (32 * (j >> 2) + 16 * (j & 1) + 4 * ((j >> 1) & 1)) * 8192 - 1024 * (j & 3), T + 2))
    a("s_and_b32 s6, s2, %d" % (7 if ROT else 0))
    a("s_lshl_b32 s%d, s6, 7" % sX)
    a("s_lshl_b32 s%d, s6, 19" % sW)
    a("s_waitcnt lgkmcnt(0)")
    srd(a, 8, P_CKV, 2048 * 1024)
    a("s_cmp_lt_u32 s2, 128")
    a("s_cselect_b32 s12, s%d, s%d" % (P_WUK, P_WUV))
    a("s_cselect_b32 s13, s%d, s%d" % (P_WUK + 1, P_WUV + 1))
    a("s_mov_b32 s14, %d" % (512 * 8192))
    a("s_mov_b32 s15, 0x00020000")


def read_bases(a, g):
    a("s_lshr_b32 s4, s%d, 1" % S_WAVE)
    a("s_lshl_b32 s4, s4, 14")
    a("s_add_u32 s4, s4, %d" % (XS0 * 32 * KB))
    xread_base(a, 16, 17, T, "s4")
    a("s_and_b32 s4, s%d, 1" % S_WAVE)
    a("s_lshl_b32 s4, s4, 14")
    a("s_add_u32 s4, s4, %d" % (96 * KB))
    wread_base(a, g.wrd, range(4), T, "s4")


def out_base(a):
    a("s_and_b32 s4, s%d, 1" % S_WAVE)
    a("s_lshl_b32 s5, s%d, 1" % sN0)
    a("s_add_u32 s4, s4, s5")
    a("s_lshr_b32 s5, s%d, 1" % S_WAVE)
    a("s_lshl_b32 s6, s%d, 1" % sM0)
    a("s_add_u32 s5, s5, s6")
    srd(a, 16, P_WS, 32 * MB, WS_KV)
    a("s_lshl_b32 s4, s4, 20")
    a("s_lshl_b32 s5, s5, 16")
    a("s_add_u32 s%d, s4, s5" % sSt)
    a("s_lshr_b32 s4, s2, 7")
    a("s_lshl_b32 s4, s4, 14")
    a("s_add_u32 s%d, s%d, s4" % (sSt, sSt))


def packed(j):
    if j < 8:
        return 160 + 4 * j
    if j >= 24:
        return 224 + 4 * (j - 24)
    return 128 + 64 * ((j >> 3) - 1) + 4 * (j & 7)


def pack(a, kind_):
    for j in list(range(8, 24)) + list(range(8)) + list(range(24, 32)):
        p0, p1 = (acc(j >> 2, 2 * (j & 3)), acc(j >> 2, 2 * (j & 3) + 1)) if kind_ == 'k' else (acc(2 * (j >> 3), j & 7), acc(2 * (j >> 3) + 1, j & 7))
        if p0[0] == 'a':
            src = [64 + 8 * (j - 24) + e for e in range(8)]
            for e in range(8):
                a("v_accvgpr_read_b32 v%d, a%d" % (src[e], (p0, p1)[e >> 2][1] + (e & 3)))
        else:
            src = [p0[1] + e for e in range(4)] + [p1[1] + e for e in range(4)]
        for e in range(4):
            a("v_cvt_pk_bf16_f32 v%d, v%d, v%d" % (packed(j) + e, src[2 * e], src[2 * e + 1]))


def trickle(j0, j1):
    L = []
    for j in range(j0, min(j1, 32)):
        L.append("buffer_store_dwordx4 %s, v2, s[16:19], s%d offen offset:%d%s" % (v4(packed(j)), sSt, 1024 * (j & 3), SC1))
        if j & 3 == 3:
            L.append("s_add_u32 s%d, s%d, %d" % (sSt, sSt, 32768 - 3 * 4096 if j == 15 else 4096))
    return L


def pf_setup(a, d, so, pa, na, pb, nb):
    cut = (256 * na + na + nb - 1) // (na + nb)
    a("s_cmp_lt_u32 s2, %d" % cut)
    a("s_cselect_b32 s%d, s%d, s%d" % (d, pa, pb))
    a("s_cselect_b32 s%d, s%d, s%d" % (d + 1, pa + 1, pb + 1))
    a("s_cselect_b32 s%d, 0, %d" % (so, cut))
    a("s_mov_b32 s%d, %d" % (d + 2, nb * MB))
    a("s_cselect_b32 s%d, %d, s%d" % (d + 2, na * MB, d + 2))
    a("s_mov_b32 s%d, 0x00020000" % (d + 3))
    a("s_sub_u32 s%d, s2, s%d" % (so, so))
    a("s_lshl_b32 s%d, s%d, 2" % (so, so))
    a("s_add_u32 s%d, s%d, s%d" % (so, so, S_WAVE))
    a("s_mul_i32 s%d, s%d, %d" % (so, so, (na + nb) * 1024))


def pf_items(d, so, n):
    if 'nopf' in GFL or not n:
        return []
    return ["buffer_load_dwordx4 a[192:195], v2, s[%d:%d], s%d offen offset:%d ; @dummy" % (d, d + 3, so, 1024 * i) for i in range(n)] + \
           ["s_add_u32 s%d, s%d, %d" % (so, so, 1024 * n)]
```

```python
from lib import *
from gemm4 import *
import attn4
from attn4 import Oreg, aQ, vO, CST

xv, wv, rd = 4, 8, 16
aSave = 222
sXA, sXB, sW = 46, 47, 48
XBASE, XS0 = 64 * KB, 1


def make():
    g = Gemm()
    g.name = "p3"
    RX, RW = Ring(3, 32 * KB, 36), Ring(3, 16 * KB, 41)
    RX.regs, RW.regs = [rd, rd + 1], list(range(rd + 2, rd + 6))
    g.rings = [RX, RW]
    g.xrd, g.wrd = [(rd, rd + 1)], list(range(rd + 2, rd + 6))
    g.xfr = [(0, 2048 * i) for i in range(4)]
    g.wfr = [(ni & 3, (ni >> 2) * 8192) for ni in range(8)]
    g.mf = [(Oreg(mi, ni), mi, ni, 'wx') for ni in range(8) for mi in range(4)]
    g.fx, g.fw = 0, 32
    g.sCnt = 35
    ld = lambda v, s, o, j: "buffer_load_dwordx4 v%d, s[%d:%d], s%d offen offset:%d lds" % (v + j, s, s + 3, o, 1024 * j)
    g.dma = [
        (RW, 0, [ld(wv, 12, sW, j) for j in range(4)],
         ["s_add_u32 s%d, s%d, %d" % (sW, sW, 64 * 8192), "s_and_b32 s%d, s%d, %d" % (sW, sW, 1024 * 8192 - 1)]),
        (RX, 0, [ld(xv, 8, sXA, j) for j in range(4)], []),
        (RX, 4096, [ld(xv, 8, sXB, j) for j in range(4)],
         ["s_add_u32 s49, s49, 128", "s_and_b32 s49, s49, 2047", "s_or_b32 s%d, s50, s49" % sXA, "s_or_b32 s%d, s51, s49" % sXB]),
    ]
    return g


def lanes(a, T):
    lane_setup(a, T)
    a("v_lshlrev_b32 v%d, 2, v%d" % (T + 2, T))
    a("v_add_u32 v%d, s%d, v%d" % (T + 2, S_WAVE, T + 2))
    a("v_lshl_add_u32 v%d, v%d, 11, v%d" % (T + 2, T + 2, T + 1))
    for j in range(4):
        a("v_add_u32 v%d, %d, v%d" % (T + 3, (32 * j) * 2048 - 1024 * j, T + 2))
        a("v_accvgpr_write_b32 a%d, v%d" % (aSave + j, T + 3))
    a("v_lshrrev_b32 v%d, 2, v%d" % (T + 2, T))
    a("v_and_b32 v%d, 3, v%d" % (T + 3, T))
    a("v_lshl_add_u32 v%d, v%d, 3, v%d" % (T + 2, T + 2, T + 3))
    a("s_and_b32 s4, s%d, 1" % S_WAVE)
    a("s_lshl_b32 s4, s4, 18")
    a("s_lshr_b32 s5, s%d, 1" % S_WAVE)
    a("s_lshl_b32 s5, s5, 7")
    a("s_add_u32 s4, s4, s5")
    a("s_lshl_b32 s5, s%d, 8" % attn4.sHead)
    a("s_add_u32 s4, s4, s5")
    a("v_lshl_add_u32 v%d, v%d, 13, v%d" % (T + 2, T + 2, T + 1))
    a("v_add_u32 v%d, s4, v%d" % (T + 2, T + 2))
    for j in range(4):
        a("v_add_u32 v%d, %d, v%d" % (T + 3, (16 * (j & 1) + 4 * (j >> 1)) * 8192 - 1024 * j, T + 2))
        a("v_accvgpr_write_b32 a%d, v%d" % (aSave + 4 + j, T + 3))
    t = T + 4
    a("s_lshl_b32 s4, s%d, 13" % S_WAVE)
    a("s_add_u32 s4, s4, %d" % (XBASE + XS0 * 32 * KB))
    xread_base(a, t, t + 1, T, "s4")
    wread_base(a, [t + 2 + i for i in range(4)], range(4), T, "0")
    for i in range(6):
        a("v_accvgpr_write_b32 a%d, v%d" % (aSave + 8 + i, t + i))


def setup(a, g):
    RX, RW = g.rings
    for i in range(8):
        a("v_accvgpr_read_b32 v%d, a%d" % (xv + i, aSave + i))
    srd(a, 8, P_AX, 2048 * 2048)
    srd(a, 12, P_WQ, 1024 * 8192)
    a("s_and_b32 s4, s2, %d" % (7 if int(os.environ.get("ROT3", 1)) else 0))
    a("s_lshl_b32 s49, s4, 8")
    a("s_lshl_b32 s%d, s4, 20" % sW)
    a("s_lshl_b32 s50, s%d, 18" % attn4.sPair)
    a("s_sub_u32 s51, %d, s50" % (15 << 18))
    a("s_or_b32 s%d, s50, s49" % sXA)
    a("s_or_b32 s%d, s51, s49" % sXB)
    a("s_lshl_b32 s%d, s%d, 12" % (RW.sWr, S_WAVE))
    a("s_lshl_b32 s%d, s%d, 13" % (RX.sWr, S_WAVE))
    a("s_add_u32 s%d, s%d, %d" % (RX.sWr, RX.sWr, XBASE + XS0 * 32 * KB))


def restore(a):
    for i in range(6):
        a("v_accvgpr_read_b32 v%d, a%d" % (rd + i, aSave + 8 + i))


def xitems(g, s):
    off = (((XS0 + s) % 3) - XS0) * 32 * KB
    return g.group_items(g.dma[1], off) + g.group_items(g.dma[2], off)


def witems(g, s):
    return g.group_items(g.dma[0], s * 16 * KB)


def epilogue(a):
    a("s_mov_b32 s4, 0x%08x" % f32bits(CST))
    a("s_mov_b32 s5, s4")
    for g in range(4):
        for ds in range(4):
            b = vO + 4 * (8 * g + 2 * ds)
            for e in range(0, 8, 2):
                a("v_pk_mul_f32 v[%d:%d], v[%d:%d], s[4:5]" % (b + e, b + e + 1, b + e, b + e + 1))
            for e in range(4):
                a("v_cvt_pk_bf16_f32 v%d, v%d, v%d" % (b + e, b + 2 * e, b + 2 * e + 1))
            for e in range(4):
                a("v_accvgpr_write_b32 a%d, v%d" % (aQ + 4 * (4 * g + ds) + e, b + e))
```

```python
import sys, os
sys.path.insert(0, os.path.join(os.path.dirname(os.path.abspath(__file__)), "..", "gen"))
from asmlib import Asm
MB = 1 << 20

def srd(a, d, lo, hi, size, off=0):
    if off:
        a("s_add_u32 s%d, s%d, %d" % (d, lo, off))
        a("s_addc_u32 s%d, s%d, 0" % (d + 1, hi))
    else:
        a("s_mov_b32 s%d, s%d" % (d, lo))
        a("s_mov_b32 s%d, s%d" % (d + 1, hi))
    a("s_mov_b32 s%d, %d" % (d + 2, size))
    a("s_mov_b32 s%d, 0x00020000" % (d + 3))

def begin(a, name):
    a("s_cmp_ge_u32 s2, 256")
    a("s_cbranch_scc1 L%s_end" % name)
    a("s_load_dwordx2 s[90:91], s[0:1], 88")
    a("s_memrealtime s[92:93]")
    a("s_memtime s[94:95]")
    a("s_waitcnt lgkmcnt(0)")
    a("v_lshrrev_b32 v2, 6, v0")
    a("v_readfirstlane_b32 s29, v2")
    a("v_and_b32 v1, 63, v0")

def end(a, name):
    a("s_waitcnt vmcnt(0) lgkmcnt(0)")
    a("s_barrier")
    a("s_memrealtime s[96:97]")
    a("s_memtime s[98:99]")
    a("s_waitcnt lgkmcnt(0)")
    srd(a, 80, 90, 91, 1 << 20, 200 * MB)
    a("s_sub_u32 s98, s98, s94")
    a("v_mov_b32 v4, s92")
    a("v_mov_b32 v5, s96")
    a("v_mov_b32 v6, s98")
    a("v_mov_b32 v7, 0")
    a("v_mov_b32 v8, 0")
    a("s_lshl_b32 s4, s2, 4")
    a("s_cmp_lg_u32 s29, 0")
    a("s_cbranch_scc1 L%s_end" % name)
    a("buffer_store_dwordx4 v[4:7], v8, s[80:83], s4 offen")
    a.label("L%s_end" % name)
    a("s_endpgm")

def desc(name, nv=256, acc=256):
    return """.p2align 6
.amdhsa_kernel %s
  .amdhsa_next_free_vgpr %d
  .amdhsa_next_free_sgpr 102
  .amdhsa_accum_offset %d
  .amdhsa_group_segment_fixed_size 0
  .amdhsa_kernarg_size 96
  .amdhsa_user_sgpr_count 2
  .amdhsa_user_sgpr_kernarg_segment_ptr 1
  .amdhsa_system_sgpr_workgroup_id_x 1
.end_amdhsa_kernel
""" % (name, nv, acc)

def write(path, kernels):
    out = "; mb\n"
    for k in kernels:
        out += "; @launch kernel=%s_kernel grid=(256,1,1) block=(%d,1,1) lds=%d\n" % (k[0], k[2], k[3])
    out += '.amdgcn_target "amdgcn-amd-amdhsa--gfx950"\n.text\n'
    for k in kernels:
        n = k[0] + "_kernel"
        out += ".globl %s\n.p2align 8\n.type %s,@function\n%s:\n" % (n, n, n) + k[1]
    out += '.section .rodata,"a"\n'
    for k in kernels:
        out += desc(k[0] + "_kernel", k[4], k[5])
    open(path, "w").write(out)
```

```python
from mblib import *
def kern(name, nst, flag, nact=256, pace=0):
    a = Asm()
    begin(a, name)
    a("s_cmp_ge_u32 s2, %d" % nact)
    a("s_cbranch_scc1 L%s_fin" % name)
    srd(a, 8, 90, 91, 128 * MB, 64 * MB)
    a("s_lshl_b32 s4, s2, 2")
    a("s_add_u32 s4, s4, s29")
    a("s_mul_i32 s20, s4, %d" % (nst * 1024))
    a("v_lshlrev_b32 v16, 4, v1")
    for i in range(4):
        a("v_mov_b32 v%d, v0" % (20 + i))
    for j in range(nst):
        a("buffer_store_dwordx4 v[20:23], v16, s[8:11], s20 offen%s" % flag)
        a("s_add_u32 s20, s20, 1024")
        for _ in range(pace):
            a("s_sleep 2")
    a.label("L%s_fin" % name)
    end(a, name)
    return (name, a.finish(), 256, 163840, 64, 64)
ks = []
for fl in ("", " sc1", " nt", " sc0 sc1"):
    for nst in (8, 32):
        ks.append(kern("st%d%s" % (nst, fl.replace(" ", "_")), nst, fl))
    ks.append(kern("st32_n128%s" % fl.replace(" ", "_"), 32, fl, nact=128))
    ks.append(kern("st1%s" % fl.replace(" ", "_"), 1, fl))
write("st1.s", ks)
```

```python
from lib import *
from gemm4 import *

CB = (32 ** -0.5) * math.log2(math.e)
xv, hv, wv = 4, 14, 8
rd = 16
aRd = 216
sX, sW, sM1, sM2, sM3 = 30, 31, 26, 27, 28
sRb, sHp = 32, 33
T = 32
A0 = 24
BASE, SLOT, WOFF = 32 * KB, 42 * KB, 18 * KB
XCH = 48 * KB
WS_ = 20


def accq(mi, b): return ('v', A0 + 4 * (2 * mi + b))
def acck(mi, b): return ('v', A0 + 32 + 4 * (2 * mi + b))
def accv(mi, b): return ('v', A0 + 64 + 4 * (2 * mi + b))
def acch(b): return ('v', A0 + 96 + 4 * b)


def make(rh):
    g = Gemm()
    g.name, g.woff = "p2r%d" % rh, WOFF
    R = Ring(3, SLOT, 88)
    R.regs = list(range(rd, rd + 6))
    g.rings = [R]
    g.xrd, g.wrd = [(rd, rd + 1), (rd + 2, rd + 3)], [rd + 4, rd + 5]
    g.xfr = [(0, 2048 * i) for i in range(4)] + [(1, 0)]
    g.wfr = [(b, p * 8192) for p in range(3) for b in range(2)]
    mf = []
    for b in range(2):
        mf += [(accq(mi, b), mi, b, 'wx') for mi in range(4)]
    for b in range(2):
        mf += [(acck(mi, b), mi, 2 + b, 'wx') for mi in range(4)]
        if rh == 0:
            mf.append((acch(b), 4, 2 + b, 'wx'))
    for b in range(2):
        mf += [(accv(mi, b), mi, 4 + b, 'xw') for mi in range(4)]
        if rh == 1:
            mf.append((acch(b), 4, 4 + b, 'xw'))
    g.mf = mf
    g.fx, g.fw = 0, 40
    g.sCnt = 35
    ld = lambda v, s, o, j: "buffer_load_dwordx4 v%d, s[%d:%d], s%d offen offset:%d lds" % (v, s, s + 3, o, 1024 * j)
    g.dma = [
        (R, ('s', sM3), [ld(hv, 8, sX, 0)], []),
        (R, 0, [ld(xv + j, 8, sX, j) for j in range(4)], ["s_add_u32 s%d, s%d, 128" % (sX, sX), "s_and_b32 s%d, s%d, 2047" % (sX, sX)]),
        (R, ('s', sM1), [ld(wv + j, WS_, sW, j) for j in range(3)], []),
        (R, ('s', sM2), [ld(wv + 3 + j, WS_, sW, j) for j in range(3)],          ["s_add_u32 s%d, s%d, %d" % (sW, sW, 64 * 6144),
          "s_cmp_ge_u32 s%d, %d\ns_cselect_b32 s29, %d, 0" % (sW, 1024 * 6144, 1024 * 6144), "s_sub_u32 s%d, s%d, s29" % (sW, sW)]),
    ]
    if rh:
        g.dma = g.dma[1:]
    return g


def stage_items(a, g0, s, what):
    L = []
    if 'x' in what:
        lab = a.newlabel("Lh")
        m, ld = g0.group_items(g0.dma[0], s * SLOT)
        L.append("s_cmp_ge_u32 s%d, 2\ns_cbranch_scc1 %s\n%s\ns_nop 0\n%s\n%s:" % (S_WAVE, lab, m, ld, lab))
        L += g0.group_items(g0.dma[1], s * SLOT)
    if 'w' in what:
        L += g0.group_items(g0.dma[2], s * SLOT) + g0.group_items(g0.dma[3], s * SLOT)
    return L


def xsrd():
    L = ["s_lshl_b32 s10, s%d, 18" % sRb,
         "s_add_u32 s8, s%d, s10\ns_addc_u32 s9, s%d, 0" % (P_BX, P_BX + 1),
         "s_sub_u32 s8, s8, %d\ns_subb_u32 s9, s9, 0" % (16 * 2048),
         "s_mov_b32 s10, %d" % (144 * 2048), "s_mov_b32 s11, 0x00020000"]
    return L


def setup(a, g):
    R = g.rings[0]
    a("s_and_b32 s4, s2, 1")
    a("s_lshl_b32 s4, s4, 3")
    a("s_bfe_u32 s5, s2, 0x30003")
    a("s_add_u32 s%d, s4, s5" % sRb)
    a("s_bfe_u32 s4, s2, 0x20001")
    a("s_lshl_b32 s4, s4, 2")
    a("s_lshr_b32 s5, s2, 6")
    a("s_add_u32 s%d, s4, s5" % sHp)
    srd(a, WS_, P_WQKV, 1024 * 6144)
    a("s_and_b32 s4, s2, %d" % (7 if int(os.environ.get("ROT2", 1)) else 0))
    a("s_lshl_b32 s4, s4, 1")
    a("s_add_u32 s5, s%d, s%d" % (sRb, sHp))
    a("s_and_b32 s5, s5, %d" % int(os.environ.get("SK2M", 3)))
    a("s_mul_i32 s5, s5, %d" % int(os.environ.get("SK2", 1)))
    a("s_add_u32 s4, s4, s5")
    a("s_and_b32 s4, s4, 15")
    a("s_lshl_b32 s%d, s4, 7" % sX)
    a("s_mul_i32 s4, s4, %d" % (64 * 6144))
    a("s_lshl_b32 s%d, s%d, 7" % (sW, sHp))
    a("s_add_u32 s%d, s%d, s4" % (sW, sW))
    a("s_lshl_b32 s%d, s%d, 12" % (R.sWr, S_WAVE))
    a("s_add_u32 s%d, s%d, %d" % (R.sWr, R.sWr, BASE))
    a("s_lshl_b32 s4, s%d, 11" % S_WAVE)
    a("s_add_u32 s%d, s4, %d" % (sM1, WOFF))
    a("s_add_u32 s%d, s%d, 3072" % (sM2, sM1))
    a("s_mul_i32 s4, s%d, 3072" % S_WAVE)
    a("s_sub_u32 s%d, %d, s4" % (sM3, 16 * KB))
    lane_setup(a, T)
    a("s_lshl_b32 s4, s%d, 5" % S_WAVE)
    a("s_add_u32 s4, s4, 16")
    a("v_add_u32 v%d, s4, v%d" % (T + 2, T))
    a("v_lshl_add_u32 v%d, v%d, 11, v%d" % (T + 2, T + 2, T + 1))
    for j in range(4):
        a("v_add_u32 v%d, %d, v%d" % (xv + j, 8 * j * 2048 - 1024 * j, T + 2))
    a("s_lshl_b32 s4, s%d, 14" % S_WAVE)
    a("s_cmp_eq_u32 s%d, 0" % sRb)
    a("s_cselect_b32 s4, 0x40000000, s4")
    a("v_lshl_add_u32 v%d, v%d, 11, v%d" % (T + 2, T, T + 1))
    a("v_add_u32 v%d, s4, v%d" % (hv, T + 2))
    a("v_lshrrev_b32 v%d, 2, v%d" % (T + 2, T))
    a("v_and_b32 v%d, 3, v%d" % (T + 3, T))
    a("v_lshl_add_u32 v%d, v%d, 3, v%d" % (T + 2, T + 2, T + 3))
    a("v_mul_u32_u24 v%d, 6144, v%d" % (T + 2, T + 2))
    a("v_add_u32 v%d, v%d, v%d" % (T + 2, T + 2, T + 1))
    a("s_mul_i32 s6, s%d, 6" % S_WAVE)
    for j in range(6):
        a("s_add_u32 s7, s6, %d" % j)
        a("s_bfe_u32 s4, s7, 0x10002")
        a("s_lshl_b32 s4, s4, 5")
        a("s_and_b32 s5, s7, 1")
        a("s_lshl_b32 s5, s5, 4")
        a("s_add_u32 s4, s4, s5")
        a("s_bfe_u32 s5, s7, 0x10001")
        a("s_lshl_b32 s5, s5, 2")
        a("s_add_u32 s4, s4, s5")
        a("s_mul_i32 s4, s4, 6144")
        a("s_lshr_b32 s5, s7, 3")
        a("s_lshl_b32 s5, s5, 11")
        a("s_add_u32 s4, s4, s5")
        a("s_add_u32 s4, s4, %d" % (2048 - 1024 * (j % 3)))
        a("v_add_u32 v%d, s4, v%d" % (wv + j, T + 2))
    a("s_sub_u32 s%d, s%d, 2048" % (WS_, WS_))
    a("s_subb_u32 s%d, s%d, 0" % (WS_ + 1, WS_ + 1))
    a("s_add_u32 s%d, s%d, 2048" % (WS_ + 2, WS_ + 2))
    a("s_lshr_b32 s4, s%d, 1" % S_WAVE)
    a("s_lshl_b32 s4, s4, 13")
    a("s_add_u32 s4, s4, %d" % BASE)
    t = 40
    xread_base(a, t, t + 1, T, "s4")
    xread_base(a, t + 2, t + 3, T, "%d" % (BASE + 16 * KB))
    wread_base(a, [t + 4, t + 5], [0, 1], T, "%d" % BASE)
    a("s_and_b32 s4, s%d, 1" % S_WAVE)
    a("s_lshl_b32 s4, s4, 6")
    a("v_xor_b32 v%d, s4, v%d" % (t + 4, t + 4))
    a("v_xor_b32 v%d, s4, v%d" % (t + 5, t + 5))
    for i in range(6):
        a("v_accvgpr_write_b32 a%d, v%d" % (aRd + i, t + i))


def restore(a):
    for i in range(6):
        a("v_accvgpr_read_b32 v%d, a%d" % (rd + i, aRd + i))


def local_attn(a, rh, SF=SC1):
    QP, KP, VP, MC, MP, MP0 = 128, 144, 164, 184, 188, 192
    S0 = A0
    TM = 196
    cvt = lambda d, s: (a("v_cvt_pk_bf16_f32 v%d, v%d, v%d" % (d, s, s + 1)), a("v_cvt_pk_bf16_f32 v%d, v%d, v%d" % (d + 1, s + 2, s + 3)))
    a("s_and_b32 s4, s%d, 1" % S_WAVE)
    a("s_mul_i32 s4, s4, 3072")
    a("s_add_u32 s4, s4, %d" % XCH)
    a("v_add_u32 v%d, s4, v2" % TM)
    if rh == 0:
        for b in range(2):
            cvt(KP + 16 + 2 * b, acck(3, b)[1])
            cvt(VP + 10 * b + 8, accv(3, b)[1])
        a("ds_write_b128 v%d, %s" % (TM, v4(KP + 16)))
        a("ds_write_b64 v%d, v[%d:%d] offset:1024" % (TM, VP + 8, VP + 9))
        a("ds_write_b64 v%d, v[%d:%d] offset:1032" % (TM, VP + 18, VP + 19))
    else:
        for b in range(2):
            cvt(TM + 4 + 2 * b, acch(b)[1])
        a("ds_write_b128 v%d, %s offset:2048" % (TM, v4(TM + 4)))
    a("v_and_b32 v%d, 15, v1" % (TM + 1))
    a("v_lshrrev_b32 v%d, 4, v1" % (TM + 2))
    a("v_lshlrev_b32 v%d, 2, v%d" % (TM + 2, TM + 2))
    a("v_sub_u32 v%d, v%d, v%d" % (TM + 1, TM + 1, TM + 2))
    a("v_mov_b32 v%d, 0xf149f2ca" % (TM + 2))
    for r in range(4):
        a("v_subrev_u32 v%d, %d, v%d" % (TM + 3, r, TM + 1))
        a("v_and_b32 v%d, 0x80000001, v%d" % (MC + r, TM + 3))
        a("v_cmp_ne_u32 vcc, 0, v%d" % (MC + r))
        a("v_cndmask_b32 v%d, 0, v%d, vcc" % (MC + r, TM + 2))
        a("v_add_u32 v%d, 1, v%d" % (TM + 3, TM + 3))
        a("v_and_b32 v%d, 0x80000001, v%d" % (MP + r, TM + 3))
        a("v_cmp_ne_u32 vcc, 0x80000001, v%d" % (MP + r))
        a("v_cndmask_b32 v%d, 0, v%d, vcc" % (MP + r, TM + 2))
    if rh == 0:
        a("s_cmp_eq_u32 s%d, 0" % sRb)
        a("s_cselect_b64 vcc, -1, 0")
        for r in range(4):
            a("v_cndmask_b32 v%d, v%d, v%d, vcc" % (MP0 + r, MP + r, TM + 2))
    a("s_mov_b32 s6, 0x%08x" % f32bits(CB))
    a("s_mov_b32 s7, s6")
    for mi in range(4):
        for b in range(2):
            s = accq(mi, b)[1]
            a("v_pk_mul_f32 v[%d:%d], v[%d:%d], s[6:7]" % (s, s + 1, s, s + 1))
            a("v_pk_mul_f32 v[%d:%d], v[%d:%d], s[6:7]" % (s + 2, s + 3, s + 2, s + 3))
        for b in range(2):
            cvt(QP + 4 * mi + 2 * b, accq(mi, b)[1])
    for mi in range(4):
        for b in range(2):
            if not (rh == 0 and mi == 3):
                cvt(KP + 4 * (mi + 1) + 2 * b, acck(mi, b)[1])
                cvt(VP + 10 * b + 2 * (mi + 1), accv(mi, b)[1])
    if rh == 0:
        for b in range(2):
            cvt(KP + 2 * b, acch(b)[1])
    a("v_mov_b32 v%d, 0x3f803f80" % (TM + 4))
    for i in range(1, 4):
        a("v_mov_b32 v%d, v%d" % (TM + 4 + i, TM + 4))
    a("s_waitcnt lgkmcnt(0)")
    a("s_barrier")
    if rh == 0:
        a("ds_read_b64 v[%d:%d], v%d offset:2048" % (VP, VP + 1, TM))
        a("ds_read_b64 v[%d:%d], v%d offset:2056" % (VP + 10, VP + 11, TM))
    else:
        a("ds_read_b128 %s, v%d" % (v4(KP), TM))
        a("ds_read_b64 v[%d:%d], v%d offset:1024" % (VP, VP + 1, TM))
        a("ds_read_b64 v[%d:%d], v%d offset:1032" % (VP + 10, VP + 11, TM))
    order = [3, 2, 1, 0]
    for mi in order:
        if mi == 0:
            a("s_waitcnt lgkmcnt(0)")
        a(mfma(('v', S0 + 8 * mi), ('v', KP + 4 * mi), ('v', QP + 4 * mi), ('v', MP0 if (rh == 0 and mi == 0) else MP)))
        a(mfma(('v', S0 + 8 * mi + 4), ('v', KP + 4 * mi + 4), ('v', QP + 4 * mi), ('v', MC)))
    M = A0 + 32
    from attn4 import rowmax, xmax
    for mi in order:
        rowmax(a, S0 + 8 * mi, M + 2 * mi, M + 2 * mi + 1)
    xmax(a, [(M + 2 * mi, M + 2 * mi + 1) for mi in order])
    for mi in order:
        for e in range(8):
            a("v_sub_f32 v%d, v%d, v%d" % (S0 + 8 * mi + e, S0 + 8 * mi + e, M + 2 * mi))
        for e in range(8):
            a("v_exp_f32 v%d, v%d" % (S0 + 8 * mi + e, S0 + 8 * mi + e))
    PP, LL, OO = M + 8, M + 24, M + 40
    for mi in order:
        for e in range(4):
            a("v_cvt_pk_bf16_f32 v%d, v%d, v%d" % (PP + 4 * mi + e, S0 + 8 * mi + 2 * e, S0 + 8 * mi + 2 * e + 1))
    for mi in order:
        a(mfma(('v', LL + 4 * mi), ('v', TM + 4), ('v', PP + 4 * mi), "0"))
        for b in range(2):
            a(mfma(('v', OO + 8 * mi + 4 * b), ('v', VP + 10 * b + 2 * mi), ('v', PP + 4 * mi), "0"))
    srd(a, 20, P_WS, 4 * MB, WS_OB)
    a("s_lshl_b32 s4, s%d, 18" % sRb)
    a("s_lshl_b32 s5, s%d, 14" % sHp)
    a("s_add_u32 s4, s4, s5")
    a("s_and_b32 s5, s%d, 1" % S_WAVE)
    a("s_lshl_b32 s5, s5, 13")
    a("s_add_u32 s4, s4, s5")
    if rh:
        a("s_add_u32 s4, s4, 4096")
    for mi in order:
        a("v_rcp_f32 v%d, v%d" % (LL + 4 * mi, LL + 4 * mi))
    for mi in order:
        a("v_mov_b32 v%d, v%d" % (LL + 4 * mi + 1, LL + 4 * mi))
    for mi in order:
        o = OO + 8 * mi
        for e in range(0, 8, 2):
            a("v_pk_mul_f32 v[%d:%d], v[%d:%d], v[%d:%d]" % (o + e, o + e + 1, o + e, o + e + 1, LL + 4 * mi, LL + 4 * mi + 1))
        for e in range(4):
            a("v_cvt_pk_bf16_f32 v%d, v%d, v%d" % (o + e, o + 2 * e, o + 2 * e + 1))
        a("buffer_store_dwordx4 %s, v2, s[20:23], s4 offen offset:%d%s" % (v4(o), mi * 1024, SF))
```

```python
from lib import *
from gemm4 import *
import proj4, bfront, attn4, oproj, qproj

MFL = set(os.environ.get("MFLAGS", "").split(","))


def gen(stamp=False):
    a = Asm()
    st = Stamps(stamp, 0)
    a("s_cmp_ge_u32 s2, 256")
    a("s_cbranch_scc1 Lend")
    a("s_load_dwordx16 s[64:79], s[0:1], 0")
    a("s_load_dwordx8 s[80:87], s[0:1], 64")
    a("v_lshrrev_b32 v2, 6, v0")
    a("v_and_b32 v1, 63, v0")
    a("v_readfirstlane_b32 s%d, v2" % S_WAVE)
    a("v_lshlrev_b32 v2, 4, v1")
    if 'ipf' in MFL:
        a("s_getpc_b64 s[6:7]")
        a("s_lshr_b32 s4, s2, 3")
        a("s_lshl_b32 s4, s4, 2")
        a("s_add_u32 s4, s4, s%d" % S_WAVE)
        a("s_min_u32 s4, s4, CODE_KB")
        a("s_lshl_b32 s4, s4, 10")
        a("v_add_u32 v3, s4, v2")
        a("global_load_dwordx4 v[4:7], v3, s[6:7]")
    st(a)
    gk, gv = proj4.make('wx'), proj4.make('xw')
    b0, b1 = bfront.make(0), bfront.make(1)
    g3 = qproj.make()
    proj4.setup(a, gk)
    srd(a, S_FLG, P_WS, 0x40000, WS_FLG)
    tag_make(a, 0)
    for x in proj4.xitems(gk, 0) + proj4.witems(gk, 0):
        a(x)
    proj4.read_bases(a, gk)
    if os.environ.get("PF1"):
        proj4.pf_setup(a, 56, 60, P_WQKV, 6, P_BX, 4)
        proj4.pf_setup(a, 52, 51, P_WQ, 8, P_AX, 4)
    attn4.ids(a)
    bfront.setup(a, b0)
    oproj.lanes(a, 28)
    qproj.lanes(a, 28)
    proj4.out_base(a)
    gk.init(a, [proj4.XS0, 0])
    for x in proj4.xitems(gk, 1) + proj4.witems(gk, 1):
        a(x)
    tag_make(a, 1, 32)
    st(a)
    if 'only2' in MFL:
        a("s_waitcnt vmcnt(0)")
        a("s_barrier")
        for x in bfront.xsrd() + [y for s in range(3) for y in bfront.stage_items(a, b0, s, 'xw')]:
            a(x)
        tag_load(a, 22)
        cut0 = len(a.ins)
    PF1 = [int(x) for x in os.environ.get("PF1", "0,0").split(",")]
    NP, NL = int(os.environ.get("NP", 6)), int(os.environ.get("NL", 13))
    a("s_cmp_lt_u32 s2, 128")
    a("s_cbranch_scc1 Lp1_k")
    k0 = st.k
    for kind_, g in (('v', gv), ('k', gk)):
        if kind_ == 'k':
            a.label("Lp1_k")
            st.k = k0
        g.pf = proj4.pf_items(56, 60, PF1[0]) + proj4.pf_items(52, 51, PF1[1])
        g.pro(a, 16, dma=proj4.xitems(g, 2))
        a("s_mov_b32 s%d, 5" % g.sCnt)
        g.loop(a, 8)
        g.iter(a, 8, proj4.witems(g, 0) + bfront.xsrd() + bfront.stage_items(a, b0, 0, 'x'))
        g.iter(a, 4, bfront.stage_items(a, b0, 0, 'w') + bfront.stage_items(a, b0, 1, 'xw'), adv=False)
        tag_load(a, 22)
        g.tail(a, bfront.stage_items(a, b0, 2, 'xw'))
        st(a)
        proj4.pack(a, kind_, NP)
        if kind_ == 'v':
            a("s_branch Lp2")
    if 'only2' in MFL:
        del a.ins[cut0:]
        st.k = 2
    if 'nost' in MFL:
        proj4.trickle = lambda a, b: ["s_nop 0"]
        VmQ.push0 = VmQ.push
        VmQ.push = lambda self, tag, n: VmQ.push0(self, tag, 0 if tag == 'st' else n)
    a.label("Lp2")
    st(a)
    b0.init(a)
    bfront.restore(a)
    a("s_cmp_ge_u32 s%d, 2" % S_WAVE)
    a("s_cbranch_scc1 Lp2_r1")
    k0 = st.k
    TRK = [int(x) for x in os.environ.get("TRK", "1,1,1,1,1,1,1,1,1,1,1,1,1").split(",")]
    TRK += [0] * (16 - len(TRK))
    cum = [NP + sum(TRK[:k]) for k in range(17)]
    assert cum[-1] + NL == 32
    Q3 = []
    for rh, g in enumerate((b0, b1)):
        if rh:
            a.label("Lp2_r1")
            st.k = k0
        n = 10 if rh else 11
        q = VmQ()
        q.push(0, n), q.push(1, n), q.push('t', 1), q.push(2, n), q.push('st', NP)
        g.pro(a, q.need(0), dma=proj4.trickle(cum[0], cum[1]))
        q.push('st', TRK[0])
        npf = 12 - 5 * PF1[1]
        for s in range(1, 16):
            N = q.need(s)
            it = []
            if s <= npf:
                it += proj4.pf_items(52, 51, 1)
                q.push('pf', 1)
            if s < 14:
                it += g.dma_items()
                q.push(s + 2, n)
            elif s == 14:
                it += qproj.witems(g3, 0) + qproj.witems(g3, 1)
                q.push('w0', 4), q.push('w1', 4)
            else:
                it += qproj.xitems(g3, 0)
                q.push('x0', 8)
            it += proj4.trickle(cum[s], cum[s + 1])
            q.push('st', TRK[s])
            g.iter(a, N, it, adv=s < 15, after_bar=(lambda: qproj.setup(a, g3)) if s == 14 else None)
            if 'st2' in MFL and s in (3, 7, 11):
                st(a)
        g.tail(a, qproj.xitems(g3, 1))
        q.push('x1', 8)
        st(a)
        c = Col()
        bfront.local_attn(c, rh)
        for x in weave_lines(c, proj4.trickle(32 - NL, 32) + qproj.witems(g3, 2) + qproj.xitems(g3, 2), 0.0, 0.85):
            a(x)
        q.push('st', NL), q.push('w2', 4), q.push('x2', 8), q.push('o', 4)
        Q3.append(q)
        if not rh:
            a("s_branch Lp3")
    a.label("Lp3")
    st(a)
    if 'only2' in MFL:
        st.flush(a)
        return fin(a)
    q = Q3[0]
    k = q.q.index('w0')
    assert q.q[k:] == Q3[1].q[Q3[1].q.index('w0'):]
    qproj.restore(a)
    g3.init(a, [qproj.XS0, 0])
    a("s_lshl_b32 s34, s%d, 4" % proj4.sN0)
    a("s_add_u32 s34, s34, s%d" % proj4.sM0)
    a("s_lshr_b32 s4, s2, 7")
    a("s_lshl_b32 s4, s4, 3")
    a("s_add_u32 s34, s34, s4")
    a("s_lshl_b32 s34, s34, 7")
    a("s_lshl_b32 s91, s%d, 4" % bfront.sRb)
    a("s_add_u32 s91, s91, s%d" % bfront.sHp)
    a("s_lshl_b32 s91, s91, 7")
    a("s_add_u32 s91, s91, %d" % F_OB)
    g3.pro(a, q.need('w0', 'x0'))
    g3.iter(a, q.need('w1', 'x1'), g3.dma_items())
    q.push(3, 12)
    g3.iter(a, q.need('w2', 'x2', 'o', 'st'), g3.dma_items(), after_bar=lambda: (tag_get(a, 22, 20), signal(a, 22, ["s34", "s91"], 3)))
    a("s_mov_b32 s%d, 10" % g3.sCnt)
    g3.loop(a, 12)

    def ids():
        a("s_lshr_b32 s34, s%d, 1" % attn4.sHead)
        a("s_lshl_b32 s34, s34, 11")
        for x in flag_addr(3):
            a(x)
    g3.iter(a, 12, [flag_load(22, "s34", 3)] + g3.dma_items(), after_bar=ids)

    def go():
        flag_check(a, 22, "s34", 3)
        attn4.kv_setup(a)
        oproj.ids(a)
    it = attn4.kv_prologue_items(0)
    cut = [i for i, x in enumerate(it) if "m0" in x][1]
    g3.iter(a, 12, it[:cut], after_bar=go)
    g3.iter(a, 4, it[cut:], adv=False)
    g3.tail(a, bar=False)
    st(a)
    qproj.epilogue(a)
    attn4.setup1(a)
    st(a)
    g6, g7 = oproj.make("p6", oproj.AB), oproj.make("p7", oproj.AA)

    class H:
        q0 = [t for t in (('K', 0), ('K', 1), ('V', 0)) for _ in range(4)]

        @staticmethod
        def after_d2():
            a("s_lshl_b32 s91, s%d, 11" % oproj.sRb)
            a("s_add_u32 s91, s91, %d" % F_OB)
            for x in flag_addr(14):
                a(x)

        @staticmethod
        def pre_e1():
            return [flag_load(12, "s91", 14)]

        @staticmethod
        def at_e1():
            flag_check(a, 12, "s91", 14)
            for j in range(4):
                a("v_accvgpr_read_b32 v%d, a%d" % (oproj.wv + j, oproj.aSave + j))
            for x in oproj.job_w(False) + oproj.job_x(False):
                a(x)

        @staticmethod
        def e1_items():
            return oproj.stage_items(g6, 0, 'wx') + oproj.stage_items(g6, 1, 'wx')

        @staticmethod
        def e2_items():
            return oproj.stage_items(g6, 2, 'wx')
    attn4.attention(a, st, H)
    st(a)
    q = VmQ()
    for s in range(3):
        q.push(s, 8)
    q.push('ctx', 8)
    oproj.read_bases(a, 4)
    g6.init(a, [4])
    g6.pro(a, q.need(0), dma=oproj.stage_items(g6, 3, 'wx') + oproj.stage_items(g6, 4, 'wx'))
    q.push(3, 8)
    q.push(4, 8)

    def sig_ctx():
        a("s_lshl_b32 s4, s%d, 7" % attn4.sHead)
        a("s_lshl_b32 s5, s%d, 12" % attn4.sPair)
        a("s_add_u32 s6, s4, %d" % F_CTX)
        a("s_add_u32 s7, s6, %d" % (15 << 12))
        a("s_add_u32 s6, s6, s5")
        a("s_sub_u32 s7, s7, s5")
        signal(a, 6, ["s6", "s7"])
        a("s_lshl_b32 s91, s%d, 1" % oproj.sRb)
        a("s_add_u32 s91, s91, s%d" % oproj.sKh)
        a("s_lshl_b32 s91, s91, 11")
        a("s_add_u32 s91, s91, %d" % F_CTX)
    for s in range(1, 8):
        N = q.need(1, 'ctx') if s == 1 else q.need(s)
        if s == 1:
            q.push('sig', 2)
        if s <= 3:
            it = g6.dma_items()
            q.push(s + 4, 8)
        else:
            it = (oproj.job_w(True) if s == 4 else []) + g6.group_items(g6.dma[0])
            q.push(('w', s + 4), 4)
        if s == 7:
            it += [flag_load(6, "s91", 14)]
        g6.iter(a, N, it, after_bar=sig_ctx if s == 1 else None)
    a("s_waitcnt vmcnt(0) lgkmcnt(0)")
    a("s_barrier")
    st(a)
    flag_check(a, 6, "s91", 14)
    st(a)
    for x in oproj.job_x(True):
        a(x)
    it = []
    for s in range(8, 13):
        it += oproj.stage_items(g7, s, 'x' if s < 12 else 'wx')
    g6.half(a, 1, rd=False, dma=it)
    oproj.xch_srd(a)
    oproj.send(a, oproj.AB, False)
    st(a)
    a("s_waitcnt vmcnt(28)")
    a("s_barrier")
    for x in g7.reads(0):
        a(x)
    a("s_waitcnt lgkmcnt(0)")
    g7.half(a, 0, first=True, adv=True)
    g7.iter(a, 24, g7.dma_items())
    a("s_mov_b32 s%d, 26" % g7.sCnt)
    g7.loop(a, 24)

    def sig_b():
        oproj.flag_pos(a, False, True, 6)
        signal(a, 6, ["s6"])
        oproj.flag_pos(a, False, False, 90)
    g7.iter(a, 24, after_bar=sig_b)
    g7.iter(a, 17)
    g7.iter(a, 9, [flag_load(6, "s90")])
    g7.iter(a, 0, oproj.recv_items(False), adv=False, after_bar=lambda: flag_check(a, 6, "s90"))
    g7.tail(a, bar=False)
    st(a)
    oproj.send(a, oproj.AA, True)
    oproj.out_setup(a)
    a("s_waitcnt vmcnt(8)")
    oproj.finish(a, oproj.AB, False)
    oproj.flag_pos(a, True, True, 6)
    oproj.flag_pos(a, True, False, 90)
    a("s_waitcnt vmcnt(4)")
    a("s_barrier")
    signal(a, 6, ["s6"])
    a(flag_load(4, "s90"))
    a("s_waitcnt vmcnt(0)")
    st(a)
    flag_check(a, 4, "s90")
    st(a)
    for x in oproj.recv_items(True):
        a(x)
    a("s_waitcnt vmcnt(0)")
    oproj.finish(a, oproj.AA, True)
    st(a)
    if stamp:
        a("s_waitcnt vmcnt(0)")
    st(a)
    st.flush(a)
    return fin(a)


def fin(a):
    a.label("Lend")
    a("s_endpgm")
    t = a.finish()
    if 'nodma' in MFL:
        t = "\n".join(l for l in t.split("\n") if not l.rstrip().endswith(" lds"))
    return t.replace("CODE_KB", os.environ.get("CODE_KB", "70"))
```

```python
from lib import *
from gemm4 import *

xv, wv = 48, 56
sX, sW, sXb = 46, 47, 48
sM0, sN0 = 61, 62
sSt = 63
T = 32
ROT = int(os.environ.get("ROT", 1))
XS0 = 2


def acc(mi, ni):
    b = mi * 8 + ni
    return ('v', 64 + 4 * b) if b < 48 else ('a', 128 + 4 * (b - 48))


def make(orient):
    g = Gemm()
    g.name = "p1" + orient
    RX, RW = Ring(3, 32 * KB, 36), Ring(2, 32 * KB, 41)
    RX.regs, RW.regs = [16, 17], [18, 19, 20, 21]
    g.rings = [RX, RW]
    g.xrd, g.wrd = [(16, 17)], [18, 19, 20, 21]
    g.xfr = [(0, 2048 * i) for i in range(8)]
    g.wfr = [(ni & 3, (ni >> 2) * 8192) for ni in range(8)]
    g.mf = [(acc(mi, ni), mi, ni, orient) for ni in range(8) for mi in range(8)]
    g.fx, g.fw = 0, 64
    g.sCnt = 35
    ld = lambda v, s, o, j: "buffer_load_dwordx4 v%d, s[%d:%d], s%d offen offset:%d lds" % (v + j, s, s + 3, o, 1024 * (j & 3))
    g.dma = [
        (RW, 0, [ld(wv, 12, sW, j) for j in range(4)], []),
        (RW, 4096, [ld(wv, 12, sW, j) for j in range(4, 8)],
         ["s_add_u32 s%d, s%d, %d" % (sW, sW, 64 * 8192), "s_and_b32 s%d, s%d, %d" % (sW, sW, 512 * 8192 - 1)]),
        (RX, 0, [ld(xv, 8, sX, j) for j in range(4)], []),
        (RX, 4096, [ld(xv, 8, sX, j) for j in range(4, 8)],
         ["s_add_u32 s%d, s%d, 128" % (sX, sX), "s_and_b32 s%d, s%d, 1023" % (sX, sX)]),
    ]
    return g


def xitems(g, s):
    off = (((XS0 + s) % 3) - XS0) * 32 * KB
    return g.group_items(g.dma[2], off) + g.group_items(g.dma[3], off)


def witems(g, s):
    return g.group_items(g.dma[0], s * 32 * KB) + g.group_items(g.dma[1], s * 32 * KB)


def setup(a, g):
    RX, RW = g.rings
    a("s_and_b32 s4, s2, 1")
    a("s_lshl_b32 s4, s4, 2")
    a("s_bfe_u32 s5, s2, 0x20003")
    a("s_add_u32 s%d, s4, s5" % sM0)
    a("s_bfe_u32 s4, s2, 0x20001")
    a("s_lshl_b32 s4, s4, 2")
    a("s_bfe_u32 s5, s2, 0x20005")
    a("s_add_u32 s%d, s4, s5" % sN0)
    a("s_lshl_b32 s4, s%d, 13" % S_WAVE)
    a("s_add_u32 s%d, s4, %d" % (RX.sWr, XS0 * 32 * KB))
    a("s_add_u32 s%d, s4, %d" % (RW.sWr, 96 * KB))
    lane_setup(a, T)
    a("s_lshl_b32 s4, s%d, 2" % sM0)
    a("s_add_u32 s4, s4, s%d" % S_WAVE)
    a("s_lshl_b32 s4, s4, 6")
    a("v_add_u32 v%d, s4, v%d" % (T + 2, T))
    a("v_lshl_add_u32 v%d, v%d, 10, v%d" % (T + 2, T + 2, T + 1))
    for j in range(8):
        a("v_add_u32 v%d, %d, v%d" % (xv + j, 8 * j * 1024 - 1024 * (j & 3), T + 2))
    a("v_lshrrev_b32 v%d, 2, v%d" % (T + 2, T))
    a("v_and_b32 v%d, 3, v%d" % (T + 3, T))
    a("v_lshl_add_u32 v%d, v%d, 3, v%d" % (T + 2, T + 2, T + 3))
    a("s_lshl_b32 s4, s%d, 2" % sN0)
    a("s_add_u32 s4, s4, s%d" % S_WAVE)
    a("s_lshl_b32 s4, s4, 7")
    a("v_lshl_add_u32 v%d, v%d, 13, v%d" % (T + 2, T + 2, T + 1))
    a("v_add_u32 v%d, s4, v%d" % (T + 2, T + 2))
    for j in range(8):
        a("v_add_u32 v%d, %d, v%d" % (wv + j, (32 * (j >> 2) + 16 * (j & 1) + 4 * ((j >> 1) & 1)) * 8192 - 1024 * (j & 3), T + 2))
    a("s_and_b32 s6, s2, %d" % (7 if ROT else 0))
    a("s_lshl_b32 s%d, s6, 7" % sX)
    a("s_lshl_b32 s%d, s6, 19" % sW)
    a("s_waitcnt lgkmcnt(0)")
    srd(a, 8, P_CKV, 2048 * 1024)
    a("s_cmp_lt_u32 s2, 128")
    a("s_cselect_b32 s12, s%d, s%d" % (P_WUK, P_WUV))
    a("s_cselect_b32 s13, s%d, s%d" % (P_WUK + 1, P_WUV + 1))
    a("s_mov_b32 s14, %d" % (512 * 8192))
    a("s_mov_b32 s15, 0x00020000")


def read_bases(a, g):
    a("s_lshr_b32 s4, s%d, 1" % S_WAVE)
    a("s_lshl_b32 s4, s4, 14")
    a("s_add_u32 s4, s4, %d" % (XS0 * 32 * KB))
    xread_base(a, 16, 17, T, "s4")
    a("s_and_b32 s4, s%d, 1" % S_WAVE)
    a("s_lshl_b32 s4, s4, 14")
    a("s_add_u32 s4, s4, %d" % (96 * KB))
    wread_base(a, g.wrd, range(4), T, "s4")


def out_base(a):
    a("s_and_b32 s4, s%d, 1" % S_WAVE)
    a("s_lshl_b32 s5, s%d, 1" % sN0)
    a("s_add_u32 s4, s4, s5")
    a("s_lshr_b32 s5, s%d, 1" % S_WAVE)
    a("s_lshl_b32 s6, s%d, 1" % sM0)
    a("s_add_u32 s5, s5, s6")
    srd(a, 16, P_WS, 32 * MB, WS_KV)
    a("s_lshl_b32 s4, s4, 20")
    a("s_lshl_b32 s5, s5, 16")
    a("s_add_u32 s%d, s4, s5" % sSt)
    a("s_lshr_b32 s4, s2, 7")
    a("s_lshl_b32 s4, s4, 14")
    a("s_add_u32 s%d, s%d, s4" % (sSt, sSt))


def packed(j):
    if j < 8:
        return 160 + 4 * j
    if j >= 24:
        return 224 + 4 * (j - 24)
    return 128 + 64 * ((j >> 3) - 1) + 4 * (j & 7)


ORDER = list(range(8, 19)) + list(range(8)) + list(range(19, 32))


def pack(a, kind_, nst=0):
    L = []
    for j in list(range(8, 24)) + list(range(8)) + list(range(24, 32)):
        p0, p1 = (acc(j >> 2, 2 * (j & 3)), acc(j >> 2, 2 * (j & 3) + 1)) if kind_ == 'k' else (acc(2 * (j >> 3), j & 7), acc(2 * (j >> 3) + 1, j & 7))
        if p0[0] == 'a':
            src = [64 + 8 * (j - 24) + e for e in range(8)]
            for e in range(8):
                L.append("v_accvgpr_read_b32 v%d, a%d" % (src[e], (p0, p1)[e >> 2][1] + (e & 3)))
        else:
            src = [p0[1] + e for e in range(4)] + [p1[1] + e for e in range(4)]
        for e in range(4):
            L.append("v_cvt_pk_bf16_f32 v%d, v%d, v%d" % (packed(j) + e, src[2 * e], src[2 * e + 1]))
    assert nst <= 11
    if nst:
        L = weave_lines(L, trickle(0, nst), 0.05 if nst <= 8 else 0.1, 0.95)
    for x in L:
        a(x)


def trickle(k0, k1):
    L = []
    for k in range(k0, k1):
        j = ORDER[k]
        if k == k0 or j >> 2 != ORDER[k - 1] >> 2:
            L.append("s_add_u32 s34, s%d, %d" % (sSt, (j >> 4) * 32768 + ((j >> 2) & 3) * 4096))
        L.append("buffer_store_dwordx4 %s, v2, s[16:19], s34 offen offset:%d%s" % (v4(packed(j)), 1024 * (j & 3), SC1))
    return L


def pf_setup(a, d, so, pa, na, pb, nb):
    cut = (256 * na + na + nb - 1) // (na + nb)
    a("s_cmp_lt_u32 s2, %d" % cut)
    a("s_cselect_b32 s%d, s%d, s%d" % (d, pa, pb))
    a("s_cselect_b32 s%d, s%d, s%d" % (d + 1, pa + 1, pb + 1))
    a("s_cselect_b32 s%d, 0, %d" % (so, cut))
    a("s_mov_b32 s%d, %d" % (d + 2, nb * MB))
    a("s_cselect_b32 s%d, %d, s%d" % (d + 2, na * MB, d + 2))
    a("s_mov_b32 s%d, 0x00020000" % (d + 3))
    a("s_sub_u32 s%d, s2, s%d" % (so, so))
    a("s_lshl_b32 s%d, s%d, 2" % (so, so))
    a("s_add_u32 s%d, s%d, s%d" % (so, so, S_WAVE))
    a("s_mul_i32 s%d, s%d, %d" % (so, so, (na + nb) * 1024))


def pf_items(d, so, n):
    if 'nopf' in GFL or not n:
        return []
    return ["buffer_load_dwordx4 a[192:195], v2, s[%d:%d], s%d offen offset:%d ; @dummy" % (d, d + 3, so, 1024 * i) for i in range(n)] + \
           ["s_add_u32 s%d, s%d, %d" % (so, so, 1024 * n)]
```

```python
from lib import *
from gemm4 import *
import proj4, bfront, attn4, oproj, qproj

MFL = set(os.environ.get("MFLAGS", "").split(","))


def gen(stamp=False):
    a = Asm()
    st = Stamps(stamp, 0)
    a("s_cmp_ge_u32 s2, 256")
    a("s_cbranch_scc1 Lend")
    a("s_load_dwordx16 s[64:79], s[0:1], 0")
    a("s_load_dwordx8 s[80:87], s[0:1], 64")
    a("v_lshrrev_b32 v2, 6, v0")
    a("v_and_b32 v1, 63, v0")
    a("v_readfirstlane_b32 s%d, v2" % S_WAVE)
    a("v_lshlrev_b32 v2, 4, v1")
    if 'ipf' in MFL:
        a("s_getpc_b64 s[6:7]")
        a("s_lshr_b32 s4, s2, 3")
        a("s_lshl_b32 s4, s4, 2")
        a("s_add_u32 s4, s4, s%d" % S_WAVE)
        a("s_min_u32 s4, s4, CODE_KB")
        a("s_lshl_b32 s4, s4, 10")
        a("v_add_u32 v3, s4, v2")
        a("global_load_dwordx4 v[4:7], v3, s[6:7]")
    st(a)
    gk, gv = proj4.make('wx'), proj4.make('xw')
    b0, b1 = bfront.make(0), bfront.make(1)
    g3 = qproj.make()
    proj4.setup(a, gk)
    srd(a, S_FLG, P_WS, 0x40000, WS_FLG)
    tag_make(a, 0)
    for x in proj4.xitems(gk, 0) + proj4.witems(gk, 0):
        a(x)
    proj4.read_bases(a, gk)
    if os.environ.get("PF1"):
        proj4.pf_setup(a, 56, 60, P_WQKV, 6, P_BX, 4)
        proj4.pf_setup(a, 52, 51, P_WQ, 8, P_AX, 4)
    attn4.ids(a)
    bfront.setup(a, b0)
    oproj.lanes(a, 28)
    qproj.lanes(a, 28)
    proj4.out_base(a)
    gk.init(a, [proj4.XS0, 0])
    PF0 = os.environ.get("PF0", "")

    def pf0():
        a("s_lshl_b32 s4, s2, 2")
        a("s_add_u32 s4, s4, s%d" % S_WAVE)
        a("s_lshl_b32 s5, s4, 11")
        a("s_lshl_b32 s4, s4, 12")
        for j in range(2):
            a("buffer_load_dwordx4 a[192:195], v2, s[8:11], s5 offen offset:%d ; @dummy" % (1024 * j))
        for p in (P_WUK, P_WUV):
            srd(a, 92, p, 4 * MB)
            for j in range(4):
                a("buffer_load_dwordx4 a[192:195], v2, s[92:95], s4 offen offset:%d ; @dummy" % (1024 * j))
    if PF0 == "a":
        pf0()
    for x in proj4.xitems(gk, 1) + proj4.witems(gk, 1):
        a(x)
    if PF0 == "b":
        pf0()
    tag_make(a, 1, 32 + (10 if PF0 else 0))
    st(a)
    if 'only2' in MFL:
        a("s_waitcnt vmcnt(0)")
        a("s_barrier")
        for x in bfront.xsrd() + [y for s in range(3) for y in bfront.stage_items(a, b0, s, 'xw')]:
            a(x)
        tag_load(a, 22)
        cut0 = len(a.ins)
    PF1 = [int(x) for x in os.environ.get("PF1", "0,0").split(",")]
    NP, NL = int(os.environ.get("NP", 0)), int(os.environ.get("NL", 0))
    a("s_cmp_lt_u32 s2, 128")
    a("s_cbranch_scc1 Lp1_k")
    k0 = st.k
    for kind_, g in (('v', gv), ('k', gk)):
        if kind_ == 'k':
            a.label("Lp1_k")
            st.k = k0
        g.pf = proj4.pf_items(56, 60, PF1[0]) + proj4.pf_items(52, 51, PF1[1])
        g.pro(a, 16 + (10 if PF0 else 0), dma=proj4.xitems(g, 2))
        a("s_mov_b32 s%d, 5" % g.sCnt)
        g.loop(a, 8)
        g.iter(a, 8, proj4.witems(g, 0) + bfront.xsrd() + bfront.stage_items(a, b0, 0, 'x'))
        g.iter(a, 4, bfront.stage_items(a, b0, 0, 'w') + bfront.stage_items(a, b0, 1, 'xw'), adv=False)
        tag_load(a, 22)
        g.tail(a, bfront.stage_items(a, b0, 2, 'xw'))
        st(a)
        proj4.pack(a, kind_, NP)
        if kind_ == 'v':
            a("s_branch Lp2")
    if 'only2' in MFL:
        del a.ins[cut0:]
        st.k = 2
    if 'nost' in MFL:
        proj4.trickle = lambda a, b: ["s_nop 0"]
        VmQ.push0 = VmQ.push
        VmQ.push = lambda self, tag, n: VmQ.push0(self, tag, 0 if tag == 'st' else n)
    a.label("Lp2")
    st(a)
    b0.init(a)
    bfront.restore(a)
    a("s_cmp_ge_u32 s%d, 2" % S_WAVE)
    a("s_cbranch_scc1 Lp2_r1")
    k0 = st.k
    TRK = [int(x) for x in os.environ.get("TRK", "2,2,2,2,2,2,2,2,2,2,2,2,2,2,2,2").split(",")]
    TRK += [0] * (16 - len(TRK))
    cum = [NP + sum(TRK[:k]) for k in range(17)]
    assert cum[-1] + NL == 32
    Q3 = []
    for rh, g in enumerate((b0, b1)):
        if rh:
            a.label("Lp2_r1")
            st.k = k0
        n = 10 if rh else 11
        q = VmQ()
        q.push(0, n), q.push(1, n), q.push('t', 1), q.push(2, n), q.push('st', NP)
        g.pro(a, q.need(0), dma=proj4.trickle(cum[0], cum[1]))
        q.push('st', TRK[0])
        npf = 12 - 5 * PF1[1]
        for s in range(1, 16):
            N = q.need(s)
            it = []
            if s <= npf:
                it += proj4.pf_items(52, 51, 1)
                q.push('pf', 1)
            if s < 14:
                it += g.dma_items()
                q.push(s + 2, n)
            elif s == 14:
                it += qproj.witems(g3, 0) + qproj.witems(g3, 1)
                q.push('w0', 4), q.push('w1', 4)
            else:
                it += qproj.xitems(g3, 0)
                q.push('x0', 8)
            it += proj4.trickle(cum[s], cum[s + 1])
            q.push('st', TRK[s])
            g.iter(a, N, it, adv=s < 15, after_bar=(lambda: qproj.setup(a, g3)) if s == 14 else None)
            if 'st2' in MFL and s in (3, 7, 11):
                st(a)
        g.tail(a, qproj.xitems(g3, 1))
        q.push('x1', 8)
        st(a)
        c = Col()
        bfront.local_attn(c, rh)
        for x in weave_lines(c, (proj4.trickle(32 - NL, 32) if NL else []) + qproj.witems(g3, 2) + qproj.xitems(g3, 2), 0.0, 0.85):
            a(x)
        q.push('st', NL), q.push('w2', 4), q.push('x2', 8), q.push('o', 4)
        Q3.append(q)
        if not rh:
            a("s_branch Lp3")
    a.label("Lp3")
    st(a)
    if 'only2' in MFL:
        st.flush(a)
        return fin(a)
    q = Q3[0]
    k = q.q.index('w0')
    assert q.q[k:] == Q3[1].q[Q3[1].q.index('w0'):]
    qproj.restore(a)
    g3.init(a, [qproj.XS0, 0])
    a("s_lshl_b32 s34, s%d, 4" % proj4.sN0)
    a("s_add_u32 s34, s34, s%d" % proj4.sM0)
    a("s_lshr_b32 s4, s2, 7")
    a("s_lshl_b32 s4, s4, 3")
    a("s_add_u32 s34, s34, s4")
    a("s_lshl_b32 s34, s34, 7")
    a("s_lshl_b32 s91, s%d, 4" % bfront.sRb)
    a("s_add_u32 s91, s91, s%d" % bfront.sHp)
    a("s_lshl_b32 s91, s91, 7")
    a("s_add_u32 s91, s91, %d" % F_OB)
    g3.pro(a, q.need('w0', 'x0'))
    g3.iter(a, q.need('w1', 'x1'), g3.dma_items())
    q.push(3, 12)
    g3.iter(a, q.need('w2', 'x2', 'o', 'st'), g3.dma_items(), after_bar=lambda: (tag_get(a, 22, 20), signal(a, 22, ["s34", "s91"], 3)))
    a("s_mov_b32 s%d, 10" % g3.sCnt)
    g3.loop(a, 12)

    def ids():
        a("s_lshr_b32 s34, s%d, 1" % attn4.sHead)
        a("s_lshl_b32 s34, s34, 11")
        for x in flag_addr(3):
            a(x)
    g3.iter(a, 12, [flag_load(22, "s34", 3)] + g3.dma_items(), after_bar=ids)

    def go():
        flag_check(a, 22, "s34", 3)
        attn4.kv_setup(a)
        oproj.ids(a)
    it = attn4.kv_prologue_items(0)
    cut = [i for i, x in enumerate(it) if "m0" in x][1]
    g3.iter(a, 12, it[:cut], after_bar=go)
    g3.iter(a, 4, it[cut:], adv=False)
    g3.tail(a, bar=False)
    st(a)
    qproj.epilogue(a)
    attn4.setup1(a)
    st(a)
    g6, g7 = oproj.make("p6", oproj.AB), oproj.make("p7", oproj.AA)

    class H:
        q0 = [t for t in (('K', 0), ('K', 1), ('V', 0)) for _ in range(4)]

        @staticmethod
        def after_d2():
            a("s_lshl_b32 s91, s%d, 11" % oproj.sRb)
            a("s_add_u32 s91, s91, %d" % F_OB)
            for x in flag_addr(14):
                a(x)

        @staticmethod
        def pre_e1():
            return [flag_load(12, "s91", 14)]

        @staticmethod
        def at_e1():
            flag_check(a, 12, "s91", 14)
            for j in range(4):
                a("v_accvgpr_read_b32 v%d, a%d" % (oproj.wv + j, oproj.aSave + j))
            for x in oproj.job_w(False) + oproj.job_x(False):
                a(x)

        @staticmethod
        def e1_items():
            return oproj.stage_items(g6, 0, 'wx') + oproj.stage_items(g6, 1, 'wx')

        @staticmethod
        def e2_items():
            return oproj.stage_items(g6, 2, 'wx')
    attn4.attention(a, st, H)
    st(a)
    q = VmQ()
    for s in range(3):
        q.push(s, 8)
    q.push('ctx', 8)
    oproj.read_bases(a, 4)
    g6.init(a, [4])
    g6.pro(a, q.need(0), dma=oproj.stage_items(g6, 3, 'wx') + oproj.stage_items(g6, 4, 'wx'))
    q.push(3, 8)
    q.push(4, 8)

    def sig_ctx():
        a("s_lshl_b32 s4, s%d, 7" % attn4.sHead)
        a("s_lshl_b32 s5, s%d, 12" % attn4.sPair)
        a("s_add_u32 s6, s4, %d" % F_CTX)
        a("s_add_u32 s7, s6, %d" % (15 << 12))
        a("s_add_u32 s6, s6, s5")
        a("s_sub_u32 s7, s7, s5")
        signal(a, 6, ["s6", "s7"])
        a("s_lshl_b32 s91, s%d, 1" % oproj.sRb)
        a("s_add_u32 s91, s91, s%d" % oproj.sKh)
        a("s_lshl_b32 s91, s91, 11")
        a("s_add_u32 s91, s91, %d" % F_CTX)
    for s in range(1, 8):
        N = q.need(1, 'ctx') if s == 1 else q.need(s)
        if s == 1:
            q.push('sig', 2)
        if s <= 3:
            it = g6.dma_items()
            q.push(s + 4, 8)
        else:
            it = (oproj.job_w(True) if s == 4 else []) + g7.group_items(g7.dma[0])
            q.push(('w', s + 4), 4)
        if s == 7:
            it += [flag_load(6, "s91", 14)]
        g6.iter(a, N, it, after_bar=sig_ctx if s == 1 else None)
    a("s_waitcnt vmcnt(0) lgkmcnt(0)")
    a("s_barrier")
    st(a)
    flag_check(a, 6, "s91", 14)
    st(a)
    for x in oproj.job_x(True):
        a(x)
    it = []
    for s in range(8, 13):
        it += oproj.stage_items(g7, s, 'x' if s < 12 else 'wx')
    g6.half(a, 1, rd=False, dma=it)
    oproj.xch_srd(a)
    oproj.send(a, oproj.AB, False)
    st(a)
    a("s_waitcnt vmcnt(28)")
    a("s_barrier")
    for x in g7.reads(0):
        a(x)
    a("s_waitcnt lgkmcnt(0)")
    g7.half(a, 0, first=True, adv=True)
    g7.iter(a, 24, g7.dma_items())
    a("s_mov_b32 s%d, 26" % g7.sCnt)
    g7.loop(a, 24)

    def sig_b():
        oproj.flag_pos(a, False, True, 6)
        signal(a, 6, ["s6"])
        oproj.flag_pos(a, False, False, 90)
    g7.iter(a, 24, after_bar=sig_b)
    g7.iter(a, 17)
    g7.iter(a, 9, [flag_load(6, "s90")])
    g7.iter(a, 0, oproj.recv_items(False), adv=False, after_bar=lambda: flag_check(a, 6, "s90"))
    g7.tail(a, bar=False)
    st(a)
    oproj.send(a, oproj.AA, True)
    oproj.out_setup(a)
    a("s_waitcnt vmcnt(8)")
    oproj.finish(a, oproj.AB, False)
    oproj.flag_pos(a, True, True, 6)
    oproj.flag_pos(a, True, False, 90)
    a("s_waitcnt vmcnt(4)")
    a("s_barrier")
    signal(a, 6, ["s6"])
    a(flag_load(4, "s90"))
    a("s_waitcnt vmcnt(0)")
    st(a)
    flag_check(a, 4, "s90")
    st(a)
    for x in oproj.recv_items(True):
        a(x)
    a("s_waitcnt vmcnt(0)")
    oproj.finish(a, oproj.AA, True)
    st(a)
    if stamp:
        a("s_waitcnt vmcnt(0)")
    st(a)
    st.flush(a)
    return fin(a)


def fin(a):
    a.label("Lend")
    a("s_endpgm")
    t = a.finish()
    if 'nodma' in MFL:
        t = "\n".join(l for l in t.split("\n") if not l.rstrip().endswith(" lds"))
    return t.replace("CODE_KB", os.environ.get("CODE_KB", "70"))
```

```python
from lib import *
from gemm4 import *

wv = 10
rdx, rdw = 16, 17
sX, sW, sWv = 70, 71, 79
sRb, sCt, sKh, sTile = 73, 76, 77, 78
T = 24
AB, AA, PR = 32, 96, 160
NS = 5
aSave = 212


def acc(base, mi, ni): return ('v', base + 4 * (4 * mi + ni))


SK7 = int(os.environ.get("SK7", 0))
sXk, sWk, sXb, sWb = 88, 89, 92, 93


def make(name, base):
    g = Gemm()
    g.name, g.woff = name, 16 * KB
    g.xlin, g.xhs = True, 8192
    R = Ring(NS, 32 * KB, 64)
    R.regs = [rdx] + list(range(rdw, rdw + 4))
    g.rings = [R]
    g.xrd, g.wrd = [(rdx, rdx)], list(range(rdw, rdw + 4))
    g.xfr = [(0, 1024 * i) for i in range(4)]
    g.wfr = [(b, 0) for b in range(4)]
    g.mf = [(acc(base, mi, ni), mi, ni, 'wx') for ni in range(4) for mi in range(4)]
    g.fx, g.fw = 64, 96
    g.sCnt = 69
    ld = lambda v, s, o, j, f: "buffer_load_dwordx4 v%d, s[%d:%d], s%d offen offset:%d%s lds" % (v, s, s + 3, o, 1024 * j, f)
    g.dma = [
        (R, 16 * KB, [ld(wv + j, 12, sW, j, "") for j in range(4)], ["s_add_u32 s%d, s%d, %d" % (sW, sW, 64 * 2048)]),
        (R, 0, [ld(2, 8, sX, j, SC1L) for j in range(4)], ["s_add_u32 s%d, s%d, %d" % (sX, sX, 16 * KB)]),
    ]
    if SK7 and name == "p7":
        g.dma[0] = g.dma[0][:3] + (["s_add_u32 s%d, s%d, %d" % (sWk, sWk, 1 << 17), "s_and_b32 s%d, s%d, %d" % (sWk, sWk, (1 << 22) - 1),
                                    "s_or_b32 s%d, s%d, s%d" % (sW, sWb, sWk)],)
        g.dma[1] = g.dma[1][:3] + (["s_add_u32 s%d, s%d, %d" % (sXk, sXk, 1 << 14), "s_and_b32 s%d, s%d, %d" % (sXk, sXk, (1 << 19) - 1),
                                    "s_or_b32 s%d, s%d, s%d" % (sX, sXb, sXk)],)
    return g


def skew(d, sh):
    return ["s_add_u32 s%d, s%d, s%d" % (d, sRb, sCt), "s_and_b32 s%d, s%d, %d" % (d, d, int(os.environ.get("SK7M", 3))),
            "s_mul_i32 s%d, s%d, %d" % (d, d, SK7 << sh)]


def ids(a):
    a("s_and_b32 s4, s2, 1")
    a("s_lshl_b32 s4, s4, 3")
    a("s_bfe_u32 s5, s2, 0x30003")
    a("s_add_u32 s%d, s4, s5" % sRb)
    a("s_bfe_u32 s4, s2, 0x10001")
    a("s_lshl_b32 s4, s4, 2")
    a("s_lshr_b32 s5, s2, 6")
    a("s_add_u32 s%d, s4, s5" % sCt)
    a("s_bfe_u32 s%d, s2, 0x10002" % sKh)
    a("s_lshl_b32 s%d, s%d, 3" % (sTile, sRb))
    a("s_add_u32 s%d, s%d, s%d" % (sTile, sTile, sCt))
    a("s_lshl_b32 s%d, s%d, 12" % (sWv, S_WAVE))
    a("s_add_u32 s64, s%d, %d" % (sWv, 128 * KB))


def lanes(a, T):
    lane_setup(a, T)
    a("s_and_b32 s4, s%d, 1" % S_WAVE)
    a("s_lshl_b32 s4, s4, 16")
    a("s_lshr_b32 s5, s%d, 1" % S_WAVE)
    a("s_lshl_b32 s5, s5, 7")
    a("s_add_u32 s4, s4, s5")
    a("v_lshl_add_u32 v%d, v%d, 11, v%d" % (T, T, T + 1))
    a("v_add_u32 v%d, s4, v%d" % (T, T))
    for j in range(4):
        a("v_add_u32 v%d, %d, v%d" % (T + 1, j * (8 * 2048 - 1024), T))
        a("v_accvgpr_write_b32 a%d, v%d" % (aSave + j, T + 1))


def stage_items(g, s, what):
    L = []
    for i, w in enumerate("wx"):
        if w in what:
            ring, m0, ins, post = g.dma[i]
            L += ["s_add_u32 m0, s%d, %d" % (sWv, ((4 + s) % NS) * 32 * KB + m0)] + ins + post
    return L


def job_w(isA):
    c = Col()
    srd(c, 12, P_WO if isA else P_BWO, (4096 if isA else 1024) * 2048)
    c("s_lshl_b32 s%d, s%d, %d" % (sW, sKh, 22 if isA else 20))
    c("s_lshl_b32 s72, s%d, 8" % sCt)
    c("s_add_u32 s%d, s%d, s72" % (sW, sW))
    if SK7 and isA:
        c += skew(sWk, 17) + ["s_mov_b32 s%d, s%d" % (sWb, sW), "s_or_b32 s%d, s%d, s%d" % (sW, sWb, sWk)]
    return list(c)


def job_x(isA):
    off = WS_CTX if isA else WS_OB
    L = ["s_add_u32 s8, s%d, %d\ns_addc_u32 s9, s%d, 0" % (P_WS, off, P_WS + 1),
         "s_mov_b32 s10, %d" % ((16 if isA else 4) * MB), "s_mov_b32 s11, 0x00020000",
         "s_lshl_b32 s%d, s%d, 1" % (sX, sRb), "s_add_u32 s%d, s%d, s%d" % (sX, sX, sKh),
         "s_lshl_b32 s%d, s%d, %d" % (sX, sX, 19 if isA else 17),
         "s_add_u32 s%d, s%d, s%d" % (sX, sX, sWv)]
    if SK7 and isA:
        L += skew(sXk, 14) + ["s_mov_b32 s%d, s%d" % (sXb, sX), "s_or_b32 s%d, s%d, s%d" % (sX, sXb, sXk)]
    return L


def read_bases(a, slot):
    a("s_lshr_b32 s4, s%d, 1" % S_WAVE)
    a("s_lshl_b32 s4, s4, 12")
    a("s_add_u32 s4, s4, %d" % (slot * 32 * KB))
    a("v_add_u32 v%d, s4, v2" % rdx)
    a("s_and_b32 s4, s%d, 1" % S_WAVE)
    a("s_lshl_b32 s4, s4, 13")
    a("s_add_u32 s4, s4, %d" % (slot * 32 * KB))
    wread_base(a, list(range(rdw, rdw + 4)), range(4), T, "s4")


def xch_srd(a):
    srd(a, 16, P_WS, 16 * MB, WS_XCH)


def xch_off(a, d, isA, mine):
    a("s_lshl_b32 s%d, s%d, 1" % (d, sTile))
    a("s_add_u32 s%d, s%d, s%d" % (d, d, sKh))
    if not mine:
        a("s_xor_b32 s%d, s%d, 1" % (d, d))
    a("s_lshl_b32 s%d, s%d, 2" % (d, d))
    a("s_add_u32 s%d, s%d, s%d" % (d, d, S_WAVE))
    a("s_lshl_b32 s%d, s%d, 13" % (d, d))
    if not isA:
        a("s_add_u32 s%d, s%d, %d" % (d, d, 8 * MB))


def send(a, base, isA):
    xch_off(a, 6, isA, False)
    a("s_add_u32 s7, s6, 4096")
    L = a.newlabel("Lsend")
    a("s_cmp_eq_u32 s%d, 0" % sKh)
    a("s_cbranch_scc1 %s_0" % L)
    for kh in (1, 0):
        if kh == 0:
            a.label(L + "_0")
        for i in range(8):
            a("buffer_store_dwordx4 %s, v2, s[16:19], s%d offen offset:%d%s" % (
                v4(base + 32 * (1 - kh) + 4 * i), 6 + i // 4, 1024 * (i % 4), SC1))
        if kh == 1:
            a("s_branch %s_e" % L)
    a.label(L + "_e")


def recv_items(isA):
    c = Col()
    xch_off(c, 6, isA, True)
    c("s_add_u32 s7, s6, 4096")
    for i in range(8):
        c("buffer_load_dwordx4 %s, v2, s[16:19], s%d offen offset:%d%s" % (v4(PR + 4 * i), 6 + i // 4, 1024 * (i % 4), SC1))
    return list(c)


def flag_pos(a, isA, mine, d):
    a("s_lshl_b32 s%d, s%d, 1" % (d, sTile))
    a("s_add_u32 s%d, s%d, s%d" % (d, d, sKh))
    if not mine:
        a("s_xor_b32 s%d, s%d, 1" % (d, d))
    a("s_lshl_b32 s%d, s%d, 7" % (d, d))
    a("s_add_u32 s%d, s%d, %d" % (d, d, F_XA if isA else F_XB))


def out_setup(a):
    srd(a, 20, P_OUT, 8 * MB)
    a("v_bfe_u32 v%d, v1, 4, 1" % (T + 1))
    a("v_lshrrev_b32 v%d, 5, v1" % (T + 2))
    a("v_lshl_or_b32 v%d, v%d, 1, v%d" % (T + 1, T + 1, T + 2))
    a("v_lshlrev_b32 v%d, 4, v%d" % (T + 1, T + 1))
    a("v_and_b32 v%d, 15, v1" % T)
    a("v_lshl_add_u32 v%d, v%d, 14, v%d" % (T + 2, T, T + 1))
    a("v_lshl_add_u32 v%d, v%d, 12, v%d" % (T + 3, T, T + 1))


def finish(a, base, isA):
    a("s_lshl_b32 s4, s%d, 19" % sRb)
    a("s_lshl_b32 s5, s%d, 8" % sCt)
    a("s_add_u32 s4, s4, s5")
    a("s_and_b32 s5, s%d, 1" % S_WAVE)
    a("s_lshl_b32 s5, s5, 7")
    a("s_add_u32 s4, s4, s5")
    a("s_lshr_b32 s5, s%d, 1" % S_WAVE)
    a("s_lshl_b32 s5, s5, 1")
    a("s_add_u32 s5, s5, s%d" % sKh)
    a("s_lshl_b32 s5, s5, %d" % (12 if isA else 17))
    a("s_add_u32 s4, s4, s5")
    if not isA:
        a("s_add_u32 s4, s4, 2048")
    a("s_add_u32 s5, s4, %d" % ((64 if isA else 16) * 4096))
    L = a.newlabel("Lfin")
    a("s_cmp_eq_u32 s%d, 0" % sKh)
    a("s_cbranch_scc1 %s_0" % L)
    for kh in (1, 0):
        if kh == 0:
            a.label(L + "_0")
        for e in range(0, 32, 2):
            x = base + 32 * kh + e
            a("v_pk_add_f32 v[%d:%d], v[%d:%d], v[%d:%d]" % (PR + e, PR + e + 1, PR + e, PR + e + 1, x, x + 1))
        if kh == 1:
            a("s_branch %s_e" % L)
    a.label(L + "_e")
    for q in range(4):
        u = PR + 8 * q
        for e in range(4):
            a("v_cvt_pk_bf16_f32 v%d, v%d, v%d" % (u + e, u + 2 * e, u + 2 * e + 1))
    for q in range(4):
        u = PR + 8 * q
        a("v_permlane16_swap_b32 v%d, v%d" % (u, u + 2))
        a("v_permlane16_swap_b32 v%d, v%d" % (u + 1, u + 3))
        a("buffer_store_dwordx4 %s, v%d, s[20:23], s%d offen offset:%d" % (v4(u), T + (2 if isA else 3), 4 + (q >> 1), (q & 1) * 64))
```

```python
from lib import *
from gemm4 import *
import proj4, bfront, attn4, oproj, qproj

MFL = set(os.environ.get("MFLAGS", "").split(","))


def gen(stamp=False):
    a = Asm()
    st = Stamps(stamp, 0)
    a("s_cmp_ge_u32 s2, 256")
    a("s_cbranch_scc1 Lend")
    a("s_load_dwordx16 s[64:79], s[0:1], 0")
    a("s_load_dwordx8 s[80:87], s[0:1], 64")
    a("v_lshrrev_b32 v2, 6, v0")
    a("v_and_b32 v1, 63, v0")
    a("v_readfirstlane_b32 s%d, v2" % S_WAVE)
    a("v_lshlrev_b32 v2, 4, v1")
    if 'ipf' in MFL:
        a("s_getpc_b64 s[6:7]")
        a("s_lshr_b32 s4, s2, 3")
        a("s_lshl_b32 s4, s4, 2")
        a("s_add_u32 s4, s4, s%d" % S_WAVE)
        a("s_min_u32 s4, s4, CODE_KB")
        a("s_lshl_b32 s4, s4, 10")
        a("v_add_u32 v3, s4, v2")
        a("global_load_dwordx4 v[4:7], v3, s[6:7]")
    st(a)
    gk, gv = proj4.make('wx'), proj4.make('xw')
    b0, b1 = bfront.make(0), bfront.make(1)
    g3 = qproj.make()
    proj4.setup(a, gk)
    srd(a, S_FLG, P_WS, 0x40000, WS_FLG)
    tag_make(a, 0)
    for x in proj4.xitems(gk, 0) + proj4.witems(gk, 0):
        a(x)
    proj4.read_bases(a, gk)
    if os.environ.get("PF1"):
        proj4.pf_setup(a, 56, 50, P_WQKV, 6, P_BX, 4)
        proj4.pf_setup(a, 52, 51, P_WQ, 8, P_AX, 4)
    attn4.ids(a)
    bfront.setup(a, b0)
    oproj.lanes(a, 28)
    qproj.lanes(a, 28)
    proj4.out_base(a)
    gk.init(a, [proj4.XS0, 0])
    PF0 = os.environ.get("PF0", "")

    def pf0():
        a("s_lshl_b32 s4, s2, 2")
        a("s_add_u32 s4, s4, s%d" % S_WAVE)
        a("s_lshl_b32 s5, s4, 11")
        a("s_lshl_b32 s4, s4, 12")
        for j in range(2):
            a("buffer_load_dwordx4 a[192:195], v2, s[8:11], s5 offen offset:%d ; @dummy" % (1024 * j))
        for p in (P_WUK, P_WUV):
            srd(a, 92, p, 4 * MB)
            for j in range(4):
                a("buffer_load_dwordx4 a[192:195], v2, s[92:95], s4 offen offset:%d ; @dummy" % (1024 * j))
    if PF0 == "a":
        pf0()
    for x in proj4.xitems(gk, 1) + proj4.witems(gk, 1):
        a(x)
    if PF0 == "b":
        pf0()
    tag_make(a, 1, 32 + (10 if PF0 else 0))
    st(a)
    if 'only2' in MFL:
        a("s_waitcnt vmcnt(0)")
        a("s_barrier")
        for x in bfront.xsrd() + [y for s in range(3) for y in bfront.stage_items(a, b0, s, 'xw')]:
            a(x)
        tag_load(a, 22)
        cut0 = len(a.ins)
    PF1 = [int(x) for x in os.environ.get("PF1", "0,0").split(",")]
    a("s_cmp_lt_u32 s2, 128")
    a("s_cbranch_scc1 Lp1_k")
    k0 = st.k
    for kind_, g in (('v', gv), ('k', gk)):
        if kind_ == 'k':
            a.label("Lp1_k")
            st.k = k0
        g.pf = proj4.pf_items(56, 50, PF1[0]) + proj4.pf_items(52, 51, PF1[1])
        g.pro(a, 16 + (10 if PF0 else 0), dma=proj4.xitems(g, 2))
        a("s_mov_b32 s%d, 5" % g.sCnt)
        g.loop(a, 8)
        g.iter(a, 8, proj4.witems(g, 0) + bfront.xsrd() + bfront.stage_items(a, b0, 0, 'x'))
        g.iter(a, 4, bfront.stage_items(a, b0, 0, 'w') + bfront.stage_items(a, b0, 1, 'xw'), adv=False)
        tag_load(a, 22)
        g.tail(a, bfront.stage_items(a, b0, 2, 'xw'))
        st(a)
        proj4.pack(a, kind_)
        if kind_ == 'v':
            a("s_branch Lp2")
    if 'only2' in MFL:
        del a.ins[cut0:]
        st.k = 2
    if 'nost' in MFL:
        proj4.trickle = lambda a, b: ["s_nop 0"]
        VmQ.push0 = VmQ.push
        VmQ.push = lambda self, tag, n: VmQ.push0(self, tag, 0 if tag == 'st' else n)
    a.label("Lp2")
    st(a)
    b0.init(a)
    bfront.restore(a)
    a("s_cmp_ge_u32 s%d, 2" % S_WAVE)
    a("s_cbranch_scc1 Lp2_r1")
    k0 = st.k
    TRK = [int(x) for x in os.environ.get("TRK", "2,2,2,2,2,2,2,2,2,2,2,2,2,2,2,2").split(",")]
    TRK += [0] * (16 - len(TRK))
    TR3 = [int(x) for x in os.environ.get("TR3", "0").split(",")]
    cum = [sum((TRK + TR3)[:k]) for k in range(17 + len(TR3))]
    assert cum[-1] == 32 and cum[16] == 32 and len(TR3) <= 11
    Q3 = []
    for rh, g in enumerate((b0, b1)):
        if rh:
            a.label("Lp2_r1")
            st.k = k0
        n = 10 if rh else 11
        q = VmQ()
        q.push(0, n), q.push(1, n), q.push('t', 1), q.push(2, n)
        g.pro(a, q.need(0), dma=proj4.trickle(cum[0], cum[1]))
        q.push('st', TRK[0])
        npf = 12 - 5 * PF1[1]
        for s in range(1, 16):
            N = q.need(s)
            it = []
            if s <= npf:
                it += proj4.pf_items(52, 51, 1)
                q.push('pf', 1)
            if s < 14:
                it += g.dma_items()
                q.push(s + 2, n)
            elif s == 14:
                it += qproj.witems(g3, 0) + qproj.witems(g3, 1)
                q.push('w0', 4), q.push('w1', 4)
            else:
                it += qproj.xitems(g3, 0)
                q.push('x0', 8)
            it += proj4.trickle(cum[s], cum[s + 1])
            q.push('st', TRK[s])
            g.iter(a, N, it, adv=s < 15, after_bar=(lambda: qproj.setup(a, g3)) if s == 14 else None)
            if 'st2' in MFL and s in (3, 7, 11):
                st(a)
        g.tail(a, qproj.xitems(g3, 1))
        q.push('x1', 8)
        st(a)
        c = Col()
        bfront.local_attn(c, rh)
        for x in weave_lines(c, qproj.witems(g3, 2) + qproj.xitems(g3, 2), 0.0, 0.85):
            a(x)
        q.push('w2', 4), q.push('x2', 8), q.push('o', 4)
        Q3.append(q)
        if not rh:
            a("s_branch Lp3")
    a.label("Lp3")
    st(a)
    if 'only2' in MFL:
        st.flush(a)
        return fin(a)
    q = Q3[0]
    k = q.q.index('w0')
    assert q.q[k:] == Q3[1].q[Q3[1].q.index('w0'):]
    qproj.restore(a)
    g3.init(a, [qproj.XS0, 0])
    a("s_lshl_b32 s34, s%d, 4" % proj4.sN0)
    a("s_add_u32 s34, s34, s%d" % proj4.sM0)
    a("s_lshr_b32 s4, s2, 7")
    a("s_lshl_b32 s4, s4, 3")
    a("s_add_u32 s34, s34, s4")
    a("s_lshl_b32 s34, s34, 7")
    a("s_lshl_b32 s91, s%d, 4" % bfront.sRb)
    a("s_add_u32 s91, s91, s%d" % bfront.sHp)
    a("s_lshl_b32 s91, s91, 7")
    a("s_add_u32 s91, s91, %d" % F_OB)
    g3.pro(a, q.need('w0', 'x0'), dma=proj4.trickle(cum[16], cum[17]))
    q.push('st', TR3[0])
    last = max(2, len(TR3) + 1)
    for s in range(1, last + 1):
        tags = ['w%d' % s, 'x%d' % s, s] + (['o', 'st'] if s == last else [])
        N = q.need(*tags)
        g3.iter(a, N, g3.dma_items() + (proj4.trickle(cum[16 + s], cum[17 + s]) if s < len(TR3) else []),
                after_bar=(lambda: (tag_get(a, 22, 20), signal(a, 22, ["s34", "s91"], 3))) if s == last else None)
        q.push(s + 2, 12)
        if s < len(TR3):
            q.push('st', TR3[s])
    if last < 12:
        a("s_mov_b32 s%d, %d" % (g3.sCnt, 12 - last))
        g3.loop(a, 12)

    def ids():
        a("s_lshr_b32 s34, s%d, 1" % attn4.sHead)
        a("s_lshl_b32 s34, s34, 11")
        for x in flag_addr(3):
            a(x)
    g3.iter(a, 12, [flag_load(22, "s34", 3)] + g3.dma_items(), after_bar=ids)

    def go():
        flag_check(a, 22, "s34", 3)
        attn4.kv_setup(a)
        oproj.ids(a)
    it = attn4.kv_prologue_items(0)
    cut = [i for i, x in enumerate(it) if "m0" in x][1]
    g3.iter(a, 12, it[:cut], after_bar=go)
    g3.iter(a, 4, it[cut:], adv=False)
    g3.tail(a, bar=False)
    st(a)
    qproj.epilogue(a)
    attn4.setup1(a)
    st(a)
    g6, g7 = oproj.make("p6", oproj.AB), oproj.make("p7", oproj.AA)

    class H:
        q0 = [t for t in (('K', 0), ('K', 1), ('V', 0)) for _ in range(4)]

        @staticmethod
        def after_d2():
            a("s_lshl_b32 s91, s%d, 11" % oproj.sRb)
            a("s_add_u32 s91, s91, %d" % F_OB)
            for x in flag_addr(14):
                a(x)

        @staticmethod
        def pre_e1():
            return [flag_load(12, "s91", 14)]

        @staticmethod
        def at_e1():
            flag_check(a, 12, "s91", 14)
            for j in range(4):
                a("v_accvgpr_read_b32 v%d, a%d" % (oproj.wv + j, oproj.aSave + j))
            for x in oproj.job_w(False) + oproj.job_x(False):
                a(x)

        @staticmethod
        def e1_items():
            return oproj.stage_items(g6, 0, 'wx')

        @staticmethod
        def e2_items():
            return oproj.stage_items(g6, 1, 'wx')
    attn4.attention(a, st, H)
    st(a)
    gh = oproj.make("ph", oproj.AA, True)
    q = VmQ()
    for s in range(2):
        q.push(s, 8)
    q.push('ctx', 8)
    oproj.read_bases(a, 4)
    g6.init(a, [3])
    g6.pro(a, q.need(0), dma=oproj.stage_items(g6, 2, 'wx') + oproj.stage_items(g6, 3, 'wx'))
    q.push(2, 8)
    q.push(3, 8)

    def sig_ctx():
        a("s_lshl_b32 s4, s%d, 7" % attn4.sHead)
        a("s_lshl_b32 s5, s%d, 12" % attn4.sPair)
        a("s_add_u32 s6, s4, %d" % F_CTX)
        a("s_add_u32 s7, s6, %d" % (15 << 12))
        a("s_add_u32 s6, s6, s5")
        a("s_sub_u32 s7, s7, s5")
        signal(a, 6, ["s6", "s7"])
        a("s_lshl_b32 s91, s%d, 12" % oproj.sRb)
        a("s_add_u32 s91, s91, %d" % F_CTX)
        for x in flag_addr(14, 32):
            a(x)
        oproj.xch_srd(a)
    VS = int(os.environ.get("VS", 6))
    for s in range(1, VS):
        N = q.need(1, 'ctx') if s == 1 else q.need(s)
        if s == 1:
            q.push('sig', 2)
        it = g6.dma_items() if s < 5 else (oproj.job_w(True) if s == 5 else []) + g7.group_items(g7.dma[0])
        q.push(s + 3, 8 if s < 5 else 4)
        if s == VS - 1:
            it = it + [flag_load(6, "s91", 14)]
            q.push('fl', 1)
        g6.iter(a, N, it, after_bar=sig_ctx if s == 1 else None)
    a("s_waitcnt vmcnt(%d)" % q.need(VS, 'fl'))
    a("v_cmp_ne_u64 vcc, s[%d:%d], v[6:7]" % (S_TAG, S_TAG + 1))
    a("v_cndmask_b32_e64 v8, 0, 1, vcc")
    a("v_lshlrev_b32 v9, 2, v0")
    a("ds_write_b32 v9, v8")
    a("v_lshlrev_b32 v9, 4, v1")
    a("s_waitcnt lgkmcnt(0)")
    a("s_barrier")
    a("ds_read_b128 v[160:163], v9")
    for x in oproj.job_w(True) if VS == 5 else []:
        a(x)
    a("s_waitcnt lgkmcnt(0)")
    a("v_or3_b32 v160, v160, v161, v162")
    a("v_or_b32 v160, v160, v163")
    a("v_cmp_ne_u32 vcc, 0, v160")
    a("s_cbranch_vccnz Lp6_late ; @late")
    k0 = st.k
    q0 = list(q.q)
    for late in (False, True):
        q.q = list(q0)
        if late:
            a.label("Lp6_late")
            st.k = k0
        else:
            for x in oproj.job_x(True):
                a(x)
        for s in range(VS, 8):
            if s > VS:
                g6.bar(a, q.need(s))
            it = g7.group_items(g7.dma[0]) if late else g7.dma_items()
            if s == VS and not late:
                for t in range(VS + 2, 7, -1):
                    it = oproj.stage_items(g7, t, 'x') + it
                for t in range(8, VS + 3):
                    q.push(t, 4)
            q.push(s + 3, 4 if late else 8)
            if late and s == 7:
                it += [flag_load(6, "s91", 14)]
            d0, d1 = g6.split(it)
            g6.half(a, 1, dma=d0)
            a("s_waitcnt lgkmcnt(0)")
            g6.half(a, 0, dma=d1, adv=True)
        if late:
            a("s_waitcnt vmcnt(0) lgkmcnt(0)")
            a("s_barrier")
            st(a)
            flag_check(a, 6, "s91", 14)
            st(a)
            for x in oproj.job_x(True):
                a(x)
            it = []
            for s in range(8, 12):
                it += oproj.stage_items(g7, s, 'x' if s < 11 else 'wx')
            g6.half(a, 1, rd=False, dma=it)
            for x in oproj.send_items(oproj.AB, False, 6):
                a(x)
            a("s_waitcnt vmcnt(24)")
            a("s_barrier")
            for x in g7.reads(0):
                a(x)
            a("s_waitcnt lgkmcnt(0)")
            g7.half(a, 0, first=True, adv=True)
        else:
            g6.bar(a, q.need(8))
            st(a)
            st(a)
            g6.half(a, 1, dma=g7.dma_items())
            a("s_waitcnt lgkmcnt(0)")
            it = oproj.send_items(oproj.AB, False, 6)
            nsc = [i for i, x in enumerate(it) if kind(x) == 'd'][0]
            for x in it[:nsc]:
                a(x)
            g7.half(a, 0, first=True, adv=True, extra=lambda sg: place_dma(sg, it[nsc:], 5, 14))
            a("s_branch Lp7")
    a.label("Lp7")
    st(a)
    DL = oproj.DL
    F = 40 - DL
    a("s_mov_b32 s%d, %d" % (g7.sCnt, F - 4 - 9))
    g7.loop(a, 16)
    q = VmQ()
    for s in range(F - 4, F - 1):
        q.push(s, 8)
    E = F + 2 * DL
    finB = []
    for s in range(F - 4, E):
        tags, it, ab = [s], [], None
        if s == F - 4:
            def ab():
                oproj.flag_pos(a, False, True, 6)
                signal(a, 6, ["s6"])
                oproj.flag_pos(a, False, False, 90)
                oproj.out_setup(a)
        if s == F - 3:
            it += [flag_load(6, "s90")]
        if s == F - 2:
            tags.append('fl')
            ab = lambda: flag_check(a, 6, "s90")
            it += oproj.recv_items(False, 6)
        if s == F:
            tags.append('rcv')

            def ab():
                oproj.out_off(a, False, 4)
                oproj.flag_pos(a, True, True, 89)
                oproj.flag_pos(a, True, False, 90)
            finB = oproj.finish(oproj.AB, False, 4)
        if s == F + 3:
            tags.append('snd')
            ab = lambda: signal(a, 6, ["s89"])
        if s == E - 3:
            it += [flag_load(6, "s90")]
        if s == E - 2:
            tags.append('fl')
            ab = lambda: flag_check(a, 6, "s90")
            it += oproj.recv_items(True, 6)
        N = q.need(*tags)
        if s == F - 4 or s == F + 3:
            q.push('sig', 1)
        for x in it:
            if kind(x) == 'd':
                q.push('fl' if "dwordx2" in x else 'rcv', 1)
        if s + 3 < F:
            it += g7.dma_items()
            q.push(s + 3, 8)
        elif s + 3 < E:
            if s + 3 == F:
                it += oproj.to_half()
            if s + 3 == F + DL:
                it += oproj.to_partner()
            it += gh.dma_items()
            q.push(s + 3, 6)
        g1, g0 = (g7 if s - 1 < F else gh), (g7 if s < F else gh)
        g7.bar(a, N)
        if ab:
            ab()
        d0, d1 = g7.split(it)
        if s == F:
            snd = oproj.send_items(oproj.AA, True, 6)
            nsc = [i for i, x in enumerate(snd) if kind(x) == 'd'][0]
            d0, d1 = it + snd[:nsc], snd[nsc:nsc + 4]
            q.push('snd', 4)
        if s == F + 1:
            d0, d1 = snd[nsc + 4:], it
            q.q = q.q[:-6] + ['snd'] * 4 + q.q[-6:]

        L = finB.pop(0) if finB and s > F else []

        def finb(sg):
            g = 0
            for x in L[:-1]:
                g = sg.place(x, g, lo=g)
        g1.half(a, 1, dma=d0, rdg=g0, extra=finb)
        a("s_waitcnt lgkmcnt(0)")
        g0.half(a, 0, dma=d1, adv=s < E - 1, extra=lambda sg: sg.end[sg.n - 1].extend(L[-1:]))
        q.push('ob', len(L[-1:]))
    oproj.out_off(a, True, 4)
    gh.tail(a, bar=False)
    st(a)
    a("s_waitcnt vmcnt(0)")
    st(a)
    for L in zip(*oproj.finish(oproj.AA, True, 4)):
        for x in L:
            a(x)
    st(a)
    if stamp:
        a("s_waitcnt vmcnt(0)")
    st(a)
    st.flush(a)
    return fin(a)


def fin(a):
    a.label("Lend")
    a("s_endpgm")
    t = a.finish()
    if 'nodma' in MFL:
        t = "\n".join(l for l in t.split("\n") if not l.rstrip().endswith(" lds"))
    return t.replace("CODE_KB", os.environ.get("CODE_KB", "70"))
```

```python
from lib import *
from gemm4 import *

wv = 10
rdx, rdw = 16, 18
sX, sW, sWv, sHo = 70, 71, 79, 88
sRb, sCt, sKh, sTile = 73, 76, 77, 78
T = 24
AB, AA, PB, PA = 32, 96, 160, 192
NS = 4
aSave = 212
DL = int(os.environ.get("DL", 4))


def acc(base, mi, ni): return ('v', base + 4 * (4 * mi + ni))


def make(name, base, half=False):
    g = Gemm()
    g.name, g.woff = name, 16 * KB
    g.xlin, g.xhs = True, 8192
    R = Ring(NS, 32 * KB, 64)
    R.regs = list(range(rdx, rdw + 4))
    g.rings = [R]
    g.xrd, g.wrd = [(rdx, rdx), (rdx + 1, rdx + 1)], list(range(rdw, rdw + 4))
    g.xfr = [(i >> 1, 1024 * (i & 1)) for i in range(4)]
    g.wfr = [(b, 0) for b in range(4)]
    g.mf = [(acc(base, mi, ni), mi, ni, 'wx') for ni in range(4) for mi in range(2 if half else 4)]
    g.fx, g.fw = 64, 96
    g.sCnt = 69
    ld = lambda v, s, o, j, f: "buffer_load_dwordx4 v%d, s[%d:%d], s%d offen offset:%d%s lds" % (v, s, s + 3, o, 1024 * j, f)
    g.dma = [
        (R, 16 * KB, [ld(wv + j, 12, sW, j, "") for j in range(4)], ["s_add_u32 s%d, s%d, %d" % (sW, sW, 64 * 2048)]),
        (R, 0, [ld(2, 8, sX, j, SC1L) for j in range(4)], ["s_add_u32 s%d, s%d, %d" % (sX, sX, 16 * KB)]),
    ]
    if half:
        g.dma[1] = (R, ('s', sHo), [ld(2, 8, sX, j, SC1L) for j in range(2)], ["s_add_u32 s%d, s%d, %d" % (sX, sX, 16 * KB)])
    return g


def to_half():
    return ["s_and_b32 s%d, s%d, 1" % (sHo, S_WAVE), "s_lshl_b32 s%d, s%d, 12" % (sHo, sHo),
            "s_lshr_b32 s72, s%d, 1" % S_WAVE, "s_lshl_b32 s72, s72, 13", "s_add_u32 s%d, s%d, s72" % (sHo, sHo),
            "s_lshl_b32 s72, s%d, 11" % sKh, "s_add_u32 s%d, s%d, s72" % (sHo, sHo), "s_sub_u32 s%d, s%d, s%d" % (sHo, sHo, sWv),
            "s_add_u32 s%d, s%d, s%d" % (sX, sX, sHo)]


def to_partner():
    return ["s_sub_u32 s%d, s%d, %d" % (sX, sX, DL << 14), "s_xor_b32 s%d, s%d, %d" % (sX, sX, 1 << 19),
            "s_sub_u32 s%d, s%d, %d" % (sW, sW, DL << 17), "s_xor_b32 s%d, s%d, %d" % (sW, sW, 1 << 22)]


def ids(a):
    a("s_and_b32 s4, s2, 1")
    a("s_lshl_b32 s4, s4, 3")
    a("s_bfe_u32 s5, s2, 0x30003")
    a("s_add_u32 s%d, s4, s5" % sRb)
    a("s_bfe_u32 s4, s2, 0x10001")
    a("s_lshl_b32 s4, s4, 2")
    a("s_lshr_b32 s5, s2, 6")
    a("s_add_u32 s%d, s4, s5" % sCt)
    a("s_bfe_u32 s%d, s2, 0x10002" % sKh)
    a("s_lshl_b32 s%d, s%d, 3" % (sTile, sRb))
    a("s_add_u32 s%d, s%d, s%d" % (sTile, sTile, sCt))
    a("s_lshl_b32 s%d, s%d, 12" % (sWv, S_WAVE))
    a("s_add_u32 s64, s%d, %d" % (sWv, 128 * KB))


def lanes(a, T):
    lane_setup(a, T)
    a("s_and_b32 s4, s%d, 1" % S_WAVE)
    a("s_lshl_b32 s4, s4, 16")
    a("s_lshr_b32 s5, s%d, 1" % S_WAVE)
    a("s_lshl_b32 s5, s5, 7")
    a("s_add_u32 s4, s4, s5")
    a("v_lshl_add_u32 v%d, v%d, 11, v%d" % (T, T, T + 1))
    a("v_add_u32 v%d, s4, v%d" % (T, T))
    for j in range(4):
        a("v_add_u32 v%d, %d, v%d" % (T + 1, j * (8 * 2048 - 1024), T))
        a("v_accvgpr_write_b32 a%d, v%d" % (aSave + j, T + 1))


def stage_items(g, s, what):
    L = []
    for i, w in enumerate("wx"):
        if w in what:
            ring, m0, ins, post = g.dma[i]
            L += ["s_add_u32 m0, s%d, %d" % (sWv, (1 + (3 + s) % NS) * 32 * KB + m0)] + ins + post
    return L


def job_w(isA):
    c = Col()
    srd(c, 12, P_WO if isA else P_BWO, (4096 if isA else 1024) * 2048)
    c("s_lshl_b32 s%d, s%d, %d" % (sW, sKh, 22 if isA else 20))
    c("s_lshl_b32 s72, s%d, 8" % sCt)
    c("s_add_u32 s%d, s%d, s72" % (sW, sW))
    return list(c)


def job_x(isA):
    off = WS_CTX if isA else WS_OB
    L = ["s_add_u32 s8, s%d, %d\ns_addc_u32 s9, s%d, 0" % (P_WS, off, P_WS + 1),
         "s_mov_b32 s10, %d" % ((16 if isA else 4) * MB), "s_mov_b32 s11, 0x00020000",
         "s_lshl_b32 s%d, s%d, 1" % (sX, sRb), "s_add_u32 s%d, s%d, s%d" % (sX, sX, sKh),
         "s_lshl_b32 s%d, s%d, %d" % (sX, sX, 19 if isA else 17),
         "s_add_u32 s%d, s%d, s%d" % (sX, sX, sWv)]
    return L


def read_bases(a, slot):
    a("s_lshr_b32 s4, s%d, 1" % S_WAVE)
    a("s_lshl_b32 s4, s4, 12")
    a("s_add_u32 s4, s4, %d" % (slot * 32 * KB))
    a("s_lshl_b32 s5, s%d, 11" % sKh)
    a("s_add_u32 s4, s4, s5")
    a("v_add_u32 v%d, s4, v2" % rdx)
    a("v_xor_b32 v%d, 0x800, v%d" % (rdx + 1, rdx))
    a("s_and_b32 s4, s%d, 1" % S_WAVE)
    a("s_lshl_b32 s4, s4, 13")
    a("s_add_u32 s4, s4, %d" % (slot * 32 * KB))
    wread_base(a, list(range(rdw, rdw + 4)), range(4), T, "s4")


def xch_srd(a):
    srd(a, 16, P_WS, 16 * MB, WS_XCH)


def xch_off(a, d, isA, mine):
    a("s_lshl_b32 s%d, s%d, 1" % (d, sTile))
    a("s_add_u32 s%d, s%d, s%d" % (d, d, sKh))
    if not mine:
        a("s_xor_b32 s%d, s%d, 1" % (d, d))
    a("s_lshl_b32 s%d, s%d, 2" % (d, d))
    a("s_add_u32 s%d, s%d, s%d" % (d, d, S_WAVE))
    a("s_lshl_b32 s%d, s%d, 13" % (d, d))
    if not isA:
        a("s_add_u32 s%d, s%d, %d" % (d, d, 8 * MB))


def send_items(base, isA, d):
    c = Col()
    xch_off(c, d, isA, False)
    c("s_add_u32 s%d, s%d, 4096" % (d + 1, d))
    for i in range(8):
        c("buffer_store_dwordx4 %s, v2, s[16:19], s%d offen offset:%d%s" % (v4(base + 32 + 4 * i), d + i // 4, 1024 * (i % 4), SC1))
    return list(c)


def recv_items(isA, d):
    c = Col()
    xch_off(c, d, isA, True)
    c("s_add_u32 s%d, s%d, 4096" % (d + 1, d))
    for i in range(8):
        c("buffer_load_dwordx4 %s, v2, s[16:19], s%d offen offset:%d%s" % (v4((PA if isA else PB) + 4 * i), d + i // 4, 1024 * (i % 4), SC1))
    return list(c)


def flag_pos(a, isA, mine, d):
    a("s_lshl_b32 s%d, s%d, 1" % (d, sTile))
    a("s_add_u32 s%d, s%d, s%d" % (d, d, sKh))
    if not mine:
        a("s_xor_b32 s%d, s%d, 1" % (d, d))
    a("s_lshl_b32 s%d, s%d, 7" % (d, d))
    a("s_add_u32 s%d, s%d, %d" % (d, d, F_XA if isA else F_XB))


def out_setup(a):
    srd(a, 20, P_OUT, 8 * MB)
    a("v_bfe_u32 v%d, v1, 4, 1" % (T + 1))
    a("v_lshrrev_b32 v%d, 5, v1" % (T + 2))
    a("v_lshl_or_b32 v%d, v%d, 1, v%d" % (T + 1, T + 1, T + 2))
    a("v_lshlrev_b32 v%d, 4, v%d" % (T + 1, T + 1))
    a("v_and_b32 v%d, 15, v1" % T)
    a("v_lshl_add_u32 v%d, v%d, 14, v%d" % (T + 2, T, T + 1))
    a("v_lshl_add_u32 v%d, v%d, 12, v%d" % (T + 3, T, T + 1))


def out_off(a, isA, d):
    a("s_lshl_b32 s%d, s%d, 19" % (d, sRb))
    a("s_lshl_b32 s72, s%d, 8" % sCt)
    a("s_add_u32 s%d, s%d, s72" % (d, d))
    a("s_and_b32 s72, s%d, 1" % S_WAVE)
    a("s_lshl_b32 s72, s72, 7")
    a("s_add_u32 s%d, s%d, s72" % (d, d))
    a("s_lshr_b32 s72, s%d, 1" % S_WAVE)
    a("s_lshl_b32 s72, s72, 1")
    a("s_add_u32 s72, s72, s%d" % sKh)
    a("s_lshl_b32 s72, s72, %d" % (12 if isA else 17))
    a("s_add_u32 s%d, s%d, s72" % (d, d))
    if not isA:
        a("s_add_u32 s%d, s%d, 2048" % (d, d))
    a("s_add_u32 s%d, s%d, %d" % (d + 1, d, (64 if isA else 16) * 4096))


def finish(base, isA, d):
    PR = PA if isA else PB
    out = []
    for q in range(4):
        u = PR + 8 * q
        L = ["v_pk_add_f32 v[%d:%d], v[%d:%d], v[%d:%d]" % (u + e, u + e + 1, u + e, u + e + 1, base + 8 * q + e, base + 8 * q + e + 1) for e in range(0, 8, 2)]
        L += ["v_cvt_pk_bf16_f32 v%d, v%d, v%d" % (u + e, u + 2 * e, u + 2 * e + 1) for e in range(4)]
        L += ["v_permlane16_swap_b32 v%d, v%d" % (u, u + 2), "v_permlane16_swap_b32 v%d, v%d" % (u + 1, u + 3)]
        L += ["buffer_store_dwordx4 %s, v%d, s[20:23], s%d offen offset:%d%s" % (v4(u), T + (2 if isA else 3), d + (q >> 1), (q & 1) * 64,
                                                                                os.environ.get("OUTF", ""))]
        out.append(L)
    return out
```

```python
from lib import *
from gemm4 import *

xv, wv = 48, 56
sX, sW, sXb = 46, 47, 48
sM0, sN0 = 61, 62
sSt = 63
T = 32
ROT = int(os.environ.get("ROT", 1))
XS0 = 2


def acc(mi, ni):
    b = mi * 8 + ni
    return ('v', 64 + 4 * b) if b < 48 else ('a', 128 + 4 * (b - 48))


def make(orient):
    g = Gemm()
    g.name = "p1" + orient
    RX, RW = Ring(3, 32 * KB, 36), Ring(2, 32 * KB, 41)
    RX.regs, RW.regs = [16, 17], [18, 19, 20, 21]
    g.rings = [RX, RW]
    g.xrd, g.wrd = [(16, 17)], [18, 19, 20, 21]
    g.xfr = [(0, 2048 * i) for i in range(8)]
    g.wfr = [(ni & 3, (ni >> 2) * 8192) for ni in range(8)]
    g.mf = [(acc(mi, ni), mi, ni, orient) for ni in range(8) for mi in range(8)]
    g.fx, g.fw = 0, 64
    g.sCnt = 35
    ld = lambda v, s, o, j: "buffer_load_dwordx4 v%d, s[%d:%d], s%d offen offset:%d lds" % (v + j, s, s + 3, o, 1024 * (j & 3))
    g.dma = [
        (RW, 0, [ld(wv, 12, sW, j) for j in range(4)], []),
        (RW, 4096, [ld(wv, 12, sW, j) for j in range(4, 8)],
         ["s_add_u32 s%d, s%d, %d" % (sW, sW, 64 * 8192), "s_and_b32 s%d, s%d, %d" % (sW, sW, 512 * 8192 - 1)]),
        (RX, 0, [ld(xv, 8, sX, j) for j in range(4)], []),
        (RX, 4096, [ld(xv, 8, sX, j) for j in range(4, 8)],
         ["s_add_u32 s%d, s%d, 128" % (sX, sX), "s_and_b32 s%d, s%d, 1023" % (sX, sX)]),
    ]
    return g


def xitems(g, s):
    off = (((XS0 + s) % 3) - XS0) * 32 * KB
    return g.group_items(g.dma[2], off) + g.group_items(g.dma[3], off)


def witems(g, s):
    return g.group_items(g.dma[0], s * 32 * KB) + g.group_items(g.dma[1], s * 32 * KB)


def setup(a, g):
    RX, RW = g.rings
    a("s_and_b32 s4, s2, 1")
    a("s_lshl_b32 s4, s4, 2")
    a("s_bfe_u32 s5, s2, 0x20003")
    a("s_add_u32 s%d, s4, s5" % sM0)
    a("s_bfe_u32 s4, s2, 0x20001")
    a("s_lshl_b32 s4, s4, 2")
    a("s_bfe_u32 s5, s2, 0x20005")
    a("s_add_u32 s%d, s4, s5" % sN0)
    a("s_lshl_b32 s4, s%d, 13" % S_WAVE)
    a("s_add_u32 s%d, s4, %d" % (RX.sWr, XS0 * 32 * KB))
    a("s_add_u32 s%d, s4, %d" % (RW.sWr, 96 * KB))
    lane_setup(a, T)
    a("s_lshl_b32 s4, s%d, 2" % sM0)
    a("s_add_u32 s4, s4, s%d" % S_WAVE)
    a("s_lshl_b32 s4, s4, 6")
    a("v_add_u32 v%d, s4, v%d" % (T + 2, T))
    a("v_lshl_add_u32 v%d, v%d, 10, v%d" % (T + 2, T + 2, T + 1))
    for j in range(8):
        a("v_add_u32 v%d, %d, v%d" % (xv + j, 8 * j * 1024 - 1024 * (j & 3), T + 2))
    a("v_lshrrev_b32 v%d, 2, v%d" % (T + 2, T))
    a("v_and_b32 v%d, 3, v%d" % (T + 3, T))
    a("v_lshl_add_u32 v%d, v%d, 3, v%d" % (T + 2, T + 2, T + 3))
    a("s_lshl_b32 s4, s%d, 2" % sN0)
    a("s_add_u32 s4, s4, s%d" % S_WAVE)
    a("s_lshl_b32 s4, s4, 7")
    a("v_lshl_add_u32 v%d, v%d, 13, v%d" % (T + 2, T + 2, T + 1))
    a("v_add_u32 v%d, s4, v%d" % (T + 2, T + 2))
    for j in range(8):
        a("v_add_u32 v%d, %d, v%d" % (wv + j, (32 * (j >> 2) + 16 * (j & 1) + 4 * ((j >> 1) & 1)) * 8192 - 1024 * (j & 3), T + 2))
    a("s_and_b32 s6, s2, %d" % (7 if ROT else 0))
    if int(os.environ.get("SK1", 0)):
        a("s_add_u32 s4, s%d, s%d" % (sM0, sN0))
        a("s_lshr_b32 s5, s2, 7")
        a("s_lshl_b32 s5, s5, %d" % int(os.environ.get("SK1V", 1)))
        a("s_add_u32 s4, s4, s5")
        a("s_and_b32 s4, s4, %d" % int(os.environ.get("SK1M", 3)))
        a("s_mul_i32 s4, s4, %d" % int(os.environ.get("SK1", 0)))
        a("s_add_u32 s6, s6, s4")
        a("s_and_b32 s6, s6, 7")
    a("s_lshl_b32 s%d, s6, 7" % sX)
    a("s_lshl_b32 s%d, s6, 19" % sW)
    a("s_waitcnt lgkmcnt(0)")
    srd(a, 8, P_CKV, 2048 * 1024)
    a("s_cmp_lt_u32 s2, 128")
    a("s_cselect_b32 s12, s%d, s%d" % (P_WUK, P_WUV))
    a("s_cselect_b32 s13, s%d, s%d" % (P_WUK + 1, P_WUV + 1))
    a("s_mov_b32 s14, %d" % (512 * 8192))
    a("s_mov_b32 s15, 0x00020000")


def read_bases(a, g):
    a("s_lshr_b32 s4, s%d, 1" % S_WAVE)
    a("s_lshl_b32 s4, s4, 14")
    a("s_add_u32 s4, s4, %d" % (XS0 * 32 * KB))
    xread_base(a, 16, 17, T, "s4")
    a("s_and_b32 s4, s%d, 1" % S_WAVE)
    a("s_lshl_b32 s4, s4, 14")
    a("s_add_u32 s4, s4, %d" % (96 * KB))
    wread_base(a, g.wrd, range(4), T, "s4")


def out_base(a):
    a("s_and_b32 s4, s%d, 1" % S_WAVE)
    a("s_lshl_b32 s5, s%d, 1" % sN0)
    a("s_add_u32 s4, s4, s5")
    a("s_lshr_b32 s5, s%d, 1" % S_WAVE)
    a("s_lshl_b32 s6, s%d, 1" % sM0)
    a("s_add_u32 s5, s5, s6")
    srd(a, 16, P_WS, 32 * MB, WS_KV)
    a("s_lshl_b32 s4, s4, 20")
    a("s_lshl_b32 s5, s5, 16")
    a("s_add_u32 s%d, s4, s5" % sSt)
    a("s_lshr_b32 s4, s2, 7")
    a("s_lshl_b32 s4, s4, 14")
    a("s_add_u32 s%d, s%d, s4" % (sSt, sSt))


def packed(j):
    if j < 8:
        return ('v', 160 + 4 * j)
    if j >= 24:
        return ('v', 224 + 4 * (j - 24))
    return ('v', 128 + 64 * ((j >> 3) - 1) + 4 * (j & 7))


ORDER = list(range(32))


def pack(a, kind_):
    for j in list(range(8, 24)) + list(range(8)) + list(range(24, 32)):
        p0, p1 = (acc(j >> 2, 2 * (j & 3)), acc(j >> 2, 2 * (j & 3) + 1)) if kind_ == 'k' else (acc(2 * (j >> 3), j & 7), acc(2 * (j >> 3) + 1, j & 7))
        if p0[0] == 'a':
            src = [64 + 8 * (j - 24) + e for e in range(8)]
            for e in range(8):
                a("v_accvgpr_read_b32 v%d, a%d" % (src[e], (p0, p1)[e >> 2][1] + (e & 3)))
        else:
            src = [p0[1] + e for e in range(4)] + [p1[1] + e for e in range(4)]
        for e in range(4):
            a("v_cvt_pk_bf16_f32 v%d, v%d, v%d" % (packed(j)[1] + e, src[2 * e], src[2 * e + 1]))


def trickle(k0, k1):
    L = []
    for k in range(k0, k1):
        j = ORDER[k]
        if k == k0 or j >> 2 != ORDER[k - 1] >> 2:
            L.append("s_add_u32 s60, s%d, %d" % (sSt, (j >> 4) * 32768 + ((j >> 2) & 3) * 4096))
        L.append("buffer_store_dwordx4 %s, v2, s[16:19], s60 offen offset:%d%s" % (r4(packed(j)), 1024 * (j & 3), SC1))
    return L


def pf_setup(a, d, so, pa, na, pb, nb):
    cut = (256 * na + na + nb - 1) // (na + nb)
    a("s_cmp_lt_u32 s2, %d" % cut)
    a("s_cselect_b32 s%d, s%d, s%d" % (d, pa, pb))
    a("s_cselect_b32 s%d, s%d, s%d" % (d + 1, pa + 1, pb + 1))
    a("s_cselect_b32 s%d, 0, %d" % (so, cut))
    a("s_mov_b32 s%d, %d" % (d + 2, nb * MB))
    a("s_cselect_b32 s%d, %d, s%d" % (d + 2, na * MB, d + 2))
    a("s_mov_b32 s%d, 0x00020000" % (d + 3))
    a("s_sub_u32 s%d, s2, s%d" % (so, so))
    a("s_lshl_b32 s%d, s%d, 2" % (so, so))
    a("s_add_u32 s%d, s%d, s%d" % (so, so, S_WAVE))
    a("s_mul_i32 s%d, s%d, %d" % (so, so, (na + nb) * 1024))


def pf_items(d, so, n):
    if 'nopf' in GFL or not n:
        return []
    return ["buffer_load_dwordx4 a[192:195], v2, s[%d:%d], s%d offen offset:%d ; @dummy" % (d, d + 3, so, 1024 * i) for i in range(n)] + \
           ["s_add_u32 s%d, s%d, %d" % (so, so, 1024 * n)]
```

```python
from lib import *
from gemm4 import *
import attn4
from attn4 import Oreg, aQ, vO, CST

xv, wv, rd = 4, 8, 16
aSave = 222
sXA, sXB, sW = 46, 47, 48
XBASE, XS0 = 64 * KB, 1


def make():
    g = Gemm()
    g.name = "p3"
    RX, RW = Ring(3, 32 * KB, 36), Ring(3, 16 * KB, 41)
    RX.regs, RW.regs = [rd, rd + 1], list(range(rd + 2, rd + 6))
    g.rings = [RX, RW]
    g.xrd, g.wrd = [(rd, rd + 1)], list(range(rd + 2, rd + 6))
    g.xfr = [(0, 2048 * i) for i in range(4)]
    g.wfr = [(ni & 3, (ni >> 2) * 8192) for ni in range(8)]
    g.mf = [(Oreg(mi, ni), mi, ni, 'wx') for ni in range(8) for mi in range(4)]
    g.fx, g.fw = 0, 32
    g.sCnt = 35
    ld = lambda v, s, o, j: "buffer_load_dwordx4 v%d, s[%d:%d], s%d offen offset:%d lds" % (v + j, s, s + 3, o, 1024 * j)
    g.dma = [
        (RW, 0, [ld(wv, 12, sW, j) for j in range(4)],
         ["s_add_u32 s%d, s%d, %d" % (sW, sW, 64 * 8192), "s_and_b32 s%d, s%d, %d" % (sW, sW, 1024 * 8192 - 1)]),
        (RX, 0, [ld(xv, 8, sXA, j) for j in range(4)], []),
        (RX, 4096, [ld(xv, 8, sXB, j) for j in range(4)],
         ["s_add_u32 s49, s49, 128", "s_and_b32 s49, s49, 2047", "s_or_b32 s%d, s50, s49" % sXA, "s_or_b32 s%d, s51, s49" % sXB]),
    ]
    return g


def lanes(a, T):
    lane_setup(a, T)
    a("v_lshlrev_b32 v%d, 2, v%d" % (T + 2, T))
    a("v_add_u32 v%d, s%d, v%d" % (T + 2, S_WAVE, T + 2))
    a("v_lshl_add_u32 v%d, v%d, 11, v%d" % (T + 2, T + 2, T + 1))
    for j in range(4):
        a("v_add_u32 v%d, %d, v%d" % (T + 3, (32 * j) * 2048 - 1024 * j, T + 2))
        a("v_accvgpr_write_b32 a%d, v%d" % (aSave + j, T + 3))
    a("v_lshrrev_b32 v%d, 2, v%d" % (T + 2, T))
    a("v_and_b32 v%d, 3, v%d" % (T + 3, T))
    a("v_lshl_add_u32 v%d, v%d, 3, v%d" % (T + 2, T + 2, T + 3))
    a("s_and_b32 s4, s%d, 1" % S_WAVE)
    a("s_lshl_b32 s4, s4, 18")
    a("s_lshr_b32 s5, s%d, 1" % S_WAVE)
    a("s_lshl_b32 s5, s5, 7")
    a("s_add_u32 s4, s4, s5")
    a("s_lshl_b32 s5, s%d, 8" % attn4.sHead)
    a("s_add_u32 s4, s4, s5")
    a("v_lshl_add_u32 v%d, v%d, 13, v%d" % (T + 2, T + 2, T + 1))
    a("v_add_u32 v%d, s4, v%d" % (T + 2, T + 2))
    for j in range(4):
        a("v_add_u32 v%d, %d, v%d" % (T + 3, (16 * (j & 1) + 4 * (j >> 1)) * 8192 - 1024 * j, T + 2))
        a("v_accvgpr_write_b32 a%d, v%d" % (aSave + 4 + j, T + 3))
    t = T + 4
    a("s_lshl_b32 s4, s%d, 13" % S_WAVE)
    a("s_add_u32 s4, s4, %d" % (XBASE + XS0 * 32 * KB))
    xread_base(a, t, t + 1, T, "s4")
    wread_base(a, [t + 2 + i for i in range(4)], range(4), T, "0")
    for i in range(6):
        a("v_accvgpr_write_b32 a%d, v%d" % (aSave + 8 + i, t + i))


def setup(a, g):
    RX, RW = g.rings
    for i in range(8):
        a("v_accvgpr_read_b32 v%d, a%d" % (xv + i, aSave + i))
    srd(a, 8, P_AX, 2048 * 2048)
    srd(a, 12, P_WQ, 1024 * 8192)
    a("s_and_b32 s4, s2, %d" % (7 if int(os.environ.get("ROT3", 1)) else 0))
    a("s_lshl_b32 s4, s4, 1")
    a("s_lshr_b32 s5, s2, 6")
    a("s_add_u32 s5, s5, s%d" % attn4.sPair)
    a("s_and_b32 s5, s5, %d" % int(os.environ.get("SK3M", 3)))
    a("s_mul_i32 s5, s5, %d" % int(os.environ.get("SK3", 1)))
    a("s_add_u32 s4, s4, s5")
    a("s_and_b32 s4, s4, 15")
    a("s_lshl_b32 s49, s4, 7")
    a("s_lshl_b32 s%d, s4, 19" % sW)
    a("s_lshl_b32 s50, s%d, 18" % attn4.sPair)
    a("s_sub_u32 s51, %d, s50" % (15 << 18))
    a("s_or_b32 s%d, s50, s49" % sXA)
    a("s_or_b32 s%d, s51, s49" % sXB)
    a("s_lshl_b32 s%d, s%d, 12" % (RW.sWr, S_WAVE))
    a("s_lshl_b32 s%d, s%d, 13" % (RX.sWr, S_WAVE))
    a("s_add_u32 s%d, s%d, %d" % (RX.sWr, RX.sWr, XBASE + XS0 * 32 * KB))


def restore(a):
    for i in range(6):
        a("v_accvgpr_read_b32 v%d, a%d" % (rd + i, aSave + 8 + i))


def xitems(g, s):
    off = (((XS0 + s) % 3) - XS0) * 32 * KB
    return g.group_items(g.dma[1], off) + g.group_items(g.dma[2], off)


def witems(g, s):
    return g.group_items(g.dma[0], s * 16 * KB)


def epilogue(a):
    a("s_mov_b32 s4, 0x%08x" % f32bits(CST))
    a("s_mov_b32 s5, s4")
    for g in range(4):
        for ds in range(4):
            b = vO + 4 * (8 * g + 2 * ds)
            for e in range(0, 8, 2):
                a("v_pk_mul_f32 v[%d:%d], v[%d:%d], s[4:5]" % (b + e, b + e + 1, b + e, b + e + 1))
            for e in range(4):
                a("v_cvt_pk_bf16_f32 v%d, v%d, v%d" % (b + e, b + 2 * e, b + 2 * e + 1))
            for e in range(4):
                a("v_accvgpr_write_b32 a%d, v%d" % (aQ + 4 * (4 * g + ds) + e, b + e))
```

```python
import os, sys, struct, math
sys.path.insert(0, os.path.join(os.path.dirname(os.path.abspath(__file__)), "..", "gen"))
from asmlib import Asm, Ins

MB = 1 << 20
KB = 1024
WS_KV = 16 * MB
WS_CTX = 64 * MB
WS_OB = 80 * MB
WS_XCH = 96 * MB
WS_DBG = 200 * MB
SC1 = "" if os.environ.get("NOSC1") else " sc1"
SC1L = "" if os.environ.get("NOSC1L") else " sc1"
WS_FLG = 120 * MB
S_FLG = 96
S_TAG = 94
F_QKV, F_OB, F_CTX, F_XA, F_XB, F_EPOCH = 0, 0x8000, 0x10000, 0x20000, 0x28000, 0x30000

S_WAVE = 3
S_PTR = 64
P_AX, P_CKV, P_WQ, P_WUK, P_WUV, P_WO, P_BX, P_WQKV, P_BWO, P_OUT, P_DBG, P_WS = [S_PTR + 2 * i for i in range(12)]


def f32bits(x):
    return struct.unpack("<I", struct.pack("<f", x))[0]


def log2(x):
    n = x.bit_length() - 1
    assert 1 << n == x, x
    return n


def v4(b):
    return "v[%d:%d]" % (b, b + 3)


def a4(b):
    return "a[%d:%d]" % (b, b + 3)


def r4(x):
    return "%s[%d:%d]" % (x[0], x[1], x[1] + 3)


def mfma(d, a, b, c=None):
    return "v_mfma_f32_16x16x32_bf16 %s, %s, %s, %s" % (r4(d), r4(a), r4(b), r4(d) if c is None else (c if isinstance(c, str) else r4(c)))


def srd(a, d, p, size, off=0, soff=None):
    if off:
        a("s_add_u32 s%d, s%d, %d" % (d, p, off))
        a("s_addc_u32 s%d, s%d, 0" % (d + 1, p + 1))
    if soff is not None:
        a("s_add_u32 s%d, s%d, s%d" % (d, d if off else p, soff))
        a("s_addc_u32 s%d, s%d, 0" % (d + 1, d + 1 if off else p + 1))
    if not off and soff is None:
        a("s_mov_b32 s%d, s%d" % (d, p))
        a("s_mov_b32 s%d, s%d" % (d + 1, p + 1))
    a("s_mov_b32 s%d, %s" % (d + 2, size if isinstance(size, str) else "%d" % size))
    a("s_mov_b32 s%d, 0x00020000" % (d + 3))


def kind(t):
    mn = t.split(None, 1)[0]
    if mn.startswith("s_") or mn == "WAIT":
        return 's'
    if mn.startswith("ds_"):
        return 'r'
    if mn.startswith("buffer_") or mn.startswith("global_"):
        return 'd'
    if mn.startswith(("v_exp", "v_rcp", "v_log")):
        return 'e'
    return 'c'


class Seg:
    def __init__(self, mf):
        self.mf = mf
        self.n = len(mf)
        self.pre = []
        self.sc = [[] for _ in mf]
        self.d = [[] for _ in mf]
        self.r = [[] for _ in mf]
        self.c = [[] for _ in mf]
        self.end = [[] for _ in mf]
        self.used = [0] * self.n

    def room(self, g, k):
        if k == 's':
            return len(self.sc[g]) == 0 or self.used[g] <= 4
        if k == 'e':
            return self.used[g] == 0
        if k == 'd':
            return self.used[g] <= 4 and not self.d[g] and not any(kind(x) == 'e' for x in self.c[g])
        return self.used[g] <= 4

    def put(self, g, t):
        k = kind(t)
        if k == 's':
            nl = t.count("\n") + 1
            self.used[g] += 4 * (nl - (0 if self.sc[g] else 1))
            self.sc[g].append(t)
        elif k == 'd':
            self.d[g].append(t)
            self.used[g] += 4
        elif k == 'r':
            self.r[g].append(t)
            self.used[g] += 4
        else:
            self.c[g].append(t)
            self.used[g] += 8 if k == 'e' else 4
        return g

    def place(self, t, want, lo=0, hi=None):
        hi = self.n - 1 if hi is None else min(hi, self.n - 1)
        want = max(lo, min(want, hi))
        k = kind(t)
        for g in range(want, hi + 1):
            if self.room(g, k):
                return self.put(g, t)
        for g in range(want - 1, lo - 1, -1):
            if self.room(g, k):
                return self.put(g, t)
        g = min(range(lo, hi + 1), key=lambda q: (self.used[q], abs(q - want)))
        return self.put(g, t)

    def stream(self, items, g0, g1, strict=False):
        out = []
        n = len(items)
        last = g0
        for i, t in enumerate(items):
            want = g0 + (i * (g1 - g0 + 1)) // n
            g = self.place(t, max(want, last), lo=last, hi=g1 if strict else None)
            last = g
            out.append(g)
        return out

    def lines(self):
        L = list(self.pre)
        for g in range(self.n):
            L.append(self.mf[g])
            for t in self.sc[g] + self.d[g] + self.r[g] + self.c[g] + self.end[g]:
                L += t.split("\n")
        return L

    def cost(self):
        return sum(16 + max(0, self.used[g] - 8) + (4 if self.d[g] else 0) for g in range(self.n))


def resolve_waits(lines, pend):
    out = []
    pend = list(pend)
    later = set(t.split("@")[1].strip() for t in lines if t.startswith("ds_") and "@" in t)
    for t in lines:
        if t.startswith("ds_") and "@" in t:
            later.discard(t.split("@")[1].strip())
        if t.startswith("WAIT"):
            assert t.split()[1] not in later, "wait before its read: " + t
            parts = t.split()
            tag = parts[1]
            extra = " ".join(parts[2:])
            if tag == '*':
                n = 0
            elif tag in pend:
                n = len(pend) - 1 - pend.index(tag)
            else:
                n = None
            if n is None:
                if extra:
                    out.append("s_waitcnt " + extra)
                continue
            assert n <= 15, (n, tag)
            pend = pend[len(pend) - n:] if n else []
            out.append(("s_waitcnt %s lgkmcnt(%d)" % (extra, n)).replace("  ", " "))
            continue
        if t.startswith("ds_"):
            pend.append(t.split("@")[1].strip() if "@" in t else "?")
        out.append(t)
    return out, pend


def kdesc(name, nv, acc, ns=102):
    return """.p2align 6
.amdhsa_kernel %s
  .amdhsa_next_free_vgpr %d
  .amdhsa_next_free_sgpr %d
  .amdhsa_accum_offset %d
  .amdhsa_group_segment_fixed_size 0
  .amdhsa_kernarg_size 96
  .amdhsa_user_sgpr_count 2
  .amdhsa_user_sgpr_kernarg_segment_ptr 1
  .amdhsa_system_sgpr_workgroup_id_x 1
.end_amdhsa_kernel
""" % (name, nv, ns, acc)


def kstart(name):
    return ".globl %s\n.p2align 8\n.type %s,@function\n%s:\n" % (name, name, name)


class Stamps:
    def __init__(self, on, kern):
        self.on, self.kern, self.k = on, kern, 0

    def __call__(self, a):
        if not self.on:
            return
        k = self.k
        self.k += 1
        assert k < 32
        a("s_memrealtime s[100:101]")
        a("s_waitcnt lgkmcnt(0)")
        a("v_writelane_b32 v15, s100, %d" % (2 * k))
        a("s_memtime s[100:101]")
        a("s_waitcnt lgkmcnt(0)")
        a("v_writelane_b32 v15, s100, %d" % (2 * k + 1))

    def flush(self, a):
        if not self.on:
            return
        if os.environ.get("AMP"):
            j, k = [int(x) for x in os.environ["AMP"].split(",")]
            a("v_readlane_b32 s4, v15, %d" % (2 * k))
            a("v_readlane_b32 s5, v15, %d" % (2 * j))
            a("s_memrealtime s[100:101]")
            a("s_sub_u32 s4, s4, s5")
            a("s_lshl_b32 s4, s4, 1")
            a("s_waitcnt lgkmcnt(0)")
            a("s_mov_b32 s6, s100")
            a.label("Lamp")
            a("s_memrealtime s[100:101]")
            a("s_waitcnt lgkmcnt(0)")
            a("s_sub_u32 s5, s100, s6")
            a("s_cmp_lt_u32 s5, s4")
            a("s_cbranch_scc1 Lamp")
            return
        L = a.newlabel("Lst")
        a("s_cmp_lg_u32 s%d, 0" % S_WAVE)
        a("s_cbranch_scc1 %s" % L)
        srd(a, 16, P_WS, 1 * MB, WS_DBG + self.kern * 65536)
        a("s_lshl_b32 s4, s2, 8")
        a("v_mbcnt_lo_u32_b32 v14, -1, 0")
        a("v_mbcnt_hi_u32_b32 v14, -1, v14")
        a("v_lshlrev_b32 v14, 2, v14")
        a("buffer_store_dword v15, v14, s[16:19], s4 offen")
        if os.environ.get("DBGWG"):
            a("s_cmp_lg_u32 s2, %s" % os.environ["DBGWG"])
            a("s_cbranch_scc1 %s" % L)
            srd(a, 16, P_DBG, 256)
            sel = [int(x) for x in os.environ.get("DBGSEL", "0,1,2,3,4,5,6,8,11,12,13,15,16,20").split(",")]
            a("v_readlane_b32 s5, v15, 0")
            for i, k in enumerate(sel):
                a("v_readlane_b32 s4, v15, %d" % (2 * k))
                a("s_sub_u32 s4, s4, s5")
                a("v_mov_b32 v14, s4")
                a("buffer_store_dword v14, off, s[16:19], 0 offset:%d" % (8 + 4 * i))
        a.label(L)


class Col(list):
    def __call__(self, t):
        self.extend(x.strip() for x in t.split("\n") if x.strip())


def signal(a, vt, soffs, va=None):
    va = vt + 2 if va is None else va
    a("v_mov_b32 v%d, 0x40000000" % va)
    a("v_mov_b32 v%d, s%d" % (vt, S_TAG))
    a("v_cmp_eq_u32 vcc, 0, v0")
    a("v_mov_b32 v%d, s%d" % (vt + 1, S_TAG + 1))
    a("v_cndmask_b32_e64 v%d, v%d, 0, vcc" % (va, va))
    for o in soffs:
        a("buffer_store_dwordx2 v[%d:%d], v%d, s[%d:%d], %s offen sc1 ; @signal" % (vt, vt + 1, va, S_FLG, S_FLG + 3, o))


def flag_addr(va, n=16):
    return ["v_and_b32 v%d, %d, v1" % (va, n - 1), "v_lshlrev_b32 v%d, 7, v%d" % (va, va)]


def flag_load(dst, soff, va=None):
    if va is None:
        return "buffer_load_dwordx2 v[%d:%d], off, s[%d:%d], %s sc1" % (dst, dst + 1, S_FLG, S_FLG + 3, soff)
    return "buffer_load_dwordx2 v[%d:%d], v%d, s[%d:%d], %s offen sc1" % (dst, dst + 1, va, S_FLG, S_FLG + 3, soff)


def tag_make(a, part, younger=0):
    L = a.newlabel("Ltag")
    a("s_or_b32 s4, s2, s%d" % S_WAVE)
    a("s_cbranch_scc1 %s" % L)
    a("s_mov_b32 s4, %d" % F_EPOCH)
    if part == 0:
        a(flag_load(22, "s4"))
    else:
        srd(a, 92, P_DBG, 256)
        a("s_waitcnt vmcnt(%d)" % younger)
        a("v_add_u32 v22, 1, v22")
        a("v_or_b32 v23, 0x80000000, v23")
        a("buffer_store_dwordx2 v[22:23], off, s[%d:%d], s4 sc1" % (S_FLG, S_FLG + 3))
        a("buffer_store_dwordx2 v[22:23], off, s[92:95], 0 sc1")
    a.label(L)


def tag_load(a, dst, d=12):
    srd(a, d, P_DBG, 256)
    a("buffer_load_dwordx2 v[%d:%d], off, s[%d:%d], 0 sc1" % (dst, dst + 1, d, d + 3))


def tag_get(a, dst, d=12):
    L, D = a.newlabel("Ltg"), a.newlabel("Lpolld")
    a("s_mov_b32 s5, 0x40000")
    a.label(L)
    a("v_readfirstlane_b32 s%d, v%d" % (S_TAG, dst))
    a("v_readfirstlane_b32 s%d, v%d" % (S_TAG + 1, dst + 1))
    a("s_cmp_lg_u32 s%d, 0" % (S_TAG + 1))
    a("s_cbranch_scc1 %s" % D)
    a("s_sleep 4")
    tag_load(a, dst, d)
    a("s_sub_u32 s5, s5, 1")
    a("s_waitcnt vmcnt(0)")
    a("s_cbranch_scc0 %s ; @poll" % L)
    a.label(D)


class VmQ:
    def __init__(self):
        self.q = []

    def push(self, tag, n):
        self.q += [tag] * n

    def need(self, *tags):
        idx = max([i for i, t in enumerate(self.q) if t in tags], default=-1)
        n = len(self.q) - 1 - idx
        self.q = self.q[idx + 1:]
        return n


def flag_check(a, dst, soff, va=None):
    L, D = a.newlabel("Lpoll"), a.newlabel("Lpolld")
    a("s_mov_b32 s5, 0x40000")
    a.label(L)
    a("v_cmp_ne_u64 vcc, s[%d:%d], v[%d:%d]" % (S_TAG, S_TAG + 1, dst, dst + 1))
    a("s_cbranch_vccz %s" % D)
    a("s_sleep 4")
    a(flag_load(dst, soff, va))
    a("s_sub_u32 s5, s5, 1")
    a("s_waitcnt vmcnt(0)")
    a("s_cbranch_scc0 %s ; @poll" % L)
    a.label(D)


def weave_lines(lines, items, f0=0.0, f1=1.0):
    spots = [i for i in range(1, len(lines)) if lines[i].startswith("v_") and lines[i - 1].startswith("v_") and "vcc" not in lines[i]]
    spots = spots[int(f0 * len(spots)):max(int(f1 * len(spots)), 1)]
    units, cur = [], []
    for x in items:
        cur.append(x)
        if kind(x) == 'd':
            units.append(cur)
            cur = []
    if cur:
        units[-1] += cur
    at = {}
    for k, u in enumerate(units):
        at.setdefault(spots[k * len(spots) // len(units)], []).extend(u)
    out = []
    for i, l in enumerate(lines):
        out += at.get(i, [])
        out.append(l)
    return out
```

```python
from lib import *
from gemm4 import *
import proj4, bfront, attn4, oproj, qproj

MFL = set(os.environ.get("MFLAGS", "").split(","))


def gen(stamp=False):
    a = Asm()
    st = Stamps(stamp, 0)
    a("s_cmp_ge_u32 s2, 256")
    a("s_cbranch_scc1 Lend")
    a("s_load_dwordx16 s[64:79], s[0:1], 0")
    a("s_load_dwordx8 s[80:87], s[0:1], 64")
    a("v_lshrrev_b32 v2, 6, v0")
    a("v_and_b32 v1, 63, v0")
    a("v_readfirstlane_b32 s%d, v2" % S_WAVE)
    a("v_lshlrev_b32 v2, 4, v1")
    if 'ipf' in MFL:
        a("s_getpc_b64 s[6:7]")
        a("s_lshr_b32 s4, s2, 3")
        a("s_lshl_b32 s4, s4, 2")
        a("s_add_u32 s4, s4, s%d" % S_WAVE)
        a("s_min_u32 s4, s4, CODE_KB")
        a("s_lshl_b32 s4, s4, 10")
        a("v_add_u32 v3, s4, v2")
        a("global_load_dwordx4 v[4:7], v3, s[6:7]")
    st(a)
    gk, gv = proj4.make('wx'), proj4.make('xw')
    b0, b1 = bfront.make(0), bfront.make(1)
    g3 = qproj.make()
    proj4.setup(a, gk)
    srd(a, S_FLG, P_WS, 0x40000, WS_FLG)
    tag_make(a, 0)
    for x in proj4.xitems(gk, 0) + proj4.witems(gk, 0):
        a(x)
    proj4.read_bases(a, gk)
    if os.environ.get("PF1") != "0,0":
        proj4.pf_setup(a, 56, 50, P_WQKV, 6, P_BX, 4)
        proj4.pf_setup(a, 52, 51, P_WQ, 8, P_AX, 4)
    attn4.ids(a)
    bfront.setup(a, b0)
    oproj.lanes(a, 28)
    qproj.lanes(a, 28)
    proj4.out_base(a)
    gk.init(a, [proj4.XS0, 0])
    PF0 = os.environ.get("PF0", "")

    def pf0():
        a("s_lshl_b32 s4, s2, 2")
        a("s_add_u32 s4, s4, s%d" % S_WAVE)
        a("s_lshl_b32 s5, s4, 11")
        a("s_lshl_b32 s4, s4, 12")
        for j in range(2):
            a("buffer_load_dwordx4 a[192:195], v2, s[8:11], s5 offen offset:%d ; @dummy" % (1024 * j))
        for p in (P_WUK, P_WUV):
            srd(a, 92, p, 4 * MB)
            for j in range(4):
                a("buffer_load_dwordx4 a[192:195], v2, s[92:95], s4 offen offset:%d ; @dummy" % (1024 * j))
    if PF0 == "a":
        pf0()
    for x in proj4.xitems(gk, 1) + proj4.witems(gk, 1):
        a(x)
    if PF0 == "b":
        pf0()
    tag_make(a, 1, 32 + (10 if PF0 else 0))
    st(a)
    if 'only2' in MFL:
        a("s_waitcnt vmcnt(0)")
        a("s_barrier")
        for x in bfront.xsrd() + [y for s in range(3) for y in bfront.stage_items(a, b0, s, 'xw')]:
            a(x)
        tag_load(a, 22)
        cut0 = len(a.ins)
    if 'only7' in MFL:
        a("s_waitcnt vmcnt(0)")
        a("s_barrier")
        cut7 = len(a.ins)
    PF1 = [int(x) for x in os.environ.get("PF1", "2,2").split(",")]
    NP, NL = int(os.environ.get("NP", 0)), int(os.environ.get("NL", 0))
    a("s_cmp_lt_u32 s2, 128")
    a("s_cbranch_scc1 Lp1_k")
    k0 = st.k
    for kind_, g in (('v', gv), ('k', gk)):
        if kind_ == 'k':
            a.label("Lp1_k")
            st.k = k0
        g.pf = proj4.pf_items(56, 50, PF1[0]) + proj4.pf_items(52, 51, PF1[1])
        g.pro(a, 16 + (10 if PF0 else 0), dma=proj4.xitems(g, 2))
        a("s_mov_b32 s%d, 5" % g.sCnt)
        g.loop(a, 8)
        g.iter(a, 8, proj4.witems(g, 0) + bfront.xsrd() + bfront.stage_items(a, b0, 0, 'x'))
        g.iter(a, 4, bfront.stage_items(a, b0, 0, 'w') + bfront.stage_items(a, b0, 1, 'xw'), adv=False)
        tag_load(a, 22)
        g.tail(a, bfront.stage_items(a, b0, 2, 'xw'))
        st(a)
        proj4.pack(a, kind_, NP)
        if kind_ == 'v':
            a("s_branch Lp2")
    if 'only2' in MFL:
        del a.ins[cut0:]
        st.k = 2
    if 'nost' in MFL:
        proj4.trickle = lambda a, b: ["s_nop 0"]
        VmQ.push0 = VmQ.push
        VmQ.push = lambda self, tag, n: VmQ.push0(self, tag, 0 if tag == 'st' else n)
    a.label("Lp2")
    st(a)
    b0.init(a)
    bfront.restore(a)
    a("s_cmp_ge_u32 s%d, 2" % S_WAVE)
    a("s_cbranch_scc1 Lp2_r1")
    k0 = st.k
    n2 = 32 - NP - NL
    TRK = [(n2 * (k + 1)) // 16 - (n2 * k) // 16 for k in range(16)]
    if os.environ.get("TRK"):
        TRK = [int(x) for x in os.environ["TRK"].split(",")]
    TR3 = [0]
    cum = [NP + sum(TRK[:k]) for k in range(17)] + [32 - NL]
    assert cum[16] + NL == 32
    Q3 = []
    for rh, g in enumerate((b0, b1)):
        if rh:
            a.label("Lp2_r1")
            st.k = k0
        n = 10 if rh else 11
        q = VmQ()
        q.push(0, n), q.push(1, n), q.push('t', 1), q.push(2, n), q.push('st', NP)
        g.pro(a, q.need(0), dma=proj4.trickle(cum[0], cum[1]))
        q.push('st', TRK[0])
        npf = 12 - 5 * PF1[1]
        for s in range(1, 16):
            N = q.need(s)
            it = []
            if s <= npf:
                it += proj4.pf_items(52, 51, 1)
                q.push('pf', 1)
            if s < 14:
                it += g.dma_items()
                q.push(s + 2, n)
            elif s == 14:
                it += qproj.witems(g3, 0) + qproj.witems(g3, 1)
                q.push('w0', 4), q.push('w1', 4)
            else:
                it += qproj.xitems(g3, 0)
                q.push('x0', 8)
            it += proj4.trickle(cum[s], cum[s + 1])
            q.push('st', TRK[s])
            g.iter(a, N, it, adv=s < 15, after_bar=(lambda: qproj.setup(a, g3)) if s == 14 else None)
            if 'st2' in MFL and s in (3, 7, 11):
                st(a)
        g.tail(a, qproj.xitems(g3, 1))
        q.push('x1', 8)
        st(a)
        c = Col()
        bfront.local_attn(c, rh)
        for x in weave_lines(c, (proj4.trickle(32 - NL, 32) if NL else []) + qproj.witems(g3, 2) + qproj.xitems(g3, 2), 0.0, 0.85):
            a(x)
        q.push('st', NL), q.push('w2', 4), q.push('x2', 8), q.push('o', 4)
        Q3.append(q)
        if not rh:
            a("s_branch Lp3")
    a.label("Lp3")
    st(a)
    if 'only2' in MFL:
        st.flush(a)
        return fin(a)
    q = Q3[0]
    k = q.q.index('w0')
    assert q.q[k:] == Q3[1].q[Q3[1].q.index('w0'):]
    qproj.restore(a)
    g3.init(a, [qproj.XS0, 0])
    a("s_lshl_b32 s34, s%d, 4" % proj4.sN0)
    a("s_add_u32 s34, s34, s%d" % proj4.sM0)
    a("s_lshr_b32 s4, s2, 7")
    a("s_lshl_b32 s4, s4, 3")
    a("s_add_u32 s34, s34, s4")
    a("s_lshl_b32 s34, s34, 7")
    a("s_lshl_b32 s91, s%d, 4" % bfront.sRb)
    a("s_add_u32 s91, s91, s%d" % bfront.sHp)
    a("s_lshl_b32 s91, s91, 7")
    a("s_add_u32 s91, s91, %d" % F_OB)
    g3.pro(a, q.need('w0', 'x0'), dma=proj4.trickle(cum[16], cum[17]))
    q.push('st', TR3[0])
    last = max(2, len(TR3) + 1)
    for s in range(1, last + 1):
        tags = ['w%d' % s, 'x%d' % s, s] + (['o', 'st'] if s == last else [])
        N = q.need(*tags)
        g3.iter(a, N, g3.dma_items() + (proj4.trickle(cum[16 + s], cum[17 + s]) if s < len(TR3) else []),
                after_bar=(lambda: (tag_get(a, 22, 20), signal(a, 22, ["s34", "s91"], 3))) if s == last else None)
        q.push(s + 2, 12)
        if s < len(TR3):
            q.push('st', TR3[s])
    if last < 12:
        a("s_mov_b32 s%d, %d" % (g3.sCnt, 12 - last))
        g3.loop(a, 12)

    def ids():
        a("s_lshr_b32 s34, s%d, 1" % attn4.sHead)
        a("s_lshl_b32 s34, s34, 11")
        for x in flag_addr(3):
            a(x)
    g3.iter(a, 12, [flag_load(22, "s34", 3)] + g3.dma_items(), after_bar=ids)

    def go():
        flag_check(a, 22, "s34", 3)
        attn4.kv_setup(a)
        oproj.ids(a)
    it = attn4.kv_prologue_items(0)
    cut = [i for i, x in enumerate(it) if "m0" in x][1]
    g3.iter(a, 12, it[:cut], after_bar=go)
    g3.iter(a, 4, it[cut:], adv=False)
    g3.tail(a, bar=False)
    st(a)
    qproj.epilogue(a)
    attn4.setup1(a)
    st(a)
    g6, g7 = oproj.make("p6", oproj.AB), oproj.make("p7", oproj.AA)

    class H:
        q0 = [t for t in (('K', 0), ('K', 1), ('V', 0)) for _ in range(4)]

        @staticmethod
        def after_d2():
            a("s_lshl_b32 s91, s%d, 11" % oproj.sRb)
            a("s_add_u32 s91, s91, %d" % F_OB)
            for x in flag_addr(14):
                a(x)

        @staticmethod
        def pre_e1():
            return [flag_load(12, "s91", 14)]

        @staticmethod
        def at_e1():
            flag_check(a, 12, "s91", 14)
            for j in range(4):
                a("v_accvgpr_read_b32 v%d, a%d" % (oproj.wv + j, oproj.aSave + j))
            for x in oproj.job_w(False) + oproj.job_x(False):
                a(x)

        @staticmethod
        def e1_items():
            return oproj.stage_items(g6, 0, 'wx')

        @staticmethod
        def e2_items():
            return oproj.stage_items(g6, 1, 'wx')
    if 'only7' in MFL:
        del a.ins[cut7:]
        st.k = 2
        global flag_check
        flag_check = lambda *x: None
        oproj.ids(a)
        H.at_e1()
        for x in H.e1_items() + H.e2_items():
            a(x)
        srd(a, 16, P_WS, 16 * MB, 150 * MB)
        for i in range(8):
            a("buffer_store_dwordx4 v[32:35], v2, s[16:19], 0 offen")
    else:
        attn4.attention(a, st, H)
    st(a)
    gh = oproj.make("ph", oproj.AA, True)
    q = VmQ()
    for s in range(2):
        q.push(s, 8)
    q.push('ctx', 8)
    oproj.read_bases(a, 4)
    g6.init(a, [3])
    g6.pro(a, q.need(0), dma=oproj.stage_items(g6, 2, 'wx') + oproj.stage_items(g6, 3, 'wx'))
    q.push(2, 8)
    q.push(3, 8)

    def sig_ctx():
        a("s_lshl_b32 s4, s%d, 7" % attn4.sHead)
        a("s_lshl_b32 s5, s%d, 12" % attn4.sPair)
        a("s_add_u32 s6, s4, %d" % F_CTX)
        a("s_add_u32 s7, s6, %d" % (15 << 12))
        a("s_add_u32 s6, s6, s5")
        a("s_sub_u32 s7, s7, s5")
        signal(a, 6, ["s6", "s7"])
        a("s_lshl_b32 s91, s%d, 12" % oproj.sRb)
        a("s_add_u32 s91, s91, %d" % F_CTX)
        for x in flag_addr(14, 32):
            a(x)
        oproj.xch_srd(a)
    VS = int(os.environ.get("VS", 6))
    for s in range(1, VS):
        N = q.need(1, 'ctx') if s == 1 else q.need(s)
        if s == 1:
            q.push('sig', 2)
        it = g6.dma_items() if s < 5 else (oproj.job_w(True) if s == 5 else []) + g7.group_items(g7.dma[0])
        q.push(s + 3, 8 if s < 5 else 4)
        if s == VS - 1:
            it = it + [flag_load(6, "s91", 14)]
            q.push('fl', 1)
        g6.iter(a, N, it, after_bar=sig_ctx if s == 1 else None)
    a("s_waitcnt vmcnt(%d)" % q.need(VS, 'fl'))
    a("v_cmp_ne_u64 vcc, s[%d:%d], v[6:7]" % (S_TAG, S_TAG + 1))
    a("v_cndmask_b32_e64 v8, 0, 1, vcc")
    a("v_lshlrev_b32 v9, 2, v0")
    a("ds_write_b32 v9, v8")
    a("v_lshlrev_b32 v9, 4, v1")
    a("s_waitcnt lgkmcnt(0)")
    a("s_barrier")
    a("ds_read_b128 v[160:163], v9")
    for x in oproj.job_w(True) if VS == 5 else []:
        a(x)
    a("s_waitcnt lgkmcnt(0)")
    a("v_or3_b32 v160, v160, v161, v162")
    a("v_or_b32 v160, v160, v163")
    a("v_cmp_ne_u32 vcc, 0, v160")
    if 'only7' not in MFL:
        a("s_cbranch_vccnz Lp6_late ; @late")
    k0 = st.k
    q0 = list(q.q)
    for late in (False, True):
        q.q = list(q0)
        if late:
            a.label("Lp6_late")
            st.k = k0
        else:
            for x in oproj.job_x(True):
                a(x)
        for s in range(VS, 8):
            if s > VS:
                g6.bar(a, q.need(s))
            it = g7.group_items(g7.dma[0]) if late else g7.dma_items()
            if s == VS and not late:
                for t in range(VS + 2, 7, -1):
                    it = oproj.stage_items(g7, t, 'x') + it
                for t in range(8, VS + 3):
                    q.push(t, 4)
            q.push(s + 3, 4 if late else 8)
            if late and s == 7:
                it += [flag_load(6, "s91", 14)]
            d0, d1 = g6.split(it)
            g6.half(a, 1, dma=d0)
            a("s_waitcnt lgkmcnt(0)")
            g6.half(a, 0, dma=d1, adv=True)
        if late:
            a("s_waitcnt vmcnt(0) lgkmcnt(0)")
            a("s_barrier")
            st(a)
            flag_check(a, 6, "s91", 14)
            st(a)
            for x in oproj.job_x(True):
                a(x)
            it = []
            for s in range(8, 12):
                it += oproj.stage_items(g7, s, 'x' if s < 11 else 'wx')
            g6.half(a, 1, rd=False, dma=it)
            for x in oproj.send_items(oproj.AB, False, 6):
                a(x)
            a("s_waitcnt vmcnt(24)")
            a("s_barrier")
            for x in g7.reads(0):
                a(x)
            a("s_waitcnt lgkmcnt(0)")
            g7.half(a, 0, first=True, adv=True)
        else:
            g6.bar(a, q.need(8))
            st(a)
            st(a)
            g6.half(a, 1, dma=g7.dma_items())
            a("s_waitcnt lgkmcnt(0)")
            it = oproj.send_items(oproj.AB, False, 6)
            nsc = [i for i, x in enumerate(it) if kind(x) == 'd'][0]
            for x in it[:nsc]:
                a(x)
            g7.half(a, 0, first=True, adv=True, extra=lambda sg: place_dma(sg, it[nsc:], 5, 14))
            a("s_branch Lp7")
    a.label("Lp7")
    st(a)
    DL = oproj.DL
    F = 40 - DL
    a("s_mov_b32 s%d, %d" % (g7.sCnt, F - 4 - 9))
    g7.loop(a, 16)
    q = VmQ()
    for s in range(F - 4, F - 1):
        q.push(s, 8)
    E = F + 2 * DL
    finB = []
    for s in range(F - 4, E):
        tags, it, ab = [s], [], None
        if s == F - 4:
            def ab():
                oproj.flag_pos(a, False, True, 6)
                signal(a, 6, ["s6"])
                oproj.flag_pos(a, False, False, 90)
                oproj.out_setup(a)
        if s == F - 3:
            it += [flag_load(6, "s90")]
        if s == F - 2:
            tags.append('fl')
            ab = lambda: flag_check(a, 6, "s90")
            it += oproj.recv_items(False, 6)
        if s == F:
            tags.append('rcv')

            def ab():
                oproj.out_off(a, False, 4)
                oproj.flag_pos(a, True, True, 89)
                oproj.flag_pos(a, True, False, 90)
            finB = oproj.finish(oproj.AB, False, 4)
        if s == F + 3:
            tags.append('snd')
            ab = lambda: signal(a, 6, ["s89"])
        if s == E - 3:
            it += [flag_load(6, "s90")]
        if s == E - 2:
            tags.append('fl')
            ab = lambda: flag_check(a, 6, "s90")
            it += oproj.recv_items(True, 6)
        N = q.need(*tags)
        if s == F - 4 or s == F + 3:
            q.push('sig', 1)
        for x in it:
            if kind(x) == 'd':
                q.push('fl' if "dwordx2" in x else 'rcv', 1)
        if s + 3 < F:
            it += g7.dma_items()
            q.push(s + 3, 8)
        elif s + 3 < E:
            if s + 3 == F:
                it += oproj.to_half()
            if s + 3 == F + DL:
                it += oproj.to_partner()
            it += gh.dma_items()
            q.push(s + 3, 6)
        g1, g0 = (g7 if s - 1 < F else gh), (g7 if s < F else gh)
        g7.bar(a, N)
        if ab:
            ab()
        d0, d1 = g7.split(it)
        if s == F:
            snd = oproj.send_items(oproj.AA, True, 6)
            nsc = [i for i, x in enumerate(snd) if kind(x) == 'd'][0]
            d0, d1 = it + snd[:nsc], snd[nsc:nsc + 4]
            q.push('snd', 4)
        if s == F + 1:
            d0, d1 = snd[nsc + 4:], it
            q.q = q.q[:-6] + ['snd'] * 4 + q.q[-6:]

        L = finB.pop(0) if finB and s > F else []

        def finb(sg):
            g = 0
            for x in L[:-1]:
                g = sg.place(x, g, lo=g)
        g1.half(a, 1, dma=d0, rdg=g0, extra=finb)
        a("s_waitcnt lgkmcnt(0)")
        g0.half(a, 0, dma=d1, adv=s < E - 1, extra=lambda sg: sg.end[sg.n - 1].extend(L[-1:]))
        q.push('ob', len(L[-1:]))
    oproj.out_off(a, True, 4)
    gh.tail(a, bar=False)
    st(a)
    a("s_waitcnt vmcnt(0)")
    st(a)
    for L in zip(*oproj.finish(oproj.AA, True, 4)):
        for x in L:
            a(x)
    st(a)
    if stamp:
        a("s_waitcnt vmcnt(0)")
    st(a)
    st.flush(a)
    return fin(a)


def fin(a):
    a.label("Lend")
    a("s_endpgm")
    t = a.finish()
    if 'nobar' in MFL:
        t = t.replace("s_barrier", "s_nop 0")
    if 'nox' in MFL:
        t = "\n".join(l for l in t.split("\n") if not (l.rstrip().endswith(" lds") and "s[8:11]" in l))
    if 'now' in MFL:
        t = "\n".join(l for l in t.split("\n") if not (l.rstrip().endswith(" lds") and "s[12:15]" in l))
    if 'nodma' in MFL:
        t = "\n".join(l for l in t.split("\n") if not l.rstrip().endswith(" lds"))
    return t.replace("CODE_KB", os.environ.get("CODE_KB", "70"))
```

```python
from lib import *
from gemm4 import *

xv, wv = 48, 56
sX, sW, sXb = 46, 47, 48
sM0, sN0 = 61, 62
sSt = 63
T = 32
ROT = int(os.environ.get("ROT", 1))
XS0 = 2


def acc(mi, ni):
    b = mi * 8 + ni
    return ('v', 64 + 4 * b) if b < 48 else ('a', 128 + 4 * (b - 48))


def make(orient):
    g = Gemm()
    g.name = "p1" + orient
    RX, RW = Ring(3, 32 * KB, 36), Ring(2, 32 * KB, 41)
    RX.regs, RW.regs = [16, 17], [18, 19, 20, 21]
    g.rings = [RX, RW]
    g.xrd, g.wrd = [(16, 17)], [18, 19, 20, 21]
    g.xfr = [(0, 2048 * i) for i in range(8)]
    g.wfr = [(ni & 3, (ni >> 2) * 8192) for ni in range(8)]
    g.mf = [(acc(mi, ni), mi, ni, orient) for ni in range(8) for mi in range(8)]
    g.fx, g.fw = 0, 64
    g.sCnt = 35
    ld = lambda v, s, o, j: "buffer_load_dwordx4 v%d, s[%d:%d], s%d offen offset:%d lds" % (v + j, s, s + 3, o, 1024 * (j & 3))
    g.dma = [
        (RW, 0, [ld(wv, 12, sW, j) for j in range(4)], []),
        (RW, 4096, [ld(wv, 12, sW, j) for j in range(4, 8)],
         ["s_add_u32 s%d, s%d, %d" % (sW, sW, 64 * 8192), "s_and_b32 s%d, s%d, %d" % (sW, sW, 512 * 8192 - 1)]),
        (RX, 0, [ld(xv, 8, sX, j) for j in range(4)], []),
        (RX, 4096, [ld(xv, 8, sX, j) for j in range(4, 8)],
         ["s_add_u32 s%d, s%d, 128" % (sX, sX), "s_and_b32 s%d, s%d, 1023" % (sX, sX)]),
    ]
    return g


def xitems(g, s):
    off = (((XS0 + s) % 3) - XS0) * 32 * KB
    return g.group_items(g.dma[2], off) + g.group_items(g.dma[3], off)


def witems(g, s):
    return g.group_items(g.dma[0], s * 32 * KB) + g.group_items(g.dma[1], s * 32 * KB)


def setup(a, g):
    RX, RW = g.rings
    a("s_and_b32 s4, s2, 1")
    a("s_lshl_b32 s4, s4, 2")
    a("s_bfe_u32 s5, s2, 0x20003")
    a("s_add_u32 s%d, s4, s5" % sM0)
    a("s_bfe_u32 s4, s2, 0x20001")
    a("s_lshl_b32 s4, s4, 2")
    a("s_bfe_u32 s5, s2, 0x20005")
    a("s_add_u32 s%d, s4, s5" % sN0)
    a("s_lshl_b32 s4, s%d, 13" % S_WAVE)
    a("s_add_u32 s%d, s4, %d" % (RX.sWr, XS0 * 32 * KB))
    a("s_add_u32 s%d, s4, %d" % (RW.sWr, 96 * KB))
    lane_setup(a, T)
    a("s_lshl_b32 s4, s%d, 2" % sM0)
    a("s_add_u32 s4, s4, s%d" % S_WAVE)
    a("s_lshl_b32 s4, s4, 6")
    a("v_add_u32 v%d, s4, v%d" % (T + 2, T))
    a("v_lshl_add_u32 v%d, v%d, 10, v%d" % (T + 2, T + 2, T + 1))
    for j in range(8):
        a("v_add_u32 v%d, %d, v%d" % (xv + j, 8 * j * 1024 - 1024 * (j & 3), T + 2))
    a("v_lshrrev_b32 v%d, 2, v%d" % (T + 2, T))
    a("v_and_b32 v%d, 3, v%d" % (T + 3, T))
    a("v_lshl_add_u32 v%d, v%d, 3, v%d" % (T + 2, T + 2, T + 3))
    a("s_lshl_b32 s4, s%d, 2" % sN0)
    a("s_add_u32 s4, s4, s%d" % S_WAVE)
    a("s_lshl_b32 s4, s4, 7")
    a("v_lshl_add_u32 v%d, v%d, 13, v%d" % (T + 2, T + 2, T + 1))
    a("v_add_u32 v%d, s4, v%d" % (T + 2, T + 2))
    for j in range(8):
        a("v_add_u32 v%d, %d, v%d" % (wv + j, (32 * (j >> 2) + 16 * (j & 1) + 4 * ((j >> 1) & 1)) * 8192 - 1024 * (j & 3), T + 2))
    a("s_and_b32 s6, s2, %d" % (7 if ROT else 0))
    if int(os.environ.get("SK1", 0)):
        a("s_add_u32 s4, s%d, s%d" % (sM0, sN0))
        a("s_lshr_b32 s5, s2, 7")
        a("s_lshl_b32 s5, s5, %d" % int(os.environ.get("SK1V", 1)))
        a("s_add_u32 s4, s4, s5")
        a("s_and_b32 s4, s4, %d" % int(os.environ.get("SK1M", 3)))
        a("s_mul_i32 s4, s4, %d" % int(os.environ.get("SK1", 0)))
        a("s_add_u32 s6, s6, s4")
        a("s_and_b32 s6, s6, 7")
    a("s_lshl_b32 s%d, s6, 7" % sX)
    a("s_lshl_b32 s%d, s6, 19" % sW)
    a("s_waitcnt lgkmcnt(0)")
    srd(a, 8, P_CKV, 2048 * 1024)
    a("s_cmp_lt_u32 s2, 128")
    a("s_cselect_b32 s12, s%d, s%d" % (P_WUK, P_WUV))
    a("s_cselect_b32 s13, s%d, s%d" % (P_WUK + 1, P_WUV + 1))
    a("s_mov_b32 s14, %d" % (512 * 8192))
    a("s_mov_b32 s15, 0x00020000")


def read_bases(a, g):
    a("s_lshr_b32 s4, s%d, 1" % S_WAVE)
    a("s_lshl_b32 s4, s4, 14")
    a("s_add_u32 s4, s4, %d" % (XS0 * 32 * KB))
    xread_base(a, 16, 17, T, "s4")
    a("s_and_b32 s4, s%d, 1" % S_WAVE)
    a("s_lshl_b32 s4, s4, 14")
    a("s_add_u32 s4, s4, %d" % (96 * KB))
    wread_base(a, g.wrd, range(4), T, "s4")


def out_base(a):
    a("s_and_b32 s4, s%d, 1" % S_WAVE)
    a("s_lshl_b32 s5, s%d, 1" % sN0)
    a("s_add_u32 s4, s4, s5")
    a("s_lshr_b32 s5, s%d, 1" % S_WAVE)
    a("s_lshl_b32 s6, s%d, 1" % sM0)
    a("s_add_u32 s5, s5, s6")
    srd(a, 16, P_WS, 32 * MB, WS_KV)
    a("s_lshl_b32 s4, s4, 20")
    a("s_lshl_b32 s5, s5, 16")
    a("s_add_u32 s%d, s4, s5" % sSt)
    a("s_lshr_b32 s4, s2, 7")
    a("s_lshl_b32 s4, s4, 14")
    a("s_add_u32 s%d, s%d, s4" % (sSt, sSt))


def packed(j):
    if j < 8:
        return ('v', 160 + 4 * j)
    if j >= 24:
        return ('v', 224 + 4 * (j - 24))
    return ('v', 128 + 64 * ((j >> 3) - 1) + 4 * (j & 7))


ORDER = list(range(8, 19)) + list(range(8)) + list(range(19, 32))


def pack(a, kind_, nst=0):
    L = []
    for j in list(range(8, 24)) + list(range(8)) + list(range(24, 32)):
        p0, p1 = (acc(j >> 2, 2 * (j & 3)), acc(j >> 2, 2 * (j & 3) + 1)) if kind_ == 'k' else (acc(2 * (j >> 3), j & 7), acc(2 * (j >> 3) + 1, j & 7))
        if p0[0] == 'a':
            src = [64 + 8 * (j - 24) + e for e in range(8)]
            for e in range(8):
                L.append("v_accvgpr_read_b32 v%d, a%d" % (src[e], (p0, p1)[e >> 2][1] + (e & 3)))
        else:
            src = [p0[1] + e for e in range(4)] + [p1[1] + e for e in range(4)]
        for e in range(4):
            L.append("v_cvt_pk_bf16_f32 v%d, v%d, v%d" % (packed(j)[1] + e, src[2 * e], src[2 * e + 1]))
    assert nst <= 8
    if nst:
        L = weave_lines(L, trickle(0, nst), 0.05, 0.95)
    for x in L:
        a(x)


def trickle(k0, k1):
    L = []
    for k in range(k0, k1):
        j = ORDER[k]
        if k == k0 or j >> 2 != ORDER[k - 1] >> 2:
            L.append("s_add_u32 s60, s%d, %d" % (sSt, (j >> 4) * 32768 + ((j >> 2) & 3) * 4096))
        L.append("buffer_store_dwordx4 %s, v2, s[16:19], s60 offen offset:%d%s" % (r4(packed(j)), 1024 * (j & 3), SC1))
    return L


def pf_setup(a, d, so, pa, na, pb, nb):
    cut = (256 * na + na + nb - 1) // (na + nb)
    a("s_cmp_lt_u32 s2, %d" % cut)
    a("s_cselect_b32 s%d, s%d, s%d" % (d, pa, pb))
    a("s_cselect_b32 s%d, s%d, s%d" % (d + 1, pa + 1, pb + 1))
    a("s_cselect_b32 s%d, 0, %d" % (so, cut))
    a("s_mov_b32 s%d, %d" % (d + 2, nb * MB))
    a("s_cselect_b32 s%d, %d, s%d" % (d + 2, na * MB, d + 2))
    a("s_mov_b32 s%d, 0x00020000" % (d + 3))
    a("s_sub_u32 s%d, s2, s%d" % (so, so))
    a("s_lshl_b32 s%d, s%d, 2" % (so, so))
    a("s_add_u32 s%d, s%d, s%d" % (so, so, S_WAVE))
    a("s_mul_i32 s%d, s%d, %d" % (so, so, (na + nb) * 1024))


def pf_items(d, so, n):
    if 'nopf' in GFL or not n:
        return []
    return ["buffer_load_dwordx4 a[192:195], v2, s[%d:%d], s%d offen offset:%d ; @dummy" % (d, d + 3, so, 1024 * i) for i in range(n)] + \
           ["s_add_u32 s%d, s%d, %d" % (so, so, 1024 * n)]
```

```python
from lib import *
from gemm4 import *

FL = set(os.environ.get("AFLAGS", "").split(","))
THR = float(os.environ.get("LTHR", 2.0 ** 64))
AH = int(os.environ.get("AH", 11))
WG_ = int(os.environ.get("WGRP", 8))

vLane, vL16, vK, vV, vNEG = 1, 2, 3, 4, 5
vT = 6
vNM = 16
vP = 32
vS = 64
vO = 128
aF = 0
aQ = 128
aL = 192
aOne = 208
sHead, sPair = 24, 25
sKV = 20
sCtx = 16
sKm, sVm, sKo, sVo = 26, 27, 28, 29
sMa, sMb, sCnt, sFail = 30, 31, 88, 89
sMask = 32
sT0, sT1 = 4, 5
CST = (128 ** -0.5) * math.log2(math.e)


def Oreg(g, db):
    return ('v', vO + 4 * (8 * g + db))


def Qreg(g, ds):
    return ('a', aQ + 4 * (4 * g + ds))


def ids(a):
    a("s_and_b32 s%d, s2, 7" % sHead)
    a("s_lshr_b32 s4, s2, 6")
    a("s_lshl_b32 s4, s4, 3")
    a("s_add_u32 s%d, s%d, s4" % (sHead, sHead))
    a("s_lshr_b32 s%d, s2, 3" % sPair)
    a("s_and_b32 s%d, s%d, 7" % (sPair, sPair))


def kv_dma(which):
    m, o = (sKm, sKo) if which == 'K' else (sVm, sVo)
    return ["s_mov_b32 m0, s%d" % m] + \
           ["buffer_load_dwordx4 v%d, s[%d:%d], s%d offen offset:%d%s lds" % (vL16, sKV, sKV + 3, o, 1024 * j, SC1L) for j in range(4)]


def gray_mask(t):
    return 0x4000 if t % 2 == 0 else 0x8000


def kv_setup(a):
    a("s_lshl_b32 s4, s%d, 20" % sHead)
    a("s_lshl_b32 s5, s%d, 16" % sPair)
    a("s_sub_u32 s5, %d, s5" % (32 * 32768))
    srd(a, sKV, P_WS, "s5", WS_KV, 4)
    a("s_lshl_b32 s%d, s%d, 12" % (sKo, S_WAVE))
    a("s_add_u32 s%d, s%d, 0xc000" % (sKm, sKo))
    a("s_add_u32 s%d, s%d, 0x10000" % (sVm, sKo))
    a("s_add_u32 s%d, s%d, 0x4000" % (sVo, sKo))


NPF = 0 if 'nopf' in FL else 10


def pf_setup(a):
    a("s_lshl_b32 s4, s2, 2")
    a("s_add_u32 s4, s4, s%d" % S_WAVE)
    a("s_lshl_b32 s6, s4, 13")
    a("s_lshl_b32 s7, s4, 11")
    srd(a, 8, P_WO, 8 * MB)
    srd(a, 12, P_BWO, 2 * MB)


def pf_items():
    L = []
    for i in range(8):
        if i == 4:
            L.append("s_add_u32 s6, s6, 4096")
        L.append("buffer_load_dwordx4 a[64:67], v%d, s[8:11], s6 offen offset:%d ; @dummy" % (vL16, (i % 4) * 1024))
    for i in range(2):
        L.append("buffer_load_dwordx4 a[64:67], v%d, s[12:15], s7 offen offset:%d ; @dummy" % (vL16, i * 1024))
    return L if NPF else []


def kv_prologue_items(part=None):
    L = []
    tk = tv = 0
    for i, w in enumerate("KKVKVKV"):
        if i == 3 and part is not None:
            if part == 0:
                return L
            L = []
        L += kv_dma(w)
        if w == 'K':
            L += ["s_xor_b32 s%d, s%d, 0x%x" % (sKm, sKm, gray_mask(tk)), "s_add_u32 s%d, s%d, 0x8000" % (sKo, sKo)]
            tk += 1
        else:
            L += ["s_xor_b32 s%d, s%d, 0x%x" % (sVm, sVm, gray_mask(tv)), "s_add_u32 s%d, s%d, 0x8000" % (sVo, sVo)]
            tv += 1
    return L


def qk_frags(kindq, half, sb):
    F = []
    if kindq is None:
        return F
    dbl = kindq[0] == 'D'
    gs = [0, 1, 2, 3] if dbl else [2, 3]
    if kindq.endswith("'"):
        gs = gs[1:]
    c0 = kindq.endswith("0")
    for jb in range(2 if dbl else 4):
        for ds in range(4):
            ms = []
            for g in gs:
                blk = (2 * g + jb) if dbl else (2 * (2 * (jb >> 1) + g - 2) + (jb & 1))
                ms.append((('v', sb + 4 * blk), Qreg(g, ds), ("0" if c0 else ('v', vNM + 4 * g)) if ds == 0 else None))
            F.append(('K', ((2 * half + jb) if dbl else jb) * 4096 + ds * 1024, ms))
    return F


def pv_frags(kindp, half, pb):
    F = []
    if kindp is None:
        return F, []
    dbl = kindp[0] == 'D'
    gs = [0, 1, 2, 3] if dbl else [2, 3]
    if kindp.endswith("'"):
        gs = gs[1:]
    sums = []
    for kc in range(1 if dbl else 2):
        for g in gs:
            pi = g if dbl else 2 * kc + g - 2
            sums.append(mfma(('a', aL + 4 * g), ('a', aOne), ('v', pb + 4 * pi)))
        for db in range(8):
            ms = [(Oreg(g, db), ('v', pb + 4 * (g if dbl else 2 * kc + g - 2)), None) for g in gs]
            F.append(('V', (half if dbl else kc) * 8192 + db * 1024, ms))
    return F, sums


def sm_items(sm, sb, pb):
    out = []
    if sm is None:
        return out
    for i in range(4):
        masks = []
        if sm != 'p':
            if sm[0] == 'D':
                gq, jbs = i, [2 * sm[1], 2 * sm[1] + 1]
                lvl = sm[1] >> 1
                if i >= 2:
                    gq = 99
            else:
                gq, jbs = i & 1, [4 * sm[1] + 2 * (i >> 1), 4 * sm[1] + 2 * (i >> 1) + 1]
                lvl = sm[1]
            if lvl > gq:
                continue
            if lvl == gq:
                for e, j16 in enumerate(jbs):
                    for r in range(4):
                        x = sb + 8 * i + 4 * e + r
                        m = sMask + 2 * (4 * (j16 & 3) + r)
                        masks.append((x, "v_cndmask_b32 v%d, v%d, v%d, s[%d:%d]" % (x, x, vNEG, m, m + 1)))
        exps = ["v_exp_f32 v%d, v%d" % (sb + 8 * i + e, sb + 8 * i + e) for e in range(8)]
        cvts = ["v_cvt_pk_bf16_f32 v%d, v%d, v%d" % (pb + 4 * i + e, sb + 8 * i + 2 * e, sb + 8 * i + 2 * e + 1) for e in range(4)]
        out.append((dict(masks), exps, cvts))
    return out


class Rnd:
    def __init__(self, par, qk, sm, pv, bar=False, issK=None, issV=None, togK=None, togV=None, togVpre=None):
        self.par, self.qk, self.sm, self.pv, self.bar = par, qk, sm, pv, bar
        self.issK, self.issV, self.togK, self.togV, self.togVpre = issK, issV, togK, togV, togVpre
        self.vm = None
        self.xdma = []
        self.xq = []
        self.after_bar = None

    def frags(self):
        par = self.par
        Fq = qk_frags(self.qk, par ^ 1, vS + 32 * (par ^ 1))
        Fp, sums = pv_frags(self.pv, par ^ 1, vP + 16 * (par ^ 1))
        return Fq, Fp, sums


def fread(ring, off, slot, tag):
    return "ds_read_b128 %s, v%d offset:%d ; @%s" % (a4(aF + 4 * (slot % 16)), vK if ring == 'K' else vV, off, tag)


def tog(reg, m):
    return "v_xor_b32 v%d, %s, v%d" % (reg, m, reg)


def emit_round(a, R, nxt, ph, pend, extra_scal=None):
    Fq, Fp, sums = R.frags()
    F = Fq + Fp
    nF = len(F)
    Fn = []
    if nxt is not None:
        q, p, _ = nxt.frags()
        Fn = (q + p)[:AH]
    mf = []
    first = []
    si = 0
    for i, (ring, off, ms) in enumerate(F):
        first.append(len(mf))
        for d, b, c in ms:
            mf.append(mfma(d, ('a', aF + 4 * ((ph + i) % 16)), b, c))
        if ring == 'V' and si < len(sums):
            per = len(sums) * 8 // len(Fp)
            k = i - len(Fq)
            if (k % 8) < per:
                mf.append(sums[si])
                si += 1
    assert si == len(sums)
    sg = Seg(mf)
    n = sg.n
    if R.bar:
        sg.pre.append("s_waitcnt vmcnt(%d)" % R.vm)
        sg.pre.append("s_barrier")
        sg.pre.append("AFTERBAR")
    grp = 4 if len(F[0][2]) >= 3 else WG_
    i = 0
    dead = {}
    while i < nF:
        gsz = 4 if len(F[i][2]) != 2 else WG_
        j = min(nF - 1, i + gsz - 1, i + AH - 3)
        for x in range(i, j + 1):
            dead[x] = first[i] - 2
        w = "WAIT f%d" % (ph + j)
        if first[i] == 0:
            sg.pre.append(w)
        else:
            sg.put(first[i] - 1, w)
        i = j + 1
    SM = sm_items(R.sm, vS + 32 * R.par, vP + 16 * R.par)
    nexp = 8 * len(SM)
    eg = []
    if nexp:
        last = 0
        k = 0
        for masks, exps, cvts in SM:
            for e, x in enumerate(exps):
                want = (k * (n - 2)) // nexp
                reg = int(x.split()[1][1:-1])
                want = max(want, last)
                if reg in masks:
                    want = max(want, 1)
                g = sg.place(x, want, lo=last)
                eg.append(g)
                last = g
                k += 1
    items = list(R.xdma)
    if R.issK is not None:
        items += kv_dma('K') + ["s_xor_b32 s%d, s%d, %s" % (sKm, sKm, R.issK), "s_add_u32 s%d, s%d, 0x8000" % (sKo, sKo)]
    if R.issV is not None:
        items += kv_dma('V') + ["s_xor_b32 s%d, s%d, %s" % (sVm, sVm, R.issV), "s_add_u32 s%d, s%d, 0x8000" % (sVo, sVo)]
    if 'nodma' in FL:
        items = [x for x in items if kind(x) != 'd']
    if items:
        place_dma(sg, items, 0, n - 3) if any(kind(x) == 'd' for x in items) else [sg.place(x, 0) for x in items]
    last = 0
    seq = [(j, F[j], False) for j in range(min(AH, nF), nF)] + [(nF + j, f, True) for j, f in enumerate(Fn)]
    prevK = prevV = False
    doneTK = doneTV = doneTVp = False
    lastV = max([j for j, f, nx in seq if f[0] == 'V' and not nx], default=-1)
    for j, f, nx in seq:
        src = j - AH
        want = first[src] if src < nF else n - 1
        lo = last
        if j - 16 >= 0:
            lo = max(lo, (first[j - 15] - 1) if j - 15 < nF else n - 1)
        tg = None
        if f[0] == 'K' and nx and R.togK and not doneTK:
            tg, doneTK = tog(vK, R.togK), True
        if f[0] == 'V' and nx and R.togV and not doneTV:
            tg, doneTV = tog(vV, R.togV), True
        if tg:
            g = sg.place(tg, max(lo, want - 1), lo=lo)
            lo = min(n - 1, g + 1)
            if g == n - 1:
                sg.end[g].append(fread(f[0], f[1], ph + j, "f%d" % (ph + j)))
                last = g
                continue
        if sg.end[last] and any(x.startswith("ds_") for x in sg.end[last]):
            sg.end[last].append(fread(f[0], f[1], ph + j, "f%d" % (ph + j)))
            continue
        hi = dead.get(j)
        assert hi is None or hi >= lo, (j, lo, hi)
        g = sg.place(fread(f[0], f[1], ph + j, "f%d" % (ph + j)), max(want, lo), lo=lo, hi=hi)
        last = g
        if j == lastV and R.togV and not doneTV and not any(x[1][0] == 'V' and x[2] for x in seq):
            doneTV = True
            sg.place(tog(vV, R.togV), g, lo=g)
    if R.togV and not doneTV:
        sg.place(tog(vV, R.togV), 0)
    assert not (R.togK and not doneTK and nxt is not None and nxt.qk), "togK unused"
    k = 0
    for masks, exps, cvts in SM:
        for e, x in enumerate(exps):
            reg = int(x.split()[1][1:-1])
            if reg in masks:
                g = eg[k + e]
                q = g - 1
                while q >= 0 and not sg.room(q, 'c'):
                    q -= 1
                if q < 0:
                    sg.c[g].insert(0, masks[reg])
                    sg.used[g] += 4
                else:
                    sg.put(q, masks[reg])
        for e, x in enumerate(cvts):
            g = eg[k + 2 * e + 1]
            if g + 1 <= n - 1:
                sg.place(x, g + 1, lo=g + 1)
            else:
                sg.end[n - 1].append(x)
        k += 8
    for x in (extra_scal or []):
        if x.startswith("s_cmp"):
            sg.end[n - 1].append(x)
        else:
            sg.place(x, n // 2)
    L, pend = resolve_waits(sg.lines(), pend)
    for x in L:
        if x == "AFTERBAR":
            if R.after_bar:
                R.after_bar()
            continue
        a(x)
    nph = (ph + nF) % 16
    pend = ["f%d" % (int(t[1:]) - (ph + nF) + nph) for t in pend]
    R.cost = sg.cost()
    return nph, pend


def ctx_base(a, srow):
    a("s_lshl_b32 s4, s%d, 20" % srow)
    a("s_lshl_b32 s5, s%d, 15" % sHead)
    a("s_add_u32 s4, s4, s5")
    a("s_lshl_b32 s5, s%d, 11" % S_WAVE)
    a("s_add_u32 s4, s4, s5")


def epilogue(a, gs, srow):
    ctx_base(a, srow)
    for k, g in enumerate(gs):
        a("v_accvgpr_read_b32 v%d, a%d" % (vT + 2 * k, aL + 4 * g))
    a("s_mov_b32 s5, 0x%08x" % f32bits(THR))
    for k, g in enumerate(gs):
        a("v_cmp_ngt_f32 vcc, s5, v%d" % (vT + 2 * k))
        a("v_rcp_f32 v%d, v%d" % (vT + 2 * k, vT + 2 * k))
        a("s_or_b32 s%d, s%d, vcc_lo" % (sFail, sFail))
        a("s_or_b32 s%d, s%d, vcc_hi" % (sFail, sFail))
        a("v_mov_b32 v%d, v%d" % (vT + 2 * k + 1, vT + 2 * k))
    store_O(a, gs)


def store_O(a, gs):
    for ds in range(4):
        for k, g in enumerate(gs):
            b = vO + 4 * (8 * g + 2 * ds)
            for e in range(0, 8, 2):
                a("v_pk_mul_f32 v[%d:%d], v[%d:%d], v[%d:%d]" % (b + e, b + e + 1, b + e, b + e + 1, vT + 2 * k, vT + 2 * k + 1))
            for e in range(4):
                a("v_cvt_pk_bf16_f32 v%d, v%d, v%d" % (b + e, b + 2 * e, b + 2 * e + 1))
            a("buffer_store_dwordx4 %s, v%d, s[%d:%d], s4 offen offset:%d%s" % (v4(b), vL16, sCtx, sCtx + 3, (g & 1) * 1024, SC1))
        if ds < 3:
            a("s_add_u32 s4, s4, 8192")


def rowmax(a, src, t0, t1):
    a("v_max3_f32 v%d, v%d, v%d, v%d" % (t0, src, src + 1, src + 2))
    a("v_max3_f32 v%d, v%d, v%d, v%d" % (t1, src + 3, src + 4, src + 5))
    a("v_max3_f32 v%d, v%d, v%d, v%d" % (t0, t0, src + 6, src + 7))
    a("v_max_f32 v%d, v%d, v%d" % (t0, t0, t1))


def xmax(a, pairs):
    for op in ("v_permlane32_swap_b32", "v_permlane16_swap_b32"):
        for t0, t1 in pairs:
            a("v_mov_b32 v%d, v%d" % (t1, t0))
        for t0, t1 in pairs:
            a("%s v%d, v%d" % (op, t0, t1))
        for t0, t1 in pairs:
            a("v_max_f32 v%d, v%d, v%d" % (t0, t0, t1))


def plan(p):
    pass


def build_rounds():
    g0, g1 = "0x4000", "0x8000"
    R = {}
    R['c0'] = Rnd(0, 'D', 'p', None, bar=True, togK=g0)
    R['lo'] = Rnd(1, 'D', 'p', 'D')
    R['le'] = Rnd(0, 'D', 'p', 'D', bar=True, issK="s%d" % sMb, issV="s%d" % sMa, togK="s%d" % sMa, togV="s%d" % sMb)
    R['d0'] = Rnd(0, 'D', ('D', 0), 'D', bar=True, issK=g1, issV=g0, togK=g0, togV=g1)
    R['d1'] = Rnd(1, "D'", ('D', 1), 'D')
    R['d2'] = Rnd(0, "D'", ('D', 2), 'D', bar=True, issK=g0, issV=g1, togK=g1, togV=g0)
    R['d3'] = Rnd(1, 'S', ('D', 3), "D'", bar=True, issK=g1, issV=g0, togK=g0)
    R['t0'] = Rnd(0, 'S', 'p', "D'", bar=True, issK=g0, togK=g1, togV=g1)
    R['t7'] = Rnd(0, "S'", ('S', 0), "D'", bar=True, togV=g1)
    R['so'] = Rnd(1, 'S', 'p', 'S', bar=True, issK=g1, issV=g1, togK=g0, togV=g0)
    R['se'] = Rnd(0, 'S', 'p', 'S', bar=True, issK=g0, issV=g0, togK=g1, togV=g1)
    R['e0'] = Rnd(0, "S'", ('S', 0), 'S', bar=True, togV=g1)
    R['e1'] = Rnd(1, None, ('S', 1), 'S', bar=True, togV=g0)
    R['e2'] = Rnd(0, None, None, "S'")
    R['c0'].xdma = kv_prologue_items(part=1)
    R['c0'].xq = [x for x in [('K', 2), ('V', 1), ('K', 3), ('V', 2)] for _ in range(4)]
    R['d1'].xdma = pf_items()
    R['d1'].xq = [('pf', 0)] * NPF
    return R


def path(p):
    seq = ['c0']
    if p:
        seq += ['lo', 'le'] * (2 * p - 1) + ['lo', 'd0']
    seq += ['d1', 'd2', 'd3']
    if p == 7:
        seq += ['t7', 'EPI']
    else:
        ns = 2 * (15 - 2 * p)
        seq += ['t0', 'EPI'] + ['so', 'se'] * ((ns - 4) // 2) + ['so', 'e0']
    seq += ['e1', 'e2']
    return seq


def simulate(R, q0):
    need = {}
    for p in range(8):
        seq = path(p)
        nd = 4 * p + 4
        ktile = lambda c: c // 2 if c < nd else nd // 2 + (c - nd)
        q = list(q0)
        nk, nv = 4, 3
        rounds = [k for k in seq if k != 'EPI']
        reads = []
        for c, k in enumerate(rounds):
            r = set()
            if R[k].qk:
                r.add(('K', ktile(c + 1)))
            if R[k].pv:
                r.add(('V', ktile(c - 1)))
            reads.append(r)
        full = []
        for c, k in enumerate(rounds):
            r = set(reads[c])
            if c + 1 < len(rounds):
                nx = R[rounds[c + 1]]
                fq, fp, _ = nx.frags()
                for f in (fq + fp)[:AH]:
                    r.add(('K', ktile(c + 2)) if f[0] == 'K' else ('V', ktile(c)))
            full.append(r)
        c = 0
        slotK = {}
        kaddr, vaddr = 0, 0
        for k in seq:
            if k == 'EPI':
                q += [('st', 0)] * 8
                continue
            r = R[k]
            if r.bar:
                e = c + 1
                while e < len(rounds) and not R[rounds[e]].bar:
                    e += 1
                req = set().union(*full[c:e])
                idx = max(i for i, x in enumerate(q) if x in req)
                assert all(x in q for x in req), (p, k, req)
                need[k] = min(need.get(k, 63), len(q) - 1 - idx)
                lastbar = c
            if k == 'e1':
                need[k] = 0
            q += r.xq
            if k == 'd2':
                pass
            for w, iss in (('K', r.issK), ('V', r.issV)):
                if iss is not None:
                    t = nk if w == 'K' else nv
                    for cc in range(lastbar, len(rounds)):
                        assert (w, t - 4) not in full[cc], (p, k, w, t)
                    if iss.startswith("0x"):
                        assert int(iss, 16) == gray_mask(t), (p, k, w, t)
                    q += [(w, t)] * 4
                    if w == 'K':
                        nk += 1
                    else:
                        nv += 1
            if r.qk:
                assert kaddr == ktile(c + 1), (p, k, kaddr)
            if r.pv:
                assert vaddr == ktile(c - 1), (p, k, vaddr, ktile(c - 1))
            if r.togK:
                if r.togK.startswith("0x"):
                    assert int(r.togK, 16) == gray_mask(kaddr), (p, k)
                kaddr += 1
            if r.togV:
                if r.togV.startswith("0x"):
                    assert int(r.togV, 16) == gray_mask(vaddr), (p, k)
                vaddr += 1
            c += 1
    for k, v in need.items():
        R[k].vm = v
    return need


def setup1(a):
    a("v_add_u32 v%d, 0xc000, v%d" % (vK, vL16))
    a("v_add_u32 v%d, 0x10000, v%d" % (vV, vL16))
    a("v_mov_b32 v%d, 0xf149f2ca" % vNEG)
    a("s_mov_b32 s%d, 0" % sFail)
    a("v_mfma_f32_32x32x16_bf16 a[%d:%d], a[236:239], a[236:239], 0" % (aL, aL + 15))


def setup2(a):
    if NPF:
        pf_setup(a)
    srd(a, sCtx, P_WS, 16 * MB, WS_CTX)
    a("v_and_b32 v%d, 15, v1" % vT)
    a("v_lshrrev_b32 v%d, 4, v1" % (vT + 1))
    a("v_sub_u32 v%d, v%d, v%d" % (vT, vT, vT + 1))
    a("v_lshlrev_b32 v%d, 2, v%d" % (vT, vT))
    a("v_add_u32 v%d, s%d, v%d" % (vT, S_WAVE, vT))
    for j in range(4):
        for r in range(4):
            m = sMask + 2 * (4 * j + r)
            a("v_cmp_gt_i32 s[%d:%d], %d, v%d" % (m, m + 1, 16 * j + r, vT))
    a("s_mov_b32 s%d, 0x8000" % sMa)
    a("s_mov_b32 s%d, 0x4000" % sMb)


def attention(a, st, H):
    R = build_rounds()
    for k in ('e0', 't7'):
        R[k].xdma, R[k].xq = H.pre_e1(), [('fl', 0)]
    R['e1'].xdma, R['e2'].xdma = H.e1_items(), H.e2_items()
    simulate(R, H.q0)
    a("s_waitcnt vmcnt(%d)" % (len(H.q0) - 1 - max(i for i, t in enumerate(H.q0) if t == ('K', 0))))
    a("s_barrier")
    st(a)
    fq = qk_frags('D0', 0, vS)
    c0q, c0p, _ = R['c0'].frags()
    nx = (c0q + c0p)[:AH]
    assert len(nx) == 8
    sg = Seg([mfma(d, ('a', aF + 4 * (8 + j)), b, c) for j, (ring, off, ms) in enumerate(fq) for d, b, c in ms])
    sg.pre = [fread('K', fq[j][1], 8 + j, "f%d" % (8 + j)) for j in range(8)] + ["WAIT f9"]
    for j in range(8):
        if j and j % 2 == 0:
            sg.put(4 * j - 1, "WAIT f%d" % (9 + j))
        sg.put(4 * j + 3, fread('K', nx[j][1], 16 + j, "f%d" % (16 + j)))
    c = Col()
    setup2(c)
    g = 0
    for k, x in enumerate(c):
        if "s_addc" in x:
            continue
        if k + 1 < len(c) and "s_addc" in c[k + 1]:
            x += "\n" + c[k + 1]
        g = sg.place(x, g, lo=g)
        if kind(x) == 's' and k + 1 < len(c) and kind(c[k + 1]) != 's':
            g += 1
    L = sg.lines()
    L, pend = resolve_waits(L, [])
    for x in L:
        a(x)
    pend = ["f%d" % (int(t[1:]) - 16) for t in pend]
    a("s_cmp_lg_u32 s%d, 0" % sPair)
    a("s_cbranch_scc1 La_nomask0")
    for reg, x in sm_items(('D', 0), vS, vP)[0][0].items():
        a(x)
    a.label("La_nomask0")
    for g in range(4):
        rowmax(a, vS + 8 * g, vT + 2 * g, vT + 2 * g + 1)
    xmax(a, [(vT + 2 * g, vT + 2 * g + 1) for g in range(4)])
    for g in range(4):
        for r in range(4):
            a("v_sub_f32 v%d, 0, v%d" % (vNM + 4 * g + r, vT + 2 * g))
    for g in range(4):
        for e in range(0, 8, 2):
            b = vS + 8 * g + e
            a("v_pk_add_f32 v[%d:%d], v[%d:%d], v[%d:%d]" % (b, b + 1, b, b + 1, vNM + 4 * g, vNM + 4 * g + 1))
    state = {}

    def rnd(k, nk, ph, pend, extra=None):
        assert len(pend) <= 15
        return emit_round(a, R[k], R[nk] if nk else None, ph, pend, extra)

    def join(k, ph, pend):
        if k in state:
            assert state[k] == (ph, pend), (k, state[k], ph, pend)
        state[k] = (ph, list(pend))
    a("s_lshl_b32 s%d, s%d, 1" % (sCnt, sPair))
    ph, pend = rnd('c0', 'lo', 0, pend, ["s_cmp_eq_u32 s%d, 0" % sPair])
    join('lo', ph, pend)
    join('d1', ph, pend)
    a("s_cbranch_scc1 La_d1")
    a(".p2align 6")
    a.label("La_lo")
    ph, pend = rnd('lo', 'le', ph, pend, ["s_sub_u32 s%d, s%d, 1" % (sCnt, sCnt), "s_cmp_eq_u32 s%d, 0" % sCnt])
    join('d0', ph, pend)
    a("s_cbranch_scc1 La_d0")
    ph, pend = rnd('le', 'lo', ph, pend)
    a("s_xor_b32 s%d, s%d, 0xc000" % (sMa, sMa))
    a("s_xor_b32 s%d, s%d, 0xc000" % (sMb, sMb))
    join('lo', ph, pend)
    a("s_branch La_lo")
    a.label("La_d0")
    ph, pend = state['d0']
    ph, pend = rnd('d0', 'd1', ph, pend)
    join('d1', ph, pend)
    a.label("La_d1")
    ph, pend = rnd('d1', 'd2', ph, pend)
    ph, pend = rnd('d2', 'd3', ph, pend)
    H.after_d2()
    ph, pend = rnd('d3', 't0', ph, pend, ["s_cmp_eq_u32 s%d, 7" % sPair])
    join('t7', ph, pend)
    a("s_cbranch_scc1 La_t7")
    ph, pend = rnd('t0', 'so', ph, pend)
    st(a)
    epilogue(a, [0, 1], sPair)
    st(a)
    a("s_lshl_b32 s%d, s%d, 1" % (sCnt, sPair))
    a("s_sub_u32 s%d, 14, s%d" % (sCnt, sCnt))
    join('so', ph, pend)
    a(".p2align 6")
    a.label("La_so")
    ph, pend = rnd('so', 'se', ph, pend, ["s_sub_u32 s%d, s%d, 1" % (sCnt, sCnt), "s_cmp_eq_u32 s%d, 0" % sCnt])
    join('e0', ph, pend)
    a("s_cbranch_scc1 La_e0")
    ph, pend = rnd('se', 'so', ph, pend)
    join('so', ph, pend)
    a("s_branch La_so")
    a.label("La_t7")
    ph, pend = state['t7']
    ph, pend = rnd('t7', 'e1', ph, pend)
    if st.on:
        st.k -= 2
    st(a)
    epilogue(a, [0, 1], sPair)
    st(a)
    join('e1', ph, pend)
    a("s_branch La_e1")
    a.label("La_e0")
    ph, pend = state['e0']
    ph, pend = rnd('e0', 'e1', ph, pend)
    join('e1', ph, pend)
    a.label("La_e1")
    R['e1'].after_bar = H.at_e1
    ph, pend = rnd('e1', 'e2', ph, pend)
    ph, pend = rnd('e2', None, ph, pend)
    st(a)
    a("s_sub_u32 s%d, 15, s%d" % (sCnt, sPair))
    epilogue(a, [2, 3], sCnt)
    slow_path(a)
    if 'v' in FL:
        for k, r in R.items():
            print(k, "vm", r.vm, "cost", r.cost, file=sys.stderr)


def slow_path(a):
    vM, vLs, vD = vNM, vNM + 8, vNM + 4
    sRbk, sCh, sOff = 6, 7, 90
    a("s_cmp_eq_u32 s%d, 0" % sFail)
    a("s_cbranch_scc1 La_done")
    a("s_waitcnt vmcnt(0)")
    a("s_sub_u32 s%d, 15, s%d" % (sRbk, sPair))
    a.label("La_sl_blk")
    for i in range(64):
        a("v_mov_b32 v%d, 0" % (vO + 64 + i))
    for i in range(8):
        a("v_mov_b32 v%d, 0" % (vLs + i))
    a("v_mov_b32 v%d, v%d" % (vM, vNEG))
    a("v_mov_b32 v%d, v%d" % (vM + 1, vNEG))
    a("v_and_b32 v%d, 15, v1" % vD)
    a("v_lshrrev_b32 v%d, 4, v1" % (vD + 1))
    a("v_sub_u32 v%d, v%d, v%d" % (vD, vD, vD + 1))
    a("v_lshlrev_b32 v%d, 2, v%d" % (vD, vD))
    a("s_lshl_b32 s4, s%d, 7" % sRbk)
    a("s_add_u32 s4, s4, s%d" % S_WAVE)
    a("v_add_u32 v%d, s4, v%d" % (vD, vD))
    a("v_add_u32 v%d, 64, v%d" % (vD + 1, vD))
    a("s_add_u32 s%d, s%d, 1" % (sCh, sRbk))
    a("s_lshl_b32 s%d, s%d, 2" % (sCh, sCh))
    a("s_mov_b32 s%d, 0" % sOff)
    a.label("La_sl_loop")
    for i in range(16):
        if i % 4 == 0:
            a("s_add_u32 s4, s%d, %d" % (sOff, (i // 8) * 16384 + ((i // 4) & 1) * 4096))
        a("buffer_load_dwordx4 %s, v%d, s[%d:%d], s4 offen offset:%d%s" % (a4(4 * i), vL16, sKV, sKV + 3, (i % 4) * 1024, SC1))
    a("s_waitcnt vmcnt(0)")
    for jb in range(2):
        for ds in range(4):
            for k in range(2):
                a(mfma(('v', vS + 8 * k + 4 * jb), ('a', 4 * (4 * jb + ds)), Qreg(2 + k, ds), "0" if ds == 0 else None))
    for k in range(2):
        for jb in range(2):
            for r in range(4):
                x = vS + 8 * k + 4 * jb + r
                a("v_cmp_gt_i32 vcc, %d, v%d" % (16 * jb + r, vD + k))
                a("v_cndmask_b32 v%d, v%d, v%d, vcc" % (x, x, vNEG))
        a("v_subrev_u32 v%d, 32, v%d" % (vD + k, vD + k))
        rowmax(a, vS + 8 * k, vT + 2 * k, vT + 2 * k + 1)
    xmax(a, [(vT + 2 * k, vT + 2 * k + 1) for k in range(2)])
    for k in range(2):
        a("v_max_f32 v%d, v%d, v%d" % (vT + 2 * k, vT + 2 * k, vM + k))
        a("v_sub_f32 v%d, v%d, v%d" % (vT + 2 * k + 1, vM + k, vT + 2 * k))
        a("v_exp_f32 v%d, v%d" % (vT + 2 * k + 1, vT + 2 * k + 1))
        a("v_mov_b32 v%d, v%d" % (vM + k, vT + 2 * k))
        for e in range(8):
            a("v_sub_f32 v%d, v%d, v%d" % (vS + 8 * k + e, vS + 8 * k + e, vM + k))
        for e in range(8):
            a("v_exp_f32 v%d, v%d" % (vS + 8 * k + e, vS + 8 * k + e))
        for e in range(4):
            a("v_mul_f32 v%d, v%d, v%d" % (vLs + 4 * k + e, vLs + 4 * k + e, vT + 2 * k + 1))
        for e in range(32):
            x = vO + 64 + 32 * k + e
            a("v_mul_f32 v%d, v%d, v%d" % (x, x, vT + 2 * k + 1))
        for e in range(4):
            a("v_cvt_pk_bf16_f32 v%d, v%d, v%d" % (vP + 4 * k + e, vS + 8 * k + 2 * e, vS + 8 * k + 2 * e + 1))
    for k in range(2):
        a(mfma(('v', vLs + 4 * k), ('a', aOne), ('v', vP + 4 * k)))
        for db in range(8):
            a(mfma(Oreg(2 + k, db), ('a', 32 + 4 * db), ('v', vP + 4 * k)))
    a("s_add_u32 s%d, s%d, 8192" % (sOff, sOff))
    a("s_and_b32 s4, s%d, 0x4000" % sOff)
    a("s_add_u32 s%d, s%d, s4" % (sOff, sOff))
    a("s_sub_u32 s%d, s%d, 1" % (sCh, sCh))
    a("s_cmp_lg_u32 s%d, 0" % sCh)
    a("s_cbranch_scc1 La_sl_loop")
    ctx_base(a, sRbk)
    for k in range(2):
        a("v_rcp_f32 v%d, v%d" % (vT + 2 * k, vLs + 4 * k))
        a("v_mov_b32 v%d, v%d" % (vT + 2 * k + 1, vT + 2 * k))
    store_O(a, [2, 3])
    a("s_cmp_eq_u32 s%d, s%d" % (sRbk, sPair))
    a("s_cbranch_scc1 La_done")
    for i in range(32):
        a("v_accvgpr_read_b32 v%d, a%d" % (vS + i, aQ + i))
    for i in range(32):
        a("v_accvgpr_write_b32 a%d, v%d" % (aQ + 32 + i, vS + i))
    a("s_mov_b32 s%d, s%d" % (sRbk, sPair))
    a("s_branch La_sl_blk")
    a.label("La_done")
```

```python
from lib import *


class Ring:
    def __init__(self, NS, slot, sbase):
        self.NS, self.slot = NS, slot
        self.sWr, self.sRd, self.sRdD, self.sC = sbase, sbase + 1, sbase + 2, sbase + 3
        self.regs = []

    def init(self):
        return ["s_mov_b32 s%d, 0" % self.sRd,
                "s_mov_b32 s%d, %d" % (self.sC, (-(self.NS - 1) * self.slot) & 0xffffffff),
                "s_mov_b32 s%d, %d" % (self.sC + 1, self.slot)]

    def adv(self, wr):
        sc = []
        if wr:
            sc.append("s_add_u32 s%d, s%d, s%d" % (self.sWr, self.sWr, self.sRdD))
        if self.NS == 2:
            sc.append("s_sub_u32 s%d, 0, s%d" % (self.sRdD, self.sRdD))
        else:
            sc += ["s_add_u32 s%d, s%d, 1" % (self.sRd, self.sRd),
                   "s_cmp_eq_u32 s%d, %d\ns_cselect_b32 s%d, 0, s%d\ns_cselect_b32 s%d, s%d, s%d" % (
                       self.sRd, self.NS, self.sRd, self.sRd, self.sRdD, self.sC, self.sC + 1)]
        return sc, ["v_add_u32 v%d, s%d, v%d" % (r, self.sRdD, r) for r in self.regs]


def place_dma(sg, items, g0, g1):
    nd = sum(1 for x in items if kind(x) == 'd')
    k = 0
    last = g0
    for x in items:
        if kind(x) == 'd':
            want = g0 + (k * (g1 - g0 + 1)) // nd
            k += 1
            if sg.end[last]:
                sg.end[last].append(x)
                continue
            g = sg.place(x, max(want, last), lo=last)
            last = g
        else:
            g = min(last + 1, sg.n - 1) if sg.d[last] else last
            if sg.d[g] or sg.end[g]:
                sg.end[g].append(x)
            else:
                g = sg.place(x, g, lo=g)
                if sg.d[g]:
                    raise RuntimeError("scalar placed before an earlier load")
            last = g
            if "m0" in x and not sg.end[g]:
                last = min(g + 1, sg.n - 1)
                if last == g:
                    sg.end[g].append("s_nop 0")
    return last


class Gemm:
    xlin = False
    woff = 0
    pf = []

    def fxr(self, h, i):
        return ('a', self.fx + 4 * (h * len(self.xfr) + i))

    def fwr(self, h, i):
        return ('a', self.fw + 4 * (h * len(self.wfr) + i))

    def mfmas(self, h, first=False):
        L = []
        for acc, xi, wi, o in self.mf:
            x, w = self.fxr(h, xi), self.fwr(h, wi)
            L.append(mfma(acc, w, x, "0" if first else None) if o == 'wx' else mfma(acc, x, w, "0" if first else None))
        return L

    def reads(self, h):
        L = []
        seen = set()
        for acc, xi, wi, o in self.mf:
            if ('x', xi) not in seen:
                seen.add(('x', xi))
                st, imm = self.xfr[xi]
                if self.xlin:
                    L.append("ds_read_b128 %s, v%d offset:%d" % (r4(self.fxr(h, xi)), self.xrd[st][0], imm + h * self.xhs))
                else:
                    L.append("ds_read_b128 %s, v%d offset:%d" % (r4(self.fxr(h, xi)), self.xrd[st][h], imm))
            if ('w', wi) not in seen:
                seen.add(('w', wi))
                nb, imm = self.wfr[wi]
                b = self.fwr(h, wi)[1]
                for j in range(2):
                    L.append("ds_read_b64_tr_b16 a[%d:%d], v%d offset:%d" % (b + 2 * j, b + 2 * j + 1, self.wrd[nb], self.woff + imm + h * 4096 + j * 2048))
        return L

    def group_items(self, grp, off=0):
        ring, m0, ins, post = grp
        if isinstance(m0, tuple):
            L = ["s_add_u32 m0, s%d, s%d" % (ring.sWr, m0[1]) + ("\ns_add_u32 m0, m0, %d" % off if off else "")]
        else:
            m0 += off
            L = ["s_add_u32 m0, s%d, %d" % (ring.sWr, m0) if m0 else "s_mov_b32 m0, s%d" % ring.sWr]
        return L + ins + post

    def dma_items(self):
        return [x for g in self.dma for x in self.group_items(g)]

    def issue_seq(self, it):
        return [(g, it - 1 + g[0].NS) for g in self.dma if it - 1 + g[0].NS >= 0]

    def prologue_items(self):
        L = []
        for it in range(-(max(r.NS for r in self.rings) - 1), 1):
            for g, s in self.issue_seq(it):
                L += self.group_items(g, s * g[0].slot)
        return L

    def nprologue(self):
        return sum(1 for x in self.prologue_items() if kind(x) == 'd')

    def vm(self, s, nst):
        q = []
        for it in range(-8, max(s, 1)):
            for g, st in self.issue_seq(it):
                if st < nst:
                    q += [st] * len(g[2])
        idx = max(i for i, st in enumerate(q) if st <= s)
        return len(q) - 1 - idx

    def half(self, a, h, first=False, rd=True, dma=None, adv=False, extra=None, wr=True, rdg=None):
        sg = Seg(self.mfmas(h, first))
        n = sg.n
        lastd = 0
        nadv = sum(len(r.regs) for r in self.rings)
        if dma:
            lastd = place_dma(sg, dma, 0, n - 2 - ((nadv // 2 + 3) if adv and n > 16 else 0))
        lastr = 0
        if rd and 'noreads' not in GFL:
            R = (rdg or self).reads(h ^ 1)
            g1 = max(len(R) // 2, n - int(os.environ.get('RDE', 11)))
            lastr = max(sg.stream(R, 0, g1))
        if adv:
            g = min(n - 1, lastd + 1) if dma else 0
            vas = []
            for r in self.rings:
                sc, va = r.adv(wr)
                vas += va
                for x in sc:
                    if (sg.d[g] and g == n - 1) or sg.end[g]:
                        sg.end[g].append(x)
                    else:
                        g = sg.place(x, g, lo=g)
            g = max(lastr + 1, g + 1)
            for x in vas:
                if g < n:
                    sg.place(x, g, lo=g)
                else:
                    sg.end[n - 1].append(x)
        if extra:
            extra(sg)
        for x in sg.lines():
            a(x)

    def split(self, it):
        n = sum(1 for x in it if kind(x) == 'd')
        cut = cnt = 0
        for i, x in enumerate(it):
            if kind(x) == 'd':
                cnt += 1
                if cnt == (n + 1) // 2:
                    cut = i + 1
        while cut < len(it) and kind(it[cut]) == 's' and "m0" not in it[cut]:
            cut += 1
        return it[:cut], it[cut:]

    def init(self, a, start=None):
        for i, r in enumerate(self.rings):
            for x in r.init():
                a(x)
            if start and start[i]:
                a("s_mov_b32 s%d, %d" % (r.sRd, start[i]))
            if r.NS == 2:
                a("s_mov_b32 s%d, s%d" % (r.sRdD, r.sC))

    def bar(self, a, N):
        a("s_waitcnt vmcnt(%d) lgkmcnt(0)" % min(63, N))
        a("s_barrier")

    def pro(self, a, N, dma=None):
        a("s_waitcnt vmcnt(%d)" % min(63, N))
        a("s_barrier")
        for x in self.reads(0):
            a(x)
        a("s_waitcnt lgkmcnt(0)")
        self.half(a, 0, first=True, adv=True, dma=dma, wr=False)

    def iter(self, a, N, items=None, wr=True, adv=True, after_bar=None, extra=None):
        self.bar(a, N)
        if after_bar:
            after_bar()
        d0, d1 = self.split(items or [])
        self.half(a, 1, dma=d0)
        a("s_waitcnt lgkmcnt(0)")
        self.half(a, 0, dma=d1, adv=adv, wr=wr, extra=extra)

    def loop(self, a, N, after_bar=None):
        a(".p2align 6")
        a.label("L%s_loop" % self.name)

        def cnt_(sg):
            sg.place("s_sub_u32 s%d, s%d, 1" % (self.sCnt, self.sCnt), sg.n - 2, lo=sg.n - 2)
            sg.end[sg.n - 1].append("s_cmp_lg_u32 s%d, 0" % self.sCnt)
        self.iter(a, N, self.pf + self.dma_items(), after_bar=after_bar, extra=cnt_)
        a("s_cbranch_scc1 L%s_loop" % self.name)

    def last(self, a, order, g0, epi, dma=None, bar=True, mid=None):
        m0, m1 = self.mfmas(0), self.mfmas(1)
        a("s_waitcnt lgkmcnt(0)")
        sg = Seg([m0[i] for i in order[:g0]])
        sg.stream(self.reads(1), 0, max(g0 - 8, len(self.reads(1)) // 2))
        for x in sg.lines():
            a(x)
        a("s_waitcnt lgkmcnt(0)")
        if bar:
            a("s_barrier")
        if mid:
            mid()
        mf, done = [], {}
        for i in order[:g0]:
            done[i] = len(mf)
            mf.append(m1[i])
        for k in range(g0, len(order), 2):
            i, j = order[k], order[k + 1]
            mf += [m0[i], m0[j], m1[i], m1[j]]
            done[i], done[j] = len(mf) - 2, len(mf) - 1
        sg = Seg(mf)
        if dma:
            place_dma(sg, dma, 0, sg.n - 2)
        g = 0
        rest = []
        for need, L in epi:
            lo = max(done[i] for i in need) + 4
            for x in L:
                g = max(g, lo)
                k = kind(x)
                while g < sg.n and not (sg.room(g, k) and (k != 'd' or not sg.c[g])):
                    g += 1
                if g >= sg.n or rest:
                    rest.append(x)
                else:
                    sg.put(g, x)
                    if k == 'c':
                        lo = g
        for x in sg.lines() + rest:
            a(x)

    def tail(self, a, items=None, bar=True, N=None, rd=False):
        a("s_waitcnt %slgkmcnt(0)" % ("" if N is None else "vmcnt(%d) " % N))
        if bar:
            a("s_barrier")
        self.half(a, 1, rd=rd, dma=items)


GFL = set(os.environ.get("GFLAGS", "").split(","))


def lane_setup(a, T):
    a("v_lshrrev_b32 v%d, 3, v1" % T)
    a("v_and_b32 v%d, 6, v%d" % (T + 1, T))
    a("v_and_b32 v%d, 7, v1" % (T + 2))
    a("v_xor_b32 v%d, v%d, v%d" % (T + 1, T + 1, T + 2))
    a("v_lshlrev_b32 v%d, 4, v%d" % (T + 1, T + 1))


def xread_base(a, d0, d1, T, sbase):
    a("v_and_b32 v%d, 15, v1" % T)
    a("v_lshlrev_b32 v%d, 7, v%d" % (T, T))
    a("v_lshrrev_b32 v%d, 4, v1" % (T + 1))
    a("v_and_b32 v%d, 6, v1" % (T + 2))
    a("v_xor_b32 v%d, v%d, v%d" % (T + 1, T + 1, T + 2))
    a("v_lshl_add_u32 v%d, v%d, 4, v%d" % (T, T + 1, T))
    a("v_add_u32 v%d, %s, v%d" % (d0, sbase, T))
    a("v_xor_b32 v%d, 64, v%d" % (d1, d0))


def wread_base(a, regs, nbs, T, sbase):
    a("v_lshrrev_b32 v%d, 2, v1" % T)
    a("v_and_b32 v%d, 6, v%d" % (T + 1, T))
    a("v_lshlrev_b32 v%d, 7, v%d" % (T, T))
    a("v_and_b32 v%d, 1, v1" % (T + 2))
    a("v_lshl_add_u32 v%d, v%d, 3, v%d" % (T, T + 2, T))
    a("v_add_u32 v%d, %s, v%d" % (T, sbase, T))
    a("v_bfe_u32 v%d, v1, 1, 1" % (T + 2))
    a("v_xor_b32 v%d, v%d, v%d" % (T + 1, T + 1, T + 2))
    for r, nb in zip(regs, nbs):
        a("v_xor_b32 v%d, %d, v%d" % (T + 2, 2 * nb, T + 1))
        a("v_lshl_add_u32 v%d, v%d, 4, v%d" % (r, T + 2, T))
```

```python
from lib import *
from gemm4 import *
import proj4, bfront, attn4, oproj, qproj

MFL = set(os.environ.get("MFLAGS", "").split(","))


def gen(stamp=False):
    a = Asm()
    st = Stamps(stamp, 0)
    a("s_cmp_ge_u32 s2, 256")
    a("s_cbranch_scc1 Lend")
    a("s_load_dwordx16 s[64:79], s[0:1], 0")
    a("s_load_dwordx8 s[80:87], s[0:1], 64")
    a("v_lshrrev_b32 v2, 6, v0")
    a("v_and_b32 v1, 63, v0")
    a("v_readfirstlane_b32 s%d, v2" % S_WAVE)
    a("v_lshlrev_b32 v2, 4, v1")
    if 'ipf' in MFL:
        a("s_getpc_b64 s[6:7]")
        a("s_lshr_b32 s4, s2, 3")
        a("s_lshl_b32 s4, s4, 2")
        a("s_add_u32 s4, s4, s%d" % S_WAVE)
        a("s_min_u32 s4, s4, CODE_KB")
        a("s_lshl_b32 s4, s4, 10")
        a("v_add_u32 v3, s4, v2")
        a("global_load_dwordx4 v[4:7], v3, s[6:7]")
    st(a)
    gk, gv = proj4.make('wx'), proj4.make('xw')
    b0, b1 = bfront.make(0), bfront.make(1)
    g3 = qproj.make()
    proj4.setup(a, gk)
    srd(a, S_FLG, P_WS, 0x40000, WS_FLG)
    tag_make(a, 0)
    for x in proj4.xitems(gk, 0) + proj4.witems(gk, 0):
        a(x)
    c = Col()
    proj4.read_bases(c, gk)
    if os.environ.get("PF1") != "0,0":
        proj4.pf_setup(c, 56, 50, P_WQKV, 6, P_BX, 4)
        proj4.pf_setup(c, 52, 51, P_WQ, 8, P_AX, 4)
    attn4.ids(c)
    bfront.setup(c, b0)
    oproj.lanes(c, 28)
    qproj.lanes(c, 28)
    proj4.out_base(c)
    gk.init(c, [proj4.XS0, 0])
    PF0 = ""
    for x in weave_lines(c, proj4.xitems(gk, 1) + proj4.witems(gk, 1), float(os.environ.get("W0", 0.2)), 1.0):
        a(x)
    tag_make(a, 1, 32 + (10 if PF0 else 0))
    st(a)
    if 'only2' in MFL:
        a("s_waitcnt vmcnt(0)")
        a("s_barrier")
        for x in bfront.xsrd() + [y for s in range(3) for y in bfront.stage_items(a, b0, s, 'xw')]:
            a(x)
        tag_load(a, 22)
        cut0 = len(a.ins)
    if 'only7' in MFL:
        a("s_waitcnt vmcnt(0)")
        a("s_barrier")
        cut7 = len(a.ins)
    PF1 = [int(x) for x in os.environ.get("PF1", "2,2").split(",")]
    NP, NL = int(os.environ.get("NP", 3)), int(os.environ.get("NL", 6))
    a("s_cmp_lt_u32 s2, 128")
    a("s_cbranch_scc1 Lp1_k")
    k0 = st.k
    for kind_, g in (('v', gv), ('k', gk)):
        if kind_ == 'k':
            a.label("Lp1_k")
            st.k = k0
        g.pf = proj4.pf_items(56, 50, PF1[0]) + proj4.pf_items(52, 51, PF1[1])
        g.pro(a, 16 + (10 if PF0 else 0), dma=proj4.xitems(g, 2))
        a("s_mov_b32 s%d, 5" % g.sCnt)
        g.loop(a, 8)
        g.iter(a, 8, proj4.witems(g, 0) + bfront.xsrd() + bfront.stage_items(a, b0, 0, 'x'))
        g.bar(a, 4)
        g.half(a, 1, dma=bfront.stage_items(a, b0, 0, 'w') + bfront.stage_items(a, b0, 1, 'xw'))
        order, epi = proj4.pack(kind_)
        g.last(a, order, 20, epi, dma=bfront.stage_items(a, b0, 2, 'xw'), mid=lambda: tag_load(a, 22))
        st(a)
        for x in proj4.trickle(0, NP):
            a(x)
        if kind_ == 'v':
            a("s_branch Lp2")
    if 'only2' in MFL:
        del a.ins[cut0:]
        st.k = 2
    if 'nost' in MFL:
        proj4.trickle = lambda a, b: ["s_nop 0"]
        VmQ.push0 = VmQ.push
        VmQ.push = lambda self, tag, n: VmQ.push0(self, tag, 0 if tag == 'st' else n)
    a.label("Lp2")
    st(a)
    b0.init(a)
    bfront.restore(a)
    a("s_cmp_ge_u32 s%d, 2" % S_WAVE)
    a("s_cbranch_scc1 Lp2_r1")
    k0 = st.k
    n2 = 32 - NP - NL
    TRK = [(n2 * (k + 1)) // 16 - (n2 * k) // 16 for k in range(16)]
    if os.environ.get("TRK"):
        TRK = [int(x) for x in os.environ["TRK"].split(",")]
    TR3 = [0]
    cum = [NP + sum(TRK[:k]) for k in range(17)] + [32 - NL]
    assert cum[16] + NL == 32
    Q3 = []
    for rh, g in enumerate((b0, b1)):
        if rh:
            a.label("Lp2_r1")
            st.k = k0
        n = 10 if rh else 11
        q = VmQ()
        q.push(0, n), q.push(1, n), q.push('t', 1), q.push(2, n), q.push('st', NP)
        g.pro(a, q.need(0), dma=proj4.trickle(cum[0], cum[1]))
        q.push('st', TRK[0])
        npf = (12 - 5 * PF1[1]) * int(os.environ.get('PFA', 1)) * (PF1[1] > 0)
        for s in range(1, 16):
            N = q.need(s)
            it = []
            if s <= npf:
                it += proj4.pf_items(52, 51, 1)
                q.push('pf', 1)
            if s < 14:
                it += g.dma_items()
                q.push(s + 2, n)
            elif s == 14:
                it += qproj.witems(g3, 0) + qproj.witems(g3, 1)
                q.push('w0', 4), q.push('w1', 4)
            else:
                it += qproj.xitems(g3, 0)
                q.push('x0', 8)
            it += proj4.trickle(cum[s], cum[s + 1])
            q.push('st', TRK[s])
            g.iter(a, N, it, adv=s < 15, after_bar=(lambda: qproj.setup(a, g3)) if s == 14 else None)
            if 'st2' in MFL and s in (3, 7, 11):
                st(a)
        g.tail(a, qproj.xitems(g3, 1))
        q.push('x1', 8)
        st(a)
        c = Col()
        bfront.local_attn(c, rh)
        for x in weave_lines(c, (proj4.trickle(32 - NL, 32) if NL else []) + qproj.witems(g3, 2) + qproj.xitems(g3, 2), 0.0, 0.85):
            a(x)
        q.push('st', NL), q.push('w2', 4), q.push('x2', 8), q.push('o', 4)
        Q3.append(q)
        if not rh:
            a("s_branch Lp3")
    a.label("Lp3")
    st(a)
    if 'only2' in MFL:
        st.flush(a)
        return fin(a)
    q = Q3[0]
    k = q.q.index('w0')
    assert q.q[k:] == Q3[1].q[Q3[1].q.index('w0'):]
    qproj.restore(a)
    g3.init(a, [qproj.XS0, 0])
    a("s_lshl_b32 s34, s%d, 4" % proj4.sN0)
    a("s_add_u32 s34, s34, s%d" % proj4.sM0)
    a("s_lshr_b32 s4, s2, 7")
    a("s_lshl_b32 s4, s4, 3")
    a("s_add_u32 s34, s34, s4")
    a("s_lshl_b32 s34, s34, 7")
    a("s_lshl_b32 s91, s%d, 4" % bfront.sRb)
    a("s_add_u32 s91, s91, s%d" % bfront.sHp)
    a("s_lshl_b32 s91, s91, 7")
    a("s_add_u32 s91, s91, %d" % F_OB)
    g3.pro(a, q.need('w0', 'x0'), dma=proj4.trickle(cum[16], cum[17]))
    q.push('st', TR3[0])
    last = max(2, len(TR3) + 1)
    for s in range(1, last + 1):
        tags = ['w%d' % s, 'x%d' % s, s] + (['o', 'st'] if s == last else [])
        N = q.need(*tags)
        g3.iter(a, N, g3.dma_items() + (proj4.trickle(cum[16 + s], cum[17 + s]) if s < len(TR3) else []),
                after_bar=(lambda: (tag_get(a, 22, 20), signal(a, 22, ["s34", "s91"], 3))) if s == last else None)
        q.push(s + 2, 12)
        if s < len(TR3):
            q.push('st', TR3[s])
    if last < 12:
        a("s_mov_b32 s%d, %d" % (g3.sCnt, 12 - last))
        g3.loop(a, 12)

    def ids():
        a("s_lshr_b32 s34, s%d, 1" % attn4.sHead)
        a("s_lshl_b32 s34, s34, 11")
        for x in flag_addr(3):
            a(x)
    g3.iter(a, 12, [flag_load(22, "s34", 3)] + g3.dma_items(), after_bar=ids)

    def go():
        flag_check(a, 22, "s34", 3)
        attn4.kv_setup(a)
        oproj.ids(a)
    it = attn4.kv_prologue_items(0)
    cut = [i for i, x in enumerate(it) if "m0" in x][1]
    g3.iter(a, 12, it[:cut], after_bar=go)
    g3.bar(a, 4)
    a("s_mov_b32 s6, 0x%08x" % f32bits(attn4.CST))
    a("s_mov_b32 s7, s6")
    g3.half(a, 1, dma=it[cut:])
    order, epi = qproj.epilogue()
    g3.last(a, order, 16, epi, bar=False)
    st(a)
    attn4.setup1(a)
    st(a)
    g6, g7 = oproj.make("p6", oproj.AB), oproj.make("p7", oproj.AA)

    class H:
        q0 = [t for t in (('K', 0), ('K', 1), ('V', 0)) for _ in range(4)]

        @staticmethod
        def after_d2():
            a("s_lshl_b32 s91, s%d, 11" % oproj.sRb)
            a("s_add_u32 s91, s91, %d" % F_OB)
            for x in flag_addr(14):
                a(x)

        @staticmethod
        def pre_e1():
            return [flag_load(12, "s91", 14)]

        @staticmethod
        def at_e1():
            flag_check(a, 12, "s91", 14)
            for j in range(4):
                a("v_accvgpr_read_b32 v%d, a%d" % (oproj.wv + j, oproj.aSave + j))
            for x in oproj.job_w(False) + oproj.job_x(False):
                a(x)

        @staticmethod
        def e1_items():
            return oproj.stage_items(g6, 0, 'wx')

        @staticmethod
        def e2_items():
            return oproj.stage_items(g6, 1, 'wx')
    if 'only7' in MFL:
        del a.ins[cut7:]
        st.k = 2
        global flag_check
        flag_check = lambda *x: None
        oproj.ids(a)
        H.at_e1()
        for x in H.e1_items() + H.e2_items():
            a(x)
        srd(a, 16, P_WS, 16 * MB, 150 * MB)
        for i in range(8):
            a("buffer_store_dwordx4 v[32:35], v2, s[16:19], 0 offen")
    else:
        attn4.attention(a, st, H)
    st(a)
    gh = oproj.make("ph", oproj.AA, True)
    q = VmQ()
    for s in range(2):
        q.push(s, 8)
    q.push('ctx', 8)
    oproj.read_bases(a, 4)
    g6.init(a, [3])
    g6.pro(a, q.need(0), dma=oproj.stage_items(g6, 2, 'wx') + oproj.stage_items(g6, 3, 'wx'))
    q.push(2, 8)
    q.push(3, 8)

    def sig_ctx():
        a("s_lshl_b32 s4, s%d, 7" % attn4.sHead)
        a("s_lshl_b32 s5, s%d, 12" % attn4.sPair)
        a("s_add_u32 s6, s4, %d" % F_CTX)
        a("s_add_u32 s7, s6, %d" % (15 << 12))
        a("s_add_u32 s6, s6, s5")
        a("s_sub_u32 s7, s7, s5")
        signal(a, 6, ["s6", "s7"])
        a("s_lshl_b32 s91, s%d, 12" % oproj.sRb)
        a("s_add_u32 s91, s91, %d" % F_CTX)
        for x in flag_addr(14, 32):
            a(x)
        oproj.xch_srd(a)
    VS = int(os.environ.get("VS", 6))
    for s in range(1, VS):
        N = q.need(1, 'ctx') if s == 1 else q.need(s)
        if s == 1:
            q.push('sig', 2)
        it = g6.dma_items() if s < 5 else (oproj.job_w(True) if s == 5 else []) + g7.group_items(g7.dma[0])
        q.push(s + 3, 8 if s < 5 else 4)
        if s == VS - 1:
            it = it + [flag_load(6, "s91", 14)]
            q.push('fl', 1)
        g6.iter(a, N, it, after_bar=sig_ctx if s == 1 else None)
    a("s_waitcnt vmcnt(%d)" % q.need(VS, 'fl'))
    a("v_cmp_ne_u64 vcc, s[%d:%d], v[6:7]" % (S_TAG, S_TAG + 1))
    a("v_cndmask_b32_e64 v8, 0, 1, vcc")
    a("v_lshlrev_b32 v9, 2, v0")
    a("ds_write_b32 v9, v8")
    a("v_lshlrev_b32 v9, 4, v1")
    a("s_waitcnt lgkmcnt(0)")
    a("s_barrier")
    a("ds_read_b128 v[160:163], v9")
    for x in oproj.job_w(True) if VS == 5 else []:
        a(x)
    a("s_waitcnt lgkmcnt(0)")
    a("v_or3_b32 v160, v160, v161, v162")
    a("v_or_b32 v160, v160, v163")
    a("v_cmp_ne_u32 vcc, 0, v160")
    if 'only7' not in MFL:
        a("s_cbranch_vccnz Lp6_late ; @late")
    k0 = st.k
    q0 = list(q.q)
    for late in (False, True):
        q.q = list(q0)
        if late:
            a.label("Lp6_late")
            st.k = k0
        else:
            for x in oproj.job_x(True):
                a(x)
        for s in range(VS, 8):
            if s > VS:
                g6.bar(a, q.need(s))
            it = g7.group_items(g7.dma[0]) if late else g7.dma_items()
            if s == VS and not late:
                for t in range(VS + 2, 7, -1):
                    it = oproj.stage_items(g7, t, 'x') + it
                for t in range(8, VS + 3):
                    q.push(t, 4)
            q.push(s + 3, 4 if late else 8)
            if late and s == 7:
                it += [flag_load(6, "s91", 14)]
            d0, d1 = g6.split(it)
            g6.half(a, 1, dma=d0)
            a("s_waitcnt lgkmcnt(0)")
            g6.half(a, 0, dma=d1, adv=True)
        if late:
            a("s_waitcnt vmcnt(0) lgkmcnt(0)")
            a("s_barrier")
            st(a)
            flag_check(a, 6, "s91", 14)
            st(a)
            for x in oproj.job_x(True):
                a(x)
            it = []
            for s in range(8, 12):
                it += oproj.stage_items(g7, s, 'x' if s < 11 else 'wx')
            g6.half(a, 1, rd=False, dma=it)
            for x in oproj.send_items(oproj.AB, False, 6):
                a(x)
            a("s_waitcnt vmcnt(24)")
            a("s_barrier")
            for x in g7.reads(0):
                a(x)
            a("s_waitcnt lgkmcnt(0)")
            g7.half(a, 0, first=True, adv=True)
        else:
            g6.bar(a, q.need(8))
            st(a)
            st(a)
            g6.half(a, 1, dma=g7.dma_items())
            a("s_waitcnt lgkmcnt(0)")
            it = oproj.send_items(oproj.AB, False, 6)
            nsc = [i for i, x in enumerate(it) if kind(x) == 'd'][0]
            for x in it[:nsc]:
                a(x)
            g7.half(a, 0, first=True, adv=True, extra=lambda sg: place_dma(sg, it[nsc:], 5, 14))
            a("s_branch Lp7")
    a.label("Lp7")
    st(a)
    DL = oproj.DL
    F = 40 - DL
    a("s_mov_b32 s%d, %d" % (g7.sCnt, F - 4 - 9))
    g7.loop(a, 16)
    q = VmQ()
    for s in range(F - 4, F - 1):
        q.push(s, 8)
    E = F + 2 * DL
    finB = []
    for s in range(F - 4, E):
        tags, it, ab = [s], [], None
        if s == F - 4:
            def ab():
                oproj.flag_pos(a, False, True, 6)
                signal(a, 6, ["s6"])
                oproj.flag_pos(a, False, False, 90)
                oproj.out_setup(a)
        if s == F - 3:
            it += [flag_load(6, "s90")]
        if s == F - 2:
            tags.append('fl')
            ab = lambda: flag_check(a, 6, "s90")
            it += oproj.recv_items(False, 6)
        if s == F:
            tags.append('rcv')

            def ab():
                oproj.out_off(a, False, 4)
                oproj.flag_pos(a, True, True, 89)
                oproj.flag_pos(a, True, False, 90)
            finB = oproj.finish(oproj.AB, False, 4)
        if s == F + 3:
            tags.append('snd')
            ab = lambda: signal(a, 6, ["s89"])
        if s == E - 3:
            it += [flag_load(6, "s90")]
        if s == E - 2:
            tags.append('fl')
            ab = lambda: flag_check(a, 6, "s90")
            it += oproj.recv_items(True, 6)
        N = q.need(*tags)
        if s == F - 4 or s == F + 3:
            q.push('sig', 1)
        for x in it:
            if kind(x) == 'd':
                q.push('fl' if "dwordx2" in x else 'rcv', 1)
        if s + 3 < F:
            it += g7.dma_items()
            q.push(s + 3, 8)
        elif s + 3 < E:
            if s + 3 == F:
                it += oproj.to_half()
            if s + 3 == F + DL:
                it += oproj.to_partner()
            it += gh.dma_items()
            q.push(s + 3, 6)
        g1, g0 = (g7 if s - 1 < F else gh), (g7 if s < F else gh)
        g7.bar(a, N)
        if ab:
            ab()
        d0, d1 = g7.split(it)
        if s == F:
            snd = oproj.send_items(oproj.AA, True, 6)
            nsc = [i for i, x in enumerate(snd) if kind(x) == 'd'][0]
            d0, d1 = it + snd[:nsc], snd[nsc:nsc + 4]
            q.push('snd', 4)
        if s == F + 1:
            d0, d1 = snd[nsc + 4:], it
            q.q = q.q[:-6] + ['snd'] * 4 + q.q[-6:]

        L = finB.pop(0) if finB and s > F else []

        def finb(sg):
            g = 0
            for x in L[:-1]:
                g = sg.place(x, g, lo=g)
        g1.half(a, 1, dma=d0, rdg=g0, extra=finb)
        a("s_waitcnt lgkmcnt(0)")
        g0.half(a, 0, dma=d1, adv=s < E - 1, extra=lambda sg: sg.end[sg.n - 1].extend(L[-1:]))
        q.push('ob', len(L[-1:]))
    oproj.out_off(a, True, 4)
    gh.tail(a, bar=False)
    st(a)
    a("s_waitcnt vmcnt(0)")
    st(a)
    for L in zip(*oproj.finish(oproj.AA, True, 4)):
        for x in L:
            a(x)
    st(a)
    if stamp:
        a("s_waitcnt vmcnt(0)")
    st(a)
    st.flush(a)
    return fin(a)


def fin(a):
    a.label("Lend")
    a("s_endpgm")
    t = a.finish()
    if 'nobar' in MFL:
        t = t.replace("s_barrier", "s_nop 0")
    if 'nox' in MFL:
        t = "\n".join(l for l in t.split("\n") if not (l.rstrip().endswith(" lds") and "s[8:11]" in l))
    if 'now' in MFL:
        t = "\n".join(l for l in t.split("\n") if not (l.rstrip().endswith(" lds") and "s[12:15]" in l))
    if 'nodma' in MFL:
        t = "\n".join(l for l in t.split("\n") if not l.rstrip().endswith(" lds"))
    return t.replace("CODE_KB", os.environ.get("CODE_KB", "70"))
```

```python
from lib import *
from gemm4 import *

xv, wv = 48, 56
sX, sW, sXb = 46, 47, 48
sM0, sN0 = 61, 62
sSt = 63
T = 32
ROT = int(os.environ.get("ROT", 1))
XS0 = 2


def acc(mi, ni):
    b = mi * 8 + ni
    return ('v', 64 + 4 * b) if b < 48 else ('a', 128 + 4 * (b - 48))


def make(orient):
    g = Gemm()
    g.name = "p1" + orient
    RX, RW = Ring(3, 32 * KB, 36), Ring(2, 32 * KB, 41)
    RX.regs, RW.regs = [16, 17], [18, 19, 20, 21]
    g.rings = [RX, RW]
    g.xrd, g.wrd = [(16, 17)], [18, 19, 20, 21]
    g.xfr = [(0, 2048 * i) for i in range(8)]
    g.wfr = [(ni & 3, (ni >> 2) * 8192) for ni in range(8)]
    g.mf = [(acc(mi, ni), mi, ni, orient) for ni in range(8) for mi in range(8)]
    g.fx, g.fw = 0, 64
    g.sCnt = 35
    ld = lambda v, s, o, j: "buffer_load_dwordx4 v%d, s[%d:%d], s%d offen offset:%d lds" % (v + j, s, s + 3, o, 1024 * (j & 3))
    g.dma = [
        (RW, 0, [ld(wv, 12, sW, j) for j in range(4)], []),
        (RW, 4096, [ld(wv, 12, sW, j) for j in range(4, 8)],
         ["s_add_u32 s%d, s%d, %d" % (sW, sW, 64 * 8192), "s_and_b32 s%d, s%d, %d" % (sW, sW, 512 * 8192 - 1)]),
        (RX, 0, [ld(xv, 8, sX, j) for j in range(4)], []),
        (RX, 4096, [ld(xv, 8, sX, j) for j in range(4, 8)],
         ["s_add_u32 s%d, s%d, 128" % (sX, sX), "s_and_b32 s%d, s%d, 1023" % (sX, sX)]),
    ]
    return g


def xitems(g, s):
    off = (((XS0 + s) % 3) - XS0) * 32 * KB
    return g.group_items(g.dma[2], off) + g.group_items(g.dma[3], off)


def witems(g, s):
    return g.group_items(g.dma[0], s * 32 * KB) + g.group_items(g.dma[1], s * 32 * KB)


def setup(a, g):
    RX, RW = g.rings
    a("s_and_b32 s4, s2, 1")
    a("s_lshl_b32 s4, s4, 2")
    a("s_bfe_u32 s5, s2, 0x20003")
    a("s_add_u32 s%d, s4, s5" % sM0)
    a("s_bfe_u32 s4, s2, 0x20001")
    a("s_lshl_b32 s4, s4, 2")
    a("s_bfe_u32 s5, s2, 0x20005")
    a("s_add_u32 s%d, s4, s5" % sN0)
    a("s_lshl_b32 s4, s%d, 13" % S_WAVE)
    a("s_add_u32 s%d, s4, %d" % (RX.sWr, XS0 * 32 * KB))
    a("s_add_u32 s%d, s4, %d" % (RW.sWr, 96 * KB))
    lane_setup(a, T)
    a("s_lshl_b32 s4, s%d, 2" % sM0)
    a("s_add_u32 s4, s4, s%d" % S_WAVE)
    a("s_lshl_b32 s4, s4, 6")
    a("v_add_u32 v%d, s4, v%d" % (T + 2, T))
    a("v_lshl_add_u32 v%d, v%d, 10, v%d" % (T + 2, T + 2, T + 1))
    for j in range(8):
        a("v_add_u32 v%d, %d, v%d" % (xv + j, 8 * j * 1024 - 1024 * (j & 3), T + 2))
    a("v_lshrrev_b32 v%d, 2, v%d" % (T + 2, T))
    a("v_and_b32 v%d, 3, v%d" % (T + 3, T))
    a("v_lshl_add_u32 v%d, v%d, 3, v%d" % (T + 2, T + 2, T + 3))
    a("s_lshl_b32 s4, s%d, 2" % sN0)
    a("s_add_u32 s4, s4, s%d" % S_WAVE)
    a("s_lshl_b32 s4, s4, 7")
    a("v_lshl_add_u32 v%d, v%d, 13, v%d" % (T + 2, T + 2, T + 1))
    a("v_add_u32 v%d, s4, v%d" % (T + 2, T + 2))
    for j in range(8):
        a("v_add_u32 v%d, %d, v%d" % (wv + j, (32 * (j >> 2) + 16 * (j & 1) + 4 * ((j >> 1) & 1)) * 8192 - 1024 * (j & 3), T + 2))
    a("s_and_b32 s6, s2, %d" % (7 if ROT else 0))
    if int(os.environ.get("SK1", 0)):
        a("s_add_u32 s4, s%d, s%d" % (sM0, sN0))
        a("s_lshr_b32 s5, s2, 7")
        a("s_lshl_b32 s5, s5, %d" % int(os.environ.get("SK1V", 1)))
        a("s_add_u32 s4, s4, s5")
        a("s_and_b32 s4, s4, %d" % int(os.environ.get("SK1M", 3)))
        a("s_mul_i32 s4, s4, %d" % int(os.environ.get("SK1", 0)))
        a("s_add_u32 s6, s6, s4")
        a("s_and_b32 s6, s6, 7")
    a("s_lshl_b32 s%d, s6, 7" % sX)
    a("s_lshl_b32 s%d, s6, 19" % sW)
    a("s_waitcnt lgkmcnt(0)")
    srd(a, 8, P_CKV, 2048 * 1024)
    a("s_cmp_lt_u32 s2, 128")
    a("s_cselect_b32 s12, s%d, s%d" % (P_WUK, P_WUV))
    a("s_cselect_b32 s13, s%d, s%d" % (P_WUK + 1, P_WUV + 1))
    a("s_mov_b32 s14, %d" % (512 * 8192))
    a("s_mov_b32 s15, 0x00020000")


def read_bases(a, g):
    a("s_lshr_b32 s4, s%d, 1" % S_WAVE)
    a("s_lshl_b32 s4, s4, 14")
    a("s_add_u32 s4, s4, %d" % (XS0 * 32 * KB))
    xread_base(a, 16, 17, T, "s4")
    a("s_and_b32 s4, s%d, 1" % S_WAVE)
    a("s_lshl_b32 s4, s4, 14")
    a("s_add_u32 s4, s4, %d" % (96 * KB))
    wread_base(a, g.wrd, range(4), T, "s4")


def out_base(a):
    a("s_and_b32 s4, s%d, 1" % S_WAVE)
    a("s_lshl_b32 s5, s%d, 1" % sN0)
    a("s_add_u32 s4, s4, s5")
    a("s_lshr_b32 s5, s%d, 1" % S_WAVE)
    a("s_lshl_b32 s6, s%d, 1" % sM0)
    a("s_add_u32 s5, s5, s6")
    srd(a, 16, P_WS, 32 * MB, WS_KV)
    a("s_lshl_b32 s4, s4, 20")
    a("s_lshl_b32 s5, s5, 16")
    a("s_add_u32 s%d, s4, s5" % sSt)
    a("s_lshr_b32 s4, s2, 7")
    a("s_lshl_b32 s4, s4, 14")
    a("s_add_u32 s%d, s%d, s4" % (sSt, sSt))


def packed(j):
    if j < 8:
        return ('v', 160 + 4 * j)
    if j >= 24:
        return ('v', 224 + 4 * (j - 24))
    return ('v', 128 + 64 * ((j >> 3) - 1) + 4 * (j & 7))


ORDER = list(range(8, 19)) + list(range(8)) + list(range(19, 32))


def pack(kind_, nst=0):
    order, epi = [], []
    for n, j in enumerate(list(range(8, 24)) + list(range(8)) + list(range(24, 32))):
        b0, b1 = ((j >> 2, 2 * (j & 3)), (j >> 2, 2 * (j & 3) + 1)) if kind_ == 'k' else ((2 * (j >> 3), j & 7), (2 * (j >> 3) + 1, j & 7))
        p0, p1 = acc(*b0), acc(*b1)
        idx = [b[1] * 8 + b[0] for b in (b0, b1)]
        order += idx
        L = []
        if p0[0] == 'a':
            src = [64 + 8 * (j - 24) + e for e in range(8)]
            L += ["v_accvgpr_read_b32 v%d, a%d" % (src[e], (p0, p1)[e >> 2][1] + (e & 3)) for e in range(8)]
        else:
            src = [p0[1] + e for e in range(4)] + [p1[1] + e for e in range(4)]
        L += ["v_cvt_pk_bf16_f32 v%d, v%d, v%d" % (packed(j)[1] + e, src[2 * e], src[2 * e + 1]) for e in range(4)]
        epi.append((idx, L))
    return order, epi


def trickle(k0, k1):
    L = []
    for k in range(k0, k1):
        j = ORDER[k]
        if k == k0 or j >> 2 != ORDER[k - 1] >> 2:
            L.append("s_add_u32 s60, s%d, %d" % (sSt, (j >> 4) * 32768 + ((j >> 2) & 3) * 4096))
        L.append("buffer_store_dwordx4 %s, v2, s[16:19], s60 offen offset:%d%s" % (r4(packed(j)), 1024 * (j & 3), SC1))
    return L


def pf_setup(a, d, so, pa, na, pb, nb):
    cut = (256 * na + na + nb - 1) // (na + nb)
    a("s_cmp_lt_u32 s2, %d" % cut)
    a("s_cselect_b32 s%d, s%d, s%d" % (d, pa, pb))
    a("s_cselect_b32 s%d, s%d, s%d" % (d + 1, pa + 1, pb + 1))
    a("s_cselect_b32 s%d, 0, %d" % (so, cut))
    a("s_mov_b32 s%d, %d" % (d + 2, nb * MB))
    a("s_cselect_b32 s%d, %d, s%d" % (d + 2, na * MB, d + 2))
    a("s_mov_b32 s%d, 0x00020000" % (d + 3))
    a("s_sub_u32 s%d, s2, s%d" % (so, so))
    a("s_lshl_b32 s%d, s%d, 2" % (so, so))
    a("s_add_u32 s%d, s%d, s%d" % (so, so, S_WAVE))
    a("s_mul_i32 s%d, s%d, %d" % (so, so, (na + nb) * 1024))


def pf_items(d, so, n):
    if 'nopf' in GFL or not n:
        return []
    return ["buffer_load_dwordx4 a[192:195], v2, s[%d:%d], s%d offen offset:%d ; @dummy" % (d, d + 3, so, 1024 * i) for i in range(n)] + \
           ["s_add_u32 s%d, s%d, %d" % (so, so, 1024 * n)]
```

```python
from lib import *
from gemm4 import *
import attn4
from attn4 import Oreg, aQ, vO, CST

xv, wv, rd = 4, 8, 16
aSave = 222
aZ = 236
sXA, sXB, sW = 46, 47, 48
XBASE, XS0 = 64 * KB, 1


def make():
    g = Gemm()
    g.name = "p3"
    RX, RW = Ring(3, 32 * KB, 36), Ring(3, 16 * KB, 41)
    RX.regs, RW.regs = [rd, rd + 1], list(range(rd + 2, rd + 6))
    g.rings = [RX, RW]
    g.xrd, g.wrd = [(rd, rd + 1)], list(range(rd + 2, rd + 6))
    g.xfr = [(0, 2048 * i) for i in range(4)]
    g.wfr = [(ni & 3, (ni >> 2) * 8192) for ni in range(8)]
    g.mf = [(Oreg(mi, ni), mi, ni, 'wx') for ni in range(8) for mi in range(4)]
    g.fx, g.fw = 0, 32
    g.sCnt = 35
    ld = lambda v, s, o, j: "buffer_load_dwordx4 v%d, s[%d:%d], s%d offen offset:%d lds" % (v + j, s, s + 3, o, 1024 * j)
    g.dma = [
        (RW, 0, [ld(wv, 12, sW, j) for j in range(4)],
         ["s_add_u32 s%d, s%d, %d" % (sW, sW, 64 * 8192), "s_and_b32 s%d, s%d, %d" % (sW, sW, 1024 * 8192 - 1)]),
        (RX, 0, [ld(xv, 8, sXA, j) for j in range(4)], []),
        (RX, 4096, [ld(xv, 8, sXB, j) for j in range(4)],
         ["s_add_u32 s49, s49, 128", "s_and_b32 s49, s49, 2047", "s_or_b32 s%d, s50, s49" % sXA, "s_or_b32 s%d, s51, s49" % sXB]),
    ]
    return g


def lanes(a, T):
    for i in range(4):
        a("v_accvgpr_write_b32 a%d, 0" % (aZ + i))
        a("v_accvgpr_write_b32 a%d, v%d" % (attn4.aOne + i, T + 3) if i else "v_mov_b32 v%d, 0x3f803f80\nv_accvgpr_write_b32 a%d, v%d" % (T + 3, attn4.aOne, T + 3))
    lane_setup(a, T)
    a("v_lshlrev_b32 v%d, 2, v%d" % (T + 2, T))
    a("v_add_u32 v%d, s%d, v%d" % (T + 2, S_WAVE, T + 2))
    a("v_lshl_add_u32 v%d, v%d, 11, v%d" % (T + 2, T + 2, T + 1))
    for j in range(4):
        a("v_add_u32 v%d, %d, v%d" % (T + 3, (32 * j) * 2048 - 1024 * j, T + 2))
        a("v_accvgpr_write_b32 a%d, v%d" % (aSave + j, T + 3))
    a("v_lshrrev_b32 v%d, 2, v%d" % (T + 2, T))
    a("v_and_b32 v%d, 3, v%d" % (T + 3, T))
    a("v_lshl_add_u32 v%d, v%d, 3, v%d" % (T + 2, T + 2, T + 3))
    a("s_and_b32 s4, s%d, 1" % S_WAVE)
    a("s_lshl_b32 s4, s4, 18")
    a("s_lshr_b32 s5, s%d, 1" % S_WAVE)
    a("s_lshl_b32 s5, s5, 7")
    a("s_add_u32 s4, s4, s5")
    a("s_lshl_b32 s5, s%d, 8" % attn4.sHead)
    a("s_add_u32 s4, s4, s5")
    a("v_lshl_add_u32 v%d, v%d, 13, v%d" % (T + 2, T + 2, T + 1))
    a("v_add_u32 v%d, s4, v%d" % (T + 2, T + 2))
    for j in range(4):
        a("v_add_u32 v%d, %d, v%d" % (T + 3, (16 * (j & 1) + 4 * (j >> 1)) * 8192 - 1024 * j, T + 2))
        a("v_accvgpr_write_b32 a%d, v%d" % (aSave + 4 + j, T + 3))
    t = T + 4
    a("s_lshl_b32 s4, s%d, 13" % S_WAVE)
    a("s_add_u32 s4, s4, %d" % (XBASE + XS0 * 32 * KB))
    xread_base(a, t, t + 1, T, "s4")
    wread_base(a, [t + 2 + i for i in range(4)], range(4), T, "0")
    for i in range(6):
        a("v_accvgpr_write_b32 a%d, v%d" % (aSave + 8 + i, t + i))


def setup(a, g):
    RX, RW = g.rings
    for i in range(8):
        a("v_accvgpr_read_b32 v%d, a%d" % (xv + i, aSave + i))
    srd(a, 8, P_AX, 2048 * 2048)
    srd(a, 12, P_WQ, 1024 * 8192)
    a("s_and_b32 s4, s2, %d" % (7 if int(os.environ.get("ROT3", 1)) else 0))
    a("s_lshl_b32 s4, s4, 1")
    a("s_lshr_b32 s5, s2, 6")
    a("s_add_u32 s5, s5, s%d" % attn4.sPair)
    a("s_and_b32 s5, s5, %d" % int(os.environ.get("SK3M", 3)))
    a("s_mul_i32 s5, s5, %d" % int(os.environ.get("SK3", 1)))
    a("s_add_u32 s4, s4, s5")
    a("s_and_b32 s4, s4, 15")
    a("s_lshl_b32 s49, s4, 7")
    a("s_lshl_b32 s%d, s4, 19" % sW)
    a("s_lshl_b32 s50, s%d, 18" % attn4.sPair)
    a("s_sub_u32 s51, %d, s50" % (15 << 18))
    a("s_or_b32 s%d, s50, s49" % sXA)
    a("s_or_b32 s%d, s51, s49" % sXB)
    a("s_lshl_b32 s%d, s%d, 12" % (RW.sWr, S_WAVE))
    a("s_lshl_b32 s%d, s%d, 13" % (RX.sWr, S_WAVE))
    a("s_add_u32 s%d, s%d, %d" % (RX.sWr, RX.sWr, XBASE + XS0 * 32 * KB))


def restore(a):
    for i in range(6):
        a("v_accvgpr_read_b32 v%d, a%d" % (rd + i, aSave + 8 + i))


def xitems(g, s):
    off = (((XS0 + s) % 3) - XS0) * 32 * KB
    return g.group_items(g.dma[1], off) + g.group_items(g.dma[2], off)


def witems(g, s):
    return g.group_items(g.dma[0], s * 16 * KB)


def epilogue():
    order, epi = [], []
    for g in range(4):
        for ds in range(4):
            b = vO + 4 * (8 * g + 2 * ds)
            idx = [(2 * ds) * 4 + g, (2 * ds + 1) * 4 + g]
            order += idx
            L = ["v_pk_mul_f32 v[%d:%d], v[%d:%d], s[6:7]" % (b + e, b + e + 1, b + e, b + e + 1) for e in range(0, 8, 2)]
            L += ["v_cvt_pk_bf16_f32 v%d, v%d, v%d" % (b + e, b + 2 * e, b + 2 * e + 1) for e in range(4)]
            L += ["v_accvgpr_write_b32 a%d, v%d" % (aQ + 4 * (4 * g + ds) + e, b + e) for e in range(4)]
            if ds & 1:
                L.append("v_mfma_f32_32x32x16_bf16 v[%d:%d], a[%d:%d], a[%d:%d], 0" % (b - 8, b + 7, aZ, aZ + 3, aZ, aZ + 3))
            epi.append((idx, L))
    return order, epi
```

```python
from lib import *


class Ring:
    def __init__(self, NS, slot, sbase):
        self.NS, self.slot = NS, slot
        self.sWr, self.sRd, self.sRdD, self.sC = sbase, sbase + 1, sbase + 2, sbase + 3
        self.regs = []

    def init(self):
        return ["s_mov_b32 s%d, 0" % self.sRd,
                "s_mov_b32 s%d, %d" % (self.sC, (-(self.NS - 1) * self.slot) & 0xffffffff),
                "s_mov_b32 s%d, %d" % (self.sC + 1, self.slot)]

    def adv(self, wr):
        sc = []
        if wr:
            sc.append("s_add_u32 s%d, s%d, s%d" % (self.sWr, self.sWr, self.sRdD))
        if self.NS == 2:
            sc.append("s_sub_u32 s%d, 0, s%d" % (self.sRdD, self.sRdD))
        else:
            sc += ["s_add_u32 s%d, s%d, 1" % (self.sRd, self.sRd),
                   "s_cmp_eq_u32 s%d, %d\ns_cselect_b32 s%d, 0, s%d\ns_cselect_b32 s%d, s%d, s%d" % (
                       self.sRd, self.NS, self.sRd, self.sRd, self.sRdD, self.sC, self.sC + 1)]
        return sc, ["v_add_u32 v%d, s%d, v%d" % (r, self.sRdD, r) for r in self.regs]


def place_dma(sg, items, g0, g1):
    nd = sum(1 for x in items if kind(x) == 'd')
    k = 0
    last = g0
    for x in items:
        if kind(x) == 'd':
            want = g0 + (k * (g1 - g0 + 1)) // nd
            k += 1
            if sg.end[last]:
                sg.end[last].append(x)
                continue
            g = sg.place(x, max(want, last), lo=last)
            last = g
        else:
            g = min(last + 1, sg.n - 1) if sg.d[last] else last
            if sg.d[g] or sg.end[g]:
                sg.end[g].append(x)
            else:
                g = sg.place(x, g, lo=g)
                if sg.d[g]:
                    raise RuntimeError("scalar placed before an earlier load")
            last = g
            if "m0" in x and not sg.end[g]:
                last = min(g + 1, sg.n - 1)
                if last == g:
                    sg.end[g].append("s_nop 0")
    return last


class Gemm:
    xlin = False
    woff = 0
    pf = []

    def fxr(self, h, i):
        return ('a', self.fx + 4 * (h * len(self.xfr) + i))

    def fwr(self, h, i):
        return ('a', self.fw + 4 * (h * len(self.wfr) + i))

    def mfmas(self, h, first=False):
        L = []
        for acc, xi, wi, o in self.mf:
            x, w = self.fxr(h, xi), self.fwr(h, wi)
            L.append(mfma(acc, w, x, "0" if first else None) if o == 'wx' else mfma(acc, x, w, "0" if first else None))
        return L

    def reads(self, h):
        L = []
        seen = set()
        for acc, xi, wi, o in self.mf:
            if ('x', xi) not in seen:
                seen.add(('x', xi))
                st, imm = self.xfr[xi]
                if self.xlin:
                    L.append("ds_read_b128 %s, v%d offset:%d" % (r4(self.fxr(h, xi)), self.xrd[st][0], imm + h * self.xhs))
                else:
                    L.append("ds_read_b128 %s, v%d offset:%d" % (r4(self.fxr(h, xi)), self.xrd[st][h], imm))
            if ('w', wi) not in seen:
                seen.add(('w', wi))
                nb, imm = self.wfr[wi]
                b = self.fwr(h, wi)[1]
                for j in range(2):
                    L.append("ds_read_b64_tr_b16 a[%d:%d], v%d offset:%d" % (b + 2 * j, b + 2 * j + 1, self.wrd[nb], self.woff + imm + h * 4096 + j * 2048))
        return L

    def group_items(self, grp, off=0):
        ring, m0, ins, post = grp
        if isinstance(m0, tuple):
            L = ["s_add_u32 m0, s%d, s%d" % (ring.sWr, m0[1]) + ("\ns_add_u32 m0, m0, %d" % off if off else "")]
        else:
            m0 += off
            L = ["s_add_u32 m0, s%d, %d" % (ring.sWr, m0) if m0 else "s_mov_b32 m0, s%d" % ring.sWr]
        return L + ins + post

    def dma_items(self):
        return [x for g in self.dma for x in self.group_items(g)]

    def issue_seq(self, it):
        return [(g, it - 1 + g[0].NS) for g in self.dma if it - 1 + g[0].NS >= 0]

    def prologue_items(self):
        L = []
        for it in range(-(max(r.NS for r in self.rings) - 1), 1):
            for g, s in self.issue_seq(it):
                L += self.group_items(g, s * g[0].slot)
        return L

    def nprologue(self):
        return sum(1 for x in self.prologue_items() if kind(x) == 'd')

    def vm(self, s, nst):
        q = []
        for it in range(-8, max(s, 1)):
            for g, st in self.issue_seq(it):
                if st < nst:
                    q += [st] * len(g[2])
        idx = max(i for i, st in enumerate(q) if st <= s)
        return len(q) - 1 - idx

    def half(self, a, h, first=False, rd=True, dma=None, adv=False, extra=None, wr=True, rdg=None):
        sg = Seg(self.mfmas(h, first))
        n = sg.n
        lastd = 0
        nadv = sum(len(r.regs) for r in self.rings)
        if dma:
            lastd = place_dma(sg, dma, 0, n - 2 - ((nadv // 2 + 3) if adv and n > 16 else 0))
        lastr = 0
        if rd and 'noreads' not in GFL:
            R = (rdg or self).reads(h ^ 1)
            g1 = max(len(R) // 2, n - int(os.environ.get('RDE', 11)))
            lastr = max(sg.stream(R, 0, g1))
        if adv:
            g = min(n - 1, lastd + 1) if dma else 0
            vas = []
            for r in self.rings:
                sc, va = r.adv(wr)
                vas += va
                for x in sc:
                    if (sg.d[g] and g == n - 1) or sg.end[g]:
                        sg.end[g].append(x)
                    else:
                        g = sg.place(x, g, lo=g)
            g = max(lastr + 1, g + 1)
            for x in vas:
                if g < n:
                    sg.place(x, g, lo=g)
                else:
                    sg.end[n - 1].append(x)
        if extra:
            extra(sg)
        for x in sg.lines():
            a(x)

    def split(self, it):
        n = sum(1 for x in it if kind(x) == 'd')
        cut = cnt = 0
        for i, x in enumerate(it):
            if kind(x) == 'd':
                cnt += 1
                if cnt == (n + 1) // 2:
                    cut = i + 1
        while cut < len(it) and kind(it[cut]) == 's' and "m0" not in it[cut]:
            cut += 1
        return it[:cut], it[cut:]

    def init(self, a, start=None):
        for i, r in enumerate(self.rings):
            for x in r.init():
                a(x)
            if start and start[i]:
                a("s_mov_b32 s%d, %d" % (r.sRd, start[i]))
            if r.NS == 2:
                a("s_mov_b32 s%d, s%d" % (r.sRdD, r.sC))

    def bar(self, a, N):
        a("s_waitcnt vmcnt(%d) lgkmcnt(0)" % min(63, N))
        a("s_barrier")

    def pro(self, a, N, dma=None):
        a("s_waitcnt vmcnt(%d)" % min(63, N))
        a("s_barrier")
        for x in self.reads(0):
            a(x)
        a("s_waitcnt lgkmcnt(0)")
        self.half(a, 0, first=True, adv=True, dma=dma, wr=False)

    def iter(self, a, N, items=None, wr=True, adv=True, after_bar=None, extra=None):
        self.bar(a, N)
        if after_bar:
            after_bar()
        d0, d1 = self.split(items or [])
        self.half(a, 1, dma=d0)
        a("s_waitcnt lgkmcnt(0)")
        self.half(a, 0, dma=d1, adv=adv, wr=wr, extra=extra)

    def loop(self, a, N, after_bar=None):
        a(".p2align 6")
        a.label("L%s_loop" % self.name)

        def cnt_(sg):
            sg.place("s_sub_u32 s%d, s%d, 1" % (self.sCnt, self.sCnt), sg.n - 2, lo=sg.n - 2)
            sg.end[sg.n - 1].append("s_cmp_lg_u32 s%d, 0" % self.sCnt)
        self.iter(a, N, self.pf + self.dma_items(), after_bar=after_bar, extra=cnt_)
        a("s_cbranch_scc1 L%s_loop" % self.name)

    def last(self, a, order, g0, epi, dma=None, bar=True, mid=None):
        m0, m1 = self.mfmas(0), self.mfmas(1)
        a("s_waitcnt lgkmcnt(0)")
        sg = Seg([m0[i] for i in order[:g0]])
        sg.stream(self.reads(1), 0, max(g0 - 8, len(self.reads(1)) // 2))
        for x in sg.lines():
            a(x)
        a("s_waitcnt lgkmcnt(0)")
        if bar:
            a("s_barrier")
        if mid:
            mid()
        mf, done = [], {}
        for i in order[:g0]:
            done[i] = len(mf)
            mf.append(m1[i])
        for k in range(g0, len(order), 2):
            i, j = order[k], order[k + 1]
            mf += [m0[i], m0[j], m1[i], m1[j]]
            done[i], done[j] = len(mf) - 2, len(mf) - 1
        sg = Seg(mf)
        if dma:
            place_dma(sg, dma, 0, sg.n - 2)
        g = 0
        rest = []
        for need, L in epi:
            lo = max(done[i] for i in need) + 4
            for x in L:
                g = max(g, lo)
                k = kind(x)
                if k == 's' and g + 1 < sg.n and not rest:
                    g += 1
                    while g < sg.n and (sg.d[g] or sg.end[g] or sg.sc[g]):
                        g += 1
                while g < sg.n and not (sg.room(g, k) and (k != 'd' or not sg.c[g])):
                    g += 1
                if g >= sg.n or rest:
                    rest.append(x)
                else:
                    sg.put(g, x)
                    if k == 'c':
                        lo = g
        for x in sg.lines() + rest:
            a(x)

    def tail(self, a, items=None, bar=True, N=None, rd=False):
        a("s_waitcnt %slgkmcnt(0)" % ("" if N is None else "vmcnt(%d) " % N))
        if bar:
            a("s_barrier")
        self.half(a, 1, rd=rd, dma=items)


GFL = set(os.environ.get("GFLAGS", "").split(","))


def lane_setup(a, T):
    a("v_lshrrev_b32 v%d, 3, v1" % T)
    a("v_and_b32 v%d, 6, v%d" % (T + 1, T))
    a("v_and_b32 v%d, 7, v1" % (T + 2))
    a("v_xor_b32 v%d, v%d, v%d" % (T + 1, T + 1, T + 2))
    a("v_lshlrev_b32 v%d, 4, v%d" % (T + 1, T + 1))


def xread_base(a, d0, d1, T, sbase):
    a("v_and_b32 v%d, 15, v1" % T)
    a("v_lshlrev_b32 v%d, 7, v%d" % (T, T))
    a("v_lshrrev_b32 v%d, 4, v1" % (T + 1))
    a("v_and_b32 v%d, 6, v1" % (T + 2))
    a("v_xor_b32 v%d, v%d, v%d" % (T + 1, T + 1, T + 2))
    a("v_lshl_add_u32 v%d, v%d, 4, v%d" % (T, T + 1, T))
    a("v_add_u32 v%d, %s, v%d" % (d0, sbase, T))
    a("v_xor_b32 v%d, 64, v%d" % (d1, d0))


def wread_base(a, regs, nbs, T, sbase):
    a("v_lshrrev_b32 v%d, 2, v1" % T)
    a("v_and_b32 v%d, 6, v%d" % (T + 1, T))
    a("v_lshlrev_b32 v%d, 7, v%d" % (T, T))
    a("v_and_b32 v%d, 1, v1" % (T + 2))
    a("v_lshl_add_u32 v%d, v%d, 3, v%d" % (T, T + 2, T))
    a("v_add_u32 v%d, %s, v%d" % (T, sbase, T))
    a("v_bfe_u32 v%d, v1, 1, 1" % (T + 2))
    a("v_xor_b32 v%d, v%d, v%d" % (T + 1, T + 1, T + 2))
    for r, nb in zip(regs, nbs):
        a("v_xor_b32 v%d, %d, v%d" % (T + 2, 2 * nb, T + 1))
        a("v_lshl_add_u32 v%d, v%d, 4, v%d" % (r, T + 2, T))
```

```python
from lib import *
from gemm4 import *
import proj4, bfront, attn4, oproj, qproj

MFL = set(os.environ.get("MFLAGS", "").split(","))


def gen(stamp=False):
    a = Asm()
    st = Stamps(stamp, 0)
    a("s_cmp_ge_u32 s2, 256")
    a("s_cbranch_scc1 Lend")
    a("s_load_dwordx16 s[64:79], s[0:1], 0")
    a("s_load_dwordx8 s[80:87], s[0:1], 64")
    a("v_lshrrev_b32 v2, 6, v0")
    a("v_and_b32 v1, 63, v0")
    a("v_readfirstlane_b32 s%d, v2" % S_WAVE)
    a("v_lshlrev_b32 v2, 4, v1")
    if 'ipf' in MFL:
        a("s_getpc_b64 s[6:7]")
        a("s_lshr_b32 s4, s2, 3")
        a("s_lshl_b32 s4, s4, 2")
        a("s_add_u32 s4, s4, s%d" % S_WAVE)
        a("s_min_u32 s4, s4, CODE_KB")
        a("s_lshl_b32 s4, s4, 10")
        a("v_add_u32 v3, s4, v2")
        a("global_load_dwordx4 v[4:7], v3, s[6:7]")
    st(a)
    gk, gv = proj4.make('wx'), proj4.make('xw')
    b0, b1 = bfront.make(0), bfront.make(1)
    g3 = qproj.make()
    proj4.setup(a, gk)
    srd(a, S_FLG, P_WS, 0x40000, WS_FLG)
    tag_make(a, 0)
    for x in proj4.xitems(gk, 0) + proj4.witems(gk, 0):
        a(x)
    c = Col()
    proj4.read_bases(c, gk)
    if os.environ.get("PF1") != "0,0":
        proj4.pf_setup(c, 56, 50, P_WQKV, 6, P_BX, 4)
        proj4.pf_setup(c, 52, 51, P_WQ, 8, P_AX, 4)
    attn4.ids(c)
    bfront.setup(c, b0)
    oproj.lanes(c, 28)
    qproj.lanes(c, 28)
    proj4.out_base(c)
    gk.init(c, [proj4.XS0, 0])
    PF0 = ""
    for x in weave_lines(c, proj4.xitems(gk, 1) + proj4.witems(gk, 1), float(os.environ.get("W0", 0.2)), 1.0):
        a(x)
    tag_make(a, 1, 32 + (10 if PF0 else 0))
    st(a)
    if 'only2' in MFL:
        a("s_waitcnt vmcnt(0)")
        a("s_barrier")
        for x in bfront.xsrd() + [y for s in range(3) for y in bfront.stage_items(a, b0, s, 'xw')]:
            a(x)
        tag_load(a, 22)
        cut0 = len(a.ins)
    if 'only7' in MFL:
        a("s_waitcnt vmcnt(0)")
        a("s_barrier")
        cut7 = len(a.ins)
    PF1 = [int(x) for x in os.environ.get("PF1", "2,2").split(",")]
    NW = int(os.environ.get("NW", 3))
    NP, NL = int(os.environ.get("NP", 3)), int(os.environ.get("NL", 6))
    a("s_cmp_lt_u32 s2, 128")
    a("s_cbranch_scc1 Lp1_k")
    k0 = st.k
    for kind_, g in (('v', gv), ('k', gk)):
        if kind_ == 'k':
            a.label("Lp1_k")
            st.k = k0
        g.pf = proj4.pf_items(56, 50, PF1[0]) + proj4.pf_items(52, 51, PF1[1])
        g.pro(a, 16 + (10 if PF0 else 0), dma=proj4.xitems(g, 2))
        a("s_mov_b32 s%d, 5" % g.sCnt)
        g.loop(a, 8)
        g.iter(a, 8, proj4.witems(g, 0) + bfront.xsrd() + bfront.stage_items(a, b0, 0, 'x'))
        g.bar(a, 4)
        g.half(a, 1, dma=bfront.stage_items(a, b0, 0, 'w') + bfront.stage_items(a, b0, 1, 'xw'))
        order, epi = proj4.pack(kind_, NW)
        g.last(a, order, 20, epi, dma=bfront.stage_items(a, b0, 2, 'xw'), mid=lambda: tag_load(a, 22))
        st(a)
        for x in proj4.trickle(NW, NP):
            a(x)
        if kind_ == 'v':
            a("s_branch Lp2")
    if 'only2' in MFL:
        del a.ins[cut0:]
        st.k = 2
    if 'nost' in MFL:
        proj4.trickle = lambda a, b: ["s_nop 0"]
        VmQ.push0 = VmQ.push
        VmQ.push = lambda self, tag, n: VmQ.push0(self, tag, 0 if tag == 'st' else n)
    a.label("Lp2")
    st(a)
    b0.init(a)
    bfront.restore(a)
    a("s_cmp_ge_u32 s%d, 2" % S_WAVE)
    a("s_cbranch_scc1 Lp2_r1")
    k0 = st.k
    n2 = 32 - NP - NL
    TRK = [(n2 * (k + 1)) // 16 - (n2 * k) // 16 for k in range(16)]
    if os.environ.get("TRK"):
        TRK = [int(x) for x in os.environ["TRK"].split(",")]
    TR3 = [0]
    cum = [NP + sum(TRK[:k]) for k in range(17)] + [32 - NL]
    assert cum[16] + NL == 32
    Q3 = []
    for rh, g in enumerate((b0, b1)):
        if rh:
            a.label("Lp2_r1")
            st.k = k0
        n = 10 if rh else 11
        q = VmQ()
        q.push(0, n), q.push(1, n), q.push('t', 1), q.push('st', NW), q.push(2, n), q.push('st', NP - NW)
        g.pro(a, q.need(0), dma=proj4.trickle(cum[0], cum[1]))
        q.push('st', TRK[0])
        npf = (12 - 5 * PF1[1]) * int(os.environ.get('PFA', 1)) * (PF1[1] > 0)
        for s in range(1, 16):
            N = q.need(s)
            it = []
            if s <= npf:
                it += proj4.pf_items(52, 51, 1)
                q.push('pf', 1)
            if s < 14:
                it += g.dma_items()
                q.push(s + 2, n)
            elif s == 14:
                it += qproj.witems(g3, 0) + qproj.witems(g3, 1)
                q.push('w0', 4), q.push('w1', 4)
            else:
                it += qproj.xitems(g3, 0)
                q.push('x0', 8)
            it += proj4.trickle(cum[s], cum[s + 1])
            q.push('st', TRK[s])
            g.iter(a, N, it, adv=s < 15, after_bar=(lambda: qproj.setup(a, g3)) if s == 14 else None)
            if 'st2' in MFL and s in (3, 7, 11):
                st(a)
        g.tail(a, qproj.xitems(g3, 1))
        q.push('x1', 8)
        st(a)
        c = Col()
        bfront.local_attn(c, rh)
        for x in weave_lines(c, (proj4.trickle(32 - NL, 32) if NL else []) + qproj.witems(g3, 2) + qproj.xitems(g3, 2), 0.0, 0.85):
            a(x)
        q.push('st', NL), q.push('w2', 4), q.push('x2', 8), q.push('o', 4)
        Q3.append(q)
        if not rh:
            a("s_branch Lp3")
    a.label("Lp3")
    st(a)
    if 'only2' in MFL:
        st.flush(a)
        return fin(a)
    q = Q3[0]
    k = q.q.index('w0')
    assert q.q[k:] == Q3[1].q[Q3[1].q.index('w0'):]
    qproj.restore(a)
    g3.init(a, [qproj.XS0, 0])
    a("s_lshl_b32 s34, s%d, 4" % proj4.sN0)
    a("s_add_u32 s34, s34, s%d" % proj4.sM0)
    a("s_lshr_b32 s4, s2, 7")
    a("s_lshl_b32 s4, s4, 3")
    a("s_add_u32 s34, s34, s4")
    a("s_lshl_b32 s34, s34, 7")
    a("s_lshl_b32 s91, s%d, 4" % bfront.sRb)
    a("s_add_u32 s91, s91, s%d" % bfront.sHp)
    a("s_lshl_b32 s91, s91, 7")
    a("s_add_u32 s91, s91, %d" % F_OB)
    g3.pro(a, q.need('w0', 'x0'), dma=proj4.trickle(cum[16], cum[17]))
    q.push('st', TR3[0])
    last = max(2, len(TR3) + 1)
    for s in range(1, last + 1):
        tags = ['w%d' % s, 'x%d' % s, s] + (['o', 'st'] if s == last else [])
        N = q.need(*tags)
        g3.iter(a, N, g3.dma_items() + (proj4.trickle(cum[16 + s], cum[17 + s]) if s < len(TR3) else []),
                after_bar=(lambda: (tag_get(a, 22, 20), signal(a, 22, ["s34", "s91"], 3))) if s == last else None)
        q.push(s + 2, 12)
        if s < len(TR3):
            q.push('st', TR3[s])
    if last < 12:
        a("s_mov_b32 s%d, %d" % (g3.sCnt, 12 - last))
        g3.loop(a, 12)

    def ids():
        a("s_lshr_b32 s34, s%d, 1" % attn4.sHead)
        a("s_lshl_b32 s34, s34, 11")
        for x in flag_addr(3):
            a(x)
    g3.iter(a, 12, [flag_load(22, "s34", 3)] + g3.dma_items(), after_bar=ids)

    def go():
        flag_check(a, 22, "s34", 3)
        attn4.kv_setup(a)
        oproj.ids(a)
    it = attn4.kv_prologue_items(0)
    cut = [i for i, x in enumerate(it) if "m0" in x][1]
    g3.iter(a, 12, it[:cut], after_bar=go)
    g3.bar(a, 4)
    a("s_mov_b32 s6, 0x%08x" % f32bits(attn4.CST))
    a("s_mov_b32 s7, s6")
    g3.half(a, 1, dma=it[cut:])
    order, epi = qproj.epilogue()
    g3.last(a, order, 16, epi, bar=False)
    st(a)
    attn4.setup1(a)
    st(a)
    g6, g7 = oproj.make("p6", oproj.AB), oproj.make("p7", oproj.AA)

    class H:
        q0 = [t for t in (('K', 0), ('K', 1), ('V', 0)) for _ in range(4)]

        @staticmethod
        def after_d2():
            a("s_lshl_b32 s91, s%d, 11" % oproj.sRb)
            a("s_add_u32 s91, s91, %d" % F_OB)
            for x in flag_addr(14):
                a(x)

        @staticmethod
        def pre_e1():
            return [flag_load(12, "s91", 14)]

        @staticmethod
        def at_e1():
            flag_check(a, 12, "s91", 14)
            for j in range(4):
                a("v_accvgpr_read_b32 v%d, a%d" % (oproj.wv + j, oproj.aSave + j))
            for x in oproj.job_w(False) + oproj.job_x(False):
                a(x)

        @staticmethod
        def e1_items():
            return oproj.stage_items(g6, 0, 'wx')

        @staticmethod
        def e2_items():
            return oproj.stage_items(g6, 1, 'wx')
    if 'only7' in MFL:
        del a.ins[cut7:]
        st.k = 2
        global flag_check
        flag_check = lambda *x: None
        oproj.ids(a)
        H.at_e1()
        for x in H.e1_items() + H.e2_items():
            a(x)
        srd(a, 16, P_WS, 16 * MB, 150 * MB)
        for i in range(8):
            a("buffer_store_dwordx4 v[32:35], v2, s[16:19], 0 offen")
    else:
        attn4.attention(a, st, H)
    st(a)
    gh = oproj.make("ph", oproj.AA, True)
    q = VmQ()
    for s in range(2):
        q.push(s, 8)
    q.push('ctx', 8)
    oproj.read_bases(a, 4)
    g6.init(a, [3])
    g6.pro(a, q.need(0), dma=oproj.stage_items(g6, 2, 'wx') + oproj.stage_items(g6, 3, 'wx'))
    q.push(2, 8)
    q.push(3, 8)

    def sig_ctx():
        a("s_lshl_b32 s4, s%d, 7" % attn4.sHead)
        a("s_lshl_b32 s5, s%d, 12" % attn4.sPair)
        a("s_add_u32 s6, s4, %d" % F_CTX)
        a("s_add_u32 s7, s6, %d" % (15 << 12))
        a("s_add_u32 s6, s6, s5")
        a("s_sub_u32 s7, s7, s5")
        signal(a, 6, ["s6", "s7"])
        a("s_lshl_b32 s91, s%d, 12" % oproj.sRb)
        a("s_add_u32 s91, s91, %d" % F_CTX)
        for x in flag_addr(14, 32):
            a(x)
        oproj.xch_srd(a)
    VS = int(os.environ.get("VS", 6))
    for s in range(1, VS):
        N = q.need(1, 'ctx') if s == 1 else q.need(s)
        if s == 1:
            q.push('sig', 2)
        it = g6.dma_items() if s < 5 else (oproj.job_w(True) if s == 5 else []) + g7.group_items(g7.dma[0])
        q.push(s + 3, 8 if s < 5 else 4)
        if s == VS - 1:
            it = it + [flag_load(6, "s91", 14)]
            q.push('fl', 1)
        g6.iter(a, N, it, after_bar=sig_ctx if s == 1 else None)
    a("s_waitcnt vmcnt(%d)" % q.need(VS, 'fl'))
    a("v_cmp_ne_u64 vcc, s[%d:%d], v[6:7]" % (S_TAG, S_TAG + 1))
    a("v_cndmask_b32_e64 v8, 0, 1, vcc")
    a("v_lshlrev_b32 v9, 2, v0")
    a("ds_write_b32 v9, v8")
    a("v_lshlrev_b32 v9, 4, v1")
    a("s_waitcnt lgkmcnt(0)")
    a("s_barrier")
    a("ds_read_b128 v[160:163], v9")
    for x in oproj.job_w(True) if VS == 5 else []:
        a(x)
    a("s_waitcnt lgkmcnt(0)")
    a("v_or3_b32 v160, v160, v161, v162")
    a("v_or_b32 v160, v160, v163")
    a("v_cmp_ne_u32 vcc, 0, v160")
    if 'only7' not in MFL:
        a("s_cbranch_vccnz Lp6_late ; @late")
    k0 = st.k
    q0 = list(q.q)
    for late in (False, True):
        q.q = list(q0)
        if late:
            a.label("Lp6_late")
            st.k = k0
        else:
            for x in oproj.job_x(True):
                a(x)
        for s in range(VS, 8):
            if s > VS:
                g6.bar(a, q.need(s))
            it = g7.group_items(g7.dma[0]) if late else g7.dma_items()
            if s == VS and not late:
                for t in range(VS + 2, 7, -1):
                    it = oproj.stage_items(g7, t, 'x') + it
                for t in range(8, VS + 3):
                    q.push(t, 4)
            q.push(s + 3, 4 if late else 8)
            if late and s == 7:
                it += [flag_load(6, "s91", 14)]
            d0, d1 = g6.split(it)
            g6.half(a, 1, dma=d0)
            a("s_waitcnt lgkmcnt(0)")
            g6.half(a, 0, dma=d1, adv=True)
        if late:
            a("s_waitcnt vmcnt(0) lgkmcnt(0)")
            a("s_barrier")
            st(a)
            flag_check(a, 6, "s91", 14)
            st(a)
            for x in oproj.job_x(True):
                a(x)
            it = []
            for s in range(8, 12):
                it += oproj.stage_items(g7, s, 'x' if s < 11 else 'wx')
            g6.half(a, 1, rd=False, dma=it)
            for x in oproj.send_items(oproj.AB, False, 6):
                a(x)
            a("s_waitcnt vmcnt(24)")
            a("s_barrier")
            for x in g7.reads(0):
                a(x)
            a("s_waitcnt lgkmcnt(0)")
            g7.half(a, 0, first=True, adv=True)
        else:
            g6.bar(a, q.need(8))
            st(a)
            st(a)
            g6.half(a, 1, dma=g7.dma_items())
            a("s_waitcnt lgkmcnt(0)")
            it = oproj.send_items(oproj.AB, False, 6)
            nsc = [i for i, x in enumerate(it) if kind(x) == 'd'][0]
            for x in it[:nsc]:
                a(x)
            g7.half(a, 0, first=True, adv=True, extra=lambda sg: place_dma(sg, it[nsc:], 5, 14))
            a("s_branch Lp7")
    a.label("Lp7")
    st(a)
    DL = oproj.DL
    F = 40 - DL
    a("s_mov_b32 s%d, %d" % (g7.sCnt, F - 4 - 9))
    g7.loop(a, 16)
    q = VmQ()
    for s in range(F - 4, F - 1):
        q.push(s, 8)
    E = F + 2 * DL
    finB = []
    for s in range(F - 4, E):
        tags, it, ab = [s], [], None
        if s == F - 4:
            def ab():
                oproj.flag_pos(a, False, True, 6)
                signal(a, 6, ["s6"])
                oproj.flag_pos(a, False, False, 90)
                oproj.out_setup(a)
        if s == F - 3:
            it += [flag_load(6, "s90")]
        if s == F - 2:
            tags.append('fl')
            ab = lambda: flag_check(a, 6, "s90")
            it += oproj.recv_items(False, 6)
        if s == F:
            tags.append('rcv')

            def ab():
                oproj.out_off(a, False, 4)
                oproj.flag_pos(a, True, True, 89)
                oproj.flag_pos(a, True, False, 90)
            finB = oproj.finish(oproj.AB, False, 4)
        if s == F + 3:
            tags.append('snd')
            ab = lambda: signal(a, 6, ["s89"])
        if s == E - 3:
            it += [flag_load(6, "s90")]
        if s == E - 2:
            tags.append('fl')
            ab = lambda: flag_check(a, 6, "s90")
            it += oproj.recv_items(True, 6)
        N = q.need(*tags)
        if s == F - 4 or s == F + 3:
            q.push('sig', 1)
        for x in it:
            if kind(x) == 'd':
                q.push('fl' if "dwordx2" in x else 'rcv', 1)
        if s + 3 < F:
            it += g7.dma_items()
            q.push(s + 3, 8)
        elif s + 3 < E:
            if s + 3 == F:
                it += oproj.to_half()
            if s + 3 == F + DL:
                it += oproj.to_partner()
            it += gh.dma_items()
            q.push(s + 3, 6)
        g1, g0 = (g7 if s - 1 < F else gh), (g7 if s < F else gh)
        g7.bar(a, N)
        if ab:
            ab()
        d0, d1 = g7.split(it)
        if s == F:
            snd = oproj.send_items(oproj.AA, True, 6)
            nsc = [i for i, x in enumerate(snd) if kind(x) == 'd'][0]
            d0, d1 = it + snd[:nsc], snd[nsc:nsc + 4]
            q.push('snd', 4)
        if s == F + 1:
            d0, d1 = snd[nsc + 4:], it
            q.q = q.q[:-6] + ['snd'] * 4 + q.q[-6:]

        L = finB.pop(0) if finB and s > F else []

        def finb(sg):
            g = 0
            for x in L[:-1]:
                g = sg.place(x, g, lo=g)
        g1.half(a, 1, dma=d0, rdg=g0, extra=finb)
        a("s_waitcnt lgkmcnt(0)")
        g0.half(a, 0, dma=d1, adv=s < E - 1, extra=lambda sg: sg.end[sg.n - 1].extend(L[-1:]))
        q.push('ob', len(L[-1:]))
    oproj.out_off(a, True, 4)
    gh.tail(a, bar=False)
    st(a)
    a("s_waitcnt vmcnt(0)")
    st(a)
    for L in zip(*oproj.finish(oproj.AA, True, 4)):
        for x in L:
            a(x)
    st(a)
    if stamp:
        a("s_waitcnt vmcnt(0)")
    st(a)
    st.flush(a)
    return fin(a)


def fin(a):
    a.label("Lend")
    a("s_endpgm")
    t = a.finish()
    if 'nobar' in MFL:
        t = t.replace("s_barrier", "s_nop 0")
    if 'nox' in MFL:
        t = "\n".join(l for l in t.split("\n") if not (l.rstrip().endswith(" lds") and "s[8:11]" in l))
    if 'now' in MFL:
        t = "\n".join(l for l in t.split("\n") if not (l.rstrip().endswith(" lds") and "s[12:15]" in l))
    if 'nodma' in MFL:
        t = "\n".join(l for l in t.split("\n") if not l.rstrip().endswith(" lds"))
    return t.replace("CODE_KB", os.environ.get("CODE_KB", "70"))
```

```python
from lib import *
from gemm4 import *

xv, wv = 48, 56
sX, sW, sXb = 46, 47, 48
sM0, sN0 = 61, 62
sSt = 63
T = 32
ROT = int(os.environ.get("ROT", 1))
XS0 = 2


def acc(mi, ni):
    b = mi * 8 + ni
    return ('v', 64 + 4 * b) if b < 48 else ('a', 128 + 4 * (b - 48))


def make(orient):
    g = Gemm()
    g.name = "p1" + orient
    RX, RW = Ring(3, 32 * KB, 36), Ring(2, 32 * KB, 41)
    RX.regs, RW.regs = [16, 17], [18, 19, 20, 21]
    g.rings = [RX, RW]
    g.xrd, g.wrd = [(16, 17)], [18, 19, 20, 21]
    g.xfr = [(0, 2048 * i) for i in range(8)]
    g.wfr = [(ni & 3, (ni >> 2) * 8192) for ni in range(8)]
    g.mf = [(acc(mi, ni), mi, ni, orient) for ni in range(8) for mi in range(8)]
    g.fx, g.fw = 0, 64
    g.sCnt = 35
    ld = lambda v, s, o, j: "buffer_load_dwordx4 v%d, s[%d:%d], s%d offen offset:%d lds" % (v + j, s, s + 3, o, 1024 * (j & 3))
    g.dma = [
        (RW, 0, [ld(wv, 12, sW, j) for j in range(4)], []),
        (RW, 4096, [ld(wv, 12, sW, j) for j in range(4, 8)],
         ["s_add_u32 s%d, s%d, %d" % (sW, sW, 64 * 8192), "s_and_b32 s%d, s%d, %d" % (sW, sW, 512 * 8192 - 1)]),
        (RX, 0, [ld(xv, 8, sX, j) for j in range(4)], []),
        (RX, 4096, [ld(xv, 8, sX, j) for j in range(4, 8)],
         ["s_add_u32 s%d, s%d, 128" % (sX, sX), "s_and_b32 s%d, s%d, 1023" % (sX, sX)]),
    ]
    return g


def xitems(g, s):
    off = (((XS0 + s) % 3) - XS0) * 32 * KB
    return g.group_items(g.dma[2], off) + g.group_items(g.dma[3], off)


def witems(g, s):
    return g.group_items(g.dma[0], s * 32 * KB) + g.group_items(g.dma[1], s * 32 * KB)


def setup(a, g):
    RX, RW = g.rings
    a("s_and_b32 s4, s2, 1")
    a("s_lshl_b32 s4, s4, 2")
    a("s_bfe_u32 s5, s2, 0x20003")
    a("s_add_u32 s%d, s4, s5" % sM0)
    a("s_bfe_u32 s4, s2, 0x20001")
    a("s_lshl_b32 s4, s4, 2")
    a("s_bfe_u32 s5, s2, 0x20005")
    a("s_add_u32 s%d, s4, s5" % sN0)
    a("s_lshl_b32 s4, s%d, 13" % S_WAVE)
    a("s_add_u32 s%d, s4, %d" % (RX.sWr, XS0 * 32 * KB))
    a("s_add_u32 s%d, s4, %d" % (RW.sWr, 96 * KB))
    lane_setup(a, T)
    a("s_lshl_b32 s4, s%d, 2" % sM0)
    a("s_add_u32 s4, s4, s%d" % S_WAVE)
    a("s_lshl_b32 s4, s4, 6")
    a("v_add_u32 v%d, s4, v%d" % (T + 2, T))
    a("v_lshl_add_u32 v%d, v%d, 10, v%d" % (T + 2, T + 2, T + 1))
    for j in range(8):
        a("v_add_u32 v%d, %d, v%d" % (xv + j, 8 * j * 1024 - 1024 * (j & 3), T + 2))
    a("v_lshrrev_b32 v%d, 2, v%d" % (T + 2, T))
    a("v_and_b32 v%d, 3, v%d" % (T + 3, T))
    a("v_lshl_add_u32 v%d, v%d, 3, v%d" % (T + 2, T + 2, T + 3))
    a("s_lshl_b32 s4, s%d, 2" % sN0)
    a("s_add_u32 s4, s4, s%d" % S_WAVE)
    a("s_lshl_b32 s4, s4, 7")
    a("v_lshl_add_u32 v%d, v%d, 13, v%d" % (T + 2, T + 2, T + 1))
    a("v_add_u32 v%d, s4, v%d" % (T + 2, T + 2))
    for j in range(8):
        a("v_add_u32 v%d, %d, v%d" % (wv + j, (32 * (j >> 2) + 16 * (j & 1) + 4 * ((j >> 1) & 1)) * 8192 - 1024 * (j & 3), T + 2))
    a("s_and_b32 s6, s2, %d" % (7 if ROT else 0))
    if int(os.environ.get("SK1", 0)):
        a("s_add_u32 s4, s%d, s%d" % (sM0, sN0))
        a("s_lshr_b32 s5, s2, 7")
        a("s_lshl_b32 s5, s5, %d" % int(os.environ.get("SK1V", 1)))
        a("s_add_u32 s4, s4, s5")
        a("s_and_b32 s4, s4, %d" % int(os.environ.get("SK1M", 3)))
        a("s_mul_i32 s4, s4, %d" % int(os.environ.get("SK1", 0)))
        a("s_add_u32 s6, s6, s4")
        a("s_and_b32 s6, s6, 7")
    a("s_lshl_b32 s%d, s6, 7" % sX)
    a("s_lshl_b32 s%d, s6, 19" % sW)
    a("s_waitcnt lgkmcnt(0)")
    srd(a, 8, P_CKV, 2048 * 1024)
    a("s_cmp_lt_u32 s2, 128")
    a("s_cselect_b32 s12, s%d, s%d" % (P_WUK, P_WUV))
    a("s_cselect_b32 s13, s%d, s%d" % (P_WUK + 1, P_WUV + 1))
    a("s_mov_b32 s14, %d" % (512 * 8192))
    a("s_mov_b32 s15, 0x00020000")


def read_bases(a, g):
    a("s_lshr_b32 s4, s%d, 1" % S_WAVE)
    a("s_lshl_b32 s4, s4, 14")
    a("s_add_u32 s4, s4, %d" % (XS0 * 32 * KB))
    xread_base(a, 16, 17, T, "s4")
    a("s_and_b32 s4, s%d, 1" % S_WAVE)
    a("s_lshl_b32 s4, s4, 14")
    a("s_add_u32 s4, s4, %d" % (96 * KB))
    wread_base(a, g.wrd, range(4), T, "s4")


def out_base(a):
    a("s_and_b32 s4, s%d, 1" % S_WAVE)
    a("s_lshl_b32 s5, s%d, 1" % sN0)
    a("s_add_u32 s4, s4, s5")
    a("s_lshr_b32 s5, s%d, 1" % S_WAVE)
    a("s_lshl_b32 s6, s%d, 1" % sM0)
    a("s_add_u32 s5, s5, s6")
    srd(a, 16, P_WS, 32 * MB, WS_KV)
    a("s_lshl_b32 s4, s4, 20")
    a("s_lshl_b32 s5, s5, 16")
    a("s_add_u32 s%d, s4, s5" % sSt)
    a("s_lshr_b32 s4, s2, 7")
    a("s_lshl_b32 s4, s4, 14")
    a("s_add_u32 s%d, s%d, s4" % (sSt, sSt))


def packed(j):
    if j < 8:
        return ('v', 160 + 4 * j)
    if j >= 24:
        return ('v', 224 + 4 * (j - 24))
    return ('v', 128 + 64 * ((j >> 3) - 1) + 4 * (j & 7))


ORDER = list(range(8, 19)) + list(range(8)) + list(range(19, 32))


def pack(kind_, nst=0):
    order, epi = [], []
    for n, j in enumerate(list(range(8, 24)) + list(range(8)) + list(range(24, 32))):
        b0, b1 = ((j >> 2, 2 * (j & 3)), (j >> 2, 2 * (j & 3) + 1)) if kind_ == 'k' else ((2 * (j >> 3), j & 7), (2 * (j >> 3) + 1, j & 7))
        p0, p1 = acc(*b0), acc(*b1)
        idx = [b[1] * 8 + b[0] for b in (b0, b1)]
        order += idx
        L = []
        if p0[0] == 'a':
            src = [64 + 8 * (j - 24) + e for e in range(8)]
            L += ["v_accvgpr_read_b32 v%d, a%d" % (src[e], (p0, p1)[e >> 2][1] + (e & 3)) for e in range(8)]
        else:
            src = [p0[1] + e for e in range(4)] + [p1[1] + e for e in range(4)]
        L += ["v_cvt_pk_bf16_f32 v%d, v%d, v%d" % (packed(j)[1] + e, src[2 * e], src[2 * e + 1]) for e in range(4)]
        epi.append((idx, L))
    for k in range(nst):
        n = min(31, 2 + k * 28 // max(nst, 1))
        assert list(range(8, 24)).index(ORDER[k]) < n if ORDER[k] >= 8 else n > 16 + ORDER[k]
        epi[n] = (epi[n][0], epi[n][1] + trickle(k, k + 1))
    return order, epi


def trickle(k0, k1):
    L = []
    for k in range(k0, k1):
        j = ORDER[k]
        if k == k0 or j >> 2 != ORDER[k - 1] >> 2:
            L.append("s_add_u32 s60, s%d, %d" % (sSt, (j >> 4) * 32768 + ((j >> 2) & 3) * 4096))
        L.append("buffer_store_dwordx4 %s, v2, s[16:19], s60 offen offset:%d%s" % (r4(packed(j)), 1024 * (j & 3), SC1))
    return L


def pf_setup(a, d, so, pa, na, pb, nb):
    cut = (256 * na + na + nb - 1) // (na + nb)
    a("s_cmp_lt_u32 s2, %d" % cut)
    a("s_cselect_b32 s%d, s%d, s%d" % (d, pa, pb))
    a("s_cselect_b32 s%d, s%d, s%d" % (d + 1, pa + 1, pb + 1))
    a("s_cselect_b32 s%d, 0, %d" % (so, cut))
    a("s_mov_b32 s%d, %d" % (d + 2, nb * MB))
    a("s_cselect_b32 s%d, %d, s%d" % (d + 2, na * MB, d + 2))
    a("s_mov_b32 s%d, 0x00020000" % (d + 3))
    a("s_sub_u32 s%d, s2, s%d" % (so, so))
    a("s_lshl_b32 s%d, s%d, 2" % (so, so))
    a("s_add_u32 s%d, s%d, s%d" % (so, so, S_WAVE))
    a("s_mul_i32 s%d, s%d, %d" % (so, so, (na + nb) * 1024))


def pf_items(d, so, n):
    if 'nopf' in GFL or not n:
        return []
    return ["buffer_load_dwordx4 a[192:195], v2, s[%d:%d], s%d offen offset:%d ; @dummy" % (d, d + 3, so, 1024 * i) for i in range(n)] + \
           ["s_add_u32 s%d, s%d, %d" % (so, so, 1024 * n)]
```

```python
from lib import *
from gemm4 import *

FL = set(os.environ.get("AFLAGS", "").split(","))
THR = float(os.environ.get("LTHR", 2.0 ** 64))
AH = int(os.environ.get("AH", 11))
EB = int(os.environ.get("EB", 3))
WG_ = int(os.environ.get("WGRP", 8))

vLane, vL16, vK, vV, vNEG = 1, 2, 3, 4, 5
vT = 6
vNM = 16
vP = 32
vS = 64
vO = 128
aF = 0
aQ = 128
aL = 192
aOne = 208
sHead, sPair = 24, 25
sKV = 20
sCtx = 16
sKm, sVm, sKo, sVo = 26, 27, 28, 29
sMa, sMb, sCnt, sFail = 30, 31, 88, 89
sMask = 32
sT0, sT1 = 4, 5
CST = (128 ** -0.5) * math.log2(math.e)


def Oreg(g, db):
    return ('v', vO + 4 * (8 * g + db))


def Qreg(g, ds):
    return ('a', aQ + 4 * (4 * g + ds))


def ids(a):
    a("s_and_b32 s%d, s2, 7" % sHead)
    a("s_lshr_b32 s4, s2, 6")
    a("s_lshl_b32 s4, s4, 3")
    a("s_add_u32 s%d, s%d, s4" % (sHead, sHead))
    a("s_lshr_b32 s%d, s2, 3" % sPair)
    a("s_and_b32 s%d, s%d, 7" % (sPair, sPair))


def kv_dma(which):
    m, o = (sKm, sKo) if which == 'K' else (sVm, sVo)
    return ["s_mov_b32 m0, s%d" % m] + \
           ["buffer_load_dwordx4 v%d, s[%d:%d], s%d offen offset:%d%s lds" % (vL16, sKV, sKV + 3, o, 1024 * j, SC1L) for j in range(4)]


def gray_mask(t):
    return 0x4000 if t % 2 == 0 else 0x8000


def kv_setup(a):
    a("s_lshl_b32 s4, s%d, 20" % sHead)
    a("s_lshl_b32 s5, s%d, 16" % sPair)
    a("s_sub_u32 s5, %d, s5" % (32 * 32768))
    srd(a, sKV, P_WS, "s5", WS_KV, 4)
    a("s_lshl_b32 s%d, s%d, 12" % (sKo, S_WAVE))
    a("s_add_u32 s%d, s%d, 0xc000" % (sKm, sKo))
    a("s_add_u32 s%d, s%d, 0x10000" % (sVm, sKo))
    a("s_add_u32 s%d, s%d, 0x4000" % (sVo, sKo))


NPF = 0 if 'nopf' in FL else 10


def pf_setup(a):
    a("s_lshl_b32 s4, s2, 2")
    a("s_add_u32 s4, s4, s%d" % S_WAVE)
    a("s_lshl_b32 s6, s4, 13")
    a("s_lshl_b32 s7, s4, 11")
    srd(a, 8, P_WO, 8 * MB)
    srd(a, 12, P_BWO, 2 * MB)


def pf_items():
    L = []
    for i in range(8):
        if i == 4:
            L.append("s_add_u32 s6, s6, 4096")
        L.append("buffer_load_dwordx4 a[64:67], v%d, s[8:11], s6 offen offset:%d ; @dummy" % (vL16, (i % 4) * 1024))
    for i in range(2):
        L.append("buffer_load_dwordx4 a[64:67], v%d, s[12:15], s7 offen offset:%d ; @dummy" % (vL16, i * 1024))
    return L if NPF else []


def kv_prologue_items(part=None):
    L = []
    tk = tv = 0
    for i, w in enumerate("KKVKVKV"):
        if i == 3 and part is not None:
            if part == 0:
                return L
            L = []
        L += kv_dma(w)
        if w == 'K':
            L += ["s_xor_b32 s%d, s%d, 0x%x" % (sKm, sKm, gray_mask(tk)), "s_add_u32 s%d, s%d, 0x8000" % (sKo, sKo)]
            tk += 1
        else:
            L += ["s_xor_b32 s%d, s%d, 0x%x" % (sVm, sVm, gray_mask(tv)), "s_add_u32 s%d, s%d, 0x8000" % (sVo, sVo)]
            tv += 1
    return L


def qk_frags(kindq, half, sb):
    F = []
    if kindq is None:
        return F
    dbl = kindq[0] == 'D'
    gs = [0, 1, 2, 3] if dbl else [2, 3]
    if kindq.endswith("'"):
        gs = gs[1:]
    c0 = kindq.endswith("0")
    for jb in range(2 if dbl else 4):
        for ds in range(4):
            ms = []
            for g in gs:
                blk = (2 * g + jb) if dbl else (2 * (2 * (jb >> 1) + g - 2) + (jb & 1))
                ms.append((('v', sb + 4 * blk), Qreg(g, ds), ("0" if c0 else ('v', vNM + 4 * g)) if ds == 0 else None))
            F.append(('K', ((2 * half + jb) if dbl else jb) * 4096 + ds * 1024, ms))
    return F


def pv_frags(kindp, half, pb):
    F = []
    if kindp is None:
        return F, []
    dbl = kindp[0] == 'D'
    gs = [0, 1, 2, 3] if dbl else [2, 3]
    if kindp.endswith("'"):
        gs = gs[1:]
    sums = []
    for kc in range(1 if dbl else 2):
        for g in gs:
            pi = g if dbl else 2 * kc + g - 2
            sums.append(mfma(('a', aL + 4 * g), ('a', aOne), ('v', pb + 4 * pi)))
        for db in range(8):
            ms = [(Oreg(g, db), ('v', pb + 4 * (g if dbl else 2 * kc + g - 2)), None) for g in gs]
            F.append(('V', (half if dbl else kc) * 8192 + db * 1024, ms))
    return F, sums


def sm_items(sm, sb, pb):
    out = []
    if sm is None:
        return out
    for i in range(4):
        masks = []
        if sm != 'p':
            if sm[0] == 'D':
                gq, jbs = i, [2 * sm[1], 2 * sm[1] + 1]
                lvl = sm[1] >> 1
                if i >= 2:
                    gq = 99
            else:
                gq, jbs = i & 1, [4 * sm[1] + 2 * (i >> 1), 4 * sm[1] + 2 * (i >> 1) + 1]
                lvl = sm[1]
            if lvl > gq:
                continue
            if lvl == gq:
                for e, j16 in enumerate(jbs):
                    for r in range(4):
                        x = sb + 8 * i + 4 * e + r
                        m = sMask + 2 * (4 * (j16 & 3) + r)
                        masks.append((x, "v_cndmask_b32 v%d, v%d, v%d, s[%d:%d]" % (x, x, vNEG, m, m + 1)))
        exps = ["v_exp_f32 v%d, v%d" % (sb + 8 * i + e, sb + 8 * i + e) for e in range(8)]
        cvts = ["v_cvt_pk_bf16_f32 v%d, v%d, v%d" % (pb + 4 * i + e, sb + 8 * i + 2 * e, sb + 8 * i + 2 * e + 1) for e in range(4)]
        out.append((dict(masks), exps, cvts))
    return out


class Rnd:
    def __init__(self, par, qk, sm, pv, bar=False, issK=None, issV=None, togK=None, togV=None, togVpre=None):
        self.par, self.qk, self.sm, self.pv, self.bar = par, qk, sm, pv, bar
        self.issK, self.issV, self.togK, self.togV, self.togVpre = issK, issV, togK, togV, togVpre
        self.vm = None
        self.xdma = []
        self.xq = []
        self.after_bar = None
        self.first = False

    def frags(self):
        par = self.par
        Fq = qk_frags(self.qk, par ^ 1, vS + 32 * (par ^ 1))
        Fp, sums = pv_frags(self.pv, par ^ 1, vP + 16 * (par ^ 1))
        return Fq, Fp, sums


def fread(ring, off, slot, tag):
    return "ds_read_b128 %s, v%d offset:%d ; @%s" % (a4(aF + 4 * (slot % 16)), vK if ring == 'K' else vV, off, tag)


def tog(reg, m):
    return "v_xor_b32 v%d, %s, v%d" % (reg, m, reg)


def emit_round(a, R, nxt, ph, pend, extra_scal=None):
    Fq, Fp, sums = R.frags()
    F = Fq + Fp
    nF = len(F)
    Fn = []
    if nxt is not None:
        q, p, _ = nxt.frags()
        Fn = (q + p)[:AH]
    mf = []
    first = []
    si = 0
    for i, (ring, off, ms) in enumerate(F):
        first.append(len(mf))
        for d, b, c in ms:
            mf.append(mfma(d, ('a', aF + 4 * ((ph + i) % 16)), b, c))
        if ring == 'V' and si < len(sums):
            per = len(sums) * 8 // len(Fp)
            k = i - len(Fq)
            if (k % 8) < per:
                mf.append(sums[si])
                si += 1
    assert si == len(sums)
    sg = Seg(mf)
    n = sg.n
    if R.bar:
        if not EB or R.first:
            sg.pre.append("s_waitcnt vmcnt(%d)" % R.vm)
            sg.pre.append("s_barrier")
        sg.pre.append("AFTERBAR")
    if EB and nxt is not None and nxt.bar:
        sg.put(n - EB, "s_waitcnt vmcnt(%d)\ns_barrier" % R.vm)
        sg.used[n - EB] = 8
    grp = 4 if len(F[0][2]) >= 3 else WG_
    i = 0
    dead = {}
    while i < nF:
        gsz = 4 if len(F[i][2]) != 2 else WG_
        j = min(nF - 1, i + gsz - 1, i + AH - 3)
        for x in range(i, j + 1):
            dead[x] = first[i] - 2
        w = "WAIT f%d" % (ph + j)
        if first[i] == 0:
            sg.pre.append(w)
        else:
            sg.put(first[i] - 1, w)
        i = j + 1
    SM = sm_items(R.sm, vS + 32 * R.par, vP + 16 * R.par)
    nexp = 8 * len(SM)
    eg = []
    if nexp:
        last = 0
        k = 0
        for masks, exps, cvts in SM:
            for e, x in enumerate(exps):
                want = (k * (n - 2)) // nexp
                reg = int(x.split()[1][1:-1])
                want = max(want, last)
                if reg in masks:
                    want = max(want, 1)
                g = sg.place(x, want, lo=last)
                eg.append(g)
                last = g
                k += 1
    items = list(R.xdma)
    if R.issK is not None:
        items += kv_dma('K') + ["s_xor_b32 s%d, s%d, %s" % (sKm, sKm, R.issK), "s_add_u32 s%d, s%d, 0x8000" % (sKo, sKo)]
    if R.issV is not None:
        items += kv_dma('V') + ["s_xor_b32 s%d, s%d, %s" % (sVm, sVm, R.issV), "s_add_u32 s%d, s%d, 0x8000" % (sVo, sVo)]
    if 'nodma' in FL:
        items = [x for x in items if kind(x) != 'd']
    if items:
        place_dma(sg, items, 0, n - 3 - EB) if any(kind(x) == 'd' for x in items) else [sg.place(x, 0) for x in items]
    last = 0
    seq = [(j, F[j], False) for j in range(min(AH, nF), nF)] + [(nF + j, f, True) for j, f in enumerate(Fn)]
    prevK = prevV = False
    doneTK = doneTV = doneTVp = False
    lastV = max([j for j, f, nx in seq if f[0] == 'V' and not nx], default=-1)
    for j, f, nx in seq:
        src = j - AH
        want = first[src] if src < nF else n - 1
        lo = last
        if j - 16 >= 0:
            lo = max(lo, (first[j - 15] - 1) if j - 15 < nF else n - 1)
        tg = None
        if f[0] == 'K' and nx and R.togK and not doneTK:
            tg, doneTK = tog(vK, R.togK), True
        if f[0] == 'V' and nx and R.togV and not doneTV:
            tg, doneTV = tog(vV, R.togV), True
        if tg:
            g = sg.place(tg, max(lo, want - 1), lo=lo)
            lo = min(n - 1, g + 1)
            if g == n - 1:
                sg.end[g].append(fread(f[0], f[1], ph + j, "f%d" % (ph + j)))
                last = g
                continue
        if sg.end[last] and any(x.startswith("ds_") for x in sg.end[last]):
            sg.end[last].append(fread(f[0], f[1], ph + j, "f%d" % (ph + j)))
            continue
        hi = dead.get(j)
        assert hi is None or hi >= lo, (j, lo, hi)
        g = sg.place(fread(f[0], f[1], ph + j, "f%d" % (ph + j)), max(want, lo), lo=lo, hi=hi)
        last = g
        if j == lastV and R.togV and not doneTV and not any(x[1][0] == 'V' and x[2] for x in seq):
            doneTV = True
            sg.place(tog(vV, R.togV), g, lo=g)
    if R.togV and not doneTV:
        sg.place(tog(vV, R.togV), 0)
    assert not (R.togK and not doneTK and nxt is not None and nxt.qk), "togK unused"
    k = 0
    for masks, exps, cvts in SM:
        for e, x in enumerate(exps):
            reg = int(x.split()[1][1:-1])
            if reg in masks:
                g = eg[k + e]
                q = g - 1
                while q >= 0 and not sg.room(q, 'c'):
                    q -= 1
                if q < 0:
                    sg.c[g].insert(0, masks[reg])
                    sg.used[g] += 4
                else:
                    sg.put(q, masks[reg])
        for e, x in enumerate(cvts):
            g = eg[k + 2 * e + 1]
            if g + 1 <= n - 1:
                sg.place(x, g + 1, lo=g + 1)
            else:
                sg.end[n - 1].append(x)
        k += 8
    for x in (extra_scal or []):
        if x.startswith("s_cmp"):
            sg.end[n - 1].append(x)
        else:
            sg.place(x, n // 2)
    L, pend = resolve_waits(sg.lines(), pend)
    for x in L:
        if x == "AFTERBAR":
            if R.after_bar:
                R.after_bar()
            continue
        a(x)
    nph = (ph + nF) % 16
    pend = ["f%d" % (int(t[1:]) - (ph + nF) + nph) for t in pend]
    R.cost = sg.cost()
    return nph, pend


def ctx_base(a, srow):
    a("s_lshl_b32 s4, s%d, 20" % srow)
    a("s_lshl_b32 s5, s%d, 15" % sHead)
    a("s_add_u32 s4, s4, s5")
    a("s_lshl_b32 s5, s%d, 11" % S_WAVE)
    a("s_add_u32 s4, s4, s5")


def epilogue(a, gs, srow):
    ctx_base(a, srow)
    for k, g in enumerate(gs):
        a("v_accvgpr_read_b32 v%d, a%d" % (vT + 2 * k, aL + 4 * g))
    a("s_mov_b32 s5, 0x%08x" % f32bits(THR))
    for k, g in enumerate(gs):
        a("v_cmp_ngt_f32 vcc, s5, v%d" % (vT + 2 * k))
        a("v_rcp_f32 v%d, v%d" % (vT + 2 * k, vT + 2 * k))
        a("s_or_b32 s%d, s%d, vcc_lo" % (sFail, sFail))
        a("s_or_b32 s%d, s%d, vcc_hi" % (sFail, sFail))
        a("v_mov_b32 v%d, v%d" % (vT + 2 * k + 1, vT + 2 * k))
    store_O(a, gs)


def store_O(a, gs):
    for ds in range(4):
        for k, g in enumerate(gs):
            b = vO + 4 * (8 * g + 2 * ds)
            for e in range(0, 8, 2):
                a("v_pk_mul_f32 v[%d:%d], v[%d:%d], v[%d:%d]" % (b + e, b + e + 1, b + e, b + e + 1, vT + 2 * k, vT + 2 * k + 1))
            for e in range(4):
                a("v_cvt_pk_bf16_f32 v%d, v%d, v%d" % (b + e, b + 2 * e, b + 2 * e + 1))
            a("buffer_store_dwordx4 %s, v%d, s[%d:%d], s4 offen offset:%d%s" % (v4(b), vL16, sCtx, sCtx + 3, (g & 1) * 1024, SC1))
        if ds < 3:
            a("s_add_u32 s4, s4, 8192")


def rowmax(a, src, t0, t1):
    a("v_max3_f32 v%d, v%d, v%d, v%d" % (t0, src, src + 1, src + 2))
    a("v_max3_f32 v%d, v%d, v%d, v%d" % (t1, src + 3, src + 4, src + 5))
    a("v_max3_f32 v%d, v%d, v%d, v%d" % (t0, t0, src + 6, src + 7))
    a("v_max_f32 v%d, v%d, v%d" % (t0, t0, t1))


def xmax(a, pairs):
    for op in ("v_permlane32_swap_b32", "v_permlane16_swap_b32"):
        for t0, t1 in pairs:
            a("v_mov_b32 v%d, v%d" % (t1, t0))
        for t0, t1 in pairs:
            a("%s v%d, v%d" % (op, t0, t1))
        for t0, t1 in pairs:
            a("v_max_f32 v%d, v%d, v%d" % (t0, t0, t1))


def plan(p):
    pass


def build_rounds():
    g0, g1 = "0x4000", "0x8000"
    R = {}
    R['c0'] = Rnd(0, 'D', 'p', None, bar=True, togK=g0)
    R['lo'] = Rnd(1, 'D', 'p', 'D')
    R['le'] = Rnd(0, 'D', 'p', 'D', bar=True, issK="s%d" % sMb, issV="s%d" % sMa, togK="s%d" % sMa, togV="s%d" % sMb)
    R['d0'] = Rnd(0, 'D', ('D', 0), 'D', bar=True, issK=g1, issV=g0, togK=g0, togV=g1)
    R['d1'] = Rnd(1, "D'", ('D', 1), 'D')
    R['d2'] = Rnd(0, "D'", ('D', 2), 'D', bar=True, issK=g0, issV=g1, togK=g1, togV=g0)
    R['d3'] = Rnd(1, 'S', ('D', 3), "D'", bar=True, issK=g1, issV=g0, togK=g0)
    R['t0'] = Rnd(0, 'S', 'p', "D'", bar=True, issK=g0, togK=g1, togV=g1)
    R['t7'] = Rnd(0, "S'", ('S', 0), "D'", bar=True, togV=g1)
    R['so'] = Rnd(1, 'S', 'p', 'S', bar=True, issK=g1, issV=g1, togK=g0, togV=g0)
    R['se'] = Rnd(0, 'S', 'p', 'S', bar=True, issK=g0, issV=g0, togK=g1, togV=g1)
    R['e0'] = Rnd(0, "S'", ('S', 0), 'S', bar=True, togV=g1)
    R['e1'] = Rnd(1, None, ('S', 1), 'S', bar=True, togV=g0)
    R['e2'] = Rnd(0, None, None, "S'")
    R['c0'].first = True
    R['c0'].xdma = kv_prologue_items(part=1)
    R['c0'].xq = [x for x in [('K', 2), ('V', 1), ('K', 3), ('V', 2)] for _ in range(4)]
    R['d1'].xdma = pf_items()
    R['d1'].xq = [('pf', 0)] * NPF
    return R


def path(p):
    seq = ['c0']
    if p:
        seq += ['lo', 'le'] * (2 * p - 1) + ['lo', 'd0']
    seq += ['d1', 'd2', 'd3']
    if p == 7:
        seq += ['t7', 'EPI']
    else:
        ns = 2 * (15 - 2 * p)
        seq += ['t0', 'EPI'] + ['so', 'se'] * ((ns - 4) // 2) + ['so', 'e0']
    seq += ['e1', 'e2']
    return seq


def simulate(R, q0):
    need = {}
    for p in range(8):
        seq = path(p)
        nd = 4 * p + 4
        ktile = lambda c: c // 2 if c < nd else nd // 2 + (c - nd)
        q = list(q0)
        nk, nv = 4, 3
        rounds = [k for k in seq if k != 'EPI']
        reads = []
        for c, k in enumerate(rounds):
            r = set()
            if R[k].qk:
                r.add(('K', ktile(c + 1)))
            if R[k].pv:
                r.add(('V', ktile(c - 1)))
            reads.append(r)
        full = []
        for c, k in enumerate(rounds):
            r = set(reads[c])
            if c + 1 < len(rounds):
                nx = R[rounds[c + 1]]
                fq, fp, _ = nx.frags()
                for f in (fq + fp)[:AH]:
                    r.add(('K', ktile(c + 2)) if f[0] == 'K' else ('V', ktile(c)))
            full.append(r)
        c = 0
        epi = False
        kaddr, vaddr = 0, 0
        for k in seq:
            if k == 'EPI':
                epi = True
                continue
            r = R[k]
            if r.bar:
                e = c + 1
                while e < len(rounds) and not R[rounds[e]].bar:
                    e += 1
                req = set().union(*full[c:e])
                idx = max(i for i, x in enumerate(q) if x in req)
                assert all(x in q for x in req), (p, k, req)
                key = rounds[c - 1] if (c and EB) else k
                if epi and not EB:
                    q += [('st', 0)] * 8
                    epi = False
                need[key] = min(need.get(key, 63), 0 if k == 'e1' else len(q) - 1 - idx)
                lastbar = c
            if epi:
                q += [('st', 0)] * 8
                epi = False
            q += r.xq
            if k == 'd2':
                pass
            for w, iss in (('K', r.issK), ('V', r.issV)):
                if iss is not None:
                    t = nk if w == 'K' else nv
                    for cc in range(lastbar, len(rounds)):
                        assert (w, t - 4) not in full[cc], (p, k, w, t)
                    if iss.startswith("0x"):
                        assert int(iss, 16) == gray_mask(t), (p, k, w, t)
                    q += [(w, t)] * 4
                    if w == 'K':
                        nk += 1
                    else:
                        nv += 1
            if r.qk:
                assert kaddr == ktile(c + 1), (p, k, kaddr)
            if r.pv:
                assert vaddr == ktile(c - 1), (p, k, vaddr, ktile(c - 1))
            if r.togK:
                if r.togK.startswith("0x"):
                    assert int(r.togK, 16) == gray_mask(kaddr), (p, k)
                kaddr += 1
            if r.togV:
                if r.togV.startswith("0x"):
                    assert int(r.togV, 16) == gray_mask(vaddr), (p, k)
                vaddr += 1
            c += 1
    for k, v in need.items():
        if EB and k == 'c0':
            R[k].vm0 = v
        R[k].vm = v
    return need


def setup1(a):
    a("v_add_u32 v%d, 0xc000, v%d" % (vK, vL16))
    a("v_add_u32 v%d, 0x10000, v%d" % (vV, vL16))
    a("v_mov_b32 v%d, 0xf149f2ca" % vNEG)
    a("s_mov_b32 s%d, 0" % sFail)
    a("v_mfma_f32_32x32x16_bf16 a[%d:%d], a[236:239], a[236:239], 0" % (aL, aL + 15))


def setup2(a):
    if NPF:
        pf_setup(a)
    srd(a, sCtx, P_WS, 16 * MB, WS_CTX)
    a("v_and_b32 v%d, 15, v1" % vT)
    a("v_lshrrev_b32 v%d, 4, v1" % (vT + 1))
    a("v_sub_u32 v%d, v%d, v%d" % (vT, vT, vT + 1))
    a("v_lshlrev_b32 v%d, 2, v%d" % (vT, vT))
    a("v_add_u32 v%d, s%d, v%d" % (vT, S_WAVE, vT))
    for j in range(4):
        for r in range(4):
            m = sMask + 2 * (4 * j + r)
            a("v_cmp_gt_i32 s[%d:%d], %d, v%d" % (m, m + 1, 16 * j + r, vT))
    a("s_mov_b32 s%d, 0x8000" % sMa)
    a("s_mov_b32 s%d, 0x4000" % sMb)


def attention(a, st, H):
    R = build_rounds()
    for k in ('e0', 't7'):
        R[k].xdma, R[k].xq = H.pre_e1(), [('fl', 0)]
    R['e1'].xdma, R['e2'].xdma = H.e1_items(), H.e2_items()
    simulate(R, H.q0)
    a("s_waitcnt vmcnt(%d)" % (len(H.q0) - 1 - max(i for i, t in enumerate(H.q0) if t == ('K', 0))))
    a("s_barrier")
    st(a)
    fq = qk_frags('D0', 0, vS)
    c0q, c0p, _ = R['c0'].frags()
    nx = (c0q + c0p)[:AH]
    assert len(nx) == 8
    sg = Seg([mfma(d, ('a', aF + 4 * (8 + j)), b, c) for j, (ring, off, ms) in enumerate(fq) for d, b, c in ms])
    sg.pre = [fread('K', fq[j][1], 8 + j, "f%d" % (8 + j)) for j in range(8)] + ["WAIT f9"]
    for j in range(8):
        if j and j % 2 == 0:
            sg.put(4 * j - 1, "WAIT f%d" % (9 + j))
        sg.put(4 * j + 3, fread('K', nx[j][1], 16 + j, "f%d" % (16 + j)))
    c = Col()
    setup2(c)
    g = 0
    for k, x in enumerate(c):
        if "s_addc" in x:
            continue
        if k + 1 < len(c) and "s_addc" in c[k + 1]:
            x += "\n" + c[k + 1]
        g = sg.place(x, g, lo=g)
        if kind(x) == 's' and k + 1 < len(c) and kind(c[k + 1]) != 's':
            g += 1
    L = sg.lines()
    L, pend = resolve_waits(L, [])
    for x in L:
        a(x)
    pend = ["f%d" % (int(t[1:]) - 16) for t in pend]
    a("s_cmp_lg_u32 s%d, 0" % sPair)
    a("s_cbranch_scc1 La_nomask0")
    for reg, x in sm_items(('D', 0), vS, vP)[0][0].items():
        a(x)
    a.label("La_nomask0")
    for g in range(4):
        rowmax(a, vS + 8 * g, vT + 2 * g, vT + 2 * g + 1)
    xmax(a, [(vT + 2 * g, vT + 2 * g + 1) for g in range(4)])
    for g in range(4):
        for r in range(4):
            a("v_sub_f32 v%d, 0, v%d" % (vNM + 4 * g + r, vT + 2 * g))
    for g in range(4):
        for e in range(0, 8, 2):
            b = vS + 8 * g + e
            a("v_pk_add_f32 v[%d:%d], v[%d:%d], v[%d:%d]" % (b, b + 1, b, b + 1, vNM + 4 * g, vNM + 4 * g + 1))
    state = {}

    def rnd(k, nk, ph, pend, extra=None):
        assert len(pend) <= 15
        return emit_round(a, R[k], R[nk] if nk else None, ph, pend, extra)

    def join(k, ph, pend):
        if k in state:
            assert state[k] == (ph, pend), (k, state[k], ph, pend)
        state[k] = (ph, list(pend))
    a("s_lshl_b32 s%d, s%d, 1" % (sCnt, sPair))
    ph, pend = rnd('c0', 'lo', 0, pend, ["s_cmp_eq_u32 s%d, 0" % sPair])
    join('lo', ph, pend)
    join('d1', ph, pend)
    a("s_cbranch_scc1 La_d1")
    a(".p2align 6")
    a.label("La_lo")
    ph, pend = rnd('lo', 'le', ph, pend, ["s_sub_u32 s%d, s%d, 1" % (sCnt, sCnt), "s_cmp_eq_u32 s%d, 0" % sCnt])
    join('d0', ph, pend)
    a("s_cbranch_scc1 La_d0")
    ph, pend = rnd('le', 'lo', ph, pend)
    a("s_xor_b32 s%d, s%d, 0xc000" % (sMa, sMa))
    a("s_xor_b32 s%d, s%d, 0xc000" % (sMb, sMb))
    join('lo', ph, pend)
    a("s_branch La_lo")
    a.label("La_d0")
    ph, pend = state['d0']
    ph, pend = rnd('d0', 'd1', ph, pend)
    join('d1', ph, pend)
    a.label("La_d1")
    ph, pend = rnd('d1', 'd2', ph, pend)
    ph, pend = rnd('d2', 'd3', ph, pend)
    H.after_d2()
    ph, pend = rnd('d3', 't0', ph, pend, ["s_cmp_eq_u32 s%d, 7" % sPair])
    join('t7', ph, pend)
    a("s_cbranch_scc1 La_t7")
    ph, pend = rnd('t0', 'so', ph, pend)
    st(a)
    epilogue(a, [0, 1], sPair)
    st(a)
    a("s_lshl_b32 s%d, s%d, 1" % (sCnt, sPair))
    a("s_sub_u32 s%d, 14, s%d" % (sCnt, sCnt))
    join('so', ph, pend)
    a(".p2align 6")
    a.label("La_so")
    ph, pend = rnd('so', 'se', ph, pend, ["s_sub_u32 s%d, s%d, 1" % (sCnt, sCnt), "s_cmp_eq_u32 s%d, 0" % sCnt])
    join('e0', ph, pend)
    a("s_cbranch_scc1 La_e0")
    ph, pend = rnd('se', 'so', ph, pend)
    join('so', ph, pend)
    a("s_branch La_so")
    a.label("La_t7")
    ph, pend = state['t7']
    ph, pend = rnd('t7', 'e1', ph, pend)
    if st.on:
        st.k -= 2
    st(a)
    epilogue(a, [0, 1], sPair)
    st(a)
    join('e1', ph, pend)
    a("s_branch La_e1")
    a.label("La_e0")
    ph, pend = state['e0']
    ph, pend = rnd('e0', 'e1', ph, pend)
    join('e1', ph, pend)
    a.label("La_e1")
    R['e1'].after_bar = H.at_e1
    ph, pend = rnd('e1', 'e2', ph, pend)
    ph, pend = rnd('e2', None, ph, pend)
    st(a)
    a("s_sub_u32 s%d, 15, s%d" % (sCnt, sPair))
    epilogue(a, [2, 3], sCnt)
    slow_path(a)
    if 'v' in FL:
        for k, r in R.items():
            print(k, "vm", r.vm, "cost", r.cost, file=sys.stderr)


def slow_path(a):
    vM, vLs, vD = vNM, vNM + 8, vNM + 4
    sRbk, sCh, sOff = 6, 7, 90
    a("s_cmp_eq_u32 s%d, 0" % sFail)
    a("s_cbranch_scc1 La_done")
    a("s_waitcnt vmcnt(0)")
    a("s_sub_u32 s%d, 15, s%d" % (sRbk, sPair))
    a.label("La_sl_blk")
    for i in range(64):
        a("v_mov_b32 v%d, 0" % (vO + 64 + i))
    for i in range(8):
        a("v_mov_b32 v%d, 0" % (vLs + i))
    a("v_mov_b32 v%d, v%d" % (vM, vNEG))
    a("v_mov_b32 v%d, v%d" % (vM + 1, vNEG))
    a("v_and_b32 v%d, 15, v1" % vD)
    a("v_lshrrev_b32 v%d, 4, v1" % (vD + 1))
    a("v_sub_u32 v%d, v%d, v%d" % (vD, vD, vD + 1))
    a("v_lshlrev_b32 v%d, 2, v%d" % (vD, vD))
    a("s_lshl_b32 s4, s%d, 7" % sRbk)
    a("s_add_u32 s4, s4, s%d" % S_WAVE)
    a("v_add_u32 v%d, s4, v%d" % (vD, vD))
    a("v_add_u32 v%d, 64, v%d" % (vD + 1, vD))
    a("s_add_u32 s%d, s%d, 1" % (sCh, sRbk))
    a("s_lshl_b32 s%d, s%d, 2" % (sCh, sCh))
    a("s_mov_b32 s%d, 0" % sOff)
    a.label("La_sl_loop")
    for i in range(16):
        if i % 4 == 0:
            a("s_add_u32 s4, s%d, %d" % (sOff, (i // 8) * 16384 + ((i // 4) & 1) * 4096))
        a("buffer_load_dwordx4 %s, v%d, s[%d:%d], s4 offen offset:%d%s" % (a4(4 * i), vL16, sKV, sKV + 3, (i % 4) * 1024, SC1))
    a("s_waitcnt vmcnt(0)")
    for jb in range(2):
        for ds in range(4):
            for k in range(2):
                a(mfma(('v', vS + 8 * k + 4 * jb), ('a', 4 * (4 * jb + ds)), Qreg(2 + k, ds), "0" if ds == 0 else None))
    for k in range(2):
        for jb in range(2):
            for r in range(4):
                x = vS + 8 * k + 4 * jb + r
                a("v_cmp_gt_i32 vcc, %d, v%d" % (16 * jb + r, vD + k))
                a("v_cndmask_b32 v%d, v%d, v%d, vcc" % (x, x, vNEG))
        a("v_subrev_u32 v%d, 32, v%d" % (vD + k, vD + k))
        rowmax(a, vS + 8 * k, vT + 2 * k, vT + 2 * k + 1)
    xmax(a, [(vT + 2 * k, vT + 2 * k + 1) for k in range(2)])
    for k in range(2):
        a("v_max_f32 v%d, v%d, v%d" % (vT + 2 * k, vT + 2 * k, vM + k))
        a("v_sub_f32 v%d, v%d, v%d" % (vT + 2 * k + 1, vM + k, vT + 2 * k))
        a("v_exp_f32 v%d, v%d" % (vT + 2 * k + 1, vT + 2 * k + 1))
        a("v_mov_b32 v%d, v%d" % (vM + k, vT + 2 * k))
        for e in range(8):
            a("v_sub_f32 v%d, v%d, v%d" % (vS + 8 * k + e, vS + 8 * k + e, vM + k))
        for e in range(8):
            a("v_exp_f32 v%d, v%d" % (vS + 8 * k + e, vS + 8 * k + e))
        for e in range(4):
            a("v_mul_f32 v%d, v%d, v%d" % (vLs + 4 * k + e, vLs + 4 * k + e, vT + 2 * k + 1))
        for e in range(32):
            x = vO + 64 + 32 * k + e
            a("v_mul_f32 v%d, v%d, v%d" % (x, x, vT + 2 * k + 1))
        for e in range(4):
            a("v_cvt_pk_bf16_f32 v%d, v%d, v%d" % (vP + 4 * k + e, vS + 8 * k + 2 * e, vS + 8 * k + 2 * e + 1))
    for k in range(2):
        a(mfma(('v', vLs + 4 * k), ('a', aOne), ('v', vP + 4 * k)))
        for db in range(8):
            a(mfma(Oreg(2 + k, db), ('a', 32 + 4 * db), ('v', vP + 4 * k)))
    a("s_add_u32 s%d, s%d, 8192" % (sOff, sOff))
    a("s_and_b32 s4, s%d, 0x4000" % sOff)
    a("s_add_u32 s%d, s%d, s4" % (sOff, sOff))
    a("s_sub_u32 s%d, s%d, 1" % (sCh, sCh))
    a("s_cmp_lg_u32 s%d, 0" % sCh)
    a("s_cbranch_scc1 La_sl_loop")
    ctx_base(a, sRbk)
    for k in range(2):
        a("v_rcp_f32 v%d, v%d" % (vT + 2 * k, vLs + 4 * k))
        a("v_mov_b32 v%d, v%d" % (vT + 2 * k + 1, vT + 2 * k))
    store_O(a, [2, 3])
    a("s_cmp_eq_u32 s%d, s%d" % (sRbk, sPair))
    a("s_cbranch_scc1 La_done")
    for i in range(32):
        a("v_accvgpr_read_b32 v%d, a%d" % (vS + i, aQ + i))
    for i in range(32):
        a("v_accvgpr_write_b32 a%d, v%d" % (aQ + 32 + i, vS + i))
    a("s_mov_b32 s%d, s%d" % (sRbk, sPair))
    a("s_branch La_sl_blk")
    a.label("La_done")
```

```python
from lib import *


class Ring:
    def __init__(self, NS, slot, sbase):
        self.NS, self.slot = NS, slot
        self.sWr, self.sRd, self.sRdD, self.sC = sbase, sbase + 1, sbase + 2, sbase + 3
        self.regs = []

    def init(self):
        return ["s_mov_b32 s%d, 0" % self.sRd,
                "s_mov_b32 s%d, %d" % (self.sC, (-(self.NS - 1) * self.slot) & 0xffffffff),
                "s_mov_b32 s%d, %d" % (self.sC + 1, self.slot)]

    def adv(self, wr):
        sc = []
        if wr:
            sc.append("s_add_u32 s%d, s%d, s%d" % (self.sWr, self.sWr, self.sRdD))
        if self.NS == 2:
            sc.append("s_sub_u32 s%d, 0, s%d" % (self.sRdD, self.sRdD))
        else:
            sc += ["s_add_u32 s%d, s%d, 1" % (self.sRd, self.sRd),
                   "s_cmp_eq_u32 s%d, %d\ns_cselect_b32 s%d, 0, s%d\ns_cselect_b32 s%d, s%d, s%d" % (
                       self.sRd, self.NS, self.sRd, self.sRd, self.sRdD, self.sC, self.sC + 1)]
        return sc, ["v_add_u32 v%d, s%d, v%d" % (r, self.sRdD, r) for r in self.regs]


def place_dma(sg, items, g0, g1):
    nd = sum(1 for x in items if kind(x) == 'd')
    k = 0
    last = g0
    for x in items:
        if kind(x) == 'd':
            want = g0 + (k * (g1 - g0 + 1)) // nd
            k += 1
            if sg.end[last]:
                sg.end[last].append(x)
                continue
            g = sg.place(x, max(want, last), lo=last)
            last = g
        else:
            g = min(last + 1, sg.n - 1) if sg.d[last] else last
            if sg.d[g] or sg.end[g]:
                sg.end[g].append(x)
            else:
                g = sg.place(x, g, lo=g)
                if sg.d[g]:
                    raise RuntimeError("scalar placed before an earlier load")
            last = g
            if "m0" in x and not sg.end[g]:
                last = min(g + 1, sg.n - 1)
                if last == g:
                    sg.end[g].append("s_nop 0")
    return last


class Gemm:
    xlin = False
    woff = 0
    pf = []

    def fxr(self, h, i):
        return ('a', self.fx + 4 * (h * len(self.xfr) + i))

    def fwr(self, h, i):
        return ('a', self.fw + 4 * (h * len(self.wfr) + i))

    def mfmas(self, h, first=False):
        L = []
        for acc, xi, wi, o in self.mf:
            x, w = self.fxr(h, xi), self.fwr(h, wi)
            L.append(mfma(acc, w, x, "0" if first else None) if o == 'wx' else mfma(acc, x, w, "0" if first else None))
        return L

    def reads(self, h):
        L = []
        seen = set()
        for acc, xi, wi, o in self.mf:
            if ('x', xi) not in seen:
                seen.add(('x', xi))
                st, imm = self.xfr[xi]
                if self.xlin:
                    L.append("ds_read_b128 %s, v%d offset:%d" % (r4(self.fxr(h, xi)), self.xrd[st][0], imm + h * self.xhs))
                else:
                    L.append("ds_read_b128 %s, v%d offset:%d" % (r4(self.fxr(h, xi)), self.xrd[st][h], imm))
            if ('w', wi) not in seen:
                seen.add(('w', wi))
                nb, imm = self.wfr[wi]
                b = self.fwr(h, wi)[1]
                for j in range(2):
                    L.append("ds_read_b64_tr_b16 a[%d:%d], v%d offset:%d" % (b + 2 * j, b + 2 * j + 1, self.wrd[nb], self.woff + imm + h * 4096 + j * 2048))
        return L

    def group_items(self, grp, off=0):
        ring, m0, ins, post = grp
        if isinstance(m0, tuple):
            L = ["s_add_u32 m0, s%d, s%d" % (ring.sWr, m0[1]) + ("\ns_add_u32 m0, m0, %d" % off if off else "")]
        else:
            m0 += off
            L = ["s_add_u32 m0, s%d, %d" % (ring.sWr, m0) if m0 else "s_mov_b32 m0, s%d" % ring.sWr]
        return L + ins + post

    def dma_items(self):
        return [x for g in self.dma for x in self.group_items(g)]

    def issue_seq(self, it):
        return [(g, it - 1 + g[0].NS) for g in self.dma if it - 1 + g[0].NS >= 0]

    def prologue_items(self):
        L = []
        for it in range(-(max(r.NS for r in self.rings) - 1), 1):
            for g, s in self.issue_seq(it):
                L += self.group_items(g, s * g[0].slot)
        return L

    def nprologue(self):
        return sum(1 for x in self.prologue_items() if kind(x) == 'd')

    def vm(self, s, nst):
        q = []
        for it in range(-8, max(s, 1)):
            for g, st in self.issue_seq(it):
                if st < nst:
                    q += [st] * len(g[2])
        idx = max(i for i, st in enumerate(q) if st <= s)
        return len(q) - 1 - idx

    def half(self, a, h, first=False, rd=True, dma=None, adv=False, extra=None, wr=True, rdg=None):
        sg = Seg(self.mfmas(h, first))
        n = sg.n
        lastd = 0
        nadv = sum(len(r.regs) for r in self.rings)
        if dma:
            lastd = place_dma(sg, dma, 0, n - 2 - ((nadv // 2 + 3) if adv and n > 8 else 0))
        lastr = 0
        if rd and 'noreads' not in GFL:
            R = (rdg or self).reads(h ^ 1)
            g1 = max(len(R) // 2, n - int(os.environ.get('RDE', 11)))
            lastr = max(sg.stream(R, 0, g1))
        if adv:
            g = min(n - 1, lastd + 1) if dma else 0
            vas = []
            for r in self.rings:
                sc, va = r.adv(wr)
                vas += va
                for x in sc:
                    if (sg.d[g] and g == n - 1) or sg.end[g]:
                        sg.end[g].append(x)
                    else:
                        g = sg.place(x, g, lo=g)
            g = max(lastr + 1, g + 1)
            for x in vas:
                if g < n:
                    sg.place(x, g, lo=g)
                else:
                    sg.end[n - 1].append(x)
        if extra:
            extra(sg)
        for x in sg.lines():
            a(x)

    def split(self, it):
        n = sum(1 for x in it if kind(x) == 'd')
        cut = cnt = 0
        for i, x in enumerate(it):
            if kind(x) == 'd':
                cnt += 1
                if cnt == (n + 1) // 2:
                    cut = i + 1
        while cut < len(it) and kind(it[cut]) == 's' and "m0" not in it[cut]:
            cut += 1
        return it[:cut], it[cut:]

    def init(self, a, start=None):
        for i, r in enumerate(self.rings):
            for x in r.init():
                a(x)
            if start and start[i]:
                a("s_mov_b32 s%d, %d" % (r.sRd, start[i]))
            if r.NS == 2:
                a("s_mov_b32 s%d, s%d" % (r.sRdD, r.sC))

    def bar(self, a, N):
        a("s_waitcnt vmcnt(%d) lgkmcnt(0)" % min(63, N))
        a("s_barrier")

    def pro(self, a, N, dma=None):
        a("s_waitcnt vmcnt(%d)" % min(63, N))
        a("s_barrier")
        for x in self.reads(0):
            a(x)
        a("s_waitcnt lgkmcnt(0)")
        self.half(a, 0, first=True, adv=True, dma=dma, wr=False)

    def iter(self, a, N, items=None, wr=True, adv=True, after_bar=None, extra=None):
        if N is not None:
            self.bar(a, N)
        if after_bar:
            after_bar()
        d0, d1 = self.split(items or [])
        self.half(a, 1, dma=d0)
        a("s_waitcnt lgkmcnt(0)")
        self.half(a, 0, dma=d1, adv=adv, wr=wr, extra=extra)

    def loop(self, a, N):
        self.bar(a, N)
        a(".p2align 6")
        a.label("L%s_loop" % self.name)

        def cnt_(sg):
            g = sg.n - 3
            assert not any(sg.d[k] or sg.r[k] or any(kind(x) in 'dr' for x in sg.end[k]) for k in range(g, sg.n))
            sg.sc[g].insert(0, "s_waitcnt vmcnt(%d) lgkmcnt(0)\ns_barrier" % N)
            sg.place("s_sub_u32 s%d, s%d, 1" % (self.sCnt, self.sCnt), sg.n - 2, lo=sg.n - 2)
            sg.end[sg.n - 1].append("s_cmp_lg_u32 s%d, 0" % self.sCnt)
        self.iter(a, None, self.pf + self.dma_items(), extra=cnt_)
        a("s_cbranch_scc1 L%s_loop" % self.name)

    def last(self, a, order, g0, epi, dma=None, bar=True, mid=None):
        m0, m1 = self.mfmas(0), self.mfmas(1)
        a("s_waitcnt lgkmcnt(0)")
        sg = Seg([m0[i] for i in order[:g0]])
        sg.stream(self.reads(1), 0, max(g0 - 8, len(self.reads(1)) // 2))
        for x in sg.lines():
            a(x)
        a("s_waitcnt lgkmcnt(0)")
        if bar:
            a("s_barrier")
        if mid:
            mid()
        mf, done = [], {}
        for i in order[:g0]:
            done[i] = len(mf)
            mf.append(m1[i])
        for k in range(g0, len(order), 2):
            i, j = order[k], order[k + 1]
            mf += [m0[i], m0[j], m1[i], m1[j]]
            done[i], done[j] = len(mf) - 2, len(mf) - 1
        sg = Seg(mf)
        if dma:
            place_dma(sg, dma, 0, sg.n - 2)
        g = 0
        rest = []
        for need, L in epi:
            lo = max(done[i] for i in need) + 4
            for x in L:
                g = max(g, lo)
                k = kind(x)
                if k == 's' and g + 1 < sg.n and not rest:
                    g += 1
                    while g < sg.n and (sg.d[g] or sg.end[g] or sg.sc[g]):
                        g += 1
                while g < sg.n and not (sg.room(g, k) and (k != 'd' or not sg.c[g])):
                    g += 1
                if g >= sg.n or rest:
                    rest.append(x)
                else:
                    sg.put(g, x)
                    if k == 'c':
                        lo = g
        for x in sg.lines() + rest:
            a(x)

    def tail(self, a, items=None, bar=True, N=None, rd=False):
        a("s_waitcnt %slgkmcnt(0)" % ("" if N is None else "vmcnt(%d) " % N))
        if bar:
            a("s_barrier")
        self.half(a, 1, rd=rd, dma=items)


GFL = set(os.environ.get("GFLAGS", "").split(","))


def lane_setup(a, T):
    a("v_lshrrev_b32 v%d, 3, v1" % T)
    a("v_and_b32 v%d, 6, v%d" % (T + 1, T))
    a("v_and_b32 v%d, 7, v1" % (T + 2))
    a("v_xor_b32 v%d, v%d, v%d" % (T + 1, T + 1, T + 2))
    a("v_lshlrev_b32 v%d, 4, v%d" % (T + 1, T + 1))


def xread_base(a, d0, d1, T, sbase):
    a("v_and_b32 v%d, 15, v1" % T)
    a("v_lshlrev_b32 v%d, 7, v%d" % (T, T))
    a("v_lshrrev_b32 v%d, 4, v1" % (T + 1))
    a("v_and_b32 v%d, 6, v1" % (T + 2))
    a("v_xor_b32 v%d, v%d, v%d" % (T + 1, T + 1, T + 2))
    a("v_lshl_add_u32 v%d, v%d, 4, v%d" % (T, T + 1, T))
    a("v_add_u32 v%d, %s, v%d" % (d0, sbase, T))
    a("v_xor_b32 v%d, 64, v%d" % (d1, d0))


def wread_base(a, regs, nbs, T, sbase):
    a("v_lshrrev_b32 v%d, 2, v1" % T)
    a("v_and_b32 v%d, 6, v%d" % (T + 1, T))
    a("v_lshlrev_b32 v%d, 7, v%d" % (T, T))
    a("v_and_b32 v%d, 1, v1" % (T + 2))
    a("v_lshl_add_u32 v%d, v%d, 3, v%d" % (T, T + 2, T))
    a("v_add_u32 v%d, %s, v%d" % (T, sbase, T))
    a("v_bfe_u32 v%d, v1, 1, 1" % (T + 2))
    a("v_xor_b32 v%d, v%d, v%d" % (T + 1, T + 1, T + 2))
    for r, nb in zip(regs, nbs):
        a("v_xor_b32 v%d, %d, v%d" % (T + 2, 2 * nb, T + 1))
        a("v_lshl_add_u32 v%d, v%d, 4, v%d" % (r, T + 2, T))
```

```python
from lib import *
from gemm4 import *
import proj4, bfront, attn4, oproj, qproj

MFL = set(os.environ.get("MFLAGS", "").split(","))


def gen(stamp=False):
    a = Asm()
    st = Stamps(stamp, 0)
    a("s_cmp_ge_u32 s2, 256")
    a("s_cbranch_scc1 Lend")
    a("s_load_dwordx16 s[64:79], s[0:1], 0")
    a("s_load_dwordx8 s[80:87], s[0:1], 64")
    a("v_lshrrev_b32 v2, 6, v0")
    a("v_and_b32 v1, 63, v0")
    a("v_readfirstlane_b32 s%d, v2" % S_WAVE)
    a("v_lshlrev_b32 v2, 4, v1")
    if 'ipf' in MFL:
        a("s_getpc_b64 s[6:7]")
        a("s_lshr_b32 s4, s2, 3")
        a("s_lshl_b32 s4, s4, 2")
        a("s_add_u32 s4, s4, s%d" % S_WAVE)
        a("s_min_u32 s4, s4, CODE_KB")
        a("s_lshl_b32 s4, s4, 10")
        a("v_add_u32 v3, s4, v2")
        a("global_load_dwordx4 v[4:7], v3, s[6:7]")
    st(a)
    gk, gv = proj4.make('wx'), proj4.make('xw')
    b0, b1 = bfront.make(0), bfront.make(1)
    g3 = qproj.make()
    proj4.setup(a, gk)
    srd(a, S_FLG, P_WS, 0x40000, WS_FLG)
    tag_make(a, 0)
    for x in proj4.xitems(gk, 0) + proj4.witems(gk, 0):
        a(x)
    c = Col()
    proj4.read_bases(c, gk)
    if os.environ.get("PF1") != "0,0":
        proj4.pf_setup(c, 56, 50, P_WQKV, 6, P_BX, 4)
        proj4.pf_setup(c, 52, 51, P_WQ, 8, P_AX, 4)
    attn4.ids(c)
    bfront.setup(c, b0)
    oproj.lanes(c, 28)
    qproj.lanes(c, 28)
    proj4.out_base(c)
    gk.init(c, [proj4.XS0, 0])
    PF0 = ""
    for x in weave_lines(c, proj4.xitems(gk, 1) + proj4.witems(gk, 1), float(os.environ.get("W0", 0.2)), 1.0):
        a(x)
    tag_make(a, 1, 32 + (10 if PF0 else 0))
    st(a)
    if 'only2' in MFL:
        a("s_waitcnt vmcnt(0)")
        a("s_barrier")
        for x in bfront.xsrd() + [y for s in range(3) for y in bfront.stage_items(a, b0, s, 'xw')]:
            a(x)
        tag_load(a, 22)
        cut0 = len(a.ins)
    if 'only7' in MFL:
        a("s_waitcnt vmcnt(0)")
        a("s_barrier")
        cut7 = len(a.ins)
    PF1 = [int(x) for x in os.environ.get("PF1", "2,2").split(",")]
    NW = int(os.environ.get("NW", 8))
    NP, NL = int(os.environ.get("NP", 8)), int(os.environ.get("NL", 6))
    a("s_cmp_lt_u32 s2, 128")
    a("s_cbranch_scc1 Lp1_k")
    k0 = st.k
    for kind_, g in (('v', gv), ('k', gk)):
        if kind_ == 'k':
            a.label("Lp1_k")
            st.k = k0
        g.pf = proj4.pf_items(56, 50, PF1[0]) + proj4.pf_items(52, 51, PF1[1])
        g.pro(a, 16 + (10 if PF0 else 0), dma=proj4.xitems(g, 2))
        a("s_mov_b32 s%d, 5" % g.sCnt)
        g.loop(a, 8)
        g.iter(a, None, proj4.witems(g, 0) + bfront.xsrd() + bfront.stage_items(a, b0, 0, 'x'))
        g.bar(a, 4)
        g.half(a, 1, dma=bfront.stage_items(a, b0, 0, 'w') + bfront.stage_items(a, b0, 1, 'xw'))
        order, epi = proj4.pack(kind_, NW)
        g.last(a, order, 20, epi, dma=bfront.stage_items(a, b0, 2, 'xw'), mid=lambda: tag_load(a, 22))
        st(a)
        for x in proj4.trickle(NW, NP):
            a(x)
        if kind_ == 'v':
            a("s_branch Lp2")
    if 'only2' in MFL:
        del a.ins[cut0:]
        st.k = 2
    if 'nost' in MFL:
        proj4.trickle = lambda a, b: ["s_nop 0"]
        VmQ.push0 = VmQ.push
        VmQ.push = lambda self, tag, n: VmQ.push0(self, tag, 0 if tag == 'st' else n)
    a.label("Lp2")
    st(a)
    b0.init(a)
    bfront.restore(a)
    a("s_cmp_ge_u32 s%d, 2" % S_WAVE)
    a("s_cbranch_scc1 Lp2_r1")
    k0 = st.k
    n2 = 32 - NP - NL
    TRK = [(n2 * (k + 1)) // 16 - (n2 * k) // 16 for k in range(16)]
    if os.environ.get("TRK"):
        TRK = [int(x) for x in os.environ["TRK"].split(",")]
    TR3 = [0]
    cum = [NP + sum(TRK[:k]) for k in range(17)] + [32 - NL]
    assert cum[16] + NL == 32
    Q3 = []
    for rh, g in enumerate((b0, b1)):
        if rh:
            a.label("Lp2_r1")
            st.k = k0
        n = 10 if rh else 11
        q = VmQ()
        q.push(0, n), q.push(1, n), q.push('t', 1), q.push('st', NW), q.push(2, n), q.push('st', NP - NW)
        g.pro(a, q.need(0), dma=proj4.trickle(cum[0], cum[1]))
        q.push('st', TRK[0])
        npf = (12 - 5 * PF1[1]) * int(os.environ.get('PFA', 1)) * (PF1[1] > 0)
        for s in range(1, 16):
            N = q.need(s)
            it = []
            if s <= npf:
                it += proj4.pf_items(52, 51, 1)
                q.push('pf', 1)
            if s < 14:
                it += g.dma_items()
                q.push(s + 2, n)
            elif s == 14:
                it += qproj.witems(g3, 0) + qproj.witems(g3, 1)
                q.push('w0', 4), q.push('w1', 4)
            else:
                it += qproj.xitems(g3, 0)
                q.push('x0', 8)
            it += proj4.trickle(cum[s], cum[s + 1])
            q.push('st', TRK[s])
            g.iter(a, N, it, adv=s < 15, after_bar=(lambda: qproj.setup(a, g3)) if s == 14 else None)
            if 'st2' in MFL and s in (3, 7, 11):
                st(a)
        g.tail(a, qproj.xitems(g3, 1))
        q.push('x1', 8)
        st(a)
        c = Col()
        bfront.local_attn(c, rh)
        for x in weave_lines(c, (proj4.trickle(32 - NL, 32) if NL else []) + qproj.witems(g3, 2) + qproj.xitems(g3, 2), 0.0, 0.85):
            a(x)
        q.push('st', NL), q.push('w2', 4), q.push('x2', 8), q.push('o', 4)
        Q3.append(q)
        if not rh:
            a("s_branch Lp3")
    a.label("Lp3")
    st(a)
    if 'only2' in MFL:
        st.flush(a)
        return fin(a)
    q = Q3[0]
    k = q.q.index('w0')
    assert q.q[k:] == Q3[1].q[Q3[1].q.index('w0'):]
    qproj.restore(a)
    g3.init(a, [qproj.XS0, 0])
    a("s_lshl_b32 s34, s%d, 4" % proj4.sN0)
    a("s_add_u32 s34, s34, s%d" % proj4.sM0)
    a("s_lshr_b32 s4, s2, 7")
    a("s_lshl_b32 s4, s4, 3")
    a("s_add_u32 s34, s34, s4")
    a("s_lshl_b32 s34, s34, 7")
    a("s_lshl_b32 s91, s%d, 4" % bfront.sRb)
    a("s_add_u32 s91, s91, s%d" % bfront.sHp)
    a("s_lshl_b32 s91, s91, 7")
    a("s_add_u32 s91, s91, %d" % F_OB)
    g3.pro(a, q.need('w0', 'x0'), dma=proj4.trickle(cum[16], cum[17]))
    q.push('st', TR3[0])
    last = max(2, len(TR3) + 1)
    for s in range(1, last + 1):
        tags = ['w%d' % s, 'x%d' % s, s] + (['o', 'st'] if s == last else [])
        N = q.need(*tags)
        g3.iter(a, N, g3.dma_items() + (proj4.trickle(cum[16 + s], cum[17 + s]) if s < len(TR3) else []),
                after_bar=(lambda: (tag_get(a, 22, 20), signal(a, 22, ["s34", "s91"], 3))) if s == last else None)
        q.push(s + 2, 12)
        if s < len(TR3):
            q.push('st', TR3[s])
    if last < 12:
        a("s_mov_b32 s%d, %d" % (g3.sCnt, 12 - last))
        g3.loop(a, 12)

    def ids():
        a("s_lshr_b32 s34, s%d, 1" % attn4.sHead)
        a("s_lshl_b32 s34, s34, 11")
        for x in flag_addr(3):
            a(x)
    g3.iter(a, None, [flag_load(22, "s34", 3)] + g3.dma_items(), after_bar=ids)

    def go():
        flag_check(a, 22, "s34", 3)
        attn4.kv_setup(a)
        oproj.ids(a)
    it = attn4.kv_prologue_items(0)
    cut = [i for i, x in enumerate(it) if "m0" in x][1]
    g3.iter(a, 12, it[:cut], after_bar=go)
    g3.bar(a, 4)
    a("s_mov_b32 s6, 0x%08x" % f32bits(attn4.CST))
    a("s_mov_b32 s7, s6")
    g3.half(a, 1, dma=it[cut:])
    order, epi = qproj.epilogue()
    g3.last(a, order, 16, epi, bar=False)
    st(a)
    attn4.setup1(a)
    st(a)
    g6, g7 = oproj.make("p6", oproj.AB), oproj.make("p7", oproj.AA)

    class H:
        q0 = [t for t in (('K', 0), ('K', 1), ('V', 0)) for _ in range(4)]

        @staticmethod
        def after_d2():
            a("s_lshl_b32 s91, s%d, 11" % oproj.sRb)
            a("s_add_u32 s91, s91, %d" % F_OB)
            for x in flag_addr(14):
                a(x)

        @staticmethod
        def pre_e1():
            return [flag_load(12, "s91", 14)]

        @staticmethod
        def at_e1():
            flag_check(a, 12, "s91", 14)
            for j in range(4):
                a("v_accvgpr_read_b32 v%d, a%d" % (oproj.wv + j, oproj.aSave + j))
            for x in oproj.job_w(False) + oproj.job_x(False):
                a(x)

        @staticmethod
        def e1_items():
            return oproj.stage_items(g6, 0, 'wx')

        @staticmethod
        def e2_items():
            return oproj.stage_items(g6, 1, 'wx')
    if 'only7' in MFL:
        del a.ins[cut7:]
        st.k = 2
        global flag_check
        flag_check = lambda *x: None
        oproj.ids(a)
        H.at_e1()
        for x in H.e1_items() + H.e2_items():
            a(x)
        srd(a, 16, P_WS, 16 * MB, 150 * MB)
        for i in range(8):
            a("buffer_store_dwordx4 v[32:35], v2, s[16:19], 0 offen")
    else:
        attn4.attention(a, st, H)
    st(a)
    gh = oproj.make("ph", oproj.AA, True)
    q = VmQ()
    for s in range(2):
        q.push(s, 8)
    q.push('ctx', 8)
    oproj.read_bases(a, 4)
    g6.init(a, [3])
    g6.pro(a, q.need(0), dma=oproj.stage_items(g6, 2, 'wx') + oproj.stage_items(g6, 3, 'wx'))
    q.push(2, 8)
    q.push(3, 8)

    def sig_ctx():
        a("s_lshl_b32 s4, s%d, 7" % attn4.sHead)
        a("s_lshl_b32 s5, s%d, 12" % attn4.sPair)
        a("s_add_u32 s6, s4, %d" % F_CTX)
        a("s_add_u32 s7, s6, %d" % (15 << 12))
        a("s_add_u32 s6, s6, s5")
        a("s_sub_u32 s7, s7, s5")
        signal(a, 6, ["s6", "s7"])
        a("s_lshl_b32 s91, s%d, 12" % oproj.sRb)
        a("s_add_u32 s91, s91, %d" % F_CTX)
        for x in flag_addr(14, 32):
            a(x)
        oproj.xch_srd(a)
    VS = int(os.environ.get("VS", 6))
    for s in range(1, VS):
        N = q.need(1, 'ctx') if s == 1 else q.need(s)
        if s == 1:
            q.push('sig', 2)
        it = g6.dma_items() if s < 5 else (oproj.job_w(True) if s == 5 else []) + g7.group_items(g7.dma[0])
        q.push(s + 3, 8 if s < 5 else 4)
        if s == VS - 1:
            it = it + [flag_load(6, "s91", 14)]
            q.push('fl', 1)
        g6.iter(a, N, it, after_bar=sig_ctx if s == 1 else None)
    a("s_waitcnt vmcnt(%d)" % q.need(VS, 'fl'))
    a("v_cmp_ne_u64 vcc, s[%d:%d], v[6:7]" % (S_TAG, S_TAG + 1))
    a("v_cndmask_b32_e64 v8, 0, 1, vcc")
    a("v_lshlrev_b32 v9, 2, v0")
    a("ds_write_b32 v9, v8")
    a("v_lshlrev_b32 v9, 4, v1")
    a("s_waitcnt lgkmcnt(0)")
    a("s_barrier")
    a("ds_read_b128 v[160:163], v9")
    for x in oproj.job_w(True) if VS == 5 else []:
        a(x)
    a("s_waitcnt lgkmcnt(0)")
    a("v_or3_b32 v160, v160, v161, v162")
    a("v_or_b32 v160, v160, v163")
    a("v_cmp_ne_u32 vcc, 0, v160")
    if 'only7' not in MFL:
        a("s_cbranch_vccnz Lp6_late ; @late")
    k0 = st.k
    q0 = list(q.q)
    for late in (False, True):
        q.q = list(q0)
        if late:
            a.label("Lp6_late")
            st.k = k0
        else:
            for x in oproj.job_x(True):
                a(x)
        for s in range(VS, 8):
            if s > VS:
                g6.bar(a, q.need(s))
            it = g7.group_items(g7.dma[0]) if late else g7.dma_items()
            if s == VS and not late:
                for t in range(VS + 2, 7, -1):
                    it = oproj.stage_items(g7, t, 'x') + it
                for t in range(8, VS + 3):
                    q.push(t, 4)
            q.push(s + 3, 4 if late else 8)
            if late and s == 7:
                it += [flag_load(6, "s91", 14)]
            d0, d1 = g6.split(it)
            g6.half(a, 1, dma=d0)
            a("s_waitcnt lgkmcnt(0)")
            g6.half(a, 0, dma=d1, adv=True)
        if late:
            a("s_waitcnt vmcnt(0) lgkmcnt(0)")
            a("s_barrier")
            st(a)
            flag_check(a, 6, "s91", 14)
            st(a)
            for x in oproj.job_x(True):
                a(x)
            it = []
            for s in range(8, 12):
                it += oproj.stage_items(g7, s, 'x' if s < 11 else 'wx')
            g6.half(a, 1, rd=False, dma=it)
            for x in oproj.send_items(oproj.AB, False, 6):
                a(x)
            a("s_waitcnt vmcnt(24)")
            a("s_barrier")
            for x in g7.reads(0):
                a(x)
            a("s_waitcnt lgkmcnt(0)")
            g7.half(a, 0, first=True, adv=True)
        else:
            g6.bar(a, q.need(8))
            st(a)
            st(a)
            g6.half(a, 1, dma=g7.dma_items())
            a("s_waitcnt lgkmcnt(0)")
            it = oproj.send_items(oproj.AB, False, 6)
            nsc = [i for i, x in enumerate(it) if kind(x) == 'd'][0]
            for x in it[:nsc]:
                a(x)
            g7.half(a, 0, first=True, adv=True, extra=lambda sg: place_dma(sg, it[nsc:], 5, 14))
            a("s_branch Lp7")
    a.label("Lp7")
    st(a)
    DL = oproj.DL
    F = 40 - DL
    a("s_mov_b32 s%d, %d" % (g7.sCnt, F - 4 - 9))
    g7.loop(a, 16)
    q = VmQ()
    for s in range(F - 4, F - 1):
        q.push(s, 8)
    E = F + 2 * DL
    finB = []
    for s in range(F - 4, E):
        tags, it, ab = [s], [], None
        if s == F - 4:
            def ab():
                oproj.flag_pos(a, False, True, 6)
                signal(a, 6, ["s6"])
                oproj.flag_pos(a, False, False, 90)
                oproj.out_setup(a)
        if s == F - 3:
            it += [flag_load(6, "s90")]
        if s == F - 2:
            tags.append('fl')
            ab = lambda: flag_check(a, 6, "s90")
            it += oproj.recv_items(False, 6)
        if s == F:
            tags.append('rcv')

            def ab():
                oproj.out_off(a, False, 4)
                oproj.flag_pos(a, True, True, 89)
                oproj.flag_pos(a, True, False, 90)
            finB = oproj.finish(oproj.AB, False, 4)
        if s == F + 3:
            tags.append('snd')
            ab = lambda: signal(a, 6, ["s89"])
        if s == E - 3:
            it += [flag_load(6, "s90")]
        if s == E - 2:
            tags.append('fl')
            ab = lambda: flag_check(a, 6, "s90")
            it += oproj.recv_items(True, 6)
        N = q.need(*tags)
        if s == F - 4 or s == F + 3:
            q.push('sig', 1)
        for x in it:
            if kind(x) == 'd':
                q.push('fl' if "dwordx2" in x else 'rcv', 1)
        if s + 3 < F:
            it += g7.dma_items()
            q.push(s + 3, 8)
        elif s + 3 < E:
            if s + 3 == F:
                it += oproj.to_half()
            if s + 3 == F + DL:
                it += oproj.to_partner()
            it += gh.dma_items()
            q.push(s + 3, 6)
        g1, g0 = (g7 if s - 1 < F else gh), (g7 if s < F else gh)
        if s > F - 4:
            g7.bar(a, N)
        else:
            assert N >= 16
        if ab:
            ab()
        d0, d1 = g7.split(it)
        if s == F:
            snd = oproj.send_items(oproj.AA, True, 6)
            nsc = [i for i, x in enumerate(snd) if kind(x) == 'd'][0]
            d0, d1 = it + snd[:nsc], snd[nsc:nsc + 4]
            q.push('snd', 4)
        if s == F + 1:
            d0, d1 = snd[nsc + 4:], it
            q.q = q.q[:-6] + ['snd'] * 4 + q.q[-6:]

        L = finB.pop(0) if finB and s > F else []

        def finb(sg):
            g = 0
            for x in L[:-1]:
                g = sg.place(x, g, lo=g)
        g1.half(a, 1, dma=d0, rdg=g0, extra=finb)
        a("s_waitcnt lgkmcnt(0)")
        g0.half(a, 0, dma=d1, adv=s < E - 1, extra=lambda sg: sg.end[sg.n - 1].extend(L[-1:]))
        q.push('ob', len(L[-1:]))
    oproj.out_off(a, True, 4)
    gh.tail(a, bar=False)
    st(a)
    a("s_waitcnt vmcnt(0)")
    st(a)
    for L in zip(*oproj.finish(oproj.AA, True, 4)):
        for x in L:
            a(x)
    st(a)
    if stamp:
        a("s_waitcnt vmcnt(0)")
    st(a)
    st.flush(a)
    return fin(a)


def fin(a):
    a.label("Lend")
    a("s_endpgm")
    t = a.finish()
    if 'nobar' in MFL:
        t = t.replace("s_barrier", "s_nop 0")
    if 'nox' in MFL:
        t = "\n".join(l for l in t.split("\n") if not (l.rstrip().endswith(" lds") and "s[8:11]" in l))
    if 'now' in MFL:
        t = "\n".join(l for l in t.split("\n") if not (l.rstrip().endswith(" lds") and "s[12:15]" in l))
    if 'nodma' in MFL:
        t = "\n".join(l for l in t.split("\n") if not l.rstrip().endswith(" lds"))
    return t.replace("CODE_KB", os.environ.get("CODE_KB", "70"))
```

```python
from lib import *
from gemm4 import *

FL = set(os.environ.get("AFLAGS", "").split(","))
THR = float(os.environ.get("LTHR", 2.0 ** 64))
AH = int(os.environ.get("AH", 11))
EB = int(os.environ.get("EB", 2))
WG_ = int(os.environ.get("WGRP", 8))

vLane, vL16, vK, vV, vNEG = 1, 2, 3, 4, 5
vT = 6
vNM = 16
vP = 32
vS = 64
vO = 128
aF = 0
aQ = 128
aL = 192
aOne = 208
sHead, sPair = 24, 25
sKV = 20
sCtx = 16
sKm, sVm, sKo, sVo = 26, 27, 28, 29
sMa, sMb, sCnt, sFail = 30, 31, 88, 89
sMask = 32
sT0, sT1 = 4, 5
CST = (128 ** -0.5) * math.log2(math.e)


def Oreg(g, db):
    return ('v', vO + 4 * (8 * g + db))


def Qreg(g, ds):
    return ('a', aQ + 4 * (4 * g + ds))


def ids(a):
    a("s_and_b32 s%d, s2, 7" % sHead)
    a("s_lshr_b32 s4, s2, 6")
    a("s_lshl_b32 s4, s4, 3")
    a("s_add_u32 s%d, s%d, s4" % (sHead, sHead))
    a("s_lshr_b32 s%d, s2, 3" % sPair)
    a("s_and_b32 s%d, s%d, 7" % (sPair, sPair))


def kv_dma(which):
    m, o = (sKm, sKo) if which == 'K' else (sVm, sVo)
    return ["s_mov_b32 m0, s%d" % m] + \
           ["buffer_load_dwordx4 v%d, s[%d:%d], s%d offen offset:%d%s lds" % (vL16, sKV, sKV + 3, o, 1024 * j, SC1L) for j in range(4)]


def gray_mask(t):
    return 0x4000 if t % 2 == 0 else 0x8000


def kv_setup(a):
    a("s_lshl_b32 s4, s%d, 20" % sHead)
    a("s_lshl_b32 s5, s%d, 16" % sPair)
    a("s_sub_u32 s5, %d, s5" % (32 * 32768))
    srd(a, sKV, P_WS, "s5", WS_KV, 4)
    a("s_lshl_b32 s%d, s%d, 12" % (sKo, S_WAVE))
    a("s_add_u32 s%d, s%d, 0xc000" % (sKm, sKo))
    a("s_add_u32 s%d, s%d, 0x10000" % (sVm, sKo))
    a("s_add_u32 s%d, s%d, 0x4000" % (sVo, sKo))


NPF = 0 if 'nopf' in FL else 10


def pf_setup(a):
    a("s_lshl_b32 s4, s2, 2")
    a("s_add_u32 s4, s4, s%d" % S_WAVE)
    a("s_lshl_b32 s6, s4, 13")
    a("s_lshl_b32 s7, s4, 11")
    srd(a, 8, P_WO, 8 * MB)
    srd(a, 12, P_BWO, 2 * MB)


def pf_items():
    L = []
    for i in range(8):
        if i == 4:
            L.append("s_add_u32 s6, s6, 4096")
        L.append("buffer_load_dwordx4 a[64:67], v%d, s[8:11], s6 offen offset:%d ; @dummy" % (vL16, (i % 4) * 1024))
    for i in range(2):
        L.append("buffer_load_dwordx4 a[64:67], v%d, s[12:15], s7 offen offset:%d ; @dummy" % (vL16, i * 1024))
    return L if NPF else []


def kv_prologue_items(part=None):
    L = []
    tk = tv = 0
    for i, w in enumerate("KKVKVKV"):
        if i == 3 and part is not None:
            if part == 0:
                return L
            L = []
        L += kv_dma(w)
        if w == 'K':
            L += ["s_xor_b32 s%d, s%d, 0x%x" % (sKm, sKm, gray_mask(tk)), "s_add_u32 s%d, s%d, 0x8000" % (sKo, sKo)]
            tk += 1
        else:
            L += ["s_xor_b32 s%d, s%d, 0x%x" % (sVm, sVm, gray_mask(tv)), "s_add_u32 s%d, s%d, 0x8000" % (sVo, sVo)]
            tv += 1
    return L


def qk_frags(kindq, half, sb):
    F = []
    if kindq is None:
        return F
    dbl = kindq[0] == 'D'
    gs = [0, 1, 2, 3] if dbl else [2, 3]
    if kindq.endswith("'"):
        gs = gs[1:]
    c0 = kindq.endswith("0")
    for jb in range(2 if dbl else 4):
        for ds in range(4):
            ms = []
            for g in gs:
                blk = (2 * g + jb) if dbl else (2 * (2 * (jb >> 1) + g - 2) + (jb & 1))
                ms.append((('v', sb + 4 * blk), Qreg(g, ds), ("0" if c0 else ('v', vNM + 4 * g)) if ds == 0 else None))
            F.append(('K', ((2 * half + jb) if dbl else jb) * 4096 + ds * 1024, ms))
    return F


def pv_frags(kindp, half, pb):
    F = []
    if kindp is None:
        return F, []
    dbl = kindp[0] == 'D'
    gs = [0, 1, 2, 3] if dbl else [2, 3]
    if kindp.endswith("'"):
        gs = gs[1:]
    sums = []
    for kc in range(1 if dbl else 2):
        for g in gs:
            pi = g if dbl else 2 * kc + g - 2
            sums.append(mfma(('a', aL + 4 * g), ('a', aOne), ('v', pb + 4 * pi)))
        for db in range(8):
            ms = [(Oreg(g, db), ('v', pb + 4 * (g if dbl else 2 * kc + g - 2)), None) for g in gs]
            F.append(('V', (half if dbl else kc) * 8192 + db * 1024, ms))
    return F, sums


def sm_items(sm, sb, pb):
    out = []
    if sm is None:
        return out
    for i in range(4):
        masks = []
        if sm != 'p':
            if sm[0] == 'D':
                gq, jbs = i, [2 * sm[1], 2 * sm[1] + 1]
                lvl = sm[1] >> 1
                if i >= 2:
                    gq = 99
            else:
                gq, jbs = i & 1, [4 * sm[1] + 2 * (i >> 1), 4 * sm[1] + 2 * (i >> 1) + 1]
                lvl = sm[1]
            if lvl > gq:
                continue
            if lvl == gq:
                for e, j16 in enumerate(jbs):
                    for r in range(4):
                        x = sb + 8 * i + 4 * e + r
                        m = sMask + 2 * (4 * (j16 & 3) + r)
                        masks.append((x, "v_cndmask_b32 v%d, v%d, v%d, s[%d:%d]" % (x, x, vNEG, m, m + 1)))
        exps = ["v_exp_f32 v%d, v%d" % (sb + 8 * i + e, sb + 8 * i + e) for e in range(8)]
        cvts = ["v_cvt_pk_bf16_f32 v%d, v%d, v%d" % (pb + 4 * i + e, sb + 8 * i + 2 * e, sb + 8 * i + 2 * e + 1) for e in range(4)]
        out.append((dict(masks), exps, cvts))
    return out


class Rnd:
    def __init__(self, par, qk, sm, pv, bar=False, issK=None, issV=None, togK=None, togV=None, togVpre=None):
        self.par, self.qk, self.sm, self.pv, self.bar = par, qk, sm, pv, bar
        self.issK, self.issV, self.togK, self.togV, self.togVpre = issK, issV, togK, togV, togVpre
        self.vm = None
        self.xdma = []
        self.xq = []
        self.after_bar = None
        self.first = False

    def frags(self):
        par = self.par
        Fq = qk_frags(self.qk, par ^ 1, vS + 32 * (par ^ 1))
        Fp, sums = pv_frags(self.pv, par ^ 1, vP + 16 * (par ^ 1))
        return Fq, Fp, sums


def fread(ring, off, slot, tag):
    return "ds_read_b128 %s, v%d offset:%d ; @%s" % (a4(aF + 4 * (slot % 16)), vK if ring == 'K' else vV, off, tag)


def tog(reg, m):
    return "v_xor_b32 v%d, %s, v%d" % (reg, m, reg)


def emit_round(a, R, nxt, ph, pend, extra_scal=None):
    Fq, Fp, sums = R.frags()
    F = Fq + Fp
    nF = len(F)
    Fn = []
    if nxt is not None:
        q, p, _ = nxt.frags()
        Fn = (q + p)[:AH]
    mf = []
    first = []
    lastu = {}
    si = 0
    i0 = 0
    if 'nochain' not in FL:
        while i0 < len(Fq):
            base = len(mf)
            for k in range(len(F[i0][2])):
                for e in range(4):
                    d, b, c = F[i0 + e][2][k]
                    lastu[i0 + e] = len(mf)
                    mf.append(mfma(d, ('a', aF + 4 * ((ph + i0 + e) % 16)), b, c))
            first += [base + e for e in range(4)]
            i0 += 4
    for i, (ring, off, ms) in enumerate(F):
        if i < i0:
            continue
        first.append(len(mf))
        for d, b, c in ms:
            mf.append(mfma(d, ('a', aF + 4 * ((ph + i) % 16)), b, c))
        lastu[i] = len(mf) - 1
        if ring == 'V' and si < len(sums):
            per = len(sums) * 8 // len(Fp)
            k = i - len(Fq)
            if (k % 8) < per:
                mf.append(sums[si])
                si += 1
    assert si == len(sums)
    sg = Seg(mf)
    n = sg.n
    if R.bar:
        if not EB or R.first:
            sg.pre.append("s_waitcnt vmcnt(%d)" % R.vm)
            sg.pre.append("s_barrier")
        sg.pre.append("AFTERBAR")
    if EB and nxt is not None and nxt.bar:
        sg.put(n - EB, "s_waitcnt vmcnt(%d)\ns_barrier" % R.vm)
        sg.used[n - EB] = 8
    grp = 4 if len(F[0][2]) >= 3 else WG_
    i = 0
    dead = {}
    while i < nF:
        gsz = 4 if len(F[i][2]) != 2 else WG_
        j = min(nF - 1, i + gsz - 1, i + AH - 3)
        for x in range(i, j + 1):
            dead[x] = first[i] - 2
        w = "WAIT f%d" % (ph + j)
        if first[i] == 0:
            sg.pre.append(w)
        else:
            sg.put(first[i] - 1, w)
        i = j + 1
    SM = sm_items(R.sm, vS + 32 * R.par, vP + 16 * R.par)
    nexp = 8 * len(SM)
    eg = []
    if nexp:
        last = 0
        k = 0
        for masks, exps, cvts in SM:
            for e, x in enumerate(exps):
                want = (k * (n - 2)) // nexp
                reg = int(x.split()[1][1:-1])
                want = max(want, last)
                if reg in masks:
                    want = max(want, 1)
                g = sg.place(x, want, lo=last)
                eg.append(g)
                last = g
                k += 1
    items = list(R.xdma)
    if R.issK is not None:
        items += kv_dma('K') + ["s_xor_b32 s%d, s%d, %s" % (sKm, sKm, R.issK), "s_add_u32 s%d, s%d, 0x8000" % (sKo, sKo)]
    if R.issV is not None:
        items += kv_dma('V') + ["s_xor_b32 s%d, s%d, %s" % (sVm, sVm, R.issV), "s_add_u32 s%d, s%d, 0x8000" % (sVo, sVo)]
    if 'nodma' in FL:
        items = [x for x in items if kind(x) != 'd']
    if items:
        place_dma(sg, items, 0, n - 3 - EB) if any(kind(x) == 'd' for x in items) else [sg.place(x, 0) for x in items]
    last = 0
    pace = [(first[i & ~3] + (i & 3) * len(F[i][2])) if i < len(Fq) else first[i] for i in range(nF)]
    seq = [(j, F[j], False) for j in range(min(AH, nF), nF)] + [(nF + j, f, True) for j, f in enumerate(Fn)]
    prevK = prevV = False
    doneTK = doneTV = doneTVp = False
    lastV = max([j for j, f, nx in seq if f[0] == 'V' and not nx], default=-1)
    for j, f, nx in seq:
        src = j - AH
        want = pace[src] if src < nF else n - 1
        lo = last
        if j - 16 >= 0:
            lo = max(lo, lastu[j - 16])
        tg = None
        if f[0] == 'K' and nx and R.togK and not doneTK:
            tg, doneTK = tog(vK, R.togK), True
        if f[0] == 'V' and nx and R.togV and not doneTV:
            tg, doneTV = tog(vV, R.togV), True
        if tg:
            g = sg.place(tg, max(lo, want - 1), lo=lo)
            lo = min(n - 1, g + 1)
            if g == n - 1:
                sg.end[g].append(fread(f[0], f[1], ph + j, "f%d" % (ph + j)))
                last = g
                continue
        if sg.end[last] and any(x.startswith("ds_") for x in sg.end[last]):
            sg.end[last].append(fread(f[0], f[1], ph + j, "f%d" % (ph + j)))
            continue
        hi = dead.get(j)
        assert hi is None or hi >= lo, (j, lo, hi)
        g = sg.place(fread(f[0], f[1], ph + j, "f%d" % (ph + j)), max(want, lo), lo=lo, hi=hi)
        last = g
        if j == lastV and R.togV and not doneTV and not any(x[1][0] == 'V' and x[2] for x in seq):
            doneTV = True
            sg.place(tog(vV, R.togV), g, lo=g)
    if R.togV and not doneTV:
        sg.place(tog(vV, R.togV), 0)
    assert not (R.togK and not doneTK and nxt is not None and nxt.qk), "togK unused"
    k = 0
    for masks, exps, cvts in SM:
        for e, x in enumerate(exps):
            reg = int(x.split()[1][1:-1])
            if reg in masks:
                g = eg[k + e]
                q = g - 1
                while q >= 0 and not sg.room(q, 'c'):
                    q -= 1
                if q < 0:
                    sg.c[g].insert(0, masks[reg])
                    sg.used[g] += 4
                else:
                    sg.put(q, masks[reg])
        for e, x in enumerate(cvts):
            g = eg[k + 2 * e + 1]
            if g + 1 <= n - 1:
                sg.place(x, g + 1, lo=g + 1)
            else:
                sg.end[n - 1].append(x)
        k += 8
    for x in (extra_scal or []):
        if x.startswith("s_cmp"):
            sg.end[n - 1].append(x)
        else:
            sg.place(x, n // 2)
    L, pend = resolve_waits(sg.lines(), pend)
    for x in L:
        if x == "AFTERBAR":
            if R.after_bar:
                R.after_bar()
            continue
        a(x)
    nph = (ph + nF) % 16
    pend = ["f%d" % (int(t[1:]) - (ph + nF) + nph) for t in pend]
    R.cost = sg.cost()
    return nph, pend


def ctx_base(a, srow):
    a("s_lshl_b32 s4, s%d, 20" % srow)
    a("s_lshl_b32 s5, s%d, 15" % sHead)
    a("s_add_u32 s4, s4, s5")
    a("s_lshl_b32 s5, s%d, 11" % S_WAVE)
    a("s_add_u32 s4, s4, s5")


def epilogue(a, gs, srow):
    ctx_base(a, srow)
    for k, g in enumerate(gs):
        a("v_accvgpr_read_b32 v%d, a%d" % (vT + 2 * k, aL + 4 * g))
    a("s_mov_b32 s5, 0x%08x" % f32bits(THR))
    for k, g in enumerate(gs):
        a("v_cmp_ngt_f32 vcc, s5, v%d" % (vT + 2 * k))
        a("v_rcp_f32 v%d, v%d" % (vT + 2 * k, vT + 2 * k))
        a("s_or_b32 s%d, s%d, vcc_lo" % (sFail, sFail))
        a("s_or_b32 s%d, s%d, vcc_hi" % (sFail, sFail))
        a("v_mov_b32 v%d, v%d" % (vT + 2 * k + 1, vT + 2 * k))
    store_O(a, gs)


def store_O(a, gs):
    for ds in range(4):
        for k, g in enumerate(gs):
            b = vO + 4 * (8 * g + 2 * ds)
            for e in range(0, 8, 2):
                a("v_pk_mul_f32 v[%d:%d], v[%d:%d], v[%d:%d]" % (b + e, b + e + 1, b + e, b + e + 1, vT + 2 * k, vT + 2 * k + 1))
            for e in range(4):
                a("v_cvt_pk_bf16_f32 v%d, v%d, v%d" % (b + e, b + 2 * e, b + 2 * e + 1))
            a("buffer_store_dwordx4 %s, v%d, s[%d:%d], s4 offen offset:%d%s" % (v4(b), vL16, sCtx, sCtx + 3, (g & 1) * 1024, SC1))
        if ds < 3:
            a("s_add_u32 s4, s4, 8192")


def rowmax(a, src, t0, t1):
    a("v_max3_f32 v%d, v%d, v%d, v%d" % (t0, src, src + 1, src + 2))
    a("v_max3_f32 v%d, v%d, v%d, v%d" % (t1, src + 3, src + 4, src + 5))
    a("v_max3_f32 v%d, v%d, v%d, v%d" % (t0, t0, src + 6, src + 7))
    a("v_max_f32 v%d, v%d, v%d" % (t0, t0, t1))


def xmax(a, pairs):
    for op in ("v_permlane32_swap_b32", "v_permlane16_swap_b32"):
        for t0, t1 in pairs:
            a("v_mov_b32 v%d, v%d" % (t1, t0))
        for t0, t1 in pairs:
            a("%s v%d, v%d" % (op, t0, t1))
        for t0, t1 in pairs:
            a("v_max_f32 v%d, v%d, v%d" % (t0, t0, t1))


def plan(p):
    pass


def build_rounds():
    g0, g1 = "0x4000", "0x8000"
    R = {}
    R['c0'] = Rnd(0, 'D', 'p', None, bar=True, togK=g0)
    R['lo'] = Rnd(1, 'D', 'p', 'D')
    R['le'] = Rnd(0, 'D', 'p', 'D', bar=True, issK="s%d" % sMb, issV="s%d" % sMa, togK="s%d" % sMa, togV="s%d" % sMb)
    R['d0'] = Rnd(0, 'D', ('D', 0), 'D', bar=True, issK=g1, issV=g0, togK=g0, togV=g1)
    R['d1'] = Rnd(1, "D'", ('D', 1), 'D')
    R['d2'] = Rnd(0, "D'", ('D', 2), 'D', bar=True, issK=g0, issV=g1, togK=g1, togV=g0)
    R['d3'] = Rnd(1, 'S', ('D', 3), "D'", bar=True, issK=g1, issV=g0, togK=g0)
    R['t0'] = Rnd(0, 'S', 'p', "D'", bar=True, issK=g0, togK=g1, togV=g1)
    R['t7'] = Rnd(0, "S'", ('S', 0), "D'", bar=True, togV=g1)
    R['so'] = Rnd(1, 'S', 'p', 'S', bar=True, issK=g1, issV=g1, togK=g0, togV=g0)
    R['se'] = Rnd(0, 'S', 'p', 'S', bar=True, issK=g0, issV=g0, togK=g1, togV=g1)
    R['e0'] = Rnd(0, "S'", ('S', 0), 'S', bar=True, togV=g1)
    R['e1'] = Rnd(1, None, ('S', 1), 'S', bar=True, togV=g0)
    R['e2'] = Rnd(0, None, None, "S'")
    R['c0'].first = True
    R['c0'].xdma = kv_prologue_items(part=1)
    R['c0'].xq = [x for x in [('K', 2), ('V', 1), ('K', 3), ('V', 2)] for _ in range(4)]
    R['d1'].xdma = pf_items()
    R['d1'].xq = [('pf', 0)] * NPF
    return R


def path(p):
    seq = ['c0']
    if p:
        seq += ['lo', 'le'] * (2 * p - 1) + ['lo', 'd0']
    seq += ['d1', 'd2', 'd3']
    if p == 7:
        seq += ['t7', 'EPI']
    else:
        ns = 2 * (15 - 2 * p)
        seq += ['t0', 'EPI'] + ['so', 'se'] * ((ns - 4) // 2) + ['so', 'e0']
    seq += ['e1', 'e2']
    return seq


def simulate(R, q0):
    need = {}
    for p in range(8):
        seq = path(p)
        nd = 4 * p + 4
        ktile = lambda c: c // 2 if c < nd else nd // 2 + (c - nd)
        q = list(q0)
        nk, nv = 4, 3
        rounds = [k for k in seq if k != 'EPI']
        reads = []
        for c, k in enumerate(rounds):
            r = set()
            if R[k].qk:
                r.add(('K', ktile(c + 1)))
            if R[k].pv:
                r.add(('V', ktile(c - 1)))
            reads.append(r)
        full = []
        for c, k in enumerate(rounds):
            r = set(reads[c])
            if c + 1 < len(rounds):
                nx = R[rounds[c + 1]]
                fq, fp, _ = nx.frags()
                for f in (fq + fp)[:AH]:
                    r.add(('K', ktile(c + 2)) if f[0] == 'K' else ('V', ktile(c)))
            full.append(r)
        c = 0
        epi = False
        kaddr, vaddr = 0, 0
        for k in seq:
            if k == 'EPI':
                epi = True
                continue
            r = R[k]
            if r.bar:
                e = c + 1
                while e < len(rounds) and not R[rounds[e]].bar:
                    e += 1
                req = set().union(*full[c:e])
                idx = max(i for i, x in enumerate(q) if x in req)
                assert all(x in q for x in req), (p, k, req)
                key = rounds[c - 1] if (c and EB) else k
                if epi and not EB:
                    q += [('st', 0)] * 8
                    epi = False
                need[key] = min(need.get(key, 63), 0 if k == 'e1' else len(q) - 1 - idx)
                lastbar = c
            if epi:
                q += [('st', 0)] * 8
                epi = False
            q += r.xq
            if k == 'd2':
                pass
            for w, iss in (('K', r.issK), ('V', r.issV)):
                if iss is not None:
                    t = nk if w == 'K' else nv
                    for cc in range(lastbar, len(rounds)):
                        assert (w, t - 4) not in full[cc], (p, k, w, t)
                    if iss.startswith("0x"):
                        assert int(iss, 16) == gray_mask(t), (p, k, w, t)
                    q += [(w, t)] * 4
                    if w == 'K':
                        nk += 1
                    else:
                        nv += 1
            if r.qk:
                assert kaddr == ktile(c + 1), (p, k, kaddr)
            if r.pv:
                assert vaddr == ktile(c - 1), (p, k, vaddr, ktile(c - 1))
            if r.togK:
                if r.togK.startswith("0x"):
                    assert int(r.togK, 16) == gray_mask(kaddr), (p, k)
                kaddr += 1
            if r.togV:
                if r.togV.startswith("0x"):
                    assert int(r.togV, 16) == gray_mask(vaddr), (p, k)
                vaddr += 1
            c += 1
    for k, v in need.items():
        if EB and k == 'c0':
            R[k].vm0 = v
        R[k].vm = v
    return need


def setup1(a):
    a("v_add_u32 v%d, 0xc000, v%d" % (vK, vL16))
    a("v_add_u32 v%d, 0x10000, v%d" % (vV, vL16))
    a("v_mov_b32 v%d, 0xf149f2ca" % vNEG)
    a("s_mov_b32 s%d, 0" % sFail)
    a("v_mfma_f32_32x32x16_bf16 a[%d:%d], a[236:239], a[236:239], 0" % (aL, aL + 15))


def setup2(a):
    if NPF:
        pf_setup(a)
    srd(a, sCtx, P_WS, 16 * MB, WS_CTX)
    a("v_and_b32 v%d, 15, v1" % vT)
    a("v_lshrrev_b32 v%d, 4, v1" % (vT + 1))
    a("v_sub_u32 v%d, v%d, v%d" % (vT, vT, vT + 1))
    a("v_lshlrev_b32 v%d, 2, v%d" % (vT, vT))
    a("v_add_u32 v%d, s%d, v%d" % (vT, S_WAVE, vT))
    for j in range(4):
        for r in range(4):
            m = sMask + 2 * (4 * j + r)
            a("v_cmp_gt_i32 s[%d:%d], %d, v%d" % (m, m + 1, 16 * j + r, vT))
    a("s_mov_b32 s%d, 0x8000" % sMa)
    a("s_mov_b32 s%d, 0x4000" % sMb)


def attention(a, st, H):
    R = build_rounds()
    for k in ('e0', 't7'):
        R[k].xdma, R[k].xq = H.pre_e1(), [('fl', 0)]
    R['e1'].xdma, R['e2'].xdma = H.e1_items(), H.e2_items()
    simulate(R, H.q0)
    a("s_waitcnt vmcnt(%d)" % (len(H.q0) - 1 - max(i for i, t in enumerate(H.q0) if t == ('K', 0))))
    a("s_barrier")
    st(a)
    fq = qk_frags('D0', 0, vS)
    c0q, c0p, _ = R['c0'].frags()
    nx = (c0q + c0p)[:AH]
    assert len(nx) == 8
    sg = Seg([mfma(d, ('a', aF + 4 * (8 + j)), b, c) for j, (ring, off, ms) in enumerate(fq) for d, b, c in ms])
    sg.pre = [fread('K', fq[j][1], 8 + j, "f%d" % (8 + j)) for j in range(8)] + ["WAIT f9"]
    for j in range(8):
        if j and j % 2 == 0:
            sg.put(4 * j - 1, "WAIT f%d" % (9 + j))
        sg.put(4 * j + 3, fread('K', nx[j][1], 16 + j, "f%d" % (16 + j)))
    c = Col()
    setup2(c)
    g = 0
    for k, x in enumerate(c):
        if "s_addc" in x:
            continue
        if k + 1 < len(c) and "s_addc" in c[k + 1]:
            x += "\n" + c[k + 1]
        g = sg.place(x, g, lo=g)
        if kind(x) == 's' and k + 1 < len(c) and kind(c[k + 1]) != 's':
            g += 1
    L = sg.lines()
    L, pend = resolve_waits(L, [])
    for x in L:
        a(x)
    pend = ["f%d" % (int(t[1:]) - 16) for t in pend]
    a("s_cmp_lg_u32 s%d, 0" % sPair)
    a("s_cbranch_scc1 La_nomask0")
    for reg, x in sm_items(('D', 0), vS, vP)[0][0].items():
        a(x)
    a.label("La_nomask0")
    for g in range(4):
        rowmax(a, vS + 8 * g, vT + 2 * g, vT + 2 * g + 1)
    xmax(a, [(vT + 2 * g, vT + 2 * g + 1) for g in range(4)])
    for g in range(4):
        for r in range(4):
            a("v_sub_f32 v%d, 0, v%d" % (vNM + 4 * g + r, vT + 2 * g))
    for g in range(4):
        for e in range(0, 8, 2):
            b = vS + 8 * g + e
            a("v_pk_add_f32 v[%d:%d], v[%d:%d], v[%d:%d]" % (b, b + 1, b, b + 1, vNM + 4 * g, vNM + 4 * g + 1))
    state = {}

    def rnd(k, nk, ph, pend, extra=None):
        assert len(pend) <= 15
        return emit_round(a, R[k], R[nk] if nk else None, ph, pend, extra)

    def join(k, ph, pend):
        if k in state:
            assert state[k] == (ph, pend), (k, state[k], ph, pend)
        state[k] = (ph, list(pend))
    a("s_lshl_b32 s%d, s%d, 1" % (sCnt, sPair))
    ph, pend = rnd('c0', 'lo', 0, pend, ["s_cmp_eq_u32 s%d, 0" % sPair])
    join('lo', ph, pend)
    join('d1', ph, pend)
    a("s_cbranch_scc1 La_d1")
    a(".p2align 6")
    a.label("La_lo")
    ph, pend = rnd('lo', 'le', ph, pend, ["s_sub_u32 s%d, s%d, 1" % (sCnt, sCnt), "s_cmp_eq_u32 s%d, 0" % sCnt])
    join('d0', ph, pend)
    a("s_cbranch_scc1 La_d0")
    ph, pend = rnd('le', 'lo', ph, pend)
    a("s_xor_b32 s%d, s%d, 0xc000" % (sMa, sMa))
    a("s_xor_b32 s%d, s%d, 0xc000" % (sMb, sMb))
    join('lo', ph, pend)
    a("s_branch La_lo")
    a.label("La_d0")
    ph, pend = state['d0']
    ph, pend = rnd('d0', 'd1', ph, pend)
    join('d1', ph, pend)
    a.label("La_d1")
    ph, pend = rnd('d1', 'd2', ph, pend)
    ph, pend = rnd('d2', 'd3', ph, pend)
    H.after_d2()
    ph, pend = rnd('d3', 't0', ph, pend, ["s_cmp_eq_u32 s%d, 7" % sPair])
    join('t7', ph, pend)
    a("s_cbranch_scc1 La_t7")
    ph, pend = rnd('t0', 'so', ph, pend)
    st(a)
    epilogue(a, [0, 1], sPair)
    st(a)
    a("s_lshl_b32 s%d, s%d, 1" % (sCnt, sPair))
    a("s_sub_u32 s%d, 14, s%d" % (sCnt, sCnt))
    join('so', ph, pend)
    a(".p2align 6")
    a.label("La_so")
    ph, pend = rnd('so', 'se', ph, pend, ["s_sub_u32 s%d, s%d, 1" % (sCnt, sCnt), "s_cmp_eq_u32 s%d, 0" % sCnt])
    join('e0', ph, pend)
    a("s_cbranch_scc1 La_e0")
    ph, pend = rnd('se', 'so', ph, pend)
    join('so', ph, pend)
    a("s_branch La_so")
    a.label("La_t7")
    ph, pend = state['t7']
    ph, pend = rnd('t7', 'e1', ph, pend)
    if st.on:
        st.k -= 2
    st(a)
    epilogue(a, [0, 1], sPair)
    st(a)
    join('e1', ph, pend)
    a("s_branch La_e1")
    a.label("La_e0")
    ph, pend = state['e0']
    ph, pend = rnd('e0', 'e1', ph, pend)
    join('e1', ph, pend)
    a.label("La_e1")
    R['e1'].after_bar = H.at_e1
    ph, pend = rnd('e1', 'e2', ph, pend)
    ph, pend = rnd('e2', None, ph, pend)
    st(a)
    a("s_sub_u32 s%d, 15, s%d" % (sCnt, sPair))
    epilogue(a, [2, 3], sCnt)
    slow_path(a)
    if 'v' in FL:
        for k, r in R.items():
            print(k, "vm", r.vm, "cost", r.cost, file=sys.stderr)


def slow_path(a):
    vM, vLs, vD = vNM, vNM + 8, vNM + 4
    sRbk, sCh, sOff = 6, 7, 90
    a("s_cmp_eq_u32 s%d, 0" % sFail)
    a("s_cbranch_scc1 La_done")
    a("s_waitcnt vmcnt(0)")
    a("s_sub_u32 s%d, 15, s%d" % (sRbk, sPair))
    a.label("La_sl_blk")
    for i in range(64):
        a("v_mov_b32 v%d, 0" % (vO + 64 + i))
    for i in range(8):
        a("v_mov_b32 v%d, 0" % (vLs + i))
    a("v_mov_b32 v%d, v%d" % (vM, vNEG))
    a("v_mov_b32 v%d, v%d" % (vM + 1, vNEG))
    a("v_and_b32 v%d, 15, v1" % vD)
    a("v_lshrrev_b32 v%d, 4, v1" % (vD + 1))
    a("v_sub_u32 v%d, v%d, v%d" % (vD, vD, vD + 1))
    a("v_lshlrev_b32 v%d, 2, v%d" % (vD, vD))
    a("s_lshl_b32 s4, s%d, 7" % sRbk)
    a("s_add_u32 s4, s4, s%d" % S_WAVE)
    a("v_add_u32 v%d, s4, v%d" % (vD, vD))
    a("v_add_u32 v%d, 64, v%d" % (vD + 1, vD))
    a("s_add_u32 s%d, s%d, 1" % (sCh, sRbk))
    a("s_lshl_b32 s%d, s%d, 2" % (sCh, sCh))
    a("s_mov_b32 s%d, 0" % sOff)
    a.label("La_sl_loop")
    for i in range(16):
        if i % 4 == 0:
            a("s_add_u32 s4, s%d, %d" % (sOff, (i // 8) * 16384 + ((i // 4) & 1) * 4096))
        a("buffer_load_dwordx4 %s, v%d, s[%d:%d], s4 offen offset:%d%s" % (a4(4 * i), vL16, sKV, sKV + 3, (i % 4) * 1024, SC1))
    a("s_waitcnt vmcnt(0)")
    for jb in range(2):
        for ds in range(4):
            for k in range(2):
                a(mfma(('v', vS + 8 * k + 4 * jb), ('a', 4 * (4 * jb + ds)), Qreg(2 + k, ds), "0" if ds == 0 else None))
    for k in range(2):
        for jb in range(2):
            for r in range(4):
                x = vS + 8 * k + 4 * jb + r
                a("v_cmp_gt_i32 vcc, %d, v%d" % (16 * jb + r, vD + k))
                a("v_cndmask_b32 v%d, v%d, v%d, vcc" % (x, x, vNEG))
        a("v_subrev_u32 v%d, 32, v%d" % (vD + k, vD + k))
        rowmax(a, vS + 8 * k, vT + 2 * k, vT + 2 * k + 1)
    xmax(a, [(vT + 2 * k, vT + 2 * k + 1) for k in range(2)])
    for k in range(2):
        a("v_max_f32 v%d, v%d, v%d" % (vT + 2 * k, vT + 2 * k, vM + k))
        a("v_sub_f32 v%d, v%d, v%d" % (vT + 2 * k + 1, vM + k, vT + 2 * k))
        a("v_exp_f32 v%d, v%d" % (vT + 2 * k + 1, vT + 2 * k + 1))
        a("v_mov_b32 v%d, v%d" % (vM + k, vT + 2 * k))
        for e in range(8):
            a("v_sub_f32 v%d, v%d, v%d" % (vS + 8 * k + e, vS + 8 * k + e, vM + k))
        for e in range(8):
            a("v_exp_f32 v%d, v%d" % (vS + 8 * k + e, vS + 8 * k + e))
        for e in range(4):
            a("v_mul_f32 v%d, v%d, v%d" % (vLs + 4 * k + e, vLs + 4 * k + e, vT + 2 * k + 1))
        for e in range(32):
            x = vO + 64 + 32 * k + e
            a("v_mul_f32 v%d, v%d, v%d" % (x, x, vT + 2 * k + 1))
        for e in range(4):
            a("v_cvt_pk_bf16_f32 v%d, v%d, v%d" % (vP + 4 * k + e, vS + 8 * k + 2 * e, vS + 8 * k + 2 * e + 1))
    for k in range(2):
        a(mfma(('v', vLs + 4 * k), ('a', aOne), ('v', vP + 4 * k)))
        for db in range(8):
            a(mfma(Oreg(2 + k, db), ('a', 32 + 4 * db), ('v', vP + 4 * k)))
    a("s_add_u32 s%d, s%d, 8192" % (sOff, sOff))
    a("s_and_b32 s4, s%d, 0x4000" % sOff)
    a("s_add_u32 s%d, s%d, s4" % (sOff, sOff))
    a("s_sub_u32 s%d, s%d, 1" % (sCh, sCh))
    a("s_cmp_lg_u32 s%d, 0" % sCh)
    a("s_cbranch_scc1 La_sl_loop")
    ctx_base(a, sRbk)
    for k in range(2):
        a("v_rcp_f32 v%d, v%d" % (vT + 2 * k, vLs + 4 * k))
        a("v_mov_b32 v%d, v%d" % (vT + 2 * k + 1, vT + 2 * k))
    store_O(a, [2, 3])
    a("s_cmp_eq_u32 s%d, s%d" % (sRbk, sPair))
    a("s_cbranch_scc1 La_done")
    for i in range(32):
        a("v_accvgpr_read_b32 v%d, a%d" % (vS + i, aQ + i))
    for i in range(32):
        a("v_accvgpr_write_b32 a%d, v%d" % (aQ + 32 + i, vS + i))
    a("s_mov_b32 s%d, s%d" % (sRbk, sPair))
    a("s_branch La_sl_blk")
    a.label("La_done")
```

```python
from lib import *
from gemm4 import *

CB = (32 ** -0.5) * math.log2(math.e)
xv, hv, wv = 4, 14, 8
rd = 16
aRd = 216
sX, sW, sM1, sM2, sM3 = 30, 31, 26, 27, 28
sRb, sHp = 32, 33
KS = KSeq(0, 16, 29)
T = 32
A0 = 24
BASE, SLOT, WOFF = 32 * KB, 42 * KB, 18 * KB
XCH = 48 * KB
WS_ = 20


def accq(mi, b): return ('v', A0 + 4 * (2 * mi + b))
def acck(mi, b): return ('v', A0 + 32 + 4 * (2 * mi + b))
def accv(mi, b): return ('v', A0 + 64 + 4 * (2 * mi + b))
def acch(b): return ('v', A0 + 96 + 4 * b)


def make(rh):
    g = Gemm()
    g.name, g.woff = "p2r%d" % rh, WOFF
    R = Ring(3, SLOT, 88)
    R.regs = list(range(rd, rd + 6))
    g.rings = [R]
    g.xrd, g.wrd = [(rd, rd + 1), (rd + 2, rd + 3)], [rd + 4, rd + 5]
    g.xfr = [(0, 2048 * i) for i in range(4)] + [(1, 0)]
    g.wfr = [(b, p * 8192) for p in range(3) for b in range(2)]
    mf = []
    for b in range(2):
        mf += [(accq(mi, b), mi, b, 'wx') for mi in range(4)]
    for b in range(2):
        mf += [(acck(mi, b), mi, 2 + b, 'wx') for mi in range(4)]
        if rh == 0:
            mf.append((acch(b), 4, 2 + b, 'wx'))
    for b in range(2):
        mf += [(accv(mi, b), mi, 4 + b, 'xw') for mi in range(4)]
        if rh == 1:
            mf.append((acch(b), 4, 4 + b, 'xw'))
    g.mf = mf
    g.fx, g.fw = 0, 40
    g.sCnt = 35
    ld = lambda v, s, o, j: "buffer_load_dwordx4 v%d, s[%d:%d], s%d offen offset:%d lds" % (v, s, s + 3, o, 1024 * j)
    g.dma = [
        (R, ('s', sM3), [ld(hv, 8, sX, 0)], []),
        (R, 0, [ld(xv + j, 8, sX, j) for j in range(4)],
         ["s_mul_i32 s%d, s%d, %d" % (sW, KS.k, 64 * 6144)] + KS.step() + ["s_lshl_b32 s%d, s%d, 7" % (sX, KS.k)]),
        (R, ('s', sM1), [ld(wv + j, WS_, sW, j) for j in range(3)], []),
        (R, ('s', sM2), [ld(wv + 3 + j, WS_, sW, j) for j in range(3)], []),
    ]
    if rh:
        g.dma = g.dma[1:]
    return g


def stage_items(a, g0, s, what):
    L = []
    if 'x' in what:
        lab = a.newlabel("Lh")
        m, ld = g0.group_items(g0.dma[0], s * SLOT)
        L.append("s_cmp_ge_u32 s%d, 2\ns_cbranch_scc1 %s\n%s\ns_nop 0\n%s\n%s:" % (S_WAVE, lab, m, ld, lab))
        L += g0.group_items(g0.dma[1], s * SLOT)
    if 'w' in what:
        L += g0.group_items(g0.dma[2], s * SLOT) + g0.group_items(g0.dma[3], s * SLOT)
    return L


def xsrd():
    L = ["s_lshl_b32 s10, s%d, 18" % sRb,
         "s_add_u32 s8, s%d, s10\ns_addc_u32 s9, s%d, 0" % (P_BX, P_BX + 1),
         "s_sub_u32 s8, s8, %d\ns_subb_u32 s9, s9, 0" % (16 * 2048),
         "s_mov_b32 s10, %d" % (144 * 2048), "s_mov_b32 s11, 0x00020000"]
    return L


def setup(a, g):
    R = g.rings[0]
    a("s_and_b32 s4, s2, 1")
    a("s_lshl_b32 s4, s4, 3")
    a("s_bfe_u32 s5, s2, 0x30003")
    a("s_add_u32 s%d, s4, s5" % sRb)
    a("s_bfe_u32 s4, s2, 0x20001")
    a("s_lshl_b32 s4, s4, 2")
    a("s_lshr_b32 s5, s2, 6")
    a("s_add_u32 s%d, s4, s5" % sHp)
    srd(a, WS_, P_WQKV, 1024 * 6144)
    a("s_and_b32 s4, s2, 7")
    a("s_lshl_b32 s4, s4, 1")
    a("s_add_u32 s5, s%d, s%d" % (sRb, sHp))
    for x in KS.init("s5", "s4"):
        a(x)
    a("s_lshl_b32 s%d, s%d, 7" % (sX, KS.k))
    a("s_lshl_b32 s%d, s%d, 12" % (R.sWr, S_WAVE))
    a("s_add_u32 s%d, s%d, %d" % (R.sWr, R.sWr, BASE))
    a("s_lshl_b32 s4, s%d, 11" % S_WAVE)
    a("s_add_u32 s%d, s4, %d" % (sM1, WOFF))
    a("s_add_u32 s%d, s%d, 3072" % (sM2, sM1))
    a("s_mul_i32 s4, s%d, 3072" % S_WAVE)
    a("s_sub_u32 s%d, %d, s4" % (sM3, 16 * KB))
    lane_setup(a, T)
    a("s_lshl_b32 s4, s%d, 5" % S_WAVE)
    a("s_add_u32 s4, s4, 16")
    a("v_add_u32 v%d, s4, v%d" % (T + 2, T))
    a("v_lshl_add_u32 v%d, v%d, 11, v%d" % (T + 2, T + 2, T + 1))
    for j in range(4):
        a("v_add_u32 v%d, %d, v%d" % (xv + j, 8 * j * 2048 - 1024 * j, T + 2))
    a("s_lshl_b32 s4, s%d, 14" % S_WAVE)
    a("s_cmp_eq_u32 s%d, 0" % sRb)
    a("s_cselect_b32 s4, 0x40000000, s4")
    a("v_lshl_add_u32 v%d, v%d, 11, v%d" % (T + 2, T, T + 1))
    a("v_add_u32 v%d, s4, v%d" % (hv, T + 2))
    a("v_lshrrev_b32 v%d, 2, v%d" % (T + 2, T))
    a("v_and_b32 v%d, 3, v%d" % (T + 3, T))
    a("v_lshl_add_u32 v%d, v%d, 3, v%d" % (T + 2, T + 2, T + 3))
    a("v_mul_u32_u24 v%d, 6144, v%d" % (T + 2, T + 2))
    a("v_add_u32 v%d, v%d, v%d" % (T + 2, T + 2, T + 1))
    a("s_lshl_b32 s4, s%d, 7" % sHp)
    a("v_add_u32 v%d, s4, v%d" % (T + 2, T + 2))
    a("s_mul_i32 s6, s%d, 6" % S_WAVE)
    for j in range(6):
        a("s_add_u32 s7, s6, %d" % j)
        a("s_bfe_u32 s4, s7, 0x10002")
        a("s_lshl_b32 s4, s4, 5")
        a("s_and_b32 s5, s7, 1")
        a("s_lshl_b32 s5, s5, 4")
        a("s_add_u32 s4, s4, s5")
        a("s_bfe_u32 s5, s7, 0x10001")
        a("s_lshl_b32 s5, s5, 2")
        a("s_add_u32 s4, s4, s5")
        a("s_mul_i32 s4, s4, 6144")
        a("s_lshr_b32 s5, s7, 3")
        a("s_lshl_b32 s5, s5, 11")
        a("s_add_u32 s4, s4, s5")
        a("s_add_u32 s4, s4, %d" % (2048 - 1024 * (j % 3)))
        a("v_add_u32 v%d, s4, v%d" % (wv + j, T + 2))
    a("s_sub_u32 s%d, s%d, 2048" % (WS_, WS_))
    a("s_subb_u32 s%d, s%d, 0" % (WS_ + 1, WS_ + 1))
    a("s_add_u32 s%d, s%d, 2048" % (WS_ + 2, WS_ + 2))
    a("s_lshr_b32 s4, s%d, 1" % S_WAVE)
    a("s_lshl_b32 s4, s4, 13")
    a("s_add_u32 s4, s4, %d" % BASE)
    t = 40
    xread_base(a, t, t + 1, T, "s4")
    xread_base(a, t + 2, t + 3, T, "%d" % (BASE + 16 * KB))
    wread_base(a, [t + 4, t + 5], [0, 1], T, "%d" % BASE)
    a("s_and_b32 s4, s%d, 1" % S_WAVE)
    a("s_lshl_b32 s4, s4, 6")
    a("v_xor_b32 v%d, s4, v%d" % (t + 4, t + 4))
    a("v_xor_b32 v%d, s4, v%d" % (t + 5, t + 5))
    for i in range(6):
        a("v_accvgpr_write_b32 a%d, v%d" % (aRd + i, t + i))


def restore(a):
    for i in range(6):
        a("v_accvgpr_read_b32 v%d, a%d" % (rd + i, aRd + i))


def local_attn(a, rh, SF=SC1):
    QP, KP, VP, MC, MP, MP0 = 128, 144, 164, 184, 188, 192
    S0 = A0
    TM = 196
    cvt = lambda d, s: (a("v_cvt_pk_bf16_f32 v%d, v%d, v%d" % (d, s, s + 1)), a("v_cvt_pk_bf16_f32 v%d, v%d, v%d" % (d + 1, s + 2, s + 3)))
    a("s_and_b32 s4, s%d, 1" % S_WAVE)
    a("s_mul_i32 s4, s4, 3072")
    a("s_add_u32 s4, s4, %d" % XCH)
    a("v_add_u32 v%d, s4, v2" % TM)
    if rh == 0:
        for b in range(2):
            cvt(KP + 16 + 2 * b, acck(3, b)[1])
            cvt(VP + 10 * b + 8, accv(3, b)[1])
        a("ds_write_b128 v%d, %s" % (TM, v4(KP + 16)))
        a("ds_write_b64 v%d, v[%d:%d] offset:1024" % (TM, VP + 8, VP + 9))
        a("ds_write_b64 v%d, v[%d:%d] offset:1032" % (TM, VP + 18, VP + 19))
    else:
        for b in range(2):
            cvt(TM + 4 + 2 * b, acch(b)[1])
        a("ds_write_b128 v%d, %s offset:2048" % (TM, v4(TM + 4)))
    a("v_and_b32 v%d, 15, v1" % (TM + 1))
    a("v_lshrrev_b32 v%d, 4, v1" % (TM + 2))
    a("v_lshlrev_b32 v%d, 2, v%d" % (TM + 2, TM + 2))
    a("v_sub_u32 v%d, v%d, v%d" % (TM + 1, TM + 1, TM + 2))
    a("v_mov_b32 v%d, 0xf149f2ca" % (TM + 2))
    for r in range(4):
        a("v_subrev_u32 v%d, %d, v%d" % (TM + 3, r, TM + 1))
        a("v_and_b32 v%d, 0x80000001, v%d" % (MC + r, TM + 3))
        a("v_cmp_ne_u32 vcc, 0, v%d" % (MC + r))
        a("v_cndmask_b32 v%d, 0, v%d, vcc" % (MC + r, TM + 2))
        a("v_add_u32 v%d, 1, v%d" % (TM + 3, TM + 3))
        a("v_and_b32 v%d, 0x80000001, v%d" % (MP + r, TM + 3))
        a("v_cmp_ne_u32 vcc, 0x80000001, v%d" % (MP + r))
        a("v_cndmask_b32 v%d, 0, v%d, vcc" % (MP + r, TM + 2))
    if rh == 0:
        a("s_cmp_eq_u32 s%d, 0" % sRb)
        a("s_cselect_b64 vcc, -1, 0")
        for r in range(4):
            a("v_cndmask_b32 v%d, v%d, v%d, vcc" % (MP0 + r, MP + r, TM + 2))
    a("s_mov_b32 s6, 0x%08x" % f32bits(CB))
    a("s_mov_b32 s7, s6")
    for mi in range(4):
        for b in range(2):
            s = accq(mi, b)[1]
            a("v_pk_mul_f32 v[%d:%d], v[%d:%d], s[6:7]" % (s, s + 1, s, s + 1))
            a("v_pk_mul_f32 v[%d:%d], v[%d:%d], s[6:7]" % (s + 2, s + 3, s + 2, s + 3))
        for b in range(2):
            cvt(QP + 4 * mi + 2 * b, accq(mi, b)[1])
    for mi in range(4):
        for b in range(2):
            if not (rh == 0 and mi == 3):
                cvt(KP + 4 * (mi + 1) + 2 * b, acck(mi, b)[1])
                cvt(VP + 10 * b + 2 * (mi + 1), accv(mi, b)[1])
    if rh == 0:
        for b in range(2):
            cvt(KP + 2 * b, acch(b)[1])
    a("v_mov_b32 v%d, 0x3f803f80" % (TM + 4))
    for i in range(1, 4):
        a("v_mov_b32 v%d, v%d" % (TM + 4 + i, TM + 4))
    a("s_waitcnt lgkmcnt(0)")
    a("s_barrier")
    if rh == 0:
        a("ds_read_b64 v[%d:%d], v%d offset:2048" % (VP, VP + 1, TM))
        a("ds_read_b64 v[%d:%d], v%d offset:2056" % (VP + 10, VP + 11, TM))
    else:
        a("ds_read_b128 %s, v%d" % (v4(KP), TM))
        a("ds_read_b64 v[%d:%d], v%d offset:1024" % (VP, VP + 1, TM))
        a("ds_read_b64 v[%d:%d], v%d offset:1032" % (VP + 10, VP + 11, TM))
    order = [3, 2, 1, 0]
    for mi in order:
        if mi == 0:
            a("s_waitcnt lgkmcnt(0)")
        a(mfma(('v', S0 + 8 * mi), ('v', KP + 4 * mi), ('v', QP + 4 * mi), ('v', MP0 if (rh == 0 and mi == 0) else MP)))
        a(mfma(('v', S0 + 8 * mi + 4), ('v', KP + 4 * mi + 4), ('v', QP + 4 * mi), ('v', MC)))
    M = A0 + 32
    from attn4 import rowmax, xmax
    for mi in order:
        rowmax(a, S0 + 8 * mi, M + 2 * mi, M + 2 * mi + 1)
    xmax(a, [(M + 2 * mi, M + 2 * mi + 1) for mi in order])
    for mi in order:
        for e in range(8):
            a("v_sub_f32 v%d, v%d, v%d" % (S0 + 8 * mi + e, S0 + 8 * mi + e, M + 2 * mi))
        for e in range(8):
            a("v_exp_f32 v%d, v%d" % (S0 + 8 * mi + e, S0 + 8 * mi + e))
    PP, LL, OO = M + 8, M + 24, M + 40
    for mi in order:
        for e in range(4):
            a("v_cvt_pk_bf16_f32 v%d, v%d, v%d" % (PP + 4 * mi + e, S0 + 8 * mi + 2 * e, S0 + 8 * mi + 2 * e + 1))
    for mi in order:
        a(mfma(('v', LL + 4 * mi), ('v', TM + 4), ('v', PP + 4 * mi), "0"))
        for b in range(2):
            a(mfma(('v', OO + 8 * mi + 4 * b), ('v', VP + 10 * b + 2 * mi), ('v', PP + 4 * mi), "0"))
    srd(a, 20, P_WS, 4 * MB, WS_OB)
    a("s_lshl_b32 s4, s%d, 18" % sRb)
    a("s_lshl_b32 s5, s%d, 14" % sHp)
    a("s_add_u32 s4, s4, s5")
    a("s_and_b32 s5, s%d, 1" % S_WAVE)
    a("s_lshl_b32 s5, s5, 13")
    a("s_add_u32 s4, s4, s5")
    if rh:
        a("s_add_u32 s4, s4, 4096")
    for mi in order:
        a("v_rcp_f32 v%d, v%d" % (LL + 4 * mi, LL + 4 * mi))
    for mi in order:
        a("v_mov_b32 v%d, v%d" % (LL + 4 * mi + 1, LL + 4 * mi))
    for mi in order:
        o = OO + 8 * mi
        for e in range(0, 8, 2):
            a("v_pk_mul_f32 v[%d:%d], v[%d:%d], v[%d:%d]" % (o + e, o + e + 1, o + e, o + e + 1, LL + 4 * mi, LL + 4 * mi + 1))
        for e in range(4):
            a("v_cvt_pk_bf16_f32 v%d, v%d, v%d" % (o + e, o + 2 * e, o + 2 * e + 1))
        a("buffer_store_dwordx4 %s, v2, s[20:23], s4 offen offset:%d%s" % (v4(o), mi * 1024, SF))
```

```python
import os, sys, struct, math
sys.path.insert(0, os.path.join(os.path.dirname(os.path.abspath(__file__)), "..", "gen"))
from asmlib import Asm, Ins

MB = 1 << 20
KB = 1024
WS_KV = 16 * MB
WS_CTX = 64 * MB
WS_OB = 80 * MB
WS_XCH = 96 * MB
WS_DBG = 200 * MB
SC1 = "" if os.environ.get("NOSC1") else " sc1"
SC1L = "" if os.environ.get("NOSC1L") else " sc1"
WS_FLG = 120 * MB
S_FLG = 96
S_TAG = 94
F_QKV, F_OB, F_CTX, F_XA, F_XB, F_EPOCH = 0, 0x8000, 0x10000, 0x20000, 0x28000, 0x30000

S_WAVE = 3
S_PTR = 64
P_AX, P_CKV, P_WQ, P_WUK, P_WUV, P_WO, P_BX, P_WQKV, P_BWO, P_OUT, P_DBG, P_WS = [S_PTR + 2 * i for i in range(12)]


def f32bits(x):
    return struct.unpack("<I", struct.pack("<f", x))[0]


def log2(x):
    n = x.bit_length() - 1
    assert 1 << n == x, x
    return n


def v4(b):
    return "v[%d:%d]" % (b, b + 3)


def a4(b):
    return "a[%d:%d]" % (b, b + 3)


def r4(x):
    return "%s[%d:%d]" % (x[0], x[1], x[1] + 3)


def mfma(d, a, b, c=None):
    return "v_mfma_f32_16x16x32_bf16 %s, %s, %s, %s" % (r4(d), r4(a), r4(b), r4(d) if c is None else (c if isinstance(c, str) else r4(c)))


def srd(a, d, p, size, off=0, soff=None):
    if off:
        a("s_add_u32 s%d, s%d, %d" % (d, p, off))
        a("s_addc_u32 s%d, s%d, 0" % (d + 1, p + 1))
    if soff is not None:
        a("s_add_u32 s%d, s%d, s%d" % (d, d if off else p, soff))
        a("s_addc_u32 s%d, s%d, 0" % (d + 1, d + 1 if off else p + 1))
    if not off and soff is None:
        a("s_mov_b32 s%d, s%d" % (d, p))
        a("s_mov_b32 s%d, s%d" % (d + 1, p + 1))
    a("s_mov_b32 s%d, %s" % (d + 2, size if isinstance(size, str) else "%d" % size))
    a("s_mov_b32 s%d, 0x00020000" % (d + 3))


def kind(t):
    mn = t.split(None, 1)[0]
    if mn.startswith("s_") or mn == "WAIT":
        return 's'
    if mn.startswith("ds_"):
        return 'r'
    if mn.startswith("buffer_") or mn.startswith("global_"):
        return 'd'
    if mn.startswith(("v_exp", "v_rcp", "v_log")):
        return 'e'
    return 'c'


class Seg:
    def __init__(self, mf):
        self.mf = mf
        self.n = len(mf)
        self.pre = []
        self.sc = [[] for _ in mf]
        self.d = [[] for _ in mf]
        self.r = [[] for _ in mf]
        self.c = [[] for _ in mf]
        self.end = [[] for _ in mf]
        self.used = [0] * self.n

    def room(self, g, k):
        if k == 's':
            return len(self.sc[g]) == 0 or self.used[g] <= 4
        if k == 'e':
            return self.used[g] == 0
        if k == 'd':
            return self.used[g] <= 4 and not self.d[g] and not any(kind(x) == 'e' for x in self.c[g])
        return self.used[g] <= 4

    def put(self, g, t):
        k = kind(t)
        if k == 's':
            nl = t.count("\n") + 1
            self.used[g] += 4 * (nl - (0 if self.sc[g] else 1))
            self.sc[g].append(t)
        elif k == 'd':
            self.d[g].append(t)
            self.used[g] += 4
        elif k == 'r':
            self.r[g].append(t)
            self.used[g] += 4
        else:
            self.c[g].append(t)
            self.used[g] += 8 if k == 'e' else 4
        return g

    def place(self, t, want, lo=0, hi=None):
        hi = self.n - 1 if hi is None else min(hi, self.n - 1)
        want = max(lo, min(want, hi))
        k = kind(t)
        for g in range(want, hi + 1):
            if self.room(g, k):
                return self.put(g, t)
        for g in range(want - 1, lo - 1, -1):
            if self.room(g, k):
                return self.put(g, t)
        g = min(range(lo, hi + 1), key=lambda q: (self.used[q], abs(q - want)))
        return self.put(g, t)

    def stream(self, items, g0, g1, strict=False):
        out = []
        n = len(items)
        last = g0
        for i, t in enumerate(items):
            want = g0 + (i * (g1 - g0 + 1)) // n
            g = self.place(t, max(want, last), lo=last, hi=g1 if strict else None)
            last = g
            out.append(g)
        return out

    def lines(self):
        L = list(self.pre)
        for g in range(self.n):
            L.append(self.mf[g])
            for t in self.sc[g] + self.d[g] + self.r[g] + self.c[g] + self.end[g]:
                L += t.split("\n")
        return L

    def cost(self):
        return sum(16 + max(0, self.used[g] - 8) + (4 if self.d[g] else 0) for g in range(self.n))


def resolve_waits(lines, pend):
    out = []
    pend = list(pend)
    later = set(t.split("@")[1].strip() for t in lines if t.startswith("ds_") and "@" in t)
    for t in lines:
        if t.startswith("ds_") and "@" in t:
            later.discard(t.split("@")[1].strip())
        if t.startswith("WAIT"):
            assert t.split()[1] not in later, "wait before its read: " + t
            parts = t.split()
            tag = parts[1]
            extra = " ".join(parts[2:])
            if tag == '*':
                n = 0
            elif tag in pend:
                n = len(pend) - 1 - pend.index(tag)
            else:
                n = None
            if n is None:
                if extra:
                    out.append("s_waitcnt " + extra)
                continue
            assert n <= 15, (n, tag)
            pend = pend[len(pend) - n:] if n else []
            out.append(("s_waitcnt %s lgkmcnt(%d)" % (extra, n)).replace("  ", " "))
            continue
        if t.startswith("ds_"):
            pend.append(t.split("@")[1].strip() if "@" in t else "?")
        out.append(t)
    return out, pend


def kdesc(name, nv, acc, ns=102):
    return """.p2align 6
.amdhsa_kernel %s
  .amdhsa_next_free_vgpr %d
  .amdhsa_next_free_sgpr %d
  .amdhsa_accum_offset %d
  .amdhsa_group_segment_fixed_size 0
  .amdhsa_kernarg_size 96
  .amdhsa_user_sgpr_count 2
  .amdhsa_user_sgpr_kernarg_segment_ptr 1
  .amdhsa_system_sgpr_workgroup_id_x 1
.end_amdhsa_kernel
""" % (name, nv, ns, acc)


def kstart(name):
    return ".globl %s\n.p2align 8\n.type %s,@function\n%s:\n" % (name, name, name)


class Stamps:
    def __init__(self, on, kern):
        self.on, self.kern, self.k = on, kern, 0

    def __call__(self, a):
        if not self.on:
            return
        k = self.k
        self.k += 1
        assert k < 32
        a("s_memrealtime s[100:101]")
        a("s_waitcnt lgkmcnt(0)")
        a("v_writelane_b32 v15, s100, %d" % (2 * k))
        a("s_memtime s[100:101]")
        a("s_waitcnt lgkmcnt(0)")
        a("v_writelane_b32 v15, s100, %d" % (2 * k + 1))

    def flush(self, a):
        if not self.on:
            return
        if os.environ.get("AMP"):
            j, k = [int(x) for x in os.environ["AMP"].split(",")]
            a("v_readlane_b32 s4, v15, %d" % (2 * k))
            a("v_readlane_b32 s5, v15, %d" % (2 * j))
            a("s_memrealtime s[100:101]")
            a("s_sub_u32 s4, s4, s5")
            a("s_lshl_b32 s4, s4, 1")
            a("s_waitcnt lgkmcnt(0)")
            a("s_mov_b32 s6, s100")
            a.label("Lamp")
            a("s_memrealtime s[100:101]")
            a("s_waitcnt lgkmcnt(0)")
            a("s_sub_u32 s5, s100, s6")
            a("s_cmp_lt_u32 s5, s4")
            a("s_cbranch_scc1 Lamp")
            return
        L = a.newlabel("Lst")
        a("s_cmp_lg_u32 s%d, 0" % S_WAVE)
        a("s_cbranch_scc1 %s" % L)
        srd(a, 16, P_WS, 1 * MB, WS_DBG + self.kern * 65536)
        a("s_lshl_b32 s4, s2, 8")
        a("v_mbcnt_lo_u32_b32 v14, -1, 0")
        a("v_mbcnt_hi_u32_b32 v14, -1, v14")
        a("v_lshlrev_b32 v14, 2, v14")
        a("buffer_store_dword v15, v14, s[16:19], s4 offen")
        if os.environ.get("DBGWG"):
            a("s_cmp_lg_u32 s2, %s" % os.environ["DBGWG"])
            a("s_cbranch_scc1 %s" % L)
            srd(a, 16, P_DBG, 256)
            sel = [int(x) for x in os.environ.get("DBGSEL", "0,1,2,3,4,5,6,8,11,12,13,15,16,20").split(",")]
            a("v_readlane_b32 s5, v15, 0")
            for i, k in enumerate(sel):
                a("v_readlane_b32 s4, v15, %d" % (2 * k))
                a("s_sub_u32 s4, s4, s5")
                a("v_mov_b32 v14, s4")
                a("buffer_store_dword v14, off, s[16:19], 0 offset:%d" % (8 + 4 * i))
        a.label(L)


class Col(list):
    def __call__(self, t):
        self.extend(x.strip() for x in t.split("\n") if x.strip())


def signal(a, vt, soffs, va=None):
    va = vt + 2 if va is None else va
    a("v_mov_b32 v%d, 0x40000000" % va)
    a("v_mov_b32 v%d, s%d" % (vt, S_TAG))
    a("v_cmp_eq_u32 vcc, 0, v0")
    a("v_mov_b32 v%d, s%d" % (vt + 1, S_TAG + 1))
    a("v_cndmask_b32_e64 v%d, v%d, 0, vcc" % (va, va))
    for o in soffs:
        a("buffer_store_dwordx2 v[%d:%d], v%d, s[%d:%d], %s offen sc1 ; @signal" % (vt, vt + 1, va, S_FLG, S_FLG + 3, o))


def flag_addr(va, n=16):
    return ["v_and_b32 v%d, %d, v1" % (va, n - 1), "v_lshlrev_b32 v%d, 7, v%d" % (va, va)]


def flag_load(dst, soff, va=None):
    if va is None:
        return "buffer_load_dwordx2 v[%d:%d], off, s[%d:%d], %s sc1" % (dst, dst + 1, S_FLG, S_FLG + 3, soff)
    return "buffer_load_dwordx2 v[%d:%d], v%d, s[%d:%d], %s offen sc1" % (dst, dst + 1, va, S_FLG, S_FLG + 3, soff)


def tag_make(a, part, younger=0):
    L = a.newlabel("Ltag")
    a("s_or_b32 s4, s2, s%d" % S_WAVE)
    a("s_cbranch_scc1 %s" % L)
    a("s_mov_b32 s4, %d" % F_EPOCH)
    if part == 0:
        a(flag_load(22, "s4"))
    else:
        srd(a, 92, P_DBG, 256)
        a("s_waitcnt vmcnt(%d)" % younger)
        a("v_add_u32 v22, 1, v22")
        a("v_or_b32 v23, 0x80000000, v23")
        a("buffer_store_dwordx2 v[22:23], off, s[%d:%d], s4 sc1" % (S_FLG, S_FLG + 3))
        a("buffer_store_dwordx2 v[22:23], off, s[92:95], 0 sc1")
    a.label(L)


def tag_load(a, dst, d=12):
    srd(a, d, P_DBG, 256)
    a("buffer_load_dwordx2 v[%d:%d], off, s[%d:%d], 0 sc1" % (dst, dst + 1, d, d + 3))


def tag_get(a, dst, d=12):
    L, D = a.newlabel("Ltg"), a.newlabel("Lpolld")
    a("s_mov_b32 s5, 0x40000")
    a.label(L)
    a("v_readfirstlane_b32 s%d, v%d" % (S_TAG, dst))
    a("v_readfirstlane_b32 s%d, v%d" % (S_TAG + 1, dst + 1))
    a("s_cmp_lg_u32 s%d, 0" % (S_TAG + 1))
    a("s_cbranch_scc1 %s" % D)
    a("s_sleep 4")
    tag_load(a, dst, d)
    a("s_sub_u32 s5, s5, 1")
    a("s_waitcnt vmcnt(0)")
    a("s_cbranch_scc0 %s ; @poll" % L)
    a.label(D)


class VmQ:
    def __init__(self):
        self.q = []

    def push(self, tag, n):
        self.q += [tag] * n

    def need(self, *tags):
        idx = max([i for i, t in enumerate(self.q) if t in tags], default=-1)
        n = len(self.q) - 1 - idx
        self.q = self.q[idx + 1:]
        return n


def flag_check(a, dst, soff, va=None):
    L, D = a.newlabel("Lpoll"), a.newlabel("Lpolld")
    a("s_mov_b32 s5, 0x40000")
    a.label(L)
    a("v_cmp_ne_u64 vcc, s[%d:%d], v[%d:%d]" % (S_TAG, S_TAG + 1, dst, dst + 1))
    a("s_cbranch_vccz %s" % D)
    a("s_sleep 4")
    a(flag_load(dst, soff, va))
    a("s_sub_u32 s5, s5, 1")
    a("s_waitcnt vmcnt(0)")
    a("s_cbranch_scc0 %s ; @poll" % L)
    a.label(D)


def weave_lines(lines, items, f0=0.0, f1=1.0):
    spots = [i for i in range(1, len(lines)) if lines[i].startswith("v_") and lines[i - 1].startswith("v_") and "vcc" not in lines[i]]
    spots = spots[int(f0 * len(spots)):max(int(f1 * len(spots)), 1)]
    units, cur = [], []
    for x in items:
        cur.append(x)
        if kind(x) == 'd':
            units.append(cur)
            cur = []
    if cur:
        units[-1] += cur
    at = {}
    for k, u in enumerate(units):
        at.setdefault(spots[k * len(spots) // len(units)], []).extend(u)
    out = []
    for i, l in enumerate(lines):
        out += at.get(i, [])
        out.append(l)
    return out


LEAD = int(os.environ.get("LEAD", 2))


class KSeq:
    def __init__(self, sk, nk, tmp):
        self.k, self.ctl, self.nk, self.t = sk, sk + 1, nk, tmp
        e = [LEAD if p == 0 else (-1 if p <= LEAD else 0) for p in range(4)] if LEAD else [0] * 4
        self.e = e
        self.pat = sum((((1 + e[(p + 1) & 3] - e[p]) % nk) << (8 * p)) for p in range(4))

    def wrap(self):
        if self.nk & (self.nk - 1) == 0:
            return ["s_and_b32 s%d, s%d, %d" % (self.k, self.k, self.nk - 1)]
        return ["s_cmp_ge_u32 s%d, %d\ns_cselect_b32 s%d, %d, 0" % (self.k, self.nk, self.t, self.nk),
                "s_sub_u32 s%d, s%d, s%d" % (self.k, self.k, self.t)]

    def init(self, sg, sbase):
        first = sum(((x % self.nk) << (8 * p)) for p, x in enumerate(self.e))
        return ["s_and_b32 s%d, %s, 3" % (self.ctl, sg), "s_lshl_b32 s%d, s%d, 3" % (self.ctl, self.ctl),
                "s_or_b32 s%d, s%d, 0x80000" % (self.ctl, self.ctl), "s_bfe_u32 s%d, 0x%x, s%d" % (self.k, first, self.ctl),
                "s_add_u32 s%d, s%d, %s" % (self.k, self.k, sbase)] + self.wrap()

    def copy(self, o):
        return ["s_mov_b32 s%d, s%d" % (self.k, o.k), "s_mov_b32 s%d, s%d" % (self.ctl, o.ctl)]

    def step(self):
        return ["s_bfe_u32 s%d, 0x%x, s%d" % (self.t, self.pat, self.ctl), "s_add_u32 s%d, s%d, s%d" % (self.k, self.k, self.t),
                "s_add_u32 s%d, s%d, 8" % (self.ctl, self.ctl), "s_and_b32 s%d, s%d, 0x8001f" % (self.ctl, self.ctl)] + self.wrap()
```

```python
from lib import *
from gemm4 import *

wv = 10
rdx, rdw = 16, 18
sX, sW, sWv, sHo = 70, 71, 79, 88
sRb, sCt, sKh, sTile = 73, 76, 77, 78
T = 24
AB, AA, PB, PA = 32, 96, 160, 192
NS = 4
aSave = 212
DL = int(os.environ.get("DL", 4))


sXb, sWb = 92, 93
KS = {n: (KSeq(0, n, 72), KSeq(30, n, 72)) for n in (8, 32 - DL)}


def acc(base, mi, ni): return ('v', base + 4 * (4 * mi + ni))


def make(name, base, half=False):
    g = Gemm()
    g.name, g.woff = name, 16 * KB
    g.xlin, g.xhs = True, 8192
    R = Ring(NS, 32 * KB, 64)
    R.regs = list(range(rdx, rdw + 4))
    g.rings = [R]
    g.xrd, g.wrd = [(rdx, rdx), (rdx + 1, rdx + 1)], list(range(rdw, rdw + 4))
    g.xfr = [(i >> 1, 1024 * (i & 1)) for i in range(4)]
    g.wfr = [(b, 0) for b in range(4)]
    g.mf = [(acc(base, mi, ni), mi, ni, 'wx') for ni in range(4) for mi in range(2 if half else 4)]
    g.fx, g.fw = 64, 96
    g.sCnt = 69
    ld = lambda v, s, o, j, f: "buffer_load_dwordx4 v%d, s[%d:%d], s%d offen offset:%d%s lds" % (v, s, s + 3, o, 1024 * j, f)
    g.dma = [
        (R, 16 * KB, [ld(wv + j, 12, sW, j, "") for j in range(4)], ["s_add_u32 s%d, s%d, %d" % (sW, sW, 64 * 2048)]),
        (R, 0, [ld(2, 8, sX, j, SC1L) for j in range(4)], ["s_add_u32 s%d, s%d, %d" % (sX, sX, 16 * KB)]),
    ]
    if not half:
        kx, kw = KS[8 if base == AB else 32 - DL]
        g.dma[0] = g.dma[0][:3] + (kw.step() + ["s_lshl_b32 s72, s%d, 17" % kw.k, "s_add_u32 s%d, s%d, s72" % (sW, sWb)],)
        g.dma[1] = g.dma[1][:3] + (kx.step() + ["s_lshl_b32 s72, s%d, 14" % kx.k, "s_add_u32 s%d, s%d, s72" % (sX, sXb)],)
    if half:
        g.dma[1] = (R, ('s', sHo), [ld(2, 8, sX, j, SC1L) for j in range(2)], ["s_add_u32 s%d, s%d, %d" % (sX, sX, 16 * KB)])
    return g


def to_half():
    return ["s_and_b32 s%d, s%d, 1" % (sHo, S_WAVE), "s_lshl_b32 s%d, s%d, 12" % (sHo, sHo),
            "s_lshr_b32 s72, s%d, 1" % S_WAVE, "s_lshl_b32 s72, s72, 13", "s_add_u32 s%d, s%d, s72" % (sHo, sHo),
            "s_lshl_b32 s72, s%d, 11" % sKh, "s_add_u32 s%d, s%d, s72" % (sHo, sHo), "s_sub_u32 s%d, s%d, s%d" % (sHo, sHo, sWv),
            "s_add_u32 s%d, s%d, s%d" % (sX, sXb, sHo), "s_add_u32 s%d, s%d, %d" % (sX, sX, (32 - DL) << 14),
            "s_add_u32 s%d, s%d, %d" % (sW, sWb, (32 - DL) << 17)]


def to_partner():
    return ["s_sub_u32 s%d, s%d, %d" % (sX, sX, DL << 14), "s_xor_b32 s%d, s%d, %d" % (sX, sX, 1 << 19),
            "s_sub_u32 s%d, s%d, %d" % (sW, sW, DL << 17), "s_xor_b32 s%d, s%d, %d" % (sW, sW, 1 << 22)]


def ids(a):
    a("s_and_b32 s4, s2, 1")
    a("s_lshl_b32 s4, s4, 3")
    a("s_bfe_u32 s5, s2, 0x30003")
    a("s_add_u32 s%d, s4, s5" % sRb)
    a("s_bfe_u32 s4, s2, 0x10001")
    a("s_lshl_b32 s4, s4, 2")
    a("s_lshr_b32 s5, s2, 6")
    a("s_add_u32 s%d, s4, s5" % sCt)
    a("s_bfe_u32 s%d, s2, 0x10002" % sKh)
    a("s_lshl_b32 s%d, s%d, 3" % (sTile, sRb))
    a("s_add_u32 s%d, s%d, s%d" % (sTile, sTile, sCt))
    a("s_lshl_b32 s%d, s%d, 12" % (sWv, S_WAVE))
    a("s_add_u32 s64, s%d, %d" % (sWv, 128 * KB))


def lanes(a, T):
    lane_setup(a, T)
    a("s_and_b32 s4, s%d, 1" % S_WAVE)
    a("s_lshl_b32 s4, s4, 16")
    a("s_lshr_b32 s5, s%d, 1" % S_WAVE)
    a("s_lshl_b32 s5, s5, 7")
    a("s_add_u32 s4, s4, s5")
    a("v_lshl_add_u32 v%d, v%d, 11, v%d" % (T, T, T + 1))
    a("v_add_u32 v%d, s4, v%d" % (T, T))
    for j in range(4):
        a("v_add_u32 v%d, %d, v%d" % (T + 1, j * (8 * 2048 - 1024), T))
        a("v_accvgpr_write_b32 a%d, v%d" % (aSave + j, T + 1))


def stage_items(g, s, what):
    L = []
    for i, w in enumerate("wx"):
        if w in what:
            ring, m0, ins, post = g.dma[i]
            L += ["s_add_u32 m0, s%d, %d" % (sWv, (1 + (3 + s) % NS) * 32 * KB + m0)] + ins + post
    return L


def job_w(isA):
    c = Col()
    srd(c, 12, P_WO if isA else P_BWO, (4096 if isA else 1024) * 2048)
    c("s_lshl_b32 s%d, s%d, %d" % (sWb, sKh, 22 if isA else 20))
    c("s_lshl_b32 s72, s%d, 8" % sCt)
    c("s_add_u32 s%d, s%d, s72" % (sWb, sWb))
    kw = KS[32 - DL if isA else 8][1]
    return list(c) + ["s_add_u32 s72, s%d, s%d" % (sRb, sCt)] + kw.init("s72", "0") + \
        ["s_lshl_b32 s72, s%d, 17" % kw.k, "s_add_u32 s%d, s%d, s72" % (sW, sWb)]


def job_x(isA):
    off = WS_CTX if isA else WS_OB
    L = ["s_add_u32 s8, s%d, %d\ns_addc_u32 s9, s%d, 0" % (P_WS, off, P_WS + 1),
         "s_mov_b32 s10, %d" % ((16 if isA else 4) * MB), "s_mov_b32 s11, 0x00020000",
         "s_lshl_b32 s%d, s%d, 1" % (sXb, sRb), "s_add_u32 s%d, s%d, s%d" % (sXb, sXb, sKh),
         "s_lshl_b32 s%d, s%d, %d" % (sXb, sXb, 19 if isA else 17),
         "s_add_u32 s%d, s%d, s%d" % (sXb, sXb, sWv)]
    kx = KS[32 - DL if isA else 8][0]
    L += ["s_add_u32 s72, s%d, s%d" % (sRb, sCt)] + kx.init("s72", "0") + \
        ["s_lshl_b32 s72, s%d, 14" % kx.k, "s_add_u32 s%d, s%d, s72" % (sX, sXb)]
    return L


def read_bases(a, slot):
    a("s_lshr_b32 s4, s%d, 1" % S_WAVE)
    a("s_lshl_b32 s4, s4, 12")
    a("s_add_u32 s4, s4, %d" % (slot * 32 * KB))
    a("s_lshl_b32 s5, s%d, 11" % sKh)
    a("s_add_u32 s4, s4, s5")
    a("v_add_u32 v%d, s4, v2" % rdx)
    a("v_xor_b32 v%d, 0x800, v%d" % (rdx + 1, rdx))
    a("s_and_b32 s4, s%d, 1" % S_WAVE)
    a("s_lshl_b32 s4, s4, 13")
    a("s_add_u32 s4, s4, %d" % (slot * 32 * KB))
    wread_base(a, list(range(rdw, rdw + 4)), range(4), T, "s4")


def xch_srd(a):
    srd(a, 16, P_WS, 16 * MB, WS_XCH)


def xch_off(a, d, isA, mine):
    a("s_lshl_b32 s%d, s%d, 1" % (d, sTile))
    a("s_add_u32 s%d, s%d, s%d" % (d, d, sKh))
    if not mine:
        a("s_xor_b32 s%d, s%d, 1" % (d, d))
    a("s_lshl_b32 s%d, s%d, 2" % (d, d))
    a("s_add_u32 s%d, s%d, s%d" % (d, d, S_WAVE))
    a("s_lshl_b32 s%d, s%d, 13" % (d, d))
    if not isA:
        a("s_add_u32 s%d, s%d, %d" % (d, d, 8 * MB))


def send_items(base, isA, d):
    c = Col()
    xch_off(c, d, isA, False)
    c("s_add_u32 s%d, s%d, 4096" % (d + 1, d))
    for i in range(8):
        c("buffer_store_dwordx4 %s, v2, s[16:19], s%d offen offset:%d%s" % (v4(base + 32 + 4 * i), d + i // 4, 1024 * (i % 4), SC1))
    return list(c)


def recv_items(isA, d):
    c = Col()
    xch_off(c, d, isA, True)
    c("s_add_u32 s%d, s%d, 4096" % (d + 1, d))
    for i in range(8):
        c("buffer_load_dwordx4 %s, v2, s[16:19], s%d offen offset:%d%s" % (v4((PA if isA else PB) + 4 * i), d + i // 4, 1024 * (i % 4), SC1))
    return list(c)


def flag_pos(a, isA, mine, d):
    a("s_lshl_b32 s%d, s%d, 1" % (d, sTile))
    a("s_add_u32 s%d, s%d, s%d" % (d, d, sKh))
    if not mine:
        a("s_xor_b32 s%d, s%d, 1" % (d, d))
    a("s_lshl_b32 s%d, s%d, 7" % (d, d))
    a("s_add_u32 s%d, s%d, %d" % (d, d, F_XA if isA else F_XB))


def out_setup(a):
    srd(a, 20, P_OUT, 8 * MB)
    a("v_bfe_u32 v%d, v1, 4, 1" % (T + 1))
    a("v_lshrrev_b32 v%d, 5, v1" % (T + 2))
    a("v_lshl_or_b32 v%d, v%d, 1, v%d" % (T + 1, T + 1, T + 2))
    a("v_lshlrev_b32 v%d, 4, v%d" % (T + 1, T + 1))
    a("v_and_b32 v%d, 15, v1" % T)
    a("v_lshl_add_u32 v%d, v%d, 14, v%d" % (T + 2, T, T + 1))
    a("v_lshl_add_u32 v%d, v%d, 12, v%d" % (T + 3, T, T + 1))


def out_off(a, isA, d):
    a("s_lshl_b32 s%d, s%d, 19" % (d, sRb))
    a("s_lshl_b32 s72, s%d, 8" % sCt)
    a("s_add_u32 s%d, s%d, s72" % (d, d))
    a("s_and_b32 s72, s%d, 1" % S_WAVE)
    a("s_lshl_b32 s72, s72, 7")
    a("s_add_u32 s%d, s%d, s72" % (d, d))
    a("s_lshr_b32 s72, s%d, 1" % S_WAVE)
    a("s_lshl_b32 s72, s72, 1")
    a("s_add_u32 s72, s72, s%d" % sKh)
    a("s_lshl_b32 s72, s72, %d" % (12 if isA else 17))
    a("s_add_u32 s%d, s%d, s72" % (d, d))
    if not isA:
        a("s_add_u32 s%d, s%d, 2048" % (d, d))
    a("s_add_u32 s%d, s%d, %d" % (d + 1, d, (64 if isA else 16) * 4096))


def finish(base, isA, d):
    PR = PA if isA else PB
    out = []
    for q in range(4):
        u = PR + 8 * q
        L = ["v_pk_add_f32 v[%d:%d], v[%d:%d], v[%d:%d]" % (u + e, u + e + 1, u + e, u + e + 1, base + 8 * q + e, base + 8 * q + e + 1) for e in range(0, 8, 2)]
        L += ["v_cvt_pk_bf16_f32 v%d, v%d, v%d" % (u + e, u + 2 * e, u + 2 * e + 1) for e in range(4)]
        L += ["v_permlane16_swap_b32 v%d, v%d" % (u, u + 2), "v_permlane16_swap_b32 v%d, v%d" % (u + 1, u + 3)]
        L += ["buffer_store_dwordx4 %s, v%d, s[20:23], s%d offen offset:%d%s" % (v4(u), T + (2 if isA else 3), d + (q >> 1), (q & 1) * 64,
                                                                                os.environ.get("OUTF", ""))]
        out.append(L)
    return out
```

```python
from lib import *
from gemm4 import *

xv, wv = 48, 56
sX, sW = 46, 47
sM0, sN0 = 61, 62
sSt = 63
T = 32
ROT = int(os.environ.get("ROT", 1))
KS = KSeq(48, 8, 34)
XS0 = 2


def acc(mi, ni):
    b = mi * 8 + ni
    return ('v', 64 + 4 * b) if b < 48 else ('a', 128 + 4 * (b - 48))


def make(orient):
    g = Gemm()
    g.name = "p1" + orient
    RX, RW = Ring(3, 32 * KB, 36), Ring(2, 32 * KB, 41)
    RX.regs, RW.regs = [16, 17], [18, 19, 20, 21]
    g.rings = [RX, RW]
    g.xrd, g.wrd = [(16, 17)], [18, 19, 20, 21]
    g.xfr = [(0, 2048 * i) for i in range(8)]
    g.wfr = [(ni & 3, (ni >> 2) * 8192) for ni in range(8)]
    g.mf = [(acc(mi, ni), mi, ni, orient) for ni in range(8) for mi in range(8)]
    g.fx, g.fw = 0, 64
    g.sCnt = 35
    ld = lambda v, s, o, j: "buffer_load_dwordx4 v%d, s[%d:%d], s%d offen offset:%d lds" % (v + j, s, s + 3, o, 1024 * (j & 3))
    g.dma = [
        (RW, 0, [ld(wv, 12, sW, j) for j in range(4)], []),
        (RW, 4096, [ld(wv, 12, sW, j) for j in range(4, 8)], []),
        (RX, 0, [ld(xv, 8, sX, j) for j in range(4)], []),
        (RX, 4096, [ld(xv, 8, sX, j) for j in range(4, 8)],
         ["s_lshl_b32 s%d, s%d, 19" % (sW, KS.k)] + KS.step() + ["s_lshl_b32 s%d, s%d, 7" % (sX, KS.k)]),
    ]
    return g


def xitems(g, s):
    off = (((XS0 + s) % 3) - XS0) * 32 * KB
    return g.group_items(g.dma[2], off) + g.group_items(g.dma[3], off)


def witems(g, s):
    return g.group_items(g.dma[0], s * 32 * KB) + g.group_items(g.dma[1], s * 32 * KB)


def setup(a, g):
    RX, RW = g.rings
    a("s_and_b32 s4, s2, 1")
    a("s_lshl_b32 s4, s4, 2")
    a("s_bfe_u32 s5, s2, 0x20003")
    a("s_add_u32 s%d, s4, s5" % sM0)
    a("s_bfe_u32 s4, s2, 0x20001")
    a("s_lshl_b32 s4, s4, 2")
    a("s_bfe_u32 s5, s2, 0x20005")
    a("s_add_u32 s%d, s4, s5" % sN0)
    a("s_lshl_b32 s4, s%d, 13" % S_WAVE)
    a("s_add_u32 s%d, s4, %d" % (RX.sWr, XS0 * 32 * KB))
    a("s_add_u32 s%d, s4, %d" % (RW.sWr, 96 * KB))
    lane_setup(a, T)
    a("s_lshl_b32 s4, s%d, 2" % sM0)
    a("s_add_u32 s4, s4, s%d" % S_WAVE)
    a("s_lshl_b32 s4, s4, 6")
    a("v_add_u32 v%d, s4, v%d" % (T + 2, T))
    a("v_lshl_add_u32 v%d, v%d, 10, v%d" % (T + 2, T + 2, T + 1))
    for j in range(8):
        a("v_add_u32 v%d, %d, v%d" % (xv + j, 8 * j * 1024 - 1024 * (j & 3), T + 2))
    a("v_lshrrev_b32 v%d, 2, v%d" % (T + 2, T))
    a("v_and_b32 v%d, 3, v%d" % (T + 3, T))
    a("v_lshl_add_u32 v%d, v%d, 3, v%d" % (T + 2, T + 2, T + 3))
    a("s_lshl_b32 s4, s%d, 2" % sN0)
    a("s_add_u32 s4, s4, s%d" % S_WAVE)
    a("s_lshl_b32 s4, s4, 7")
    a("v_lshl_add_u32 v%d, v%d, 13, v%d" % (T + 2, T + 2, T + 1))
    a("v_add_u32 v%d, s4, v%d" % (T + 2, T + 2))
    for j in range(8):
        a("v_add_u32 v%d, %d, v%d" % (wv + j, (32 * (j >> 2) + 16 * (j & 1) + 4 * ((j >> 1) & 1)) * 8192 - 1024 * (j & 3), T + 2))
    a("s_and_b32 s6, s2, %d" % (7 if ROT else 0))
    a("s_add_u32 s4, s%d, s%d" % (sM0, sN0))
    for x in KS.init("s4", "s6"):
        a(x)
    a("s_lshl_b32 s%d, s%d, 7" % (sX, KS.k))
    a("s_waitcnt lgkmcnt(0)")
    srd(a, 8, P_CKV, 2048 * 1024)
    a("s_cmp_lt_u32 s2, 128")
    a("s_cselect_b32 s12, s%d, s%d" % (P_WUK, P_WUV))
    a("s_cselect_b32 s13, s%d, s%d" % (P_WUK + 1, P_WUV + 1))
    a("s_mov_b32 s14, %d" % (512 * 8192))
    a("s_mov_b32 s15, 0x00020000")


def read_bases(a, g):
    a("s_lshr_b32 s4, s%d, 1" % S_WAVE)
    a("s_lshl_b32 s4, s4, 14")
    a("s_add_u32 s4, s4, %d" % (XS0 * 32 * KB))
    xread_base(a, 16, 17, T, "s4")
    a("s_and_b32 s4, s%d, 1" % S_WAVE)
    a("s_lshl_b32 s4, s4, 14")
    a("s_add_u32 s4, s4, %d" % (96 * KB))
    wread_base(a, g.wrd, range(4), T, "s4")


def out_base(a):
    a("s_and_b32 s4, s%d, 1" % S_WAVE)
    a("s_lshl_b32 s5, s%d, 1" % sN0)
    a("s_add_u32 s4, s4, s5")
    a("s_lshr_b32 s5, s%d, 1" % S_WAVE)
    a("s_lshl_b32 s6, s%d, 1" % sM0)
    a("s_add_u32 s5, s5, s6")
    srd(a, 16, P_WS, 32 * MB, WS_KV)
    a("s_lshl_b32 s4, s4, 20")
    a("s_lshl_b32 s5, s5, 16")
    a("s_add_u32 s%d, s4, s5" % sSt)
    a("s_lshr_b32 s4, s2, 7")
    a("s_lshl_b32 s4, s4, 14")
    a("s_add_u32 s%d, s%d, s4" % (sSt, sSt))


def packed(j):
    if j < 8:
        return ('v', 160 + 4 * j)
    if j >= 24:
        return ('v', 224 + 4 * (j - 24))
    return ('v', 128 + 64 * ((j >> 3) - 1) + 4 * (j & 7))


ORDER = list(range(8, 19)) + list(range(8)) + list(range(19, 32))


def pack(kind_, nst=0):
    order, epi = [], []
    for n, j in enumerate(list(range(8, 24)) + list(range(8)) + list(range(24, 32))):
        b0, b1 = ((j >> 2, 2 * (j & 3)), (j >> 2, 2 * (j & 3) + 1)) if kind_ == 'k' else ((2 * (j >> 3), j & 7), (2 * (j >> 3) + 1, j & 7))
        p0, p1 = acc(*b0), acc(*b1)
        idx = [b[1] * 8 + b[0] for b in (b0, b1)]
        order += idx
        L = []
        if p0[0] == 'a':
            src = [64 + 8 * (j - 24) + e for e in range(8)]
            L += ["v_accvgpr_read_b32 v%d, a%d" % (src[e], (p0, p1)[e >> 2][1] + (e & 3)) for e in range(8)]
        else:
            src = [p0[1] + e for e in range(4)] + [p1[1] + e for e in range(4)]
        L += ["v_cvt_pk_bf16_f32 v%d, v%d, v%d" % (packed(j)[1] + e, src[2 * e], src[2 * e + 1]) for e in range(4)]
        epi.append((idx, L))
    for k in range(nst):
        n = min(31, 2 + k * 28 // max(nst, 1))
        assert list(range(8, 24)).index(ORDER[k]) < n if ORDER[k] >= 8 else n > 16 + ORDER[k]
        epi[n] = (epi[n][0], epi[n][1] + trickle(k, k + 1))
    return order, epi


def trickle(k0, k1):
    L = []
    for k in range(k0, k1):
        j = ORDER[k]
        if k == k0 or j >> 2 != ORDER[k - 1] >> 2:
            L.append("s_add_u32 s60, s%d, %d" % (sSt, (j >> 4) * 32768 + ((j >> 2) & 3) * 4096))
        L.append("buffer_store_dwordx4 %s, v2, s[16:19], s60 offen offset:%d%s" % (r4(packed(j)), 1024 * (j & 3), SC1))
    return L


def pf_setup(a, d, so, pa, na, pb, nb):
    cut = (256 * na + na + nb - 1) // (na + nb)
    a("s_cmp_lt_u32 s2, %d" % cut)
    a("s_cselect_b32 s%d, s%d, s%d" % (d, pa, pb))
    a("s_cselect_b32 s%d, s%d, s%d" % (d + 1, pa + 1, pb + 1))
    a("s_cselect_b32 s%d, 0, %d" % (so, cut))
    a("s_mov_b32 s%d, %d" % (d + 2, nb * MB))
    a("s_cselect_b32 s%d, %d, s%d" % (d + 2, na * MB, d + 2))
    a("s_mov_b32 s%d, 0x00020000" % (d + 3))
    a("s_sub_u32 s%d, s2, s%d" % (so, so))
    a("s_lshl_b32 s%d, s%d, 2" % (so, so))
    a("s_add_u32 s%d, s%d, s%d" % (so, so, S_WAVE))
    a("s_mul_i32 s%d, s%d, %d" % (so, so, (na + nb) * 1024))


def pf_items(d, so, n):
    if 'nopf' in GFL or not n:
        return []
    return ["buffer_load_dwordx4 a[192:195], v2, s[%d:%d], s%d offen offset:%d ; @dummy" % (d, d + 3, so, 1024 * i) for i in range(n)] + \
           ["s_add_u32 s%d, s%d, %d" % (so, so, 1024 * n)]
```

```python
from lib import *
from gemm4 import *
import attn4
from attn4 import Oreg, aQ, vO, CST

xv, wv, rd = 4, 8, 16
aSave = 222
aZ = 236
sXA, sXB, sW = 46, 47, 48
KX, KW = KSeq(52, 16, 49), KSeq(54, 16, 56)
XBASE, XS0 = 64 * KB, 1


def make():
    g = Gemm()
    g.name = "p3"
    RX, RW = Ring(3, 32 * KB, 36), Ring(3, 16 * KB, 41)
    RX.regs, RW.regs = [rd, rd + 1], list(range(rd + 2, rd + 6))
    g.rings = [RX, RW]
    g.xrd, g.wrd = [(rd, rd + 1)], list(range(rd + 2, rd + 6))
    g.xfr = [(0, 2048 * i) for i in range(4)]
    g.wfr = [(ni & 3, (ni >> 2) * 8192) for ni in range(8)]
    g.mf = [(Oreg(mi, ni), mi, ni, 'wx') for ni in range(8) for mi in range(4)]
    g.fx, g.fw = 0, 32
    g.sCnt = 35
    ld = lambda v, s, o, j: "buffer_load_dwordx4 v%d, s[%d:%d], s%d offen offset:%d lds" % (v + j, s, s + 3, o, 1024 * j)
    g.dma = [
        (RW, 0, [ld(wv, 12, sW, j) for j in range(4)],
         KW.step() + ["s_lshl_b32 s%d, s%d, 19" % (sW, KW.k)]),
        (RX, 0, [ld(xv, 8, sXA, j) for j in range(4)], []),
        (RX, 4096, [ld(xv, 8, sXB, j) for j in range(4)],
         KX.step() + ["s_lshl_b32 s49, s%d, 7" % KX.k, "s_or_b32 s%d, s50, s49" % sXA, "s_or_b32 s%d, s51, s49" % sXB]),
    ]
    return g


def lanes(a, T):
    for i in range(4):
        a("v_accvgpr_write_b32 a%d, 0" % (aZ + i))
        a("v_accvgpr_write_b32 a%d, v%d" % (attn4.aOne + i, T + 3) if i else "v_mov_b32 v%d, 0x3f803f80\nv_accvgpr_write_b32 a%d, v%d" % (T + 3, attn4.aOne, T + 3))
    lane_setup(a, T)
    a("v_lshlrev_b32 v%d, 2, v%d" % (T + 2, T))
    a("v_add_u32 v%d, s%d, v%d" % (T + 2, S_WAVE, T + 2))
    a("v_lshl_add_u32 v%d, v%d, 11, v%d" % (T + 2, T + 2, T + 1))
    for j in range(4):
        a("v_add_u32 v%d, %d, v%d" % (T + 3, (32 * j) * 2048 - 1024 * j, T + 2))
        a("v_accvgpr_write_b32 a%d, v%d" % (aSave + j, T + 3))
    a("v_lshrrev_b32 v%d, 2, v%d" % (T + 2, T))
    a("v_and_b32 v%d, 3, v%d" % (T + 3, T))
    a("v_lshl_add_u32 v%d, v%d, 3, v%d" % (T + 2, T + 2, T + 3))
    a("s_and_b32 s4, s%d, 1" % S_WAVE)
    a("s_lshl_b32 s4, s4, 18")
    a("s_lshr_b32 s5, s%d, 1" % S_WAVE)
    a("s_lshl_b32 s5, s5, 7")
    a("s_add_u32 s4, s4, s5")
    a("s_lshl_b32 s5, s%d, 8" % attn4.sHead)
    a("s_add_u32 s4, s4, s5")
    a("v_lshl_add_u32 v%d, v%d, 13, v%d" % (T + 2, T + 2, T + 1))
    a("v_add_u32 v%d, s4, v%d" % (T + 2, T + 2))
    for j in range(4):
        a("v_add_u32 v%d, %d, v%d" % (T + 3, (16 * (j & 1) + 4 * (j >> 1)) * 8192 - 1024 * j, T + 2))
        a("v_accvgpr_write_b32 a%d, v%d" % (aSave + 4 + j, T + 3))
    t = T + 4
    a("s_lshl_b32 s4, s%d, 13" % S_WAVE)
    a("s_add_u32 s4, s4, %d" % (XBASE + XS0 * 32 * KB))
    xread_base(a, t, t + 1, T, "s4")
    wread_base(a, [t + 2 + i for i in range(4)], range(4), T, "0")
    for i in range(6):
        a("v_accvgpr_write_b32 a%d, v%d" % (aSave + 8 + i, t + i))


def setup(a, g):
    RX, RW = g.rings
    for i in range(8):
        a("v_accvgpr_read_b32 v%d, a%d" % (xv + i, aSave + i))
    srd(a, 8, P_AX, 2048 * 2048)
    srd(a, 12, P_WQ, 1024 * 8192)
    a("s_and_b32 s4, s2, %d" % (7 if int(os.environ.get("ROT3", 1)) else 0))
    a("s_lshl_b32 s4, s4, 1")
    a("s_lshr_b32 s5, s2, 6")
    a("s_add_u32 s5, s5, s%d" % attn4.sPair)
    for x in KX.init("s5", "s4") + KW.copy(KX):
        a(x)
    a("s_lshl_b32 s49, s%d, 7" % KX.k)
    a("s_lshl_b32 s%d, s%d, 19" % (sW, KW.k))
    a("s_lshl_b32 s50, s%d, 18" % attn4.sPair)
    a("s_sub_u32 s51, %d, s50" % (15 << 18))
    a("s_or_b32 s%d, s50, s49" % sXA)
    a("s_or_b32 s%d, s51, s49" % sXB)
    a("s_lshl_b32 s%d, s%d, 12" % (RW.sWr, S_WAVE))
    a("s_lshl_b32 s%d, s%d, 13" % (RX.sWr, S_WAVE))
    a("s_add_u32 s%d, s%d, %d" % (RX.sWr, RX.sWr, XBASE + XS0 * 32 * KB))


def restore(a):
    for i in range(6):
        a("v_accvgpr_read_b32 v%d, a%d" % (rd + i, aSave + 8 + i))


def xitems(g, s):
    off = (((XS0 + s) % 3) - XS0) * 32 * KB
    return g.group_items(g.dma[1], off) + g.group_items(g.dma[2], off)


def witems(g, s):
    return g.group_items(g.dma[0], s * 16 * KB)


def epilogue():
    order, epi = [], []
    for g in range(4):
        for ds in range(4):
            b = vO + 4 * (8 * g + 2 * ds)
            idx = [(2 * ds) * 4 + g, (2 * ds + 1) * 4 + g]
            order += idx
            L = ["v_pk_mul_f32 v[%d:%d], v[%d:%d], s[6:7]" % (b + e, b + e + 1, b + e, b + e + 1) for e in range(0, 8, 2)]
            L += ["v_cvt_pk_bf16_f32 v%d, v%d, v%d" % (b + e, b + 2 * e, b + 2 * e + 1) for e in range(4)]
            L += ["v_accvgpr_write_b32 a%d, v%d" % (aQ + 4 * (4 * g + ds) + e, b + e) for e in range(4)]
            if ds & 1:
                L.append("v_mfma_f32_32x32x16_bf16 v[%d:%d], a[%d:%d], a[%d:%d], 0" % (b - 8, b + 7, aZ, aZ + 3, aZ, aZ + 3))
            epi.append((idx, L))
    return order, epi
```

```python
from lib import *
from gemm4 import *

CB = (32 ** -0.5) * math.log2(math.e)
xv, hv, wv = 4, 14, 8
rd = 16
aRd = 216
sX, sW, sM1, sM2, sM3 = 30, 31, 26, 27, 28
sRb, sHp = 32, 33
KS = KSeq(0, 16, 29)
T = 32
A0 = 24
BASE, SLOT, WOFF = 32 * KB, 42 * KB, 18 * KB
XCH = 48 * KB
WS_ = 20


def accq(mi, b): return ('v', A0 + 16 * b + 4 * mi)
def acck(mi, b): return ('v', A0 + 32 + 16 * b + 4 * mi)
def accv(mi, b): return ('v', A0 + 64 + 16 * b + 4 * mi)
def acch(b): return ('v', A0 + 96 + 4 * b)


def make(rh):
    g = Gemm()
    g.name, g.woff = "p2r%d" % rh, WOFF
    R = Ring(3, SLOT, 88)
    R.regs = list(range(rd, rd + 6))
    g.rings = [R]
    g.xrd, g.wrd = [(rd, rd + 1), (rd + 2, rd + 3)], [rd + 4, rd + 5]
    g.xfr = [(0, 2048 * i) for i in range(4)] + [(1, 0)]
    g.wfr = [(b, p * 8192) for p in range(3) for b in range(2)]
    mf = []
    for b in range(2):
        mf += [(accq(mi, b), mi, b, 'wx') for mi in range(4)]
    for b in range(2):
        mf += [(acck(mi, b), mi, 2 + b, 'wx') for mi in range(4)]
        if rh == 0:
            mf.append((acch(b), 4, 2 + b, 'wx'))
    for b in range(2):
        mf += [(accv(mi, b), mi, 4 + b, 'xw') for mi in range(4)]
        if rh == 1:
            mf.append((acch(b), 4, 4 + b, 'xw'))
    g.mf = mf
    g.fx, g.fw = 0, 40
    g.sCnt = 35
    ld = lambda v, s, o, j: "buffer_load_dwordx4 v%d, s[%d:%d], s%d offen offset:%d lds" % (v, s, s + 3, o, 1024 * j)
    g.dma = [
        (R, ('s', sM3), [ld(hv, 8, sX, 0)], []),
        (R, 0, [ld(xv + j, 8, sX, j) for j in range(4)],
         ["s_mul_i32 s%d, s%d, %d" % (sW, KS.k, 64 * 6144)] + KS.step() + ["s_lshl_b32 s%d, s%d, 7" % (sX, KS.k)]),
        (R, ('s', sM1), [ld(wv + j, WS_, sW, j) for j in range(3)], []),
        (R, ('s', sM2), [ld(wv + 3 + j, WS_, sW, j) for j in range(3)], []),
    ]
    if rh:
        g.dma = g.dma[1:]
    return g


def stage_items(a, g0, s, what):
    L = []
    if 'x' in what:
        lab = a.newlabel("Lh")
        m, ld = g0.group_items(g0.dma[0], s * SLOT)
        L.append("s_cmp_ge_u32 s%d, 2\ns_cbranch_scc1 %s\n%s\ns_nop 0\n%s\n%s:" % (S_WAVE, lab, m, ld, lab))
        L += g0.group_items(g0.dma[1], s * SLOT)
    if 'w' in what:
        L += g0.group_items(g0.dma[2], s * SLOT) + g0.group_items(g0.dma[3], s * SLOT)
    return L


def xsrd():
    L = ["s_lshl_b32 s10, s%d, 18" % sRb,
         "s_add_u32 s8, s%d, s10\ns_addc_u32 s9, s%d, 0" % (P_BX, P_BX + 1),
         "s_sub_u32 s8, s8, %d\ns_subb_u32 s9, s9, 0" % (16 * 2048),
         "s_mov_b32 s10, %d" % (144 * 2048), "s_mov_b32 s11, 0x00020000"]
    return L


def setup(a, g):
    R = g.rings[0]
    a("s_and_b32 s4, s2, 1")
    a("s_lshl_b32 s4, s4, 3")
    a("s_bfe_u32 s5, s2, 0x30003")
    a("s_add_u32 s%d, s4, s5" % sRb)
    a("s_bfe_u32 s4, s2, 0x20001")
    a("s_lshl_b32 s4, s4, 2")
    a("s_lshr_b32 s5, s2, 6")
    a("s_add_u32 s%d, s4, s5" % sHp)
    srd(a, WS_, P_WQKV, 1024 * 6144)
    a("s_and_b32 s4, s2, 7")
    a("s_lshl_b32 s4, s4, 1")
    a("s_add_u32 s5, s%d, s%d" % (sRb, sHp))
    for x in KS.init("s5", "s4"):
        a(x)
    a("s_lshl_b32 s%d, s%d, 7" % (sX, KS.k))
    a("s_lshl_b32 s%d, s%d, 12" % (R.sWr, S_WAVE))
    a("s_add_u32 s%d, s%d, %d" % (R.sWr, R.sWr, BASE))
    a("s_lshl_b32 s4, s%d, 11" % S_WAVE)
    a("s_add_u32 s%d, s4, %d" % (sM1, WOFF))
    a("s_add_u32 s%d, s%d, 3072" % (sM2, sM1))
    a("s_mul_i32 s4, s%d, 3072" % S_WAVE)
    a("s_sub_u32 s%d, %d, s4" % (sM3, 16 * KB))
    lane_setup(a, T)
    a("s_lshl_b32 s4, s%d, 5" % S_WAVE)
    a("s_add_u32 s4, s4, 16")
    a("v_add_u32 v%d, s4, v%d" % (T + 2, T))
    a("v_lshl_add_u32 v%d, v%d, 11, v%d" % (T + 2, T + 2, T + 1))
    for j in range(4):
        a("v_add_u32 v%d, %d, v%d" % (xv + j, 8 * j * 2048 - 1024 * j, T + 2))
    a("s_lshl_b32 s4, s%d, 14" % S_WAVE)
    a("s_cmp_eq_u32 s%d, 0" % sRb)
    a("s_cselect_b32 s4, 0x40000000, s4")
    a("v_lshl_add_u32 v%d, v%d, 11, v%d" % (T + 2, T, T + 1))
    a("v_add_u32 v%d, s4, v%d" % (hv, T + 2))
    a("v_lshrrev_b32 v%d, 2, v%d" % (T + 2, T))
    a("v_and_b32 v%d, 3, v%d" % (T + 3, T))
    a("v_lshl_add_u32 v%d, v%d, 3, v%d" % (T + 2, T + 2, T + 3))
    a("v_mul_u32_u24 v%d, 6144, v%d" % (T + 2, T + 2))
    a("v_add_u32 v%d, v%d, v%d" % (T + 2, T + 2, T + 1))
    a("s_lshl_b32 s4, s%d, 7" % sHp)
    a("v_add_u32 v%d, s4, v%d" % (T + 2, T + 2))
    a("s_mul_i32 s6, s%d, 6" % S_WAVE)
    for j in range(6):
        a("s_add_u32 s7, s6, %d" % j)
        a("s_bfe_u32 s4, s7, 0x10002")
        a("s_lshl_b32 s4, s4, 5")
        a("s_and_b32 s5, s7, 1")
        a("s_lshl_b32 s5, s5, 4")
        a("s_add_u32 s4, s4, s5")
        a("s_bfe_u32 s5, s7, 0x10001")
        a("s_lshl_b32 s5, s5, 2")
        a("s_add_u32 s4, s4, s5")
        a("s_mul_i32 s4, s4, 6144")
        a("s_lshr_b32 s5, s7, 3")
        a("s_lshl_b32 s5, s5, 11")
        a("s_add_u32 s4, s4, s5")
        a("s_add_u32 s4, s4, %d" % (2048 - 1024 * (j % 3)))
        a("v_add_u32 v%d, s4, v%d" % (wv + j, T + 2))
    a("s_sub_u32 s%d, s%d, 2048" % (WS_, WS_))
    a("s_subb_u32 s%d, s%d, 0" % (WS_ + 1, WS_ + 1))
    a("s_add_u32 s%d, s%d, 2048" % (WS_ + 2, WS_ + 2))
    a("s_lshr_b32 s4, s%d, 1" % S_WAVE)
    a("s_lshl_b32 s4, s4, 13")
    a("s_add_u32 s4, s4, %d" % BASE)
    t = 40
    xread_base(a, t, t + 1, T, "s4")
    xread_base(a, t + 2, t + 3, T, "%d" % (BASE + 16 * KB))
    wread_base(a, [t + 4, t + 5], [0, 1], T, "%d" % BASE)
    a("s_and_b32 s4, s%d, 1" % S_WAVE)
    a("s_lshl_b32 s4, s4, 6")
    a("v_xor_b32 v%d, s4, v%d" % (t + 4, t + 4))
    a("v_xor_b32 v%d, s4, v%d" % (t + 5, t + 5))
    for i in range(6):
        a("v_accvgpr_write_b32 a%d, v%d" % (aRd + i, t + i))


def restore(a):
    for i in range(6):
        a("v_accvgpr_read_b32 v%d, a%d" % (rd + i, aRd + i))


QP, KPV, KP, VP, S0 = 24, 52, 56, (40, 72), 88
MP, MC, MP0 = 120, 124, 84
vXw, vXr = 12, 13
aMask = 240


def masks(a, T):
    a("v_and_b32 v%d, 15, v1" % (T + 1))
    a("v_lshrrev_b32 v%d, 4, v1" % (T + 2))
    a("v_lshlrev_b32 v%d, 2, v%d" % (T + 2, T + 2))
    a("v_sub_u32 v%d, v%d, v%d" % (T + 1, T + 1, T + 2))
    a("v_mov_b32 v%d, 0xf149f2ca" % (T + 2))
    a("s_lshr_b32 s4, s%d, 1" % S_WAVE)
    a("s_or_b32 s4, s4, s%d" % sRb)
    a("s_cselect_b64 s[6:7], 0, -1")
    for r in range(4):
        a("v_subrev_u32 v%d, %d, v%d" % (T + 3, r, T + 1))
        a("v_and_b32 v%d, 0x80000001, v%d" % (T, T + 3))
        a("v_cmp_ne_u32 vcc, 0, v%d" % T)
        a("v_cndmask_b32 v%d, 0, v%d, vcc" % (T, T + 2))
        a("v_accvgpr_write_b32 a%d, v%d" % (aMask + 4 + r, T))
        a("v_add_u32 v%d, 1, v%d" % (T + 3, T + 3))
        a("v_and_b32 v%d, 0x80000001, v%d" % (T, T + 3))
        a("v_cmp_ne_u32 vcc, 0x80000001, v%d" % T)
        a("v_cndmask_b32 v%d, 0, v%d, vcc" % (T, T + 2))
        a("v_accvgpr_write_b32 a%d, v%d" % (aMask + r, T))
        a("v_cndmask_b32 v%d, v%d, v%d, s[6:7]" % (T, T, T + 2))
        a("v_accvgpr_write_b32 a%d, v%d" % (aMask + 8 + r, T))


def pre(a):
    a("s_and_b32 s4, s%d, 1" % S_WAVE)
    a("s_lshl_b32 s4, s4, 12")
    a("s_add_u32 s4, s4, %d" % XCH)
    a("v_add_u32 v%d, s4, v2" % vXw)
    a("s_lshr_b32 s5, s%d, 1" % S_WAVE)
    a("s_lshl_b32 s5, s5, 11")
    a("v_add_u32 v%d, s5, v%d" % (vXr, vXw))
    srd(a, 20, P_WS, 4 * MB, WS_OB)
    a("s_lshl_b32 s57, s%d, 18" % sRb)
    a("s_lshl_b32 s4, s%d, 14" % sHp)
    a("s_add_u32 s57, s57, s4")
    a("s_and_b32 s4, s%d, 1" % S_WAVE)
    a("s_lshl_b32 s4, s4, 13")
    a("s_add_u32 s57, s57, s4")
    a("s_lshl_b32 s5, s5, 1")
    a("s_add_u32 s57, s57, s5")
    a("s_mov_b32 s6, 0x%08x" % f32bits(CB))
    a("s_mov_b32 s7, s6")


def pack(g, rh):
    idx = {m[0]: i for i, m in enumerate(g.mf)}
    cvt = lambda d, s: ["v_cvt_pk_bf16_f32 v%d, v%d, v%d" % (d, s, s + 1), "v_cvt_pk_bf16_f32 v%d, v%d, v%d" % (d + 1, s + 2, s + 3)]
    order, epi = [], []

    def add(blocks, L):
        ids = [idx[b] for b in blocks]
        order.extend(ids)
        epi.append((ids, L))
    for mi in range(4):
        s0, s1 = accq(mi, 0)[1], accq(mi, 1)[1]
        add([accq(mi, 0), accq(mi, 1)], ["v_pk_mul_f32 v[%d:%d], v[%d:%d], s[6:7]" % (x, x + 1, x, x + 1) for x in (s0, s0 + 2, s1, s1 + 2)] +
            cvt(s0, s0) + cvt(s0 + 2, s1))
    h = acch(0)[1]
    if rh == 0:
        add([acch(0), acch(1)], cvt(h, h) + cvt(h + 2, h + 4) + ["ds_write_b128 v%d, %s" % (vXw, v4(h))])
    for mi in range(4):
        s0, s1 = acck(mi, 0)[1], acck(mi, 1)[1]
        add([acck(mi, 0), acck(mi, 1)], cvt(s0, s0) + cvt(s0 + 2, s1) +
            (["ds_write_b128 v%d, %s offset:2048" % (vXw, v4(s0))] if rh == 0 and mi == 3 else []))
    if rh == 1:
        add([acch(0), acch(1)], cvt(h, h) + cvt(h + 2, h + 4) + ["ds_write_b128 v%d, %s offset:1024" % (vXw, v4(h))])
    for mi in (3, 2, 1, 0):
        L = cvt(VP[0] + 2 * (mi + 1), accv(mi, 0)[1]) + cvt(VP[1] + 2 * (mi + 1), accv(mi, 1)[1])
        if rh == 0 and mi == 3:
            L += ["ds_write_b64 v%d, v[%d:%d] offset:%d" % (vXw, VP[b] + 8, VP[b] + 9, 3072 + 8 * b) for b in range(2)]
        add([accv(mi, 0), accv(mi, 1)], L)
    return order, epi


def inbox():
    return ["ds_read_b128 %s, v%d" % (v4(KPV), vXr)] + \
           ["ds_read_b64 v[%d:%d], v%d offset:%d" % (VP[b], VP[b] + 1, vXr, 1024 + 8 * b) for b in range(2)]


def chain():
    from attn4 import rowmax, xmax, aOne
    c = Col()
    for r in range(4):
        c("v_accvgpr_read_b32 v%d, a%d" % (MP + r, aMask + r))
        c("v_accvgpr_read_b32 v%d, a%d" % (MC + r, aMask + 4 + r))
        c("v_accvgpr_read_b32 v%d, a%d" % (MP0 + r, aMask + 8 + r))
    c.append(1)
    for mi in range(4):
        c(mfma(('v', S0 + 8 * mi), ('v', KP + 4 * (mi - 1) if mi else KPV), ('v', QP + 4 * mi), ('v', MP if mi else MP0)))
        c(mfma(('v', S0 + 8 * mi + 4), ('v', KP + 4 * mi), ('v', QP + 4 * mi), ('v', MC)))
    c.append(3)
    M = QP
    t = Col()
    for mi in range(4):
        rowmax(t, S0 + 8 * mi, M + 2 * mi, M + 2 * mi + 1)
    c += [t[4 * mi + k] for k in range(4) for mi in range(4)]
    xmax(c, [(M + 2 * mi, M + 2 * mi + 1) for mi in range(4)])
    for mi in range(4):
        for e in range(8):
            c("v_sub_f32 v%d, v%d, v%d" % (S0 + 8 * mi + e, S0 + 8 * mi + e, M + 2 * mi))
    for mi in range(4):
        for e in range(8):
            c("v_exp_f32 v%d, v%d" % (S0 + 8 * mi + e, S0 + 8 * mi + e))
            if e & 1 and (mi or e > 1):
                p = 4 * mi + (e >> 1) - 1
                c("v_cvt_pk_bf16_f32 v%d, v%d, v%d" % (KP + p, S0 + 2 * p, S0 + 2 * p + 1))
    c.append(1)
    c("v_cvt_pk_bf16_f32 v%d, v%d, v%d" % (KP + 15, S0 + 30, S0 + 31))
    c.append(1)
    for mi in range(4):
        c(mfma(('v', QP + 4 * mi), ('a', aOne), ('v', KP + 4 * mi), "0"))
    for mi in range(4):
        for b in range(2):
            c(mfma(('v', S0 + 8 * mi + 4 * b), ('v', VP[b] + 2 * mi), ('v', KP + 4 * mi), "0"))
    for mi in range(4):
        c("v_rcp_f32 v%d, v%d" % (QP + 4 * mi, QP + 4 * mi))
    for mi in range(4):
        c("v_mov_b32 v%d, v%d" % (QP + 4 * mi + 1, QP + 4 * mi))
    for mi in range(4):
        o = S0 + 8 * mi
        for e in range(0, 8, 2):
            c("v_mul_f32 v%d, v%d, v%d" % (o + e, o + e, QP + 4 * mi))
            c("v_mul_f32 v%d, v%d, v%d" % (o + e + 1, o + e + 1, QP + 4 * mi))
        for e in range(4):
            c("v_cvt_pk_bf16_f32 v%d, v%d, v%d" % (o + e, o + 2 * e, o + 2 * e + 1))
        c("buffer_store_dwordx4 %s, v2, s[20:23], s57 offen offset:%d%s" % (v4(o), mi * 1024, SC1))
    return [x for x in c if not (isinstance(x, str) and x.startswith("v_mov_b32 v%d" % (QP + 1)) and False)]
```

```python
from lib import *


class Ring:
    def __init__(self, NS, slot, sbase):
        self.NS, self.slot = NS, slot
        self.sWr, self.sRd, self.sRdD, self.sC = sbase, sbase + 1, sbase + 2, sbase + 3
        self.regs = []

    def init(self):
        return ["s_mov_b32 s%d, 0" % self.sRd,
                "s_mov_b32 s%d, %d" % (self.sC, (-(self.NS - 1) * self.slot) & 0xffffffff),
                "s_mov_b32 s%d, %d" % (self.sC + 1, self.slot)]

    def adv(self, wr):
        sc = []
        if wr:
            sc.append("s_add_u32 s%d, s%d, s%d" % (self.sWr, self.sWr, self.sRdD))
        if self.NS == 2:
            sc.append("s_sub_u32 s%d, 0, s%d" % (self.sRdD, self.sRdD))
        else:
            sc += ["s_add_u32 s%d, s%d, 1" % (self.sRd, self.sRd),
                   "s_cmp_eq_u32 s%d, %d\ns_cselect_b32 s%d, 0, s%d\ns_cselect_b32 s%d, s%d, s%d" % (
                       self.sRd, self.NS, self.sRd, self.sRd, self.sRdD, self.sC, self.sC + 1)]
        return sc, ["v_add_u32 v%d, s%d, v%d" % (r, self.sRdD, r) for r in self.regs]


def feed(sg, chain, g=0):
    nd = 0
    while chain:
        x = chain[0]
        if isinstance(x, int):
            if g + x >= sg.n:
                chain[0] = g + x - sg.n
                if chain[0] == 0:
                    chain.pop(0)
                return nd
            g += x
            chain.pop(0)
            continue
        k = 'm' if x.startswith("v_mfma") else kind(x)
        if k in 'dr' and sg.c[g]:
            g += 1
        while g < sg.n and not ((k == 'm' and not sg.end[g]) or (k != 'm' and sg.room(g, k) and not sg.end[g] and (k not in 'dr' or not sg.c[g]))):
            g += 1
        if g >= sg.n - 1:
            return nd
        chain.pop(0)
        if k == 'm':
            sg.end[g].append(x)
            g += 1
        else:
            sg.put(g, x)
            nd += k == 'd'
    return nd


def place_dma(sg, items, g0, g1):
    nd = sum(1 for x in items if kind(x) == 'd')
    k = 0
    last = g0
    for x in items:
        if kind(x) == 'd':
            want = g0 + (k * (g1 - g0 + 1)) // nd
            k += 1
            if sg.end[last]:
                sg.end[last].append(x)
                continue
            g = sg.place(x, max(want, last), lo=last)
            last = g
        else:
            g = min(last + 1, sg.n - 1) if sg.d[last] else last
            if sg.d[g] or sg.end[g]:
                sg.end[g].append(x)
            else:
                g = sg.place(x, g, lo=g)
                if sg.d[g]:
                    raise RuntimeError("scalar placed before an earlier load")
            last = g
            if "m0" in x and not sg.end[g]:
                last = min(g + 1, sg.n - 1)
                if last == g:
                    sg.end[g].append("s_nop 0")
    return last


class Gemm:
    xlin = False
    woff = 0
    pf = []

    def fxr(self, h, i):
        return ('a', self.fx + 4 * (h * len(self.xfr) + i))

    def fwr(self, h, i):
        return ('a', self.fw + 4 * (h * len(self.wfr) + i))

    def mfmas(self, h, first=False):
        L = []
        for acc, xi, wi, o in self.mf:
            x, w = self.fxr(h, xi), self.fwr(h, wi)
            L.append(mfma(acc, w, x, "0" if first else None) if o == 'wx' else mfma(acc, x, w, "0" if first else None))
        return L

    def reads(self, h):
        L = []
        seen = set()
        for acc, xi, wi, o in self.mf:
            if ('x', xi) not in seen:
                seen.add(('x', xi))
                st, imm = self.xfr[xi]
                if self.xlin:
                    L.append("ds_read_b128 %s, v%d offset:%d" % (r4(self.fxr(h, xi)), self.xrd[st][0], imm + h * self.xhs))
                else:
                    L.append("ds_read_b128 %s, v%d offset:%d" % (r4(self.fxr(h, xi)), self.xrd[st][h], imm))
            if ('w', wi) not in seen:
                seen.add(('w', wi))
                nb, imm = self.wfr[wi]
                b = self.fwr(h, wi)[1]
                for j in range(2):
                    L.append("ds_read_b64_tr_b16 a[%d:%d], v%d offset:%d" % (b + 2 * j, b + 2 * j + 1, self.wrd[nb], self.woff + imm + h * 4096 + j * 2048))
        return L

    def group_items(self, grp, off=0):
        ring, m0, ins, post = grp
        if isinstance(m0, tuple):
            L = ["s_add_u32 m0, s%d, s%d" % (ring.sWr, m0[1]) + ("\ns_add_u32 m0, m0, %d" % off if off else "")]
        else:
            m0 += off
            L = ["s_add_u32 m0, s%d, %d" % (ring.sWr, m0) if m0 else "s_mov_b32 m0, s%d" % ring.sWr]
        return L + ins + post

    def dma_items(self):
        return [x for g in self.dma for x in self.group_items(g)]

    def issue_seq(self, it):
        return [(g, it - 1 + g[0].NS) for g in self.dma if it - 1 + g[0].NS >= 0]

    def prologue_items(self):
        L = []
        for it in range(-(max(r.NS for r in self.rings) - 1), 1):
            for g, s in self.issue_seq(it):
                L += self.group_items(g, s * g[0].slot)
        return L

    def nprologue(self):
        return sum(1 for x in self.prologue_items() if kind(x) == 'd')

    def vm(self, s, nst):
        q = []
        for it in range(-8, max(s, 1)):
            for g, st in self.issue_seq(it):
                if st < nst:
                    q += [st] * len(g[2])
        idx = max(i for i, st in enumerate(q) if st <= s)
        return len(q) - 1 - idx

    def half(self, a, h, first=False, rd=True, dma=None, adv=False, extra=None, wr=True, rdg=None, dense=False):
        sg = Seg(self.mfmas(h, first))
        n = sg.n
        lastd = 0
        nadv = sum(len(r.regs) for r in self.rings)
        if dma:
            lastd = place_dma(sg, dma, 0, n - 2 - ((nadv // 2 + 3) if adv and n > 8 else 0))
        lastr = 0
        if rd and 'noreads' not in GFL:
            R = (rdg or self).reads(h ^ 1)
            g1 = max(len(R) // 2, n - int(os.environ.get('RDE', 11)))
            if dense:
                g1 = len(R) // 2
            lastr = max(sg.stream(R, 0, g1))
        if adv:
            g = min(n - 1, lastd + 1) if dma else 0
            vas = []
            for r in self.rings:
                sc, va = r.adv(wr)
                vas += va
                for x in sc:
                    if (sg.d[g] and g == n - 1) or sg.end[g]:
                        sg.end[g].append(x)
                    else:
                        g = sg.place(x, g, lo=g)
            g = max(lastr + 1, g + 1)
            for x in vas:
                if g < n:
                    sg.place(x, g, lo=g)
                else:
                    sg.end[n - 1].append(x)
        if extra:
            extra(sg)
        for x in sg.lines():
            a(x)

    def split(self, it):
        n = sum(1 for x in it if kind(x) == 'd')
        cut = cnt = 0
        for i, x in enumerate(it):
            if kind(x) == 'd':
                cnt += 1
                if cnt == (n + 1) // 2:
                    cut = i + 1
        while cut < len(it) and kind(it[cut]) == 's' and "m0" not in it[cut]:
            cut += 1
        return it[:cut], it[cut:]

    def init(self, a, start=None):
        for i, r in enumerate(self.rings):
            for x in r.init():
                a(x)
            if start and start[i]:
                a("s_mov_b32 s%d, %d" % (r.sRd, start[i]))
            if r.NS == 2:
                a("s_mov_b32 s%d, s%d" % (r.sRdD, r.sC))

    def bar(self, a, N):
        a("s_waitcnt vmcnt(%d) lgkmcnt(0)" % min(63, N))
        a("s_barrier")

    def pro(self, a, N, dma=None):
        a("s_waitcnt vmcnt(%d)" % min(63, N))
        a("s_barrier")
        for x in self.reads(0):
            a(x)
        a("s_waitcnt lgkmcnt(0)")
        self.half(a, 0, first=True, adv=True, dma=dma, wr=False)

    def iter(self, a, N, items=None, wr=True, adv=True, after_bar=None, extra=None):
        if N is not None:
            self.bar(a, N)
        if after_bar:
            after_bar()
        d0, d1 = self.split(items or [])
        self.half(a, 1, dma=d0)
        a("s_waitcnt lgkmcnt(0)")
        self.half(a, 0, dma=d1, adv=adv, wr=wr, extra=extra)

    def loop(self, a, N):
        self.bar(a, N)
        a(".p2align 6")
        a.label("L%s_loop" % self.name)

        def cnt_(sg):
            g = sg.n - 3
            assert not any(sg.d[k] or sg.r[k] or any(kind(x) in 'dr' for x in sg.end[k]) for k in range(g, sg.n))
            sg.sc[g].insert(0, "s_waitcnt vmcnt(%d) lgkmcnt(0)\ns_barrier" % N)
            sg.place("s_sub_u32 s%d, s%d, 1" % (self.sCnt, self.sCnt), sg.n - 2, lo=sg.n - 2)
            sg.end[sg.n - 1].append("s_cmp_lg_u32 s%d, 0" % self.sCnt)
        self.iter(a, None, self.pf + self.dma_items(), extra=cnt_)
        a("s_cbranch_scc1 L%s_loop" % self.name)

    def last(self, a, order, g0, epi, dma=None, bar=True, mid=None):
        m0, m1 = self.mfmas(0), self.mfmas(1)
        a("s_waitcnt lgkmcnt(0)")
        sg = Seg([m0[i] for i in order[:g0]])
        sg.stream(self.reads(1), 0, max(g0 - 8, len(self.reads(1)) // 2))
        for x in sg.lines():
            a(x)
        a("s_waitcnt lgkmcnt(0)")
        if bar:
            a("s_barrier")
        if mid:
            mid()
        mf, done = [], {}
        for i in order[:g0]:
            done[i] = len(mf)
            mf.append(m1[i])
        for k in range(g0, len(order), 2):
            i, j = order[k], order[k + 1]
            mf += [m0[i], m0[j], m1[i], m1[j]]
            done[i], done[j] = len(mf) - 2, len(mf) - 1
        sg = Seg(mf)
        if dma:
            place_dma(sg, dma, 0, sg.n - 2)
        g = 0
        rest = []
        for need, L in epi:
            lo = max(done[i] for i in need) + 4
            for x in L:
                g = max(g, lo)
                k = kind(x)
                if k == 's' and g + 1 < sg.n and not rest:
                    g += 1
                    while g < sg.n and (sg.d[g] or sg.end[g] or sg.sc[g]):
                        g += 1
                if k == 'r' and g < sg.n and sg.c[g]:
                    g += 1
                while g < sg.n and not (sg.room(g, k) and (k not in 'dr' or not sg.c[g])):
                    g += 1
                if g >= sg.n or rest:
                    rest.append(x)
                else:
                    sg.put(g, x)
                    if k == 'c':
                        lo = g
        for x in sg.lines() + rest:
            a(x)

    def tail(self, a, items=None, bar=True, N=None, rd=False):
        a("s_waitcnt %slgkmcnt(0)" % ("" if N is None else "vmcnt(%d) " % N))
        if bar:
            a("s_barrier")
        self.half(a, 1, rd=rd, dma=items)


GFL = set(os.environ.get("GFLAGS", "").split(","))


def lane_setup(a, T):
    a("v_lshrrev_b32 v%d, 3, v1" % T)
    a("v_and_b32 v%d, 6, v%d" % (T + 1, T))
    a("v_and_b32 v%d, 7, v1" % (T + 2))
    a("v_xor_b32 v%d, v%d, v%d" % (T + 1, T + 1, T + 2))
    a("v_lshlrev_b32 v%d, 4, v%d" % (T + 1, T + 1))


def xread_base(a, d0, d1, T, sbase):
    a("v_and_b32 v%d, 15, v1" % T)
    a("v_lshlrev_b32 v%d, 7, v%d" % (T, T))
    a("v_lshrrev_b32 v%d, 4, v1" % (T + 1))
    a("v_and_b32 v%d, 6, v1" % (T + 2))
    a("v_xor_b32 v%d, v%d, v%d" % (T + 1, T + 1, T + 2))
    a("v_lshl_add_u32 v%d, v%d, 4, v%d" % (T, T + 1, T))
    a("v_add_u32 v%d, %s, v%d" % (d0, sbase, T))
    a("v_xor_b32 v%d, 64, v%d" % (d1, d0))


def wread_base(a, regs, nbs, T, sbase):
    a("v_lshrrev_b32 v%d, 2, v1" % T)
    a("v_and_b32 v%d, 6, v%d" % (T + 1, T))
    a("v_lshlrev_b32 v%d, 7, v%d" % (T, T))
    a("v_and_b32 v%d, 1, v1" % (T + 2))
    a("v_lshl_add_u32 v%d, v%d, 3, v%d" % (T, T + 2, T))
    a("v_add_u32 v%d, %s, v%d" % (T, sbase, T))
    a("v_bfe_u32 v%d, v1, 1, 1" % (T + 2))
    a("v_xor_b32 v%d, v%d, v%d" % (T + 1, T + 1, T + 2))
    for r, nb in zip(regs, nbs):
        a("v_xor_b32 v%d, %d, v%d" % (T + 2, 2 * nb, T + 1))
        a("v_lshl_add_u32 v%d, v%d, 4, v%d" % (r, T + 2, T))
```

```python
from lib import *
from gemm4 import *
import proj4, bfront, attn4, oproj, qproj

MFL = set(os.environ.get("MFLAGS", "").split(","))


def gen(stamp=False):
    a = Asm()
    st = Stamps(stamp, 0)
    a("s_cmp_ge_u32 s2, 256")
    a("s_cbranch_scc1 Lend")
    a("s_load_dwordx16 s[64:79], s[0:1], 0")
    a("s_load_dwordx8 s[80:87], s[0:1], 64")
    a("v_lshrrev_b32 v2, 6, v0")
    a("v_and_b32 v1, 63, v0")
    a("v_readfirstlane_b32 s%d, v2" % S_WAVE)
    a("v_lshlrev_b32 v2, 4, v1")
    if 'ipf' in MFL:
        a("s_getpc_b64 s[6:7]")
        a("s_lshr_b32 s4, s2, 3")
        a("s_lshl_b32 s4, s4, 2")
        a("s_add_u32 s4, s4, s%d" % S_WAVE)
        a("s_min_u32 s4, s4, CODE_KB")
        a("s_lshl_b32 s4, s4, 10")
        a("v_add_u32 v3, s4, v2")
        a("global_load_dwordx4 v[4:7], v3, s[6:7]")
    st(a)
    gk, gv = proj4.make('wx'), proj4.make('xw')
    b0, b1 = bfront.make(0), bfront.make(1)
    g3 = qproj.make()
    proj4.setup(a, gk)
    srd(a, S_FLG, P_WS, 0x40000, WS_FLG)
    tag_make(a, 0)
    for x in proj4.xitems(gk, 0) + proj4.witems(gk, 0):
        a(x)
    c = Col()
    proj4.read_bases(c, gk)
    if os.environ.get("PF1") != "0,0":
        proj4.pf_setup(c, 56, 50, P_WQKV, 6, P_BX, 4)
        proj4.pf_setup(c, 52, 51, P_WQ, 8, P_AX, 4)
    attn4.ids(c)
    bfront.setup(c, b0)
    bfront.masks(c, 28)
    oproj.lanes(c, 28)
    qproj.lanes(c, 28)
    proj4.out_base(c)
    gk.init(c, [proj4.XS0, 0])
    PF0 = ""
    for x in weave_lines(c, proj4.xitems(gk, 1) + proj4.witems(gk, 1), float(os.environ.get("W0", 0.2)), 1.0):
        a(x)
    tag_make(a, 1, 32 + (10 if PF0 else 0))
    st(a)
    if 'only2' in MFL:
        a("s_waitcnt vmcnt(0)")
        a("s_barrier")
        for x in bfront.xsrd() + [y for s in range(3) for y in bfront.stage_items(a, b0, s, 'xw')]:
            a(x)
        tag_load(a, 22)
        cut0 = len(a.ins)
    if 'only7' in MFL:
        a("s_waitcnt vmcnt(0)")
        a("s_barrier")
        cut7 = len(a.ins)
    PF1 = [int(x) for x in os.environ.get("PF1", "2,2").split(",")]
    NW = int(os.environ.get("NW", 8))
    NP, NL = int(os.environ.get("NP", 8)), int(os.environ.get("NL", 0))
    a("s_cmp_lt_u32 s2, 128")
    a("s_cbranch_scc1 Lp1_k")
    k0 = st.k
    for kind_, g in (('v', gv), ('k', gk)):
        if kind_ == 'k':
            a.label("Lp1_k")
            st.k = k0
        g.pf = proj4.pf_items(56, 50, PF1[0]) + proj4.pf_items(52, 51, PF1[1])
        g.pro(a, 16 + (10 if PF0 else 0), dma=proj4.xitems(g, 2))
        a("s_mov_b32 s%d, 5" % g.sCnt)
        g.loop(a, 8)
        g.iter(a, None, proj4.witems(g, 0) + bfront.xsrd() + bfront.stage_items(a, b0, 0, 'x'))
        g.bar(a, 4)
        g.half(a, 1, dma=bfront.stage_items(a, b0, 0, 'w') + bfront.stage_items(a, b0, 1, 'xw'))
        order, epi = proj4.pack(kind_, NW)
        g.last(a, order, 20, epi, dma=bfront.stage_items(a, b0, 2, 'xw'), mid=lambda: tag_load(a, 22))
        st(a)
        for x in proj4.trickle(NW, NP):
            a(x)
        if kind_ == 'v':
            a("s_branch Lp2")
    if 'only2' in MFL:
        del a.ins[cut0:]
        st.k = 2
    if 'nost' in MFL:
        proj4.trickle = lambda a, b: ["s_nop 0"]
        VmQ.push0 = VmQ.push
        VmQ.push = lambda self, tag, n: VmQ.push0(self, tag, 0 if tag == 'st' else n)
    a.label("Lp2")
    st(a)
    b0.init(a)
    bfront.restore(a)
    a("s_cmp_ge_u32 s%d, 2" % S_WAVE)
    a("s_cbranch_scc1 Lp2_r1")
    k0 = st.k
    n2 = 32 - NP - NL
    TRK = [(n2 * (k + 1)) // 16 - (n2 * k) // 16 for k in range(16)]
    if os.environ.get("TRK"):
        TRK = [int(x) for x in os.environ["TRK"].split(",")]
    TR3 = [0]
    cum = [NP + sum(TRK[:k]) for k in range(17)] + [32 - NL]
    assert cum[16] + NL == 32
    Q3 = []
    for rh, g in enumerate((b0, b1)):
        if rh:
            a.label("Lp2_r1")
            st.k = k0
        n = 10 if rh else 11
        q = VmQ()
        q.push(0, n), q.push(1, n), q.push('t', 1), q.push('st', NW), q.push(2, n), q.push('st', NP - NW)
        g.pro(a, q.need(0), dma=proj4.trickle(cum[0], cum[1]))
        q.push('st', TRK[0])
        npf = (12 - 5 * PF1[1]) * int(os.environ.get('PFA', 1)) * (PF1[1] > 0)
        for s in range(1, 16):
            N = q.need(s)
            it = []
            if s <= npf:
                it += proj4.pf_items(52, 51, 1)
                q.push('pf', 1)
            if s < 14:
                it += g.dma_items()
                q.push(s + 2, n)
            elif s == 14:
                it += qproj.witems(g3, 0) + qproj.witems(g3, 1)
                q.push('w0', 4), q.push('w1', 4)
            else:
                it += qproj.xitems(g3, 0)
                q.push('x0', 8)
            it += proj4.trickle(cum[s], cum[s + 1])
            q.push('st', TRK[s])
            if s == 15:
                g.bar(a, N)
                bfront.pre(a)
                g.half(a, 1, dma=it)
                break
            g.iter(a, N, it, after_bar=(lambda: qproj.setup(a, g3)) if s == 14 else None)
            if 'st2' in MFL and s in (3, 7, 11):
                st(a)
        order, epi = bfront.pack(g, rh)
        g.last(a, order, 12, epi, dma=qproj.xitems(g3, 1) + qproj.witems(g3, 2))
        q.push('x1', 8), q.push('w2', 4)
        st(a)
        Q3.append(q)
        if not rh:
            a("s_branch Lp3")
    a.label("Lp3")
    st(a)
    if 'only2' in MFL:
        st.flush(a)
        return fin(a)
    q = Q3[0]
    k = q.q.index('w0')
    assert q.q[k:] == Q3[1].q[Q3[1].q.index('w0'):]
    qproj.restore(a)
    g3.init(a, [qproj.XS0, 0])
    a("s_lshl_b32 s34, s%d, 4" % proj4.sN0)
    a("s_add_u32 s34, s34, s%d" % proj4.sM0)
    a("s_lshr_b32 s4, s2, 7")
    a("s_lshl_b32 s4, s4, 3")
    a("s_add_u32 s34, s34, s4")
    a("s_lshl_b32 s34, s34, 7")
    a("s_lshl_b32 s91, s%d, 4" % bfront.sRb)
    a("s_add_u32 s91, s91, s%d" % bfront.sHp)
    a("s_lshl_b32 s91, s91, 7")
    a("s_add_u32 s91, s91, %d" % F_OB)
    ch = bfront.chain()
    g3.bar(a, q.need('w0', 'x0'))
    for x in bfront.inbox() + g3.reads(0):
        a(x)
    a("s_waitcnt lgkmcnt(0)")
    g3.half(a, 0, first=True, adv=True, wr=False, dma=qproj.xitems(g3, 2), dense=True, extra=lambda sg: feed(sg, ch))
    q.push('x2', 8)
    s = 0
    quiet = 0
    while True:
        s += 1
        quiet += not ch
        done = quiet == 2
        g3.bar(a, q.need('w%d' % s, 'x%d' % s, s, 'st'))
        if s == 2:
            tag_get(a, 22, 16)
            signal(a, 22, ["s34"], 3)
            q.push('sig', 1)
        if done:
            signal(a, 22, ["s91"], 3)
        d0, d1 = g3.split(g3.dma_items())
        no = []
        g3.half(a, 1, dma=d0, dense=bool(ch), extra=lambda sg: no.append(feed(sg, ch)))
        a("s_waitcnt lgkmcnt(0)")
        g3.half(a, 0, dma=d1, adv=True, dense=bool(ch), extra=lambda sg: no.append(feed(sg, ch)))
        q.push('o', sum(no))
        q.push(s + 2, 12)
        if done:
            break
    last = s
    if last < 12:
        a("s_mov_b32 s%d, %d" % (g3.sCnt, 12 - last))
        g3.loop(a, 12)

    def ids():
        a("s_lshr_b32 s34, s%d, 1" % attn4.sHead)
        a("s_lshl_b32 s34, s34, 11")
        for x in flag_addr(3):
            a(x)
    g3.iter(a, None, [flag_load(22, "s34", 3)] + g3.dma_items(), after_bar=ids)

    def go():
        flag_check(a, 22, "s34", 3)
        attn4.kv_setup(a)
        oproj.ids(a)
    it = attn4.kv_prologue_items(0)
    cut = [i for i, x in enumerate(it) if "m0" in x][1]
    g3.iter(a, 12, it[:cut], after_bar=go)
    g3.bar(a, 4)
    a("s_mov_b32 s6, 0x%08x" % f32bits(attn4.CST))
    a("s_mov_b32 s7, s6")
    g3.half(a, 1, dma=it[cut:])
    order, epi = qproj.epilogue()
    g3.last(a, order, 16, epi, bar=False)
    st(a)
    attn4.setup1(a)
    st(a)
    g6, g7 = oproj.make("p6", oproj.AB), oproj.make("p7", oproj.AA)

    class H:
        q0 = [t for t in (('K', 0), ('K', 1), ('V', 0)) for _ in range(4)]

        @staticmethod
        def after_d2():
            a("s_lshl_b32 s91, s%d, 11" % oproj.sRb)
            a("s_add_u32 s91, s91, %d" % F_OB)
            for x in flag_addr(14):
                a(x)

        @staticmethod
        def pre_e1():
            return [flag_load(12, "s91", 14)]

        @staticmethod
        def at_e1():
            flag_check(a, 12, "s91", 14)
            for j in range(4):
                a("v_accvgpr_read_b32 v%d, a%d" % (oproj.wv + j, oproj.aSave + j))
            for x in oproj.job_w(False) + oproj.job_x(False):
                a(x)

        @staticmethod
        def e1_items():
            return oproj.stage_items(g6, 0, 'wx')

        @staticmethod
        def e2_items():
            return oproj.stage_items(g6, 1, 'wx')
    if 'only7' in MFL:
        del a.ins[cut7:]
        st.k = 2
        global flag_check
        flag_check = lambda *x: None
        oproj.ids(a)
        H.at_e1()
        for x in H.e1_items() + H.e2_items():
            a(x)
        srd(a, 16, P_WS, 16 * MB, 150 * MB)
        for i in range(8):
            a("buffer_store_dwordx4 v[32:35], v2, s[16:19], 0 offen")
    else:
        attn4.attention(a, st, H)
    st(a)
    gh = oproj.make("ph", oproj.AA, True)
    q = VmQ()
    for s in range(2):
        q.push(s, 8)
    q.push('ctx', 8)
    oproj.read_bases(a, 4)
    g6.init(a, [3])
    g6.pro(a, q.need(0), dma=oproj.stage_items(g6, 2, 'wx') + oproj.stage_items(g6, 3, 'wx'))
    q.push(2, 8)
    q.push(3, 8)

    def sig_ctx():
        a("s_lshl_b32 s4, s%d, 7" % attn4.sHead)
        a("s_lshl_b32 s5, s%d, 12" % attn4.sPair)
        a("s_add_u32 s6, s4, %d" % F_CTX)
        a("s_add_u32 s7, s6, %d" % (15 << 12))
        a("s_add_u32 s6, s6, s5")
        a("s_sub_u32 s7, s7, s5")
        signal(a, 6, ["s6", "s7"])
        a("s_lshl_b32 s91, s%d, 12" % oproj.sRb)
        a("s_add_u32 s91, s91, %d" % F_CTX)
        for x in flag_addr(14, 32):
            a(x)
        oproj.xch_srd(a)
    VS = int(os.environ.get("VS", 6))
    for s in range(1, VS):
        N = q.need(1, 'ctx') if s == 1 else q.need(s)
        if s == 1:
            q.push('sig', 2)
        it = g6.dma_items() if s < 5 else (oproj.job_w(True) if s == 5 else []) + g7.group_items(g7.dma[0])
        q.push(s + 3, 8 if s < 5 else 4)
        if s == VS - 1:
            it = it + [flag_load(6, "s91", 14)]
            q.push('fl', 1)
        g6.iter(a, N, it, after_bar=sig_ctx if s == 1 else None)
    a("s_waitcnt vmcnt(%d)" % q.need(VS, 'fl'))
    a("v_cmp_ne_u64 vcc, s[%d:%d], v[6:7]" % (S_TAG, S_TAG + 1))
    a("v_cndmask_b32_e64 v8, 0, 1, vcc")
    a("v_lshlrev_b32 v9, 2, v0")
    a("ds_write_b32 v9, v8")
    a("v_lshlrev_b32 v9, 4, v1")
    a("s_waitcnt lgkmcnt(0)")
    a("s_barrier")
    a("ds_read_b128 v[160:163], v9")
    for x in oproj.job_w(True) if VS == 5 else []:
        a(x)
    a("s_waitcnt lgkmcnt(0)")
    a("v_or3_b32 v160, v160, v161, v162")
    a("v_or_b32 v160, v160, v163")
    a("v_cmp_ne_u32 vcc, 0, v160")
    if 'only7' not in MFL:
        a("s_cbranch_vccnz Lp6_late ; @late")
    k0 = st.k
    q0 = list(q.q)
    for late in (False, True):
        q.q = list(q0)
        if late:
            a.label("Lp6_late")
            st.k = k0
        else:
            for x in oproj.job_x(True):
                a(x)
        for s in range(VS, 8):
            if s > VS:
                g6.bar(a, q.need(s))
            it = g7.group_items(g7.dma[0]) if late else g7.dma_items()
            if s == VS and not late:
                for t in range(VS + 2, 7, -1):
                    it = oproj.stage_items(g7, t, 'x') + it
                for t in range(8, VS + 3):
                    q.push(t, 4)
            q.push(s + 3, 4 if late else 8)
            if late and s == 7:
                it += [flag_load(6, "s91", 14)]
            d0, d1 = g6.split(it)
            g6.half(a, 1, dma=d0)
            a("s_waitcnt lgkmcnt(0)")
            g6.half(a, 0, dma=d1, adv=True)
        if late:
            a("s_waitcnt vmcnt(0) lgkmcnt(0)")
            a("s_barrier")
            st(a)
            flag_check(a, 6, "s91", 14)
            st(a)
            for x in oproj.job_x(True):
                a(x)
            it = []
            for s in range(8, 12):
                it += oproj.stage_items(g7, s, 'x' if s < 11 else 'wx')
            g6.half(a, 1, rd=False, dma=it)
            for x in oproj.send_items(oproj.AB, False, 6):
                a(x)
            a("s_waitcnt vmcnt(24)")
            a("s_barrier")
            for x in g7.reads(0):
                a(x)
            a("s_waitcnt lgkmcnt(0)")
            g7.half(a, 0, first=True, adv=True)
        else:
            g6.bar(a, q.need(8))
            st(a)
            st(a)
            g6.half(a, 1, dma=g7.dma_items())
            a("s_waitcnt lgkmcnt(0)")
            it = oproj.send_items(oproj.AB, False, 6)
            nsc = [i for i, x in enumerate(it) if kind(x) == 'd'][0]
            for x in it[:nsc]:
                a(x)
            g7.half(a, 0, first=True, adv=True, extra=lambda sg: place_dma(sg, it[nsc:], 5, 14))
            a("s_branch Lp7")
    a.label("Lp7")
    st(a)
    DL = oproj.DL
    F = 40 - DL
    a("s_mov_b32 s%d, %d" % (g7.sCnt, F - 4 - 9))
    g7.loop(a, 16)
    q = VmQ()
    for s in range(F - 4, F - 1):
        q.push(s, 8)
    E = F + 2 * DL
    finB = []
    for s in range(F - 4, E):
        tags, it, ab = [s], [], None
        if s == F - 4:
            def ab():
                oproj.flag_pos(a, False, True, 6)
                signal(a, 6, ["s6"])
                oproj.flag_pos(a, False, False, 90)
                oproj.out_setup(a)
        if s == F - 3:
            it += [flag_load(6, "s90")]
        if s == F - 2:
            tags.append('fl')
            ab = lambda: flag_check(a, 6, "s90")
            it += oproj.recv_items(False, 6)
        if s == F:
            tags.append('rcv')

            def ab():
                oproj.out_off(a, False, 4)
                oproj.flag_pos(a, True, True, 89)
                oproj.flag_pos(a, True, False, 90)
            finB = oproj.finish(oproj.AB, False, 4)
        if s == F + 3:
            tags.append('snd')
            ab = lambda: signal(a, 6, ["s89"])
        if s == E - 3:
            it += [flag_load(6, "s90")]
        if s == E - 2:
            tags.append('fl')
            ab = lambda: flag_check(a, 6, "s90")
            it += oproj.recv_items(True, 6)
        N = q.need(*tags)
        if s == F - 4 or s == F + 3:
            q.push('sig', 1)
        for x in it:
            if kind(x) == 'd':
                q.push('fl' if "dwordx2" in x else 'rcv', 1)
        if s + 3 < F:
            it += g7.dma_items()
            q.push(s + 3, 8)
        elif s + 3 < E:
            if s + 3 == F:
                it += oproj.to_half()
            if s + 3 == F + DL:
                it += oproj.to_partner()
            it += gh.dma_items()
            q.push(s + 3, 6)
        g1, g0 = (g7 if s - 1 < F else gh), (g7 if s < F else gh)
        if s > F - 4:
            g7.bar(a, N)
        else:
            assert N >= 16
        if ab:
            ab()
        d0, d1 = g7.split(it)
        if s == F:
            snd = oproj.send_items(oproj.AA, True, 6)
            nsc = [i for i, x in enumerate(snd) if kind(x) == 'd'][0]
            d0, d1 = it + snd[:nsc], snd[nsc:nsc + 4]
            q.push('snd', 4)
        if s == F + 1:
            d0, d1 = snd[nsc + 4:], it
            q.q = q.q[:-6] + ['snd'] * 4 + q.q[-6:]

        L = finB.pop(0) if finB and s > F else []

        def finb(sg):
            g = 0
            for x in L[:-1]:
                g = sg.place(x, g, lo=g)
        g1.half(a, 1, dma=d0, rdg=g0, extra=finb)
        a("s_waitcnt lgkmcnt(0)")
        g0.half(a, 0, dma=d1, adv=s < E - 1, extra=lambda sg: sg.end[sg.n - 1].extend(L[-1:]))
        q.push('ob', len(L[-1:]))
    oproj.out_off(a, True, 4)
    gh.tail(a, bar=False)
    st(a)
    a("s_waitcnt vmcnt(0)")
    st(a)
    for L in zip(*oproj.finish(oproj.AA, True, 4)):
        for x in L:
            a(x)
    st(a)
    if stamp:
        a("s_waitcnt vmcnt(0)")
    st(a)
    st.flush(a)
    return fin(a)


def fin(a):
    a.label("Lend")
    a("s_endpgm")
    t = a.finish()
    if 'nobar' in MFL:
        t = t.replace("s_barrier", "s_nop 0")
    if 'nox' in MFL:
        t = "\n".join(l for l in t.split("\n") if not (l.rstrip().endswith(" lds") and "s[8:11]" in l))
    if 'now' in MFL:
        t = "\n".join(l for l in t.split("\n") if not (l.rstrip().endswith(" lds") and "s[12:15]" in l))
    if 'nodma' in MFL:
        t = "\n".join(l for l in t.split("\n") if not l.rstrip().endswith(" lds"))
    return t.replace("CODE_KB", os.environ.get("CODE_KB", "70"))
```

```python
from lib import *
from gemm4 import *

CB = (32 ** -0.5) * math.log2(math.e)
xv, hv, wv = 224, 232, 233
rd = 16
sX, sW, sMh = 46, 47, 50
sRb, sHp = 32, 33
KS = KSeq(48, 16, 34)
T = 240
A0 = 24
XSL, WBASE = 34 * KB, 102 * KB
XCH = 48 * KB


def accq(mi, b): return ('v', A0 + 32 * b + 4 * mi)
def acck(mi, b): return ('v', A0 + 64 + 32 * b + 4 * mi)
def accv(mi, b): return ('v', A0 + 128 + 32 * b + 4 * mi)
def acch(b): return ('v', A0 + 192 + 4 * b)


def make(rh):
    g = Gemm()
    g.name = "p2r%d" % rh
    RX, RW = Ring(3, XSL, 36), Ring(2, 24 * KB, 41)
    RX.regs, RW.regs = list(range(rd, rd + 4)), [rd + 4, rd + 5]
    g.rings = [RX, RW]
    g.xrd, g.wrd = [(rd, rd + 1), (rd + 2, rd + 3)], [rd + 4, rd + 5]
    g.xfr = [(0, 2048 * i) for i in range(8)] + [(1, 0)]
    g.wfr = [(b, p * 8192) for p in range(3) for b in range(2)]
    mf = []
    for b in range(2):
        mf += [(accq(mi, b), mi, b, 'wx') for mi in range(8)]
    for b in range(2):
        mf += [(acck(mi, b), mi, 2 + b, 'wx') for mi in range(8)]
        if rh == 0:
            mf.append((acch(b), 8, 2 + b, 'wx'))
    for b in range(2):
        mf += [(accv(mi, b), mi, 4 + b, 'xw') for mi in range(8)]
        if rh == 1:
            mf.append((acch(b), 8, 4 + b, 'xw'))
    g.mf = mf
    g.fx, g.fw = 0, 72
    g.sCnt = 35
    ld = lambda v, s, o, j: "buffer_load_dwordx4 v%d, s[%d:%d], s%d offen offset:%d lds" % (v, s, s + 3, o, 1024 * j)
    g.dma = [
        (RW, 0, [ld(wv + j, 12, sW, j) for j in range(3)], []),
        (RW, 3072, [ld(wv + 3 + j, 12, sW, j) for j in range(3)], []),
        (RX, ('s', sMh), [ld(hv, 8, sX, 0)], []),
        (RX, 0, [ld(xv + j, 8, sX, j) for j in range(4)], []),
        (RX, 4096, [ld(xv + 4 + j, 8, sX, j) for j in range(4)],
         ["s_mul_i32 s%d, s%d, %d" % (sW, KS.k, 64 * 6144)] + KS.step() + ["s_lshl_b32 s%d, s%d, 7" % (sX, KS.k)]),
    ]
    if rh:
        del g.dma[2]
    return g


def xitems(g, s):
    return [x for grp in g.dma[2:] for x in g.group_items(grp, s * XSL)]


def witems(g, s):
    return [x for grp in g.dma[:2] for x in g.group_items(grp, s * 24 * KB)]


def setup(a, g, sidx):
    RX, RW = g.rings
    a("s_and_b32 s4, s2, 1")
    a("s_lshl_b32 s4, s4, 2")
    a("s_and_b32 s5, %s, 3" % sidx)
    a("s_add_u32 s%d, s4, s5" % sRb)
    a("s_bfe_u32 s4, s2, 0x20001")
    a("s_lshl_b32 s4, s4, 2")
    a("s_lshr_b32 s5, %s, 2" % sidx)
    a("s_add_u32 s%d, s4, s5" % sHp)
    a("s_and_b32 s4, s2, 7")
    a("s_lshl_b32 s4, s4, 1")
    a("s_add_u32 s5, s%d, s%d" % (sRb, sHp))
    for x in KS.init("s5", "s4"):
        a(x)
    a("s_lshl_b32 s%d, s%d, 7" % (sX, KS.k))
    a("s_lshl_b32 s%d, s%d, 13" % (RX.sWr, S_WAVE))
    a("s_mul_i32 s%d, s%d, 6144" % (RW.sWr, S_WAVE))
    a("s_add_u32 s%d, s%d, %d" % (RW.sWr, RW.sWr, WBASE))
    a("s_mul_i32 s4, s%d, 7168" % S_WAVE)
    a("s_sub_u32 s%d, %d, s4" % (sMh, 32 * KB))
    lane_setup(a, T)
    a("s_lshl_b32 s4, s%d, 6" % S_WAVE)
    a("s_add_u32 s4, s4, 16")
    a("v_add_u32 v%d, s4, v%d" % (T + 2, T))
    a("v_lshl_add_u32 v%d, v%d, 11, v%d" % (T + 2, T + 2, T + 1))
    for j in range(8):
        a("v_add_u32 v%d, %d, v%d" % (xv + j, 8 * j * 2048 - 1024 * (j & 3), T + 2))
    a("s_lshl_b32 s4, s%d, 14" % S_WAVE)
    a("s_cmp_eq_u32 s%d, 0" % sRb)
    a("s_cselect_b32 s4, 0x40000000, s4")
    a("v_lshl_add_u32 v%d, v%d, 11, v%d" % (T + 2, T, T + 1))
    a("v_add_u32 v%d, s4, v%d" % (hv, T + 2))
    a("v_lshrrev_b32 v%d, 2, v%d" % (T + 2, T))
    a("v_and_b32 v%d, 3, v%d" % (T + 3, T))
    a("v_lshl_add_u32 v%d, v%d, 3, v%d" % (T + 2, T + 2, T + 3))
    a("v_mul_u32_u24 v%d, 6144, v%d" % (T + 2, T + 2))
    a("v_add_u32 v%d, v%d, v%d" % (T + 2, T + 2, T + 1))
    a("s_lshl_b32 s4, s%d, 7" % sHp)
    a("v_add_u32 v%d, s4, v%d" % (T + 2, T + 2))
    a("s_mul_i32 s6, s%d, 6" % S_WAVE)
    for j in range(6):
        a("s_add_u32 s7, s6, %d" % j)
        a("s_bfe_u32 s4, s7, 0x10002")
        a("s_lshl_b32 s4, s4, 5")
        a("s_and_b32 s5, s7, 1")
        a("s_lshl_b32 s5, s5, 4")
        a("s_add_u32 s4, s4, s5")
        a("s_bfe_u32 s5, s7, 0x10001")
        a("s_lshl_b32 s5, s5, 2")
        a("s_add_u32 s4, s4, s5")
        a("s_mul_i32 s4, s4, 6144")
        a("s_lshr_b32 s5, s7, 3")
        a("s_lshl_b32 s5, s5, 11")
        a("s_add_u32 s4, s4, s5")
        a("s_add_u32 s4, s4, %d" % (2048 - 1024 * (j % 3)))
        a("v_add_u32 v%d, s4, v%d" % (wv + j, T + 2))
    a("s_waitcnt lgkmcnt(0)")
    a("s_lshl_b32 s10, s%d, 19" % sRb)
    a("s_add_u32 s8, s%d, s10" % P_BX)
    a("s_addc_u32 s9, s%d, 0" % (P_BX + 1))
    a("s_sub_u32 s8, s8, %d" % (16 * 2048))
    a("s_subb_u32 s9, s9, 0")
    a("s_mov_b32 s10, %d" % (272 * 2048))
    a("s_mov_b32 s11, 0x00020000")
    a("s_sub_u32 s12, s%d, 2048" % P_WQKV)
    a("s_subb_u32 s13, s%d, 0" % (P_WQKV + 1))
    a("s_mov_b32 s14, %d" % (1024 * 6144 + 2048))
    a("s_mov_b32 s15, 0x00020000")


def read_bases(a):
    a("s_lshr_b32 s4, s%d, 1" % S_WAVE)
    a("s_lshl_b32 s4, s4, 14")
    xread_base(a, rd, rd + 1, T, "s4")
    xread_base(a, rd + 2, rd + 3, T, "%d" % (32 * KB))
    wread_base(a, [rd + 4, rd + 5], [0, 1], T, "%d" % WBASE)
    a("s_and_b32 s4, s%d, 1" % S_WAVE)
    a("s_lshl_b32 s4, s4, 6")
    a("v_xor_b32 v%d, s4, v%d" % (rd + 4, rd + 4))
    a("v_xor_b32 v%d, s4, v%d" % (rd + 5, rd + 5))


QP, KPV, KP, VP, S0 = 24, 76, 88, (56, 120), 152
MP, MC, MP0 = 240, 244, 248
vXw, vXr = 252, 253


def pre(a):
    t = 252
    a("v_and_b32 v%d, 15, v1" % (t + 1))
    a("v_lshrrev_b32 v%d, 4, v1" % (t + 2))
    a("v_lshlrev_b32 v%d, 2, v%d" % (t + 2, t + 2))
    a("v_sub_u32 v%d, v%d, v%d" % (t + 1, t + 1, t + 2))
    a("v_mov_b32 v%d, 0xf149f2ca" % (t + 2))
    a("s_lshr_b32 s4, s%d, 1" % S_WAVE)
    a("s_or_b32 s4, s4, s%d" % sRb)
    a("s_cselect_b64 s[6:7], 0, -1")
    for r in range(4):
        a("v_subrev_u32 v%d, %d, v%d" % (t + 3, r, t + 1))
        a("v_and_b32 v%d, 0x80000001, v%d" % (t, t + 3))
        a("v_cmp_ne_u32 vcc, 0, v%d" % t)
        a("v_cndmask_b32 v%d, 0, v%d, vcc" % (MC + r, t + 2))
        a("v_add_u32 v%d, 1, v%d" % (t + 3, t + 3))
        a("v_and_b32 v%d, 0x80000001, v%d" % (t, t + 3))
        a("v_cmp_ne_u32 vcc, 0x80000001, v%d" % t)
        a("v_cndmask_b32 v%d, 0, v%d, vcc" % (MP + r, t + 2))
        a("v_cndmask_b32 v%d, v%d, v%d, s[6:7]" % (MP0 + r, MP + r, t + 2))
    a("s_and_b32 s4, s%d, 1" % S_WAVE)
    a("s_lshl_b32 s4, s4, 12")
    a("s_add_u32 s4, s4, %d" % XCH)
    a("v_add_u32 v%d, s4, v2" % vXw)
    a("s_lshr_b32 s5, s%d, 1" % S_WAVE)
    a("s_lshl_b32 s5, s5, 11")
    a("v_add_u32 v%d, s5, v%d" % (vXr, vXw))
    srd(a, 16, P_WS, 4 * MB, WS_OB)
    a("s_lshl_b32 s57, s%d, 19" % sRb)
    a("s_lshl_b32 s5, s5, 7")
    a("s_add_u32 s57, s57, s5")
    a("s_lshl_b32 s4, s%d, 14" % sHp)
    a("s_add_u32 s57, s57, s4")
    a("s_and_b32 s4, s%d, 1" % S_WAVE)
    a("s_lshl_b32 s4, s4, 13")
    a("s_add_u32 s57, s57, s4")
    a("s_add_u32 s58, s57, 4096")


def pack(g, rh):
    idx = {m[0]: i for i, m in enumerate(g.mf)}
    cvt = lambda d, s: ["v_cvt_pk_bf16_f32 v%d, v%d, v%d" % (d, s, s + 1), "v_cvt_pk_bf16_f32 v%d, v%d, v%d" % (d + 1, s + 2, s + 3)]
    order, epi = [], []

    def add(blocks, L):
        ids = [idx[b] for b in blocks]
        order.extend(ids)
        epi.append((ids, L))
    for mi in range(8):
        s0, s1 = accq(mi, 0)[1], accq(mi, 1)[1]
        add([accq(mi, 0), accq(mi, 1)], ["v_pk_mul_f32 v[%d:%d], v[%d:%d], s[6:7]" % (x, x + 1, x, x + 1) for x in (s0, s0 + 2, s1, s1 + 2)] +
            cvt(s0, s0) + cvt(s0 + 2, s1))
    h = acch(0)[1]
    if rh == 0:
        add([acch(0), acch(1)], cvt(h, h) + cvt(h + 2, h + 4) + ["ds_write_b128 v%d, %s" % (vXw, v4(h))])
    for mi in range(8):
        s0, s1 = acck(mi, 0)[1], acck(mi, 1)[1]
        add([acck(mi, 0), acck(mi, 1)], cvt(s0, s0) + cvt(s0 + 2, s1) +
            (["ds_write_b128 v%d, %s offset:2048" % (vXw, v4(s0))] if rh == 0 and mi == 7 else []))
    if rh == 1:
        add([acch(0), acch(1)], cvt(h, h) + cvt(h + 2, h + 4) + ["ds_write_b128 v%d, %s offset:1024" % (vXw, v4(h))])
    for mi in range(7, -1, -1):
        L = cvt(VP[0] + 2 * (mi + 1), accv(mi, 0)[1]) + cvt(VP[1] + 2 * (mi + 1), accv(mi, 1)[1])
        if rh == 0 and mi == 7:
            L += ["ds_write_b64 v%d, v[%d:%d] offset:%d" % (vXw, VP[b] + 16, VP[b] + 17, 3072 + 8 * b) for b in range(2)]
        add([accv(mi, 0), accv(mi, 1)], L)
    return order, epi


def attend(c):
    from attn4 import rowmax, xmax, aOne
    c("ds_read_b128 %s, v%d" % (v4(KPV), vXr))
    for b in range(2):
        c("ds_read_b64 v[%d:%d], v%d offset:%d" % (VP[b], VP[b] + 1, vXr, 1024 + 8 * b))
    od = list(range(7, -1, -1))
    for mi in od:
        if mi == 0:
            c("s_waitcnt lgkmcnt(0)")
        c(mfma(('v', S0 + 8 * mi), ('v', KP + 4 * (mi - 1) if mi else KPV), ('v', QP + 4 * mi), ('v', MP if mi else MP0)))
        c(mfma(('v', S0 + 8 * mi + 4), ('v', KP + 4 * mi), ('v', QP + 4 * mi), ('v', MC)))
    M = 224
    for mi in od:
        rowmax(c, S0 + 8 * mi, M + 2 * mi, M + 2 * mi + 1)
    xmax(c, [(M + 2 * mi, M + 2 * mi + 1) for mi in od])
    for mi in od:
        for e in range(8):
            c("v_sub_f32 v%d, v%d, v%d" % (S0 + 8 * mi + e, S0 + 8 * mi + e, M + 2 * mi))
        for e in range(8):
            c("v_exp_f32 v%d, v%d" % (S0 + 8 * mi + e, S0 + 8 * mi + e))
        if mi < 7:
            fin(c, mi + 1)
    fin(c, 0)
    for mi in od:
        c("v_rcp_f32 v%d, v%d" % (QP + 4 * mi, QP + 4 * mi))
    for mi in od:
        c("v_mov_b32 v%d, v%d" % (QP + 4 * mi + 1, QP + 4 * mi))
    for mi in od:
        o = S0 + 8 * mi
        for e in range(0, 8, 2):
            c("v_pk_mul_f32 v[%d:%d], v[%d:%d], v[%d:%d]" % (o + e, o + e + 1, o + e, o + e + 1, QP + 4 * mi, QP + 4 * mi + 1))
        for e in range(4):
            c("v_cvt_pk_bf16_f32 v%d, v%d, v%d" % (o + e, o + 2 * e, o + 2 * e + 1))
        c("buffer_store_dwordx4 %s, v2, s[16:19], s%d offen offset:%d%s" % (v4(o), 57 + (mi >> 2), (mi & 3) * 1024, SC1))


def fin(c, mi):
    from attn4 import aOne
    for e in range(4):
        c("v_cvt_pk_bf16_f32 v%d, v%d, v%d" % (KP + 4 * mi + e, S0 + 8 * mi + 2 * e, S0 + 8 * mi + 2 * e + 1))
    c(mfma(('v', QP + 4 * mi), ('a', aOne), ('v', KP + 4 * mi), "0"))
    for b in range(2):
        c(mfma(('v', S0 + 8 * mi + 4 * b), ('v', VP[b] + 2 * mi), ('v', KP + 4 * mi), "0"))
```

```python
from lib import *


class Ring:
    def __init__(self, NS, slot, sbase):
        self.NS, self.slot = NS, slot
        self.sWr, self.sRd, self.sRdD, self.sC = sbase, sbase + 1, sbase + 2, sbase + 3
        self.regs = []

    def init(self):
        return ["s_mov_b32 s%d, 0" % self.sRd,
                "s_mov_b32 s%d, %d" % (self.sC, (-(self.NS - 1) * self.slot) & 0xffffffff),
                "s_mov_b32 s%d, %d" % (self.sC + 1, self.slot)]

    def adv(self, wr):
        sc = []
        if wr:
            sc.append("s_add_u32 s%d, s%d, s%d" % (self.sWr, self.sWr, self.sRdD))
        if self.NS == 2:
            sc.append("s_sub_u32 s%d, 0, s%d" % (self.sRdD, self.sRdD))
        else:
            sc += ["s_add_u32 s%d, s%d, 1" % (self.sRd, self.sRd),
                   "s_cmp_eq_u32 s%d, %d\ns_cselect_b32 s%d, 0, s%d\ns_cselect_b32 s%d, s%d, s%d" % (
                       self.sRd, self.NS, self.sRd, self.sRd, self.sRdD, self.sC, self.sC + 1)]
        return sc, ["v_add_u32 v%d, s%d, v%d" % (r, self.sRdD, r) for r in self.regs]


def feed(sg, chain, g=0):
    nd = 0
    while chain:
        x = chain[0]
        if isinstance(x, int):
            if g + x >= sg.n:
                chain[0] = g + x - sg.n
                if chain[0] == 0:
                    chain.pop(0)
                return nd
            g += x
            chain.pop(0)
            continue
        k = 'm' if x.startswith("v_mfma") else kind(x)
        if k in 'dr' and sg.c[g]:
            g += 1
        while g < sg.n and not ((k == 'm' and not sg.end[g]) or (k != 'm' and sg.room(g, k) and not sg.end[g] and (k not in 'dr' or not sg.c[g]))):
            g += 1
        if g >= sg.n - 1:
            return nd
        chain.pop(0)
        if k == 'm':
            sg.end[g].append(x)
            g += 1
        else:
            sg.put(g, x)
            nd += k == 'd'
    return nd


def place_dma(sg, items, g0, g1):
    nd = sum(1 for x in items if kind(x) == 'd')
    k = 0
    last = g0
    for x in items:
        if kind(x) == 'd':
            want = g0 + (k * (g1 - g0 + 1)) // nd
            k += 1
            if sg.end[last]:
                sg.end[last].append(x)
                continue
            g = sg.place(x, max(want, last), lo=last)
            last = g
        else:
            g = min(last + 1, sg.n - 1) if sg.d[last] else last
            if sg.d[g] or sg.end[g]:
                sg.end[g].append(x)
            else:
                g = sg.place(x, g, lo=g)
                if sg.d[g]:
                    raise RuntimeError("scalar placed before an earlier load")
            last = g
            if "m0" in x and not sg.end[g]:
                last = min(g + 1, sg.n - 1)
                if last == g:
                    sg.end[g].append("s_nop 0")
    return last


class Gemm:
    xlin = False
    woff = 0
    pf = []

    def fxr(self, h, i):
        return ('a', self.fx + 4 * (h * len(self.xfr) + i))

    def fwr(self, h, i):
        return ('a', self.fw + 4 * (h * len(self.wfr) + i))

    def mfmas(self, h, first=False):
        L = []
        for acc, xi, wi, o in self.mf:
            x, w = self.fxr(h, xi), self.fwr(h, wi)
            L.append(mfma(acc, w, x, "0" if first else None) if o == 'wx' else mfma(acc, x, w, "0" if first else None))
        return L

    def reads(self, h):
        L = []
        seen = set()
        for acc, xi, wi, o in self.mf:
            if ('x', xi) not in seen:
                seen.add(('x', xi))
                st, imm = self.xfr[xi]
                if self.xlin:
                    L.append("ds_read_b128 %s, v%d offset:%d" % (r4(self.fxr(h, xi)), self.xrd[st][0], imm + h * self.xhs))
                else:
                    L.append("ds_read_b128 %s, v%d offset:%d" % (r4(self.fxr(h, xi)), self.xrd[st][h], imm))
            if ('w', wi) not in seen:
                seen.add(('w', wi))
                nb, imm = self.wfr[wi]
                b = self.fwr(h, wi)[1]
                for j in range(2):
                    L.append("ds_read_b64_tr_b16 a[%d:%d], v%d offset:%d" % (b + 2 * j, b + 2 * j + 1, self.wrd[nb], self.woff + imm + h * 4096 + j * 2048))
        return L

    def group_items(self, grp, off=0):
        ring, m0, ins, post = grp
        if isinstance(m0, tuple):
            L = ["s_add_u32 m0, s%d, s%d" % (ring.sWr, m0[1]) + ("\ns_add_u32 m0, m0, %d" % off if off else "")]
        else:
            m0 += off
            L = ["s_add_u32 m0, s%d, %d" % (ring.sWr, m0) if m0 else "s_mov_b32 m0, s%d" % ring.sWr]
        return L + ins + post

    def dma_items(self):
        return [x for g in self.dma for x in self.group_items(g)]

    def issue_seq(self, it):
        return [(g, it - 1 + g[0].NS) for g in self.dma if it - 1 + g[0].NS >= 0]

    def prologue_items(self):
        L = []
        for it in range(-(max(r.NS for r in self.rings) - 1), 1):
            for g, s in self.issue_seq(it):
                L += self.group_items(g, s * g[0].slot)
        return L

    def nprologue(self):
        return sum(1 for x in self.prologue_items() if kind(x) == 'd')

    def vm(self, s, nst):
        q = []
        for it in range(-8, max(s, 1)):
            for g, st in self.issue_seq(it):
                if st < nst:
                    q += [st] * len(g[2])
        idx = max(i for i, st in enumerate(q) if st <= s)
        return len(q) - 1 - idx

    def half(self, a, h, first=False, rd=True, dma=None, adv=False, extra=None, wr=True, rdg=None, dense=False):
        sg = Seg(self.mfmas(h, first))
        n = sg.n
        lastd = 0
        nadv = sum(len(r.regs) for r in self.rings)
        if dma:
            lastd = place_dma(sg, dma, 0, n - 2 - ((nadv // 2 + 3) if adv and n > 8 else 0))
        lastr = 0
        if rd and 'noreads' not in GFL:
            R = (rdg or self).reads(h ^ 1)
            g1 = max(len(R) // 2, n - int(os.environ.get('RDE', 11)))
            if dense:
                g1 = len(R) // 2
            lastr = max(sg.stream(R, 0, g1))
        if adv:
            g = min(n - 1, lastd + 1) if dma else 0
            vas = []
            for r in self.rings:
                sc, va = r.adv(wr)
                vas += va
                for x in sc:
                    if (sg.d[g] and g == n - 1) or sg.end[g]:
                        sg.end[g].append(x)
                    else:
                        g = sg.place(x, g, lo=g)
            g = max(lastr + 1, g + 1)
            for x in vas:
                if g < n:
                    sg.place(x, g, lo=g)
                else:
                    sg.end[n - 1].append(x)
        if extra:
            extra(sg)
        for x in sg.lines():
            a(x)

    def split(self, it):
        n = sum(1 for x in it if kind(x) == 'd')
        cut = cnt = 0
        for i, x in enumerate(it):
            if kind(x) == 'd':
                cnt += 1
                if cnt == (n + 1) // 2:
                    cut = i + 1
        while cut < len(it) and kind(it[cut]) == 's' and "m0" not in it[cut]:
            cut += 1
        return it[:cut], it[cut:]

    def init(self, a, start=None):
        for i, r in enumerate(self.rings):
            for x in r.init():
                a(x)
            if start and start[i]:
                a("s_mov_b32 s%d, %d" % (r.sRd, start[i]))
            if r.NS == 2:
                a("s_mov_b32 s%d, s%d" % (r.sRdD, r.sC))

    def bar(self, a, N):
        a("s_waitcnt vmcnt(%d) lgkmcnt(0)" % min(63, N))
        a("s_barrier")

    def pro(self, a, N, dma=None):
        a("s_waitcnt vmcnt(%d)" % min(63, N))
        a("s_barrier")
        for x in self.reads(0):
            a(x)
        a("s_waitcnt lgkmcnt(0)")
        self.half(a, 0, first=True, adv=True, dma=dma, wr=False)

    def iter(self, a, N, items=None, wr=True, adv=True, after_bar=None, extra=None):
        if N is not None:
            self.bar(a, N)
        if after_bar:
            after_bar()
        d0, d1 = self.split(items or [])
        self.half(a, 1, dma=d0)
        a("s_waitcnt lgkmcnt(0)")
        self.half(a, 0, dma=d1, adv=adv, wr=wr, extra=extra)

    def loop(self, a, N):
        self.bar(a, N)
        a(".p2align 6")
        a.label("L%s_loop" % self.name)

        def cnt_(sg):
            g = sg.n - 3
            assert not any(sg.d[k] or sg.r[k] or any(kind(x) in 'dr' for x in sg.end[k]) for k in range(g, sg.n))
            sg.sc[g].insert(0, "s_waitcnt vmcnt(%d) lgkmcnt(0)\ns_barrier" % N)
            sg.place("s_sub_u32 s%d, s%d, 1" % (self.sCnt, self.sCnt), sg.n - 2, lo=sg.n - 2)
            sg.end[sg.n - 1].append("s_cmp_lg_u32 s%d, 0" % self.sCnt)
        self.iter(a, None, self.pf + self.dma_items(), extra=cnt_)
        a("s_cbranch_scc1 L%s_loop" % self.name)

    def bm(self, a, order, g0, gend=0, N=None, first=False, dma=None, nxt=None, epi=(), st1=(), st2=(), bar=True, mid=None, carry=(), defer=False):
        m0, m1 = self.mfmas(0, first), self.mfmas(1)
        a("s_waitcnt lgkmcnt(0)")
        sg = Seg([m0[i] for i in order[:g0]])
        g = max(sg.stream(self.reads(1), 0, max(g0 - 8, len(self.reads(1)) // 2) if not carry else len(self.reads(1)) // 2))
        carry = list(carry)
        feed(sg, carry, 2)
        if st1:
            place_dma(sg, [x for L, b in st1 for x in L], 0, g0 - 2)
        if nxt:
            for r in self.rings:
                sc, va = r.adv(True)
                for x in sc:
                    sg.end[g0 - 1].append(x)
                for x in va:
                    sg.end[g0 - 1].append(x)
        for x in sg.lines():
            a(x)
        a("s_waitcnt %slgkmcnt(0)" % ("" if N is None else "vmcnt(%d) " % N))
        if bar:
            a("s_barrier")
        if mid:
            mid()
        mf, done, start = [], {}, {}
        for i in order[:g0]:
            done[i] = len(mf)
            start[i] = -1
            mf.append(m1[i])
        for k in range(g0, len(order) - gend, 2):
            i, j = order[k], order[k + 1]
            start[i], start[j] = len(mf), len(mf) + 1
            mf += [m0[i], m0[j], m1[i], m1[j]]
            done[i], done[j] = len(mf) - 2, len(mf) - 1
        for h, m in enumerate((m0, m1)):
            for i in order[len(order) - gend:] if gend else []:
                (done if h else start)[i] = len(mf)
                mf.append(m[i])
        sg = Seg(mf)
        n = sg.n
        if nxt:
            sg.stream(nxt.reads(0), n - gend, n - 7)
        feed(sg, carry)
        assert not carry
        wrote = {x.split()[1][:-1]: g for g in range(n) for x in sg.c[g]}
        for b in order[g0:]:
            regs = ["v%d" % (self.mf[b][0][1] + e) for e in range(4)] if self.mf[b][0][0] == 'v' else []
            assert all(g < start[b] for g in range(n) for x in sg.c[g] if set(regs) & set(x.replace(",", " ").split()[1:]))
        for k, (L, b) in enumerate(st2):
            g = min(1 + k * (n - gend - 4) // len(st2), start[b] - 1)
            while sg.d[g] or sg.sc[g] or sg.used[g] > 4:
                g += 1
            r = int(L[-1].split("[")[1].split(":")[0])
            assert g < start[b] and all(wrote.get("v%d" % (r + e), -1) < g for e in range(4)), (k, g)
            for x in L:
                sg.put(g, x)
        if dma:
            place_dma(sg, dma, 0, n - 2 - gend)
        g = 0
        rest = []
        for need, L in epi:
            lo = max(done[i] for i in need) + 4
            for x in L:
                g = max(g, lo)
                k = kind(x)
                if k == 's' and g + 1 < n and not rest:
                    g += 1
                    while g < n and (sg.d[g] or sg.end[g] or sg.sc[g]):
                        g += 1
                if k == 'r' and g < n and sg.c[g]:
                    g += 1
                while g < n and not (sg.room(g, k) and (k not in 'dr' or not sg.c[g])):
                    g += 1
                if g >= n or rest:
                    rest.append(x)
                else:
                    sg.put(g, x)
                    if k == 'c':
                        lo = g
        for x in sg.lines() + ([] if defer else rest):
            a(x)
        return rest

    def tail(self, a, items=None, bar=True, N=None, rd=False):
        a("s_waitcnt %slgkmcnt(0)" % ("" if N is None else "vmcnt(%d) " % N))
        if bar:
            a("s_barrier")
        self.half(a, 1, rd=rd, dma=items)


GFL = set(os.environ.get("GFLAGS", "").split(","))


def lane_setup(a, T):
    a("v_lshrrev_b32 v%d, 3, v1" % T)
    a("v_and_b32 v%d, 6, v%d" % (T + 1, T))
    a("v_and_b32 v%d, 7, v1" % (T + 2))
    a("v_xor_b32 v%d, v%d, v%d" % (T + 1, T + 1, T + 2))
    a("v_lshlrev_b32 v%d, 4, v%d" % (T + 1, T + 1))


def xread_base(a, d0, d1, T, sbase):
    a("v_and_b32 v%d, 15, v1" % T)
    a("v_lshlrev_b32 v%d, 7, v%d" % (T, T))
    a("v_lshrrev_b32 v%d, 4, v1" % (T + 1))
    a("v_and_b32 v%d, 6, v1" % (T + 2))
    a("v_xor_b32 v%d, v%d, v%d" % (T + 1, T + 1, T + 2))
    a("v_lshl_add_u32 v%d, v%d, 4, v%d" % (T, T + 1, T))
    a("v_add_u32 v%d, %s, v%d" % (d0, sbase, T))
    a("v_xor_b32 v%d, 64, v%d" % (d1, d0))


def wread_base(a, regs, nbs, T, sbase):
    a("v_lshrrev_b32 v%d, 2, v1" % T)
    a("v_and_b32 v%d, 6, v%d" % (T + 1, T))
    a("v_lshlrev_b32 v%d, 7, v%d" % (T, T))
    a("v_and_b32 v%d, 1, v1" % (T + 2))
    a("v_lshl_add_u32 v%d, v%d, 3, v%d" % (T, T + 2, T))
    a("v_add_u32 v%d, %s, v%d" % (T, sbase, T))
    a("v_bfe_u32 v%d, v1, 1, 1" % (T + 2))
    a("v_xor_b32 v%d, v%d, v%d" % (T + 1, T + 1, T + 2))
    for r, nb in zip(regs, nbs):
        a("v_xor_b32 v%d, %d, v%d" % (T + 2, 2 * nb, T + 1))
        a("v_lshl_add_u32 v%d, v%d, 4, v%d" % (r, T + 2, T))
```

```python
import os, sys, struct, math
sys.path.insert(0, os.path.join(os.path.dirname(os.path.abspath(__file__)), "..", "gen"))
from asmlib import Asm, Ins

MB = 1 << 20
KB = 1024
WS_KV = 16 * MB
WS_CTX = 64 * MB
WS_OB = 80 * MB
WS_XCH = 96 * MB
WS_DBG = 200 * MB
SC1 = "" if os.environ.get("NOSC1") else " sc1"
SC1L = "" if os.environ.get("NOSC1L") else " sc1"
WS_FLG = 120 * MB
S_FLG = 96
S_TAG = 94
F_QKV, F_OB, F_CTX, F_XA, F_XB, F_EPOCH = 0, 0x8000, 0x10000, 0x20000, 0x28000, 0x30000

S_WAVE = 3
S_PTR = 64
P_AX, P_CKV, P_WQ, P_WUK, P_WUV, P_WO, P_BX, P_WQKV, P_BWO, P_OUT, P_DBG, P_WS = [S_PTR + 2 * i for i in range(12)]


def f32bits(x):
    return struct.unpack("<I", struct.pack("<f", x))[0]


def log2(x):
    n = x.bit_length() - 1
    assert 1 << n == x, x
    return n


def v4(b):
    return "v[%d:%d]" % (b, b + 3)


def a4(b):
    return "a[%d:%d]" % (b, b + 3)


def r4(x):
    return "%s[%d:%d]" % (x[0], x[1], x[1] + 3)


def mfma(d, a, b, c=None):
    return "v_mfma_f32_16x16x32_bf16 %s, %s, %s, %s" % (r4(d), r4(a), r4(b), r4(d) if c is None else (c if isinstance(c, str) else r4(c)))


def srd(a, d, p, size, off=0, soff=None):
    if off:
        a("s_add_u32 s%d, s%d, %d" % (d, p, off))
        a("s_addc_u32 s%d, s%d, 0" % (d + 1, p + 1))
    if soff is not None:
        a("s_add_u32 s%d, s%d, s%d" % (d, d if off else p, soff))
        a("s_addc_u32 s%d, s%d, 0" % (d + 1, d + 1 if off else p + 1))
    if not off and soff is None:
        a("s_mov_b32 s%d, s%d" % (d, p))
        a("s_mov_b32 s%d, s%d" % (d + 1, p + 1))
    a("s_mov_b32 s%d, %s" % (d + 2, size if isinstance(size, str) else "%d" % size))
    a("s_mov_b32 s%d, 0x00020000" % (d + 3))


def kind(t):
    mn = t.split(None, 1)[0]
    if mn.startswith("s_") or mn == "WAIT":
        return 's'
    if mn.startswith("ds_"):
        return 'r'
    if mn.startswith("buffer_") or mn.startswith("global_"):
        return 'd'
    if mn.startswith(("v_exp", "v_rcp", "v_log")):
        return 'e'
    return 'c'


class Seg:
    def __init__(self, mf):
        self.mf = mf
        self.n = len(mf)
        self.pre = []
        self.sc = [[] for _ in mf]
        self.d = [[] for _ in mf]
        self.r = [[] for _ in mf]
        self.c = [[] for _ in mf]
        self.end = [[] for _ in mf]
        self.used = [0] * self.n

    def room(self, g, k):
        if k == 's':
            return len(self.sc[g]) == 0 or self.used[g] <= 4
        if k == 'e':
            return self.used[g] == 0
        if k == 'd':
            return self.used[g] <= 4 and not self.d[g] and not any(kind(x) == 'e' for x in self.c[g])
        return self.used[g] <= 4

    def put(self, g, t):
        k = kind(t)
        if k == 's':
            nl = t.count("\n") + 1
            self.used[g] += 4 * (nl - (0 if self.sc[g] else 1))
            self.sc[g].append(t)
        elif k == 'd':
            self.d[g].append(t)
            self.used[g] += 4
        elif k == 'r':
            self.r[g].append(t)
            self.used[g] += 4
        else:
            self.c[g].append(t)
            self.used[g] += 8 if k == 'e' else 4
        return g

    def place(self, t, want, lo=0, hi=None):
        hi = self.n - 1 if hi is None else min(hi, self.n - 1)
        want = max(lo, min(want, hi))
        k = kind(t)
        for g in range(want, hi + 1):
            if self.room(g, k):
                return self.put(g, t)
        for g in range(want - 1, lo - 1, -1):
            if self.room(g, k):
                return self.put(g, t)
        g = min(range(lo, hi + 1), key=lambda q: (self.used[q], abs(q - want)))
        return self.put(g, t)

    def stream(self, items, g0, g1, strict=False):
        out = []
        n = len(items)
        last = g0
        for i, t in enumerate(items):
            want = g0 + (i * (g1 - g0 + 1)) // n
            g = self.place(t, max(want, last), lo=last, hi=g1 if strict else None)
            last = g
            out.append(g)
        return out

    def lines(self):
        L = list(self.pre)
        for g in range(self.n):
            L.append(self.mf[g])
            for t in self.sc[g] + self.d[g] + self.r[g] + self.c[g] + self.end[g]:
                L += t.split("\n")
        return L

    def cost(self):
        return sum(16 + max(0, self.used[g] - 8) + (4 if self.d[g] else 0) for g in range(self.n))


def resolve_waits(lines, pend):
    out = []
    pend = list(pend)
    later = set(t.split("@")[1].strip() for t in lines if t.startswith("ds_") and "@" in t)
    for t in lines:
        if t.startswith("ds_") and "@" in t:
            later.discard(t.split("@")[1].strip())
        if t.startswith("WAIT"):
            assert t.split()[1] not in later, "wait before its read: " + t
            parts = t.split()
            tag = parts[1]
            extra = " ".join(parts[2:])
            if tag == '*':
                n = 0
            elif tag in pend:
                n = len(pend) - 1 - pend.index(tag)
            else:
                n = None
            if n is None:
                if extra:
                    out.append("s_waitcnt " + extra)
                continue
            assert n <= 15, (n, tag)
            pend = pend[len(pend) - n:] if n else []
            out.append(("s_waitcnt %s lgkmcnt(%d)" % (extra, n)).replace("  ", " "))
            continue
        if t.startswith("ds_"):
            pend.append(t.split("@")[1].strip() if "@" in t else "?")
        out.append(t)
    return out, pend


def kdesc(name, nv, acc, ns=102):
    return """.p2align 6
.amdhsa_kernel %s
  .amdhsa_next_free_vgpr %d
  .amdhsa_next_free_sgpr %d
  .amdhsa_accum_offset %d
  .amdhsa_group_segment_fixed_size 0
  .amdhsa_kernarg_size 96
  .amdhsa_user_sgpr_count 2
  .amdhsa_user_sgpr_kernarg_segment_ptr 1
  .amdhsa_system_sgpr_workgroup_id_x 1
.end_amdhsa_kernel
""" % (name, nv, ns, acc)


def kstart(name):
    return ".globl %s\n.p2align 8\n.type %s,@function\n%s:\n" % (name, name, name)


class Stamps:
    def __init__(self, on, kern):
        self.on, self.kern, self.k = on, kern, 0

    def __call__(self, a):
        if not self.on:
            return
        k = self.k
        self.k += 1
        assert k < 32
        a("s_memrealtime s[100:101]")
        a("s_waitcnt lgkmcnt(0)")
        a("v_writelane_b32 v15, s100, %d" % (2 * k))
        a("s_memtime s[100:101]")
        a("s_waitcnt lgkmcnt(0)")
        a("v_writelane_b32 v15, s100, %d" % (2 * k + 1))

    def flush(self, a):
        if not self.on:
            return
        if os.environ.get("AMP"):
            j, k = [int(x) for x in os.environ["AMP"].split(",")]
            a("v_readlane_b32 s4, v15, %d" % (2 * k))
            a("v_readlane_b32 s5, v15, %d" % (2 * j))
            a("s_memrealtime s[100:101]")
            a("s_sub_u32 s4, s4, s5")
            a("s_lshl_b32 s4, s4, 1")
            a("s_waitcnt lgkmcnt(0)")
            a("s_mov_b32 s6, s100")
            a.label("Lamp")
            a("s_memrealtime s[100:101]")
            a("s_waitcnt lgkmcnt(0)")
            a("s_sub_u32 s5, s100, s6")
            a("s_cmp_lt_u32 s5, s4")
            a("s_cbranch_scc1 Lamp")
            return
        L = a.newlabel("Lst")
        a("s_cmp_lg_u32 s%d, 0" % S_WAVE)
        a("s_cbranch_scc1 %s" % L)
        srd(a, 16, P_WS, 1 * MB, WS_DBG + self.kern * 65536)
        a("s_lshl_b32 s4, s2, 8")
        a("v_mbcnt_lo_u32_b32 v14, -1, 0")
        a("v_mbcnt_hi_u32_b32 v14, -1, v14")
        a("v_lshlrev_b32 v14, 2, v14")
        a("buffer_store_dword v15, v14, s[16:19], s4 offen")
        if os.environ.get("DBGWG"):
            a("s_cmp_lg_u32 s2, %s" % os.environ["DBGWG"])
            a("s_cbranch_scc1 %s" % L)
            srd(a, 16, P_DBG, 256)
            sel = [int(x) for x in os.environ.get("DBGSEL", "0,1,2,3,4,5,6,8,11,12,13,15,16,20").split(",")]
            a("v_readlane_b32 s5, v15, 0")
            for i, k in enumerate(sel):
                a("v_readlane_b32 s4, v15, %d" % (2 * k))
                a("s_sub_u32 s4, s4, s5")
                a("v_mov_b32 v14, s4")
                a("buffer_store_dword v14, off, s[16:19], 0 offset:%d" % (8 + 4 * i))
        a.label(L)


class Col(list):
    def __call__(self, t):
        self.extend(x.strip() for x in t.split("\n") if x.strip())


def signal(a, vt, soffs, va=None):
    va = vt + 2 if va is None else va
    a("v_mov_b32 v%d, 0x40000000" % va)
    a("v_mov_b32 v%d, s%d" % (vt, S_TAG))
    a("v_cmp_eq_u32 vcc, 0, v0")
    a("v_mov_b32 v%d, s%d" % (vt + 1, S_TAG + 1))
    a("v_cndmask_b32_e64 v%d, v%d, 0, vcc" % (va, va))
    for o in soffs:
        a("buffer_store_dwordx2 v[%d:%d], v%d, s[%d:%d], %s offen sc1 ; @signal" % (vt, vt + 1, va, S_FLG, S_FLG + 3, o))


def flag_addr(va, n=16):
    return ["v_and_b32 v%d, %d, v1" % (va, n - 1), "v_lshlrev_b32 v%d, 7, v%d" % (va, va)]


def flag_load(dst, soff, va=None):
    if va is None:
        return "buffer_load_dwordx2 v[%d:%d], off, s[%d:%d], %s sc1" % (dst, dst + 1, S_FLG, S_FLG + 3, soff)
    return "buffer_load_dwordx2 v[%d:%d], v%d, s[%d:%d], %s offen sc1" % (dst, dst + 1, va, S_FLG, S_FLG + 3, soff)


def tag_make(a, part, younger=0):
    L = a.newlabel("Ltag")
    a("s_or_b32 s4, s2, s%d" % S_WAVE)
    a("s_cbranch_scc1 %s" % L)
    a("s_mov_b32 s4, %d" % F_EPOCH)
    if part == 0:
        a(flag_load(22, "s4"))
    else:
        srd(a, 92, P_DBG, 256)
        a("s_waitcnt vmcnt(%d)" % younger)
        a("v_add_u32 v22, 1, v22")
        a("v_or_b32 v23, 0x80000000, v23")
        a("buffer_store_dwordx2 v[22:23], off, s[%d:%d], s4 sc1" % (S_FLG, S_FLG + 3))
        a("buffer_store_dwordx2 v[22:23], off, s[92:95], 0 sc1")
    a.label(L)


def tag_load(a, dst, d=12):
    srd(a, d, P_DBG, 256)
    a("buffer_load_dwordx2 v[%d:%d], off, s[%d:%d], 0 sc1" % (dst, dst + 1, d, d + 3))


def tag_get(a, dst, d=12):
    L, D = a.newlabel("Ltg"), a.newlabel("Lpolld")
    a("s_mov_b32 s5, 0x40000")
    a.label(L)
    a("v_readfirstlane_b32 s%d, v%d" % (S_TAG, dst))
    a("v_readfirstlane_b32 s%d, v%d" % (S_TAG + 1, dst + 1))
    a("s_cmp_lg_u32 s%d, 0" % (S_TAG + 1))
    a("s_cbranch_scc1 %s" % D)
    a("s_sleep 4")
    tag_load(a, dst, d)
    a("s_sub_u32 s5, s5, 1")
    a("s_waitcnt vmcnt(0)")
    a("s_cbranch_scc0 %s ; @poll" % L)
    a.label(D)


class VmQ:
    def __init__(self):
        self.q = []

    def push(self, tag, n):
        self.q += [tag] * n

    def need(self, *tags):
        idx = max([i for i, t in enumerate(self.q) if t in tags], default=-1)
        n = len(self.q) - 1 - idx
        self.q = self.q[idx + 1:]
        return n


def flag_check(a, dst, soff, va=None):
    L, D = a.newlabel("Lpoll"), a.newlabel("Lpolld")
    a("s_mov_b32 s5, 0x40000")
    a.label(L)
    a("v_cmp_ne_u64 vcc, s[%d:%d], v[%d:%d]" % (S_TAG, S_TAG + 1, dst, dst + 1))
    a("s_cbranch_vccz %s" % D)
    a("s_sleep 4")
    a(flag_load(dst, soff, va))
    a("s_sub_u32 s5, s5, 1")
    a("s_waitcnt vmcnt(0)")
    a("s_cbranch_scc0 %s ; @poll" % L)
    a.label(D)


def weave_lines(lines, items, f0=0.0, f1=1.0):
    spots = [i for i in range(1, len(lines)) if lines[i].startswith("v_") and lines[i - 1].startswith("v_") and "vcc" not in lines[i]]
    spots = spots[int(f0 * len(spots)):max(int(f1 * len(spots)), 1)]
    units, cur = [], []
    for x in items:
        cur.append(x)
        if kind(x) == 'd':
            units.append(cur)
            cur = []
    if cur:
        units[-1] += cur
    at = {}
    for k, u in enumerate(units):
        at.setdefault(spots[k * len(spots) // len(units)], []).extend(u)
    out = []
    for i, l in enumerate(lines):
        out += at.get(i, [])
        out.append(l)
    return out


LEAD = int(os.environ.get("LEAD", 2))


class KSeq:
    def __init__(self, sk, nk, tmp, c=1, lead=None):
        self.k, self.ctl, self.nk, self.t = sk, sk + 1, nk, tmp
        lead = LEAD * c if lead is None else lead
        n = 4 * c
        self.c, self.w = c, 32 // n
        self.e = [lead if p < c else (-c if p < c + lead else 0) for p in range(n)] if lead else [0] * n
        self.pat = self.pk([1 + self.e[(p + 1) % n] - self.e[p] for p in range(n)])

    def pk(self, v):
        assert self.nk <= 1 << self.w and self.nk % len(v) == 0
        return sum((x % self.nk) << (self.w * p) for p, x in enumerate(v))

    def wrap(self):
        if self.nk & (self.nk - 1) == 0:
            return ["s_and_b32 s%d, s%d, %d" % (self.k, self.k, self.nk - 1)]
        return ["s_cmp_ge_u32 s%d, %d\ns_cselect_b32 s%d, %d, 0" % (self.k, self.nk, self.t, self.nk),
                "s_sub_u32 s%d, s%d, s%d" % (self.k, self.k, self.t)]

    def init(self, sg, sbase):
        return ["s_and_b32 s%d, %s, 3" % (self.ctl, sg), "s_lshl_b32 s%d, s%d, 3" % (self.ctl, self.ctl),
                "s_or_b32 s%d, s%d, 0x%x" % (self.ctl, self.ctl, self.w << 16), "s_bfe_u32 s%d, 0x%x, s%d" % (self.k, self.pk(self.e), self.ctl),
                "s_add_u32 s%d, s%d, %s" % (self.k, self.k, sbase)] + self.wrap()

    def copy(self, o):
        return ["s_mov_b32 s%d, s%d" % (self.k, o.k), "s_mov_b32 s%d, s%d" % (self.ctl, o.ctl)]

    def step(self):
        return ["s_bfe_u32 s%d, 0x%x, s%d" % (self.t, self.pat, self.ctl), "s_add_u32 s%d, s%d, s%d" % (self.k, self.k, self.t),
                "s_add_u32 s%d, s%d, %d" % (self.ctl, self.ctl, self.w), "s_and_b32 s%d, s%d, 0x%x" % (self.ctl, self.ctl, (self.w << 16) | 31)] + self.wrap()
```

```python
from lib import *
from gemm4 import *
import proj4, bfront, attn4, oproj, qproj

MFL = set(os.environ.get("MFLAGS", "").split(","))


def gen(stamp=False):
    a = Asm()
    st = Stamps(stamp, 0)
    a("s_cmp_ge_u32 s2, 256")
    a("s_cbranch_scc1 Lend")
    a("s_load_dwordx16 s[64:79], s[0:1], 0")
    a("s_load_dwordx8 s[80:87], s[0:1], 64")
    a("v_lshrrev_b32 v2, 6, v0")
    a("v_and_b32 v1, 63, v0")
    a("v_readfirstlane_b32 s%d, v2" % S_WAVE)
    a("v_lshlrev_b32 v2, 4, v1")
    if 'ipf' in MFL:
        a("s_getpc_b64 s[6:7]")
        a("s_lshr_b32 s4, s2, 3")
        a("s_lshl_b32 s4, s4, 2")
        a("s_add_u32 s4, s4, s%d" % S_WAVE)
        a("s_min_u32 s4, s4, CODE_KB")
        a("s_lshl_b32 s4, s4, 10")
        a("v_add_u32 v3, s4, v2")
        a("global_load_dwordx4 v[4:7], v3, s[6:7]")
    st(a)
    gk, gv = proj4.make('wx'), proj4.make('xw')
    b0, b1 = bfront.make(0), bfront.make(1)
    g3 = qproj.make()
    if 'nost' in MFL:
        t0 = proj4.trickle
        proj4.trickle = lambda k, a, b: [x.replace("s%d," % proj4.sSt, "0x70000000,").replace("s_add_u32 s60, 0x70000000, ", "s_mov_b32 s60, 0x70000000 ; ") for x in t0(k, a, b)]
    NK = [int(x) for x in os.environ.get("NK", "10").split(",")]
    NW = int(os.environ.get("NW", 8))
    TR3 = [int(x) for x in os.environ.get("TR3", "2,2,2,2,3,3,3,3,2,2").split(",")]
    assert NW >= 8 and NW + sum(TR3) == 32
    a("s_bfe_u32 s59, s2, 0x30003")
    a("s_lshr_b32 s4, s2, 7")
    a("s_lshl_b32 s4, s4, 3")
    a("s_add_u32 s59, s59, s4")
    a("s_lshr_b32 s4, s2, 3")
    a("s_xor_b32 s4, s4, s2")
    a("s_bitcmp1_b32 s4, 3")
    a("s_cbranch_scc1 Lp2")

    def common(c):
        attn4.ids(c)
        oproj.lanes(c, 24)
        qproj.lanes(c, 24)
    proj4.setup(a, gk, "s59")
    srd(a, S_FLG, P_WS, 0x40000, WS_FLG)
    tag_make(a, 0)
    for x in proj4.xitems(gk, 0) + proj4.witems(gk, 0):
        a(x)
    c = Col()
    proj4.read_bases(c, gk)
    common(c)
    proj4.out_base(c)
    gk.init(c, [proj4.XS0, 0])
    for x in weave_lines(c, proj4.xitems(gk, 1) + proj4.witems(gk, 1), 0.2, 1.0):
        a(x)
    tag_make(a, 1, 32)
    st(a)
    k0 = st.k
    gk.pro(a, 16, dma=proj4.xitems(gk, 2))
    a("s_mov_b32 s%d, 6" % gk.sCnt)
    gk.loop(a, 8)
    gk.half(a, 1, dma=gk.dma_items())
    if 'st2' in MFL:
        st(a)
    order, epi = proj4.pack('k', NK[0])
    rest = gk.bm(a, order, 18, 18, N=8, dma=gk.dma_items(), nxt=gv, epi=epi, defer=True)
    assert all(kind(x) == 'c' for x in rest), rest
    if 'st2' in MFL:
        st(a)
    order, held = proj4.v_order(NK[0])
    sts = [(proj4.trickle('k', k, k + 1), held[proj4.ORDER['k'][k]]) for k in range(NK[0], 32)]
    gv.bm(a, order, 20, 18, N=8, first=True, dma=gv.dma_items(), nxt=gv, st2=sts, carry=rest)
    a("s_add_u32 s%d, s%d, 0x4000" % (proj4.sSt, proj4.sSt))
    a("s_waitcnt lgkmcnt(0)")
    gv.half(a, 0, adv=True)
    st(a)
    a("s_mov_b32 s%d, 4" % gv.sCnt)
    gv.loop(a, 8)
    gv.iter(a, None, proj4.witems(gv, 0) + qproj.witems(g3, 0) + qproj.witems(g3, 1), after_bar=lambda: qproj.setup(a, g3))
    gv.bar(a, 8)
    gv.half(a, 1, dma=qproj.xitems(g3, 0))
    order, epi = proj4.pack('v', NW)
    gv.bm(a, order, 18, epi=epi, dma=qproj.xitems(g3, 1) + qproj.witems(g3, 2) + qproj.xitems(g3, 2), mid=lambda: tag_load(a, 22))
    qk = VmQ()
    for t, n in (('w0', 4), ('w1', 4), ('x0', 8), ('t', 1), ('st', NW), ('x1', 8), ('w2', 4), ('x2', 8)):
        qk.push(t, n)
    a("s_lshl_b32 s34, s%d, 4" % proj4.sN0)
    a("s_add_u32 s34, s34, s%d" % proj4.sM0)
    a("s_lshl_b32 s34, s34, 7")
    a("s_branch Lp3")
    a.label("Lp2")
    st.k = k0 - 1
    bfront.setup(a, b0, "s59")
    srd(a, S_FLG, P_WS, 0x40000, WS_FLG)
    a("s_cmp_ge_u32 s%d, 2" % S_WAVE)
    a("s_cbranch_scc1 Lp2_r1")
    for rh, g in enumerate((b0, b1)):
        if rh:
            a.label("Lp2_r1")
            st.k = k0 - 1
        nx = 8 if rh else 9
        for x in bfront.xitems(g, 0) + bfront.witems(g, 0):
            a(x)
        c = Col()
        bfront.read_bases(c)
        common(c)
        bfront.pre(c)
        g.init(c)
        for x in weave_lines(c, bfront.xitems(g, 1) + bfront.witems(g, 1), 0.2, 1.0):
            a(x)
        st(a)
        g.pro(a, nx + 6, dma=bfront.xitems(g, 2))
        a("s_mov_b32 s%d, 13" % g.sCnt)
        g.loop(a, nx)
        if 'st2' in MFL:
            st(a)
            st(a)
        g.iter(a, None, bfront.witems(g, 0), after_bar=lambda: qproj.setup(a, g3))
        g.bar(a, 0)
        a("s_mov_b32 s6, 0x%08x" % f32bits(bfront.CB))
        a("s_mov_b32 s7, s6")
        g.half(a, 1)
        order, epi = bfront.pack(g, rh)
        g.bm(a, order, 16, epi=epi, dma=qproj.witems(g3, 0) + qproj.witems(g3, 1) + qproj.xitems(g3, 0), mid=lambda: tag_load(a, 22))
        a("s_waitcnt lgkmcnt(0)")
        a("s_barrier")
        st(a)
        if not rh:
            a("s_branch Lp2_at")
    a.label("Lp2_at")
    c = Col()
    bfront.attend(c)
    for x in weave_lines(c, qproj.xitems(g3, 1) + qproj.witems(g3, 2) + qproj.xitems(g3, 2), 0.0, 0.7):
        a(x)
    qb = VmQ()
    for t, n in (('t', 1), ('w0', 4), ('w1', 4), ('x0', 8), ('x1', 8), ('w2', 4), ('x2', 8), ('st', 8)):
        qb.push(t, n)
    a("s_lshl_b32 s34, s%d, 4" % bfront.sRb)
    a("s_add_u32 s34, s34, s%d" % bfront.sHp)
    a("s_lshl_b32 s34, s34, 7")
    a("s_add_u32 s34, s34, %d" % F_OB)
    a("s_mov_b32 s%d, 0x70000000" % proj4.sSt)
    a.label("Lp3")
    st(a)
    qproj.restore(a)
    g3.init(a, [qproj.XS0, 0])
    need = lambda *t: min(qk.need(*t), qb.need(*t))

    def push(t, n):
        qk.push(t, n), qb.push(t, n)
    cum = [NW + sum(TR3[:k]) for k in range(len(TR3) + 1)]
    g3.pro(a, need('w0', 'x0'), dma=proj4.trickle('v', cum[0], cum[1]))
    push('st', TR3[0])
    last = len(TR3) + 1
    for s in range(1, last + 1):
        N = need('w%d' % s, 'x%d' % s, s, *(['st'] if s == last else []))
        g3.iter(a, N, g3.dma_items() + (proj4.trickle('v', cum[s], cum[s + 1]) if s < len(TR3) else []),
                after_bar=(lambda: (tag_get(a, 22, 12), signal(a, 22, ["s34"], 3))) if s == last else None)
        push(s + 2, 12)
        if s < len(TR3):
            push('st', TR3[s])
    if last < 12:
        a("s_mov_b32 s%d, %d" % (g3.sCnt, 12 - last))
        g3.loop(a, 12)
    else:
        g3.bar(a, 12)

    def ids():
        a("s_lshr_b32 s34, s%d, 1" % attn4.sHead)
        a("s_lshl_b32 s34, s34, 11")
        for x in flag_addr(3, 8):
            a(x)
    g3.iter(a, None, [flag_load(22, "s34", 3)] + g3.dma_items(), after_bar=ids)

    def go():
        flag_check(a, 22, "s34", 3)
        attn4.kv_setup(a)
        oproj.ids(a)
    it = attn4.kv_prologue_items(0)
    cut = [i for i, x in enumerate(it) if "m0" in x][1]
    g3.iter(a, 12, it[:cut], after_bar=go)
    g3.bar(a, 4)
    a("s_mov_b32 s6, 0x%08x" % f32bits(attn4.CST))
    a("s_mov_b32 s7, s6")
    g3.half(a, 1, dma=it[cut:])
    order, epi = qproj.epilogue()
    g3.bm(a, order, 16, epi=epi, bar=False)
    st(a)
    attn4.setup1(a)
    st(a)
    g6, g7 = oproj.make("p6", oproj.AB), oproj.make("p7", oproj.AA)

    class H:
        q0 = [t for t in (('K', 0), ('K', 1), ('V', 0)) for _ in range(4)]

        @staticmethod
        def after_d2():
            a("s_lshr_b32 s91, s%d, 1" % oproj.sRb)
            a("s_lshl_b32 s91, s91, 11")
            a("s_add_u32 s91, s91, %d" % F_OB)
            for x in flag_addr(14):
                a(x)

        @staticmethod
        def pre_e1():
            return [flag_load(12, "s91", 14)]

        @staticmethod
        def at_e1():
            flag_check(a, 12, "s91", 14)
            for j in range(4):
                a("v_accvgpr_read_b32 v%d, a%d" % (oproj.wv + j, oproj.aSave + j))
            for x in oproj.job_w(False) + oproj.job_x(False):
                a(x)

        @staticmethod
        def e1_items():
            return oproj.stage_items(g6, 0, 'wx')

        @staticmethod
        def e2_items():
            return oproj.stage_items(g6, 1, 'wx')
    attn4.attention(a, st, H)
    st(a)
    gh = oproj.make("ph", oproj.AA, True)
    q = VmQ()
    for s in range(2):
        q.push(s, 8)
    q.push('ctx', 8)
    oproj.read_bases(a, 4)
    g6.init(a, [3])
    g6.pro(a, q.need(0), dma=oproj.stage_items(g6, 2, 'wx') + oproj.stage_items(g6, 3, 'wx'))
    q.push(2, 8)
    q.push(3, 8)

    def sig_ctx():
        a("s_lshl_b32 s4, s%d, 7" % attn4.sHead)
        a("s_lshl_b32 s5, s%d, 12" % attn4.sPair)
        a("s_add_u32 s6, s4, %d" % F_CTX)
        a("s_add_u32 s7, s6, %d" % (15 << 12))
        a("s_add_u32 s6, s6, s5")
        a("s_sub_u32 s7, s7, s5")
        signal(a, 6, ["s6", "s7"])
        a("s_lshl_b32 s91, s%d, 12" % oproj.sRb)
        a("s_add_u32 s91, s91, %d" % F_CTX)
        for x in flag_addr(14, 32):
            a(x)
        oproj.xch_srd(a)
    VS = int(os.environ.get("VS", 6))
    for s in range(1, VS):
        N = q.need(1, 'ctx') if s == 1 else q.need(s)
        if s == 1:
            q.push('sig', 2)
        it = g6.dma_items() if s < 5 else (oproj.job_w(True) if s == 5 else []) + g7.group_items(g7.dma[0])
        q.push(s + 3, 8 if s < 5 else 4)
        if s == VS - 1:
            it = it + [flag_load(6, "s91", 14)]
            q.push('fl', 1)
        g6.iter(a, N, it, after_bar=sig_ctx if s == 1 else None)
    a("s_waitcnt vmcnt(%d)" % q.need(VS, 'fl'))
    a("v_cmp_ne_u64 vcc, s[%d:%d], v[6:7]" % (S_TAG, S_TAG + 1))
    a("v_cndmask_b32_e64 v8, 0, 1, vcc")
    a("v_lshlrev_b32 v9, 2, v0")
    a("ds_write_b32 v9, v8")
    a("v_lshlrev_b32 v9, 4, v1")
    a("s_waitcnt lgkmcnt(0)")
    a("s_barrier")
    a("ds_read_b128 v[160:163], v9")
    for x in oproj.job_w(True) if VS == 5 else []:
        a(x)
    a("s_waitcnt lgkmcnt(0)")
    a("v_or3_b32 v160, v160, v161, v162")
    a("v_or_b32 v160, v160, v163")
    a("v_cmp_ne_u32 vcc, 0, v160")
    if 'only7' not in MFL:
        a("s_cbranch_vccnz Lp6_late ; @late")
    k0 = st.k
    q0 = list(q.q)
    for late in (False, True):
        q.q = list(q0)
        if late:
            a.label("Lp6_late")
            st.k = k0
        else:
            for x in oproj.job_x(True):
                a(x)
        for s in range(VS, 8):
            if s > VS:
                g6.bar(a, q.need(s))
            it = g7.group_items(g7.dma[0]) if late else g7.dma_items()
            if s == VS and not late:
                for t in range(VS + 2, 7, -1):
                    it = oproj.stage_items(g7, t, 'x') + it
                for t in range(8, VS + 3):
                    q.push(t, 4)
            q.push(s + 3, 4 if late else 8)
            if late and s == 7:
                it += [flag_load(6, "s91", 14)]
            d0, d1 = g6.split(it)
            g6.half(a, 1, dma=d0)
            a("s_waitcnt lgkmcnt(0)")
            g6.half(a, 0, dma=d1, adv=True)
        if late:
            a("s_waitcnt vmcnt(0) lgkmcnt(0)")
            a("s_barrier")
            st(a)
            flag_check(a, 6, "s91", 14)
            st(a)
            for x in oproj.job_x(True):
                a(x)
            it = []
            for s in range(8, 12):
                it += oproj.stage_items(g7, s, 'x' if s < 11 else 'wx')
            g6.half(a, 1, rd=False, dma=it)
            for x in oproj.send_items(oproj.AB, False, 6):
                a(x)
            a("s_waitcnt vmcnt(24)")
            a("s_barrier")
            for x in g7.reads(0):
                a(x)
            a("s_waitcnt lgkmcnt(0)")
            g7.half(a, 0, first=True, adv=True)
        else:
            g6.bar(a, q.need(8))
            st(a)
            st(a)
            g6.half(a, 1, dma=g7.dma_items())
            a("s_waitcnt lgkmcnt(0)")
            it = oproj.send_items(oproj.AB, False, 6)
            nsc = [i for i, x in enumerate(it) if kind(x) == 'd'][0]
            for x in it[:nsc]:
                a(x)
            g7.half(a, 0, first=True, adv=True, extra=lambda sg: place_dma(sg, it[nsc:], 5, 14))
            a("s_branch Lp7")
    a.label("Lp7")
    st(a)
    DL = oproj.DL
    F = 40 - DL
    a("s_mov_b32 s%d, %d" % (g7.sCnt, F - 4 - 9))
    g7.loop(a, 16)
    q = VmQ()
    for s in range(F - 4, F - 1):
        q.push(s, 8)
    E = F + 2 * DL
    finB = []
    for s in range(F - 4, E):
        tags, it, ab = [s], [], None
        if s == F - 4:
            def ab():
                oproj.flag_pos(a, False, True, 6)
                signal(a, 6, ["s6"])
                oproj.flag_pos(a, False, False, 90)
                oproj.out_setup(a)
        if s == F - 3:
            it += [flag_load(6, "s90")]
        if s == F - 2:
            tags.append('fl')
            ab = lambda: flag_check(a, 6, "s90")
            it += oproj.recv_items(False, 6)
        if s == F:
            tags.append('rcv')

            def ab():
                oproj.out_off(a, False, 4)
                oproj.flag_pos(a, True, True, 89)
                oproj.flag_pos(a, True, False, 90)
            finB = oproj.finish(oproj.AB, False, 4)
        if s == F + 3:
            tags.append('snd')
            ab = lambda: signal(a, 6, ["s89"])
        if s == E - 3:
            it += [flag_load(6, "s90")]
        if s == E - 2:
            tags.append('fl')
            ab = lambda: flag_check(a, 6, "s90")
            it += oproj.recv_items(True, 6)
        N = q.need(*tags)
        if s == F - 4 or s == F + 3:
            q.push('sig', 1)
        for x in it:
            if kind(x) == 'd':
                q.push('fl' if "dwordx2" in x else 'rcv', 1)
        if s + 3 < F:
            it += g7.dma_items()
            q.push(s + 3, 8)
        elif s + 3 < E:
            if s + 3 == F:
                it += oproj.to_half()
            if s + 3 == F + DL:
                it += oproj.to_partner()
            it += gh.dma_items()
            q.push(s + 3, 6)
        g1, g0 = (g7 if s - 1 < F else gh), (g7 if s < F else gh)
        if s > F - 4:
            g7.bar(a, N)
        else:
            assert N >= 16
        if ab:
            ab()
        d0, d1 = g7.split(it)
        if s == F:
            snd = oproj.send_items(oproj.AA, True, 6)
            nsc = [i for i, x in enumerate(snd) if kind(x) == 'd'][0]
            d0, d1 = it + snd[:nsc], snd[nsc:nsc + 4]
            q.push('snd', 4)
        if s == F + 1:
            d0, d1 = snd[nsc + 4:], it
            q.q = q.q[:-6] + ['snd'] * 4 + q.q[-6:]

        L = finB.pop(0) if finB and s > F else []

        def finb(sg):
            g = 0
            for x in L[:-1]:
                g = sg.place(x, g, lo=g)
        g1.half(a, 1, dma=d0, rdg=g0, extra=finb)
        a("s_waitcnt lgkmcnt(0)")
        g0.half(a, 0, dma=d1, adv=s < E - 1, extra=lambda sg: sg.end[sg.n - 1].extend(L[-1:]))
        q.push('ob', len(L[-1:]))
    oproj.out_off(a, True, 4)
    gh.tail(a, bar=False)
    st(a)
    a("s_waitcnt vmcnt(0)")
    st(a)
    for L in zip(*oproj.finish(oproj.AA, True, 4)):
        for x in L:
            a(x)
    st(a)
    if stamp:
        a("s_waitcnt vmcnt(0)")
    st(a)
    st.flush(a)
    return fin(a)


def fin(a):
    a.label("Lend")
    a("s_endpgm")
    t = a.finish()
    if 'nobar' in MFL:
        t = t.replace("s_barrier", "s_nop 0")
    if 'nox' in MFL:
        t = "\n".join(l for l in t.split("\n") if not (l.rstrip().endswith(" lds") and "s[8:11]" in l))
    if 'now' in MFL:
        t = "\n".join(l for l in t.split("\n") if not (l.rstrip().endswith(" lds") and "s[12:15]" in l))
    if 'nodma' in MFL:
        t = "\n".join(l for l in t.split("\n") if not l.rstrip().endswith(" lds"))
    return t.replace("CODE_KB", os.environ.get("CODE_KB", "70"))
```

```python
from lib import *
from gemm4 import *

xv, wv = 48, 56
sX, sW = 46, 47
sM0, sN0 = 61, 62
sSt = 63
T = 32
ROT = int(os.environ.get("ROT", 1))
KS = KSeq(48, 8, 34)
XS0 = 2


def acc(mi, ni):
    b = mi * 8 + ni
    return ('v', 64 + 4 * b) if b < 48 else ('a', 128 + 4 * (b - 48))


def make(orient):
    g = Gemm()
    g.name = "p1" + orient
    RX, RW = Ring(3, 32 * KB, 36), Ring(2, 32 * KB, 41)
    RX.regs, RW.regs = [16, 17], [18, 19, 20, 21]
    g.rings = [RX, RW]
    g.xrd, g.wrd = [(16, 17)], [18, 19, 20, 21]
    g.xfr = [(0, 2048 * i) for i in range(8)]
    g.wfr = [(ni & 3, (ni >> 2) * 8192) for ni in range(8)]
    g.mf = [(acc(mi, ni), mi, ni, orient) for ni in range(8) for mi in range(8)]
    g.fx, g.fw = 0, 64
    g.sCnt = 35
    ld = lambda v, s, o, j: "buffer_load_dwordx4 v%d, s[%d:%d], s%d offen offset:%d lds" % (v + j, s, s + 3, o, 1024 * (j & 3))
    g.dma = [
        (RW, 0, [ld(wv, 12, sW, j) for j in range(4)], []),
        (RW, 4096, [ld(wv, 12, sW, j) for j in range(4, 8)], []),
        (RX, 0, [ld(xv, 8, sX, j) for j in range(4)], []),
        (RX, 4096, [ld(xv, 8, sX, j) for j in range(4, 8)],
         ["s_sub_u32 s50, s50, 1", "s_cmp_eq_u32 s50, 0\ns_cselect_b32 s12, s%d, s12\ns_cselect_b32 s13, s%d, s13" % (P_WUV, P_WUV + 1),
          "s_lshl_b32 s%d, s%d, 19" % (sW, KS.k)] + KS.step() + ["s_lshl_b32 s%d, s%d, 7" % (sX, KS.k)]),
    ]
    return g


def xitems(g, s):
    off = (((XS0 + s) % 3) - XS0) * 32 * KB
    return g.group_items(g.dma[2], off) + g.group_items(g.dma[3], off)


def witems(g, s):
    return g.group_items(g.dma[0], s * 32 * KB) + g.group_items(g.dma[1], s * 32 * KB)


def setup(a, g, sidx):
    RX, RW = g.rings
    a("s_and_b32 s4, s2, 1")
    a("s_lshl_b32 s4, s4, 2")
    a("s_and_b32 s5, %s, 3" % sidx)
    a("s_add_u32 s%d, s4, s5" % sM0)
    a("s_bfe_u32 s4, s2, 0x20001")
    a("s_lshl_b32 s4, s4, 2")
    a("s_lshr_b32 s5, %s, 2" % sidx)
    a("s_add_u32 s%d, s4, s5" % sN0)
    a("s_lshl_b32 s4, s%d, 13" % S_WAVE)
    a("s_add_u32 s%d, s4, %d" % (RX.sWr, XS0 * 32 * KB))
    a("s_add_u32 s%d, s4, %d" % (RW.sWr, 96 * KB))
    lane_setup(a, T)
    a("s_lshl_b32 s4, s%d, 2" % sM0)
    a("s_add_u32 s4, s4, s%d" % S_WAVE)
    a("s_lshl_b32 s4, s4, 6")
    a("v_add_u32 v%d, s4, v%d" % (T + 2, T))
    a("v_lshl_add_u32 v%d, v%d, 10, v%d" % (T + 2, T + 2, T + 1))
    for j in range(8):
        a("v_add_u32 v%d, %d, v%d" % (xv + j, 8 * j * 1024 - 1024 * (j & 3), T + 2))
    a("v_lshrrev_b32 v%d, 2, v%d" % (T + 2, T))
    a("v_and_b32 v%d, 3, v%d" % (T + 3, T))
    a("v_lshl_add_u32 v%d, v%d, 3, v%d" % (T + 2, T + 2, T + 3))
    a("s_lshl_b32 s4, s%d, 2" % sN0)
    a("s_add_u32 s4, s4, s%d" % S_WAVE)
    a("s_lshl_b32 s4, s4, 7")
    a("v_lshl_add_u32 v%d, v%d, 13, v%d" % (T + 2, T + 2, T + 1))
    a("v_add_u32 v%d, s4, v%d" % (T + 2, T + 2))
    for j in range(8):
        a("v_add_u32 v%d, %d, v%d" % (wv + j, (32 * (j >> 2) + 16 * (j & 1) + 4 * ((j >> 1) & 1)) * 8192 - 1024 * (j & 3), T + 2))
    a("s_and_b32 s6, s2, %d" % (7 if ROT else 0))
    a("s_add_u32 s4, s%d, s%d" % (sM0, sN0))
    for x in KS.init("s4", "s6"):
        a(x)
    a("s_lshl_b32 s%d, s%d, 7" % (sX, KS.k))
    a("s_waitcnt lgkmcnt(0)")
    srd(a, 8, P_CKV, 2048 * 1024)
    srd(a, 12, P_WUK, 512 * 8192)
    a("s_mov_b32 s50, 9")


def read_bases(a, g):
    a("s_lshr_b32 s4, s%d, 1" % S_WAVE)
    a("s_lshl_b32 s4, s4, 14")
    a("s_add_u32 s4, s4, %d" % (XS0 * 32 * KB))
    xread_base(a, 16, 17, T, "s4")
    a("s_and_b32 s4, s%d, 1" % S_WAVE)
    a("s_lshl_b32 s4, s4, 14")
    a("s_add_u32 s4, s4, %d" % (96 * KB))
    wread_base(a, g.wrd, range(4), T, "s4")


def out_base(a):
    a("s_and_b32 s4, s%d, 1" % S_WAVE)
    a("s_lshl_b32 s5, s%d, 1" % sN0)
    a("s_add_u32 s4, s4, s5")
    a("s_lshr_b32 s5, s%d, 1" % S_WAVE)
    a("s_lshl_b32 s6, s%d, 1" % sM0)
    a("s_add_u32 s5, s5, s6")
    srd(a, 16, P_WS, 32 * MB, WS_KV)
    a("s_lshl_b32 s4, s4, 20")
    a("s_lshl_b32 s5, s5, 16")
    a("s_add_u32 s%d, s4, s5" % sSt)


def packed(kind_, j):
    if kind_ == 'k':
        return 64 + 8 * j if 8 <= j < 24 else 68 + 8 * (j - 16 if j >= 24 else j + 16)
    if j < 8:
        return 160 + 4 * j
    if j >= 24:
        return 224 + 4 * (j - 24)
    return 128 + 64 * ((j >> 3) - 1) + 4 * (j & 7)


ORDER = {'k': [x for i in range(8) for x in (8 + i, 24 + i)] + [x for i in range(8) for x in (16 + i, i)],
         'v': list(range(8, 16)) + [x for i in range(8) for x in (16 + i, 24 + i)] + list(range(8))}


def pack(kind_, nst=0):
    order, epi = [], []
    na = 0
    for j in ORDER[kind_]:
        b0, b1 = ((j >> 2, 2 * (j & 3)), (j >> 2, 2 * (j & 3) + 1)) if kind_ == 'k' else ((2 * (j >> 3), j & 7), (2 * (j >> 3) + 1, j & 7))
        p0, p1 = acc(*b0), acc(*b1)
        idx = [b[1] * 8 + b[0] for b in (b0, b1)]
        order += idx
        L = []
        if p0[0] == 'a':
            src = [24 + 8 * (na % 3) + e for e in range(8)]
            na += 1
            L += ["v_accvgpr_read_b32 v%d, a%d" % (src[e], (p0, p1)[e >> 2][1] + (e & 3)) for e in range(8)]
        else:
            src = [p0[1] + e for e in range(4)] + [p1[1] + e for e in range(4)]
        L += ["v_cvt_pk_bf16_f32 v%d, v%d, v%d" % (packed(kind_, j) + e, src[2 * e], src[2 * e + 1]) for e in range(4)]
        epi.append((idx, L))
    span = 14 if kind_ == 'k' else 28
    for k in range(nst):
        n = 1 + k * span // nst
        assert k < n
        epi[n] = (epi[n][0], epi[n][1] + trickle(kind_, k, k + 1))
    return order, epi


def trickle(kind_, k0, k1):
    L = []
    O = ORDER[kind_]
    for k in range(k0, k1):
        j = O[k]
        if k == k0 or j >> 2 != O[k - 1] >> 2:
            L.append("s_add_u32 s60, s%d, %d" % (sSt, (j >> 4) * 32768 + ((j >> 2) & 3) * 4096))
        L.append("buffer_store_dwordx4 %s, v2, s[16:19], s60 offen offset:%d%s" % (v4(packed(kind_, j)), 1024 * (j & 3), SC1))
    return L


def v_order(nk):
    idx = lambda mi, ni: ni * 8 + mi
    free = [idx(mi, ni) for mi in (6, 7, 0, 1) for ni in range(8)]
    held = {}
    for j in ORDER['k']:
        b = (packed('k', j) - 64) // 4
        held[j] = idx(b >> 3, b & 7)
    H = [held[j] for j in ORDER['k']]
    return free[:16] + H[:nk] + free[16:] + H[nk:], held
```

```python
from lib import *
from gemm4 import *
import attn4
from attn4 import Oreg, aQ, vO, CST

xv, wv, rd = 4, 8, 16
aSave = 222
aZ = 236
A0 = 32
sXA, sXB, sW = 26, 27, 28
C3, L3 = [int(x) for x in os.environ.get('KS3', '1,2').split(',')]
KX, KW = KSeq(52, 16, 29, C3, L3), KSeq(54, 16, 56, C3, L3)
XBASE, XS0 = 64 * KB, 1


def make():
    g = Gemm()
    g.name = "p3"
    RX, RW = Ring(3, 32 * KB, 88), Ring(3, 16 * KB, 68)
    RX.regs, RW.regs = [rd, rd + 1], list(range(rd + 2, rd + 6))
    g.rings = [RX, RW]
    g.xrd, g.wrd = [(rd, rd + 1)], list(range(rd + 2, rd + 6))
    g.xfr = [(0, 2048 * i) for i in range(4)]
    g.wfr = [(ni & 3, (ni >> 2) * 8192) for ni in range(8)]
    g.mf = [(('v', A0 + 4 * (8 * mi + ni)), mi, ni, 'wx') for ni in range(8) for mi in range(4)]
    g.fx, g.fw = 0, 32
    g.sCnt = 35
    ld = lambda v, s, o, j: "buffer_load_dwordx4 v%d, s[%d:%d], s%d offen offset:%d lds" % (v + j, s, s + 3, o, 1024 * j)
    g.dma = [
        (RW, 0, [ld(wv, 20, sW, j) for j in range(4)],
         KW.step() + ["s_lshl_b32 s%d, s%d, 19" % (sW, KW.k)]),
        (RX, 0, [ld(xv, 8, sXA, j) for j in range(4)], []),
        (RX, 4096, [ld(xv, 8, sXB, j) for j in range(4)],
         KX.step() + ["s_lshl_b32 s29, s%d, 7" % KX.k, "s_or_b32 s%d, s30, s29" % sXA, "s_or_b32 s%d, s31, s29" % sXB]),
    ]
    return g


def lanes(a, T):
    for i in range(4):
        a("v_accvgpr_write_b32 a%d, 0" % (aZ + i))
        a("v_accvgpr_write_b32 a%d, v%d" % (attn4.aOne + i, T + 3) if i else "v_mov_b32 v%d, 0x3f803f80\nv_accvgpr_write_b32 a%d, v%d" % (T + 3, attn4.aOne, T + 3))
    lane_setup(a, T)
    a("v_lshlrev_b32 v%d, 2, v%d" % (T + 2, T))
    a("v_add_u32 v%d, s%d, v%d" % (T + 2, S_WAVE, T + 2))
    a("v_lshl_add_u32 v%d, v%d, 11, v%d" % (T + 2, T + 2, T + 1))
    for j in range(4):
        a("v_add_u32 v%d, %d, v%d" % (T + 3, (32 * j) * 2048 - 1024 * j, T + 2))
        a("v_accvgpr_write_b32 a%d, v%d" % (aSave + j, T + 3))
    a("v_lshrrev_b32 v%d, 2, v%d" % (T + 2, T))
    a("v_and_b32 v%d, 3, v%d" % (T + 3, T))
    a("v_lshl_add_u32 v%d, v%d, 3, v%d" % (T + 2, T + 2, T + 3))
    a("s_and_b32 s4, s%d, 1" % S_WAVE)
    a("s_lshl_b32 s4, s4, 18")
    a("s_lshr_b32 s5, s%d, 1" % S_WAVE)
    a("s_lshl_b32 s5, s5, 7")
    a("s_add_u32 s4, s4, s5")
    a("s_lshl_b32 s5, s%d, 8" % attn4.sHead)
    a("s_add_u32 s4, s4, s5")
    a("v_lshl_add_u32 v%d, v%d, 13, v%d" % (T + 2, T + 2, T + 1))
    a("v_add_u32 v%d, s4, v%d" % (T + 2, T + 2))
    for j in range(4):
        a("v_add_u32 v%d, %d, v%d" % (T + 3, (16 * (j & 1) + 4 * (j >> 1)) * 8192 - 1024 * j, T + 2))
        a("v_accvgpr_write_b32 a%d, v%d" % (aSave + 4 + j, T + 3))
    t = T + 4
    a("s_lshl_b32 s4, s%d, 13" % S_WAVE)
    a("s_add_u32 s4, s4, %d" % (XBASE + XS0 * 32 * KB))
    xread_base(a, t, t + 1, T, "s4")
    wread_base(a, [t + 2 + i for i in range(4)], range(4), T, "0")
    for i in range(6):
        a("v_accvgpr_write_b32 a%d, v%d" % (aSave + 8 + i, t + i))


def setup(a, g):
    RX, RW = g.rings
    for i in range(8):
        a("v_accvgpr_read_b32 v%d, a%d" % (xv + i, aSave + i))
    srd(a, 8, P_AX, 2048 * 2048)
    srd(a, 20, P_WQ, 1024 * 8192)
    a("s_and_b32 s4, s2, %d" % (7 if int(os.environ.get("ROT3", 1)) else 0))
    a("s_lshl_b32 s4, s4, 1")
    a("s_lshr_b32 s5, s2, 6")
    a("s_add_u32 s5, s5, s%d" % attn4.sPair)
    for x in KX.init("s5", "s4") + KW.copy(KX):
        a(x)
    a("s_lshl_b32 s29, s%d, 7" % KX.k)
    a("s_lshl_b32 s%d, s%d, 19" % (sW, KW.k))
    a("s_lshl_b32 s30, s%d, 18" % attn4.sPair)
    a("s_sub_u32 s31, %d, s30" % (15 << 18))
    a("s_or_b32 s%d, s30, s29" % sXA)
    a("s_or_b32 s%d, s31, s29" % sXB)
    a("s_lshl_b32 s%d, s%d, 12" % (RW.sWr, S_WAVE))
    a("s_lshl_b32 s%d, s%d, 13" % (RX.sWr, S_WAVE))
    a("s_add_u32 s%d, s%d, %d" % (RX.sWr, RX.sWr, XBASE + XS0 * 32 * KB))


def restore(a):
    for i in range(6):
        a("v_accvgpr_read_b32 v%d, a%d" % (rd + i, aSave + 8 + i))


def xitems(g, s):
    off = (((XS0 + s) % 3) - XS0) * 32 * KB
    return g.group_items(g.dma[1], off) + g.group_items(g.dma[2], off)


def witems(g, s):
    return g.group_items(g.dma[0], s * 16 * KB)


def epilogue():
    order, epi = [], []
    for g in range(4):
        for ds in range(4):
            b = A0 + 4 * (8 * g + 2 * ds)
            idx = [(2 * ds) * 4 + g, (2 * ds + 1) * 4 + g]
            order += idx
            L = ["v_pk_mul_f32 v[%d:%d], v[%d:%d], s[6:7]" % (b + e, b + e + 1, b + e, b + e + 1) for e in range(0, 8, 2)]
            L += ["v_cvt_pk_bf16_f32 v%d, v%d, v%d" % (b + e, b + 2 * e, b + 2 * e + 1) for e in range(4)]
            L += ["v_accvgpr_write_b32 a%d, v%d" % (aQ + 4 * (4 * g + ds) + e, b + e) for e in range(4)]
            if ds & 1:
                z = vO + (16 * (2 * g + (ds >> 1)) + 32) % 128
                L.append("v_mfma_f32_32x32x16_bf16 v[%d:%d], a[%d:%d], a[%d:%d], 0" % (z, z + 15, aZ, aZ + 3, aZ, aZ + 3))
            epi.append((idx, L))
    return order, epi
```

```python
from lib import *
from gemm4 import *
import proj4, bfront, attn4, oproj, qproj

MFL = set(os.environ.get("MFLAGS", "").split(","))


def gen(stamp=False):
    a = Asm()
    st = Stamps(stamp, 0)
    a("s_cmp_ge_u32 s2, 256")
    a("s_cbranch_scc1 Lend")
    a("s_load_dwordx16 s[64:79], s[0:1], 0")
    a("s_load_dwordx8 s[80:87], s[0:1], 64")
    a("v_lshrrev_b32 v2, 6, v0")
    a("v_and_b32 v1, 63, v0")
    a("v_readfirstlane_b32 s%d, v2" % S_WAVE)
    a("v_lshlrev_b32 v2, 4, v1")
    if 'ipf' in MFL:
        a("s_getpc_b64 s[6:7]")
        a("s_lshr_b32 s4, s2, 3")
        a("s_lshl_b32 s4, s4, 2")
        a("s_add_u32 s4, s4, s%d" % S_WAVE)
        a("s_min_u32 s4, s4, CODE_KB")
        a("s_lshl_b32 s4, s4, 10")
        a("v_add_u32 v3, s4, v2")
        a("global_load_dwordx4 v[4:7], v3, s[6:7]")
    st(a)
    gk, gv = proj4.make('wx'), proj4.make('xw')
    b0, b1 = bfront.make(0), bfront.make(1)
    g3 = qproj.make()
    if 'nost' in MFL:
        t0 = proj4.trickle
        proj4.trickle = lambda k, a, b: [x.replace("s%d," % proj4.sSt, "0x70000000,").replace("s_add_u32 s60, 0x70000000, ", "s_mov_b32 s60, 0x70000000 ; ") for x in t0(k, a, b)]
    NK = [int(x) for x in os.environ.get("NK", "12").split(",")]
    NW = int(os.environ.get("NW", 8))
    TR3 = [int(x) for x in os.environ.get("TR3", "2,2,2,2,3,3,3,3,2,2").split(",")]
    assert NW >= 8 and NW + sum(TR3) == 32
    a("s_bfe_u32 s59, s2, 0x30003")
    a("s_lshr_b32 s4, s2, 7")
    a("s_lshl_b32 s4, s4, 3")
    a("s_add_u32 s59, s59, s4")
    a("s_lshr_b32 s4, s2, 3")
    a("s_xor_b32 s4, s4, s2")
    a("s_bitcmp1_b32 s4, 3")
    a("s_cbranch_scc1 Lp2")

    def common(c):
        attn4.ids(c)
        oproj.lanes(c, 24)
        qproj.lanes(c, 24)
    proj4.setup(a, gk, "s59")
    srd(a, S_FLG, P_WS, 0x40000, WS_FLG)
    tag_make(a, 0)
    for x in proj4.xitems(gk, 0) + proj4.witems(gk, 0):
        a(x)
    c = Col()
    proj4.read_bases(c, gk)
    common(c)
    proj4.out_base(c)
    gk.init(c, [proj4.XS0, 0])
    for x in weave_lines(c, proj4.xitems(gk, 1) + proj4.witems(gk, 1), 0.2, 1.0):
        a(x)
    tag_make(a, 1, 32)
    st(a)
    k0 = st.k
    gk.pro(a, 16, dma=proj4.xitems(gk, 2))
    a("s_mov_b32 s%d, 6" % gk.sCnt)
    gk.loop(a, 8)
    gk.half(a, 1, dma=gk.dma_items())
    if 'st2' in MFL:
        st(a)
    order, epi = proj4.pack('k', NK[0])
    rest = gk.bm(a, order, 18, 18, N=8, dma=gk.dma_items(), nxt=gv, epi=epi, defer=True)
    assert all(kind(x) == 'c' for x in rest), rest
    if 'st2' in MFL:
        st(a)
    order, held = proj4.v_order(NK[0])
    sts = [(proj4.trickle('k', k, k + 1), held[proj4.ORDER['k'][k]]) for k in range(NK[0], 32)]
    gv.bm(a, order, 20, 18, N=8, first=True, dma=gv.dma_items(), nxt=gv, st2=sts, carry=rest)
    a("s_add_u32 s%d, s%d, 0x4000" % (proj4.sSt, proj4.sSt))
    a("s_waitcnt lgkmcnt(0)")
    gv.half(a, 0, adv=True)
    st(a)
    a("s_mov_b32 s%d, 4" % gv.sCnt)
    gv.loop(a, 8)
    gv.iter(a, None, proj4.witems(gv, 0) + qproj.witems(g3, 0) + qproj.witems(g3, 1), after_bar=lambda: qproj.setup(a, g3))
    gv.bar(a, 8)
    gv.half(a, 1, dma=qproj.xitems(g3, 0))
    order, epi = proj4.pack('v', NW)
    gv.bm(a, order, 18, epi=epi, dma=qproj.xitems(g3, 1) + qproj.witems(g3, 2) + qproj.xitems(g3, 2), mid=lambda: tag_load(a, 22))
    qk = VmQ()
    for t, n in (('w0', 4), ('w1', 4), ('x0', 8), ('t', 1), ('st', NW), ('x1', 8), ('w2', 4), ('x2', 8)):
        qk.push(t, n)
    a("s_lshl_b32 s34, s%d, 4" % proj4.sN0)
    a("s_add_u32 s34, s34, s%d" % proj4.sM0)
    a("s_lshl_b32 s34, s34, 7")
    a("s_branch Lp3")
    a.label("Lp2")
    st.k = k0 - 1
    bfront.setup(a, b0, "s59")
    srd(a, S_FLG, P_WS, 0x40000, WS_FLG)
    a("s_cmp_ge_u32 s%d, 2" % S_WAVE)
    a("s_cbranch_scc1 Lp2_r1")
    for rh, g in enumerate((b0, b1)):
        if rh:
            a.label("Lp2_r1")
            st.k = k0 - 1
        nx = 8 if rh else 9
        for x in bfront.xitems(g, 0) + bfront.witems(g, 0):
            a(x)
        c = Col()
        bfront.read_bases(c)
        common(c)
        bfront.pre(c)
        g.init(c)
        PFB = int(os.environ.get("PFB", 1))
        if PFB:
            srd(c, 52, P_WUV, 4 * MB)
            c("s_and_b32 s4, s2, 7")
            c("s_lshl_b32 s4, s4, 4")
            c("s_add_u32 s4, s4, s59")
            c("s_lshl_b32 s4, s4, 2")
            c("s_add_u32 s4, s4, s%d" % S_WAVE)
            c("s_lshl_b32 s51, s4, 13")
            c("s_add_u32 s56, s51, 8192")
            g.pf = [y for i in range(PFB) for y in ("buffer_load_dwordx4 a[192:195], v2, s[52:55], s51 offen ; @dummy", "s_add_u32 s51, s51, 1024",
                                                    "s_cmp_eq_u32 s51, s56\ns_cselect_b32 s54, 0, s54")]
        for x in weave_lines(c, bfront.xitems(g, 1) + bfront.witems(g, 1), 0.2, 1.0):
            a(x)
        st(a)
        g.pro(a, nx + 6, dma=bfront.xitems(g, 2))
        a("s_mov_b32 s%d, 13" % g.sCnt)
        g.loop(a, nx)
        if 'st2' in MFL:
            st(a)
            st(a)
        g.iter(a, None, bfront.witems(g, 0), after_bar=lambda: qproj.setup(a, g3))
        g.bar(a, 0)
        a("s_mov_b32 s6, 0x%08x" % f32bits(bfront.CB))
        a("s_mov_b32 s7, s6")
        g.half(a, 1)
        order, epi = bfront.pack(g, rh)
        g.bm(a, order, 16, epi=epi, dma=qproj.witems(g3, 0) + qproj.witems(g3, 1) + qproj.xitems(g3, 0), mid=lambda: tag_load(a, 22))
        a("s_waitcnt lgkmcnt(0)")
        a("s_barrier")
        st(a)
        if not rh:
            a("s_branch Lp2_at")
    a.label("Lp2_at")
    c = Col()
    bfront.attend(c)
    for x in weave_lines(c, qproj.xitems(g3, 1) + qproj.witems(g3, 2) + qproj.xitems(g3, 2), 0.0, 0.7):
        a(x)
    qb = VmQ()
    for t, n in (('t', 1), ('w0', 4), ('w1', 4), ('x0', 8), ('x1', 8), ('w2', 4), ('x2', 8), ('st', 8)):
        qb.push(t, n)
    a("s_lshl_b32 s34, s%d, 4" % bfront.sRb)
    a("s_add_u32 s34, s34, s%d" % bfront.sHp)
    a("s_lshl_b32 s34, s34, 7")
    a("s_add_u32 s34, s34, %d" % F_OB)
    a("s_mov_b32 s%d, 0x70000000" % proj4.sSt)
    a.label("Lp3")
    st(a)
    qproj.restore(a)
    g3.init(a, [qproj.XS0, 0])
    need = lambda *t: min(qk.need(*t), qb.need(*t))

    def push(t, n):
        qk.push(t, n), qb.push(t, n)
    cum = [NW + sum(TR3[:k]) for k in range(len(TR3) + 1)]
    g3.pro(a, need('w0', 'x0'), dma=proj4.trickle('v', cum[0], cum[1]))
    push('st', TR3[0])
    last = len(TR3) + 1
    for s in range(1, last + 1):
        N = need('w%d' % s, 'x%d' % s, s, *(['st'] if s == last else []))
        g3.iter(a, N, g3.dma_items() + (proj4.trickle('v', cum[s], cum[s + 1]) if s < len(TR3) else []),
                after_bar=(lambda: (tag_get(a, 22, 12), signal(a, 22, ["s34"], 3))) if s == last else None)
        push(s + 2, 12)
        if s < len(TR3):
            push('st', TR3[s])
    if last < 12:
        a("s_mov_b32 s%d, %d" % (g3.sCnt, 12 - last))
        g3.loop(a, 12)
    else:
        g3.bar(a, 12)

    def ids():
        a("s_lshr_b32 s34, s%d, 1" % attn4.sHead)
        a("s_lshl_b32 s34, s34, 11")
        for x in flag_addr(3, 8):
            a(x)
    g3.iter(a, None, [flag_load(22, "s34", 3)] + g3.dma_items(), after_bar=ids)

    def go():
        flag_check(a, 22, "s34", 3)
        attn4.kv_setup(a)
        oproj.ids(a)
    it = attn4.kv_prologue_items(0)
    cut = [i for i, x in enumerate(it) if "m0" in x][1]
    g3.iter(a, 12, it[:cut], after_bar=go)
    g3.bar(a, 4)
    a("s_mov_b32 s6, 0x%08x" % f32bits(attn4.CST))
    a("s_mov_b32 s7, s6")
    g3.half(a, 1, dma=it[cut:])
    order, epi = qproj.epilogue()
    g3.bm(a, order, 16, epi=epi, bar=False)
    st(a)
    attn4.setup1(a)
    st(a)
    g6, g7 = oproj.make("p6", oproj.AB), oproj.make("p7", oproj.AA)

    class H:
        q0 = [t for t in (('K', 0), ('K', 1), ('V', 0)) for _ in range(4)]

        @staticmethod
        def after_d2():
            a("s_lshr_b32 s91, s%d, 1" % oproj.sRb)
            a("s_lshl_b32 s91, s91, 11")
            a("s_add_u32 s91, s91, %d" % F_OB)
            for x in flag_addr(14):
                a(x)

        @staticmethod
        def pre_e1():
            return [flag_load(12, "s91", 14)]

        @staticmethod
        def at_e1():
            flag_check(a, 12, "s91", 14)
            for j in range(4):
                a("v_accvgpr_read_b32 v%d, a%d" % (oproj.wv + j, oproj.aSave + j))
            for x in oproj.job_w(False) + oproj.job_x(False):
                a(x)

        @staticmethod
        def e1_items():
            return oproj.stage_items(g6, 0, 'wx')

        @staticmethod
        def e2_items():
            return oproj.stage_items(g6, 1, 'wx')
    attn4.attention(a, st, H)
    st(a)
    gh = oproj.make("ph", oproj.AA, True)
    q = VmQ()
    for s in range(2):
        q.push(s, 8)
    q.push('ctx', 8)
    oproj.read_bases(a, 4)
    g6.init(a, [3])
    g6.pro(a, q.need(0), dma=oproj.stage_items(g6, 2, 'wx') + oproj.stage_items(g6, 3, 'wx'))
    q.push(2, 8)
    q.push(3, 8)

    def sig_ctx():
        a("s_lshl_b32 s4, s%d, 7" % attn4.sHead)
        a("s_lshl_b32 s5, s%d, 12" % attn4.sPair)
        a("s_add_u32 s6, s4, %d" % F_CTX)
        a("s_add_u32 s7, s6, %d" % (15 << 12))
        a("s_add_u32 s6, s6, s5")
        a("s_sub_u32 s7, s7, s5")
        signal(a, 6, ["s6", "s7"])
        a("s_lshl_b32 s91, s%d, 12" % oproj.sRb)
        a("s_add_u32 s91, s91, %d" % F_CTX)
        for x in flag_addr(14, 32):
            a(x)
        oproj.xch_srd(a)
    VS = int(os.environ.get("VS", 6))
    for s in range(1, VS):
        N = q.need(1, 'ctx') if s == 1 else q.need(s)
        if s == 1:
            q.push('sig', 2)
        it = g6.dma_items() if s < 5 else (oproj.job_w(True) if s == 5 else []) + g7.group_items(g7.dma[0])
        q.push(s + 3, 8 if s < 5 else 4)
        if s == VS - 1:
            it = it + [flag_load(6, "s91", 14)]
            q.push('fl', 1)
        g6.iter(a, N, it, after_bar=sig_ctx if s == 1 else None)
    a("s_waitcnt vmcnt(%d)" % q.need(VS, 'fl'))
    a("v_cmp_ne_u64 vcc, s[%d:%d], v[6:7]" % (S_TAG, S_TAG + 1))
    a("v_cndmask_b32_e64 v8, 0, 1, vcc")
    a("v_lshlrev_b32 v9, 2, v0")
    a("ds_write_b32 v9, v8")
    a("v_lshlrev_b32 v9, 4, v1")
    a("s_waitcnt lgkmcnt(0)")
    a("s_barrier")
    a("ds_read_b128 v[160:163], v9")
    for x in oproj.job_w(True) if VS == 5 else []:
        a(x)
    a("s_waitcnt lgkmcnt(0)")
    a("v_or3_b32 v160, v160, v161, v162")
    a("v_or_b32 v160, v160, v163")
    a("v_cmp_ne_u32 vcc, 0, v160")
    if 'only7' not in MFL:
        a("s_cbranch_vccnz Lp6_late ; @late")
    k0 = st.k
    q0 = list(q.q)
    for late in (False, True):
        q.q = list(q0)
        if late:
            a.label("Lp6_late")
            st.k = k0
        else:
            for x in oproj.job_x(True):
                a(x)
        for s in range(VS, 8):
            if s > VS:
                g6.bar(a, q.need(s))
            it = g7.group_items(g7.dma[0]) if late else g7.dma_items()
            if s == VS and not late:
                for t in range(VS + 2, 7, -1):
                    it = oproj.stage_items(g7, t, 'x') + it
                for t in range(8, VS + 3):
                    q.push(t, 4)
            q.push(s + 3, 4 if late else 8)
            if late and s == 7:
                it += [flag_load(6, "s91", 14)]
            d0, d1 = g6.split(it)
            g6.half(a, 1, dma=d0)
            a("s_waitcnt lgkmcnt(0)")
            g6.half(a, 0, dma=d1, adv=True)
        if late:
            a("s_waitcnt vmcnt(0) lgkmcnt(0)")
            a("s_barrier")
            st(a)
            flag_check(a, 6, "s91", 14)
            st(a)
            for x in oproj.job_x(True):
                a(x)
            it = []
            for s in range(8, 12):
                it += oproj.stage_items(g7, s, 'x' if s < 11 else 'wx')
            g6.half(a, 1, rd=False, dma=it)
            for x in oproj.send_items(oproj.AB, False, 6):
                a(x)
            a("s_waitcnt vmcnt(24)")
            a("s_barrier")
            for x in g7.reads(0):
                a(x)
            a("s_waitcnt lgkmcnt(0)")
            g7.half(a, 0, first=True, adv=True)
        else:
            g6.bar(a, q.need(8))
            st(a)
            st(a)
            g6.half(a, 1, dma=g7.dma_items())
            a("s_waitcnt lgkmcnt(0)")
            it = oproj.send_items(oproj.AB, False, 6)
            nsc = [i for i, x in enumerate(it) if kind(x) == 'd'][0]
            for x in it[:nsc]:
                a(x)
            g7.half(a, 0, first=True, adv=True, extra=lambda sg: place_dma(sg, it[nsc:], 5, 14))
            a("s_branch Lp7")
    a.label("Lp7")
    st(a)
    DL = oproj.DL
    F = 40 - DL
    a("s_mov_b32 s%d, %d" % (g7.sCnt, F - 4 - 9))
    g7.loop(a, 16)
    q = VmQ()
    for s in range(F - 4, F - 1):
        q.push(s, 8)
    E = F + 2 * DL
    finB = []
    for s in range(F - 4, E):
        tags, it, ab = [s], [], None
        if s == F - 4:
            def ab():
                oproj.flag_pos(a, False, True, 6)
                signal(a, 6, ["s6"])
                oproj.flag_pos(a, False, False, 90)
                oproj.out_setup(a)
        if s == F - 3:
            it += [flag_load(6, "s90")]
        if s == F - 2:
            tags.append('fl')
            ab = lambda: flag_check(a, 6, "s90")
            it += oproj.recv_items(False, 6)
        if s == F:
            tags.append('rcv')

            def ab():
                oproj.out_off(a, False, 4)
                oproj.flag_pos(a, True, True, 89)
                oproj.flag_pos(a, True, False, 90)
            finB = oproj.finish(oproj.AB, False, 4)
        if s == F + 3:
            tags.append('snd')
            ab = lambda: signal(a, 6, ["s89"])
        if s == E - 3:
            it += [flag_load(6, "s90")]
        if s == E - 2:
            tags.append('fl')
            ab = lambda: flag_check(a, 6, "s90")
            it += oproj.recv_items(True, 6)
        N = q.need(*tags)
        if s == F - 4 or s == F + 3:
            q.push('sig', 1)
        for x in it:
            if kind(x) == 'd':
                q.push('fl' if "dwordx2" in x else 'rcv', 1)
        if s + 3 < F:
            it += g7.dma_items()
            q.push(s + 3, 8)
        elif s + 3 < E:
            if s + 3 == F:
                it += oproj.to_half()
            if s + 3 == F + DL:
                it += oproj.to_partner()
            it += gh.dma_items()
            q.push(s + 3, 6)
        g1, g0 = (g7 if s - 1 < F else gh), (g7 if s < F else gh)
        if s > F - 4:
            g7.bar(a, N)
        else:
            assert N >= 16
        if ab:
            ab()
        d0, d1 = g7.split(it)
        if s == F:
            snd = oproj.send_items(oproj.AA, True, 6)
            nsc = [i for i, x in enumerate(snd) if kind(x) == 'd'][0]
            d0, d1 = it + snd[:nsc], snd[nsc:nsc + 4]
            q.push('snd', 4)
        if s == F + 1:
            d0, d1 = snd[nsc + 4:], it
            q.q = q.q[:-6] + ['snd'] * 4 + q.q[-6:]

        L = finB.pop(0) if finB and s > F else []

        def finb(sg):
            g = 0
            for x in L[:-1]:
                g = sg.place(x, g, lo=g)
        g1.half(a, 1, dma=d0, rdg=g0, extra=finb)
        a("s_waitcnt lgkmcnt(0)")
        g0.half(a, 0, dma=d1, adv=s < E - 1, extra=lambda sg: sg.end[sg.n - 1].extend(L[-1:]))
        q.push('ob', len(L[-1:]))
    oproj.out_off(a, True, 4)
    gh.tail(a, bar=False)
    st(a)
    a("s_waitcnt vmcnt(0)")
    st(a)
    for L in zip(*oproj.finish(oproj.AA, True, 4)):
        for x in L:
            a(x)
    st(a)
    if stamp:
        a("s_waitcnt vmcnt(0)")
    st(a)
    st.flush(a)
    return fin(a)


def fin(a):
    a.label("Lend")
    a("s_endpgm")
    t = a.finish()
    if 'nobar' in MFL:
        t = t.replace("s_barrier", "s_nop 0")
    if 'nox' in MFL:
        t = "\n".join(l for l in t.split("\n") if not (l.rstrip().endswith(" lds") and "s[8:11]" in l))
    if 'now' in MFL:
        t = "\n".join(l for l in t.split("\n") if not (l.rstrip().endswith(" lds") and "s[12:15]" in l))
    if 'nodma' in MFL:
        t = "\n".join(l for l in t.split("\n") if not l.rstrip().endswith(" lds"))
    return t.replace("CODE_KB", os.environ.get("CODE_KB", "70"))
```

```python
from lib import *
from gemm4 import *
import proj4, bfront, attn4, oproj, qproj

MFL = set(os.environ.get("MFLAGS", "").split(","))


def gen(stamp=False):
    a = Asm()
    st = Stamps(stamp, 0)
    a("s_cmp_ge_u32 s2, 256")
    a("s_cbranch_scc1 Lend")
    a("s_load_dwordx16 s[64:79], s[0:1], 0")
    a("s_load_dwordx8 s[80:87], s[0:1], 64")
    a("v_lshrrev_b32 v2, 6, v0")
    a("v_and_b32 v1, 63, v0")
    a("v_readfirstlane_b32 s%d, v2" % S_WAVE)
    a("v_lshlrev_b32 v2, 4, v1")
    if 'ipf' in MFL:
        a("s_getpc_b64 s[6:7]")
        a("s_lshr_b32 s4, s2, 3")
        a("s_lshl_b32 s4, s4, 2")
        a("s_add_u32 s4, s4, s%d" % S_WAVE)
        a("s_min_u32 s4, s4, CODE_KB")
        a("s_lshl_b32 s4, s4, 10")
        a("v_add_u32 v3, s4, v2")
        a("global_load_dwordx4 v[4:7], v3, s[6:7]")
    st(a)
    gk, gv = proj4.make('wx'), proj4.make('xw')
    b0, b1 = bfront.make(0), bfront.make(1)
    g3 = qproj.make()
    if 'nost' in MFL:
        t0 = proj4.trickle
        proj4.trickle = lambda k, a, b: [x.replace("s%d," % proj4.sSt, "0x70000000,").replace("s_add_u32 s60, 0x70000000, ", "s_mov_b32 s60, 0x70000000 ; ") for x in t0(k, a, b)]
    NK = [int(x) for x in os.environ.get("NK", "12").split(",")]
    NW = int(os.environ.get("NW", 8))
    TR3 = [int(x) for x in os.environ.get("TR3", "2,2,2,2,3,3,3,3,2,2").split(",")]
    assert NW >= 8 and NW + sum(TR3) == 32
    a("s_bfe_u32 s59, s2, 0x30003")
    a("s_lshr_b32 s4, s2, 7")
    a("s_lshl_b32 s4, s4, 3")
    a("s_add_u32 s59, s59, s4")
    a("s_lshr_b32 s4, s2, 3")
    a("s_xor_b32 s4, s4, s2")
    a("s_bitcmp1_b32 s4, 3")
    a("s_cbranch_scc1 Lp2")

    def common(c):
        attn4.ids(c)
        oproj.lanes(c, 24)
        qproj.lanes(c, 24)
    proj4.setup(a, gk, "s59")
    srd(a, S_FLG, P_WS, 0x40000, WS_FLG)
    tag_make(a, 0)
    for x in proj4.xitems(gk, 0) + proj4.witems(gk, 0):
        a(x)
    c = Col()
    proj4.read_bases(c, gk)
    common(c)
    proj4.out_base(c)
    gk.init(c, [proj4.XS0, 0])
    for x in weave_lines(c, proj4.xitems(gk, 1) + proj4.witems(gk, 1), 0.2, 1.0):
        a(x)
    tag_make(a, 1, 32)
    st(a)
    k0 = st.k
    gk.pro(a, 16, dma=proj4.xitems(gk, 2))
    a("s_mov_b32 s%d, 6" % gk.sCnt)
    gk.loop(a, 8)
    gk.half(a, 1, dma=gk.dma_items())
    if 'st2' in MFL:
        st(a)
    order, epi = proj4.pack('k', NK[0])
    rest = gk.bm(a, order, 18, 18, N=8, dma=gk.dma_items(), nxt=gv, epi=epi, defer=True)
    assert all(kind(x) == 'c' for x in rest), rest
    if 'st2' in MFL:
        st(a)
    order, held = proj4.v_order(NK[0])
    sts = [(proj4.trickle('k', k, k + 1), held[proj4.ORDER['k'][k]]) for k in range(NK[0], 32)]
    gv.bm(a, order, 20, 18, N=8, first=True, dma=gv.dma_items(), nxt=gv, st2=sts, carry=rest)
    a("s_add_u32 s%d, s%d, 0x4000" % (proj4.sSt, proj4.sSt))
    a("s_waitcnt lgkmcnt(0)")
    gv.half(a, 0, adv=True)
    st(a)
    a("s_mov_b32 s%d, 4" % gv.sCnt)
    gv.loop(a, 8)
    gv.iter(a, None, proj4.witems(gv, 0) + qproj.witems(g3, 0) + qproj.witems(g3, 1), after_bar=lambda: qproj.setup(a, g3))
    gv.bar(a, 8)
    gv.half(a, 1, dma=qproj.xitems(g3, 0))
    order, epi = proj4.pack('v', NW)
    gv.bm(a, order, 18, epi=epi, dma=qproj.xitems(g3, 1) + qproj.witems(g3, 2) + qproj.xitems(g3, 2), mid=lambda: tag_load(a, 22))
    qk = VmQ()
    for t, n in (('w0', 4), ('w1', 4), ('x0', 8), ('t', 1), ('st', NW), ('x1', 8), ('w2', 4), ('x2', 8)):
        qk.push(t, n)
    a("s_lshl_b32 s34, s%d, 4" % proj4.sN0)
    a("s_add_u32 s34, s34, s%d" % proj4.sM0)
    a("s_lshl_b32 s34, s34, 7")
    a("s_branch Lp3")
    a.label("Lp2")
    st.k = k0 - 1
    bfront.setup(a, b0, "s59")
    srd(a, S_FLG, P_WS, 0x40000, WS_FLG)
    a("s_cmp_ge_u32 s%d, 2" % S_WAVE)
    a("s_cbranch_scc1 Lp2_r1")
    for rh, g in enumerate((b0, b1)):
        if rh:
            a.label("Lp2_r1")
            st.k = k0 - 1
        nx = 8 if rh else 9
        PFB, PF0 = int(os.environ.get("PFB", 2)), os.environ.get("PF0", "")
        a("s_and_b32 s4, s2, 7")
        a("s_lshl_b32 s4, s4, 4")
        a("s_add_u32 s4, s4, s59")
        a("s_lshl_b32 s4, s4, 2")
        a("s_add_u32 s4, s4, s%d" % S_WAVE)
        a("s_lshl_b32 s51, s4, 13")

        def pf0():
            a("s_lshr_b32 s56, s51, 1")
            srd(a, 52, P_CKV, 2 * MB)
            for i in range(4):
                a("buffer_load_dwordx4 a[192:195], v2, s[52:55], s56 offen offset:%d ; @dummy" % (1024 * i))
            a("s_add_u32 s56, s51, 4096")
            srd(a, 52, P_WUK, 4 * MB)
            for i in range(8):
                a("buffer_load_dwordx4 a[192:195], v2, s[52:55], %s offen offset:%d ; @dummy" % ("s56" if i >= 4 else "s51", 1024 * (i & 3)))
        if PF0 == "a":
            pf0()
        for x in bfront.xitems(g, 0) + bfront.witems(g, 0):
            a(x)
        if PF0 == "b":
            pf0()
        c = Col()
        bfront.read_bases(c)
        common(c)
        bfront.pre(c)
        g.init(c)
        if PFB:
            srd(c, 52, P_WUV, 4 * MB)
            c("s_add_u32 s56, s51, 8192")
            g.pf = [y for i in range(PFB) for y in ("buffer_load_dwordx4 a[192:195], v2, s[52:55], s51 offen ; @dummy", "s_add_u32 s51, s51, 1024",
                                                    "s_cmp_eq_u32 s51, s56\ns_cselect_b32 s54, 0, s54")]
        for x in weave_lines(c, bfront.xitems(g, 1) + bfront.witems(g, 1), 0.2, 1.0):
            a(x)
        st(a)
        g.pro(a, nx + 6 + (12 if PF0 == 'b' else 0), dma=bfront.xitems(g, 2))
        a("s_mov_b32 s%d, 13" % g.sCnt)
        g.loop(a, nx)
        if 'st2' in MFL:
            st(a)
            st(a)
        g.iter(a, None, bfront.witems(g, 0), after_bar=lambda: qproj.setup(a, g3))
        g.bar(a, 0)
        a("s_mov_b32 s6, 0x%08x" % f32bits(bfront.CB))
        a("s_mov_b32 s7, s6")
        g.half(a, 1)
        order, epi = bfront.pack(g, rh)
        g.bm(a, order, 16, epi=epi, dma=qproj.witems(g3, 0) + qproj.witems(g3, 1) + qproj.xitems(g3, 0), mid=lambda: tag_load(a, 22))
        a("s_waitcnt lgkmcnt(0)")
        a("s_barrier")
        st(a)
        if not rh:
            a("s_branch Lp2_at")
    a.label("Lp2_at")
    c = Col()
    bfront.attend(c)
    for x in weave_lines(c, qproj.xitems(g3, 1) + qproj.witems(g3, 2) + qproj.xitems(g3, 2), 0.0, 0.7):
        a(x)
    qb = VmQ()
    for t, n in (('t', 1), ('w0', 4), ('w1', 4), ('x0', 8), ('x1', 8), ('w2', 4), ('x2', 8), ('st', 8)):
        qb.push(t, n)
    a("s_lshl_b32 s34, s%d, 4" % bfront.sRb)
    a("s_add_u32 s34, s34, s%d" % bfront.sHp)
    a("s_lshl_b32 s34, s34, 7")
    a("s_add_u32 s34, s34, %d" % F_OB)
    a("s_mov_b32 s%d, 0x70000000" % proj4.sSt)
    a.label("Lp3")
    st(a)
    qproj.restore(a)
    g3.init(a, [qproj.XS0, 0])
    need = lambda *t: min(qk.need(*t), qb.need(*t))

    def push(t, n):
        qk.push(t, n), qb.push(t, n)
    cum = [NW + sum(TR3[:k]) for k in range(len(TR3) + 1)]
    g3.pro(a, need('w0', 'x0'), dma=proj4.trickle('v', cum[0], cum[1]))
    push('st', TR3[0])
    last = len(TR3) + 1
    for s in range(1, last + 1):
        N = need('w%d' % s, 'x%d' % s, s, *(['st'] if s == last else []))
        g3.iter(a, N, g3.dma_items() + (proj4.trickle('v', cum[s], cum[s + 1]) if s < len(TR3) else []),
                after_bar=(lambda: (tag_get(a, 22, 12), signal(a, 22, ["s34"], 3))) if s == last else None)
        push(s + 2, 12)
        if s < len(TR3):
            push('st', TR3[s])
    if last < 12:
        a("s_mov_b32 s%d, %d" % (g3.sCnt, 12 - last))
        g3.loop(a, 12)
    else:
        g3.bar(a, 12)

    def ids():
        a("s_lshr_b32 s34, s%d, 1" % attn4.sHead)
        a("s_lshl_b32 s34, s34, 11")
        for x in flag_addr(3, 8):
            a(x)
    g3.iter(a, None, [flag_load(22, "s34", 3)] + g3.dma_items(), after_bar=ids)

    def go():
        flag_check(a, 22, "s34", 3)
        attn4.kv_setup(a)
        oproj.ids(a)
    it = attn4.kv_prologue_items(0)
    cut = [i for i, x in enumerate(it) if "m0" in x][1]
    g3.iter(a, 12, it[:cut], after_bar=go)
    g3.bar(a, 4)
    a("s_mov_b32 s6, 0x%08x" % f32bits(attn4.CST))
    a("s_mov_b32 s7, s6")
    g3.half(a, 1, dma=it[cut:])
    order, epi = qproj.epilogue()
    g3.bm(a, order, 16, epi=epi, bar=False)
    st(a)
    attn4.setup1(a)
    st(a)
    g6, g7 = oproj.make("p6", oproj.AB), oproj.make("p7", oproj.AA)

    class H:
        q0 = [t for t in (('K', 0), ('K', 1), ('V', 0)) for _ in range(4)]

        @staticmethod
        def after_d2():
            a("s_lshr_b32 s91, s%d, 1" % oproj.sRb)
            a("s_lshl_b32 s91, s91, 11")
            a("s_add_u32 s91, s91, %d" % F_OB)
            for x in flag_addr(14):
                a(x)

        @staticmethod
        def pre_e1():
            return [flag_load(12, "s91", 14)]

        @staticmethod
        def at_e1():
            flag_check(a, 12, "s91", 14)
            for j in range(4):
                a("v_accvgpr_read_b32 v%d, a%d" % (oproj.wv + j, oproj.aSave + j))
            for x in oproj.job_w(False) + oproj.job_x(False):
                a(x)

        @staticmethod
        def e1_items():
            return oproj.stage_items(g6, 0, 'wx')

        @staticmethod
        def e2_items():
            return oproj.stage_items(g6, 1, 'wx')
    attn4.attention(a, st, H)
    st(a)
    gh = oproj.make("ph", oproj.AA, True)
    q = VmQ()
    for s in range(2):
        q.push(s, 8)
    q.push('ctx', 8)
    oproj.read_bases(a, 4)
    g6.init(a, [3])
    g6.pro(a, q.need(0), dma=oproj.stage_items(g6, 2, 'wx') + oproj.stage_items(g6, 3, 'wx'))
    q.push(2, 8)
    q.push(3, 8)

    def sig_ctx():
        a("s_lshl_b32 s4, s%d, 7" % attn4.sHead)
        a("s_lshl_b32 s5, s%d, 12" % attn4.sPair)
        a("s_add_u32 s6, s4, %d" % F_CTX)
        a("s_add_u32 s7, s6, %d" % (15 << 12))
        a("s_add_u32 s6, s6, s5")
        a("s_sub_u32 s7, s7, s5")
        signal(a, 6, ["s6", "s7"])
        a("s_lshl_b32 s91, s%d, 12" % oproj.sRb)
        a("s_add_u32 s91, s91, %d" % F_CTX)
        for x in flag_addr(14, 32):
            a(x)
        oproj.xch_srd(a)
    VS = int(os.environ.get("VS", 6))
    for s in range(1, VS):
        N = q.need(1, 'ctx') if s == 1 else q.need(s)
        if s == 1:
            q.push('sig', 2)
        it = g6.dma_items() if s < 5 else (oproj.job_w(True) if s == 5 else []) + g7.group_items(g7.dma[0])
        q.push(s + 3, 8 if s < 5 else 4)
        if s == VS - 1:
            it = it + [flag_load(6, "s91", 14)]
            q.push('fl', 1)
        g6.iter(a, N, it, after_bar=sig_ctx if s == 1 else None)
    a("s_waitcnt vmcnt(%d)" % q.need(VS, 'fl'))
    a("v_cmp_ne_u64 vcc, s[%d:%d], v[6:7]" % (S_TAG, S_TAG + 1))
    a("v_cndmask_b32_e64 v8, 0, 1, vcc")
    a("v_lshlrev_b32 v9, 2, v0")
    a("ds_write_b32 v9, v8")
    a("v_lshlrev_b32 v9, 4, v1")
    a("s_waitcnt lgkmcnt(0)")
    a("s_barrier")
    a("ds_read_b128 v[160:163], v9")
    for x in oproj.job_w(True) if VS == 5 else []:
        a(x)
    a("s_waitcnt lgkmcnt(0)")
    a("v_or3_b32 v160, v160, v161, v162")
    a("v_or_b32 v160, v160, v163")
    a("v_cmp_ne_u32 vcc, 0, v160")
    if 'only7' not in MFL:
        a("s_cbranch_vccnz Lp6_late ; @late")
    k0 = st.k
    q0 = list(q.q)
    for late in (False, True):
        q.q = list(q0)
        if late:
            a.label("Lp6_late")
            st.k = k0
        else:
            for x in oproj.job_x(True):
                a(x)
        for s in range(VS, 8):
            if s > VS:
                g6.bar(a, q.need(s))
            it = g7.group_items(g7.dma[0]) if late else g7.dma_items()
            if s == VS and not late:
                for t in range(VS + 2, 7, -1):
                    it = oproj.stage_items(g7, t, 'x') + it
                for t in range(8, VS + 3):
                    q.push(t, 4)
            q.push(s + 3, 4 if late else 8)
            if late and s == 7:
                it += [flag_load(6, "s91", 14)]
            d0, d1 = g6.split(it)
            g6.half(a, 1, dma=d0)
            a("s_waitcnt lgkmcnt(0)")
            g6.half(a, 0, dma=d1, adv=True)
        if late:
            a("s_waitcnt vmcnt(0) lgkmcnt(0)")
            a("s_barrier")
            st(a)
            flag_check(a, 6, "s91", 14)
            st(a)
            for x in oproj.job_x(True):
                a(x)
            it = []
            for s in range(8, 12):
                it += oproj.stage_items(g7, s, 'x' if s < 11 else 'wx')
            g6.half(a, 1, rd=False, dma=it)
            for x in oproj.send_items(oproj.AB, False, 6):
                a(x)
            a("s_waitcnt vmcnt(24)")
            a("s_barrier")
            for x in g7.reads(0):
                a(x)
            a("s_waitcnt lgkmcnt(0)")
            g7.half(a, 0, first=True, adv=True)
        else:
            g6.bar(a, q.need(8))
            st(a)
            st(a)
            g6.half(a, 1, dma=g7.dma_items())
            a("s_waitcnt lgkmcnt(0)")
            it = oproj.send_items(oproj.AB, False, 6)
            nsc = [i for i, x in enumerate(it) if kind(x) == 'd'][0]
            for x in it[:nsc]:
                a(x)
            g7.half(a, 0, first=True, adv=True, extra=lambda sg: place_dma(sg, it[nsc:], 5, 14))
            a("s_branch Lp7")
    a.label("Lp7")
    st(a)
    DL = oproj.DL
    F = 40 - DL
    a("s_mov_b32 s%d, %d" % (g7.sCnt, F - 4 - 9))
    g7.loop(a, 16)
    q = VmQ()
    for s in range(F - 4, F - 1):
        q.push(s, 8)
    E = F + 2 * DL
    finB = []
    for s in range(F - 4, E):
        tags, it, ab = [s], [], None
        if s == F - 4:
            def ab():
                oproj.flag_pos(a, False, True, 6)
                signal(a, 6, ["s6"])
                oproj.flag_pos(a, False, False, 90)
                oproj.out_setup(a)
        if s == F - 3:
            it += [flag_load(6, "s90")]
        if s == F - 2:
            tags.append('fl')
            ab = lambda: flag_check(a, 6, "s90")
            it += oproj.recv_items(False, 6)
        if s == F:
            tags.append('rcv')

            def ab():
                oproj.out_off(a, False, 4)
                oproj.flag_pos(a, True, True, 89)
                oproj.flag_pos(a, True, False, 90)
            finB = oproj.finish(oproj.AB, False, 4)
        if s == F + 3:
            tags.append('snd')
            ab = lambda: signal(a, 6, ["s89"])
        if s == E - 3:
            it += [flag_load(6, "s90")]
        if s == E - 2:
            tags.append('fl')
            ab = lambda: flag_check(a, 6, "s90")
            it += oproj.recv_items(True, 6)
        N = q.need(*tags)
        if s == F - 4 or s == F + 3:
            q.push('sig', 1)
        for x in it:
            if kind(x) == 'd':
                q.push('fl' if "dwordx2" in x else 'rcv', 1)
        if s + 3 < F:
            it += g7.dma_items()
            q.push(s + 3, 8)
        elif s + 3 < E:
            if s + 3 == F:
                it += oproj.to_half()
            if s + 3 == F + DL:
                it += oproj.to_partner()
            it += gh.dma_items()
            q.push(s + 3, 6)
        g1, g0 = (g7 if s - 1 < F else gh), (g7 if s < F else gh)
        if s > F - 4:
            g7.bar(a, N)
        else:
            assert N >= 16
        if ab:
            ab()
        d0, d1 = g7.split(it)
        if s == F:
            snd = oproj.send_items(oproj.AA, True, 6)
            nsc = [i for i, x in enumerate(snd) if kind(x) == 'd'][0]
            d0, d1 = it + snd[:nsc], snd[nsc:nsc + 4]
            q.push('snd', 4)
        if s == F + 1:
            d0, d1 = snd[nsc + 4:], it
            q.q = q.q[:-6] + ['snd'] * 4 + q.q[-6:]

        L = finB.pop(0) if finB and s > F else []

        def finb(sg):
            g = 0
            for x in L[:-1]:
                g = sg.place(x, g, lo=g)
        g1.half(a, 1, dma=d0, rdg=g0, extra=finb)
        a("s_waitcnt lgkmcnt(0)")
        g0.half(a, 0, dma=d1, adv=s < E - 1, extra=lambda sg: sg.end[sg.n - 1].extend(L[-1:]))
        q.push('ob', len(L[-1:]))
    oproj.out_off(a, True, 4)
    gh.tail(a, bar=False)
    st(a)
    a("s_waitcnt vmcnt(0)")
    st(a)
    for L in zip(*oproj.finish(oproj.AA, True, 4)):
        for x in L:
            a(x)
    st(a)
    if stamp:
        a("s_waitcnt vmcnt(0)")
    st(a)
    st.flush(a)
    return fin(a)


def fin(a):
    a.label("Lend")
    a("s_endpgm")
    t = a.finish()
    if 'nobar' in MFL:
        t = t.replace("s_barrier", "s_nop 0")
    if 'nox' in MFL:
        t = "\n".join(l for l in t.split("\n") if not (l.rstrip().endswith(" lds") and "s[8:11]" in l))
    if 'now' in MFL:
        t = "\n".join(l for l in t.split("\n") if not (l.rstrip().endswith(" lds") and "s[12:15]" in l))
    if 'nodma' in MFL:
        t = "\n".join(l for l in t.split("\n") if not l.rstrip().endswith(" lds"))
    return t.replace("CODE_KB", os.environ.get("CODE_KB", "70"))
```

```python
from lib import *
from gemm4 import *

FL = set(os.environ.get("AFLAGS", "").split(","))
THR = float(os.environ.get("LTHR", 2.0 ** 64))
AH = int(os.environ.get("AH", 11))
EB = int(os.environ.get("EB", 2))
WG_ = int(os.environ.get("WGRP", 8))

vLane, vL16, vK, vV, vNEG = 1, 2, 3, 4, 5
vT = 6
vNM = 16
vP = 32
vS = 64
vO = 128
aF = 0
aQ = 128
aL = 192
aOne = 208
sHead, sPair = 24, 25
sKV = 20
sCtx = 16
sKm, sVm, sKo, sVo = 26, 27, 28, 29
sMa, sMb, sCnt, sFail = 30, 31, 88, 89
sMask = 32
sT0, sT1 = 4, 5
CST = (128 ** -0.5) * math.log2(math.e)


def Oreg(g, db):
    return ('v', vO + 4 * (8 * g + db))


def Qreg(g, ds):
    return ('a', aQ + 4 * (4 * g + ds))


def ids(a):
    a("s_and_b32 s%d, s2, 7" % sHead)
    a("s_lshr_b32 s4, s2, 6")
    a("s_lshl_b32 s4, s4, 3")
    a("s_add_u32 s%d, s%d, s4" % (sHead, sHead))
    a("s_lshr_b32 s4, s2, 3")
    a("s_and_b32 s%d, s4, 6" % sPair)
    a("s_xor_b32 s4, s4, s2")
    a("s_bfe_u32 s4, s4, 0x10003")
    a("s_add_u32 s%d, s%d, s4" % (sPair, sPair))


def long_blk(a, d):
    a("s_and_b32 s%d, s%d, 1" % (d, sPair))
    a("s_lshl_b32 s%d, s%d, 1" % (d, d))
    a("s_add_u32 s%d, s%d, 14" % (d, d))
    a("s_sub_u32 s%d, s%d, s%d" % (d, d, sPair))


def kv_dma(which):
    m, o = (sKm, sKo) if which == 'K' else (sVm, sVo)
    return ["s_mov_b32 m0, s%d" % m] + \
           ["buffer_load_dwordx4 v%d, s[%d:%d], s%d offen offset:%d%s lds" % (vL16, sKV, sKV + 3, o, 1024 * j, SC1L) for j in range(4)]


def gray_mask(t):
    return 0x4000 if t % 2 == 0 else 0x8000


def kv_setup(a):
    a("s_lshl_b32 s4, s%d, 20" % sHead)
    long_blk(a, 5)
    a("s_add_u32 s5, s5, 1")
    a("s_lshl_b32 s5, s5, 16")
    srd(a, sKV, P_WS, "s5", WS_KV, 4)
    a("s_lshl_b32 s%d, s%d, 12" % (sKo, S_WAVE))
    a("s_add_u32 s%d, s%d, 0xc000" % (sKm, sKo))
    a("s_add_u32 s%d, s%d, 0x10000" % (sVm, sKo))
    a("s_add_u32 s%d, s%d, 0x4000" % (sVo, sKo))


NPF = 0 if 'nopf' in FL else 10


def pf_setup(a):
    a("s_lshl_b32 s4, s2, 2")
    a("s_add_u32 s4, s4, s%d" % S_WAVE)
    a("s_lshl_b32 s6, s4, 13")
    a("s_lshl_b32 s7, s4, 11")
    srd(a, 8, P_WO, 8 * MB)
    srd(a, 12, P_BWO, 2 * MB)


def pf_items():
    L = []
    for i in range(8):
        if i == 4:
            L.append("s_add_u32 s6, s6, 4096")
        L.append("buffer_load_dwordx4 a[64:67], v%d, s[8:11], s6 offen offset:%d ; @dummy" % (vL16, (i % 4) * 1024))
    for i in range(2):
        L.append("buffer_load_dwordx4 a[64:67], v%d, s[12:15], s7 offen offset:%d ; @dummy" % (vL16, i * 1024))
    return L if NPF else []


def kv_prologue_items(part=None):
    L = []
    tk = tv = 0
    for i, w in enumerate("KKVKVKV"):
        if i == 3 and part is not None:
            if part == 0:
                return L
            L = []
        L += kv_dma(w)
        if w == 'K':
            L += ["s_xor_b32 s%d, s%d, 0x%x" % (sKm, sKm, gray_mask(tk)), "s_add_u32 s%d, s%d, 0x8000" % (sKo, sKo)]
            tk += 1
        else:
            L += ["s_xor_b32 s%d, s%d, 0x%x" % (sVm, sVm, gray_mask(tv)), "s_add_u32 s%d, s%d, 0x8000" % (sVo, sVo)]
            tv += 1
    return L


def qk_frags(kindq, half, sb):
    F = []
    if kindq is None:
        return F
    dbl = kindq[0] == 'D'
    gs = [0, 1, 2, 3] if dbl else [2, 3]
    if kindq.endswith("'"):
        gs = gs[1:]
    c0 = kindq.endswith("0")
    for jb in range(2 if dbl else 4):
        for ds in range(4):
            ms = []
            for g in gs:
                blk = (2 * g + jb) if dbl else (2 * (2 * (jb >> 1) + g - 2) + (jb & 1))
                ms.append((('v', sb + 4 * blk), Qreg(g, ds), ("0" if c0 else ('v', vNM + 4 * g)) if ds == 0 else None))
            F.append(('K', ((2 * half + jb) if dbl else jb) * 4096 + ds * 1024, ms))
    return F


def pv_frags(kindp, half, pb):
    F = []
    if kindp is None:
        return F, []
    dbl = kindp[0] == 'D'
    gs = [0, 1, 2, 3] if dbl else [2, 3]
    if kindp.endswith("'"):
        gs = gs[1:]
    sums = []
    for kc in range(1 if dbl else 2):
        for g in gs:
            pi = g if dbl else 2 * kc + g - 2
            sums.append(mfma(('a', aL + 4 * g), ('a', aOne), ('v', pb + 4 * pi)))
        for db in range(8):
            ms = [(Oreg(g, db), ('v', pb + 4 * (g if dbl else 2 * kc + g - 2)), None) for g in gs]
            F.append(('V', (half if dbl else kc) * 8192 + db * 1024, ms))
    return F, sums


def sm_items(sm, sb, pb):
    out = []
    if sm is None:
        return out
    for i in range(4):
        masks = []
        if sm != 'p':
            if sm[0] == 'D':
                gq, jbs = i, [2 * sm[1], 2 * sm[1] + 1]
                lvl = sm[1] >> 1
                if i >= 2:
                    gq = 99
            else:
                gq, jbs = i & 1, [4 * sm[1] + 2 * (i >> 1), 4 * sm[1] + 2 * (i >> 1) + 1]
                lvl = sm[1]
            if lvl > gq:
                continue
            if lvl == gq:
                for e, j16 in enumerate(jbs):
                    for r in range(4):
                        x = sb + 8 * i + 4 * e + r
                        m = sMask + 2 * (4 * (j16 & 3) + r)
                        masks.append((x, "v_cndmask_b32 v%d, v%d, v%d, s[%d:%d]" % (x, x, vNEG, m, m + 1)))
        exps = ["v_exp_f32 v%d, v%d" % (sb + 8 * i + e, sb + 8 * i + e) for e in range(8)]
        cvts = ["v_cvt_pk_bf16_f32 v%d, v%d, v%d" % (pb + 4 * i + e, sb + 8 * i + 2 * e, sb + 8 * i + 2 * e + 1) for e in range(4)]
        out.append((dict(masks), exps, cvts))
    return out


class Rnd:
    def __init__(self, par, qk, sm, pv, bar=False, issK=None, issV=None, togK=None, togV=None, togVpre=None):
        self.par, self.qk, self.sm, self.pv, self.bar = par, qk, sm, pv, bar
        self.issK, self.issV, self.togK, self.togV, self.togVpre = issK, issV, togK, togV, togVpre
        self.vm = None
        self.xdma = []
        self.xq = []
        self.after_bar = None
        self.first = False

    def frags(self):
        par = self.par
        Fq = qk_frags(self.qk, par ^ 1, vS + 32 * (par ^ 1))
        Fp, sums = pv_frags(self.pv, par ^ 1, vP + 16 * (par ^ 1))
        return Fq, Fp, sums


def fread(ring, off, slot, tag):
    return "ds_read_b128 %s, v%d offset:%d ; @%s" % (a4(aF + 4 * (slot % 16)), vK if ring == 'K' else vV, off, tag)


def tog(reg, m):
    return "v_xor_b32 v%d, %s, v%d" % (reg, m, reg)


def emit_round(a, R, nxt, ph, pend, extra_scal=None):
    Fq, Fp, sums = R.frags()
    F = Fq + Fp
    nF = len(F)
    Fn = []
    if nxt is not None:
        q, p, _ = nxt.frags()
        Fn = (q + p)[:AH]
    mf = []
    first = []
    lastu = {}
    si = 0
    i0 = 0
    if 'nochain' not in FL:
        while i0 < len(Fq):
            base = len(mf)
            for k in range(len(F[i0][2])):
                for e in range(4):
                    d, b, c = F[i0 + e][2][k]
                    lastu[i0 + e] = len(mf)
                    mf.append(mfma(d, ('a', aF + 4 * ((ph + i0 + e) % 16)), b, c))
            first += [base + e for e in range(4)]
            i0 += 4
    for i, (ring, off, ms) in enumerate(F):
        if i < i0:
            continue
        first.append(len(mf))
        for d, b, c in ms:
            mf.append(mfma(d, ('a', aF + 4 * ((ph + i) % 16)), b, c))
        lastu[i] = len(mf) - 1
        if ring == 'V' and si < len(sums):
            per = len(sums) * 8 // len(Fp)
            k = i - len(Fq)
            if (k % 8) < per:
                mf.append(sums[si])
                si += 1
    assert si == len(sums)
    sg = Seg(mf)
    n = sg.n
    if R.bar:
        if not EB or R.first:
            sg.pre.append("s_waitcnt vmcnt(%d)" % R.vm)
            sg.pre.append("s_barrier")
        sg.pre.append("AFTERBAR")
    if EB and nxt is not None and nxt.bar:
        sg.put(n - EB, "s_waitcnt vmcnt(%d)\ns_barrier" % R.vm)
        sg.used[n - EB] = 8
    grp = 4 if len(F[0][2]) >= 3 else WG_
    i = 0
    dead = {}
    while i < nF:
        gsz = 4 if len(F[i][2]) != 2 else WG_
        j = min(nF - 1, i + gsz - 1, i + AH - 3)
        for x in range(i, j + 1):
            dead[x] = first[i] - 2
        w = "WAIT f%d" % (ph + j)
        if first[i] == 0:
            sg.pre.append(w)
        else:
            sg.put(first[i] - 1, w)
        i = j + 1
    SM = sm_items(R.sm, vS + 32 * R.par, vP + 16 * R.par)
    nexp = 8 * len(SM)
    eg = []
    if nexp:
        last = 0
        k = 0
        for masks, exps, cvts in SM:
            for e, x in enumerate(exps):
                want = (k * (n - 2)) // nexp
                reg = int(x.split()[1][1:-1])
                want = max(want, last)
                if reg in masks:
                    want = max(want, 1)
                g = sg.place(x, want, lo=last)
                eg.append(g)
                last = g
                k += 1
    items = list(R.xdma)
    if R.issK is not None:
        items += kv_dma('K') + ["s_xor_b32 s%d, s%d, %s" % (sKm, sKm, R.issK), "s_add_u32 s%d, s%d, 0x8000" % (sKo, sKo)]
    if R.issV is not None:
        items += kv_dma('V') + ["s_xor_b32 s%d, s%d, %s" % (sVm, sVm, R.issV), "s_add_u32 s%d, s%d, 0x8000" % (sVo, sVo)]
    if 'nodma' in FL:
        items = [x for x in items if kind(x) != 'd']
    if items:
        place_dma(sg, items, 0, n - 3 - EB) if any(kind(x) == 'd' for x in items) else [sg.place(x, 0) for x in items]
    last = 0
    pace = [(first[i & ~3] + (i & 3) * len(F[i][2])) if i < len(Fq) else first[i] for i in range(nF)]
    seq = [(j, F[j], False) for j in range(min(AH, nF), nF)] + [(nF + j, f, True) for j, f in enumerate(Fn)]
    prevK = prevV = False
    doneTK = doneTV = doneTVp = False
    lastV = max([j for j, f, nx in seq if f[0] == 'V' and not nx], default=-1)
    for j, f, nx in seq:
        src = j - AH
        want = pace[src] if src < nF else n - 1
        lo = last
        if j - 16 >= 0:
            lo = max(lo, lastu[j - 16])
        tg = None
        if f[0] == 'K' and nx and R.togK and not doneTK:
            tg, doneTK = tog(vK, R.togK), True
        if f[0] == 'V' and nx and R.togV and not doneTV:
            tg, doneTV = tog(vV, R.togV), True
        if tg:
            g = sg.place(tg, max(lo, want - 1), lo=lo)
            lo = min(n - 1, g + 1)
            if g == n - 1:
                sg.end[g].append(fread(f[0], f[1], ph + j, "f%d" % (ph + j)))
                last = g
                continue
        if sg.end[last] and any(x.startswith("ds_") for x in sg.end[last]):
            sg.end[last].append(fread(f[0], f[1], ph + j, "f%d" % (ph + j)))
            continue
        hi = dead.get(j)
        assert hi is None or hi >= lo, (j, lo, hi)
        g = sg.place(fread(f[0], f[1], ph + j, "f%d" % (ph + j)), max(want, lo), lo=lo, hi=hi)
        last = g
        if j == lastV and R.togV and not doneTV and not any(x[1][0] == 'V' and x[2] for x in seq):
            doneTV = True
            sg.place(tog(vV, R.togV), g, lo=g)
    if R.togV and not doneTV:
        sg.place(tog(vV, R.togV), 0)
    assert not (R.togK and not doneTK and nxt is not None and nxt.qk), "togK unused"
    k = 0
    for masks, exps, cvts in SM:
        for e, x in enumerate(exps):
            reg = int(x.split()[1][1:-1])
            if reg in masks:
                g = eg[k + e]
                q = g - 1
                while q >= 0 and not sg.room(q, 'c'):
                    q -= 1
                if q < 0:
                    sg.c[g].insert(0, masks[reg])
                    sg.used[g] += 4
                else:
                    sg.put(q, masks[reg])
        for e, x in enumerate(cvts):
            g = eg[k + 2 * e + 1]
            if g + 1 <= n - 1:
                sg.place(x, g + 1, lo=g + 1)
            else:
                sg.end[n - 1].append(x)
        k += 8
    for x in (extra_scal or []):
        if x.startswith("s_cmp"):
            sg.end[n - 1].append(x)
        else:
            sg.place(x, n // 2)
    L, pend = resolve_waits(sg.lines(), pend)
    for x in L:
        if x == "AFTERBAR":
            if R.after_bar:
                R.after_bar()
            continue
        a(x)
    nph = (ph + nF) % 16
    pend = ["f%d" % (int(t[1:]) - (ph + nF) + nph) for t in pend]
    R.cost = sg.cost()
    return nph, pend


def ctx_base(a, srow):
    a("s_lshl_b32 s4, s%d, 20" % srow)
    a("s_lshl_b32 s5, s%d, 15" % sHead)
    a("s_add_u32 s4, s4, s5")
    a("s_lshl_b32 s5, s%d, 11" % S_WAVE)
    a("s_add_u32 s4, s4, s5")


def epilogue(a, gs, srow):
    ctx_base(a, srow)
    for k, g in enumerate(gs):
        a("v_accvgpr_read_b32 v%d, a%d" % (vT + 2 * k, aL + 4 * g))
    a("s_mov_b32 s5, 0x%08x" % f32bits(THR))
    for k, g in enumerate(gs):
        a("v_cmp_ngt_f32 vcc, s5, v%d" % (vT + 2 * k))
        a("v_rcp_f32 v%d, v%d" % (vT + 2 * k, vT + 2 * k))
        a("s_or_b32 s%d, s%d, vcc_lo" % (sFail, sFail))
        a("s_or_b32 s%d, s%d, vcc_hi" % (sFail, sFail))
        a("v_mov_b32 v%d, v%d" % (vT + 2 * k + 1, vT + 2 * k))
    store_O(a, gs)


def store_O(a, gs):
    for ds in range(4):
        for k, g in enumerate(gs):
            b = vO + 4 * (8 * g + 2 * ds)
            for e in range(0, 8, 2):
                a("v_pk_mul_f32 v[%d:%d], v[%d:%d], v[%d:%d]" % (b + e, b + e + 1, b + e, b + e + 1, vT + 2 * k, vT + 2 * k + 1))
            for e in range(4):
                a("v_cvt_pk_bf16_f32 v%d, v%d, v%d" % (b + e, b + 2 * e, b + 2 * e + 1))
            a("buffer_store_dwordx4 %s, v%d, s[%d:%d], s4 offen offset:%d%s" % (v4(b), vL16, sCtx, sCtx + 3, (g & 1) * 1024, SC1))
        if ds < 3:
            a("s_add_u32 s4, s4, 8192")


def rowmax(a, src, t0, t1):
    a("v_max3_f32 v%d, v%d, v%d, v%d" % (t0, src, src + 1, src + 2))
    a("v_max3_f32 v%d, v%d, v%d, v%d" % (t1, src + 3, src + 4, src + 5))
    a("v_max3_f32 v%d, v%d, v%d, v%d" % (t0, t0, src + 6, src + 7))
    a("v_max_f32 v%d, v%d, v%d" % (t0, t0, t1))


def xmax(a, pairs):
    for op in ("v_permlane32_swap_b32", "v_permlane16_swap_b32"):
        for t0, t1 in pairs:
            a("v_mov_b32 v%d, v%d" % (t1, t0))
        for t0, t1 in pairs:
            a("%s v%d, v%d" % (op, t0, t1))
        for t0, t1 in pairs:
            a("v_max_f32 v%d, v%d, v%d" % (t0, t0, t1))


def plan(p):
    pass


def build_rounds():
    g0, g1 = "0x4000", "0x8000"
    R = {}
    R['c0'] = Rnd(0, 'D', 'p', None, bar=True, togK=g0)
    R['lo'] = Rnd(1, 'D', 'p', 'D')
    R['le'] = Rnd(0, 'D', 'p', 'D', bar=True, issK="s%d" % sMb, issV="s%d" % sMa, togK="s%d" % sMa, togV="s%d" % sMb)
    R['d0'] = Rnd(0, 'D', ('D', 0), 'D', bar=True, issK=g1, issV=g0, togK=g0, togV=g1)
    R['d1'] = Rnd(1, "D'", ('D', 1), 'D')
    R['d2'] = Rnd(0, "D'", ('D', 2), 'D', bar=True, issK=g0, issV=g1, togK=g1, togV=g0)
    R['d3'] = Rnd(1, 'S', ('D', 3), "D'", bar=True, issK=g1, issV=g0, togK=g0)
    R['t0'] = Rnd(0, 'S', 'p', "D'", bar=True, issK=g0, togK=g1, togV=g1)
    R['so'] = Rnd(1, 'S', 'p', 'S', bar=True, issK=g1, issV=g1, togK=g0, togV=g0)
    R['se'] = Rnd(0, 'S', 'p', 'S', bar=True, issK=g0, issV=g0, togK=g1, togV=g1)
    R['e0'] = Rnd(0, "S'", ('S', 0), 'S', bar=True, togV=g1)
    R['e1'] = Rnd(1, None, ('S', 1), 'S', bar=True, togV=g0)
    R['e2'] = Rnd(0, None, None, "S'")
    R['c0'].first = True
    R['c0'].xdma = kv_prologue_items(part=1)
    R['c0'].xq = [x for x in [('K', 2), ('V', 1), ('K', 3), ('V', 2)] for _ in range(4)]
    R['d1'].xdma = pf_items()
    R['d1'].xq = [('pf', 0)] * NPF
    return R


def path(p):
    seq = ['c0']
    if p:
        seq += ['lo', 'le'] * (2 * p - 1) + ['lo', 'd0']
    seq += ['d1', 'd2', 'd3']
    ns = 2 * (14 + 2 * (p & 1) - 2 * p)
    seq += ['t0', 'EPI'] + ['so', 'se'] * ((ns - 4) // 2) + ['so', 'e0']
    seq += ['e1', 'e2']
    return seq


def simulate(R, q0):
    need = {}
    for p in range(8):
        seq = path(p)
        nd = 4 * p + 4
        ktile = lambda c: c // 2 if c < nd else nd // 2 + (c - nd)
        q = list(q0)
        nk, nv = 4, 3
        rounds = [k for k in seq if k != 'EPI']
        reads = []
        for c, k in enumerate(rounds):
            r = set()
            if R[k].qk:
                r.add(('K', ktile(c + 1)))
            if R[k].pv:
                r.add(('V', ktile(c - 1)))
            reads.append(r)
        full = []
        for c, k in enumerate(rounds):
            r = set(reads[c])
            if c + 1 < len(rounds):
                nx = R[rounds[c + 1]]
                fq, fp, _ = nx.frags()
                for f in (fq + fp)[:AH]:
                    r.add(('K', ktile(c + 2)) if f[0] == 'K' else ('V', ktile(c)))
            full.append(r)
        c = 0
        epi = False
        kaddr, vaddr = 0, 0
        for k in seq:
            if k == 'EPI':
                epi = True
                continue
            r = R[k]
            if r.bar:
                e = c + 1
                while e < len(rounds) and not R[rounds[e]].bar:
                    e += 1
                req = set().union(*full[c:e])
                idx = max(i for i, x in enumerate(q) if x in req)
                assert all(x in q for x in req), (p, k, req)
                key = rounds[c - 1] if (c and EB) else k
                if epi and not EB:
                    q += [('st', 0)] * 8
                    epi = False
                need[key] = min(need.get(key, 63), 0 if k == 'e1' else len(q) - 1 - idx)
                lastbar = c
            if epi:
                q += [('st', 0)] * 8
                epi = False
            q += r.xq
            if k == 'd2':
                pass
            for w, iss in (('K', r.issK), ('V', r.issV)):
                if iss is not None:
                    t = nk if w == 'K' else nv
                    for cc in range(lastbar, len(rounds)):
                        assert (w, t - 4) not in full[cc], (p, k, w, t)
                    if iss.startswith("0x"):
                        assert int(iss, 16) == gray_mask(t), (p, k, w, t)
                    q += [(w, t)] * 4
                    if w == 'K':
                        nk += 1
                    else:
                        nv += 1
            if r.qk:
                assert kaddr == ktile(c + 1), (p, k, kaddr)
            if r.pv:
                assert vaddr == ktile(c - 1), (p, k, vaddr, ktile(c - 1))
            if r.togK:
                if r.togK.startswith("0x"):
                    assert int(r.togK, 16) == gray_mask(kaddr), (p, k)
                kaddr += 1
            if r.togV:
                if r.togV.startswith("0x"):
                    assert int(r.togV, 16) == gray_mask(vaddr), (p, k)
                vaddr += 1
            c += 1
    for k, v in need.items():
        if EB and k == 'c0':
            R[k].vm0 = v
        R[k].vm = v
    return need


def setup1(a):
    a("v_add_u32 v%d, 0xc000, v%d" % (vK, vL16))
    a("v_add_u32 v%d, 0x10000, v%d" % (vV, vL16))
    a("v_mov_b32 v%d, 0xf149f2ca" % vNEG)
    a("s_mov_b32 s%d, 0" % sFail)
    a("v_mfma_f32_32x32x16_bf16 a[%d:%d], a[236:239], a[236:239], 0" % (aL, aL + 15))


def setup2(a):
    if NPF:
        pf_setup(a)
    srd(a, sCtx, P_WS, 16 * MB, WS_CTX)
    a("v_and_b32 v%d, 15, v1" % vT)
    a("v_lshrrev_b32 v%d, 4, v1" % (vT + 1))
    a("v_sub_u32 v%d, v%d, v%d" % (vT, vT, vT + 1))
    a("v_lshlrev_b32 v%d, 2, v%d" % (vT, vT))
    a("v_add_u32 v%d, s%d, v%d" % (vT, S_WAVE, vT))
    for j in range(4):
        for r in range(4):
            m = sMask + 2 * (4 * j + r)
            a("v_cmp_gt_i32 s[%d:%d], %d, v%d" % (m, m + 1, 16 * j + r, vT))
    a("s_mov_b32 s%d, 0x8000" % sMa)
    a("s_mov_b32 s%d, 0x4000" % sMb)


def attention(a, st, H):
    R = build_rounds()
    for k in ('e0',):
        R[k].xdma, R[k].xq = H.pre_e1(), [('fl', 0)]
    R['e1'].xdma, R['e2'].xdma = H.e1_items(), H.e2_items()
    simulate(R, H.q0)
    a("s_waitcnt vmcnt(%d)" % (len(H.q0) - 1 - max(i for i, t in enumerate(H.q0) if t == ('K', 0))))
    a("s_barrier")
    st(a)
    fq = qk_frags('D0', 0, vS)
    c0q, c0p, _ = R['c0'].frags()
    nx = (c0q + c0p)[:AH]
    assert len(nx) == 8
    sg = Seg([mfma(d, ('a', aF + 4 * (8 + j)), b, c) for j, (ring, off, ms) in enumerate(fq) for d, b, c in ms])
    sg.pre = [fread('K', fq[j][1], 8 + j, "f%d" % (8 + j)) for j in range(8)] + ["WAIT f9"]
    for j in range(8):
        if j and j % 2 == 0:
            sg.put(4 * j - 1, "WAIT f%d" % (9 + j))
        sg.put(4 * j + 3, fread('K', nx[j][1], 16 + j, "f%d" % (16 + j)))
    c = Col()
    setup2(c)
    g = 0
    for k, x in enumerate(c):
        if "s_addc" in x:
            continue
        if k + 1 < len(c) and "s_addc" in c[k + 1]:
            x += "\n" + c[k + 1]
        g = sg.place(x, g, lo=g)
        if kind(x) == 's' and k + 1 < len(c) and kind(c[k + 1]) != 's':
            g += 1
    L = sg.lines()
    L, pend = resolve_waits(L, [])
    for x in L:
        a(x)
    pend = ["f%d" % (int(t[1:]) - 16) for t in pend]
    a("s_cmp_lg_u32 s%d, 0" % sPair)
    a("s_cbranch_scc1 La_nomask0")
    for reg, x in sm_items(('D', 0), vS, vP)[0][0].items():
        a(x)
    a.label("La_nomask0")
    for g in range(4):
        rowmax(a, vS + 8 * g, vT + 2 * g, vT + 2 * g + 1)
    xmax(a, [(vT + 2 * g, vT + 2 * g + 1) for g in range(4)])
    for g in range(4):
        for r in range(4):
            a("v_sub_f32 v%d, 0, v%d" % (vNM + 4 * g + r, vT + 2 * g))
    for g in range(4):
        for e in range(0, 8, 2):
            b = vS + 8 * g + e
            a("v_pk_add_f32 v[%d:%d], v[%d:%d], v[%d:%d]" % (b, b + 1, b, b + 1, vNM + 4 * g, vNM + 4 * g + 1))
    state = {}

    def rnd(k, nk, ph, pend, extra=None):
        assert len(pend) <= 15
        return emit_round(a, R[k], R[nk] if nk else None, ph, pend, extra)

    def join(k, ph, pend):
        if k in state:
            assert state[k] == (ph, pend), (k, state[k], ph, pend)
        state[k] = (ph, list(pend))
    a("s_lshl_b32 s%d, s%d, 1" % (sCnt, sPair))
    ph, pend = rnd('c0', 'lo', 0, pend, ["s_cmp_eq_u32 s%d, 0" % sPair])
    join('lo', ph, pend)
    join('d1', ph, pend)
    a("s_cbranch_scc1 La_d1")
    a(".p2align 6")
    a.label("La_lo")
    ph, pend = rnd('lo', 'le', ph, pend, ["s_sub_u32 s%d, s%d, 1" % (sCnt, sCnt), "s_cmp_eq_u32 s%d, 0" % sCnt])
    join('d0', ph, pend)
    a("s_cbranch_scc1 La_d0")
    ph, pend = rnd('le', 'lo', ph, pend)
    a("s_xor_b32 s%d, s%d, 0xc000" % (sMa, sMa))
    a("s_xor_b32 s%d, s%d, 0xc000" % (sMb, sMb))
    join('lo', ph, pend)
    a("s_branch La_lo")
    a.label("La_d0")
    ph, pend = state['d0']
    ph, pend = rnd('d0', 'd1', ph, pend)
    join('d1', ph, pend)
    a.label("La_d1")
    ph, pend = rnd('d1', 'd2', ph, pend)
    ph, pend = rnd('d2', 'd3', ph, pend)
    H.after_d2()
    ph, pend = rnd('d3', 't0', ph, pend)
    ph, pend = rnd('t0', 'so', ph, pend)
    st(a)
    epilogue(a, [0, 1], sPair)
    st(a)
    long_blk(a, sCnt)
    a("s_sub_u32 s%d, s%d, s%d" % (sCnt, sCnt, sPair))
    a("s_sub_u32 s%d, s%d, 1" % (sCnt, sCnt))
    join('so', ph, pend)
    a(".p2align 6")
    a.label("La_so")
    ph, pend = rnd('so', 'se', ph, pend, ["s_sub_u32 s%d, s%d, 1" % (sCnt, sCnt), "s_cmp_eq_u32 s%d, 0" % sCnt])
    join('e0', ph, pend)
    a("s_cbranch_scc1 La_e0")
    ph, pend = rnd('se', 'so', ph, pend)
    join('so', ph, pend)
    a("s_branch La_so")
    a.label("La_e0")
    ph, pend = state['e0']
    ph, pend = rnd('e0', 'e1', ph, pend)
    join('e1', ph, pend)
    a.label("La_e1")
    R['e1'].after_bar = H.at_e1
    ph, pend = rnd('e1', 'e2', ph, pend)
    ph, pend = rnd('e2', None, ph, pend)
    st(a)
    long_blk(a, sCnt)
    epilogue(a, [2, 3], sCnt)
    slow_path(a)
    if 'v' in FL:
        for k, r in R.items():
            print(k, "vm", r.vm, "cost", r.cost, file=sys.stderr)


def slow_path(a):
    vM, vLs, vD = vNM, vNM + 8, vNM + 4
    sRbk, sCh, sOff = 6, 7, 90
    a("s_cmp_eq_u32 s%d, 0" % sFail)
    a("s_cbranch_scc1 La_done")
    a("s_waitcnt vmcnt(0)")
    long_blk(a, sRbk)
    a.label("La_sl_blk")
    for i in range(64):
        a("v_mov_b32 v%d, 0" % (vO + 64 + i))
    for i in range(8):
        a("v_mov_b32 v%d, 0" % (vLs + i))
    a("v_mov_b32 v%d, v%d" % (vM, vNEG))
    a("v_mov_b32 v%d, v%d" % (vM + 1, vNEG))
    a("v_and_b32 v%d, 15, v1" % vD)
    a("v_lshrrev_b32 v%d, 4, v1" % (vD + 1))
    a("v_sub_u32 v%d, v%d, v%d" % (vD, vD, vD + 1))
    a("v_lshlrev_b32 v%d, 2, v%d" % (vD, vD))
    a("s_lshl_b32 s4, s%d, 7" % sRbk)
    a("s_add_u32 s4, s4, s%d" % S_WAVE)
    a("v_add_u32 v%d, s4, v%d" % (vD, vD))
    a("v_add_u32 v%d, 64, v%d" % (vD + 1, vD))
    a("s_add_u32 s%d, s%d, 1" % (sCh, sRbk))
    a("s_lshl_b32 s%d, s%d, 2" % (sCh, sCh))
    a("s_mov_b32 s%d, 0" % sOff)
    a.label("La_sl_loop")
    for i in range(16):
        if i % 4 == 0:
            a("s_add_u32 s4, s%d, %d" % (sOff, (i // 8) * 16384 + ((i // 4) & 1) * 4096))
        a("buffer_load_dwordx4 %s, v%d, s[%d:%d], s4 offen offset:%d%s" % (a4(4 * i), vL16, sKV, sKV + 3, (i % 4) * 1024, SC1))
    a("s_waitcnt vmcnt(0)")
    for jb in range(2):
        for ds in range(4):
            for k in range(2):
                a(mfma(('v', vS + 8 * k + 4 * jb), ('a', 4 * (4 * jb + ds)), Qreg(2 + k, ds), "0" if ds == 0 else None))
    for k in range(2):
        for jb in range(2):
            for r in range(4):
                x = vS + 8 * k + 4 * jb + r
                a("v_cmp_gt_i32 vcc, %d, v%d" % (16 * jb + r, vD + k))
                a("v_cndmask_b32 v%d, v%d, v%d, vcc" % (x, x, vNEG))
        a("v_subrev_u32 v%d, 32, v%d" % (vD + k, vD + k))
        rowmax(a, vS + 8 * k, vT + 2 * k, vT + 2 * k + 1)
    xmax(a, [(vT + 2 * k, vT + 2 * k + 1) for k in range(2)])
    for k in range(2):
        a("v_max_f32 v%d, v%d, v%d" % (vT + 2 * k, vT + 2 * k, vM + k))
        a("v_sub_f32 v%d, v%d, v%d" % (vT + 2 * k + 1, vM + k, vT + 2 * k))
        a("v_exp_f32 v%d, v%d" % (vT + 2 * k + 1, vT + 2 * k + 1))
        a("v_mov_b32 v%d, v%d" % (vM + k, vT + 2 * k))
        for e in range(8):
            a("v_sub_f32 v%d, v%d, v%d" % (vS + 8 * k + e, vS + 8 * k + e, vM + k))
        for e in range(8):
            a("v_exp_f32 v%d, v%d" % (vS + 8 * k + e, vS + 8 * k + e))
        for e in range(4):
            a("v_mul_f32 v%d, v%d, v%d" % (vLs + 4 * k + e, vLs + 4 * k + e, vT + 2 * k + 1))
        for e in range(32):
            x = vO + 64 + 32 * k + e
            a("v_mul_f32 v%d, v%d, v%d" % (x, x, vT + 2 * k + 1))
        for e in range(4):
            a("v_cvt_pk_bf16_f32 v%d, v%d, v%d" % (vP + 4 * k + e, vS + 8 * k + 2 * e, vS + 8 * k + 2 * e + 1))
    for k in range(2):
        a(mfma(('v', vLs + 4 * k), ('a', aOne), ('v', vP + 4 * k)))
        for db in range(8):
            a(mfma(Oreg(2 + k, db), ('a', 32 + 4 * db), ('v', vP + 4 * k)))
    a("s_add_u32 s%d, s%d, 8192" % (sOff, sOff))
    a("s_and_b32 s4, s%d, 0x4000" % sOff)
    a("s_add_u32 s%d, s%d, s4" % (sOff, sOff))
    a("s_sub_u32 s%d, s%d, 1" % (sCh, sCh))
    a("s_cmp_lg_u32 s%d, 0" % sCh)
    a("s_cbranch_scc1 La_sl_loop")
    ctx_base(a, sRbk)
    for k in range(2):
        a("v_rcp_f32 v%d, v%d" % (vT + 2 * k, vLs + 4 * k))
        a("v_mov_b32 v%d, v%d" % (vT + 2 * k + 1, vT + 2 * k))
    store_O(a, [2, 3])
    a("s_cmp_eq_u32 s%d, s%d" % (sRbk, sPair))
    a("s_cbranch_scc1 La_done")
    for i in range(32):
        a("v_accvgpr_read_b32 v%d, a%d" % (vS + i, aQ + i))
    for i in range(32):
        a("v_accvgpr_write_b32 a%d, v%d" % (aQ + 32 + i, vS + i))
    a("s_mov_b32 s%d, s%d" % (sRbk, sPair))
    a("s_branch La_sl_blk")
    a.label("La_done")
```

```python
from lib import *
from gemm4 import *
import proj4, bfront, attn4, oproj, qproj

MFL = set(os.environ.get("MFLAGS", "").split(","))


def gen(stamp=False):
    a = Asm()
    st = Stamps(stamp, 0)
    a("s_cmp_ge_u32 s2, 256")
    a("s_cbranch_scc1 Lend")
    a("s_load_dwordx16 s[64:79], s[0:1], 0")
    a("s_load_dwordx8 s[80:87], s[0:1], 64")
    a("v_lshrrev_b32 v2, 6, v0")
    a("v_and_b32 v1, 63, v0")
    a("v_readfirstlane_b32 s%d, v2" % S_WAVE)
    a("v_lshlrev_b32 v2, 4, v1")
    if 'ipf' in MFL:
        a("s_getpc_b64 s[6:7]")
        a("s_lshr_b32 s4, s2, 3")
        a("s_lshl_b32 s4, s4, 2")
        a("s_add_u32 s4, s4, s%d" % S_WAVE)
        a("s_min_u32 s4, s4, CODE_KB")
        a("s_lshl_b32 s4, s4, 10")
        a("v_add_u32 v3, s4, v2")
        a("global_load_dwordx4 v[4:7], v3, s[6:7]")
    st(a)
    gk, gv = proj4.make('wx'), proj4.make('xw')
    b0, b1 = bfront.make(0), bfront.make(1)
    g3 = qproj.make()
    if 'nost' in MFL:
        t0 = proj4.trickle
        proj4.trickle = lambda k, a, b: [x.replace("s%d," % proj4.sSt, "0x70000000,").replace("s_add_u32 s60, 0x70000000, ", "s_mov_b32 s60, 0x70000000 ; ") for x in t0(k, a, b)]
    NK = [int(x) for x in os.environ.get("NK", "12").split(",")]
    NW = int(os.environ.get("NW", 8))
    TR3 = [int(x) for x in os.environ.get("TR3", "8,0,8,0,8").split(",")]
    assert NW >= 8 and NW + sum(TR3) == 32
    a("s_bfe_u32 s59, s2, 0x30003")
    a("s_lshr_b32 s4, s2, 7")
    a("s_lshl_b32 s4, s4, 3")
    a("s_add_u32 s59, s59, s4")
    a("s_lshr_b32 s4, s2, 3")
    a("s_xor_b32 s4, s4, s2")
    a("s_bitcmp1_b32 s4, 3")
    a("s_cbranch_scc1 Lp2")

    def common(c):
        attn4.ids(c)
        oproj.lanes(c, 24)
        qproj.lanes(c, 24)
    proj4.setup(a, gk, "s59")
    srd(a, S_FLG, P_WS, 0x40000, WS_FLG)
    tag_make(a, 0)
    for x in proj4.xitems(gk, 0) + proj4.witems(gk, 0):
        a(x)
    c = Col()
    proj4.read_bases(c, gk)
    common(c)
    proj4.out_base(c)
    gk.init(c, [proj4.XS0, 0])
    for x in weave_lines(c, proj4.xitems(gk, 1) + proj4.witems(gk, 1), 0.2, 1.0):
        a(x)
    tag_make(a, 1, 32)
    st(a)
    k0 = st.k
    gk.pro(a, 16, dma=proj4.xitems(gk, 2))
    a("s_mov_b32 s%d, 6" % gk.sCnt)
    gk.loop(a, 8)
    gk.half(a, 1, dma=gk.dma_items())
    if 'st2' in MFL:
        st(a)
    order, epi = proj4.pack('k', NK[0])
    rest = gk.bm(a, order, 18, 18, N=8, dma=gk.dma_items(), nxt=gv, epi=epi, defer=True)
    assert all(kind(x) == 'c' for x in rest), rest
    if 'st2' in MFL:
        st(a)
    order, held = proj4.v_order(NK[0])
    sts = [(proj4.trickle('k', k, k + 1), held[proj4.ORDER['k'][k]]) for k in range(NK[0], 32)]
    gv.bm(a, order, 20, 18, N=8, first=True, dma=gv.dma_items(), nxt=gv, st2=sts, carry=rest)
    a("s_add_u32 s%d, s%d, 0x4000" % (proj4.sSt, proj4.sSt))
    a("s_waitcnt lgkmcnt(0)")
    gv.half(a, 0, adv=True)
    st(a)
    a("s_mov_b32 s%d, 4" % gv.sCnt)
    gv.loop(a, 8)
    gv.iter(a, None, proj4.witems(gv, 0) + qproj.witems(g3, 0) + qproj.witems(g3, 1), after_bar=lambda: qproj.setup(a, g3))
    gv.bar(a, 8)
    gv.half(a, 1, dma=qproj.xitems(g3, 0))
    order, epi = proj4.pack('v', NW)
    gv.bm(a, order, 18, epi=epi, dma=qproj.xitems(g3, 1) + qproj.witems(g3, 2) + qproj.xitems(g3, 2), mid=lambda: tag_load(a, 22))
    qk = VmQ()
    for t, n in (('w0', 4), ('w1', 4), ('x0', 8), ('t', 1), ('st', NW), ('x1', 8), ('w2', 4), ('x2', 8)):
        qk.push(t, n)
    a("s_lshl_b32 s34, s%d, 4" % proj4.sN0)
    a("s_add_u32 s34, s34, s%d" % proj4.sM0)
    a("s_lshl_b32 s34, s34, 7")
    a("s_branch Lp3")
    a.label("Lp2")
    st.k = k0 - 1
    bfront.setup(a, b0, "s59")
    srd(a, S_FLG, P_WS, 0x40000, WS_FLG)
    a("s_cmp_ge_u32 s%d, 2" % S_WAVE)
    a("s_cbranch_scc1 Lp2_r1")
    for rh, g in enumerate((b0, b1)):
        if rh:
            a.label("Lp2_r1")
            st.k = k0 - 1
        nx = 8 if rh else 9
        PFB, PF0 = int(os.environ.get("PFB", 4)), os.environ.get("PF0", "")
        a("s_and_b32 s4, s2, 7")
        a("s_lshl_b32 s4, s4, 4")
        a("s_add_u32 s4, s4, s59")
        a("s_lshl_b32 s4, s4, 2")
        a("s_add_u32 s4, s4, s%d" % S_WAVE)
        a("s_lshl_b32 s51, s4, 13")

        def pf0():
            a("s_lshr_b32 s56, s51, 1")
            srd(a, 52, P_CKV, 2 * MB)
            for i in range(4):
                a("buffer_load_dwordx4 a[192:195], v2, s[52:55], s56 offen offset:%d ; @dummy" % (1024 * i))
            a("s_add_u32 s56, s51, 4096")
            srd(a, 52, P_WUK, 4 * MB)
            for i in range(8):
                a("buffer_load_dwordx4 a[192:195], v2, s[52:55], %s offen offset:%d ; @dummy" % ("s56" if i >= 4 else "s51", 1024 * (i & 3)))
        if PF0 == "a":
            pf0()
        for x in bfront.xitems(g, 0) + bfront.witems(g, 0):
            a(x)
        if PF0 == "b":
            pf0()
        c = Col()
        bfront.read_bases(c)
        common(c)
        bfront.pre(c)
        g.init(c)
        if PFB:
            srd(c, 52, P_WUV, 4 * MB)
            c("s_lshl_b32 s1, s51, 1")
            c("s_mov_b32 s56, s51")
            c("s_mov_b32 s0, 0")
            pf1 = ["buffer_load_dwordx4 a[192:195], v2, s[52:55], s51 offen offset:%d ; @dummy" % (1024 * i) for i in range(PFB)]
            assert PFB == 4
            g.pf = pf1 + ["s_add_u32 s51, s51, 4096", "s_add_u32 s0, s0, 1",
                          "s_cmp_eq_u32 s0, 2\ns_cselect_b32 s52, s%d, s52\ns_cselect_b32 s53, s%d, s53\ns_cselect_b32 s51, s1, s51\n"
                          "s_cselect_b32 s54, %d, s54" % (P_WQ, P_WQ + 1, (8 * MB) if os.environ.get("PFQ", "1") == "1" else 0),
                          "s_cmp_eq_u32 s0, 6\ns_cselect_b32 s52, s%d, s52\ns_cselect_b32 s53, s%d, s53\ns_cselect_b32 s51, s56, s51\n"
                          "s_cselect_b32 s54, %d, s54" % (P_AX, P_AX + 1, (4 * MB) if os.environ.get("PFQ", "1") == "1" else 0),
                          "s_cmp_eq_u32 s0, 8\ns_cselect_b32 s54, 0, s54"]
        for x in weave_lines(c, bfront.xitems(g, 1) + bfront.witems(g, 1), 0.2, 1.0):
            a(x)
        st(a)
        g.pro(a, nx + 6 + (12 if PF0 == 'b' else 0), dma=bfront.xitems(g, 2))
        a("s_mov_b32 s%d, 13" % g.sCnt)
        g.loop(a, nx)
        if 'st2' in MFL:
            st(a)
            st(a)
        g.iter(a, None, bfront.witems(g, 0), after_bar=lambda: qproj.setup(a, g3))
        g.bar(a, 0)
        a("s_mov_b32 s6, 0x%08x" % f32bits(bfront.CB))
        a("s_mov_b32 s7, s6")
        g.half(a, 1)
        order, epi = bfront.pack(g, rh)
        g.bm(a, order, 16, epi=epi, dma=qproj.witems(g3, 0) + qproj.witems(g3, 1) + qproj.xitems(g3, 0), mid=lambda: tag_load(a, 22))
        a("s_waitcnt lgkmcnt(0)")
        a("s_barrier")
        st(a)
        if not rh:
            a("s_branch Lp2_at")
    a.label("Lp2_at")
    c = Col()
    bfront.attend(c)
    for x in weave_lines(c, qproj.xitems(g3, 1) + qproj.witems(g3, 2) + qproj.xitems(g3, 2), 0.0, 0.7):
        a(x)
    qb = VmQ()
    for t, n in (('t', 1), ('w0', 4), ('w1', 4), ('x0', 8), ('x1', 8), ('w2', 4), ('x2', 8), ('st', 8)):
        qb.push(t, n)
    a("s_lshl_b32 s34, s%d, 4" % bfront.sRb)
    a("s_add_u32 s34, s34, s%d" % bfront.sHp)
    a("s_lshl_b32 s34, s34, 7")
    a("s_add_u32 s34, s34, %d" % F_OB)
    a("s_mov_b32 s%d, 0x70000000" % proj4.sSt)
    a.label("Lp3")
    st(a)
    qproj.restore(a)
    g3.init(a, [qproj.XS0, 0])
    need = lambda *t: min(qk.need(*t), qb.need(*t))

    def push(t, n):
        qk.push(t, n), qb.push(t, n)
    cum = [NW + sum(TR3[:k]) for k in range(len(TR3) + 1)]
    g3.pro(a, need('w0', 'x0'), dma=proj4.trickle('v', cum[0], cum[1]))
    push('st', TR3[0])
    last = len(TR3) + 1
    for s in range(1, last + 1):
        N = need('w%d' % s, 'x%d' % s, s, *(['st'] if s == last else []))
        g3.iter(a, N, g3.dma_items() + (proj4.trickle('v', cum[s], cum[s + 1]) if s < len(TR3) else []),
                after_bar=(lambda: (tag_get(a, 22, 12), signal(a, 22, ["s34"], 3))) if s == last else None)
        push(s + 2, 12)
        if s < len(TR3):
            push('st', TR3[s])
    if last < 12:
        a("s_mov_b32 s%d, %d" % (g3.sCnt, 12 - last))
        g3.loop(a, 12)
    else:
        g3.bar(a, 12)

    def ids():
        a("s_lshr_b32 s34, s%d, 1" % attn4.sHead)
        a("s_lshl_b32 s34, s34, 11")
        for x in flag_addr(3, 8):
            a(x)
    g3.iter(a, None, [flag_load(22, "s34", 3)] + g3.dma_items(), after_bar=ids)

    def go():
        flag_check(a, 22, "s34", 3)
        attn4.kv_setup(a)
        oproj.ids(a)
    it = attn4.kv_prologue_items(0)
    cut = [i for i, x in enumerate(it) if "m0" in x][1]
    g3.iter(a, 12, it[:cut], after_bar=go)
    g3.bar(a, 4)
    a("s_mov_b32 s6, 0x%08x" % f32bits(attn4.CST))
    a("s_mov_b32 s7, s6")
    g3.half(a, 1, dma=it[cut:])
    order, epi = qproj.epilogue()
    g3.bm(a, order, 16, epi=epi, bar=False)
    st(a)
    attn4.setup1(a)
    st(a)
    g6, g7 = oproj.make("p6", oproj.AB), oproj.make("p7", oproj.AA)

    class H:
        q0 = [t for t in (('K', 0), ('K', 1), ('V', 0)) for _ in range(4)]

        @staticmethod
        def after_d2():
            a("s_lshr_b32 s91, s%d, 1" % oproj.sRb)
            a("s_lshl_b32 s91, s91, 11")
            a("s_add_u32 s91, s91, %d" % F_OB)
            for x in flag_addr(14):
                a(x)

        @staticmethod
        def pre_e1():
            return [flag_load(12, "s91", 14)]

        @staticmethod
        def at_e1():
            flag_check(a, 12, "s91", 14)
            for j in range(4):
                a("v_accvgpr_read_b32 v%d, a%d" % (oproj.wv + j, oproj.aSave + j))
            for x in oproj.job_w(False) + oproj.job_x(False):
                a(x)

        @staticmethod
        def e1_items():
            return oproj.stage_items(g6, 0, 'wx')

        @staticmethod
        def e2_items():
            return oproj.stage_items(g6, 1, 'wx')
    attn4.attention(a, st, H)
    st(a)
    gh = oproj.make("ph", oproj.AA, True)
    q = VmQ()
    for s in range(2):
        q.push(s, 8)
    q.push('ctx', 8)
    oproj.read_bases(a, 4)
    g6.init(a, [3])
    g6.pro(a, q.need(0), dma=oproj.stage_items(g6, 2, 'wx') + oproj.stage_items(g6, 3, 'wx'))
    q.push(2, 8)
    q.push(3, 8)

    def sig_ctx():
        a("s_lshl_b32 s4, s%d, 7" % attn4.sHead)
        a("s_lshl_b32 s5, s%d, 12" % attn4.sPair)
        a("s_add_u32 s6, s4, %d" % F_CTX)
        attn4.long_blk(a, 7)
        a("s_lshl_b32 s7, s7, 12")
        a("s_add_u32 s7, s7, s6")
        a("s_add_u32 s6, s6, s5")
        signal(a, 6, ["s6", "s7"])
        a("s_lshl_b32 s91, s%d, 12" % oproj.sRb)
        a("s_add_u32 s91, s91, %d" % F_CTX)
        for x in flag_addr(14, 32):
            a(x)
        oproj.xch_srd(a)
    VS = int(os.environ.get("VS", 6))
    for s in range(1, VS):
        N = q.need(1, 'ctx') if s == 1 else q.need(s)
        if s == 1:
            q.push('sig', 2)
        it = g6.dma_items() if s < 5 else (oproj.job_w(True) if s == 5 else []) + g7.group_items(g7.dma[0])
        q.push(s + 3, 8 if s < 5 else 4)
        if s == VS - 1:
            it = it + [flag_load(6, "s91", 14)]
            q.push('fl', 1)
        g6.iter(a, N, it, after_bar=sig_ctx if s == 1 else None)
    a("s_waitcnt vmcnt(%d)" % q.need(VS, 'fl'))
    a("v_cmp_ne_u64 vcc, s[%d:%d], v[6:7]" % (S_TAG, S_TAG + 1))
    a("v_cndmask_b32_e64 v8, 0, 1, vcc")
    a("v_lshlrev_b32 v9, 2, v0")
    a("ds_write_b32 v9, v8")
    a("v_lshlrev_b32 v9, 4, v1")
    a("s_waitcnt lgkmcnt(0)")
    a("s_barrier")
    a("ds_read_b128 v[160:163], v9")
    for x in oproj.job_w(True) if VS == 5 else []:
        a(x)
    a("s_waitcnt lgkmcnt(0)")
    a("v_or3_b32 v160, v160, v161, v162")
    a("v_or_b32 v160, v160, v163")
    a("v_cmp_ne_u32 vcc, 0, v160")
    if 'only7' not in MFL:
        a("s_cbranch_vccnz Lp6_late ; @late")
    k0 = st.k
    q0 = list(q.q)
    for late in (False, True):
        q.q = list(q0)
        if late:
            a.label("Lp6_late")
            st.k = k0
        else:
            for x in oproj.job_x(True):
                a(x)
        for s in range(VS, 8):
            if s > VS:
                g6.bar(a, q.need(s))
            it = g7.group_items(g7.dma[0]) if late else g7.dma_items()
            if s == VS and not late:
                for t in range(VS + 2, 7, -1):
                    it = oproj.stage_items(g7, t, 'x') + it
                for t in range(8, VS + 3):
                    q.push(t, 4)
            q.push(s + 3, 4 if late else 8)
            if late and s == 7:
                it += [flag_load(6, "s91", 14)]
            d0, d1 = g6.split(it)
            g6.half(a, 1, dma=d0)
            a("s_waitcnt lgkmcnt(0)")
            g6.half(a, 0, dma=d1, adv=True)
        if late:
            a("s_waitcnt vmcnt(0) lgkmcnt(0)")
            a("s_barrier")
            st(a)
            flag_check(a, 6, "s91", 14)
            st(a)
            for x in oproj.job_x(True):
                a(x)
            it = []
            for s in range(8, 12):
                it += oproj.stage_items(g7, s, 'x' if s < 11 else 'wx')
            g6.half(a, 1, rd=False, dma=it)
            for x in oproj.send_items(oproj.AB, False, 6):
                a(x)
            a("s_waitcnt vmcnt(24)")
            a("s_barrier")
            for x in g7.reads(0):
                a(x)
            a("s_waitcnt lgkmcnt(0)")
            g7.half(a, 0, first=True, adv=True)
        else:
            g6.bar(a, q.need(8))
            st(a)
            st(a)
            g6.half(a, 1, dma=g7.dma_items())
            a("s_waitcnt lgkmcnt(0)")
            it = oproj.send_items(oproj.AB, False, 6)
            nsc = [i for i, x in enumerate(it) if kind(x) == 'd'][0]
            for x in it[:nsc]:
                a(x)
            g7.half(a, 0, first=True, adv=True, extra=lambda sg: place_dma(sg, it[nsc:], 5, 14))
            a("s_branch Lp7")
    a.label("Lp7")
    st(a)
    DL = oproj.DL
    F = 40 - DL
    a("s_mov_b32 s%d, %d" % (g7.sCnt, F - 4 - 9))
    g7.loop(a, 16)
    if 'st2' in MFL:
        st(a)
    q = VmQ()
    for s in range(F - 4, F - 1):
        q.push(s, 8)
    E = F + 2 * DL
    finB = []
    for s in range(F - 4, E):
        tags, it, ab = [s], [], None
        if s == F - 4:
            def ab():
                oproj.flag_pos(a, False, True, 6)
                signal(a, 6, ["s6"])
                oproj.flag_pos(a, False, False, 90)
                oproj.out_setup(a)
        if s == F - 3:
            it += [flag_load(6, "s90")]
        if s == F - 2:
            tags.append('fl')
            ab = lambda: flag_check(a, 6, "s90")
            it += oproj.recv_items(False, 6)
        if s == F:
            tags.append('rcv')

            def ab():
                oproj.out_off(a, False, 4)
                oproj.flag_pos(a, True, True, 89)
                oproj.flag_pos(a, True, False, 90)
            finB = oproj.finish(oproj.AB, False, 4)
        if s == F + 3:
            tags.append('snd')
            ab = lambda: signal(a, 6, ["s89"])
        if s == E - 3:
            it += [flag_load(6, "s90")]
        if s == E - 2:
            tags.append('fl')
            ab = lambda: flag_check(a, 6, "s90")
            it += oproj.recv_items(True, 6)
        N = q.need(*tags)
        if s == F - 4 or s == F + 3:
            q.push('sig', 1)
        for x in it:
            if kind(x) == 'd':
                q.push('fl' if "dwordx2" in x else 'rcv', 1)
        if s + 3 < F:
            it += g7.dma_items()
            q.push(s + 3, 8)
        elif s + 3 < E:
            if s + 3 == F:
                it += oproj.to_half()
            if s + 3 == F + DL:
                it += oproj.to_partner()
            it += gh.dma_items()
            q.push(s + 3, 6)
        g1, g0 = (g7 if s - 1 < F else gh), (g7 if s < F else gh)
        if s > F - 4:
            g7.bar(a, N)
        else:
            assert N >= 16
        if ab:
            ab()
        d0, d1 = g7.split(it)
        if s == F:
            snd = oproj.send_items(oproj.AA, True, 6)
            nsc = [i for i, x in enumerate(snd) if kind(x) == 'd'][0]
            d0, d1 = it + snd[:nsc], snd[nsc:nsc + 4]
            q.push('snd', 4)
        if s == F + 1:
            d0, d1 = snd[nsc + 4:], it
            q.q = q.q[:-6] + ['snd'] * 4 + q.q[-6:]

        L = finB.pop(0) if finB and s > F else []

        def finb(sg):
            g = 0
            for x in L[:-1]:
                g = sg.place(x, g, lo=g)
        g1.half(a, 1, dma=d0, rdg=g0, extra=finb)
        a("s_waitcnt lgkmcnt(0)")
        g0.half(a, 0, dma=d1, adv=s < E - 1, extra=lambda sg: sg.end[sg.n - 1].extend(L[-1:]))
        q.push('ob', len(L[-1:]))
    oproj.out_off(a, True, 4)
    gh.tail(a, bar=False)
    st(a)
    a("s_waitcnt vmcnt(0)")
    st(a)
    for L in zip(*oproj.finish(oproj.AA, True, 4)):
        for x in L:
            a(x)
    st(a)
    if stamp:
        a("s_waitcnt vmcnt(0)")
    st(a)
    st.flush(a)
    return fin(a)


def fin(a):
    a.label("Lend")
    a("s_endpgm")
    t = a.finish()
    for fl, pat in (('x7rd', "ds_read"), ('x7mf', "v_mfma"), ('x7dma', " lds")):
        if fl in MFL:
            h, r = t.split("Lp7_loop:")
            b, r = r.split("s_cbranch_scc1 Lp7_loop", 1)
            t = h + "Lp7_loop:" + "\n".join(l for l in b.split("\n") if pat not in l) + "s_cbranch_scc1 Lp7_loop" + r
    if 'nobar' in MFL:
        t = t.replace("s_barrier", "s_nop 0")
    if 'nox' in MFL:
        t = "\n".join(l for l in t.split("\n") if not (l.rstrip().endswith(" lds") and "s[8:11]" in l))
    if 'now' in MFL:
        t = "\n".join(l for l in t.split("\n") if not (l.rstrip().endswith(" lds") and "s[12:15]" in l))
    if 'nodma' in MFL:
        t = "\n".join(l for l in t.split("\n") if not l.rstrip().endswith(" lds"))
    return t.replace("CODE_KB", os.environ.get("CODE_KB", "70"))
```

```python
from lib import *
from gemm4 import *
import attn4
from attn4 import Oreg, aQ, vO, CST

xv, wv, rd = 4, 8, 16
aSave = 222
aZ = 236
A0 = 32
sXA, sXB, sW = 26, 27, 28
C3, L3 = [int(x) for x in os.environ.get('KS3', '1,2').split(',')]
KX, KW = KSeq(52, 16, 29, C3, L3), KSeq(54, 16, 56, C3, L3)
XBASE, XS0 = 64 * KB, 1


def make():
    g = Gemm()
    g.name = "p3"
    RX, RW = Ring(3, 32 * KB, 88), Ring(3, 16 * KB, 68)
    RX.regs, RW.regs = [rd, rd + 1], list(range(rd + 2, rd + 6))
    g.rings = [RX, RW]
    g.xrd, g.wrd = [(rd, rd + 1)], list(range(rd + 2, rd + 6))
    g.xfr = [(0, 2048 * i) for i in range(4)]
    g.wfr = [(ni & 3, (ni >> 2) * 8192) for ni in range(8)]
    g.mf = [(('v', A0 + 4 * (8 * mi + ni)), mi, ni, 'wx') for ni in range(8) for mi in range(4)]
    g.fx, g.fw = 0, 32
    g.sCnt = 35
    ld = lambda v, s, o, j: "buffer_load_dwordx4 v%d, s[%d:%d], s%d offen offset:%d lds" % (v + j, s, s + 3, o, 1024 * j)
    g.dma = [
        (RW, 0, [ld(wv, 20, sW, j) for j in range(4)],
         KW.step() + ["s_lshl_b32 s%d, s%d, 19" % (sW, KW.k)]),
        (RX, 0, [ld(xv, 8, sXA, j) for j in range(4)], []),
        (RX, 4096, [ld(xv, 8, sXB, j) for j in range(4)],
         KX.step() + ["s_lshl_b32 s29, s%d, 7" % KX.k, "s_or_b32 s%d, s30, s29" % sXA, "s_or_b32 s%d, s31, s29" % sXB]),
    ]
    return g


def lanes(a, T):
    for i in range(4):
        a("v_accvgpr_write_b32 a%d, 0" % (aZ + i))
        a("v_accvgpr_write_b32 a%d, v%d" % (attn4.aOne + i, T + 3) if i else "v_mov_b32 v%d, 0x3f803f80\nv_accvgpr_write_b32 a%d, v%d" % (T + 3, attn4.aOne, T + 3))
    lane_setup(a, T)
    a("v_lshlrev_b32 v%d, 2, v%d" % (T + 2, T))
    a("v_add_u32 v%d, s%d, v%d" % (T + 2, S_WAVE, T + 2))
    a("v_lshl_add_u32 v%d, v%d, 11, v%d" % (T + 2, T + 2, T + 1))
    for j in range(4):
        a("v_add_u32 v%d, %d, v%d" % (T + 3, (32 * j) * 2048 - 1024 * j, T + 2))
        a("v_accvgpr_write_b32 a%d, v%d" % (aSave + j, T + 3))
    a("v_lshrrev_b32 v%d, 2, v%d" % (T + 2, T))
    a("v_and_b32 v%d, 3, v%d" % (T + 3, T))
    a("v_lshl_add_u32 v%d, v%d, 3, v%d" % (T + 2, T + 2, T + 3))
    a("s_and_b32 s4, s%d, 1" % S_WAVE)
    a("s_lshl_b32 s4, s4, 18")
    a("s_lshr_b32 s5, s%d, 1" % S_WAVE)
    a("s_lshl_b32 s5, s5, 7")
    a("s_add_u32 s4, s4, s5")
    a("s_lshl_b32 s5, s%d, 8" % attn4.sHead)
    a("s_add_u32 s4, s4, s5")
    a("v_lshl_add_u32 v%d, v%d, 13, v%d" % (T + 2, T + 2, T + 1))
    a("v_add_u32 v%d, s4, v%d" % (T + 2, T + 2))
    for j in range(4):
        a("v_add_u32 v%d, %d, v%d" % (T + 3, (16 * (j & 1) + 4 * (j >> 1)) * 8192 - 1024 * j, T + 2))
        a("v_accvgpr_write_b32 a%d, v%d" % (aSave + 4 + j, T + 3))
    t = T + 4
    a("s_lshl_b32 s4, s%d, 13" % S_WAVE)
    a("s_add_u32 s4, s4, %d" % (XBASE + XS0 * 32 * KB))
    xread_base(a, t, t + 1, T, "s4")
    wread_base(a, [t + 2 + i for i in range(4)], range(4), T, "0")
    for i in range(6):
        a("v_accvgpr_write_b32 a%d, v%d" % (aSave + 8 + i, t + i))


def setup(a, g):
    RX, RW = g.rings
    for i in range(8):
        a("v_accvgpr_read_b32 v%d, a%d" % (xv + i, aSave + i))
    srd(a, 8, P_AX, 2048 * 2048)
    srd(a, 20, P_WQ, 1024 * 8192)
    a("s_and_b32 s4, s2, %d" % (7 if int(os.environ.get("ROT3", 1)) else 0))
    a("s_lshl_b32 s4, s4, 1")
    a("s_lshr_b32 s5, s2, 6")
    a("s_lshr_b32 s30, s2, 4")
    a("s_add_u32 s5, s5, s30")
    for x in KX.init("s5", "s4") + KW.copy(KX):
        a(x)
    a("s_lshl_b32 s29, s%d, 7" % KX.k)
    a("s_lshl_b32 s%d, s%d, 19" % (sW, KW.k))
    a("s_lshl_b32 s30, s%d, 18" % attn4.sPair)
    attn4.long_blk(a, 31)
    a("s_lshl_b32 s31, s31, 18")
    a("s_or_b32 s%d, s30, s29" % sXA)
    a("s_or_b32 s%d, s31, s29" % sXB)
    a("s_lshl_b32 s%d, s%d, 12" % (RW.sWr, S_WAVE))
    a("s_lshl_b32 s%d, s%d, 13" % (RX.sWr, S_WAVE))
    a("s_add_u32 s%d, s%d, %d" % (RX.sWr, RX.sWr, XBASE + XS0 * 32 * KB))


def restore(a):
    for i in range(6):
        a("v_accvgpr_read_b32 v%d, a%d" % (rd + i, aSave + 8 + i))


def xitems(g, s):
    off = (((XS0 + s) % 3) - XS0) * 32 * KB
    return g.group_items(g.dma[1], off) + g.group_items(g.dma[2], off)


def witems(g, s):
    return g.group_items(g.dma[0], s * 16 * KB)


def epilogue():
    order, epi = [], []
    for g in range(4):
        for ds in range(4):
            b = A0 + 4 * (8 * g + 2 * ds)
            idx = [(2 * ds) * 4 + g, (2 * ds + 1) * 4 + g]
            order += idx
            L = ["v_pk_mul_f32 v[%d:%d], v[%d:%d], s[6:7]" % (b + e, b + e + 1, b + e, b + e + 1) for e in range(0, 8, 2)]
            L += ["v_cvt_pk_bf16_f32 v%d, v%d, v%d" % (b + e, b + 2 * e, b + 2 * e + 1) for e in range(4)]
            L += ["v_accvgpr_write_b32 a%d, v%d" % (aQ + 4 * (4 * g + ds) + e, b + e) for e in range(4)]
            if ds & 1:
                z = vO + (16 * (2 * g + (ds >> 1)) + 32) % 128
                L.append("v_mfma_f32_32x32x16_bf16 v[%d:%d], a[%d:%d], a[%d:%d], 0" % (z, z + 15, aZ, aZ + 3, aZ, aZ + 3))
            epi.append((idx, L))
    return order, epi
```

```python
from lib import *
from gemm4 import *
import proj4, bfront, attn4, oproj, qproj

MFL = set(os.environ.get("MFLAGS", "").split(","))


def gen(stamp=False):
    a = Asm()
    st = Stamps(stamp, 0)
    a("s_cmp_ge_u32 s2, 256")
    a("s_cbranch_scc1 Lend")
    a("s_load_dwordx16 s[64:79], s[0:1], 0")
    a("s_load_dwordx8 s[80:87], s[0:1], 64")
    a("v_lshrrev_b32 v2, 6, v0")
    a("v_and_b32 v1, 63, v0")
    a("v_readfirstlane_b32 s%d, v2" % S_WAVE)
    a("v_lshlrev_b32 v2, 4, v1")
    if 'ipf' in MFL:
        a("s_getpc_b64 s[6:7]")
        a("s_lshr_b32 s4, s2, 3")
        a("s_lshl_b32 s4, s4, 2")
        a("s_add_u32 s4, s4, s%d" % S_WAVE)
        a("s_min_u32 s4, s4, CODE_KB")
        a("s_lshl_b32 s4, s4, 10")
        a("v_add_u32 v3, s4, v2")
        a("global_load_dwordx4 v[4:7], v3, s[6:7]")
    st(a)
    gk, gv = proj4.make('wx'), proj4.make('xw')
    b0, b1 = bfront.make(0), bfront.make(1)
    g3 = qproj.make()
    if 'nost' in MFL:
        t0 = proj4.trickle
        proj4.trickle = lambda k, a, b: [x.replace("s%d," % proj4.sSt, "0x70000000,").replace("s_add_u32 s60, 0x70000000, ", "s_mov_b32 s60, 0x70000000 ; ") for x in t0(k, a, b)]
    NK = [int(x) for x in os.environ.get("NK", "12").split(",")]
    NW = int(os.environ.get("NW", 8))
    TR3 = [int(x) for x in os.environ.get("TR3", "8,0,8,0,8").split(",")]
    assert NW >= 8 and NW + sum(TR3) == 32
    a("s_bfe_u32 s59, s2, 0x30003")
    a("s_lshr_b32 s4, s2, 7")
    a("s_lshl_b32 s4, s4, 3")
    a("s_add_u32 s59, s59, s4")
    a("s_lshr_b32 s4, s2, 3")
    a("s_xor_b32 s4, s4, s2")
    a("s_bitcmp1_b32 s4, 3")
    a("s_cbranch_scc1 Lp2")

    def common(c):
        attn4.ids(c)
        oproj.lanes(c, 24)
        qproj.lanes(c, 24)
    proj4.setup(a, gk, "s59")
    srd(a, S_FLG, P_WS, 0x40000, WS_FLG)
    tag_make(a, 0)
    for x in proj4.xitems(gk, 0) + proj4.witems(gk, 0):
        a(x)
    c = Col()
    proj4.read_bases(c, gk)
    common(c)
    proj4.out_base(c)
    gk.init(c, [proj4.XS0, 0])
    for x in weave_lines(c, proj4.xitems(gk, 1) + proj4.witems(gk, 1), 0.2, 1.0):
        a(x)
    tag_make(a, 1, 32)
    st(a)
    k0 = st.k
    gk.pro(a, 16, dma=proj4.xitems(gk, 2))
    a("s_mov_b32 s%d, 6" % gk.sCnt)
    gk.loop(a, 8)
    gk.half(a, 1, dma=gk.dma_items())
    if 'st2' in MFL:
        st(a)
    order, epi = proj4.pack('k', NK[0])
    rest = gk.bm(a, order, 18, 18, N=8, dma=gk.dma_items(), nxt=gv, epi=epi, defer=True)
    assert all(kind(x) == 'c' for x in rest), rest
    if 'st2' in MFL:
        st(a)
    order, held = proj4.v_order(NK[0])
    sts = [(proj4.trickle('k', k, k + 1), held[proj4.ORDER['k'][k]]) for k in range(NK[0], 32)]
    gv.bm(a, order, 20, 18, N=8, first=True, dma=gv.dma_items(), nxt=gv, st2=sts, carry=rest)
    a("s_add_u32 s%d, s%d, 0x4000" % (proj4.sSt, proj4.sSt))
    a("s_waitcnt lgkmcnt(0)")
    gv.half(a, 0, adv=True)
    st(a)
    a("s_mov_b32 s%d, 4" % gv.sCnt)
    gv.loop(a, 8)
    gv.iter(a, None, proj4.witems(gv, 0) + qproj.witems(g3, 0) + qproj.witems(g3, 1), after_bar=lambda: qproj.setup(a, g3))
    gv.bar(a, 8)
    gv.half(a, 1, dma=qproj.xitems(g3, 0))
    order, epi = proj4.pack('v', NW)
    gv.bm(a, order, 18, epi=epi, dma=qproj.xitems(g3, 1) + qproj.witems(g3, 2) + qproj.xitems(g3, 2), mid=lambda: tag_load(a, 22))
    qk = VmQ()
    for t, n in (('w0', 4), ('w1', 4), ('x0', 8), ('t', 1), ('st', NW), ('x1', 8), ('w2', 4), ('x2', 8)):
        qk.push(t, n)
    a("s_lshl_b32 s34, s%d, 4" % proj4.sN0)
    a("s_add_u32 s34, s34, s%d" % proj4.sM0)
    a("s_lshl_b32 s34, s34, 7")
    a("s_branch Lp3")
    a.label("Lp2")
    st.k = k0 - 1
    bfront.setup(a, b0, "s59")
    srd(a, S_FLG, P_WS, 0x40000, WS_FLG)
    a("s_cmp_ge_u32 s%d, 2" % S_WAVE)
    a("s_cbranch_scc1 Lp2_r1")
    for rh, g in enumerate((b0, b1)):
        if rh:
            a.label("Lp2_r1")
            st.k = k0 - 1
        nx = 8 if rh else 9
        PFB, PF0 = int(os.environ.get("PFB", 4)), os.environ.get("PF0", "")
        a("s_and_b32 s4, s2, 7")
        a("s_lshl_b32 s4, s4, 4")
        a("s_add_u32 s4, s4, s59")
        a("s_lshl_b32 s4, s4, 2")
        a("s_add_u32 s4, s4, s%d" % S_WAVE)
        a("s_lshl_b32 s51, s4, 13")

        def pf0():
            a("s_lshr_b32 s56, s51, 1")
            srd(a, 52, P_CKV, 2 * MB)
            for i in range(4):
                a("buffer_load_dwordx4 a[192:195], v2, s[52:55], s56 offen offset:%d ; @dummy" % (1024 * i))
            a("s_add_u32 s56, s51, 4096")
            srd(a, 52, P_WUK, 4 * MB)
            for i in range(8):
                a("buffer_load_dwordx4 a[192:195], v2, s[52:55], %s offen offset:%d ; @dummy" % ("s56" if i >= 4 else "s51", 1024 * (i & 3)))
        if PF0 == "a":
            pf0()
        for x in bfront.xitems(g, 0) + bfront.witems(g, 0):
            a(x)
        if PF0 == "b":
            pf0()
        TLB = int(os.environ.get("TLB", 0))
        if TLB:
            a("v_lshlrev_b32 v3, %d, v1" % TLB)
            for p, n in ((P_AX, 4), (P_WQ, 8), (P_WUV, 4), (P_WO, 8), (P_BWO, 2), (P_OUT, 8)):
                srd(a, 52, p, n * MB)
                a("buffer_load_dword a192, v3, s[52:55], 0 offen ; @dummy")
        c = Col()
        bfront.read_bases(c)
        common(c)
        bfront.pre(c)
        g.init(c)
        if PFB:
            srd(c, 52, P_WUV, 4 * MB)
            c("s_lshl_b32 s1, s51, 1")
            c("s_mov_b32 s56, s51")
            c("s_mov_b32 s0, 0")
            pf1 = ["buffer_load_dwordx4 a[192:195], v2, s[52:55], s51 offen offset:%d ; @dummy" % (1024 * i) for i in range(PFB)]
            assert PFB == 4
            g.pf = pf1 + ["s_add_u32 s51, s51, 4096", "s_add_u32 s0, s0, 1",
                          "s_cmp_eq_u32 s0, 2\ns_cselect_b32 s52, s%d, s52\ns_cselect_b32 s53, s%d, s53\ns_cselect_b32 s51, s1, s51\n"
                          "s_cselect_b32 s54, %d, s54" % (P_WQ, P_WQ + 1, (8 * MB) if os.environ.get("PFQ", "0") == "1" else 0),
                          "s_cmp_eq_u32 s0, 6\ns_cselect_b32 s52, s%d, s52\ns_cselect_b32 s53, s%d, s53\ns_cselect_b32 s51, s56, s51\n"
                          "s_cselect_b32 s54, %d, s54" % (P_AX, P_AX + 1, (4 * MB) if os.environ.get("PFQ", "0") == "1" else 0),
                          "s_cmp_eq_u32 s0, 8\ns_cselect_b32 s54, 0, s54"]
        for x in weave_lines(c, bfront.xitems(g, 1) + bfront.witems(g, 1), 0.2, 1.0):
            a(x)
        st(a)
        g.pro(a, nx + 6 + (12 if PF0 == 'b' else 0) + (6 if TLB else 0), dma=bfront.xitems(g, 2))
        a("s_mov_b32 s%d, 13" % g.sCnt)
        g.loop(a, nx)
        if 'st2' in MFL:
            st(a)
            st(a)
        g.iter(a, None, bfront.witems(g, 0), after_bar=lambda: qproj.setup(a, g3))
        g.bar(a, 0)
        a("s_mov_b32 s6, 0x%08x" % f32bits(bfront.CB))
        a("s_mov_b32 s7, s6")
        g.half(a, 1)
        order, epi = bfront.pack(g, rh)
        g.bm(a, order, 16, epi=epi, dma=qproj.witems(g3, 0) + qproj.witems(g3, 1) + qproj.xitems(g3, 0), mid=lambda: tag_load(a, 22))
        a("s_waitcnt lgkmcnt(0)")
        a("s_barrier")
        st(a)
        if not rh:
            a("s_branch Lp2_at")
    a.label("Lp2_at")
    c = Col()
    bfront.attend(c)
    for x in weave_lines(c, qproj.xitems(g3, 1) + qproj.witems(g3, 2) + qproj.xitems(g3, 2), 0.0, 0.7):
        a(x)
    qb = VmQ()
    for t, n in (('t', 1), ('w0', 4), ('w1', 4), ('x0', 8), ('x1', 8), ('w2', 4), ('x2', 8), ('st', 8)):
        qb.push(t, n)
    a("s_lshl_b32 s34, s%d, 4" % bfront.sRb)
    a("s_add_u32 s34, s34, s%d" % bfront.sHp)
    a("s_lshl_b32 s34, s34, 7")
    a("s_add_u32 s34, s34, %d" % F_OB)
    a("s_mov_b32 s%d, 0x70000000" % proj4.sSt)
    a.label("Lp3")
    st(a)
    qproj.restore(a)
    g3.init(a, [qproj.XS0, 0])
    need = lambda *t: min(qk.need(*t), qb.need(*t))

    def push(t, n):
        qk.push(t, n), qb.push(t, n)
    cum = [NW + sum(TR3[:k]) for k in range(len(TR3) + 1)]
    g3.pro(a, need('w0', 'x0'), dma=proj4.trickle('v', cum[0], cum[1]))
    push('st', TR3[0])
    last = len(TR3) + 1
    for s in range(1, last + 1):
        N = need('w%d' % s, 'x%d' % s, s, *(['st'] if s == last else []))
        g3.iter(a, N, g3.dma_items() + (proj4.trickle('v', cum[s], cum[s + 1]) if s < len(TR3) else []),
                after_bar=(lambda: (tag_get(a, 22, 12), signal(a, 22, ["s34"], 3))) if s == last else None)
        push(s + 2, 12)
        if s < len(TR3):
            push('st', TR3[s])
    if last < 12:
        a("s_mov_b32 s%d, %d" % (g3.sCnt, 12 - last))
        g3.loop(a, 12)
    else:
        g3.bar(a, 12)

    def ids():
        a("s_lshr_b32 s34, s%d, 1" % attn4.sHead)
        a("s_lshl_b32 s34, s34, 11")
        for x in flag_addr(3, 8):
            a(x)
    g3.iter(a, None, [flag_load(22, "s34", 3)] + g3.dma_items(), after_bar=ids)

    def go():
        flag_check(a, 22, "s34", 3)
        attn4.kv_setup(a)
        oproj.ids(a)
    it = attn4.kv_prologue_items(0)
    cut = [i for i, x in enumerate(it) if "m0" in x][1]
    g3.iter(a, 12, it[:cut], after_bar=go)
    g3.bar(a, 4)
    a("s_mov_b32 s6, 0x%08x" % f32bits(attn4.CST))
    a("s_mov_b32 s7, s6")
    g3.half(a, 1, dma=it[cut:])
    order, epi = qproj.epilogue()
    g3.bm(a, order, 16, epi=epi, bar=False)
    st(a)
    attn4.setup1(a)
    st(a)
    g6, g7 = oproj.make("p6", oproj.AB), oproj.make("p7", oproj.AA)

    class H:
        q0 = [t for t in (('K', 0), ('K', 1), ('V', 0)) for _ in range(4)]

        @staticmethod
        def after_d2():
            a("s_lshr_b32 s91, s%d, 1" % oproj.sRb)
            a("s_lshl_b32 s91, s91, 11")
            a("s_add_u32 s91, s91, %d" % F_OB)
            for x in flag_addr(14):
                a(x)

        @staticmethod
        def pre_e1():
            return [flag_load(12, "s91", 14)]

        @staticmethod
        def at_e1():
            flag_check(a, 12, "s91", 14)
            for j in range(4):
                a("v_accvgpr_read_b32 v%d, a%d" % (oproj.wv + j, oproj.aSave + j))
            for x in oproj.job_w(False) + oproj.job_x(False):
                a(x)

        @staticmethod
        def e1_items():
            return oproj.stage_items(g6, 0, 'wx')

        @staticmethod
        def e2_items():
            return oproj.stage_items(g6, 1, 'wx')
    attn4.attention(a, st, H)
    st(a)
    gh = oproj.make("ph", oproj.AA, True)
    q = VmQ()
    for s in range(2):
        q.push(s, 8)
    q.push('ctx', 8)
    oproj.read_bases(a, 4)
    g6.init(a, [3])
    g6.pro(a, q.need(0), dma=oproj.stage_items(g6, 2, 'wx') + oproj.stage_items(g6, 3, 'wx'))
    q.push(2, 8)
    q.push(3, 8)

    def sig_ctx():
        a("s_lshl_b32 s4, s%d, 7" % attn4.sHead)
        a("s_lshl_b32 s5, s%d, 12" % attn4.sPair)
        a("s_add_u32 s6, s4, %d" % F_CTX)
        attn4.long_blk(a, 7)
        a("s_lshl_b32 s7, s7, 12")
        a("s_add_u32 s7, s7, s6")
        a("s_add_u32 s6, s6, s5")
        signal(a, 6, ["s6", "s7"])
        a("s_lshl_b32 s91, s%d, 12" % oproj.sRb)
        a("s_add_u32 s91, s91, %d" % F_CTX)
        for x in flag_addr(14, 32):
            a(x)
        oproj.xch_srd(a)
    VS = int(os.environ.get("VS", 6))
    for s in range(1, VS):
        N = q.need(1, 'ctx') if s == 1 else q.need(s)
        if s == 1:
            q.push('sig', 2)
        it = g6.dma_items() if s < 5 else (oproj.job_w(True) if s == 5 else []) + g7.group_items(g7.dma[0])
        q.push(s + 3, 8 if s < 5 else 4)
        if s == VS - 1:
            it = it + [flag_load(6, "s91", 14)]
            q.push('fl', 1)
        g6.iter(a, N, it, after_bar=sig_ctx if s == 1 else None)
    a("s_waitcnt vmcnt(%d)" % q.need(VS, 'fl'))
    a("v_cmp_ne_u64 vcc, s[%d:%d], v[6:7]" % (S_TAG, S_TAG + 1))
    a("v_cndmask_b32_e64 v8, 0, 1, vcc")
    a("v_lshlrev_b32 v9, 2, v0")
    a("ds_write_b32 v9, v8")
    a("v_lshlrev_b32 v9, 4, v1")
    a("s_waitcnt lgkmcnt(0)")
    a("s_barrier")
    a("ds_read_b128 v[160:163], v9")
    for x in oproj.job_w(True) if VS == 5 else []:
        a(x)
    a("s_waitcnt lgkmcnt(0)")
    a("v_or3_b32 v160, v160, v161, v162")
    a("v_or_b32 v160, v160, v163")
    a("v_cmp_ne_u32 vcc, 0, v160")
    if 'only7' not in MFL:
        a("s_cbranch_vccnz Lp6_late ; @late")
    k0 = st.k
    q0 = list(q.q)
    for late in (False, True):
        q.q = list(q0)
        if late:
            a.label("Lp6_late")
            st.k = k0
        else:
            for x in oproj.job_x(True):
                a(x)
        for s in range(VS, 8):
            if s > VS:
                g6.bar(a, q.need(s))
            it = g7.group_items(g7.dma[0]) if late else g7.dma_items()
            if s == VS and not late:
                for t in range(VS + 2, 7, -1):
                    it = oproj.stage_items(g7, t, 'x') + it
                for t in range(8, VS + 3):
                    q.push(t, 4)
            q.push(s + 3, 4 if late else 8)
            if late and s == 7:
                it += [flag_load(6, "s91", 14)]
            d0, d1 = g6.split(it)
            g6.half(a, 1, dma=d0)
            a("s_waitcnt lgkmcnt(0)")
            g6.half(a, 0, dma=d1, adv=True)
        if late:
            a("s_waitcnt vmcnt(0) lgkmcnt(0)")
            a("s_barrier")
            st(a)
            flag_check(a, 6, "s91", 14)
            st(a)
            for x in oproj.job_x(True):
                a(x)
            it = []
            for s in range(8, 12):
                it += oproj.stage_items(g7, s, 'x' if s < 11 else 'wx')
            g6.half(a, 1, rd=False, dma=it)
            for x in oproj.send_items(oproj.AB, False, 6):
                a(x)
            a("s_waitcnt vmcnt(24)")
            a("s_barrier")
            for x in g7.reads(0):
                a(x)
            a("s_waitcnt lgkmcnt(0)")
            g7.half(a, 0, first=True, adv=True)
        else:
            g6.bar(a, q.need(8))
            st(a)
            st(a)
            g6.half(a, 1, dma=g7.dma_items())
            a("s_waitcnt lgkmcnt(0)")
            it = oproj.send_items(oproj.AB, False, 6)
            nsc = [i for i, x in enumerate(it) if kind(x) == 'd'][0]
            for x in it[:nsc]:
                a(x)
            g7.half(a, 0, first=True, adv=True, extra=lambda sg: place_dma(sg, it[nsc:], 5, 14))
            a("s_branch Lp7")
    a.label("Lp7")
    st(a)
    DL = oproj.DL
    F = 40 - DL
    a("s_mov_b32 s%d, %d" % (g7.sCnt, F - 4 - 9))
    g7.loop(a, 16)
    if 'st2' in MFL:
        st(a)
    q = VmQ()
    for s in range(F - 4, F - 1):
        q.push(s, 8)
    E = F + 2 * DL
    finB = []
    for s in range(F - 4, E):
        tags, it, ab = [s], [], None
        if s == F - 4:
            def ab():
                oproj.flag_pos(a, False, True, 6)
                signal(a, 6, ["s6"])
                oproj.flag_pos(a, False, False, 90)
                oproj.out_setup(a)
        if s == F - 3:
            it += [flag_load(6, "s90")]
        if s == F - 2:
            tags.append('fl')
            ab = lambda: flag_check(a, 6, "s90")
            it += oproj.recv_items(False, 6)
        if s == F:
            tags.append('rcv')

            def ab():
                oproj.out_off(a, False, 4)
                oproj.flag_pos(a, True, True, 89)
                oproj.flag_pos(a, True, False, 90)
            finB = oproj.finish(oproj.AB, False, 4)
        if s == F + 3:
            tags.append('snd')
            ab = lambda: signal(a, 6, ["s89"])
        if s == E - 3:
            it += [flag_load(6, "s90")]
        if s == E - 2:
            tags.append('fl')
            ab = lambda: flag_check(a, 6, "s90")
            it += oproj.recv_items(True, 6)
        N = q.need(*tags)
        if s == F - 4 or s == F + 3:
            q.push('sig', 1)
        for x in it:
            if kind(x) == 'd':
                q.push('fl' if "dwordx2" in x else 'rcv', 1)
        if s + 3 < F:
            it += g7.dma_items()
            q.push(s + 3, 8)
        elif s + 3 < E:
            if s + 3 == F:
                it += oproj.to_half()
            if s + 3 == F + DL:
                it += oproj.to_partner()
            it += gh.dma_items()
            q.push(s + 3, 6)
        g1, g0 = (g7 if s - 1 < F else gh), (g7 if s < F else gh)
        if s > F - 4:
            g7.bar(a, N)
        else:
            assert N >= 16
        if ab:
            ab()
        d0, d1 = g7.split(it)
        if s == F:
            snd = oproj.send_items(oproj.AA, True, 6)
            nsc = [i for i, x in enumerate(snd) if kind(x) == 'd'][0]
            d0, d1 = it + snd[:nsc], snd[nsc:nsc + 4]
            q.push('snd', 4)
        if s == F + 1:
            d0, d1 = snd[nsc + 4:], it
            q.q = q.q[:-6] + ['snd'] * 4 + q.q[-6:]

        L = finB.pop(0) if finB and s > F else []

        def finb(sg):
            g = 0
            for x in L[:-1]:
                g = sg.place(x, g, lo=g)
        g1.half(a, 1, dma=d0, rdg=g0, extra=finb)
        a("s_waitcnt lgkmcnt(0)")
        g0.half(a, 0, dma=d1, adv=s < E - 1, extra=lambda sg: sg.end[sg.n - 1].extend(L[-1:]))
        q.push('ob', len(L[-1:]))
    oproj.out_off(a, True, 4)
    gh.tail(a, bar=False)
    st(a)
    a("s_waitcnt vmcnt(0)")
    st(a)
    for L in zip(*oproj.finish(oproj.AA, True, 4)):
        for x in L:
            a(x)
    st(a)
    if stamp:
        a("s_waitcnt vmcnt(0)")
    st(a)
    st.flush(a)
    return fin(a)


def fin(a):
    a.label("Lend")
    a("s_endpgm")
    t = a.finish()
    for fl, pat in (('x7rd', "ds_read"), ('x7mf', "v_mfma"), ('x7dma', " lds")):
        if fl in MFL:
            h, r = t.split("Lp7_loop:")
            b, r = r.split("s_cbranch_scc1 Lp7_loop", 1)
            t = h + "Lp7_loop:" + "\n".join(l for l in b.split("\n") if pat not in l) + "s_cbranch_scc1 Lp7_loop" + r
    if 'nobar' in MFL:
        t = t.replace("s_barrier", "s_nop 0")
    if 'nox' in MFL:
        t = "\n".join(l for l in t.split("\n") if not (l.rstrip().endswith(" lds") and "s[8:11]" in l))
    if 'now' in MFL:
        t = "\n".join(l for l in t.split("\n") if not (l.rstrip().endswith(" lds") and "s[12:15]" in l))
    if 'nodma' in MFL:
        t = "\n".join(l for l in t.split("\n") if not l.rstrip().endswith(" lds"))
    return t.replace("CODE_KB", os.environ.get("CODE_KB", "70"))
```

```python
from lib import *
from gemm4 import *

FL = set(os.environ.get("AFLAGS", "").split(","))
THR = float(os.environ.get("LTHR", 2.0 ** 64))
AH = int(os.environ.get("AH", 11))
EB = int(os.environ.get("EB", 2))
WG_ = int(os.environ.get("WGRP", 8))

vLane, vL16, vK, vV, vNEG = 1, 2, 3, 4, 5
vT = 6
vNM = 16
vP = 32
vS = 64
vO = 128
aF = 0
aQ = 128
aL = 192
aOne = 208
sHead, sPair = 24, 25
sKV = 20
sCtx = 16
sKm, sVm, sKo, sVo = 26, 27, 28, 29
sMa, sMb, sCnt, sFail = 30, 31, 88, 89
sMask = 32
sT0, sT1 = 4, 5
CST = (128 ** -0.5) * math.log2(math.e)


def Oreg(g, db):
    return ('v', vO + 4 * (8 * g + db))


def Qreg(g, ds):
    return ('a', aQ + 4 * (4 * g + ds))


def ids(a):
    a("s_and_b32 s%d, s2, 7" % sHead)
    a("s_lshr_b32 s4, s2, 6")
    a("s_lshl_b32 s4, s4, 3")
    a("s_add_u32 s%d, s%d, s4" % (sHead, sHead))
    a("s_lshr_b32 s4, s2, 3")
    a("s_and_b32 s%d, s4, 6" % sPair)
    a("s_xor_b32 s4, s4, s2")
    a("s_bfe_u32 s4, s4, 0x10003")
    a("s_add_u32 s%d, s%d, s4" % (sPair, sPair))


def long_blk(a, d):
    a("s_and_b32 s%d, s%d, 1" % (d, sPair))
    a("s_lshl_b32 s%d, s%d, 1" % (d, d))
    a("s_add_u32 s%d, s%d, 14" % (d, d))
    a("s_sub_u32 s%d, s%d, s%d" % (d, d, sPair))


def kv_dma(which):
    m, o = (sKm, sKo) if which == 'K' else (sVm, sVo)
    return ["s_mov_b32 m0, s%d" % m] + \
           ["buffer_load_dwordx4 v%d, s[%d:%d], s%d offen offset:%d%s lds" % (vL16, sKV, sKV + 3, o, 1024 * j, SC1L) for j in range(4)]


def gray_mask(t):
    return 0x4000 if t % 2 == 0 else 0x8000


def kv_setup(a):
    a("s_lshl_b32 s4, s%d, 20" % sHead)
    long_blk(a, 5)
    a("s_add_u32 s5, s5, 1")
    a("s_lshl_b32 s5, s5, 16")
    srd(a, sKV, P_WS, "s5", WS_KV, 4)
    a("s_lshl_b32 s%d, s%d, 12" % (sKo, S_WAVE))
    a("s_add_u32 s%d, s%d, 0xc000" % (sKm, sKo))
    a("s_add_u32 s%d, s%d, 0x10000" % (sVm, sKo))
    a("s_add_u32 s%d, s%d, 0x4000" % (sVo, sKo))


NPF = 0 if 'nopf' in FL else 10


def pf_setup(a):
    a("s_lshl_b32 s4, s2, 2")
    a("s_add_u32 s4, s4, s%d" % S_WAVE)
    a("s_lshl_b32 s6, s4, 13")
    a("s_lshl_b32 s7, s4, 11")
    srd(a, 8, P_WO, 8 * MB)
    srd(a, 12, P_BWO, 2 * MB)


def pf_items():
    L = []
    for i in range(8):
        if i == 4:
            L.append("s_add_u32 s6, s6, 4096")
        L.append("buffer_load_dwordx4 a[64:67], v%d, s[8:11], s6 offen offset:%d ; @dummy" % (vL16, (i % 4) * 1024))
    for i in range(2):
        L.append("buffer_load_dwordx4 a[64:67], v%d, s[12:15], s7 offen offset:%d ; @dummy" % (vL16, i * 1024))
    return L if NPF else []


def kv_prologue_items(part=None):
    L = []
    tk = tv = 0
    for i, w in enumerate("KKVKVKV"):
        if i == 3 and part is not None:
            if part == 0:
                return L
            L = []
        L += kv_dma(w)
        if w == 'K':
            L += ["s_xor_b32 s%d, s%d, 0x%x" % (sKm, sKm, gray_mask(tk)), "s_add_u32 s%d, s%d, 0x8000" % (sKo, sKo)]
            tk += 1
        else:
            L += ["s_xor_b32 s%d, s%d, 0x%x" % (sVm, sVm, gray_mask(tv)), "s_add_u32 s%d, s%d, 0x8000" % (sVo, sVo)]
            tv += 1
    return L


def qk_frags(kindq, half, sb):
    F = []
    if kindq is None:
        return F
    dbl = kindq[0] == 'D'
    gs = [0, 1, 2, 3] if dbl else [2, 3]
    if kindq.endswith("'"):
        gs = gs[1:]
    c0 = kindq.endswith("0")
    for jb in range(2 if dbl else 4):
        for ds in range(4):
            ms = []
            for g in gs:
                blk = (2 * g + jb) if dbl else (2 * (2 * (jb >> 1) + g - 2) + (jb & 1))
                ms.append((('v', sb + 4 * blk), Qreg(g, ds), ("0" if c0 else ('v', vNM + 4 * g)) if ds == 0 else None))
            F.append(('K', ((2 * half + jb) if dbl else jb) * 4096 + ds * 1024, ms))
    return F


def pv_frags(kindp, half, pb):
    F = []
    if kindp is None:
        return F, []
    dbl = kindp[0] == 'D'
    gs = [0, 1, 2, 3] if dbl else [2, 3]
    if kindp.endswith("'"):
        gs = gs[1:]
    sums = []
    for kc in range(1 if dbl else 2):
        for g in gs:
            pi = g if dbl else 2 * kc + g - 2
            sums.append(mfma(('a', aL + 4 * g), ('a', aOne), ('v', pb + 4 * pi)))
        for db in range(8):
            ms = [(Oreg(g, db), ('v', pb + 4 * (g if dbl else 2 * kc + g - 2)), None) for g in gs]
            F.append(('V', (half if dbl else kc) * 8192 + db * 1024, ms))
    return F, sums


def sm_items(sm, sb, pb):
    out = []
    if sm is None:
        return out
    for i in range(4):
        masks = []
        if sm != 'p':
            if sm[0] == 'D':
                gq, jbs = i, [2 * sm[1], 2 * sm[1] + 1]
                lvl = sm[1] >> 1
                if i >= 2:
                    gq = 99
            else:
                gq, jbs = i & 1, [4 * sm[1] + 2 * (i >> 1), 4 * sm[1] + 2 * (i >> 1) + 1]
                lvl = sm[1]
            if lvl > gq:
                continue
            if lvl == gq:
                for e, j16 in enumerate(jbs):
                    for r in range(4):
                        x = sb + 8 * i + 4 * e + r
                        m = sMask + 2 * (4 * (j16 & 3) + r)
                        masks.append((x, "v_cndmask_b32 v%d, v%d, v%d, s[%d:%d]" % (x, x, vNEG, m, m + 1)))
        exps = ["v_exp_f32 v%d, v%d" % (sb + 8 * i + e, sb + 8 * i + e) for e in range(8)]
        cvts = ["v_cvt_pk_bf16_f32 v%d, v%d, v%d" % (pb + 4 * i + e, sb + 8 * i + 2 * e, sb + 8 * i + 2 * e + 1) for e in range(4)]
        out.append((dict(masks), exps, cvts))
    return out


class Rnd:
    def __init__(self, par, qk, sm, pv, bar=False, issK=None, issV=None, togK=None, togV=None, togVpre=None):
        self.par, self.qk, self.sm, self.pv, self.bar = par, qk, sm, pv, bar
        self.issK, self.issV, self.togK, self.togV, self.togVpre = issK, issV, togK, togV, togVpre
        self.vm = None
        self.xdma = []
        self.xq = []
        self.after_bar = None
        self.first = False

    def frags(self):
        par = self.par
        Fq = qk_frags(self.qk, par ^ 1, vS + 32 * (par ^ 1))
        Fp, sums = pv_frags(self.pv, par ^ 1, vP + 16 * (par ^ 1))
        return Fq, Fp, sums


def fread(ring, off, slot, tag):
    return "ds_read_b128 %s, v%d offset:%d ; @%s" % (a4(aF + 4 * (slot % 16)), vK if ring == 'K' else vV, off, tag)


def tog(reg, m):
    return "v_xor_b32 v%d, %s, v%d" % (reg, m, reg)


def emit_round(a, R, nxt, ph, pend, extra_scal=None):
    Fq, Fp, sums = R.frags()
    F = Fq + Fp
    nF = len(F)
    Fn = []
    if nxt is not None:
        q, p, _ = nxt.frags()
        Fn = (q + p)[:AH]
    mf = []
    first = []
    lastu = {}
    si = 0
    i0 = 0
    if 'nochain' not in FL:
        while i0 < len(Fq):
            base = len(mf)
            for k in range(len(F[i0][2])):
                for e in range(4):
                    d, b, c = F[i0 + e][2][k]
                    lastu[i0 + e] = len(mf)
                    mf.append(mfma(d, ('a', aF + 4 * ((ph + i0 + e) % 16)), b, c))
            first += [base + e for e in range(4)]
            i0 += 4
    for i, (ring, off, ms) in enumerate(F):
        if i < i0:
            continue
        first.append(len(mf))
        for d, b, c in ms:
            mf.append(mfma(d, ('a', aF + 4 * ((ph + i) % 16)), b, c))
        lastu[i] = len(mf) - 1
        if ring == 'V' and si < len(sums):
            per = len(sums) * 8 // len(Fp)
            k = i - len(Fq)
            if (k % 8) < per:
                mf.append(sums[si])
                si += 1
    assert si == len(sums)
    sg = Seg(mf)
    n = sg.n
    if R.bar:
        if not EB or R.first:
            sg.pre.append("s_waitcnt vmcnt(%d)" % R.vm)
            sg.pre.append("s_barrier")
        sg.pre.append("AFTERBAR")
    if EB and nxt is not None and nxt.bar:
        sg.put(n - EB, "s_waitcnt vmcnt(%d)\ns_barrier" % R.vm)
        sg.used[n - EB] = 8
    grp = 4 if len(F[0][2]) >= 3 else WG_
    i = 0
    dead = {}
    while i < nF:
        gsz = 4 if len(F[i][2]) != 2 else WG_
        j = min(nF - 1, i + gsz - 1, i + AH - 3)
        for x in range(i, j + 1):
            dead[x] = first[i] - 2
        w = "WAIT f%d" % (ph + j)
        if first[i] == 0:
            sg.pre.append(w)
        else:
            sg.put(first[i] - 1, w)
        i = j + 1
    SM = sm_items(R.sm, vS + 32 * R.par, vP + 16 * R.par)
    nexp = 8 * len(SM)
    eg = []
    if nexp:
        last = 0
        k = 0
        for masks, exps, cvts in SM:
            for e, x in enumerate(exps):
                want = (k * (n - 2)) // nexp
                reg = int(x.split()[1][1:-1])
                want = max(want, last)
                if reg in masks:
                    want = max(want, 1)
                g = sg.place(x, want, lo=last)
                eg.append(g)
                last = g
                k += 1
    items = list(R.xdma)
    if R.issK is not None:
        items += kv_dma('K') + ["s_xor_b32 s%d, s%d, %s" % (sKm, sKm, R.issK), "s_add_u32 s%d, s%d, 0x8000" % (sKo, sKo)]
    if R.issV is not None:
        items += kv_dma('V') + ["s_xor_b32 s%d, s%d, %s" % (sVm, sVm, R.issV), "s_add_u32 s%d, s%d, 0x8000" % (sVo, sVo)]
    if 'nodma' in FL:
        items = [x for x in items if kind(x) != 'd']
    if items:
        place_dma(sg, items, 0, n - 3 - EB) if any(kind(x) == 'd' for x in items) else [sg.place(x, 0) for x in items]
    last = 0
    pace = [(first[i & ~3] + (i & 3) * len(F[i][2])) if i < len(Fq) else first[i] for i in range(nF)]
    seq = [(j, F[j], False) for j in range(min(AH, nF), nF)] + [(nF + j, f, True) for j, f in enumerate(Fn)]
    prevK = prevV = False
    doneTK = doneTV = doneTVp = False
    lastV = max([j for j, f, nx in seq if f[0] == 'V' and not nx], default=-1)
    for j, f, nx in seq:
        src = j - AH
        want = pace[src] if src < nF else n - 1
        lo = last
        if j - 16 >= 0:
            lo = max(lo, lastu[j - 16])
        tg = None
        if f[0] == 'K' and nx and R.togK and not doneTK:
            tg, doneTK = tog(vK, R.togK), True
        if f[0] == 'V' and nx and R.togV and not doneTV:
            tg, doneTV = tog(vV, R.togV), True
        if tg:
            g = sg.place(tg, max(lo, want - 1), lo=lo)
            lo = min(n - 1, g + 1)
            if g == n - 1:
                sg.end[g].append(fread(f[0], f[1], ph + j, "f%d" % (ph + j)))
                last = g
                continue
        if sg.end[last] and any(x.startswith("ds_") for x in sg.end[last]):
            sg.end[last].append(fread(f[0], f[1], ph + j, "f%d" % (ph + j)))
            continue
        hi = dead.get(j)
        assert hi is None or hi >= lo, (j, lo, hi)
        g = sg.place(fread(f[0], f[1], ph + j, "f%d" % (ph + j)), max(want, lo), lo=lo, hi=hi)
        last = g
        if j == lastV and R.togV and not doneTV and not any(x[1][0] == 'V' and x[2] for x in seq):
            doneTV = True
            sg.place(tog(vV, R.togV), g, lo=g)
    if R.togV and not doneTV:
        sg.place(tog(vV, R.togV), 0)
    assert not (R.togK and not doneTK and nxt is not None and nxt.qk), "togK unused"
    k = 0
    for masks, exps, cvts in SM:
        for e, x in enumerate(exps):
            reg = int(x.split()[1][1:-1])
            if reg in masks:
                g = eg[k + e]
                q = g - 1
                while q >= 0 and not sg.room(q, 'c'):
                    q -= 1
                if q < 0:
                    sg.c[g].insert(0, masks[reg])
                    sg.used[g] += 4
                else:
                    sg.put(q, masks[reg])
        for e, x in enumerate(cvts):
            g = eg[k + 2 * e + 1]
            if g + 1 <= n - 1:
                sg.place(x, g + 1, lo=g + 1)
            else:
                sg.end[n - 1].append(x)
        k += 8
    for x in (extra_scal or []):
        if x.startswith("s_cmp"):
            sg.end[n - 1].append(x)
        else:
            sg.place(x, n // 2)
    L, pend = resolve_waits(sg.lines(), pend)
    for x in L:
        if x == "AFTERBAR":
            if R.after_bar:
                R.after_bar()
            continue
        a(x)
    nph = (ph + nF) % 16
    pend = ["f%d" % (int(t[1:]) - (ph + nF) + nph) for t in pend]
    R.cost = sg.cost()
    return nph, pend


def ctx_base(a, srow):
    a("s_lshl_b32 s4, s%d, 20" % srow)
    a("s_lshl_b32 s5, s%d, 15" % sHead)
    a("s_add_u32 s4, s4, s5")
    a("s_lshl_b32 s5, s%d, 11" % S_WAVE)
    a("s_add_u32 s4, s4, s5")


def epilogue(a, gs, srow):
    ctx_base(a, srow)
    for k, g in enumerate(gs):
        a("v_accvgpr_read_b32 v%d, a%d" % (vT + 2 * k, aL + 4 * g))
    a("s_mov_b32 s5, 0x%08x" % f32bits(THR))
    for k, g in enumerate(gs):
        a("v_cmp_ngt_f32 vcc, s5, v%d" % (vT + 2 * k))
        a("v_rcp_f32 v%d, v%d" % (vT + 2 * k, vT + 2 * k))
        a("s_or_b32 s%d, s%d, vcc_lo" % (sFail, sFail))
        a("s_or_b32 s%d, s%d, vcc_hi" % (sFail, sFail))
        a("v_mov_b32 v%d, v%d" % (vT + 2 * k + 1, vT + 2 * k))
    store_O(a, gs)


def store_O(a, gs):
    for ds in range(4):
        for k, g in enumerate(gs):
            b = vO + 4 * (8 * g + 2 * ds)
            for e in range(0, 8, 2):
                a("v_pk_mul_f32 v[%d:%d], v[%d:%d], v[%d:%d]" % (b + e, b + e + 1, b + e, b + e + 1, vT + 2 * k, vT + 2 * k + 1))
            for e in range(4):
                a("v_cvt_pk_bf16_f32 v%d, v%d, v%d" % (b + e, b + 2 * e, b + 2 * e + 1))
            a("buffer_store_dwordx4 %s, v%d, s[%d:%d], s4 offen offset:%d%s" % (v4(b), vL16, sCtx, sCtx + 3, (g & 1) * 1024, SC1))
        if ds < 3:
            a("s_add_u32 s4, s4, 8192")


def rowmax(a, src, t0, t1):
    a("v_max3_f32 v%d, v%d, v%d, v%d" % (t0, src, src + 1, src + 2))
    a("v_max3_f32 v%d, v%d, v%d, v%d" % (t1, src + 3, src + 4, src + 5))
    a("v_max3_f32 v%d, v%d, v%d, v%d" % (t0, t0, src + 6, src + 7))
    a("v_max_f32 v%d, v%d, v%d" % (t0, t0, t1))


def xmax(a, pairs):
    for op in ("v_permlane32_swap_b32", "v_permlane16_swap_b32"):
        for t0, t1 in pairs:
            a("v_mov_b32 v%d, v%d" % (t1, t0))
        for t0, t1 in pairs:
            a("%s v%d, v%d" % (op, t0, t1))
        for t0, t1 in pairs:
            a("v_max_f32 v%d, v%d, v%d" % (t0, t0, t1))


def plan(p):
    pass


def build_rounds():
    g0, g1 = "0x4000", "0x8000"
    R = {}
    R['c0'] = Rnd(0, 'D', 'p', None, bar=True, togK=g0)
    R['lo'] = Rnd(1, 'D', 'p', 'D')
    R['le'] = Rnd(0, 'D', 'p', 'D', bar=True, issK="s%d" % sMb, issV="s%d" % sMa, togK="s%d" % sMa, togV="s%d" % sMb)
    R['d0'] = Rnd(0, 'D', ('D', 0), 'D', bar=True, issK=g1, issV=g0, togK=g0, togV=g1)
    R['d1'] = Rnd(1, "D'", ('D', 1), 'D')
    R['d2'] = Rnd(0, "D'", ('D', 2), 'D', bar=True, issK=g0, issV=g1, togK=g1, togV=g0)
    R['d3'] = Rnd(1, 'S', ('D', 3), "D'", bar=True, issK=g1, issV=g0, togK=g0)
    R['t0'] = Rnd(0, 'S', 'p', "D'", bar=True, issK=g0, togK=g1, togV=g1)
    R['so'] = Rnd(1, 'S', 'p', 'S', bar=True, issK=g1, issV=g1, togK=g0, togV=g0)
    R['se'] = Rnd(0, 'S', 'p', 'S', bar=True, issK=g0, issV=g0, togK=g1, togV=g1)
    R['e0'] = Rnd(0, "S'", ('S', 0), 'S', bar=True, togV=g1)
    R['e1'] = Rnd(1, None, ('S', 1), 'S', bar=True, togV=g0)
    R['e2'] = Rnd(0, None, None, "S'")
    R['c0'].first = True
    R['c0'].xdma = kv_prologue_items(part=1)
    R['c0'].xq = [x for x in [('K', 2), ('V', 1), ('K', 3), ('V', 2)] for _ in range(4)]
    R['d1'].xdma = pf_items()
    R['d1'].xq = [('pf', 0)] * NPF
    return R


def path(p):
    seq = ['c0']
    if p:
        seq += ['lo', 'le'] * (2 * p - 1) + ['lo', 'd0']
    seq += ['d1', 'd2', 'd3']
    ns = 2 * (14 + 2 * (p & 1) - 2 * p)
    seq += ['t0', 'EPI'] + ['so', 'se'] * ((ns - 4) // 2) + ['so', 'e0']
    seq += ['e1', 'e2']
    return seq


def simulate(R, q0):
    need = {}
    for p in range(8):
        seq = path(p)
        nd = 4 * p + 4
        ktile = lambda c: c // 2 if c < nd else nd // 2 + (c - nd)
        q = list(q0)
        nk, nv = 4, 3
        rounds = [k for k in seq if k != 'EPI']
        reads = []
        for c, k in enumerate(rounds):
            r = set()
            if R[k].qk:
                r.add(('K', ktile(c + 1)))
            if R[k].pv:
                r.add(('V', ktile(c - 1)))
            reads.append(r)
        full = []
        for c, k in enumerate(rounds):
            r = set(reads[c])
            if c + 1 < len(rounds):
                nx = R[rounds[c + 1]]
                fq, fp, _ = nx.frags()
                for f in (fq + fp)[:AH]:
                    r.add(('K', ktile(c + 2)) if f[0] == 'K' else ('V', ktile(c)))
            full.append(r)
        c = 0
        epi = False
        kaddr, vaddr = 0, 0
        for k in seq:
            if k == 'EPI':
                epi = True
                continue
            r = R[k]
            if r.bar:
                e = c + 1
                while e < len(rounds) and not R[rounds[e]].bar:
                    e += 1
                req = set().union(*full[c:e])
                idx = max(i for i, x in enumerate(q) if x in req)
                assert all(x in q for x in req), (p, k, req)
                key = rounds[c - 1] if (c and EB) else k
                if epi and not EB:
                    q += [('st', 0)] * 8
                    epi = False
                need[key] = min(need.get(key, 63), 0 if k == 'e1' else len(q) - 1 - idx)
                lastbar = c
            if epi:
                q += [('st', 0)] * 8
                epi = False
            q += r.xq
            if k == 'd2':
                pass
            for w, iss in (('K', r.issK), ('V', r.issV)):
                if iss is not None:
                    t = nk if w == 'K' else nv
                    for cc in range(lastbar, len(rounds)):
                        assert (w, t - 4) not in full[cc], (p, k, w, t)
                    if iss.startswith("0x"):
                        assert int(iss, 16) == gray_mask(t), (p, k, w, t)
                    q += [(w, t)] * 4
                    if w == 'K':
                        nk += 1
                    else:
                        nv += 1
            if r.qk:
                assert kaddr == ktile(c + 1), (p, k, kaddr)
            if r.pv:
                assert vaddr == ktile(c - 1), (p, k, vaddr, ktile(c - 1))
            if r.togK:
                if r.togK.startswith("0x"):
                    assert int(r.togK, 16) == gray_mask(kaddr), (p, k)
                kaddr += 1
            if r.togV:
                if r.togV.startswith("0x"):
                    assert int(r.togV, 16) == gray_mask(vaddr), (p, k)
                vaddr += 1
            c += 1
    for k, v in need.items():
        if EB and k == 'c0':
            R[k].vm0 = v
        R[k].vm = v
    return need


def setup1(a):
    a("v_add_u32 v%d, 0xc000, v%d" % (vK, vL16))
    a("v_add_u32 v%d, 0x10000, v%d" % (vV, vL16))
    a("v_mov_b32 v%d, 0xf149f2ca" % vNEG)
    a("s_mov_b32 s%d, 0" % sFail)
    a("v_mfma_f32_32x32x16_bf16 a[%d:%d], a[236:239], a[236:239], 0" % (aL, aL + 15))


def setup2(a):
    if NPF:
        pf_setup(a)
    srd(a, sCtx, P_WS, 16 * MB, WS_CTX)
    a("v_and_b32 v%d, 15, v1" % vT)
    a("v_lshrrev_b32 v%d, 4, v1" % (vT + 1))
    a("v_sub_u32 v%d, v%d, v%d" % (vT, vT, vT + 1))
    a("v_lshlrev_b32 v%d, 2, v%d" % (vT, vT))
    a("v_add_u32 v%d, s%d, v%d" % (vT, S_WAVE, vT))
    for j in range(4):
        for r in range(4):
            m = sMask + 2 * (4 * j + r)
            a("v_cmp_gt_i32 s[%d:%d], %d, v%d" % (m, m + 1, 16 * j + r, vT))
    a("s_mov_b32 s%d, 0x8000" % sMa)
    a("s_mov_b32 s%d, 0x4000" % sMb)


def attention(a, st, H):
    R = build_rounds()
    for k in ('e0',):
        R[k].xdma, R[k].xq = H.pre_e1(), [('fl', 0)]
    R['e1'].xdma, R['e2'].xdma = H.e1_items(), H.e2_items()
    fill = H.d2_items()
    for k, lo, hi in (('d2', None, -11), ('d3', -11, -6), ('t0', -6, None)):
        R[k].xdma = fill[lo:hi]
        R[k].xq = [('st', 0)] * sum(kind(x) == 'd' for x in R[k].xdma)
    simulate(R, H.q0)
    a("s_waitcnt vmcnt(%d)" % (len(H.q0) - 1 - max(i for i, t in enumerate(H.q0) if t == ('K', 0))))
    a("s_barrier")
    st(a)
    fq = qk_frags('D0', 0, vS)
    c0q, c0p, _ = R['c0'].frags()
    nx = (c0q + c0p)[:AH]
    assert len(nx) == 8
    sg = Seg([mfma(d, ('a', aF + 4 * (8 + j)), b, c) for j, (ring, off, ms) in enumerate(fq) for d, b, c in ms])
    sg.pre = [fread('K', fq[j][1], 8 + j, "f%d" % (8 + j)) for j in range(8)] + ["WAIT f9"]
    for j in range(8):
        if j and j % 2 == 0:
            sg.put(4 * j - 1, "WAIT f%d" % (9 + j))
        sg.put(4 * j + 3, fread('K', nx[j][1], 16 + j, "f%d" % (16 + j)))
    c = Col()
    setup2(c)
    g = 0
    for k, x in enumerate(c):
        if "s_addc" in x:
            continue
        if k + 1 < len(c) and "s_addc" in c[k + 1]:
            x += "\n" + c[k + 1]
        g = sg.place(x, g, lo=g)
        if kind(x) == 's' and k + 1 < len(c) and kind(c[k + 1]) != 's':
            g += 1
    L = sg.lines()
    L, pend = resolve_waits(L, [])
    for x in L:
        a(x)
    pend = ["f%d" % (int(t[1:]) - 16) for t in pend]
    a("s_cmp_lg_u32 s%d, 0" % sPair)
    a("s_cbranch_scc1 La_nomask0")
    for reg, x in sm_items(('D', 0), vS, vP)[0][0].items():
        a(x)
    a.label("La_nomask0")
    for g in range(4):
        rowmax(a, vS + 8 * g, vT + 2 * g, vT + 2 * g + 1)
    xmax(a, [(vT + 2 * g, vT + 2 * g + 1) for g in range(4)])
    for g in range(4):
        for r in range(4):
            a("v_sub_f32 v%d, 0, v%d" % (vNM + 4 * g + r, vT + 2 * g))
    for g in range(4):
        for e in range(0, 8, 2):
            b = vS + 8 * g + e
            a("v_pk_add_f32 v[%d:%d], v[%d:%d], v[%d:%d]" % (b, b + 1, b, b + 1, vNM + 4 * g, vNM + 4 * g + 1))
    state = {}

    def rnd(k, nk, ph, pend, extra=None):
        assert len(pend) <= 15
        return emit_round(a, R[k], R[nk] if nk else None, ph, pend, extra)

    def join(k, ph, pend):
        if k in state:
            assert state[k] == (ph, pend), (k, state[k], ph, pend)
        state[k] = (ph, list(pend))
    a("s_lshl_b32 s%d, s%d, 1" % (sCnt, sPair))
    ph, pend = rnd('c0', 'lo', 0, pend, ["s_cmp_eq_u32 s%d, 0" % sPair])
    join('lo', ph, pend)
    join('d1', ph, pend)
    a("s_cbranch_scc1 La_d1")
    a(".p2align 6")
    a.label("La_lo")
    ph, pend = rnd('lo', 'le', ph, pend, ["s_sub_u32 s%d, s%d, 1" % (sCnt, sCnt), "s_cmp_eq_u32 s%d, 0" % sCnt])
    join('d0', ph, pend)
    a("s_cbranch_scc1 La_d0")
    ph, pend = rnd('le', 'lo', ph, pend)
    a("s_xor_b32 s%d, s%d, 0xc000" % (sMa, sMa))
    a("s_xor_b32 s%d, s%d, 0xc000" % (sMb, sMb))
    join('lo', ph, pend)
    a("s_branch La_lo")
    a.label("La_d0")
    ph, pend = state['d0']
    ph, pend = rnd('d0', 'd1', ph, pend)
    join('d1', ph, pend)
    a.label("La_d1")
    ph, pend = rnd('d1', 'd2', ph, pend)
    ph, pend = rnd('d2', 'd3', ph, pend)
    H.after_d2()
    ph, pend = rnd('d3', 't0', ph, pend)
    ph, pend = rnd('t0', 'so', ph, pend)
    st(a)
    epilogue(a, [0, 1], sPair)
    st(a)
    long_blk(a, sCnt)
    a("s_sub_u32 s%d, s%d, s%d" % (sCnt, sCnt, sPair))
    a("s_sub_u32 s%d, s%d, 1" % (sCnt, sCnt))
    join('so', ph, pend)
    a(".p2align 6")
    a.label("La_so")
    ph, pend = rnd('so', 'se', ph, pend, ["s_sub_u32 s%d, s%d, 1" % (sCnt, sCnt), "s_cmp_eq_u32 s%d, 0" % sCnt])
    join('e0', ph, pend)
    a("s_cbranch_scc1 La_e0")
    ph, pend = rnd('se', 'so', ph, pend)
    join('so', ph, pend)
    a("s_branch La_so")
    a.label("La_e0")
    ph, pend = state['e0']
    ph, pend = rnd('e0', 'e1', ph, pend)
    join('e1', ph, pend)
    a.label("La_e1")
    R['e1'].after_bar = H.at_e1
    ph, pend = rnd('e1', 'e2', ph, pend)
    ph, pend = rnd('e2', None, ph, pend)
    st(a)
    long_blk(a, sCnt)
    epilogue(a, [2, 3], sCnt)
    slow_path(a)
    if 'v' in FL:
        for k, r in R.items():
            print(k, "vm", r.vm, "cost", r.cost, file=sys.stderr)


def slow_path(a):
    vM, vLs, vD = vNM, vNM + 8, vNM + 4
    sRbk, sCh, sOff = 6, 7, 90
    a("s_cmp_eq_u32 s%d, 0" % sFail)
    a("s_cbranch_scc1 La_done")
    a("s_waitcnt vmcnt(0)")
    long_blk(a, sRbk)
    a.label("La_sl_blk")
    for i in range(64):
        a("v_mov_b32 v%d, 0" % (vO + 64 + i))
    for i in range(8):
        a("v_mov_b32 v%d, 0" % (vLs + i))
    a("v_mov_b32 v%d, v%d" % (vM, vNEG))
    a("v_mov_b32 v%d, v%d" % (vM + 1, vNEG))
    a("v_and_b32 v%d, 15, v1" % vD)
    a("v_lshrrev_b32 v%d, 4, v1" % (vD + 1))
    a("v_sub_u32 v%d, v%d, v%d" % (vD, vD, vD + 1))
    a("v_lshlrev_b32 v%d, 2, v%d" % (vD, vD))
    a("s_lshl_b32 s4, s%d, 7" % sRbk)
    a("s_add_u32 s4, s4, s%d" % S_WAVE)
    a("v_add_u32 v%d, s4, v%d" % (vD, vD))
    a("v_add_u32 v%d, 64, v%d" % (vD + 1, vD))
    a("s_add_u32 s%d, s%d, 1" % (sCh, sRbk))
    a("s_lshl_b32 s%d, s%d, 2" % (sCh, sCh))
    a("s_mov_b32 s%d, 0" % sOff)
    a.label("La_sl_loop")
    for i in range(16):
        if i % 4 == 0:
            a("s_add_u32 s4, s%d, %d" % (sOff, (i // 8) * 16384 + ((i // 4) & 1) * 4096))
        a("buffer_load_dwordx4 %s, v%d, s[%d:%d], s4 offen offset:%d%s" % (a4(4 * i), vL16, sKV, sKV + 3, (i % 4) * 1024, SC1))
    a("s_waitcnt vmcnt(0)")
    for jb in range(2):
        for ds in range(4):
            for k in range(2):
                a(mfma(('v', vS + 8 * k + 4 * jb), ('a', 4 * (4 * jb + ds)), Qreg(2 + k, ds), "0" if ds == 0 else None))
    for k in range(2):
        for jb in range(2):
            for r in range(4):
                x = vS + 8 * k + 4 * jb + r
                a("v_cmp_gt_i32 vcc, %d, v%d" % (16 * jb + r, vD + k))
                a("v_cndmask_b32 v%d, v%d, v%d, vcc" % (x, x, vNEG))
        a("v_subrev_u32 v%d, 32, v%d" % (vD + k, vD + k))
        rowmax(a, vS + 8 * k, vT + 2 * k, vT + 2 * k + 1)
    xmax(a, [(vT + 2 * k, vT + 2 * k + 1) for k in range(2)])
    for k in range(2):
        a("v_max_f32 v%d, v%d, v%d" % (vT + 2 * k, vT + 2 * k, vM + k))
        a("v_sub_f32 v%d, v%d, v%d" % (vT + 2 * k + 1, vM + k, vT + 2 * k))
        a("v_exp_f32 v%d, v%d" % (vT + 2 * k + 1, vT + 2 * k + 1))
        a("v_mov_b32 v%d, v%d" % (vM + k, vT + 2 * k))
        for e in range(8):
            a("v_sub_f32 v%d, v%d, v%d" % (vS + 8 * k + e, vS + 8 * k + e, vM + k))
        for e in range(8):
            a("v_exp_f32 v%d, v%d" % (vS + 8 * k + e, vS + 8 * k + e))
        for e in range(4):
            a("v_mul_f32 v%d, v%d, v%d" % (vLs + 4 * k + e, vLs + 4 * k + e, vT + 2 * k + 1))
        for e in range(32):
            x = vO + 64 + 32 * k + e
            a("v_mul_f32 v%d, v%d, v%d" % (x, x, vT + 2 * k + 1))
        for e in range(4):
            a("v_cvt_pk_bf16_f32 v%d, v%d, v%d" % (vP + 4 * k + e, vS + 8 * k + 2 * e, vS + 8 * k + 2 * e + 1))
    for k in range(2):
        a(mfma(('v', vLs + 4 * k), ('a', aOne), ('v', vP + 4 * k)))
        for db in range(8):
            a(mfma(Oreg(2 + k, db), ('a', 32 + 4 * db), ('v', vP + 4 * k)))
    a("s_add_u32 s%d, s%d, 8192" % (sOff, sOff))
    a("s_and_b32 s4, s%d, 0x4000" % sOff)
    a("s_add_u32 s%d, s%d, s4" % (sOff, sOff))
    a("s_sub_u32 s%d, s%d, 1" % (sCh, sCh))
    a("s_cmp_lg_u32 s%d, 0" % sCh)
    a("s_cbranch_scc1 La_sl_loop")
    ctx_base(a, sRbk)
    for k in range(2):
        a("v_rcp_f32 v%d, v%d" % (vT + 2 * k, vLs + 4 * k))
        a("v_mov_b32 v%d, v%d" % (vT + 2 * k + 1, vT + 2 * k))
    store_O(a, [2, 3])
    a("s_cmp_eq_u32 s%d, s%d" % (sRbk, sPair))
    a("s_cbranch_scc1 La_done")
    for i in range(32):
        a("v_accvgpr_read_b32 v%d, a%d" % (vS + i, aQ + i))
    for i in range(32):
        a("v_accvgpr_write_b32 a%d, v%d" % (aQ + 32 + i, vS + i))
    a("s_mov_b32 s%d, s%d" % (sRbk, sPair))
    a("s_branch La_sl_blk")
    a.label("La_done")
```

```python
from lib import *
from gemm4 import *
import proj4, bfront, attn4, oproj, qproj

MFL = set(os.environ.get("MFLAGS", "").split(","))


def gen(stamp=False):
    a = Asm()
    st = Stamps(stamp, 0)
    a("s_cmp_ge_u32 s2, 256")
    a("s_cbranch_scc1 Lend")
    a("s_load_dwordx16 s[64:79], s[0:1], 0")
    a("s_load_dwordx8 s[80:87], s[0:1], 64")
    a("v_lshrrev_b32 v2, 6, v0")
    a("v_and_b32 v1, 63, v0")
    a("v_readfirstlane_b32 s%d, v2" % S_WAVE)
    a("v_lshlrev_b32 v2, 4, v1")
    if 'ipf' in MFL:
        a("s_getpc_b64 s[6:7]")
        a("s_lshr_b32 s4, s2, 3")
        a("s_lshl_b32 s4, s4, 2")
        a("s_add_u32 s4, s4, s%d" % S_WAVE)
        a("s_min_u32 s4, s4, CODE_KB")
        a("s_lshl_b32 s4, s4, 10")
        a("v_add_u32 v3, s4, v2")
        a("global_load_dwordx4 v[4:7], v3, s[6:7]")
    st(a)
    gk, gv = proj4.make('wx'), proj4.make('xw')
    b0, b1 = bfront.make(0), bfront.make(1)
    g3 = qproj.make()
    if 'nost' in MFL:
        t0 = proj4.trickle
        proj4.trickle = lambda k, a, b: [x.replace("s%d," % proj4.sSt, "0x70000000,").replace("s_add_u32 s60, 0x70000000, ", "s_mov_b32 s60, 0x70000000 ; ") for x in t0(k, a, b)]
    NK = [int(x) for x in os.environ.get("NK", "12").split(",")]
    NW = int(os.environ.get("NW", 8))
    TR3 = [int(x) for x in os.environ.get("TR3", "8,0,8,0,8").split(",")]
    assert NW >= 8 and NW + sum(TR3) == 32
    a("s_bfe_u32 s59, s2, 0x30003")
    a("s_lshr_b32 s4, s2, 7")
    a("s_lshl_b32 s4, s4, 3")
    a("s_add_u32 s59, s59, s4")
    a("s_lshr_b32 s4, s2, 3")
    a("s_xor_b32 s4, s4, s2")
    a("s_bitcmp1_b32 s4, 3")
    a("s_cbranch_scc1 Lp2")

    def common(c):
        attn4.ids(c)
        oproj.lanes(c, 24)
        qproj.lanes(c, 24)
    proj4.setup(a, gk, "s59")
    srd(a, S_FLG, P_WS, 0x40000, WS_FLG)
    tag_make(a, 0)
    for x in proj4.xitems(gk, 0) + proj4.witems(gk, 0):
        a(x)
    c = Col()
    proj4.read_bases(c, gk)
    common(c)
    proj4.out_base(c)
    gk.init(c, [proj4.XS0, 0])
    for x in weave_lines(c, proj4.xitems(gk, 1) + proj4.witems(gk, 1), 0.2, 1.0):
        a(x)
    tag_make(a, 1, 32)
    st(a)
    k0 = st.k
    gk.pro(a, 16, dma=proj4.xitems(gk, 2))
    a("s_mov_b32 s%d, 6" % gk.sCnt)
    gk.loop(a, 8)
    gk.half(a, 1, dma=gk.dma_items())
    if 'st2' in MFL:
        st(a)
    order, epi = proj4.pack('k', NK[0])
    rest = gk.bm(a, order, 18, 18, N=8, dma=gk.dma_items(), nxt=gv, epi=epi, defer=True)
    assert all(kind(x) == 'c' for x in rest), rest
    if 'st2' in MFL:
        st(a)
    order, held = proj4.v_order(NK[0])
    sts = [(proj4.trickle('k', k, k + 1), held[proj4.ORDER['k'][k]]) for k in range(NK[0], 32)]
    gv.bm(a, order, 20, 18, N=8, first=True, dma=gv.dma_items(), nxt=gv, st2=sts, carry=rest)
    a("s_add_u32 s%d, s%d, 0x4000" % (proj4.sSt, proj4.sSt))
    a("s_waitcnt lgkmcnt(0)")
    gv.half(a, 0, adv=True)
    st(a)
    a("s_mov_b32 s%d, 4" % gv.sCnt)
    gv.loop(a, 8)
    gv.iter(a, None, proj4.witems(gv, 0) + qproj.witems(g3, 0) + qproj.witems(g3, 1), after_bar=lambda: qproj.setup(a, g3))
    gv.bar(a, 8)
    gv.half(a, 1, dma=qproj.xitems(g3, 0))
    order, epi = proj4.pack('v', NW)
    gv.bm(a, order, 18, epi=epi, dma=qproj.xitems(g3, 1) + qproj.witems(g3, 2) + qproj.xitems(g3, 2), mid=lambda: tag_load(a, 22))
    qk = VmQ()
    for t, n in (('w0', 4), ('w1', 4), ('x0', 8), ('t', 1), ('st', NW), ('x1', 8), ('w2', 4), ('x2', 8)):
        qk.push(t, n)
    a("s_lshl_b32 s34, s%d, 4" % proj4.sN0)
    a("s_add_u32 s34, s34, s%d" % proj4.sM0)
    a("s_lshl_b32 s34, s34, 7")
    a("s_branch Lp3")
    a.label("Lp2")
    st.k = k0 - 1
    bfront.setup(a, b0, "s59")
    srd(a, S_FLG, P_WS, 0x40000, WS_FLG)
    a("s_cmp_ge_u32 s%d, 2" % S_WAVE)
    a("s_cbranch_scc1 Lp2_r1")
    for rh, g in enumerate((b0, b1)):
        if rh:
            a.label("Lp2_r1")
            st.k = k0 - 1
        nx = 8 if rh else 9
        PFB, PF0 = int(os.environ.get("PFB", 4)), os.environ.get("PF0", "")
        a("s_and_b32 s4, s2, 7")
        a("s_lshl_b32 s4, s4, 4")
        a("s_add_u32 s4, s4, s59")
        a("s_lshl_b32 s4, s4, 2")
        a("s_add_u32 s4, s4, s%d" % S_WAVE)
        a("s_lshl_b32 s51, s4, 13")

        def pf0():
            a("s_lshr_b32 s56, s51, 1")
            srd(a, 52, P_CKV, 2 * MB)
            for i in range(4):
                a("buffer_load_dwordx4 a[192:195], v2, s[52:55], s56 offen offset:%d ; @dummy" % (1024 * i))
            a("s_add_u32 s56, s51, 4096")
            srd(a, 52, P_WUK, 4 * MB)
            for i in range(8):
                a("buffer_load_dwordx4 a[192:195], v2, s[52:55], %s offen offset:%d ; @dummy" % ("s56" if i >= 4 else "s51", 1024 * (i & 3)))
        if PF0 == "a":
            pf0()
        for x in bfront.xitems(g, 0) + bfront.witems(g, 0):
            a(x)
        if PF0 == "b":
            pf0()
        c = Col()
        bfront.read_bases(c)
        common(c)
        bfront.pre(c)
        g.init(c)
        if PFB:
            srd(c, 52, P_WUV, 4 * MB)
            c("s_lshl_b32 s1, s51, 1")
            c("s_mov_b32 s56, s51")
            c("s_mov_b32 s0, 0")
            pf1 = ["buffer_load_dwordx4 a[192:195], v2, s[52:55], s51 offen offset:%d ; @dummy" % (1024 * i) for i in range(PFB)]
            assert PFB == 4
            g.pf = pf1 + ["s_add_u32 s51, s51, 4096", "s_add_u32 s0, s0, 1",
                          "s_cmp_eq_u32 s0, 2\ns_cselect_b32 s52, s%d, s52\ns_cselect_b32 s53, s%d, s53\ns_cselect_b32 s51, s1, s51\n"
                          "s_cselect_b32 s54, %d, s54" % (P_WQ, P_WQ + 1, (8 * MB) if os.environ.get("PFQ", "0") == "1" else 0),
                          "s_cmp_eq_u32 s0, 6\ns_cselect_b32 s52, s%d, s52\ns_cselect_b32 s53, s%d, s53\ns_cselect_b32 s51, s56, s51\n"
                          "s_cselect_b32 s54, %d, s54" % (P_AX, P_AX + 1, (4 * MB) if os.environ.get("PFQ", "0") == "1" else 0),
                          "s_cmp_eq_u32 s0, 8\ns_cselect_b32 s54, 0, s54"]
        for x in weave_lines(c, bfront.xitems(g, 1) + bfront.witems(g, 1), 0.2, 1.0):
            a(x)
        st(a)
        g.pro(a, nx + 6 + (12 if PF0 == 'b' else 0), dma=bfront.xitems(g, 2))
        a("s_mov_b32 s%d, 13" % g.sCnt)
        g.loop(a, nx)
        if 'st2' in MFL:
            st(a)
            st(a)
        g.iter(a, None, bfront.witems(g, 0), after_bar=lambda: qproj.setup(a, g3))
        g.bar(a, 0)
        a("s_mov_b32 s6, 0x%08x" % f32bits(bfront.CB))
        a("s_mov_b32 s7, s6")
        g.half(a, 1)
        order, epi = bfront.pack(g, rh)
        g.bm(a, order, 16, epi=epi, dma=qproj.witems(g3, 0) + qproj.witems(g3, 1) + qproj.xitems(g3, 0), mid=lambda: tag_load(a, 22))
        a("s_waitcnt lgkmcnt(0)")
        a("s_barrier")
        st(a)
        if not rh:
            a("s_branch Lp2_at")
    a.label("Lp2_at")
    c = Col()
    bfront.attend(c)
    for x in weave_lines(c, qproj.xitems(g3, 1) + qproj.witems(g3, 2) + qproj.xitems(g3, 2), 0.0, 0.7):
        a(x)
    qb = VmQ()
    for t, n in (('t', 1), ('w0', 4), ('w1', 4), ('x0', 8), ('x1', 8), ('w2', 4), ('x2', 8), ('st', 8)):
        qb.push(t, n)
    a("s_lshl_b32 s34, s%d, 4" % bfront.sRb)
    a("s_add_u32 s34, s34, s%d" % bfront.sHp)
    a("s_lshl_b32 s34, s34, 7")
    a("s_add_u32 s34, s34, %d" % F_OB)
    a("s_mov_b32 s%d, 0x70000000" % proj4.sSt)
    a.label("Lp3")
    st(a)
    qproj.restore(a)
    g3.init(a, [qproj.XS0, 0])
    need = lambda *t: min(qk.need(*t), qb.need(*t))

    def push(t, n):
        qk.push(t, n), qb.push(t, n)
    cum = [NW + sum(TR3[:k]) for k in range(len(TR3) + 1)]
    g3.pro(a, need('w0', 'x0'), dma=proj4.trickle('v', cum[0], cum[1]))
    push('st', TR3[0])
    last = len(TR3) + 1
    for s in range(1, last + 1):
        N = need('w%d' % s, 'x%d' % s, s, *(['st'] if s == last else []))
        g3.iter(a, N, g3.dma_items() + (proj4.trickle('v', cum[s], cum[s + 1]) if s < len(TR3) else []),
                after_bar=(lambda: (tag_get(a, 22, 12), signal(a, 22, ["s34"], 3))) if s == last else None)
        push(s + 2, 12)
        if s < len(TR3):
            push('st', TR3[s])
    if last < 12:
        a("s_mov_b32 s%d, %d" % (g3.sCnt, 12 - last))
        g3.loop(a, 12)
    else:
        g3.bar(a, 12)

    def ids():
        a("s_lshr_b32 s34, s%d, 1" % attn4.sHead)
        a("s_lshl_b32 s34, s34, 11")
        for x in flag_addr(3, 8):
            a(x)
    g3.iter(a, None, [flag_load(22, "s34", 3)] + g3.dma_items(), after_bar=ids)

    def go():
        flag_check(a, 22, "s34", 3)
        attn4.kv_setup(a)
        oproj.ids(a)
    it = attn4.kv_prologue_items(0)
    cut = [i for i, x in enumerate(it) if "m0" in x][1]
    g3.iter(a, 12, it[:cut], after_bar=go)
    g3.bar(a, 4)
    a("s_mov_b32 s6, 0x%08x" % f32bits(attn4.CST))
    a("s_mov_b32 s7, s6")
    g3.half(a, 1, dma=it[cut:])
    order, epi = qproj.epilogue()
    g3.bm(a, order, 16, epi=epi, bar=False)
    st(a)
    attn4.setup1(a)
    oproj.fill_setup(a)
    st(a)
    g6, g7 = oproj.make("p6", oproj.AB), oproj.make("p7", oproj.AA)

    class H:
        q0 = [t for t in (('K', 0), ('K', 1), ('V', 0)) for _ in range(4)]

        @staticmethod
        def after_d2():
            a("s_lshr_b32 s91, s%d, 1" % oproj.sRb)
            a("s_lshl_b32 s91, s91, 11")
            a("s_add_u32 s91, s91, %d" % F_OB)
            for x in flag_addr(14):
                a(x)

        @staticmethod
        def fill():
            return oproj.fill_items()

        @staticmethod
        def pre_e1():
            return [flag_load(12, "s91", 14)]

        @staticmethod
        def at_e1():
            flag_check(a, 12, "s91", 14)
            oproj.ring_start(a)
            for j in range(4):
                a("v_accvgpr_read_b32 v%d, a%d" % (oproj.wv + j, oproj.aSave + j))
            for x in oproj.job_w(False) + oproj.job_x(False):
                a(x)

        @staticmethod
        def e1_items():
            return oproj.stage_items(g6, 0, 'wx')

        @staticmethod
        def e2_items():
            return oproj.stage_items(g6, 1, 'wx')
    attn4.attention(a, st, H)
    st(a)
    gh = oproj.make("ph", oproj.AA, True)
    q = VmQ()
    for s in range(2):
        q.push(s, 8)
    q.push('ctx', 8)
    oproj.read_bases(a, 4)
    g6.init(a, [3])
    g6.pro(a, q.need(0), dma=oproj.stage_items(g6, 2, 'wx') + oproj.stage_items(g6, 3, 'wx'))
    q.push(2, 8)
    q.push(3, 8)

    def sig_ctx():
        a("s_lshl_b32 s4, s%d, 7" % attn4.sHead)
        a("s_lshl_b32 s5, s%d, 12" % attn4.sPair)
        a("s_add_u32 s6, s4, %d" % F_CTX)
        attn4.long_blk(a, 7)
        a("s_lshl_b32 s7, s7, 12")
        a("s_add_u32 s7, s7, s6")
        a("s_add_u32 s6, s6, s5")
        oproj.flag_pos(a, False, True, 5)
        signal(a, 6, ["s6", "s7", "s5"])
        a("s_lshl_b32 s91, s%d, 12" % oproj.sRb)
        a("s_add_u32 s91, s91, %d" % F_CTX)
        oproj.flag_pos(a, False, False, 5)
        a("s_sub_u32 s5, s5, s91")
        a("v_lshlrev_b32 v14, 7, v1")
        a("v_mov_b32 v9, s5")
        a("v_cmp_gt_u32 vcc, 32, v1")
        a("v_cndmask_b32 v14, v9, v14, vcc")
        oproj.xch_srd(a)
    VS = int(os.environ.get("VS", 6))
    for s in range(1, VS):
        N = q.need(1, 'ctx') if s == 1 else q.need(s)
        if s == 1:
            q.push('sig', 3)
        it = g6.dma_items() if s < 5 else (oproj.job_w(True) if s == 5 else []) + g7.group_items(g7.dma[0])
        q.push(s + 3, 8 if s < 5 else 4)
        if s == VS - 1:
            it = it + [flag_load(6, "s91", 14)]
            q.push('fl', 1)
        g6.iter(a, N, it, after_bar=sig_ctx if s == 1 else None)
    a("s_waitcnt vmcnt(%d)" % q.need(VS, 'fl'))
    a("v_cmp_ne_u64 vcc, s[%d:%d], v[6:7]" % (S_TAG, S_TAG + 1))
    a("v_cndmask_b32_e64 v8, 0, 1, vcc")
    a("v_lshlrev_b32 v9, 2, v0")
    a("ds_write_b32 v9, v8")
    a("v_lshlrev_b32 v9, 4, v1")
    a("s_waitcnt lgkmcnt(0)")
    a("s_barrier")
    a("ds_read_b128 v[160:163], v9")
    for x in oproj.job_w(True) if VS == 5 else []:
        a(x)
    a("s_waitcnt lgkmcnt(0)")
    a("v_or3_b32 v160, v160, v161, v162")
    a("v_or_b32 v160, v160, v163")
    a("v_cmp_ne_u32 vcc, 0, v160")
    if 'only7' not in MFL:
        a("s_cbranch_vccnz Lp6_late ; @late")
    k0 = st.k
    q0 = list(q.q)
    for late in (False, True):
        q.q = list(q0)
        if late:
            a.label("Lp6_late")
            st.k = k0
        else:
            for x in oproj.job_x(True):
                a(x)
        for s in range(VS, 8):
            if s > VS:
                g6.bar(a, q.need(s))
            it = g7.group_items(g7.dma[0]) if late else g7.dma_items()
            if s == VS and not late:
                for t in range(VS + 2, 7, -1):
                    it = oproj.stage_items(g7, t, 'x') + it
                for t in range(8, VS + 3):
                    q.push(t, 4)
            q.push(s + 3, 4 if late else 8)
            if late and s == 7:
                it += [flag_load(6, "s91", 14)]
            d0, d1 = g6.split(it)
            g6.half(a, 1, dma=d0)
            a("s_waitcnt lgkmcnt(0)")
            g6.half(a, 0, dma=d1, adv=True)
        if late:
            a("s_waitcnt vmcnt(0) lgkmcnt(0)")
            a("s_barrier")
            st(a)
            flag_check(a, 6, "s91", 14)
            st(a)
            for x in oproj.job_x(True):
                a(x)
            it = []
            for s in range(8, 12):
                it += oproj.stage_items(g7, s, 'x' if s < 11 else 'wx')
            g6.half(a, 1, rd=False, dma=it)
            for x in oproj.send_items(oproj.AB, False, 6):
                a(x)
            a("s_waitcnt vmcnt(24)")
            a("s_barrier")
            for x in g7.reads(0):
                a(x)
            a("s_waitcnt lgkmcnt(0)")
            g7.half(a, 0, first=True, adv=True)
        else:
            g6.bar(a, q.need(8))
            st(a)
            st(a)
            g6.half(a, 1, dma=g7.dma_items())
            a("s_waitcnt lgkmcnt(0)")
            it = oproj.send_items(oproj.AB, False, 6)
            nsc = [i for i, x in enumerate(it) if kind(x) == 'd'][0]
            for x in it[:nsc]:
                a(x)
            g7.half(a, 0, first=True, adv=True, extra=lambda sg: place_dma(sg, it[nsc:], 5, 14))
            a("s_branch Lp7")
    a.label("Lp7")
    st(a)
    DL = oproj.DL
    F = 40 - DL
    U = min(33, F - int(os.environ.get("UB", 4)))
    a("s_mov_b32 s%d, %d" % (g7.sCnt, U - 9))
    g7.loop(a, 16)
    if 'st2' in MFL:
        st(a)
    q = VmQ()
    for s in range(U, U + 3):
        q.push(s, 8)
    E = F + 2 * DL
    finB = []
    gl = oproj.make("l", oproj.AA, lin=True)
    for s in range(U, E):
        tags, it, ab = [s], [], None
        if s == U:
            c = Col()
            oproj.out_off(c, False, 32)
            oproj.out_off(c, True, 34)
            it += oproj.recv_items(False, 6) + c
            ab = lambda: oproj.out_setup(a)
        if s == U + 2:
            tags.append('rcv')
            ab = lambda: oproj.recv_check(a, False, 6)
            finB = oproj.finish(oproj.AB, False, 32)
        if s == E - 1:
            it += oproj.recv_items(True, 6)
        N = q.need(*tags)
        q.push('rcv', sum(kind(x) == 'd' for x in it))
        if s + 3 < F:
            it += g7.dma_items() if s + 3 < 36 else (oproj.to_lin() if s + 3 == 36 else []) + gl.dma_items()
            q.push(s + 3, 8)
        elif s + 3 < E:
            if s + 3 == F:
                it += oproj.to_half()
            if s + 3 == F + DL:
                it += oproj.to_partner()
            it += gh.dma_items()
            q.push(s + 3, 6)
        g1, g0 = (g7 if s - 1 < F else gh), (g7 if s < F else gh)
        if s > U:
            g7.bar(a, N)
        else:
            assert N >= 16
        if ab:
            ab()
        d0, d1 = g7.split(it)
        if s == F:
            snd = oproj.send_items(oproj.AA, True, 36)
            nsc = [i for i, x in enumerate(snd) if kind(x) == 'd'][0]
            d0, d1 = it + snd[:nsc], snd[nsc:]
            q.push('snd', 8)
        L = finB.pop(0) if finB else []

        def finb(sg):
            g = 0
            for x in L[:-1]:
                g = sg.place(x, g, lo=g)
        g1.half(a, 1, dma=d0, rdg=g0, extra=finb)
        a("s_waitcnt lgkmcnt(0)")
        g0.half(a, 0, dma=d1, adv=s < E - 1, extra=lambda sg: sg.end[sg.n - 1].extend(L[-1:]))
        q.push('ob', len(L[-1:]))
        if 'st3' in MFL:
            st(a)
    gh.tail(a, bar=False)
    st(a)
    a("s_waitcnt vmcnt(0)")
    oproj.recv_check(a, True, 6)
    st(a)
    for L in zip(*oproj.finish(oproj.AA, True, 34)):
        for x in L:
            a(x)
    st(a)
    if stamp:
        a("s_waitcnt vmcnt(0)")
    st(a)
    st.flush(a)
    return fin(a)


def fin(a):
    a.label("Lend")
    a("s_endpgm")
    t = a.finish()
    for fl, pat in (('x7rd', "ds_read"), ('x7mf', "v_mfma"), ('x7dma', " lds")):
        if fl in MFL:
            h, r = t.split("Lp7_loop:")
            b, r = r.split("s_cbranch_scc1 Lp7_loop", 1)
            t = h + "Lp7_loop:" + "\n".join(l for l in b.split("\n") if pat not in l) + "s_cbranch_scc1 Lp7_loop" + r
    if 'nobar' in MFL:
        t = t.replace("s_barrier", "s_nop 0")
    if 'nox' in MFL:
        t = "\n".join(l for l in t.split("\n") if not (l.rstrip().endswith(" lds") and "s[8:11]" in l))
    if 'now' in MFL:
        t = "\n".join(l for l in t.split("\n") if not (l.rstrip().endswith(" lds") and "s[12:15]" in l))
    if 'nodma' in MFL:
        t = "\n".join(l for l in t.split("\n") if not l.rstrip().endswith(" lds"))
    return t.replace("CODE_KB", os.environ.get("CODE_KB", "70"))
```

```python
from lib import *
from gemm4 import *

wv = 10
rdx, rdw = 16, 18
sX, sW, sWv, sHo = 70, 71, 79, 88
sRb, sCt, sKh, sTile = 73, 76, 77, 78
T = 24
AB, AA, PB, PA = 32, 96, 160, 192
NS = 4
aSave = 212
DL = int(os.environ.get("DL", 2))


sXb, sWb = 92, 93
KS = {n: (KSeq(0, n, 72), KSeq(30, n, 72)) for n in (8, 28)}


def acc(base, mi, ni): return ('v', base + 4 * (4 * mi + ni))


def make(name, base, half=False, lin=False):
    g = Gemm()
    g.name, g.woff = name, 16 * KB
    g.xlin, g.xhs = True, 8192
    R = Ring(NS, 32 * KB, 64)
    R.regs = list(range(rdx, rdw + 4))
    g.rings = [R]
    g.xrd, g.wrd = [(rdx, rdx), (rdx + 1, rdx + 1)], list(range(rdw, rdw + 4))
    g.xfr = [(i >> 1, 1024 * (i & 1)) for i in range(4)]
    g.wfr = [(b, 0) for b in range(4)]
    g.mf = [(acc(base, mi, ni), mi, ni, 'wx') for ni in range(4) for mi in range(2 if half else 4)]
    g.fx, g.fw = 64, 96
    g.sCnt = 69
    ld = lambda v, s, o, j, f: "buffer_load_dwordx4 v%d, s[%d:%d], s%d offen offset:%d%s lds" % (v, s, s + 3, o, 1024 * j, f)
    g.dma = [
        (R, 16 * KB, [ld(wv + j, 12, sW, j, "") for j in range(4)], ["s_add_u32 s%d, s%d, %d" % (sW, sW, 64 * 2048)]),
        (R, 0, [ld(2, 8, sX, j, SC1L) for j in range(4)], ["s_add_u32 s%d, s%d, %d" % (sX, sX, 16 * KB)]),
    ]
    if not half and not lin:
        kx, kw = KS[8 if base == AB else 28]
        g.dma[0] = g.dma[0][:3] + (kw.step() + ["s_lshl_b32 s72, s%d, 17" % kw.k, "s_add_u32 s%d, s%d, s72" % (sW, sWb)],)
        g.dma[1] = g.dma[1][:3] + (kx.step() + ["s_lshl_b32 s72, s%d, 14" % kx.k, "s_add_u32 s%d, s%d, s72" % (sX, sXb)],)
    if half:
        g.dma[1] = (R, ('s', sHo), [ld(2, 8, sX, j, SC1L) for j in range(2)], ["s_add_u32 s%d, s%d, %d" % (sX, sX, 16 * KB)])
    return g


def to_lin():
    return ["s_add_u32 s%d, s%d, %d" % (sX, sXb, 28 << 14), "s_add_u32 s%d, s%d, %d" % (sW, sWb, 28 << 17)]


aNaN = 244


def fill_items():
    c = Col()
    xch_off(c, 12, True, True)
    L = ["s_add_u32 s8, s%d, %d\ns_addc_u32 s9, s%d, 0" % (P_WS, WS_XCH, P_WS + 1), "s_mov_b32 s10, %d" % (16 * MB), "s_mov_b32 s11, 0x00020000"]
    L += list(c) + ["s_add_u32 s13, s12, 4096", "s_add_u32 s14, s12, %d" % (8 * MB), "s_add_u32 s15, s13, %d" % (8 * MB)]
    return L + ["buffer_store_dwordx4 %s, v2, s[8:11], s%d offen offset:%d%s" % (a4(aNaN), 12 + i // 4, 1024 * (i % 4), SC1) for i in range(16)]


def recv_check(a, isA, d):
    P = PA if isA else PB
    L, D = a.newlabel("Lrc"), a.newlabel("Lpolld")
    a("s_mov_b32 s72, 0x40000")
    a.label(L)
    t = 4
    for k in range(4):
        a("v_max3_u32 v%d, v%d, v%d, v%d" % (t + k, P + 8 * k, P + 8 * k + 1, P + 8 * k + 2))
    for e in (3, 5):
        for k in range(4):
            a("v_max3_u32 v%d, v%d, v%d, v%d" % (t + k, t + k, P + 8 * k + e, P + 8 * k + e + 1))
    for k in range(4):
        a("v_max_u32 v%d, v%d, v%d" % (t + k, t + k, P + 8 * k + 7))
    a("v_max3_u32 v%d, v%d, v%d, v%d" % (t, t, t + 1, t + 2))
    a("v_max_u32 v%d, v%d, v%d" % (t, t, t + 3))
    a("v_cmp_eq_u32 vcc, -1, v%d" % t)
    a("s_cbranch_vccz %s" % D)
    for x in recv_items(isA, d):
        if kind(x) == 'd':
            a(x)
    a("s_sub_u32 s72, s72, 1")
    a("s_waitcnt vmcnt(0)")
    a("s_cbranch_scc0 %s ; @poll" % L)
    a.label(D)


def to_half():
    return ["s_and_b32 s%d, s%d, 1" % (sHo, S_WAVE), "s_lshl_b32 s%d, s%d, 12" % (sHo, sHo),
            "s_lshr_b32 s72, s%d, 1" % S_WAVE, "s_lshl_b32 s72, s72, 13", "s_add_u32 s%d, s%d, s72" % (sHo, sHo),
            "s_lshl_b32 s72, s%d, 11" % sKh, "s_add_u32 s%d, s%d, s72" % (sHo, sHo), "s_sub_u32 s%d, s%d, s%d" % (sHo, sHo, sWv),
            "s_add_u32 s%d, s%d, s%d" % (sX, sXb, sHo), "s_add_u32 s%d, s%d, %d" % (sX, sX, (32 - DL) << 14),
            "s_add_u32 s%d, s%d, %d" % (sW, sWb, (32 - DL) << 17)]


def to_partner():
    return ["s_sub_u32 s%d, s%d, %d" % (sX, sX, DL << 14), "s_xor_b32 s%d, s%d, %d" % (sX, sX, 1 << 19),
            "s_sub_u32 s%d, s%d, %d" % (sW, sW, DL << 17), "s_xor_b32 s%d, s%d, %d" % (sW, sW, 1 << 22)]


def ids(a):
    a("s_and_b32 s4, s2, 1")
    a("s_lshl_b32 s4, s4, 3")
    a("s_bfe_u32 s5, s2, 0x30003")
    a("s_add_u32 s%d, s4, s5" % sRb)
    a("s_bfe_u32 s4, s2, 0x10001")
    a("s_lshl_b32 s4, s4, 2")
    a("s_lshr_b32 s5, s2, 6")
    a("s_add_u32 s%d, s4, s5" % sCt)
    a("s_bfe_u32 s%d, s2, 0x10002" % sKh)
    a("s_lshl_b32 s%d, s%d, 3" % (sTile, sRb))
    a("s_add_u32 s%d, s%d, s%d" % (sTile, sTile, sCt))
    a("s_lshl_b32 s%d, s%d, 12" % (sWv, S_WAVE))
    a("s_add_u32 s64, s%d, %d" % (sWv, 128 * KB))


def lanes(a, T):
    for i in range(4):
        a("v_accvgpr_write_b32 a%d, -1" % (aNaN + i))
    lane_setup(a, T)
    a("s_and_b32 s4, s%d, 1" % S_WAVE)
    a("s_lshl_b32 s4, s4, 16")
    a("s_lshr_b32 s5, s%d, 1" % S_WAVE)
    a("s_lshl_b32 s5, s5, 7")
    a("s_add_u32 s4, s4, s5")
    a("v_lshl_add_u32 v%d, v%d, 11, v%d" % (T, T, T + 1))
    a("v_add_u32 v%d, s4, v%d" % (T, T))
    for j in range(4):
        a("v_add_u32 v%d, %d, v%d" % (T + 1, j * (8 * 2048 - 1024), T))
        a("v_accvgpr_write_b32 a%d, v%d" % (aSave + j, T + 1))


def stage_items(g, s, what):
    L = []
    for i, w in enumerate("wx"):
        if w in what:
            ring, m0, ins, post = g.dma[i]
            L += ["s_add_u32 m0, s%d, %d" % (sWv, (1 + (3 + s) % NS) * 32 * KB + m0)] + ins + post
    return L


def job_w(isA):
    c = Col()
    srd(c, 12, P_WO if isA else P_BWO, (4096 if isA else 1024) * 2048)
    c("s_lshl_b32 s%d, s%d, %d" % (sWb, sKh, 22 if isA else 20))
    c("s_lshl_b32 s72, s%d, 8" % sCt)
    c("s_add_u32 s%d, s%d, s72" % (sWb, sWb))
    kw = KS[28 if isA else 8][1]
    return list(c) + ["s_add_u32 s72, s%d, s%d" % (sRb, sCt)] + kw.init("s72", "0") + \
        ["s_lshl_b32 s72, s%d, 17" % kw.k, "s_add_u32 s%d, s%d, s72" % (sW, sWb)]


def job_x(isA):
    off = WS_CTX if isA else WS_OB
    L = ["s_add_u32 s8, s%d, %d\ns_addc_u32 s9, s%d, 0" % (P_WS, off, P_WS + 1),
         "s_mov_b32 s10, %d" % ((16 if isA else 4) * MB), "s_mov_b32 s11, 0x00020000",
         "s_lshl_b32 s%d, s%d, 1" % (sXb, sRb), "s_add_u32 s%d, s%d, s%d" % (sXb, sXb, sKh),
         "s_lshl_b32 s%d, s%d, %d" % (sXb, sXb, 19 if isA else 17),
         "s_add_u32 s%d, s%d, s%d" % (sXb, sXb, sWv)]
    kx = KS[28 if isA else 8][0]
    L += ["s_add_u32 s72, s%d, s%d" % (sRb, sCt)] + kx.init("s72", "0") + \
        ["s_lshl_b32 s72, s%d, 14" % kx.k, "s_add_u32 s%d, s%d, s72" % (sX, sXb)]
    return L


def read_bases(a, slot):
    a("s_lshr_b32 s4, s%d, 1" % S_WAVE)
    a("s_lshl_b32 s4, s4, 12")
    a("s_add_u32 s4, s4, %d" % (slot * 32 * KB))
    a("s_lshl_b32 s5, s%d, 11" % sKh)
    a("s_add_u32 s4, s4, s5")
    a("v_add_u32 v%d, s4, v2" % rdx)
    a("v_xor_b32 v%d, 0x800, v%d" % (rdx + 1, rdx))
    a("s_and_b32 s4, s%d, 1" % S_WAVE)
    a("s_lshl_b32 s4, s4, 13")
    a("s_add_u32 s4, s4, %d" % (slot * 32 * KB))
    wread_base(a, list(range(rdw, rdw + 4)), range(4), T, "s4")


def xch_srd(a):
    srd(a, 16, P_WS, 16 * MB, WS_XCH)


def xch_off(a, d, isA, mine):
    a("s_lshl_b32 s%d, s%d, 1" % (d, sTile))
    a("s_add_u32 s%d, s%d, s%d" % (d, d, sKh))
    if not mine:
        a("s_xor_b32 s%d, s%d, 1" % (d, d))
    a("s_lshl_b32 s%d, s%d, 2" % (d, d))
    a("s_add_u32 s%d, s%d, s%d" % (d, d, S_WAVE))
    a("s_lshl_b32 s%d, s%d, 13" % (d, d))
    if not isA:
        a("s_add_u32 s%d, s%d, %d" % (d, d, 8 * MB))


def send_items(base, isA, d):
    c = Col()
    xch_off(c, d, isA, False)
    c("s_add_u32 s%d, s%d, 4096" % (d + 1, d))
    for i in range(8):
        c("buffer_store_dwordx4 %s, v2, s[16:19], s%d offen offset:%d%s" % (v4(base + 32 + 4 * i), d + i // 4, 1024 * (i % 4), SC1))
    return list(c)


def recv_items(isA, d):
    c = Col()
    xch_off(c, d, isA, True)
    c("s_add_u32 s%d, s%d, 4096" % (d + 1, d))
    for i in range(8):
        c("buffer_load_dwordx4 %s, v2, s[16:19], s%d offen offset:%d%s" % (v4((PA if isA else PB) + 4 * i), d + i // 4, 1024 * (i % 4), SC1))
    return list(c)


def flag_pos(a, isA, mine, d):
    a("s_lshl_b32 s%d, s%d, 1" % (d, sTile))
    a("s_add_u32 s%d, s%d, s%d" % (d, d, sKh))
    if not mine:
        a("s_xor_b32 s%d, s%d, 1" % (d, d))
    a("s_lshl_b32 s%d, s%d, 7" % (d, d))
    a("s_add_u32 s%d, s%d, %d" % (d, d, F_XA if isA else F_XB))


def out_setup(a):
    srd(a, 20, P_OUT, 8 * MB)
    a("v_bfe_u32 v%d, v1, 4, 1" % (T + 1))
    a("v_lshrrev_b32 v%d, 5, v1" % (T + 2))
    a("v_lshl_or_b32 v%d, v%d, 1, v%d" % (T + 1, T + 1, T + 2))
    a("v_lshlrev_b32 v%d, 4, v%d" % (T + 1, T + 1))
    a("v_and_b32 v%d, 15, v1" % T)
    a("v_lshl_add_u32 v%d, v%d, 14, v%d" % (T + 2, T, T + 1))
    a("v_lshl_add_u32 v%d, v%d, 12, v%d" % (T + 3, T, T + 1))


def out_off(a, isA, d):
    a("s_lshl_b32 s%d, s%d, 19" % (d, sRb))
    a("s_lshl_b32 s72, s%d, 8" % sCt)
    a("s_add_u32 s%d, s%d, s72" % (d, d))
    a("s_and_b32 s72, s%d, 1" % S_WAVE)
    a("s_lshl_b32 s72, s72, 7")
    a("s_add_u32 s%d, s%d, s72" % (d, d))
    a("s_lshr_b32 s72, s%d, 1" % S_WAVE)
    a("s_lshl_b32 s72, s72, 1")
    a("s_add_u32 s72, s72, s%d" % sKh)
    a("s_lshl_b32 s72, s72, %d" % (12 if isA else 17))
    a("s_add_u32 s%d, s%d, s72" % (d, d))
    if not isA:
        a("s_add_u32 s%d, s%d, 2048" % (d, d))
    a("s_add_u32 s%d, s%d, %d" % (d + 1, d, (64 if isA else 16) * 4096))


def finish(base, isA, d):
    PR = PA if isA else PB
    out = []
    for q in range(4):
        u = PR + 8 * q
        L = ["v_pk_add_f32 v[%d:%d], v[%d:%d], v[%d:%d]" % (u + e, u + e + 1, u + e, u + e + 1, base + 8 * q + e, base + 8 * q + e + 1) for e in range(0, 8, 2)]
        L += ["v_cvt_pk_bf16_f32 v%d, v%d, v%d" % (u + e, u + 2 * e, u + 2 * e + 1) for e in range(4)]
        L += ["v_permlane16_swap_b32 v%d, v%d" % (u, u + 2), "v_permlane16_swap_b32 v%d, v%d" % (u + 1, u + 3)]
        L += ["buffer_store_dwordx4 %s, v%d, s[20:23], s%d offen offset:%d%s" % (v4(u), T + (2 if isA else 3), d + (q >> 1), (q & 1) * 64,
                                                                                os.environ.get("OUTF", ""))]
        out.append(L)
    return out
```

```python
from lib import *
from gemm4 import *

FL = set(os.environ.get("AFLAGS", "").split(","))
THR = float(os.environ.get("LTHR", 2.0 ** 64))
AH = int(os.environ.get("AH", 11))
EB = int(os.environ.get("EB", 2))
WG_ = int(os.environ.get("WGRP", 8))

vLane, vL16, vK, vV, vNEG = 1, 2, 3, 4, 5
vT = 6
vNM = 16
vP = 32
vS = 64
vO = 128
aF = 0
aQ = 128
aL = 192
aOne = 208
sHead, sPair = 24, 25
sKV = 20
sCtx = 16
sKm, sVm, sKo, sVo = 26, 27, 28, 29
sMa, sMb, sCnt, sFail = 30, 31, 88, 89
sMask = 32
sT0, sT1 = 4, 5
CST = (128 ** -0.5) * math.log2(math.e)


def Oreg(g, db):
    return ('v', vO + 4 * (8 * g + db))


def Qreg(g, ds):
    return ('a', aQ + 4 * (4 * g + ds))


def ids(a):
    a("s_and_b32 s%d, s2, 7" % sHead)
    a("s_lshr_b32 s4, s2, 6")
    a("s_lshl_b32 s4, s4, 3")
    a("s_add_u32 s%d, s%d, s4" % (sHead, sHead))
    a("s_lshr_b32 s4, s2, 3")
    a("s_and_b32 s%d, s4, 6" % sPair)
    a("s_xor_b32 s4, s4, s2")
    a("s_bfe_u32 s4, s4, 0x10003")
    a("s_add_u32 s%d, s%d, s4" % (sPair, sPair))


def long_blk(a, d):
    a("s_and_b32 s%d, s%d, 1" % (d, sPair))
    a("s_lshl_b32 s%d, s%d, 1" % (d, d))
    a("s_add_u32 s%d, s%d, 14" % (d, d))
    a("s_sub_u32 s%d, s%d, s%d" % (d, d, sPair))


def kv_dma(which):
    m, o = (sKm, sKo) if which == 'K' else (sVm, sVo)
    return ["s_mov_b32 m0, s%d" % m] + \
           ["buffer_load_dwordx4 v%d, s[%d:%d], s%d offen offset:%d%s lds" % (vL16, sKV, sKV + 3, o, 1024 * j, SC1L) for j in range(4)]


def gray_mask(t):
    return 0x4000 if t % 2 == 0 else 0x8000


def kv_setup(a):
    a("s_lshl_b32 s4, s%d, 20" % sHead)
    long_blk(a, 5)
    a("s_add_u32 s5, s5, 1")
    a("s_lshl_b32 s5, s5, 16")
    srd(a, sKV, P_WS, "s5", WS_KV, 4)
    a("s_lshl_b32 s%d, s%d, 12" % (sKo, S_WAVE))
    a("s_add_u32 s%d, s%d, 0xc000" % (sKm, sKo))
    a("s_add_u32 s%d, s%d, 0x10000" % (sVm, sKo))
    a("s_add_u32 s%d, s%d, 0x4000" % (sVo, sKo))


NPF = 0 if 'nopf' in FL else 10


def pf_setup(a):
    a("s_lshl_b32 s4, s2, 2")
    a("s_add_u32 s4, s4, s%d" % S_WAVE)
    a("s_lshl_b32 s6, s4, 13")
    a("s_lshl_b32 s7, s4, 11")
    srd(a, 8, P_WO, 8 * MB)
    srd(a, 12, P_BWO, 2 * MB)


def pf_items():
    L = []
    for i in range(8):
        if i == 4:
            L.append("s_add_u32 s6, s6, 4096")
        L.append("buffer_load_dwordx4 a[64:67], v%d, s[8:11], s6 offen offset:%d ; @dummy" % (vL16, (i % 4) * 1024))
    for i in range(2):
        L.append("buffer_load_dwordx4 a[64:67], v%d, s[12:15], s7 offen offset:%d ; @dummy" % (vL16, i * 1024))
    return L if NPF else []


def kv_prologue_items(part=None):
    L = []
    tk = tv = 0
    for i, w in enumerate("KKVKVKV"):
        if i == 3 and part is not None:
            if part == 0:
                return L
            L = []
        L += kv_dma(w)
        if w == 'K':
            L += ["s_xor_b32 s%d, s%d, 0x%x" % (sKm, sKm, gray_mask(tk)), "s_add_u32 s%d, s%d, 0x8000" % (sKo, sKo)]
            tk += 1
        else:
            L += ["s_xor_b32 s%d, s%d, 0x%x" % (sVm, sVm, gray_mask(tv)), "s_add_u32 s%d, s%d, 0x8000" % (sVo, sVo)]
            tv += 1
    return L


def qk_frags(kindq, half, sb):
    F = []
    if kindq is None:
        return F
    dbl = kindq[0] == 'D'
    gs = [0, 1, 2, 3] if dbl else [2, 3]
    if kindq.endswith("'"):
        gs = gs[1:]
    c0 = kindq.endswith("0")
    for jb in range(2 if dbl else 4):
        for ds in range(4):
            ms = []
            for g in gs:
                blk = (2 * g + jb) if dbl else (2 * (2 * (jb >> 1) + g - 2) + (jb & 1))
                ms.append((('v', sb + 4 * blk), Qreg(g, ds), ("0" if c0 else ('v', vNM + 4 * g)) if ds == 0 else None))
            F.append(('K', ((2 * half + jb) if dbl else jb) * 4096 + ds * 1024, ms))
    return F


def pv_frags(kindp, half, pb):
    F = []
    if kindp is None:
        return F, []
    dbl = kindp[0] == 'D'
    gs = [0, 1, 2, 3] if dbl else [2, 3]
    if kindp.endswith("'"):
        gs = gs[1:]
    sums = []
    for kc in range(1 if dbl else 2):
        for g in gs:
            pi = g if dbl else 2 * kc + g - 2
            sums.append(mfma(('a', aL + 4 * g), ('a', aOne), ('v', pb + 4 * pi)))
        for db in range(8):
            ms = [(Oreg(g, db), ('v', pb + 4 * (g if dbl else 2 * kc + g - 2)), None) for g in gs]
            F.append(('V', (half if dbl else kc) * 8192 + db * 1024, ms))
    return F, sums


def sm_items(sm, sb, pb):
    out = []
    if sm is None:
        return out
    for i in range(4):
        masks = []
        if sm != 'p':
            if sm[0] == 'D':
                gq, jbs = i, [2 * sm[1], 2 * sm[1] + 1]
                lvl = sm[1] >> 1
                if i >= 2:
                    gq = 99
            else:
                gq, jbs = i & 1, [4 * sm[1] + 2 * (i >> 1), 4 * sm[1] + 2 * (i >> 1) + 1]
                lvl = sm[1]
            if lvl > gq:
                continue
            if lvl == gq:
                for e, j16 in enumerate(jbs):
                    for r in range(4):
                        x = sb + 8 * i + 4 * e + r
                        m = sMask + 2 * (4 * (j16 & 3) + r)
                        masks.append((x, "v_cndmask_b32 v%d, v%d, v%d, s[%d:%d]" % (x, x, vNEG, m, m + 1)))
        exps = ["v_exp_f32 v%d, v%d" % (sb + 8 * i + e, sb + 8 * i + e) for e in range(8)]
        cvts = ["v_cvt_pk_bf16_f32 v%d, v%d, v%d" % (pb + 4 * i + e, sb + 8 * i + 2 * e, sb + 8 * i + 2 * e + 1) for e in range(4)]
        out.append((dict(masks), exps, cvts))
    return out


class Rnd:
    def __init__(self, par, qk, sm, pv, bar=False, issK=None, issV=None, togK=None, togV=None, togVpre=None):
        self.par, self.qk, self.sm, self.pv, self.bar = par, qk, sm, pv, bar
        self.issK, self.issV, self.togK, self.togV, self.togVpre = issK, issV, togK, togV, togVpre
        self.vm = None
        self.xdma = []
        self.xq = []
        self.after_bar = None
        self.first = False

    def frags(self):
        par = self.par
        Fq = qk_frags(self.qk, par ^ 1, vS + 32 * (par ^ 1))
        Fp, sums = pv_frags(self.pv, par ^ 1, vP + 16 * (par ^ 1))
        return Fq, Fp, sums


def fread(ring, off, slot, tag):
    return "ds_read_b128 %s, v%d offset:%d ; @%s" % (a4(aF + 4 * (slot % 16)), vK if ring == 'K' else vV, off, tag)


def tog(reg, m):
    return "v_xor_b32 v%d, %s, v%d" % (reg, m, reg)


def emit_round(a, R, nxt, ph, pend, extra_scal=None):
    Fq, Fp, sums = R.frags()
    F = Fq + Fp
    nF = len(F)
    Fn = []
    if nxt is not None:
        q, p, _ = nxt.frags()
        Fn = (q + p)[:AH]
    mf = []
    first = []
    lastu = {}
    si = 0
    i0 = 0
    if 'nochain' not in FL:
        while i0 < len(Fq):
            base = len(mf)
            for k in range(len(F[i0][2])):
                for e in range(4):
                    d, b, c = F[i0 + e][2][k]
                    lastu[i0 + e] = len(mf)
                    mf.append(mfma(d, ('a', aF + 4 * ((ph + i0 + e) % 16)), b, c))
            first += [base + e for e in range(4)]
            i0 += 4
    for i, (ring, off, ms) in enumerate(F):
        if i < i0:
            continue
        first.append(len(mf))
        for d, b, c in ms:
            mf.append(mfma(d, ('a', aF + 4 * ((ph + i) % 16)), b, c))
        lastu[i] = len(mf) - 1
        if ring == 'V' and si < len(sums):
            per = len(sums) * 8 // len(Fp)
            k = i - len(Fq)
            if (k % 8) < per:
                mf.append(sums[si])
                si += 1
    assert si == len(sums)
    sg = Seg(mf)
    n = sg.n
    if R.bar:
        if not EB or R.first:
            sg.pre.append("s_waitcnt vmcnt(%d)" % R.vm)
            sg.pre.append("s_barrier")
        sg.pre.append("AFTERBAR")
    if EB and nxt is not None and nxt.bar:
        sg.put(n - EB, "s_waitcnt vmcnt(%d)\ns_barrier" % R.vm)
        sg.used[n - EB] = 8
    grp = 4 if len(F[0][2]) >= 3 else WG_
    i = 0
    dead = {}
    while i < nF:
        gsz = 4 if len(F[i][2]) != 2 else WG_
        j = min(nF - 1, i + gsz - 1, i + AH - 3)
        for x in range(i, j + 1):
            dead[x] = first[i] - 2
        w = "WAIT f%d" % (ph + j)
        if first[i] == 0:
            sg.pre.append(w)
        else:
            sg.put(first[i] - 1, w)
        i = j + 1
    SM = sm_items(R.sm, vS + 32 * R.par, vP + 16 * R.par)
    nexp = 8 * len(SM)
    eg = []
    if nexp:
        last = 0
        k = 0
        for masks, exps, cvts in SM:
            for e, x in enumerate(exps):
                want = (k * (n - 2)) // nexp
                reg = int(x.split()[1][1:-1])
                want = max(want, last)
                if reg in masks:
                    want = max(want, 1)
                g = sg.place(x, want, lo=last)
                eg.append(g)
                last = g
                k += 1
    items = list(R.xdma)
    if R.issK is not None:
        items += kv_dma('K') + ["s_xor_b32 s%d, s%d, %s" % (sKm, sKm, R.issK), "s_add_u32 s%d, s%d, 0x8000" % (sKo, sKo)]
    if R.issV is not None:
        items += kv_dma('V') + ["s_xor_b32 s%d, s%d, %s" % (sVm, sVm, R.issV), "s_add_u32 s%d, s%d, 0x8000" % (sVo, sVo)]
    if 'nodma' in FL:
        items = [x for x in items if kind(x) != 'd']
    if items:
        place_dma(sg, items, 0, n - 3 - EB) if any(kind(x) == 'd' for x in items) else [sg.place(x, 0) for x in items]
    last = 0
    pace = [(first[i & ~3] + (i & 3) * len(F[i][2])) if i < len(Fq) else first[i] for i in range(nF)]
    seq = [(j, F[j], False) for j in range(min(AH, nF), nF)] + [(nF + j, f, True) for j, f in enumerate(Fn)]
    prevK = prevV = False
    doneTK = doneTV = doneTVp = False
    lastV = max([j for j, f, nx in seq if f[0] == 'V' and not nx], default=-1)
    for j, f, nx in seq:
        src = j - AH
        want = pace[src] if src < nF else n - 1
        lo = last
        if j - 16 >= 0:
            lo = max(lo, lastu[j - 16])
        tg = None
        if f[0] == 'K' and nx and R.togK and not doneTK:
            tg, doneTK = tog(vK, R.togK), True
        if f[0] == 'V' and nx and R.togV and not doneTV:
            tg, doneTV = tog(vV, R.togV), True
        if tg:
            g = sg.place(tg, max(lo, want - 1), lo=lo)
            lo = min(n - 1, g + 1)
            if g == n - 1:
                sg.end[g].append(fread(f[0], f[1], ph + j, "f%d" % (ph + j)))
                last = g
                continue
        if sg.end[last] and any(x.startswith("ds_") for x in sg.end[last]):
            sg.end[last].append(fread(f[0], f[1], ph + j, "f%d" % (ph + j)))
            continue
        hi = dead.get(j)
        assert hi is None or hi >= lo, (j, lo, hi)
        g = sg.place(fread(f[0], f[1], ph + j, "f%d" % (ph + j)), max(want, lo), lo=lo, hi=hi)
        last = g
        if j == lastV and R.togV and not doneTV and not any(x[1][0] == 'V' and x[2] for x in seq):
            doneTV = True
            sg.place(tog(vV, R.togV), g, lo=g)
    if R.togV and not doneTV:
        sg.place(tog(vV, R.togV), 0)
    assert not (R.togK and not doneTK and nxt is not None and nxt.qk), "togK unused"
    k = 0
    for masks, exps, cvts in SM:
        for e, x in enumerate(exps):
            reg = int(x.split()[1][1:-1])
            if reg in masks:
                g = eg[k + e]
                q = g - 1
                while q >= 0 and not sg.room(q, 'c'):
                    q -= 1
                if q < 0:
                    sg.c[g].insert(0, masks[reg])
                    sg.used[g] += 4
                else:
                    sg.put(q, masks[reg])
        for e, x in enumerate(cvts):
            g = eg[k + 2 * e + 1]
            if g + 1 <= n - 1:
                sg.place(x, g + 1, lo=g + 1)
            else:
                sg.end[n - 1].append(x)
        k += 8
    for x in (extra_scal or []):
        if x.startswith("s_cmp"):
            sg.end[n - 1].append(x)
        else:
            sg.place(x, n // 2)
    L, pend = resolve_waits(sg.lines(), pend)
    for x in L:
        if x == "AFTERBAR":
            if R.after_bar:
                R.after_bar()
            continue
        a(x)
    nph = (ph + nF) % 16
    pend = ["f%d" % (int(t[1:]) - (ph + nF) + nph) for t in pend]
    R.cost = sg.cost()
    return nph, pend


def ctx_base(a, srow):
    a("s_lshl_b32 s4, s%d, 20" % srow)
    a("s_lshl_b32 s5, s%d, 15" % sHead)
    a("s_add_u32 s4, s4, s5")
    a("s_lshl_b32 s5, s%d, 11" % S_WAVE)
    a("s_add_u32 s4, s4, s5")


def epilogue(a, gs, srow):
    ctx_base(a, srow)
    for k, g in enumerate(gs):
        a("v_accvgpr_read_b32 v%d, a%d" % (vT + 2 * k, aL + 4 * g))
    a("s_mov_b32 s5, 0x%08x" % f32bits(THR))
    for k, g in enumerate(gs):
        a("v_cmp_ngt_f32 vcc, s5, v%d" % (vT + 2 * k))
        a("v_rcp_f32 v%d, v%d" % (vT + 2 * k, vT + 2 * k))
        a("s_or_b32 s%d, s%d, vcc_lo" % (sFail, sFail))
        a("s_or_b32 s%d, s%d, vcc_hi" % (sFail, sFail))
        a("v_mov_b32 v%d, v%d" % (vT + 2 * k + 1, vT + 2 * k))
    store_O(a, gs)


def store_O(a, gs):
    for ds in range(4):
        for k, g in enumerate(gs):
            b = vO + 4 * (8 * g + 2 * ds)
            for e in range(0, 8, 2):
                a("v_pk_mul_f32 v[%d:%d], v[%d:%d], v[%d:%d]" % (b + e, b + e + 1, b + e, b + e + 1, vT + 2 * k, vT + 2 * k + 1))
            for e in range(4):
                a("v_cvt_pk_bf16_f32 v%d, v%d, v%d" % (b + e, b + 2 * e, b + 2 * e + 1))
            a("buffer_store_dwordx4 %s, v%d, s[%d:%d], s4 offen offset:%d%s" % (v4(b), vL16, sCtx, sCtx + 3, (g & 1) * 1024, SC1))
        if ds < 3:
            a("s_add_u32 s4, s4, 8192")


def rowmax(a, src, t0, t1):
    a("v_max3_f32 v%d, v%d, v%d, v%d" % (t0, src, src + 1, src + 2))
    a("v_max3_f32 v%d, v%d, v%d, v%d" % (t1, src + 3, src + 4, src + 5))
    a("v_max3_f32 v%d, v%d, v%d, v%d" % (t0, t0, src + 6, src + 7))
    a("v_max_f32 v%d, v%d, v%d" % (t0, t0, t1))


def xmax(a, pairs):
    for op in ("v_permlane32_swap_b32", "v_permlane16_swap_b32"):
        for t0, t1 in pairs:
            a("v_mov_b32 v%d, v%d" % (t1, t0))
        for t0, t1 in pairs:
            a("%s v%d, v%d" % (op, t0, t1))
        for t0, t1 in pairs:
            a("v_max_f32 v%d, v%d, v%d" % (t0, t0, t1))


def plan(p):
    pass


def build_rounds():
    g0, g1 = "0x4000", "0x8000"
    R = {}
    R['c0'] = Rnd(0, 'D', 'p', None, bar=True, togK=g0)
    R['lo'] = Rnd(1, 'D', 'p', 'D')
    R['le'] = Rnd(0, 'D', 'p', 'D', bar=True, issK="s%d" % sMb, issV="s%d" % sMa, togK="s%d" % sMa, togV="s%d" % sMb)
    R['d0'] = Rnd(0, 'D', ('D', 0), 'D', bar=True, issK=g1, issV=g0, togK=g0, togV=g1)
    R['d1'] = Rnd(1, "D'", ('D', 1), 'D')
    R['d2'] = Rnd(0, "D'", ('D', 2), 'D', bar=True, issK=g0, issV=g1, togK=g1, togV=g0)
    R['d3'] = Rnd(1, 'S', ('D', 3), "D'", bar=True, issK=g1, issV=g0, togK=g0)
    R['t0'] = Rnd(0, 'S', 'p', "D'", bar=True, issK=g0, togK=g1, togV=g1)
    R['so'] = Rnd(1, 'S', 'p', 'S', bar=True, issK=g1, issV=g1, togK=g0, togV=g0)
    R['se'] = Rnd(0, 'S', 'p', 'S', bar=True, issK=g0, issV=g0, togK=g1, togV=g1)
    R['e0'] = Rnd(0, "S'", ('S', 0), 'S', bar=True, togV=g1)
    R['e1'] = Rnd(1, None, ('S', 1), 'S', bar=True, togV=g0)
    R['e2'] = Rnd(0, None, None, "S'")
    R['c0'].first = True
    R['c0'].xdma = kv_prologue_items(part=1)
    R['c0'].xq = [x for x in [('K', 2), ('V', 1), ('K', 3), ('V', 2)] for _ in range(4)]
    R['d1'].xdma = pf_items()
    R['d1'].xq = [('pf', 0)] * NPF
    return R


def path(p):
    seq = ['c0']
    if p:
        seq += ['lo', 'le'] * (2 * p - 1) + ['lo', 'd0']
    seq += ['d1', 'd2', 'd3']
    ns = 2 * (14 + 2 * (p & 1) - 2 * p)
    seq += ['t0', 'EPI'] + ['so', 'se'] * ((ns - 4) // 2) + ['so', 'e0']
    seq += ['e1', 'e2']
    return seq


def simulate(R, q0):
    need = {}
    for p in range(8):
        seq = path(p)
        nd = 4 * p + 4
        ktile = lambda c: c // 2 if c < nd else nd // 2 + (c - nd)
        q = list(q0)
        nk, nv = 4, 3
        rounds = [k for k in seq if k != 'EPI']
        reads = []
        for c, k in enumerate(rounds):
            r = set()
            if R[k].qk:
                r.add(('K', ktile(c + 1)))
            if R[k].pv:
                r.add(('V', ktile(c - 1)))
            reads.append(r)
        full = []
        for c, k in enumerate(rounds):
            r = set(reads[c])
            if c + 1 < len(rounds):
                nx = R[rounds[c + 1]]
                fq, fp, _ = nx.frags()
                for f in (fq + fp)[:AH]:
                    r.add(('K', ktile(c + 2)) if f[0] == 'K' else ('V', ktile(c)))
            full.append(r)
        c = 0
        epi = False
        kaddr, vaddr = 0, 0
        for k in seq:
            if k == 'EPI':
                epi = True
                continue
            r = R[k]
            if r.bar:
                e = c + 1
                while e < len(rounds) and not R[rounds[e]].bar:
                    e += 1
                req = set().union(*full[c:e])
                idx = max(i for i, x in enumerate(q) if x in req)
                assert all(x in q for x in req), (p, k, req)
                key = rounds[c - 1] if (c and EB) else k
                if epi and not EB:
                    q += [('st', 0)] * 8
                    epi = False
                need[key] = min(need.get(key, 63), 0 if k == 'e1' else len(q) - 1 - idx)
                lastbar = c
            if epi:
                q += [('st', 0)] * 8
                epi = False
            q += r.xq
            if k == 'd2':
                pass
            for w, iss in (('K', r.issK), ('V', r.issV)):
                if iss is not None:
                    t = nk if w == 'K' else nv
                    for cc in range(lastbar, len(rounds)):
                        assert (w, t - 4) not in full[cc], (p, k, w, t)
                    if iss.startswith("0x"):
                        assert int(iss, 16) == gray_mask(t), (p, k, w, t)
                    q += [(w, t)] * 4
                    if w == 'K':
                        nk += 1
                    else:
                        nv += 1
            if r.qk:
                assert kaddr == ktile(c + 1), (p, k, kaddr)
            if r.pv:
                assert vaddr == ktile(c - 1), (p, k, vaddr, ktile(c - 1))
            if r.togK:
                if r.togK.startswith("0x"):
                    assert int(r.togK, 16) == gray_mask(kaddr), (p, k)
                kaddr += 1
            if r.togV:
                if r.togV.startswith("0x"):
                    assert int(r.togV, 16) == gray_mask(vaddr), (p, k)
                vaddr += 1
            c += 1
    for k, v in need.items():
        if EB and k == 'c0':
            R[k].vm0 = v
        R[k].vm = v
    return need


def setup1(a):
    a("v_add_u32 v%d, 0xc000, v%d" % (vK, vL16))
    a("v_add_u32 v%d, 0x10000, v%d" % (vV, vL16))
    a("v_mov_b32 v%d, 0xf149f2ca" % vNEG)
    a("s_mov_b32 s%d, 0" % sFail)
    a("v_mfma_f32_32x32x16_bf16 a[%d:%d], a[236:239], a[236:239], 0" % (aL, aL + 15))


def setup2(a):
    if NPF:
        pf_setup(a)
    srd(a, sCtx, P_WS, 16 * MB, WS_CTX)
    a("v_and_b32 v%d, 15, v1" % vT)
    a("v_lshrrev_b32 v%d, 4, v1" % (vT + 1))
    a("v_sub_u32 v%d, v%d, v%d" % (vT, vT, vT + 1))
    a("v_lshlrev_b32 v%d, 2, v%d" % (vT, vT))
    a("v_add_u32 v%d, s%d, v%d" % (vT, S_WAVE, vT))
    for j in range(4):
        for r in range(4):
            m = sMask + 2 * (4 * j + r)
            a("v_cmp_gt_i32 s[%d:%d], %d, v%d" % (m, m + 1, 16 * j + r, vT))
    a("s_mov_b32 s%d, 0x8000" % sMa)
    a("s_mov_b32 s%d, 0x4000" % sMb)


def attention(a, st, H):
    R = build_rounds()
    for k in ('e0',):
        R[k].xdma, R[k].xq = H.pre_e1(), [('fl', 0)]
    R['e1'].xdma, R['e2'].xdma = H.e1_items(), H.e2_items()
    for k in ('lo', 'so'):
        R[k].xdma, R[k].xq = H.fill(), [('st', 0)] * 2
    simulate(R, H.q0)
    a("s_waitcnt vmcnt(%d)" % (len(H.q0) - 1 - max(i for i, t in enumerate(H.q0) if t == ('K', 0))))
    a("s_barrier")
    st(a)
    fq = qk_frags('D0', 0, vS)
    c0q, c0p, _ = R['c0'].frags()
    nx = (c0q + c0p)[:AH]
    assert len(nx) == 8
    sg = Seg([mfma(d, ('a', aF + 4 * (8 + j)), b, c) for j, (ring, off, ms) in enumerate(fq) for d, b, c in ms])
    sg.pre = [fread('K', fq[j][1], 8 + j, "f%d" % (8 + j)) for j in range(8)] + ["WAIT f9"]
    for j in range(8):
        if j and j % 2 == 0:
            sg.put(4 * j - 1, "WAIT f%d" % (9 + j))
        sg.put(4 * j + 3, fread('K', nx[j][1], 16 + j, "f%d" % (16 + j)))
    c = Col()
    setup2(c)
    g = 0
    for k, x in enumerate(c):
        if "s_addc" in x:
            continue
        if k + 1 < len(c) and "s_addc" in c[k + 1]:
            x += "\n" + c[k + 1]
        g = sg.place(x, g, lo=g)
        if kind(x) == 's' and k + 1 < len(c) and kind(c[k + 1]) != 's':
            g += 1
    L = sg.lines()
    L, pend = resolve_waits(L, [])
    for x in L:
        a(x)
    pend = ["f%d" % (int(t[1:]) - 16) for t in pend]
    a("s_cmp_lg_u32 s%d, 0" % sPair)
    a("s_cbranch_scc1 La_nomask0")
    for reg, x in sm_items(('D', 0), vS, vP)[0][0].items():
        a(x)
    a.label("La_nomask0")
    for g in range(4):
        rowmax(a, vS + 8 * g, vT + 2 * g, vT + 2 * g + 1)
    xmax(a, [(vT + 2 * g, vT + 2 * g + 1) for g in range(4)])
    for g in range(4):
        for r in range(4):
            a("v_sub_f32 v%d, 0, v%d" % (vNM + 4 * g + r, vT + 2 * g))
    for g in range(4):
        for e in range(0, 8, 2):
            b = vS + 8 * g + e
            a("v_pk_add_f32 v[%d:%d], v[%d:%d], v[%d:%d]" % (b, b + 1, b, b + 1, vNM + 4 * g, vNM + 4 * g + 1))
    state = {}

    def rnd(k, nk, ph, pend, extra=None):
        assert len(pend) <= 15
        return emit_round(a, R[k], R[nk] if nk else None, ph, pend, extra)

    def join(k, ph, pend):
        if k in state:
            assert state[k] == (ph, pend), (k, state[k], ph, pend)
        state[k] = (ph, list(pend))
    a("s_lshl_b32 s%d, s%d, 1" % (sCnt, sPair))
    ph, pend = rnd('c0', 'lo', 0, pend, ["s_cmp_eq_u32 s%d, 0" % sPair])
    join('lo', ph, pend)
    join('d1', ph, pend)
    a("s_cbranch_scc1 La_d1")
    a(".p2align 6")
    a.label("La_lo")
    ph, pend = rnd('lo', 'le', ph, pend, ["s_sub_u32 s%d, s%d, 1" % (sCnt, sCnt), "s_cmp_eq_u32 s%d, 0" % sCnt])
    join('d0', ph, pend)
    a("s_cbranch_scc1 La_d0")
    ph, pend = rnd('le', 'lo', ph, pend)
    a("s_xor_b32 s%d, s%d, 0xc000" % (sMa, sMa))
    a("s_xor_b32 s%d, s%d, 0xc000" % (sMb, sMb))
    join('lo', ph, pend)
    a("s_branch La_lo")
    a.label("La_d0")
    ph, pend = state['d0']
    ph, pend = rnd('d0', 'd1', ph, pend)
    join('d1', ph, pend)
    a.label("La_d1")
    ph, pend = rnd('d1', 'd2', ph, pend)
    ph, pend = rnd('d2', 'd3', ph, pend)
    H.after_d2()
    ph, pend = rnd('d3', 't0', ph, pend)
    ph, pend = rnd('t0', 'so', ph, pend)
    st(a)
    epilogue(a, [0, 1], sPair)
    st(a)
    long_blk(a, sCnt)
    a("s_sub_u32 s%d, s%d, s%d" % (sCnt, sCnt, sPair))
    a("s_sub_u32 s%d, s%d, 1" % (sCnt, sCnt))
    join('so', ph, pend)
    a(".p2align 6")
    a.label("La_so")
    ph, pend = rnd('so', 'se', ph, pend, ["s_sub_u32 s%d, s%d, 1" % (sCnt, sCnt), "s_cmp_eq_u32 s%d, 0" % sCnt])
    join('e0', ph, pend)
    a("s_cbranch_scc1 La_e0")
    ph, pend = rnd('se', 'so', ph, pend)
    join('so', ph, pend)
    a("s_branch La_so")
    a.label("La_e0")
    ph, pend = state['e0']
    ph, pend = rnd('e0', 'e1', ph, pend)
    join('e1', ph, pend)
    a.label("La_e1")
    R['e1'].after_bar = H.at_e1
    ph, pend = rnd('e1', 'e2', ph, pend)
    ph, pend = rnd('e2', None, ph, pend)
    st(a)
    long_blk(a, sCnt)
    epilogue(a, [2, 3], sCnt)
    slow_path(a)
    if 'v' in FL:
        for k, r in R.items():
            print(k, "vm", r.vm, "cost", r.cost, file=sys.stderr)


def slow_path(a):
    vM, vLs, vD = vNM, vNM + 8, vNM + 4
    sRbk, sCh, sOff = 6, 7, 90
    a("s_cmp_eq_u32 s%d, 0" % sFail)
    a("s_cbranch_scc1 La_done")
    a("s_waitcnt vmcnt(0)")
    long_blk(a, sRbk)
    a.label("La_sl_blk")
    for i in range(64):
        a("v_mov_b32 v%d, 0" % (vO + 64 + i))
    for i in range(8):
        a("v_mov_b32 v%d, 0" % (vLs + i))
    a("v_mov_b32 v%d, v%d" % (vM, vNEG))
    a("v_mov_b32 v%d, v%d" % (vM + 1, vNEG))
    a("v_and_b32 v%d, 15, v1" % vD)
    a("v_lshrrev_b32 v%d, 4, v1" % (vD + 1))
    a("v_sub_u32 v%d, v%d, v%d" % (vD, vD, vD + 1))
    a("v_lshlrev_b32 v%d, 2, v%d" % (vD, vD))
    a("s_lshl_b32 s4, s%d, 7" % sRbk)
    a("s_add_u32 s4, s4, s%d" % S_WAVE)
    a("v_add_u32 v%d, s4, v%d" % (vD, vD))
    a("v_add_u32 v%d, 64, v%d" % (vD + 1, vD))
    a("s_add_u32 s%d, s%d, 1" % (sCh, sRbk))
    a("s_lshl_b32 s%d, s%d, 2" % (sCh, sCh))
    a("s_mov_b32 s%d, 0" % sOff)
    a.label("La_sl_loop")
    for i in range(16):
        if i % 4 == 0:
            a("s_add_u32 s4, s%d, %d" % (sOff, (i // 8) * 16384 + ((i // 4) & 1) * 4096))
        a("buffer_load_dwordx4 %s, v%d, s[%d:%d], s4 offen offset:%d%s" % (a4(4 * i), vL16, sKV, sKV + 3, (i % 4) * 1024, SC1))
    a("s_waitcnt vmcnt(0)")
    for jb in range(2):
        for ds in range(4):
            for k in range(2):
                a(mfma(('v', vS + 8 * k + 4 * jb), ('a', 4 * (4 * jb + ds)), Qreg(2 + k, ds), "0" if ds == 0 else None))
    for k in range(2):
        for jb in range(2):
            for r in range(4):
                x = vS + 8 * k + 4 * jb + r
                a("v_cmp_gt_i32 vcc, %d, v%d" % (16 * jb + r, vD + k))
                a("v_cndmask_b32 v%d, v%d, v%d, vcc" % (x, x, vNEG))
        a("v_subrev_u32 v%d, 32, v%d" % (vD + k, vD + k))
        rowmax(a, vS + 8 * k, vT + 2 * k, vT + 2 * k + 1)
    xmax(a, [(vT + 2 * k, vT + 2 * k + 1) for k in range(2)])
    for k in range(2):
        a("v_max_f32 v%d, v%d, v%d" % (vT + 2 * k, vT + 2 * k, vM + k))
        a("v_sub_f32 v%d, v%d, v%d" % (vT + 2 * k + 1, vM + k, vT + 2 * k))
        a("v_exp_f32 v%d, v%d" % (vT + 2 * k + 1, vT + 2 * k + 1))
        a("v_mov_b32 v%d, v%d" % (vM + k, vT + 2 * k))
        for e in range(8):
            a("v_sub_f32 v%d, v%d, v%d" % (vS + 8 * k + e, vS + 8 * k + e, vM + k))
        for e in range(8):
            a("v_exp_f32 v%d, v%d" % (vS + 8 * k + e, vS + 8 * k + e))
        for e in range(4):
            a("v_mul_f32 v%d, v%d, v%d" % (vLs + 4 * k + e, vLs + 4 * k + e, vT + 2 * k + 1))
        for e in range(32):
            x = vO + 64 + 32 * k + e
            a("v_mul_f32 v%d, v%d, v%d" % (x, x, vT + 2 * k + 1))
        for e in range(4):
            a("v_cvt_pk_bf16_f32 v%d, v%d, v%d" % (vP + 4 * k + e, vS + 8 * k + 2 * e, vS + 8 * k + 2 * e + 1))
    for k in range(2):
        a(mfma(('v', vLs + 4 * k), ('a', aOne), ('v', vP + 4 * k)))
        for db in range(8):
            a(mfma(Oreg(2 + k, db), ('a', 32 + 4 * db), ('v', vP + 4 * k)))
    a("s_add_u32 s%d, s%d, 8192" % (sOff, sOff))
    a("s_and_b32 s4, s%d, 0x4000" % sOff)
    a("s_add_u32 s%d, s%d, s4" % (sOff, sOff))
    a("s_sub_u32 s%d, s%d, 1" % (sCh, sCh))
    a("s_cmp_lg_u32 s%d, 0" % sCh)
    a("s_cbranch_scc1 La_sl_loop")
    ctx_base(a, sRbk)
    for k in range(2):
        a("v_rcp_f32 v%d, v%d" % (vT + 2 * k, vLs + 4 * k))
        a("v_mov_b32 v%d, v%d" % (vT + 2 * k + 1, vT + 2 * k))
    store_O(a, [2, 3])
    a("s_cmp_eq_u32 s%d, s%d" % (sRbk, sPair))
    a("s_cbranch_scc1 La_done")
    for i in range(32):
        a("v_accvgpr_read_b32 v%d, a%d" % (vS + i, aQ + i))
    for i in range(32):
        a("v_accvgpr_write_b32 a%d, v%d" % (aQ + 32 + i, vS + i))
    a("s_mov_b32 s%d, s%d" % (sRbk, sPair))
    a("s_branch La_sl_blk")
    a.label("La_done")
```

```python
from lib import *
from gemm4 import *

wv = 10
rdx, rdw = 16, 18
sX, sW, sWv, sHo = 70, 71, 79, 88
sRb, sCt, sKh, sTile = 73, 76, 77, 78
T = 24
AB, AA, PB, PA = 32, 96, 160, 192
NS = 4
aSave = 212
DL = int(os.environ.get("DL", 2))


sXb, sWb = 92, 93
KS = {n: (KSeq(0, n, 72), KSeq(30, n, 72)) for n in (8, 28)}


def acc(base, mi, ni): return ('v', base + 4 * (4 * mi + ni))


def make(name, base, half=False, lin=False):
    g = Gemm()
    g.name, g.woff = name, 16 * KB
    g.xlin, g.xhs = True, 8192
    R = Ring(NS, 32 * KB, 64)
    R.regs = list(range(rdx, rdw + 4))
    g.rings = [R]
    g.xrd, g.wrd = [(rdx, rdx), (rdx + 1, rdx + 1)], list(range(rdw, rdw + 4))
    g.xfr = [(i >> 1, 1024 * (i & 1)) for i in range(4)]
    g.wfr = [(b, 0) for b in range(4)]
    g.mf = [(acc(base, mi, ni), mi, ni, 'wx') for ni in range(4) for mi in range(2 if half else 4)]
    g.fx, g.fw = 64, 96
    g.sCnt = 69
    ld = lambda v, s, o, j, f: "buffer_load_dwordx4 v%d, s[%d:%d], s%d offen offset:%d%s lds" % (v, s, s + 3, o, 1024 * j, f)
    g.dma = [
        (R, 16 * KB, [ld(wv + j, 12, sW, j, "") for j in range(4)], ["s_add_u32 s%d, s%d, %d" % (sW, sW, 64 * 2048)]),
        (R, 0, [ld(2, 8, sX, j, SC1L) for j in range(4)], ["s_add_u32 s%d, s%d, %d" % (sX, sX, 16 * KB)]),
    ]
    if not half and not lin:
        kx, kw = KS[8 if base == AB else 28]
        g.dma[0] = g.dma[0][:3] + (kw.step() + ["s_lshl_b32 s72, s%d, 17" % kw.k, "s_add_u32 s%d, s%d, s72" % (sW, sWb)],)
        g.dma[1] = g.dma[1][:3] + (kx.step() + ["s_lshl_b32 s72, s%d, 14" % kx.k, "s_add_u32 s%d, s%d, s72" % (sX, sXb)],)
    if half:
        g.dma[1] = (R, ('s', sHo), [ld(2, 8, sX, j, SC1L) for j in range(2)], ["s_add_u32 s%d, s%d, %d" % (sX, sX, 16 * KB)])
    return g


def to_lin():
    return ["s_add_u32 s%d, s%d, %d" % (sX, sXb, 28 << 14), "s_add_u32 s%d, s%d, %d" % (sW, sWb, 28 << 17)]


FS = 64
aNaN = 244


def fill_setup(a):
    xch_off(a, 90, True, True)
    srd(a, FS, P_WS, 16384, WS_XCH, 90)
    a("s_mov_b32 s90, 0")


def fill_items():
    return ["buffer_store_dwordx4 %s, v2, s[%d:%d], s90 offen offset:%d%s" % (a4(aNaN), FS, FS + 3, 1024 * i, SC1) for i in range(2)] + \
           ["s_add_u32 s90, s90, 2048"]


def recv_check(a, isA, d):
    P = PA if isA else PB
    L, D = a.newlabel("Lrc"), a.newlabel("Lpolld")
    a("s_mov_b32 s72, 0x40000")
    a.label(L)
    t = 4
    for k in range(4):
        a("v_max3_u32 v%d, v%d, v%d, v%d" % (t + k, P + 8 * k, P + 8 * k + 1, P + 8 * k + 2))
    for e in (3, 5):
        for k in range(4):
            a("v_max3_u32 v%d, v%d, v%d, v%d" % (t + k, t + k, P + 8 * k + e, P + 8 * k + e + 1))
    for k in range(4):
        a("v_max_u32 v%d, v%d, v%d" % (t + k, t + k, P + 8 * k + 7))
    a("v_max3_u32 v%d, v%d, v%d, v%d" % (t, t, t + 1, t + 2))
    a("v_max_u32 v%d, v%d, v%d" % (t, t, t + 3))
    a("v_cmp_eq_u32 vcc, -1, v%d" % t)
    a("s_cbranch_vccz %s" % D)
    for x in recv_items(isA, d):
        if kind(x) == 'd':
            a(x)
    a("s_sub_u32 s72, s72, 1")
    a("s_waitcnt vmcnt(0)")
    a("s_cbranch_scc0 %s ; @poll" % L)
    a.label(D)


def to_half():
    return ["s_and_b32 s%d, s%d, 1" % (sHo, S_WAVE), "s_lshl_b32 s%d, s%d, 12" % (sHo, sHo),
            "s_lshr_b32 s72, s%d, 1" % S_WAVE, "s_lshl_b32 s72, s72, 13", "s_add_u32 s%d, s%d, s72" % (sHo, sHo),
            "s_lshl_b32 s72, s%d, 11" % sKh, "s_add_u32 s%d, s%d, s72" % (sHo, sHo), "s_sub_u32 s%d, s%d, s%d" % (sHo, sHo, sWv),
            "s_add_u32 s%d, s%d, s%d" % (sX, sXb, sHo), "s_add_u32 s%d, s%d, %d" % (sX, sX, (32 - DL) << 14),
            "s_add_u32 s%d, s%d, %d" % (sW, sWb, (32 - DL) << 17)]


def to_partner():
    return ["s_sub_u32 s%d, s%d, %d" % (sX, sX, DL << 14), "s_xor_b32 s%d, s%d, %d" % (sX, sX, 1 << 19),
            "s_sub_u32 s%d, s%d, %d" % (sW, sW, DL << 17), "s_xor_b32 s%d, s%d, %d" % (sW, sW, 1 << 22)]


def ids(a):
    a("s_and_b32 s4, s2, 1")
    a("s_lshl_b32 s4, s4, 3")
    a("s_bfe_u32 s5, s2, 0x30003")
    a("s_add_u32 s%d, s4, s5" % sRb)
    a("s_bfe_u32 s4, s2, 0x10001")
    a("s_lshl_b32 s4, s4, 2")
    a("s_lshr_b32 s5, s2, 6")
    a("s_add_u32 s%d, s4, s5" % sCt)
    a("s_bfe_u32 s%d, s2, 0x10002" % sKh)
    a("s_lshl_b32 s%d, s%d, 3" % (sTile, sRb))
    a("s_add_u32 s%d, s%d, s%d" % (sTile, sTile, sCt))
    a("s_lshl_b32 s%d, s%d, 12" % (sWv, S_WAVE))


def ring_start(a):
    a("s_add_u32 s64, s%d, %d" % (sWv, 128 * KB))


def lanes(a, T):
    for i in range(4):
        a("v_accvgpr_write_b32 a%d, -1" % (aNaN + i))
    lane_setup(a, T)
    a("s_and_b32 s4, s%d, 1" % S_WAVE)
    a("s_lshl_b32 s4, s4, 16")
    a("s_lshr_b32 s5, s%d, 1" % S_WAVE)
    a("s_lshl_b32 s5, s5, 7")
    a("s_add_u32 s4, s4, s5")
    a("v_lshl_add_u32 v%d, v%d, 11, v%d" % (T, T, T + 1))
    a("v_add_u32 v%d, s4, v%d" % (T, T))
    for j in range(4):
        a("v_add_u32 v%d, %d, v%d" % (T + 1, j * (8 * 2048 - 1024), T))
        a("v_accvgpr_write_b32 a%d, v%d" % (aSave + j, T + 1))


def stage_items(g, s, what):
    L = []
    for i, w in enumerate("wx"):
        if w in what:
            ring, m0, ins, post = g.dma[i]
            L += ["s_add_u32 m0, s%d, %d" % (sWv, (1 + (3 + s) % NS) * 32 * KB + m0)] + ins + post
    return L


def job_w(isA):
    c = Col()
    srd(c, 12, P_WO if isA else P_BWO, (4096 if isA else 1024) * 2048)
    c("s_lshl_b32 s%d, s%d, %d" % (sWb, sKh, 22 if isA else 20))
    c("s_lshl_b32 s72, s%d, 8" % sCt)
    c("s_add_u32 s%d, s%d, s72" % (sWb, sWb))
    kw = KS[28 if isA else 8][1]
    return list(c) + ["s_add_u32 s72, s%d, s%d" % (sRb, sCt)] + kw.init("s72", "0") + \
        ["s_lshl_b32 s72, s%d, 17" % kw.k, "s_add_u32 s%d, s%d, s72" % (sW, sWb)]


def job_x(isA):
    off = WS_CTX if isA else WS_OB
    L = ["s_add_u32 s8, s%d, %d\ns_addc_u32 s9, s%d, 0" % (P_WS, off, P_WS + 1),
         "s_mov_b32 s10, %d" % ((16 if isA else 4) * MB), "s_mov_b32 s11, 0x00020000",
         "s_lshl_b32 s%d, s%d, 1" % (sXb, sRb), "s_add_u32 s%d, s%d, s%d" % (sXb, sXb, sKh),
         "s_lshl_b32 s%d, s%d, %d" % (sXb, sXb, 19 if isA else 17),
         "s_add_u32 s%d, s%d, s%d" % (sXb, sXb, sWv)]
    kx = KS[28 if isA else 8][0]
    L += ["s_add_u32 s72, s%d, s%d" % (sRb, sCt)] + kx.init("s72", "0") + \
        ["s_lshl_b32 s72, s%d, 14" % kx.k, "s_add_u32 s%d, s%d, s72" % (sX, sXb)]
    return L


def read_bases(a, slot):
    a("s_lshr_b32 s4, s%d, 1" % S_WAVE)
    a("s_lshl_b32 s4, s4, 12")
    a("s_add_u32 s4, s4, %d" % (slot * 32 * KB))
    a("s_lshl_b32 s5, s%d, 11" % sKh)
    a("s_add_u32 s4, s4, s5")
    a("v_add_u32 v%d, s4, v2" % rdx)
    a("v_xor_b32 v%d, 0x800, v%d" % (rdx + 1, rdx))
    a("s_and_b32 s4, s%d, 1" % S_WAVE)
    a("s_lshl_b32 s4, s4, 13")
    a("s_add_u32 s4, s4, %d" % (slot * 32 * KB))
    wread_base(a, list(range(rdw, rdw + 4)), range(4), T, "s4")


def xch_srd(a):
    srd(a, 16, P_WS, 16 * MB, WS_XCH)


def xch_off(a, d, isA, mine):
    a("s_lshl_b32 s%d, s%d, 1" % (d, sTile))
    a("s_add_u32 s%d, s%d, s%d" % (d, d, sKh))
    if not mine:
        a("s_xor_b32 s%d, s%d, 1" % (d, d))
    a("s_lshl_b32 s%d, s%d, 2" % (d, d))
    a("s_add_u32 s%d, s%d, s%d" % (d, d, S_WAVE))
    a("s_lshl_b32 s%d, s%d, 14" % (d, d))
    if not isA:
        a("s_add_u32 s%d, s%d, 8192" % (d, d))


def send_items(base, isA, d):
    c = Col()
    xch_off(c, d, isA, False)
    c("s_add_u32 s%d, s%d, 4096" % (d + 1, d))
    for i in range(8):
        c("buffer_store_dwordx4 %s, v2, s[16:19], s%d offen offset:%d%s" % (v4(base + 32 + 4 * i), d + i // 4, 1024 * (i % 4), SC1))
    return list(c)


def recv_items(isA, d):
    c = Col()
    xch_off(c, d, isA, True)
    c("s_add_u32 s%d, s%d, 4096" % (d + 1, d))
    for i in range(8):
        c("buffer_load_dwordx4 %s, v2, s[16:19], s%d offen offset:%d%s" % (v4((PA if isA else PB) + 4 * i), d + i // 4, 1024 * (i % 4), SC1))
    return list(c)


def flag_pos(a, isA, mine, d):
    a("s_lshl_b32 s%d, s%d, 1" % (d, sTile))
    a("s_add_u32 s%d, s%d, s%d" % (d, d, sKh))
    if not mine:
        a("s_xor_b32 s%d, s%d, 1" % (d, d))
    a("s_lshl_b32 s%d, s%d, 7" % (d, d))
    a("s_add_u32 s%d, s%d, %d" % (d, d, F_XA if isA else F_XB))


def out_setup(a):
    srd(a, 20, P_OUT, 8 * MB)
    a("v_bfe_u32 v%d, v1, 4, 1" % (T + 1))
    a("v_lshrrev_b32 v%d, 5, v1" % (T + 2))
    a("v_lshl_or_b32 v%d, v%d, 1, v%d" % (T + 1, T + 1, T + 2))
    a("v_lshlrev_b32 v%d, 4, v%d" % (T + 1, T + 1))
    a("v_and_b32 v%d, 15, v1" % T)
    a("v_lshl_add_u32 v%d, v%d, 14, v%d" % (T + 2, T, T + 1))
    a("v_lshl_add_u32 v%d, v%d, 12, v%d" % (T + 3, T, T + 1))


def out_off(a, isA, d):
    a("s_lshl_b32 s%d, s%d, 19" % (d, sRb))
    a("s_lshl_b32 s72, s%d, 8" % sCt)
    a("s_add_u32 s%d, s%d, s72" % (d, d))
    a("s_and_b32 s72, s%d, 1" % S_WAVE)
    a("s_lshl_b32 s72, s72, 7")
    a("s_add_u32 s%d, s%d, s72" % (d, d))
    a("s_lshr_b32 s72, s%d, 1" % S_WAVE)
    a("s_lshl_b32 s72, s72, 1")
    a("s_add_u32 s72, s72, s%d" % sKh)
    a("s_lshl_b32 s72, s72, %d" % (12 if isA else 17))
    a("s_add_u32 s%d, s%d, s72" % (d, d))
    if not isA:
        a("s_add_u32 s%d, s%d, 2048" % (d, d))
    a("s_add_u32 s%d, s%d, %d" % (d + 1, d, (64 if isA else 16) * 4096))


def finish(base, isA, d):
    PR = PA if isA else PB
    out = []
    for q in range(4):
        u = PR + 8 * q
        L = ["v_pk_add_f32 v[%d:%d], v[%d:%d], v[%d:%d]" % (u + e, u + e + 1, u + e, u + e + 1, base + 8 * q + e, base + 8 * q + e + 1) for e in range(0, 8, 2)]
        L += ["v_cvt_pk_bf16_f32 v%d, v%d, v%d" % (u + e, u + 2 * e, u + 2 * e + 1) for e in range(4)]
        L += ["v_permlane16_swap_b32 v%d, v%d" % (u, u + 2), "v_permlane16_swap_b32 v%d, v%d" % (u + 1, u + 3)]
        L += ["buffer_store_dwordx4 %s, v%d, s[20:23], s%d offen offset:%d%s" % (v4(u), T + (2 if isA else 3), d + (q >> 1), (q & 1) * 64,
                                                                                os.environ.get("OUTF", ""))]
        out.append(L)
    return out
```

```python
from lib import *
from gemm4 import *
import proj4, bfront, attn4, oproj, qproj

MFL = set(os.environ.get("MFLAGS", "").split(","))


def gen(stamp=False):
    a = Asm()
    st = Stamps(stamp, 0)
    a("s_cmp_ge_u32 s2, 256")
    a("s_cbranch_scc1 Lend")
    a("s_load_dwordx16 s[64:79], s[0:1], 0")
    a("s_load_dwordx8 s[80:87], s[0:1], 64")
    a("v_lshrrev_b32 v2, 6, v0")
    a("v_and_b32 v1, 63, v0")
    a("v_readfirstlane_b32 s%d, v2" % S_WAVE)
    a("v_lshlrev_b32 v2, 4, v1")
    if 'ipf' in MFL:
        a("s_getpc_b64 s[6:7]")
        a("s_lshr_b32 s4, s2, 3")
        a("s_lshl_b32 s4, s4, 2")
        a("s_add_u32 s4, s4, s%d" % S_WAVE)
        a("s_min_u32 s4, s4, CODE_KB")
        a("s_lshl_b32 s4, s4, 10")
        a("v_add_u32 v3, s4, v2")
        a("global_load_dwordx4 v[4:7], v3, s[6:7]")
    st(a)
    gk, gv = proj4.make('wx'), proj4.make('xw')
    b0, b1 = bfront.make(0), bfront.make(1)
    g3 = qproj.make()
    if 'nost' in MFL:
        t0 = proj4.trickle
        proj4.trickle = lambda k, a, b: [x.replace("s%d," % proj4.sSt, "0x70000000,").replace("s_add_u32 s60, 0x70000000, ", "s_mov_b32 s60, 0x70000000 ; ") for x in t0(k, a, b)]
    NK = [int(x) for x in os.environ.get("NK", "12").split(",")]
    NW = int(os.environ.get("NW", 8))
    TR3 = [int(x) for x in os.environ.get("TR3", "8,0,8,0,8").split(",")]
    assert NW >= 8 and NW + sum(TR3) == 32
    a("s_bfe_u32 s59, s2, 0x30003")
    a("s_lshr_b32 s4, s2, 7")
    a("s_lshl_b32 s4, s4, 3")
    a("s_add_u32 s59, s59, s4")
    a("s_lshr_b32 s4, s2, 3")
    a("s_xor_b32 s4, s4, s2")
    a("s_bitcmp1_b32 s4, 3")
    a("s_cbranch_scc1 Lp2")

    def common(c):
        attn4.ids(c)
        oproj.lanes(c, 24)
        qproj.lanes(c, 24)
    proj4.setup(a, gk, "s59")
    srd(a, S_FLG, P_WS, 0x40000, WS_FLG)
    tag_make(a, 0)
    for x in proj4.xitems(gk, 0) + proj4.witems(gk, 0):
        a(x)
    c = Col()
    proj4.read_bases(c, gk)
    common(c)
    proj4.out_base(c)
    gk.init(c, [proj4.XS0, 0])
    for x in weave_lines(c, proj4.xitems(gk, 1) + proj4.witems(gk, 1), 0.2, 1.0):
        a(x)
    tag_make(a, 1, 32)
    st(a)
    k0 = st.k
    gk.pro(a, 16, dma=proj4.xitems(gk, 2))
    a("s_mov_b32 s%d, 6" % gk.sCnt)
    gk.loop(a, 8)
    gk.half(a, 1, dma=gk.dma_items())
    if 'st2' in MFL:
        st(a)
    order, epi = proj4.pack('k', NK[0])
    rest = gk.bm(a, order, 18, 18, N=8, dma=gk.dma_items(), nxt=gv, epi=epi, defer=True)
    assert all(kind(x) == 'c' for x in rest), rest
    if 'st2' in MFL:
        st(a)
    order, held = proj4.v_order(NK[0])
    sts = [(proj4.trickle('k', k, k + 1), held[proj4.ORDER['k'][k]]) for k in range(NK[0], 32)]
    gv.bm(a, order, 20, 18, N=8, first=True, dma=gv.dma_items(), nxt=gv, st2=sts, carry=rest)
    a("s_add_u32 s%d, s%d, 0x4000" % (proj4.sSt, proj4.sSt))
    a("s_waitcnt lgkmcnt(0)")
    gv.half(a, 0, adv=True)
    st(a)
    a("s_mov_b32 s%d, 4" % gv.sCnt)
    gv.loop(a, 8)
    gv.iter(a, None, proj4.witems(gv, 0) + qproj.witems(g3, 0) + qproj.witems(g3, 1), after_bar=lambda: qproj.setup(a, g3))
    gv.bar(a, 8)
    gv.half(a, 1, dma=qproj.xitems(g3, 0))
    order, epi = proj4.pack('v', NW)
    gv.bm(a, order, 18, epi=epi, dma=qproj.xitems(g3, 1) + qproj.witems(g3, 2) + qproj.xitems(g3, 2), mid=lambda: tag_load(a, 22))
    qk = VmQ()
    for t, n in (('w0', 4), ('w1', 4), ('x0', 8), ('t', 1), ('st', NW), ('x1', 8), ('w2', 4), ('x2', 8)):
        qk.push(t, n)
    a("s_lshl_b32 s34, s%d, 4" % proj4.sN0)
    a("s_add_u32 s34, s34, s%d" % proj4.sM0)
    a("s_lshl_b32 s34, s34, 7")
    a("s_branch Lp3")
    a.label("Lp2")
    st.k = k0 - 1
    bfront.setup(a, b0, "s59")
    srd(a, S_FLG, P_WS, 0x40000, WS_FLG)
    a("s_cmp_ge_u32 s%d, 2" % S_WAVE)
    a("s_cbranch_scc1 Lp2_r1")
    for rh, g in enumerate((b0, b1)):
        if rh:
            a.label("Lp2_r1")
            st.k = k0 - 1
        nx = 8 if rh else 9
        PFB, PF0 = int(os.environ.get("PFB", 4)), os.environ.get("PF0", "")
        a("s_and_b32 s4, s2, 7")
        a("s_lshl_b32 s4, s4, 4")
        a("s_add_u32 s4, s4, s59")
        a("s_lshl_b32 s4, s4, 2")
        a("s_add_u32 s4, s4, s%d" % S_WAVE)
        a("s_lshl_b32 s51, s4, 13")

        def pf0():
            a("s_lshr_b32 s56, s51, 1")
            srd(a, 52, P_CKV, 2 * MB)
            for i in range(4):
                a("buffer_load_dwordx4 a[192:195], v2, s[52:55], s56 offen offset:%d ; @dummy" % (1024 * i))
            a("s_add_u32 s56, s51, 4096")
            srd(a, 52, P_WUK, 4 * MB)
            for i in range(8):
                a("buffer_load_dwordx4 a[192:195], v2, s[52:55], %s offen offset:%d ; @dummy" % ("s56" if i >= 4 else "s51", 1024 * (i & 3)))
        if PF0 == "a":
            pf0()
        for x in bfront.xitems(g, 0) + bfront.witems(g, 0):
            a(x)
        if PF0 == "b":
            pf0()
        c = Col()
        bfront.read_bases(c)
        common(c)
        bfront.pre(c)
        g.init(c)
        if PFB:
            srd(c, 52, P_WUV, 4 * MB)
            c("s_lshl_b32 s1, s51, 1")
            c("s_mov_b32 s56, s51")
            c("s_mov_b32 s0, 0")
            pf1 = ["buffer_load_dwordx4 a[192:195], v2, s[52:55], s51 offen offset:%d ; @dummy" % (1024 * i) for i in range(PFB)]
            assert PFB == 4
            g.pf = pf1 + ["s_add_u32 s51, s51, 4096", "s_add_u32 s0, s0, 1",
                          "s_cmp_eq_u32 s0, 2\ns_cselect_b32 s52, s%d, s52\ns_cselect_b32 s53, s%d, s53\ns_cselect_b32 s51, s1, s51\n"
                          "s_cselect_b32 s54, %d, s54" % (P_WQ, P_WQ + 1, (8 * MB) if os.environ.get("PFQ", "0") == "1" else 0),
                          "s_cmp_eq_u32 s0, 6\ns_cselect_b32 s52, s%d, s52\ns_cselect_b32 s53, s%d, s53\ns_cselect_b32 s51, s56, s51\n"
                          "s_cselect_b32 s54, %d, s54" % (P_AX, P_AX + 1, (4 * MB) if os.environ.get("PFQ", "0") == "1" else 0),
                          "s_cmp_eq_u32 s0, 8\ns_cselect_b32 s54, 0, s54"]
        for x in weave_lines(c, bfront.xitems(g, 1) + bfront.witems(g, 1), 0.2, 1.0):
            a(x)
        st(a)
        g.pro(a, nx + 6 + (12 if PF0 == 'b' else 0), dma=bfront.xitems(g, 2))
        a("s_mov_b32 s%d, 13" % g.sCnt)
        g.loop(a, nx)
        if 'st2' in MFL:
            st(a)
            st(a)
        g.iter(a, None, bfront.witems(g, 0), after_bar=lambda: qproj.setup(a, g3))
        g.bar(a, 0)
        a("s_mov_b32 s6, 0x%08x" % f32bits(bfront.CB))
        a("s_mov_b32 s7, s6")
        g.half(a, 1)
        order, epi = bfront.pack(g, rh)
        g.bm(a, order, 16, epi=epi, dma=qproj.witems(g3, 0) + qproj.witems(g3, 1) + qproj.xitems(g3, 0), mid=lambda: tag_load(a, 22))
        a("s_waitcnt lgkmcnt(0)")
        a("s_barrier")
        st(a)
        if not rh:
            a("s_branch Lp2_at")
    a.label("Lp2_at")
    c = Col()
    bfront.attend(c)
    for x in weave_lines(c, qproj.xitems(g3, 1) + qproj.witems(g3, 2) + qproj.xitems(g3, 2), 0.0, 0.7):
        a(x)
    qb = VmQ()
    for t, n in (('t', 1), ('w0', 4), ('w1', 4), ('x0', 8), ('x1', 8), ('w2', 4), ('x2', 8), ('st', 8)):
        qb.push(t, n)
    a("s_lshl_b32 s34, s%d, 4" % bfront.sRb)
    a("s_add_u32 s34, s34, s%d" % bfront.sHp)
    a("s_lshl_b32 s34, s34, 7")
    a("s_add_u32 s34, s34, %d" % F_OB)
    a("s_mov_b32 s%d, 0x70000000" % proj4.sSt)
    a.label("Lp3")
    st(a)
    qproj.restore(a)
    g3.init(a, [qproj.XS0, 0])
    need = lambda *t: min(qk.need(*t), qb.need(*t))

    def push(t, n):
        qk.push(t, n), qb.push(t, n)
    cum = [NW + sum(TR3[:k]) for k in range(len(TR3) + 1)]
    g3.pro(a, need('w0', 'x0'), dma=proj4.trickle('v', cum[0], cum[1]))
    push('st', TR3[0])
    last = len(TR3) + 1
    for s in range(1, last + 1):
        N = need('w%d' % s, 'x%d' % s, s, *(['st'] if s == last else []))
        g3.iter(a, N, g3.dma_items() + (proj4.trickle('v', cum[s], cum[s + 1]) if s < len(TR3) else []),
                after_bar=(lambda: (tag_get(a, 22, 12), signal(a, 22, ["s34"], 3))) if s == last else None)
        push(s + 2, 12)
        if s < len(TR3):
            push('st', TR3[s])
    if last < 12:
        a("s_mov_b32 s%d, %d" % (g3.sCnt, 12 - last))
        g3.loop(a, 12)
    else:
        g3.bar(a, 12)

    def ids():
        a("s_lshr_b32 s34, s%d, 1" % attn4.sHead)
        a("s_lshl_b32 s34, s34, 11")
        for x in flag_addr(3, 8):
            a(x)
    g3.iter(a, None, [flag_load(22, "s34", 3)] + g3.dma_items(), after_bar=ids)

    def go():
        flag_check(a, 22, "s34", 3)
        attn4.kv_setup(a)
        oproj.ids(a)
    it = attn4.kv_prologue_items(0)
    cut = [i for i, x in enumerate(it) if "m0" in x][1]
    g3.iter(a, 12, it[:cut], after_bar=go)
    g3.bar(a, 4)
    a("s_mov_b32 s6, 0x%08x" % f32bits(attn4.CST))
    a("s_mov_b32 s7, s6")
    g3.half(a, 1, dma=it[cut:])
    order, epi = qproj.epilogue()
    g3.bm(a, order, 16, epi=epi, bar=False)
    st(a)
    attn4.setup1(a)
    oproj.fill_setup(a)
    st(a)
    g6, g7 = oproj.make("p6", oproj.AB), oproj.make("p7", oproj.AA)

    class H:
        q0 = [t for t in (('K', 0), ('K', 1), ('V', 0)) for _ in range(4)]

        @staticmethod
        def after_d2():
            a("s_lshr_b32 s91, s%d, 1" % oproj.sRb)
            a("s_lshl_b32 s91, s91, 11")
            a("s_add_u32 s91, s91, %d" % F_OB)
            for x in flag_addr(14):
                a(x)

        @staticmethod
        def fill():
            return oproj.fill_items()

        @staticmethod
        def pre_e1():
            return [flag_load(12, "s91", 14)]

        @staticmethod
        def at_e1():
            flag_check(a, 12, "s91", 14)
            oproj.ring_start(a)
            for j in range(4):
                a("v_accvgpr_read_b32 v%d, a%d" % (oproj.wv + j, oproj.aSave + j))
            for x in oproj.job_w(False) + oproj.job_x(False):
                a(x)

        @staticmethod
        def e1_items():
            return oproj.stage_items(g6, 0, 'wx')

        @staticmethod
        def e2_items():
            return oproj.stage_items(g6, 1, 'wx')
    attn4.attention(a, st, H)
    st(a)
    gh = oproj.make("ph", oproj.AA, True)
    q = VmQ()
    for s in range(2):
        q.push(s, 8)
    q.push('ctx', 8)
    oproj.read_bases(a, 4)
    g6.init(a, [3])
    c = Col()
    c("s_lshl_b32 s36, s%d, 7" % attn4.sHead)
    c("s_add_u32 s36, s36, %d" % F_CTX)
    attn4.long_blk(c, 37)
    c("s_lshl_b32 s37, s37, 12")
    c("s_add_u32 s37, s37, s36")
    c("s_lshl_b32 s38, s%d, 12" % attn4.sPair)
    c("s_add_u32 s36, s36, s38")
    oproj.flag_pos(c, False, True, 38)
    c("s_lshl_b32 s91, s%d, 12" % oproj.sRb)
    c("s_add_u32 s91, s91, %d" % F_CTX)
    oproj.flag_pos(c, False, False, 39)
    c("s_sub_u32 s39, s39, s91")
    sigc = Col()
    signal(sigc, 6, ["s36", "s37", "s38"])
    pre = sigc[:-3] + ["v_lshlrev_b32 v14, 7, v1", "v_mov_b32 v9, s39", "v_cmp_gt_u32 vcc, 32, v1", "v_cndmask_b32 v14, v9, v14, vcc"]
    for x in c + pre:
        a(x)
    g6.pro(a, q.need(0), dma=oproj.stage_items(g6, 2, 'wx'))
    q.push(2, 8)
    VS = int(os.environ.get("VS", 6))
    for s in range(1, VS):
        N = q.need(1, 'ctx') if s == 1 else q.need(s)
        it = g6.dma_items() if s < 5 else (oproj.job_w(True) if s == 5 else []) + g7.group_items(g7.dma[0])
        if s == 1:
            it = sigc[-3:] + oproj.stage_items(g6, 3, 'wx') + it
            q.push('sig', 3)
            q.push(3, 8)
        if s == 2:
            c = Col()
            oproj.xch_srd(c)
            it = [c[0] + "\n" + c[1]] + c[2:] + it
        if s == VS - 1:
            it = [flag_load(6, "s91", 14)] + it
            q.push('fl', 1)
        q.push(s + 3, 8 if s < 5 else 4)
        if 'st6' in MFL:
            st(a)
        g6.iter(a, N, it)
    a("s_waitcnt vmcnt(%d)" % q.need(VS, 'fl'))
    a("v_cmp_ne_u64 vcc, s[%d:%d], v[6:7]" % (S_TAG, S_TAG + 1))
    a("v_cndmask_b32_e64 v8, 0, 1, vcc")
    a("v_lshlrev_b32 v9, 2, v0")
    a("ds_write_b32 v9, v8")
    a("v_lshlrev_b32 v9, 4, v1")
    a("s_waitcnt lgkmcnt(0)")
    a("s_barrier")
    a("ds_read_b128 v[160:163], v9")
    for x in oproj.job_w(True) if VS == 5 else []:
        a(x)
    a("s_waitcnt lgkmcnt(0)")
    a("v_or3_b32 v160, v160, v161, v162")
    a("v_or_b32 v160, v160, v163")
    a("v_cmp_ne_u32 vcc, 0, v160")
    if 'only7' not in MFL:
        a("s_cbranch_vccnz Lp6_late ; @late")
    if 'st6' in MFL:
        st(a)
    k0 = st.k
    q0 = list(q.q)
    for late in (False, True):
        q.q = list(q0)
        if late:
            a.label("Lp6_late")
            st.k = k0
        else:
            for x in oproj.job_x(True):
                a(x)
        for s in range(VS, 8):
            if s > VS:
                g6.bar(a, q.need(s))
            it = g7.group_items(g7.dma[0]) if late else g7.dma_items()
            if s == VS and not late:
                for t in range(VS + 2, 7, -1):
                    it = oproj.stage_items(g7, t, 'x') + it
                for t in range(8, VS + 3):
                    q.push(t, 4)
            q.push(s + 3, 4 if late else 8)
            if late and s == 7:
                it += [flag_load(6, "s91", 14)]
            d0, d1 = g6.split(it)
            g6.half(a, 1, dma=d0)
            a("s_waitcnt lgkmcnt(0)")
            g6.half(a, 0, dma=d1, adv=True)
        if late:
            a("s_waitcnt vmcnt(0) lgkmcnt(0)")
            a("s_barrier")
            st(a)
            flag_check(a, 6, "s91", 14)
            st(a)
            for x in oproj.job_x(True):
                a(x)
            it = []
            for s in range(8, 12):
                it += oproj.stage_items(g7, s, 'x' if s < 11 else 'wx')
            g6.half(a, 1, rd=False, dma=it)
            for x in oproj.send_items(oproj.AB, False, 6):
                a(x)
            a("s_waitcnt vmcnt(24)")
            a("s_barrier")
            for x in g7.reads(0):
                a(x)
            a("s_waitcnt lgkmcnt(0)")
            g7.half(a, 0, first=True, adv=True)
        else:
            g6.bar(a, q.need(8))
            st(a)
            st(a)
            g6.half(a, 1, dma=g7.dma_items())
            a("s_waitcnt lgkmcnt(0)")
            it = oproj.send_items(oproj.AB, False, 6)
            nsc = [i for i, x in enumerate(it) if kind(x) == 'd'][0]
            for x in it[:nsc]:
                a(x)
            g7.half(a, 0, first=True, adv=True, extra=lambda sg: place_dma(sg, it[nsc:], 5, 14))
            a("s_branch Lp7")
    a.label("Lp7")
    st(a)
    DL = oproj.DL
    F = 40 - DL
    U = min(33, F - int(os.environ.get("UB", 4)))
    a("s_mov_b32 s%d, %d" % (g7.sCnt, U - 9))
    g7.loop(a, 16)
    if 'st2' in MFL:
        st(a)
    q = VmQ()
    for s in range(U, U + 3):
        q.push(s, 8)
    E = F + 2 * DL
    finB = []
    gl = oproj.make("l", oproj.AA, lin=True)
    for s in range(U, E):
        tags, it, ab = [s], [], None
        if s == U:
            c = Col()
            oproj.out_off(c, False, 32)
            oproj.out_off(c, True, 34)
            it += oproj.recv_items(False, 6) + c
            ab = lambda: oproj.out_setup(a)
        if s == U + 2:
            tags.append('rcv')
            ab = lambda: oproj.recv_check(a, False, 6)
            finB = oproj.finish(oproj.AB, False, 32)
        if s == E - 1:
            it += oproj.recv_items(True, 6)
        N = q.need(*tags)
        q.push('rcv', sum(kind(x) == 'd' for x in it))
        if s + 3 < F:
            it += g7.dma_items() if s + 3 < 36 else (oproj.to_lin() if s + 3 == 36 else []) + gl.dma_items()
            q.push(s + 3, 8)
        elif s + 3 < E:
            if s + 3 == F:
                it += oproj.to_half()
            if s + 3 == F + DL:
                it += oproj.to_partner()
            it += gh.dma_items()
            q.push(s + 3, 6)
        g1, g0 = (g7 if s - 1 < F else gh), (g7 if s < F else gh)
        if s > U:
            g7.bar(a, N)
        else:
            assert N >= 16
        if ab:
            ab()
        d0, d1 = g7.split(it)
        if s == F:
            snd = oproj.send_items(oproj.AA, True, 36)
            nsc = [i for i, x in enumerate(snd) if kind(x) == 'd'][0]
            d0, d1 = it + snd[:nsc], snd[nsc:]
            q.push('snd', 8)
        L = finB.pop(0) if finB else []

        def finb(sg):
            g = 0
            for x in L[:-1]:
                g = sg.place(x, g, lo=g)
        g1.half(a, 1, dma=d0, rdg=g0, extra=finb)
        a("s_waitcnt lgkmcnt(0)")
        g0.half(a, 0, dma=d1, adv=s < E - 1, extra=lambda sg: sg.end[sg.n - 1].extend(L[-1:]))
        q.push('ob', len(L[-1:]))
        if 'st3' in MFL:
            st(a)
    gh.tail(a, bar=False)
    st(a)
    a("s_waitcnt vmcnt(0)")
    oproj.recv_check(a, True, 6)
    st(a)
    for L in zip(*oproj.finish(oproj.AA, True, 34)):
        for x in L:
            a(x)
    st(a)
    if stamp:
        a("s_waitcnt vmcnt(0)")
    st(a)
    st.flush(a)
    return fin(a)


def fin(a):
    a.label("Lend")
    a("s_endpgm")
    t = a.finish()
    for fl, pat in (('x7rd', "ds_read"), ('x7mf', "v_mfma"), ('x7dma', " lds")):
        if fl in MFL:
            h, r = t.split("Lp7_loop:")
            b, r = r.split("s_cbranch_scc1 Lp7_loop", 1)
            t = h + "Lp7_loop:" + "\n".join(l for l in b.split("\n") if pat not in l) + "s_cbranch_scc1 Lp7_loop" + r
    if 'nobar' in MFL:
        t = t.replace("s_barrier", "s_nop 0")
    if 'nox' in MFL:
        t = "\n".join(l for l in t.split("\n") if not (l.rstrip().endswith(" lds") and "s[8:11]" in l))
    if 'now' in MFL:
        t = "\n".join(l for l in t.split("\n") if not (l.rstrip().endswith(" lds") and "s[12:15]" in l))
    if 'nodma' in MFL:
        t = "\n".join(l for l in t.split("\n") if not l.rstrip().endswith(" lds"))
    return t.replace("CODE_KB", os.environ.get("CODE_KB", "70"))
```

```python
from lib import *
from gemm4 import *
import proj4, bfront, attn4, oproj, qproj

MFL = set(os.environ.get("MFLAGS", "").split(","))


def gen(stamp=False):
    a = Asm()
    st = Stamps(stamp, 0)
    a("s_cmp_ge_u32 s2, 256")
    a("s_cbranch_scc1 Lend")
    a("s_load_dwordx16 s[64:79], s[0:1], 0")
    a("s_load_dwordx8 s[80:87], s[0:1], 64")
    a("v_lshrrev_b32 v2, 6, v0")
    a("v_and_b32 v1, 63, v0")
    a("v_readfirstlane_b32 s%d, v2" % S_WAVE)
    a("v_lshlrev_b32 v2, 4, v1")
    if 'ipf' in MFL:
        a("s_getpc_b64 s[6:7]")
        a("s_lshr_b32 s4, s2, 3")
        a("s_lshl_b32 s4, s4, 2")
        a("s_add_u32 s4, s4, s%d" % S_WAVE)
        a("s_min_u32 s4, s4, CODE_KB")
        a("s_lshl_b32 s4, s4, 10")
        a("v_add_u32 v3, s4, v2")
        a("global_load_dwordx4 v[4:7], v3, s[6:7]")
    st(a)
    gk, gv = proj4.make('wx'), proj4.make('xw')
    b0, b1 = bfront.make(0), bfront.make(1)
    g3 = qproj.make()
    if 'nost' in MFL:
        t0 = proj4.trickle
        proj4.trickle = lambda k, a, b: [x.replace("s%d," % proj4.sSt, "0x70000000,").replace("s_add_u32 s60, 0x70000000, ", "s_mov_b32 s60, 0x70000000 ; ") for x in t0(k, a, b)]
    NK = [int(x) for x in os.environ.get("NK", "12").split(",")]
    NW = int(os.environ.get("NW", 8))
    TR3 = [int(x) for x in os.environ.get("TR3", "8,0,8,0,8").split(",")]
    assert NW >= 8 and NW + sum(TR3) == 32
    a("s_bfe_u32 s59, s2, 0x30003")
    a("s_lshr_b32 s4, s2, 7")
    a("s_lshl_b32 s4, s4, 3")
    a("s_add_u32 s59, s59, s4")
    a("s_lshr_b32 s4, s2, 3")
    a("s_xor_b32 s4, s4, s2")
    a("s_bitcmp1_b32 s4, 3")
    a("s_cbranch_scc1 Lp2")

    def common(c):
        attn4.ids(c)
        oproj.lanes(c, 24)
        qproj.lanes(c, 24)
    proj4.setup(a, gk, "s59")
    srd(a, S_FLG, P_WS, 0x40000, WS_FLG)
    tag_make(a, 0)
    if 'st0' in MFL:
        st(a)
    for x in proj4.xitems(gk, 0) + proj4.witems(gk, 0):
        a(x)
    if 'st0' in MFL:
        st(a)
    c = Col()
    proj4.read_bases(c, gk)
    common(c)
    proj4.out_base(c)
    gk.init(c, [proj4.XS0, 0])
    SU, W0 = os.environ.get("SU", "x"), float(os.environ.get("W0", 0.6))
    pre1 = (proj4.xitems(gk, 1) if 'x' in SU else []) + (proj4.witems(gk, 1) if 'w' in SU else [])
    post1 = ([] if 'x' in SU else proj4.xitems(gk, 1)) + ([] if 'w' in SU else proj4.witems(gk, 1))
    for x in weave_lines(c, pre1, W0, 1.0) if pre1 else c:
        a(x)
    tag_make(a, 1, 16 + 8 * len(SU))
    st(a)
    k0 = st.k
    if 'st0' in MFL:
        a("s_waitcnt vmcnt(%d)" % (8 * len(SU)))
        st(a)
    gk.pro(a, 8 * len(SU), dma=post1 + proj4.xitems(gk, 2))
    if 'st0' in MFL:
        st(a)
        a("s_waitcnt vmcnt(8)")
        st(a)
        st.flush(a)
        a("s_endpgm")
    a("s_mov_b32 s%d, 6" % gk.sCnt)
    gk.loop(a, 8)
    gk.half(a, 1, dma=gk.dma_items())
    if 'st2' in MFL:
        st(a)
    order, epi = proj4.pack('k', NK[0])
    rest = gk.bm(a, order, 18, 18, N=8, dma=gk.dma_items(), nxt=gv, epi=epi, defer=True)
    assert all(kind(x) == 'c' for x in rest), rest
    if 'st2' in MFL:
        st(a)
    order, held = proj4.v_order(NK[0])
    sts = [(proj4.trickle('k', k, k + 1), held[proj4.ORDER['k'][k]]) for k in range(NK[0], 32)]
    gv.bm(a, order, 20, 18, N=8, first=True, dma=gv.dma_items(), nxt=gv, st2=sts, carry=rest)
    a("s_add_u32 s%d, s%d, 0x4000" % (proj4.sSt, proj4.sSt))
    a("s_waitcnt lgkmcnt(0)")
    gv.half(a, 0, adv=True)
    st(a)
    a("s_mov_b32 s%d, 4" % gv.sCnt)
    gv.loop(a, 8)
    gv.iter(a, None, proj4.witems(gv, 0) + qproj.witems(g3, 0) + qproj.witems(g3, 1), after_bar=lambda: qproj.setup(a, g3))
    gv.bar(a, 8)
    gv.half(a, 1, dma=qproj.xitems(g3, 0))
    order, epi = proj4.pack('v', NW)
    gv.bm(a, order, 18, epi=epi, dma=qproj.xitems(g3, 1) + qproj.witems(g3, 2) + qproj.xitems(g3, 2), mid=lambda: tag_load(a, 22))
    qk = VmQ()
    for t, n in (('w0', 4), ('w1', 4), ('x0', 8), ('t', 1), ('st', NW), ('x1', 8), ('w2', 4), ('x2', 8)):
        qk.push(t, n)
    a("s_lshl_b32 s34, s%d, 4" % proj4.sN0)
    a("s_add_u32 s34, s34, s%d" % proj4.sM0)
    a("s_lshl_b32 s34, s34, 7")
    a("s_branch Lp3")
    a.label("Lp2")
    if 'st0' in MFL and 'nob' in MFL:
        a("s_endpgm")
    st.k = k0 - 1
    bfront.setup(a, b0, "s59")
    srd(a, S_FLG, P_WS, 0x40000, WS_FLG)
    a("s_cmp_ge_u32 s%d, 2" % S_WAVE)
    a("s_cbranch_scc1 Lp2_r1")
    for rh, g in enumerate((b0, b1)):
        if rh:
            a.label("Lp2_r1")
            st.k = k0 - 1
        nx = 8 if rh else 9
        PFB, PF0 = int(os.environ.get("PFB", 4)), os.environ.get("PF0", "")
        a("s_and_b32 s4, s2, 7")
        a("s_lshl_b32 s4, s4, 4")
        a("s_add_u32 s4, s4, s59")
        a("s_lshl_b32 s4, s4, 2")
        a("s_add_u32 s4, s4, s%d" % S_WAVE)
        a("s_lshl_b32 s51, s4, 13")

        def pf0():
            a("s_lshr_b32 s56, s51, 1")
            srd(a, 52, P_CKV, 2 * MB)
            for i in range(4):
                a("buffer_load_dwordx4 a[192:195], v2, s[52:55], s56 offen offset:%d ; @dummy" % (1024 * i))
            a("s_add_u32 s56, s51, 4096")
            srd(a, 52, P_WUK, 4 * MB)
            for i in range(8):
                a("buffer_load_dwordx4 a[192:195], v2, s[52:55], %s offen offset:%d ; @dummy" % ("s56" if i >= 4 else "s51", 1024 * (i & 3)))
        if PF0 == "a":
            pf0()
        for x in bfront.xitems(g, 0) + bfront.witems(g, 0):
            a(x)
        if PF0 == "b":
            pf0()
        c = Col()
        bfront.read_bases(c)
        common(c)
        bfront.pre(c)
        g.init(c)
        if PFB:
            srd(c, 52, P_WUV, 4 * MB)
            c("s_lshl_b32 s1, s51, 1")
            c("s_mov_b32 s56, s51")
            c("s_mov_b32 s0, 0")
            pf1 = ["buffer_load_dwordx4 a[192:195], v2, s[52:55], s51 offen offset:%d ; @dummy" % (1024 * i) for i in range(PFB)]
            assert PFB == 4
            g.pf = pf1 + ["s_add_u32 s51, s51, 4096", "s_add_u32 s0, s0, 1",
                          "s_cmp_eq_u32 s0, 2\ns_cselect_b32 s52, s%d, s52\ns_cselect_b32 s53, s%d, s53\ns_cselect_b32 s51, s1, s51\n"
                          "s_cselect_b32 s54, %d, s54" % (P_WQ, P_WQ + 1, (8 * MB) if os.environ.get("PFQ", "0") == "1" else 0),
                          "s_cmp_eq_u32 s0, 6\ns_cselect_b32 s52, s%d, s52\ns_cselect_b32 s53, s%d, s53\ns_cselect_b32 s51, s56, s51\n"
                          "s_cselect_b32 s54, %d, s54" % (P_AX, P_AX + 1, (4 * MB) if os.environ.get("PFQ", "0") == "1" else 0),
                          "s_cmp_eq_u32 s0, 8\ns_cselect_b32 s54, 0, s54"]
        pre1 = (bfront.xitems(g, 1) if 'x' in SU else []) + (bfront.witems(g, 1) if 'w' in SU else [])
        post1 = ([] if 'x' in SU else bfront.xitems(g, 1)) + ([] if 'w' in SU else bfront.witems(g, 1))
        for x in weave_lines(c, pre1, W0, 1.0) if pre1 else c:
            a(x)
        st(a)
        g.pro(a, (nx if 'x' in SU else 0) + (6 if 'w' in SU else 0), dma=post1 + bfront.xitems(g, 2))
        if 'st0' in MFL:
            a("s_endpgm")
        a("s_mov_b32 s%d, 13" % g.sCnt)
        g.loop(a, nx)
        if 'st2' in MFL:
            st(a)
            st(a)
        g.iter(a, None, bfront.witems(g, 0), after_bar=lambda: qproj.setup(a, g3))
        g.bar(a, 0)
        a("s_mov_b32 s6, 0x%08x" % f32bits(bfront.CB))
        a("s_mov_b32 s7, s6")
        g.half(a, 1)
        order, epi = bfront.pack(g, rh)
        g.bm(a, order, 16, epi=epi, dma=qproj.witems(g3, 0) + qproj.witems(g3, 1) + qproj.xitems(g3, 0), mid=lambda: tag_load(a, 22))
        a("s_waitcnt lgkmcnt(0)")
        a("s_barrier")
        st(a)
        if not rh:
            a("s_branch Lp2_at")
    a.label("Lp2_at")
    c = Col()
    bfront.attend(c)
    for x in weave_lines(c, qproj.xitems(g3, 1) + qproj.witems(g3, 2) + qproj.xitems(g3, 2), 0.0, 0.7):
        a(x)
    qb = VmQ()
    for t, n in (('t', 1), ('w0', 4), ('w1', 4), ('x0', 8), ('x1', 8), ('w2', 4), ('x2', 8), ('st', 8)):
        qb.push(t, n)
    a("s_lshl_b32 s34, s%d, 4" % bfront.sRb)
    a("s_add_u32 s34, s34, s%d" % bfront.sHp)
    a("s_lshl_b32 s34, s34, 7")
    a("s_add_u32 s34, s34, %d" % F_OB)
    a("s_mov_b32 s%d, 0x70000000" % proj4.sSt)
    a.label("Lp3")
    st(a)
    qproj.restore(a)
    g3.init(a, [qproj.XS0, 0])
    need = lambda *t: min(qk.need(*t), qb.need(*t))

    def push(t, n):
        qk.push(t, n), qb.push(t, n)
    cum = [NW + sum(TR3[:k]) for k in range(len(TR3) + 1)]
    g3.pro(a, need('w0', 'x0'), dma=proj4.trickle('v', cum[0], cum[1]))
    push('st', TR3[0])
    last = len(TR3) + 1
    for s in range(1, last + 1):
        N = need('w%d' % s, 'x%d' % s, s, *(['st'] if s == last else []))
        g3.iter(a, N, g3.dma_items() + (proj4.trickle('v', cum[s], cum[s + 1]) if s < len(TR3) else []),
                after_bar=(lambda: (tag_get(a, 22, 12), signal(a, 22, ["s34"], 3))) if s == last else None)
        push(s + 2, 12)
        if s < len(TR3):
            push('st', TR3[s])
    if last < 12:
        a("s_mov_b32 s%d, %d" % (g3.sCnt, 12 - last))
        g3.loop(a, 12)
    else:
        g3.bar(a, 12)

    def ids():
        a("s_lshr_b32 s34, s%d, 1" % attn4.sHead)
        a("s_lshl_b32 s34, s34, 11")
        for x in flag_addr(3, 8):
            a(x)
    g3.iter(a, None, [flag_load(22, "s34", 3)] + g3.dma_items(), after_bar=ids)

    def go():
        flag_check(a, 22, "s34", 3)
        attn4.kv_setup(a)
        oproj.ids(a)
    it = attn4.kv_prologue_items(0)
    cut = [i for i, x in enumerate(it) if "m0" in x][1]
    g3.iter(a, 12, it[:cut], after_bar=go)
    g3.bar(a, 4)
    a("s_mov_b32 s6, 0x%08x" % f32bits(attn4.CST))
    a("s_mov_b32 s7, s6")
    g3.half(a, 1, dma=it[cut:])
    order, epi = qproj.epilogue()
    g3.bm(a, order, 16, epi=epi, bar=False)
    st(a)
    attn4.setup1(a)
    oproj.fill_setup(a)
    st(a)
    g6, g7 = oproj.make("p6", oproj.AB), oproj.make("p7", oproj.AA)

    class H:
        q0 = [t for t in (('K', 0), ('K', 1), ('V', 0)) for _ in range(4)]

        @staticmethod
        def after_d2():
            a("s_lshr_b32 s91, s%d, 1" % oproj.sRb)
            a("s_lshl_b32 s91, s91, 11")
            a("s_add_u32 s91, s91, %d" % F_OB)
            for x in flag_addr(14):
                a(x)

        @staticmethod
        def fill():
            return oproj.fill_items()

        @staticmethod
        def pre_e1():
            return [flag_load(12, "s91", 14)]

        @staticmethod
        def at_e1():
            flag_check(a, 12, "s91", 14)
            oproj.ring_start(a)
            for j in range(4):
                a("v_accvgpr_read_b32 v%d, a%d" % (oproj.wv + j, oproj.aSave + j))
            for x in oproj.job_w(False) + oproj.job_x(False):
                a(x)

        @staticmethod
        def e1_items():
            return oproj.stage_items(g6, 0, 'wx')

        @staticmethod
        def e2_items():
            return oproj.stage_items(g6, 1, 'wx')
    attn4.attention(a, st, H)
    st(a)
    gh = oproj.make("ph", oproj.AA, True)
    q = VmQ()
    for s in range(2):
        q.push(s, 8)
    q.push('ctx', 8)
    oproj.read_bases(a, 4)
    g6.init(a, [3])
    c = Col()
    c("s_lshl_b32 s36, s%d, 7" % attn4.sHead)
    c("s_add_u32 s36, s36, %d" % F_CTX)
    attn4.long_blk(c, 37)
    c("s_lshl_b32 s37, s37, 12")
    c("s_add_u32 s37, s37, s36")
    c("s_lshl_b32 s38, s%d, 12" % attn4.sPair)
    c("s_add_u32 s36, s36, s38")
    oproj.flag_pos(c, False, True, 38)
    c("s_lshl_b32 s91, s%d, 12" % oproj.sRb)
    c("s_add_u32 s91, s91, %d" % F_CTX)
    oproj.flag_pos(c, False, False, 39)
    c("s_sub_u32 s39, s39, s91")
    sigc = Col()
    signal(sigc, 6, ["s36", "s37", "s38"])
    pre = sigc[:-3] + ["v_lshlrev_b32 v14, 7, v1", "v_mov_b32 v9, s39", "v_cmp_gt_u32 vcc, 32, v1", "v_cndmask_b32 v14, v9, v14, vcc"]
    for x in c + pre:
        a(x)
    g6.pro(a, q.need(0), dma=oproj.stage_items(g6, 2, 'wx'))
    q.push(2, 8)
    VS = int(os.environ.get("VS", 6))
    for s in range(1, VS):
        N = q.need(1, 'ctx') if s == 1 else q.need(s)
        it = g6.dma_items() if s < 5 else (oproj.job_w(True) if s == 5 else []) + g7.group_items(g7.dma[0])
        if s == 1:
            it = sigc[-3:] + oproj.stage_items(g6, 3, 'wx') + it
            q.push('sig', 3)
            q.push(3, 8)
        if s == 2:
            c = Col()
            oproj.xch_srd(c)
            it = [c[0] + "\n" + c[1]] + c[2:] + it
        if s == VS - 1:
            it = [flag_load(6, "s91", 14)] + it
            q.push('fl', 1)
        q.push(s + 3, 8 if s < 5 else 4)
        if 'st6' in MFL:
            st(a)
        g6.iter(a, N, it)
    a("s_waitcnt vmcnt(%d)" % q.need(VS, 'fl'))
    a("v_cmp_ne_u64 vcc, s[%d:%d], v[6:7]" % (S_TAG, S_TAG + 1))
    a("v_cndmask_b32_e64 v8, 0, 1, vcc")
    a("v_lshlrev_b32 v9, 2, v0")
    a("ds_write_b32 v9, v8")
    a("v_lshlrev_b32 v9, 4, v1")
    a("s_waitcnt lgkmcnt(0)")
    a("s_barrier")
    a("ds_read_b128 v[160:163], v9")
    for x in oproj.job_w(True) if VS == 5 else []:
        a(x)
    a("s_waitcnt lgkmcnt(0)")
    a("v_or3_b32 v160, v160, v161, v162")
    a("v_or_b32 v160, v160, v163")
    a("v_cmp_ne_u32 vcc, 0, v160")
    if 'only7' not in MFL:
        a("s_cbranch_vccnz Lp6_late ; @late")
    if 'st6' in MFL:
        st(a)
    k0 = st.k
    q0 = list(q.q)
    for late in (False, True):
        q.q = list(q0)
        if late:
            a.label("Lp6_late")
            st.k = k0
        else:
            for x in oproj.job_x(True):
                a(x)
        for s in range(VS, 8):
            if s > VS:
                g6.bar(a, q.need(s))
            it = g7.group_items(g7.dma[0]) if late else g7.dma_items()
            if s == VS and not late:
                for t in range(VS + 2, 7, -1):
                    it = oproj.stage_items(g7, t, 'x') + it
                for t in range(8, VS + 3):
                    q.push(t, 4)
            q.push(s + 3, 4 if late else 8)
            if late and s == 7:
                it += [flag_load(6, "s91", 14)]
            d0, d1 = g6.split(it)
            g6.half(a, 1, dma=d0)
            a("s_waitcnt lgkmcnt(0)")
            g6.half(a, 0, dma=d1, adv=True)
        if late:
            a("s_waitcnt vmcnt(0) lgkmcnt(0)")
            a("s_barrier")
            st(a)
            flag_check(a, 6, "s91", 14)
            st(a)
            for x in oproj.job_x(True):
                a(x)
            it = []
            for s in range(8, 12):
                it += oproj.stage_items(g7, s, 'x' if s < 11 else 'wx')
            g6.half(a, 1, rd=False, dma=it)
            for x in oproj.send_items(oproj.AB, False, 6):
                a(x)
            a("s_waitcnt vmcnt(24)")
            a("s_barrier")
            for x in g7.reads(0):
                a(x)
            a("s_waitcnt lgkmcnt(0)")
            g7.half(a, 0, first=True, adv=True)
        else:
            g6.bar(a, q.need(8))
            st(a)
            st(a)
            g6.half(a, 1, dma=g7.dma_items())
            a("s_waitcnt lgkmcnt(0)")
            it = oproj.send_items(oproj.AB, False, 6)
            nsc = [i for i, x in enumerate(it) if kind(x) == 'd'][0]
            for x in it[:nsc]:
                a(x)
            g7.half(a, 0, first=True, adv=True, extra=lambda sg: place_dma(sg, it[nsc:], 5, 14))
            a("s_branch Lp7")
    a.label("Lp7")
    st(a)
    DL = oproj.DL
    F = 40 - DL
    U = min(33, F - int(os.environ.get("UB", 4)))
    a("s_mov_b32 s%d, %d" % (g7.sCnt, U - 9))
    g7.loop(a, 16)
    if 'st2' in MFL:
        st(a)
    q = VmQ()
    for s in range(U, U + 3):
        q.push(s, 8)
    E = F + 2 * DL
    finB = []
    gl = oproj.make("l", oproj.AA, lin=True)
    for s in range(U, E):
        tags, it, ab = [s], [], None
        if s == U:
            c = Col()
            oproj.out_off(c, False, 32)
            oproj.out_off(c, True, 34)
            it += oproj.recv_items(False, 6) + c
            ab = lambda: oproj.out_setup(a)
        if s == U + 2:
            tags.append('rcv')
            ab = lambda: oproj.recv_check(a, False, 6)
            finB = oproj.finish(oproj.AB, False, 32)
        if s == E - 1:
            it += oproj.recv_items(True, 6)
        N = q.need(*tags)
        q.push('rcv', sum(kind(x) == 'd' for x in it))
        if s + 3 < F:
            it += g7.dma_items() if s + 3 < 36 else (oproj.to_lin() if s + 3 == 36 else []) + gl.dma_items()
            q.push(s + 3, 8)
        elif s + 3 < E:
            if s + 3 == F:
                it += oproj.to_half()
            if s + 3 == F + DL:
                it += oproj.to_partner()
            it += gh.dma_items()
            q.push(s + 3, 6)
        g1, g0 = (g7 if s - 1 < F else gh), (g7 if s < F else gh)
        if s > U:
            g7.bar(a, N)
        else:
            assert N >= 16
        if ab:
            ab()
        d0, d1 = g7.split(it)
        if s == F:
            snd = oproj.send_items(oproj.AA, True, 36)
            nsc = [i for i, x in enumerate(snd) if kind(x) == 'd'][0]
            d0, d1 = it + snd[:nsc], snd[nsc:]
            q.push('snd', 8)
        L = finB.pop(0) if finB else []

        def finb(sg):
            g = 0
            for x in L[:-1]:
                g = sg.place(x, g, lo=g)
        g1.half(a, 1, dma=d0, rdg=g0, extra=finb)
        a("s_waitcnt lgkmcnt(0)")
        g0.half(a, 0, dma=d1, adv=s < E - 1, extra=lambda sg: sg.end[sg.n - 1].extend(L[-1:]))
        q.push('ob', len(L[-1:]))
        if 'st3' in MFL:
            st(a)
    gh.tail(a, bar=False)
    st(a)
    a("s_waitcnt vmcnt(0)")
    oproj.recv_check(a, True, 6)
    st(a)
    for L in zip(*oproj.finish(oproj.AA, True, 34)):
        for x in L:
            a(x)
    st(a)
    if stamp:
        a("s_waitcnt vmcnt(0)")
    st(a)
    st.flush(a)
    return fin(a)


def fin(a):
    a.label("Lend")
    a("s_endpgm")
    t = a.finish()
    for fl, pat in (('x7rd', "ds_read"), ('x7mf', "v_mfma"), ('x7dma', " lds")):
        if fl in MFL:
            h, r = t.split("Lp7_loop:")
            b, r = r.split("s_cbranch_scc1 Lp7_loop", 1)
            t = h + "Lp7_loop:" + "\n".join(l for l in b.split("\n") if pat not in l) + "s_cbranch_scc1 Lp7_loop" + r
    if 'nobar' in MFL:
        t = t.replace("s_barrier", "s_nop 0")
    if 'nox' in MFL:
        t = "\n".join(l for l in t.split("\n") if not (l.rstrip().endswith(" lds") and "s[8:11]" in l))
    if 'now' in MFL:
        t = "\n".join(l for l in t.split("\n") if not (l.rstrip().endswith(" lds") and "s[12:15]" in l))
    if 'nodma' in MFL:
        t = "\n".join(l for l in t.split("\n") if not l.rstrip().endswith(" lds"))
    return t.replace("CODE_KB", os.environ.get("CODE_KB", "70"))
```

```python
from lib import *


class Ring:
    def __init__(self, NS, slot, sbase):
        self.NS, self.slot = NS, slot
        self.sWr, self.sRd, self.sRdD, self.sC = sbase, sbase + 1, sbase + 2, sbase + 3
        self.regs = []

    def init(self):
        return ["s_mov_b32 s%d, 0" % self.sRd,
                "s_mov_b32 s%d, %d" % (self.sC, (-(self.NS - 1) * self.slot) & 0xffffffff),
                "s_mov_b32 s%d, %d" % (self.sC + 1, self.slot)]

    def adv(self, wr):
        sc = []
        if wr:
            sc.append("s_add_u32 s%d, s%d, s%d" % (self.sWr, self.sWr, self.sRdD))
        if self.NS == 2:
            sc.append("s_sub_u32 s%d, 0, s%d" % (self.sRdD, self.sRdD))
        else:
            sc += ["s_add_u32 s%d, s%d, 1" % (self.sRd, self.sRd),
                   "s_cmp_eq_u32 s%d, %d\ns_cselect_b32 s%d, 0, s%d\ns_cselect_b32 s%d, s%d, s%d" % (
                       self.sRd, self.NS, self.sRd, self.sRd, self.sRdD, self.sC, self.sC + 1)]
        return sc, ["v_add_u32 v%d, s%d, v%d" % (r, self.sRdD, r) for r in self.regs]


def feed(sg, chain, g=0):
    nd = 0
    while chain:
        x = chain[0]
        if isinstance(x, int):
            if g + x >= sg.n:
                chain[0] = g + x - sg.n
                if chain[0] == 0:
                    chain.pop(0)
                return nd
            g += x
            chain.pop(0)
            continue
        k = 'm' if x.startswith("v_mfma") else kind(x)
        if k in 'dr' and sg.c[g]:
            g += 1
        while g < sg.n and not ((k == 'm' and not sg.end[g]) or (k != 'm' and sg.room(g, k) and not sg.end[g] and (k not in 'dr' or not sg.c[g]))):
            g += 1
        if g >= sg.n - 1:
            return nd
        chain.pop(0)
        if k == 'm':
            sg.end[g].append(x)
            g += 1
        else:
            sg.put(g, x)
            nd += k == 'd'
    return nd


def place_dma(sg, items, g0, g1):
    nd = sum(1 for x in items if kind(x) == 'd')
    k = 0
    last = g0
    for x in items:
        if kind(x) == 'd':
            want = g0 + (k * (g1 - g0 + 1)) // nd
            k += 1
            if sg.end[last]:
                sg.end[last].append(x)
                continue
            g = sg.place(x, max(want, last), lo=last)
            last = g
        else:
            g = min(last + 1, sg.n - 1) if sg.d[last] else last
            if sg.d[g] or sg.end[g]:
                sg.end[g].append(x)
            else:
                g = sg.place(x, g, lo=g)
                if sg.d[g]:
                    raise RuntimeError("scalar placed before an earlier load")
            last = g
            if "m0" in x and not sg.end[g]:
                last = min(g + 1, sg.n - 1)
                if last == g:
                    sg.end[g].append("s_nop 0")
    return last


class Gemm:
    xlin = False
    woff = 0
    pf = []

    def fxr(self, h, i):
        return ('a', self.fx + 4 * (h * len(self.xfr) + i))

    def fwr(self, h, i):
        return ('a', self.fw + 4 * (h * len(self.wfr) + i))

    def mfmas(self, h, first=False):
        L = []
        for acc, xi, wi, o in self.mf:
            x, w = self.fxr(h, xi), self.fwr(h, wi)
            L.append(mfma(acc, w, x, "0" if first else None) if o == 'wx' else mfma(acc, x, w, "0" if first else None))
        return L

    def reads(self, h):
        L = []
        seen = set()
        for acc, xi, wi, o in self.mf:
            if ('x', xi) not in seen:
                seen.add(('x', xi))
                st, imm = self.xfr[xi]
                if self.xlin:
                    L.append("ds_read_b128 %s, v%d offset:%d" % (r4(self.fxr(h, xi)), self.xrd[st][0], imm + h * self.xhs))
                else:
                    L.append("ds_read_b128 %s, v%d offset:%d" % (r4(self.fxr(h, xi)), self.xrd[st][h], imm))
            if ('w', wi) not in seen:
                seen.add(('w', wi))
                nb, imm = self.wfr[wi]
                b = self.fwr(h, wi)[1]
                for j in range(2):
                    L.append("ds_read_b64_tr_b16 a[%d:%d], v%d offset:%d" % (b + 2 * j, b + 2 * j + 1, self.wrd[nb], self.woff + imm + h * 4096 + j * 2048))
        return L

    def group_items(self, grp, off=0):
        ring, m0, ins, post = grp
        if isinstance(m0, tuple):
            L = ["s_add_u32 m0, s%d, s%d" % (ring.sWr, m0[1]) + ("\ns_add_u32 m0, m0, %d" % off if off else "")]
        else:
            m0 += off
            L = ["s_add_u32 m0, s%d, %d" % (ring.sWr, m0) if m0 else "s_mov_b32 m0, s%d" % ring.sWr]
        return L + ins + post

    def dma_items(self):
        return [x for g in self.dma for x in self.group_items(g)]

    def issue_seq(self, it):
        return [(g, it - 1 + g[0].NS) for g in self.dma if it - 1 + g[0].NS >= 0]

    def prologue_items(self):
        L = []
        for it in range(-(max(r.NS for r in self.rings) - 1), 1):
            for g, s in self.issue_seq(it):
                L += self.group_items(g, s * g[0].slot)
        return L

    def nprologue(self):
        return sum(1 for x in self.prologue_items() if kind(x) == 'd')

    def vm(self, s, nst):
        q = []
        for it in range(-8, max(s, 1)):
            for g, st in self.issue_seq(it):
                if st < nst:
                    q += [st] * len(g[2])
        idx = max(i for i, st in enumerate(q) if st <= s)
        return len(q) - 1 - idx

    def half(self, a, h, first=False, rd=True, dma=None, adv=False, extra=None, wr=True, rdg=None, dense=False):
        sg = Seg(self.mfmas(h, first))
        n = sg.n
        lastd = 0
        nadv = sum(len(r.regs) for r in self.rings)
        if dma:
            lastd = place_dma(sg, dma, 0, n - 2 - ((nadv // 2 + 3) if adv and n > 8 else 0))
        lastr = 0
        if rd and 'noreads' not in GFL:
            R = (rdg or self).reads(h ^ 1)
            g1 = max(len(R) // 2, n - int(os.environ.get('RDE', 11)))
            if dense:
                g1 = len(R) // 2
            lastr = max(sg.stream(R, 0, g1))
        if adv:
            g = min(n - 1, lastd + 1) if dma else 0
            vas = []
            for r in self.rings:
                sc, va = r.adv(wr)
                vas += va
                for x in sc:
                    if (sg.d[g] and g == n - 1) or sg.end[g]:
                        sg.end[g].append(x)
                    else:
                        g = sg.place(x, g, lo=g)
            g = max(lastr + 1, g + 1)
            for x in vas:
                if g < n:
                    sg.place(x, g, lo=g)
                else:
                    sg.end[n - 1].append(x)
        if extra:
            extra(sg)
        for x in sg.lines():
            a(x)

    def split(self, it):
        n = sum(1 for x in it if kind(x) == 'd')
        cut = cnt = 0
        for i, x in enumerate(it):
            if kind(x) == 'd':
                cnt += 1
                if cnt == (n + 1) // 2:
                    cut = i + 1
        while cut < len(it) and kind(it[cut]) == 's' and "m0" not in it[cut]:
            cut += 1
        return it[:cut], it[cut:]

    def init(self, a, start=None):
        for i, r in enumerate(self.rings):
            for x in r.init():
                a(x)
            if start and start[i]:
                a("s_mov_b32 s%d, %d" % (r.sRd, start[i]))
            if r.NS == 2:
                a("s_mov_b32 s%d, s%d" % (r.sRdD, r.sC))

    def bar(self, a, N):
        a("s_waitcnt vmcnt(%d) lgkmcnt(0)" % min(63, N))
        a("s_barrier")

    def pro(self, a, N, dma=None):
        a("s_waitcnt vmcnt(%d)" % min(63, N))
        a("s_barrier")
        for x in self.reads(0):
            a(x)
        a("s_waitcnt lgkmcnt(0)")
        self.half(a, 0, first=True, adv=True, dma=dma, wr=False)

    def pro2(self, a, nlate, dma, gm):
        a("s_waitcnt vmcnt(%d)" % nlate)
        a("s_barrier")
        for x in self.reads(0):
            a(x)
        a("s_waitcnt lgkmcnt(0)")

        def late(sg):
            R = self.reads(1)
            sg.stream([x for x in R if "b128" in x], 0, gm - 1)
            nd = sum(len(sg.d[g]) for g in range(gm + 1))
            sg.end[gm].append("s_waitcnt vmcnt(%d)\ns_barrier" % nd)
            g = max(sg.stream([x for x in R if "b128" not in x], gm + 1, sg.n - 14)) + 1
            for r in self.rings:
                sc, va = r.adv(False)
                for x in sc:
                    sg.end[g].append(x)
                for x in va:
                    sg.place(x, g + 1, lo=g + 1)
        self.half(a, 0, first=True, rd=False, dma=dma, extra=late)

    def iter(self, a, N, items=None, wr=True, adv=True, after_bar=None, extra=None):
        if N is not None:
            self.bar(a, N)
        if after_bar:
            after_bar()
        d0, d1 = self.split(items or [])
        self.half(a, 1, dma=d0)
        a("s_waitcnt lgkmcnt(0)")
        self.half(a, 0, dma=d1, adv=adv, wr=wr, extra=extra)

    def loop(self, a, N):
        self.bar(a, N)
        a(".p2align 6")
        a.label("L%s_loop" % self.name)

        def cnt_(sg):
            g = sg.n - 3
            assert not any(sg.d[k] or sg.r[k] or any(kind(x) in 'dr' for x in sg.end[k]) for k in range(g, sg.n))
            sg.sc[g].insert(0, "s_waitcnt vmcnt(%d) lgkmcnt(0)\ns_barrier" % N)
            sg.place("s_sub_u32 s%d, s%d, 1" % (self.sCnt, self.sCnt), sg.n - 2, lo=sg.n - 2)
            sg.end[sg.n - 1].append("s_cmp_lg_u32 s%d, 0" % self.sCnt)
        self.iter(a, None, self.pf + self.dma_items(), extra=cnt_)
        a("s_cbranch_scc1 L%s_loop" % self.name)

    def bm(self, a, order, g0, gend=0, N=None, first=False, dma=None, nxt=None, epi=(), st1=(), st2=(), bar=True, mid=None, carry=(), defer=False):
        m0, m1 = self.mfmas(0, first), self.mfmas(1)
        a("s_waitcnt lgkmcnt(0)")
        sg = Seg([m0[i] for i in order[:g0]])
        g = max(sg.stream(self.reads(1), 0, max(g0 - 8, len(self.reads(1)) // 2) if not carry else len(self.reads(1)) // 2))
        carry = list(carry)
        feed(sg, carry, 2)
        if st1:
            place_dma(sg, [x for L, b in st1 for x in L], 0, g0 - 2)
        if nxt:
            for r in self.rings:
                sc, va = r.adv(True)
                for x in sc:
                    sg.end[g0 - 1].append(x)
                for x in va:
                    sg.end[g0 - 1].append(x)
        for x in sg.lines():
            a(x)
        a("s_waitcnt %slgkmcnt(0)" % ("" if N is None else "vmcnt(%d) " % N))
        if bar:
            a("s_barrier")
        if mid:
            mid()
        mf, done, start = [], {}, {}
        for i in order[:g0]:
            done[i] = len(mf)
            start[i] = -1
            mf.append(m1[i])
        for k in range(g0, len(order) - gend, 2):
            i, j = order[k], order[k + 1]
            start[i], start[j] = len(mf), len(mf) + 1
            mf += [m0[i], m0[j], m1[i], m1[j]]
            done[i], done[j] = len(mf) - 2, len(mf) - 1
        for h, m in enumerate((m0, m1)):
            for i in order[len(order) - gend:] if gend else []:
                (done if h else start)[i] = len(mf)
                mf.append(m[i])
        sg = Seg(mf)
        n = sg.n
        if nxt:
            sg.stream(nxt.reads(0), n - gend, n - 7)
        feed(sg, carry)
        assert not carry
        wrote = {x.split()[1][:-1]: g for g in range(n) for x in sg.c[g]}
        for b in order[g0:]:
            regs = ["v%d" % (self.mf[b][0][1] + e) for e in range(4)] if self.mf[b][0][0] == 'v' else []
            assert all(g < start[b] for g in range(n) for x in sg.c[g] if set(regs) & set(x.replace(",", " ").split()[1:]))
        for k, (L, b) in enumerate(st2):
            g = min(1 + k * (n - gend - 4) // len(st2), start[b] - 1)
            while sg.d[g] or sg.sc[g] or sg.used[g] > 4:
                g += 1
            r = int(L[-1].split("[")[1].split(":")[0])
            assert g < start[b] and all(wrote.get("v%d" % (r + e), -1) < g for e in range(4)), (k, g)
            for x in L:
                sg.put(g, x)
        if dma:
            place_dma(sg, dma, 0, n - 2 - gend)
        g = 0
        rest = []
        for need, L in epi:
            lo = max(done[i] for i in need) + 4
            for x in L:
                g = max(g, lo)
                k = kind(x)
                if k == 's' and g + 1 < n and not rest:
                    g += 1
                    while g < n and (sg.d[g] or sg.end[g] or sg.sc[g]):
                        g += 1
                if k == 'r' and g < n and sg.c[g]:
                    g += 1
                while g < n and not (sg.room(g, k) and (k not in 'dr' or not sg.c[g])):
                    g += 1
                if g >= n or rest:
                    rest.append(x)
                else:
                    sg.put(g, x)
                    if k == 'c':
                        lo = g
        for x in sg.lines() + ([] if defer else rest):
            a(x)
        return rest

    def tail(self, a, items=None, bar=True, N=None, rd=False):
        a("s_waitcnt %slgkmcnt(0)" % ("" if N is None else "vmcnt(%d) " % N))
        if bar:
            a("s_barrier")
        self.half(a, 1, rd=rd, dma=items)


GFL = set(os.environ.get("GFLAGS", "").split(","))


def lane_setup(a, T):
    a("v_lshrrev_b32 v%d, 3, v1" % T)
    a("v_and_b32 v%d, 6, v%d" % (T + 1, T))
    a("v_and_b32 v%d, 7, v1" % (T + 2))
    a("v_xor_b32 v%d, v%d, v%d" % (T + 1, T + 1, T + 2))
    a("v_lshlrev_b32 v%d, 4, v%d" % (T + 1, T + 1))


def xread_base(a, d0, d1, T, sbase):
    a("v_and_b32 v%d, 15, v1" % T)
    a("v_lshlrev_b32 v%d, 7, v%d" % (T, T))
    a("v_lshrrev_b32 v%d, 4, v1" % (T + 1))
    a("v_and_b32 v%d, 6, v1" % (T + 2))
    a("v_xor_b32 v%d, v%d, v%d" % (T + 1, T + 1, T + 2))
    a("v_lshl_add_u32 v%d, v%d, 4, v%d" % (T, T + 1, T))
    a("v_add_u32 v%d, %s, v%d" % (d0, sbase, T))
    a("v_xor_b32 v%d, 64, v%d" % (d1, d0))


def wread_base(a, regs, nbs, T, sbase):
    a("v_lshrrev_b32 v%d, 2, v1" % T)
    a("v_and_b32 v%d, 6, v%d" % (T + 1, T))
    a("v_lshlrev_b32 v%d, 7, v%d" % (T, T))
    a("v_and_b32 v%d, 1, v1" % (T + 2))
    a("v_lshl_add_u32 v%d, v%d, 3, v%d" % (T, T + 2, T))
    a("v_add_u32 v%d, %s, v%d" % (T, sbase, T))
    a("v_bfe_u32 v%d, v1, 1, 1" % (T + 2))
    a("v_xor_b32 v%d, v%d, v%d" % (T + 1, T + 1, T + 2))
    for r, nb in zip(regs, nbs):
        a("v_xor_b32 v%d, %d, v%d" % (T + 2, 2 * nb, T + 1))
        a("v_lshl_add_u32 v%d, v%d, 4, v%d" % (r, T + 2, T))
```

```python
from lib import *
from gemm4 import *
import proj4, bfront, attn4, oproj, qproj

MFL = set(os.environ.get("MFLAGS", "").split(","))


def gen(stamp=False):
    a = Asm()
    st = Stamps(stamp, 0)
    a("s_cmp_ge_u32 s2, 256")
    a("s_cbranch_scc1 Lend")
    a("s_load_dwordx16 s[64:79], s[0:1], 0")
    a("s_load_dwordx8 s[80:87], s[0:1], 64")
    a("v_lshrrev_b32 v2, 6, v0")
    a("v_and_b32 v1, 63, v0")
    a("v_readfirstlane_b32 s%d, v2" % S_WAVE)
    a("v_lshlrev_b32 v2, 4, v1")
    if 'ipf' in MFL:
        a("s_getpc_b64 s[6:7]")
        a("s_lshr_b32 s4, s2, 3")
        a("s_lshl_b32 s4, s4, 2")
        a("s_add_u32 s4, s4, s%d" % S_WAVE)
        a("s_min_u32 s4, s4, CODE_KB")
        a("s_lshl_b32 s4, s4, 10")
        a("v_add_u32 v3, s4, v2")
        a("global_load_dwordx4 v[4:7], v3, s[6:7]")
    st(a)
    gk, gv = proj4.make('wx'), proj4.make('xw')
    b0, b1 = bfront.make(0), bfront.make(1)
    g3 = qproj.make()
    if 'nost' in MFL:
        t0 = proj4.trickle
        proj4.trickle = lambda k, a, b: [x.replace("s%d," % proj4.sSt, "0x70000000,").replace("s_add_u32 s60, 0x70000000, ", "s_mov_b32 s60, 0x70000000 ; ") for x in t0(k, a, b)]
    NK = [int(x) for x in os.environ.get("NK", "12").split(",")]
    NW = int(os.environ.get("NW", 8))
    TR3 = [int(x) for x in os.environ.get("TR3", "8,0,8,0,8").split(",")]
    assert NW >= 8 and NW + sum(TR3) == 32
    a("s_bfe_u32 s59, s2, 0x30003")
    a("s_lshr_b32 s4, s2, 7")
    a("s_lshl_b32 s4, s4, 3")
    a("s_add_u32 s59, s59, s4")
    a("s_lshr_b32 s4, s2, 3")
    a("s_xor_b32 s4, s4, s2")
    a("s_bitcmp1_b32 s4, 3")
    a("s_cbranch_scc1 Lp2")

    def common(c):
        attn4.ids(c)
        oproj.lanes(c, 24)
        qproj.lanes(c, 24)
    proj4.setup(a, gk, "s59")
    srd(a, S_FLG, P_WS, 0x40000, WS_FLG)
    tag_make(a, 0)
    if 'st0' in MFL:
        st(a)
    GM = int(os.environ.get("GM", 0))
    for x in proj4.xitems(gk, 0) + proj4.witems(gk, 0):
        a(x)
    if 'st0' in MFL:
        st(a)
    c = Col()
    proj4.read_bases(c, gk)
    common(c)
    proj4.out_base(c)
    gk.init(c, [proj4.XS0, 0])
    SU, W0 = os.environ.get("SU", ""), float(os.environ.get("W0", 0.6))
    pre1 = (proj4.xitems(gk, 1) if 'x' in SU else []) + (proj4.witems(gk, 1) if 'w' in SU else [])
    post1 = ([] if 'x' in SU else proj4.xitems(gk, 1)) + ([] if 'w' in SU else proj4.witems(gk, 1))
    for x in weave_lines(c, pre1, W0, 1.0) if pre1 else c:
        a(x)
    tag_make(a, 1, 16 + 8 * len(SU))
    st(a)
    k0 = st.k
    if 'st0' in MFL:
        a("s_waitcnt vmcnt(%d)" % (8 * len(SU)))
        st(a)
    if GM:
        gk.pro2(a, 4, post1 + proj4.xitems(gk, 2), GM)
    else:
        gk.pro(a, 8 * len(SU), dma=post1 + proj4.xitems(gk, 2))
    if 'st0' in MFL:
        st(a)
        a("s_waitcnt vmcnt(8)")
        st(a)
        st.flush(a)
        a("s_endpgm")
    a("s_mov_b32 s%d, 6" % gk.sCnt)
    gk.loop(a, 8)
    gk.half(a, 1, dma=gk.dma_items())
    if 'st2' in MFL:
        st(a)
    order, epi = proj4.pack('k', NK[0])
    rest = gk.bm(a, order, 18, 18, N=8, dma=gk.dma_items(), nxt=gv, epi=epi, defer=True)
    assert all(kind(x) == 'c' for x in rest), rest
    if 'st2' in MFL:
        st(a)
    order, held = proj4.v_order(NK[0])
    sts = [(proj4.trickle('k', k, k + 1), held[proj4.ORDER['k'][k]]) for k in range(NK[0], 32)]
    gv.bm(a, order, 20, 18, N=8, first=True, dma=gv.dma_items(), nxt=gv, st2=sts, carry=rest)
    a("s_add_u32 s%d, s%d, 0x4000" % (proj4.sSt, proj4.sSt))
    a("s_waitcnt lgkmcnt(0)")
    gv.half(a, 0, adv=True)
    st(a)
    a("s_mov_b32 s%d, 4" % gv.sCnt)
    gv.loop(a, 8)
    gv.iter(a, None, proj4.witems(gv, 0) + qproj.witems(g3, 0) + qproj.witems(g3, 1), after_bar=lambda: qproj.setup(a, g3))
    gv.bar(a, 8)
    gv.half(a, 1, dma=qproj.xitems(g3, 0))
    order, epi = proj4.pack('v', NW)
    gv.bm(a, order, 18, epi=epi, dma=qproj.xitems(g3, 1) + qproj.witems(g3, 2) + qproj.xitems(g3, 2), mid=lambda: tag_load(a, 22))
    qk = VmQ()
    for t, n in (('w0', 4), ('w1', 4), ('x0', 8), ('t', 1), ('st', NW), ('x1', 8), ('w2', 4), ('x2', 8)):
        qk.push(t, n)
    a("s_lshl_b32 s34, s%d, 4" % proj4.sN0)
    a("s_add_u32 s34, s34, s%d" % proj4.sM0)
    a("s_lshl_b32 s34, s34, 7")
    a("s_branch Lp3")
    a.label("Lp2")
    if 'st0' in MFL and 'nob' in MFL:
        a("s_endpgm")
    st.k = k0 - 1
    bfront.setup(a, b0, "s59")
    srd(a, S_FLG, P_WS, 0x40000, WS_FLG)
    a("s_cmp_ge_u32 s%d, 2" % S_WAVE)
    a("s_cbranch_scc1 Lp2_r1")
    for rh, g in enumerate((b0, b1)):
        if rh:
            a.label("Lp2_r1")
            st.k = k0 - 1
        nx = 8 if rh else 9
        PFB, PF0 = int(os.environ.get("PFB", 4)), os.environ.get("PF0", "")
        a("s_and_b32 s4, s2, 7")
        a("s_lshl_b32 s4, s4, 4")
        a("s_add_u32 s4, s4, s59")
        a("s_lshl_b32 s4, s4, 2")
        a("s_add_u32 s4, s4, s%d" % S_WAVE)
        a("s_lshl_b32 s51, s4, 13")

        def pf0():
            a("s_lshr_b32 s56, s51, 1")
            srd(a, 52, P_CKV, 2 * MB)
            for i in range(4):
                a("buffer_load_dwordx4 a[192:195], v2, s[52:55], s56 offen offset:%d ; @dummy" % (1024 * i))
            a("s_add_u32 s56, s51, 4096")
            srd(a, 52, P_WUK, 4 * MB)
            for i in range(8):
                a("buffer_load_dwordx4 a[192:195], v2, s[52:55], %s offen offset:%d ; @dummy" % ("s56" if i >= 4 else "s51", 1024 * (i & 3)))
        if PF0 == "a":
            pf0()
        for x in bfront.xitems(g, 0) + bfront.witems(g, 0):
            a(x)
        if PF0 == "b":
            pf0()
        c = Col()
        bfront.read_bases(c)
        common(c)
        bfront.pre(c)
        g.init(c)
        if PFB:
            srd(c, 52, P_WUV, 4 * MB)
            c("s_lshl_b32 s1, s51, 1")
            c("s_mov_b32 s56, s51")
            c("s_mov_b32 s0, 0")
            pf1 = ["buffer_load_dwordx4 a[192:195], v2, s[52:55], s51 offen offset:%d ; @dummy" % (1024 * i) for i in range(PFB)]
            assert PFB == 4
            g.pf = pf1 + ["s_add_u32 s51, s51, 4096", "s_add_u32 s0, s0, 1",
                          "s_cmp_eq_u32 s0, 2\ns_cselect_b32 s52, s%d, s52\ns_cselect_b32 s53, s%d, s53\ns_cselect_b32 s51, s1, s51\n"
                          "s_cselect_b32 s54, %d, s54" % (P_WQ, P_WQ + 1, (8 * MB) if os.environ.get("PFQ", "0") == "1" else 0),
                          "s_cmp_eq_u32 s0, 6\ns_cselect_b32 s52, s%d, s52\ns_cselect_b32 s53, s%d, s53\ns_cselect_b32 s51, s56, s51\n"
                          "s_cselect_b32 s54, %d, s54" % (P_AX, P_AX + 1, (4 * MB) if os.environ.get("PFQ", "0") == "1" else 0),
                          "s_cmp_eq_u32 s0, 8\ns_cselect_b32 s54, 0, s54"]
        pre1 = (bfront.xitems(g, 1) if 'x' in SU else []) + (bfront.witems(g, 1) if 'w' in SU else [])
        post1 = ([] if 'x' in SU else bfront.xitems(g, 1)) + ([] if 'w' in SU else bfront.witems(g, 1))
        for x in weave_lines(c, pre1, W0, 1.0) if pre1 else c:
            a(x)
        st(a)
        g.pro(a, (nx if 'x' in SU else 0) + (6 if 'w' in SU else 0), dma=post1 + bfront.xitems(g, 2))
        if 'st0' in MFL:
            a("s_endpgm")
        a("s_mov_b32 s%d, 13" % g.sCnt)
        g.loop(a, nx)
        if 'st2' in MFL:
            st(a)
            st(a)
        g.iter(a, None, bfront.witems(g, 0), after_bar=lambda: qproj.setup(a, g3))
        g.bar(a, 0)
        a("s_mov_b32 s6, 0x%08x" % f32bits(bfront.CB))
        a("s_mov_b32 s7, s6")
        g.half(a, 1)
        order, epi = bfront.pack(g, rh)
        g.bm(a, order, 16, epi=epi, dma=qproj.witems(g3, 0) + qproj.witems(g3, 1) + qproj.xitems(g3, 0), mid=lambda: tag_load(a, 22))
        a("s_waitcnt lgkmcnt(0)")
        a("s_barrier")
        st(a)
        if not rh:
            a("s_branch Lp2_at")
    a.label("Lp2_at")
    c = Col()
    bfront.attend(c)
    for x in weave_lines(c, qproj.xitems(g3, 1) + qproj.witems(g3, 2) + qproj.xitems(g3, 2), 0.0, 0.7):
        a(x)
    qb = VmQ()
    for t, n in (('t', 1), ('w0', 4), ('w1', 4), ('x0', 8), ('x1', 8), ('w2', 4), ('x2', 8), ('st', 8)):
        qb.push(t, n)
    a("s_lshl_b32 s34, s%d, 4" % bfront.sRb)
    a("s_add_u32 s34, s34, s%d" % bfront.sHp)
    a("s_lshl_b32 s34, s34, 7")
    a("s_add_u32 s34, s34, %d" % F_OB)
    a("s_mov_b32 s%d, 0x70000000" % proj4.sSt)
    a.label("Lp3")
    st(a)
    qproj.restore(a)
    g3.init(a, [qproj.XS0, 0])
    need = lambda *t: min(qk.need(*t), qb.need(*t))

    def push(t, n):
        qk.push(t, n), qb.push(t, n)
    cum = [NW + sum(TR3[:k]) for k in range(len(TR3) + 1)]
    g3.pro(a, need('w0', 'x0'), dma=proj4.trickle('v', cum[0], cum[1]))
    push('st', TR3[0])
    last = len(TR3) + 1
    for s in range(1, last + 1):
        N = need('w%d' % s, 'x%d' % s, s, *(['st'] if s == last else []))
        g3.iter(a, N, g3.dma_items() + (proj4.trickle('v', cum[s], cum[s + 1]) if s < len(TR3) else []),
                after_bar=(lambda: (tag_get(a, 22, 12), signal(a, 22, ["s34"], 3))) if s == last else None)
        push(s + 2, 12)
        if s < len(TR3):
            push('st', TR3[s])
    if last < 12:
        a("s_mov_b32 s%d, %d" % (g3.sCnt, 12 - last))
        g3.loop(a, 12)
    else:
        g3.bar(a, 12)

    def ids():
        a("s_lshr_b32 s34, s%d, 1" % attn4.sHead)
        a("s_lshl_b32 s34, s34, 11")
        for x in flag_addr(3, 8):
            a(x)
    g3.iter(a, None, [flag_load(22, "s34", 3)] + g3.dma_items(), after_bar=ids)

    def go():
        flag_check(a, 22, "s34", 3)
        attn4.kv_setup(a)
        oproj.ids(a)
    it = attn4.kv_prologue_items(0)
    cut = [i for i, x in enumerate(it) if "m0" in x][1]
    g3.iter(a, 12, it[:cut], after_bar=go)
    g3.bar(a, 4)
    a("s_mov_b32 s6, 0x%08x" % f32bits(attn4.CST))
    a("s_mov_b32 s7, s6")
    g3.half(a, 1, dma=it[cut:])
    order, epi = qproj.epilogue()
    g3.bm(a, order, 16, epi=epi, bar=False)
    st(a)
    attn4.setup1(a)
    oproj.fill_setup(a)
    st(a)
    g6, g7 = oproj.make("p6", oproj.AB), oproj.make("p7", oproj.AA)

    class H:
        q0 = [t for t in (('K', 0), ('K', 1), ('V', 0)) for _ in range(4)]

        @staticmethod
        def after_d2():
            a("s_lshr_b32 s91, s%d, 1" % oproj.sRb)
            a("s_lshl_b32 s91, s91, 11")
            a("s_add_u32 s91, s91, %d" % F_OB)
            for x in flag_addr(14):
                a(x)

        @staticmethod
        def fill():
            return oproj.fill_items()

        @staticmethod
        def pre_e1():
            return [flag_load(12, "s91", 14)]

        @staticmethod
        def at_e1():
            flag_check(a, 12, "s91", 14)
            oproj.ring_start(a)
            for j in range(4):
                a("v_accvgpr_read_b32 v%d, a%d" % (oproj.wv + j, oproj.aSave + j))
            for x in oproj.job_w(False) + oproj.job_x(False):
                a(x)

        @staticmethod
        def e1_items():
            return oproj.stage_items(g6, 0, 'wx')

        @staticmethod
        def e2_items():
            return oproj.stage_items(g6, 1, 'wx')
    attn4.attention(a, st, H)
    st(a)
    gh = oproj.make("ph", oproj.AA, True)
    q = VmQ()
    for s in range(2):
        q.push(s, 8)
    q.push('ctx', 8)
    oproj.read_bases(a, 4)
    g6.init(a, [3])
    c = Col()
    c("s_lshl_b32 s36, s%d, 7" % attn4.sHead)
    c("s_add_u32 s36, s36, %d" % F_CTX)
    attn4.long_blk(c, 37)
    c("s_lshl_b32 s37, s37, 12")
    c("s_add_u32 s37, s37, s36")
    c("s_lshl_b32 s38, s%d, 12" % attn4.sPair)
    c("s_add_u32 s36, s36, s38")
    oproj.flag_pos(c, False, True, 38)
    c("s_lshl_b32 s91, s%d, 12" % oproj.sRb)
    c("s_add_u32 s91, s91, %d" % F_CTX)
    oproj.flag_pos(c, False, False, 39)
    c("s_sub_u32 s39, s39, s91")
    sigc = Col()
    signal(sigc, 6, ["s36", "s37", "s38"])
    pre = sigc[:-3] + ["v_lshlrev_b32 v14, 7, v1", "v_mov_b32 v9, s39", "v_cmp_gt_u32 vcc, 32, v1", "v_cndmask_b32 v14, v9, v14, vcc"]
    for x in c + pre:
        a(x)
    g6.pro(a, q.need(0), dma=oproj.stage_items(g6, 2, 'wx'))
    q.push(2, 8)
    VS = int(os.environ.get("VS", 6))
    for s in range(1, VS):
        N = q.need(1, 'ctx') if s == 1 else q.need(s)
        it = g6.dma_items() if s < 5 else (oproj.job_w(True) if s == 5 else []) + g7.group_items(g7.dma[0])
        if s == 1:
            it = sigc[-3:] + oproj.stage_items(g6, 3, 'wx') + it
            q.push('sig', 3)
            q.push(3, 8)
        if s == 2:
            c = Col()
            oproj.xch_srd(c)
            it = [c[0] + "\n" + c[1]] + c[2:] + it
        if s == VS - 1:
            it = [flag_load(6, "s91", 14)] + it
            q.push('fl', 1)
        q.push(s + 3, 8 if s < 5 else 4)
        if 'st6' in MFL:
            st(a)
        g6.iter(a, N, it)
    a("s_waitcnt vmcnt(%d)" % q.need(VS, 'fl'))
    a("v_cmp_ne_u64 vcc, s[%d:%d], v[6:7]" % (S_TAG, S_TAG + 1))
    a("v_cndmask_b32_e64 v8, 0, 1, vcc")
    a("v_lshlrev_b32 v9, 2, v0")
    a("ds_write_b32 v9, v8")
    a("v_lshlrev_b32 v9, 4, v1")
    a("s_waitcnt lgkmcnt(0)")
    a("s_barrier")
    a("ds_read_b128 v[160:163], v9")
    for x in oproj.job_w(True) if VS == 5 else []:
        a(x)
    a("s_waitcnt lgkmcnt(0)")
    a("v_or3_b32 v160, v160, v161, v162")
    a("v_or_b32 v160, v160, v163")
    a("v_cmp_ne_u32 vcc, 0, v160")
    if 'only7' not in MFL:
        a("s_cbranch_vccnz Lp6_late ; @late")
    if 'st6' in MFL:
        st(a)
    k0 = st.k
    q0 = list(q.q)
    for late in (False, True):
        q.q = list(q0)
        if late:
            a.label("Lp6_late")
            st.k = k0
        else:
            for x in oproj.job_x(True):
                a(x)
        for s in range(VS, 8):
            if s > VS:
                g6.bar(a, q.need(s))
            it = g7.group_items(g7.dma[0]) if late else g7.dma_items()
            if s == VS and not late:
                for t in range(VS + 2, 7, -1):
                    it = oproj.stage_items(g7, t, 'x') + it
                for t in range(8, VS + 3):
                    q.push(t, 4)
            q.push(s + 3, 4 if late else 8)
            if late and s == 7:
                it += [flag_load(6, "s91", 14)]
            d0, d1 = g6.split(it)
            g6.half(a, 1, dma=d0)
            a("s_waitcnt lgkmcnt(0)")
            g6.half(a, 0, dma=d1, adv=True)
        if late:
            a("s_waitcnt vmcnt(0) lgkmcnt(0)")
            a("s_barrier")
            st(a)
            flag_check(a, 6, "s91", 14)
            st(a)
            for x in oproj.job_x(True):
                a(x)
            it = []
            for s in range(8, 12):
                it += oproj.stage_items(g7, s, 'x' if s < 11 else 'wx')
            g6.half(a, 1, rd=False, dma=it)
            for x in oproj.send_items(oproj.AB, False, 6):
                a(x)
            a("s_waitcnt vmcnt(24)")
            a("s_barrier")
            for x in g7.reads(0):
                a(x)
            a("s_waitcnt lgkmcnt(0)")
            g7.half(a, 0, first=True, adv=True)
        else:
            g6.bar(a, q.need(8))
            st(a)
            st(a)
            g6.half(a, 1, dma=g7.dma_items())
            a("s_waitcnt lgkmcnt(0)")
            it = oproj.send_items(oproj.AB, False, 6)
            nsc = [i for i, x in enumerate(it) if kind(x) == 'd'][0]
            for x in it[:nsc]:
                a(x)
            g7.half(a, 0, first=True, adv=True, extra=lambda sg: place_dma(sg, it[nsc:], 5, 14))
            a("s_branch Lp7")
    a.label("Lp7")
    st(a)
    DL = oproj.DL
    F = 40 - DL
    U = min(33, F - int(os.environ.get("UB", 4)))
    a("s_mov_b32 s%d, %d" % (g7.sCnt, U - 9))
    g7.loop(a, 16)
    if 'st2' in MFL:
        st(a)
    q = VmQ()
    for s in range(U, U + 3):
        q.push(s, 8)
    E = F + 2 * DL
    finB = []
    gl = oproj.make("l", oproj.AA, lin=True)
    for s in range(U, E):
        tags, it, ab = [s], [], None
        if s == U:
            c = Col()
            oproj.out_off(c, False, 32)
            oproj.out_off(c, True, 34)
            it += oproj.recv_items(False, 6) + c
            ab = lambda: oproj.out_setup(a)
        if s == U + 2:
            tags.append('rcv')
            ab = lambda: oproj.recv_check(a, False, 6)
            finB = oproj.finish(oproj.AB, False, 32)
        if s == E - 1:
            it += oproj.recv_items(True, 6)
        N = q.need(*tags)
        q.push('rcv', sum(kind(x) == 'd' for x in it))
        if s + 3 < F:
            it += g7.dma_items() if s + 3 < 36 else (oproj.to_lin() if s + 3 == 36 else []) + gl.dma_items()
            q.push(s + 3, 8)
        elif s + 3 < E:
            if s + 3 == F:
                it += oproj.to_half()
            if s + 3 == F + DL:
                it += oproj.to_partner()
            it += gh.dma_items()
            q.push(s + 3, 6)
        g1, g0 = (g7 if s - 1 < F else gh), (g7 if s < F else gh)
        if s > U:
            g7.bar(a, N)
        else:
            assert N >= 16
        if ab:
            ab()
        d0, d1 = g7.split(it)
        if s == F:
            snd = oproj.send_items(oproj.AA, True, 36)
            nsc = [i for i, x in enumerate(snd) if kind(x) == 'd'][0]
            d0, d1 = it + snd[:nsc], snd[nsc:]
            q.push('snd', 8)
        L = finB.pop(0) if finB else []

        def finb(sg):
            g = 0
            for x in L[:-1]:
                g = sg.place(x, g, lo=g)
        g1.half(a, 1, dma=d0, rdg=g0, extra=finb)
        a("s_waitcnt lgkmcnt(0)")
        g0.half(a, 0, dma=d1, adv=s < E - 1, extra=lambda sg: sg.end[sg.n - 1].extend(L[-1:]))
        q.push('ob', len(L[-1:]))
        if 'st3' in MFL:
            st(a)
    gh.tail(a, bar=False)
    st(a)
    a("s_waitcnt vmcnt(0)")
    oproj.recv_check(a, True, 6)
    st(a)
    for L in zip(*oproj.finish(oproj.AA, True, 34)):
        for x in L:
            a(x)
    st(a)
    if stamp:
        a("s_waitcnt vmcnt(0)")
    st(a)
    st.flush(a)
    return fin(a)


def fin(a):
    a.label("Lend")
    a("s_endpgm")
    t = a.finish()
    for fl, pat in (('x7rd', "ds_read"), ('x7mf', "v_mfma"), ('x7dma', " lds")):
        if fl in MFL:
            h, r = t.split("Lp7_loop:")
            b, r = r.split("s_cbranch_scc1 Lp7_loop", 1)
            t = h + "Lp7_loop:" + "\n".join(l for l in b.split("\n") if pat not in l) + "s_cbranch_scc1 Lp7_loop" + r
    if 'nobar' in MFL:
        t = t.replace("s_barrier", "s_nop 0")
    if 'nox' in MFL:
        t = "\n".join(l for l in t.split("\n") if not (l.rstrip().endswith(" lds") and "s[8:11]" in l))
    if 'now' in MFL:
        t = "\n".join(l for l in t.split("\n") if not (l.rstrip().endswith(" lds") and "s[12:15]" in l))
    if 'nodma' in MFL:
        t = "\n".join(l for l in t.split("\n") if not l.rstrip().endswith(" lds"))
    return t.replace("CODE_KB", os.environ.get("CODE_KB", "70"))
```

```python
from lib import *


class Ring:
    def __init__(self, NS, slot, sbase):
        self.NS, self.slot = NS, slot
        self.sWr, self.sRd, self.sRdD, self.sC = sbase, sbase + 1, sbase + 2, sbase + 3
        self.regs = []

    def init(self):
        return ["s_mov_b32 s%d, 0" % self.sRd,
                "s_mov_b32 s%d, %d" % (self.sC, (-(self.NS - 1) * self.slot) & 0xffffffff),
                "s_mov_b32 s%d, %d" % (self.sC + 1, self.slot)]

    def adv(self, wr):
        sc = []
        if wr:
            sc.append("s_add_u32 s%d, s%d, s%d" % (self.sWr, self.sWr, self.sRdD))
        if self.NS == 2:
            sc.append("s_sub_u32 s%d, 0, s%d" % (self.sRdD, self.sRdD))
        else:
            sc += ["s_add_u32 s%d, s%d, 1" % (self.sRd, self.sRd),
                   "s_cmp_eq_u32 s%d, %d\ns_cselect_b32 s%d, 0, s%d\ns_cselect_b32 s%d, s%d, s%d" % (
                       self.sRd, self.NS, self.sRd, self.sRd, self.sRdD, self.sC, self.sC + 1)]
        return sc, ["v_add_u32 v%d, s%d, v%d" % (r, self.sRdD, r) for r in self.regs]


def feed(sg, chain, g=0):
    nd = 0
    while chain:
        x = chain[0]
        if isinstance(x, int):
            if g + x >= sg.n:
                chain[0] = g + x - sg.n
                if chain[0] == 0:
                    chain.pop(0)
                return nd
            g += x
            chain.pop(0)
            continue
        k = 'm' if x.startswith("v_mfma") else kind(x)
        if k in 'dr' and sg.c[g]:
            g += 1
        while g < sg.n and not ((k == 'm' and not sg.end[g]) or (k != 'm' and sg.room(g, k) and not sg.end[g] and (k not in 'dr' or not sg.c[g]))):
            g += 1
        if g >= sg.n - 1:
            return nd
        chain.pop(0)
        if k == 'm':
            sg.end[g].append(x)
            g += 1
        else:
            sg.put(g, x)
            nd += k == 'd'
    return nd


def place_dma(sg, items, g0, g1):
    nd = sum(1 for x in items if kind(x) == 'd')
    k = 0
    last = g0
    for x in items:
        if kind(x) == 'd':
            want = g0 + (k * (g1 - g0 + 1)) // nd
            k += 1
            if sg.end[last]:
                sg.end[last].append(x)
                continue
            g = sg.place(x, max(want, last), lo=last)
            last = g
        else:
            g = min(last + 1, sg.n - 1) if sg.d[last] else last
            if sg.d[g] or sg.end[g]:
                sg.end[g].append(x)
            else:
                g = sg.place(x, g, lo=g)
                if sg.d[g]:
                    raise RuntimeError("scalar placed before an earlier load")
            last = g
            if "m0" in x and not sg.end[g]:
                last = min(g + 1, sg.n - 1)
                if last == g:
                    sg.end[g].append("s_nop 0")
    return last


class Gemm:
    xlin = False
    woff = 0
    pf = []

    def fxr(self, h, i):
        return ('a', self.fx + 4 * (h * len(self.xfr) + i))

    def fwr(self, h, i):
        return ('a', self.fw + 4 * (h * len(self.wfr) + i))

    def mfmas(self, h, first=False):
        L = []
        for acc, xi, wi, o in self.mf:
            x, w = self.fxr(h, xi), self.fwr(h, wi)
            L.append(mfma(acc, w, x, "0" if first else None) if o == 'wx' else mfma(acc, x, w, "0" if first else None))
        return L

    def reads(self, h):
        L = []
        seen = set()
        for acc, xi, wi, o in self.mf:
            if ('x', xi) not in seen:
                seen.add(('x', xi))
                st, imm = self.xfr[xi]
                if self.xlin:
                    L.append("ds_read_b128 %s, v%d offset:%d" % (r4(self.fxr(h, xi)), self.xrd[st][0], imm + h * self.xhs))
                else:
                    L.append("ds_read_b128 %s, v%d offset:%d" % (r4(self.fxr(h, xi)), self.xrd[st][h], imm))
            if ('w', wi) not in seen:
                seen.add(('w', wi))
                nb, imm = self.wfr[wi]
                b = self.fwr(h, wi)[1]
                for j in range(2):
                    L.append("ds_read_b64_tr_b16 a[%d:%d], v%d offset:%d" % (b + 2 * j, b + 2 * j + 1, self.wrd[nb], self.woff + imm + h * 4096 + j * 2048))
        return L

    def group_items(self, grp, off=0):
        ring, m0, ins, post = grp
        if isinstance(m0, tuple):
            L = ["s_add_u32 m0, s%d, s%d" % (ring.sWr, m0[1]) + ("\ns_add_u32 m0, m0, %d" % off if off else "")]
        else:
            m0 += off
            L = ["s_add_u32 m0, s%d, %d" % (ring.sWr, m0) if m0 else "s_mov_b32 m0, s%d" % ring.sWr]
        return L + ins + post

    def dma_items(self):
        return [x for g in self.dma for x in self.group_items(g)]

    def issue_seq(self, it):
        return [(g, it - 1 + g[0].NS) for g in self.dma if it - 1 + g[0].NS >= 0]

    def prologue_items(self):
        L = []
        for it in range(-(max(r.NS for r in self.rings) - 1), 1):
            for g, s in self.issue_seq(it):
                L += self.group_items(g, s * g[0].slot)
        return L

    def nprologue(self):
        return sum(1 for x in self.prologue_items() if kind(x) == 'd')

    def vm(self, s, nst):
        q = []
        for it in range(-8, max(s, 1)):
            for g, st in self.issue_seq(it):
                if st < nst:
                    q += [st] * len(g[2])
        idx = max(i for i, st in enumerate(q) if st <= s)
        return len(q) - 1 - idx

    def half(self, a, h, first=False, rd=True, dma=None, adv=False, extra=None, wr=True, rdg=None, dense=False):
        sg = Seg(self.mfmas(h, first))
        n = sg.n
        lastd = 0
        nadv = sum(len(r.regs) for r in self.rings)
        late = []
        if dma:
            dma = list(dma)
            while dma and kind(dma[-1]) == 's' and "lds" not in dma[-1]:
                late.insert(0, dma.pop())
            if dma:
                lastd = place_dma(sg, dma, 0, n - 2 - ((nadv // 2 + 3) if adv and n > 8 else 0))
        lastr = 0
        if rd and 'noreads' not in GFL:
            R = (rdg or self).reads(h ^ 1)
            g1 = max(len(R) // 2, n - int(os.environ.get('RDE', 11)))
            if dense:
                g1 = len(R) // 2
            lastr = max(sg.stream(R, 0, g1))
        vas, advs = [], []
        if adv:
            for r in self.rings:
                sc, va = r.adv(wr)
                advs += sc
                vas += va
        lim = n - 1 - ((nadv + 1) // 2 if adv else 0)

        def scal(L, g):
            for k, x in enumerate(L):
                need = 4 * x.count("\n")
                q = g
                while q <= lim - (len(L) - k - 1) // 3 and (sg.d[q] or sg.sc[q] or sg.end[q] or sg.used[q] + need > 8):
                    q += 1
                if q <= lim - (len(L) - k - 1) // 3:
                    g = sg.put(q, x)
                elif sg.d[g] or sg.end[g]:
                    sg.end[g].append(x)
                else:
                    g = sg.place(x, g, lo=g)
            return g
        lastm = max([g for g in range(n) if any("m0" in x for x in sg.sc[g] + sg.end[g])], default=-1)
        ga = scal(advs, min(n - 1, lastm + 1))
        scal(late, min(n - 1, lastd + 1) if dma else 0)
        g = max(lastr + 1, ga + 1)
        for x in vas:
            if g < n:
                sg.place(x, g, lo=g)
            else:
                sg.end[n - 1].append(x)
        if extra:
            extra(sg)
        for x in sg.lines():
            a(x)

    def split(self, it):
        n = sum(1 for x in it if kind(x) == 'd')
        cut = cnt = 0
        for i, x in enumerate(it):
            if kind(x) == 'd':
                cnt += 1
                if cnt == (n + 1) // 2:
                    cut = i + 1
        while cut < len(it) and kind(it[cut]) == 's' and "m0" not in it[cut]:
            cut += 1
        return it[:cut], it[cut:]

    def init(self, a, start=None):
        for i, r in enumerate(self.rings):
            for x in r.init():
                a(x)
            if start and start[i]:
                a("s_mov_b32 s%d, %d" % (r.sRd, start[i]))
            if r.NS == 2:
                a("s_mov_b32 s%d, s%d" % (r.sRdD, r.sC))

    def bar(self, a, N):
        a("s_waitcnt vmcnt(%d) lgkmcnt(0)" % min(63, N))
        a("s_barrier")

    def pro(self, a, N, dma=None):
        a("s_waitcnt vmcnt(%d)" % min(63, N))
        a("s_barrier")
        for x in self.reads(0):
            a(x)
        a("s_waitcnt lgkmcnt(0)")
        self.half(a, 0, first=True, adv=True, dma=dma, wr=False)

    def pro2(self, a, nlate, dma, gm):
        a("s_waitcnt vmcnt(%d)" % nlate)
        a("s_barrier")
        for x in self.reads(0):
            a(x)
        a("s_waitcnt lgkmcnt(0)")

        def late(sg):
            R = self.reads(1)
            sg.stream([x for x in R if "b128" in x], 0, gm - 1)
            nd = sum(len(sg.d[g]) for g in range(gm + 1))
            sg.end[gm].append("s_waitcnt vmcnt(%d)\ns_barrier" % nd)
            g = max(sg.stream([x for x in R if "b128" not in x], gm + 1, sg.n - 14)) + 1
            for r in self.rings:
                sc, va = r.adv(False)
                for x in sc:
                    sg.end[g].append(x)
                for x in va:
                    sg.place(x, g + 1, lo=g + 1)
        self.half(a, 0, first=True, rd=False, dma=dma, extra=late)

    def iter(self, a, N, items=None, wr=True, adv=True, after_bar=None, extra=None):
        if N is not None:
            self.bar(a, N)
        if after_bar:
            after_bar()
        d0, d1 = self.split(items or [])
        self.half(a, 1, dma=d0)
        a("s_waitcnt lgkmcnt(0)")
        self.half(a, 0, dma=d1, adv=adv, wr=wr, extra=extra)

    def loop(self, a, N):
        self.bar(a, N)
        a(".p2align 6")
        a.label("L%s_loop" % self.name)

        def cnt_(sg):
            g = sg.n - 3
            assert not any(sg.d[k] or sg.r[k] or any(kind(x) in 'dr' for x in sg.end[k]) for k in range(g, sg.n))
            sg.sc[g].insert(0, "s_waitcnt vmcnt(%d) lgkmcnt(0)\ns_barrier" % N)
            sg.place("s_sub_u32 s%d, s%d, 1" % (self.sCnt, self.sCnt), sg.n - 2, lo=sg.n - 2)
            sg.end[sg.n - 1].append("s_cmp_lg_u32 s%d, 0" % self.sCnt)
        self.iter(a, None, self.pf + self.dma_items(), extra=cnt_)
        a("s_cbranch_scc1 L%s_loop" % self.name)

    def bm(self, a, order, g0, gend=0, N=None, first=False, dma=None, nxt=None, epi=(), st1=(), st2=(), bar=True, mid=None, carry=(), defer=False):
        m0, m1 = self.mfmas(0, first), self.mfmas(1)
        a("s_waitcnt lgkmcnt(0)")
        sg = Seg([m0[i] for i in order[:g0]], False)
        g = max(sg.stream(self.reads(1), 0, max(g0 - 8, len(self.reads(1)) // 2) if not carry else len(self.reads(1)) // 2))
        carry = list(carry)
        feed(sg, carry, 2)
        if st1:
            place_dma(sg, [x for L, b in st1 for x in L], 0, g0 - 2)
        if nxt:
            for r in self.rings:
                sc, va = r.adv(True)
                for x in sc:
                    sg.end[g0 - 1].append(x)
                for x in va:
                    sg.end[g0 - 1].append(x)
        for x in sg.lines():
            a(x)
        a("s_waitcnt %slgkmcnt(0)" % ("" if N is None else "vmcnt(%d) " % N))
        if bar:
            a("s_barrier")
        if mid:
            mid()
        mf, done, start = [], {}, {}
        for i in order[:g0]:
            done[i] = len(mf)
            start[i] = -1
            mf.append(m1[i])
        for k in range(g0, len(order) - gend, 2):
            i, j = order[k], order[k + 1]
            start[i], start[j] = len(mf), len(mf) + 1
            mf += [m0[i], m0[j], m1[i], m1[j]]
            done[i], done[j] = len(mf) - 2, len(mf) - 1
        for h, m in enumerate((m0, m1)):
            for i in order[len(order) - gend:] if gend else []:
                (done if h else start)[i] = len(mf)
                mf.append(m[i])
        sg = Seg(mf, False)
        n = sg.n
        if nxt:
            sg.stream(nxt.reads(0), n - gend, n - 7)
        feed(sg, carry)
        assert not carry
        wrote = {x.split()[1][:-1]: g for g in range(n) for x in sg.c[g]}
        for b in order[g0:]:
            regs = ["v%d" % (self.mf[b][0][1] + e) for e in range(4)] if self.mf[b][0][0] == 'v' else []
            assert all(g < start[b] for g in range(n) for x in sg.c[g] if set(regs) & set(x.replace(",", " ").split()[1:]))
        for k, (L, b) in enumerate(st2):
            g = min(1 + k * (n - gend - 4) // len(st2), start[b] - 1)
            while sg.d[g] or sg.sc[g] or sg.used[g] > 4:
                g += 1
            r = int(L[-1].split("[")[1].split(":")[0])
            assert g < start[b] and all(wrote.get("v%d" % (r + e), -1) < g for e in range(4)), (k, g)
            for x in L:
                sg.put(g, x)
        if dma:
            place_dma(sg, dma, 0, n - 2 - gend)
        g = 0
        rest = []
        for need, L in epi:
            lo = max(done[i] for i in need) + 4
            for x in L:
                g = max(g, lo)
                k = kind(x)
                if k == 's' and g + 1 < n and not rest:
                    g += 1
                    while g < n and (sg.d[g] or sg.end[g] or sg.sc[g]):
                        g += 1
                if k == 'r' and g < n and sg.c[g]:
                    g += 1
                while g < n and not (sg.room(g, k) and (k not in 'dr' or not sg.c[g])):
                    g += 1
                if g >= n or rest:
                    rest.append(x)
                else:
                    sg.put(g, x)
                    if k == 'c':
                        lo = g
        for x in sg.lines() + ([] if defer else rest):
            a(x)
        return rest

    def tail(self, a, items=None, bar=True, N=None, rd=False):
        a("s_waitcnt %slgkmcnt(0)" % ("" if N is None else "vmcnt(%d) " % N))
        if bar:
            a("s_barrier")
        self.half(a, 1, rd=rd, dma=items)


GFL = set(os.environ.get("GFLAGS", "").split(","))


def lane_setup(a, T):
    a("v_lshrrev_b32 v%d, 3, v1" % T)
    a("v_and_b32 v%d, 6, v%d" % (T + 1, T))
    a("v_and_b32 v%d, 7, v1" % (T + 2))
    a("v_xor_b32 v%d, v%d, v%d" % (T + 1, T + 1, T + 2))
    a("v_lshlrev_b32 v%d, 4, v%d" % (T + 1, T + 1))


def xread_base(a, d0, d1, T, sbase):
    a("v_and_b32 v%d, 15, v1" % T)
    a("v_lshlrev_b32 v%d, 7, v%d" % (T, T))
    a("v_lshrrev_b32 v%d, 4, v1" % (T + 1))
    a("v_and_b32 v%d, 6, v1" % (T + 2))
    a("v_xor_b32 v%d, v%d, v%d" % (T + 1, T + 1, T + 2))
    a("v_lshl_add_u32 v%d, v%d, 4, v%d" % (T, T + 1, T))
    a("v_add_u32 v%d, %s, v%d" % (d0, sbase, T))
    a("v_xor_b32 v%d, 64, v%d" % (d1, d0))


def wread_base(a, regs, nbs, T, sbase):
    a("v_lshrrev_b32 v%d, 2, v1" % T)
    a("v_and_b32 v%d, 6, v%d" % (T + 1, T))
    a("v_lshlrev_b32 v%d, 7, v%d" % (T, T))
    a("v_and_b32 v%d, 1, v1" % (T + 2))
    a("v_lshl_add_u32 v%d, v%d, 3, v%d" % (T, T + 2, T))
    a("v_add_u32 v%d, %s, v%d" % (T, sbase, T))
    a("v_bfe_u32 v%d, v1, 1, 1" % (T + 2))
    a("v_xor_b32 v%d, v%d, v%d" % (T + 1, T + 1, T + 2))
    for r, nb in zip(regs, nbs):
        a("v_xor_b32 v%d, %d, v%d" % (T + 2, 2 * nb, T + 1))
        a("v_lshl_add_u32 v%d, v%d, 4, v%d" % (r, T + 2, T))
```

```python
import os, sys, struct, math
sys.path.insert(0, os.path.join(os.path.dirname(os.path.abspath(__file__)), "..", "gen"))
from asmlib import Asm, Ins

MB = 1 << 20
KB = 1024
WS_KV = 16 * MB
WS_CTX = 64 * MB
WS_OB = 80 * MB
WS_XCH = 96 * MB
WS_DBG = 200 * MB
SC1 = "" if os.environ.get("NOSC1") else " sc1"
SC1L = "" if os.environ.get("NOSC1L") else " sc1"
WS_FLG = 120 * MB
S_FLG = 96
S_TAG = 94
F_QKV, F_OB, F_CTX, F_XA, F_XB, F_EPOCH = 0, 0x8000, 0x10000, 0x20000, 0x28000, 0x30000

S_WAVE = 3
S_PTR = 64
P_AX, P_CKV, P_WQ, P_WUK, P_WUV, P_WO, P_BX, P_WQKV, P_BWO, P_OUT, P_DBG, P_WS = [S_PTR + 2 * i for i in range(12)]


def f32bits(x):
    return struct.unpack("<I", struct.pack("<f", x))[0]


def log2(x):
    n = x.bit_length() - 1
    assert 1 << n == x, x
    return n


def v4(b):
    return "v[%d:%d]" % (b, b + 3)


def a4(b):
    return "a[%d:%d]" % (b, b + 3)


def r4(x):
    return "%s[%d:%d]" % (x[0], x[1], x[1] + 3)


def mfma(d, a, b, c=None):
    return "v_mfma_f32_16x16x32_bf16 %s, %s, %s, %s" % (r4(d), r4(a), r4(b), r4(d) if c is None else (c if isinstance(c, str) else r4(c)))


def srd(a, d, p, size, off=0, soff=None):
    if off:
        a("s_add_u32 s%d, s%d, %d" % (d, p, off))
        a("s_addc_u32 s%d, s%d, 0" % (d + 1, p + 1))
    if soff is not None:
        a("s_add_u32 s%d, s%d, s%d" % (d, d if off else p, soff))
        a("s_addc_u32 s%d, s%d, 0" % (d + 1, d + 1 if off else p + 1))
    if not off and soff is None:
        a("s_mov_b32 s%d, s%d" % (d, p))
        a("s_mov_b32 s%d, s%d" % (d + 1, p + 1))
    a("s_mov_b32 s%d, %s" % (d + 2, size if isinstance(size, str) else "%d" % size))
    a("s_mov_b32 s%d, 0x00020000" % (d + 3))


def kind(t):
    mn = t.split(None, 1)[0]
    if mn.startswith("s_") or mn == "WAIT":
        return 's'
    if mn.startswith("ds_"):
        return 'r'
    if mn.startswith("buffer_") or mn.startswith("global_"):
        return 'd'
    if mn.startswith(("v_exp", "v_rcp", "v_log")):
        return 'e'
    return 'c'


DX = int(os.environ.get('DX', 1))


class Seg:
    def __init__(self, mf, dx=True):
        self.dx = dx and DX
        self.mf = mf
        self.n = len(mf)
        self.pre = []
        self.sc = [[] for _ in mf]
        self.d = [[] for _ in mf]
        self.r = [[] for _ in mf]
        self.c = [[] for _ in mf]
        self.end = [[] for _ in mf]
        self.used = [0] * self.n

    def room(self, g, k):
        if self.dx and self.d[g]:
            return False
        if k == 's':
            return len(self.sc[g]) == 0 or self.used[g] <= 4
        if k == 'e':
            return self.used[g] == 0
        if k == 'd':
            if self.dx:
                return self.used[g] == 0 and not self.sc[g]
            return self.used[g] <= 4 and not self.d[g] and not any(kind(x) == 'e' for x in self.c[g])
        return self.used[g] <= 4

    def put(self, g, t):
        k = kind(t)
        if k == 's':
            nl = t.count("\n") + 1
            self.used[g] += 4 * (nl - (0 if self.sc[g] else 1))
            self.sc[g].append(t)
        elif k == 'd':
            self.d[g].append(t)
            self.used[g] += 4
        elif k == 'r':
            self.r[g].append(t)
            self.used[g] += 4
        else:
            self.c[g].append(t)
            self.used[g] += 8 if k == 'e' else 4
        return g

    def place(self, t, want, lo=0, hi=None):
        hi = self.n - 1 if hi is None else min(hi, self.n - 1)
        want = max(lo, min(want, hi))
        k = kind(t)
        for g in range(want, hi + 1):
            if self.room(g, k):
                return self.put(g, t)
        for g in range(want - 1, lo - 1, -1):
            if self.room(g, k):
                return self.put(g, t)
        g = min(range(lo, hi + 1), key=lambda q: (self.used[q], abs(q - want)))
        return self.put(g, t)

    def stream(self, items, g0, g1, strict=False):
        out = []
        n = len(items)
        last = g0
        for i, t in enumerate(items):
            want = g0 + (i * (g1 - g0 + 1)) // n
            g = self.place(t, max(want, last), lo=last, hi=g1 if strict else None)
            last = g
            out.append(g)
        return out

    def lines(self):
        L = list(self.pre)
        for g in range(self.n):
            L.append(self.mf[g])
            for t in self.sc[g] + self.d[g] + self.r[g] + self.c[g] + self.end[g]:
                L += t.split("\n")
        return L

    def cost(self):
        return sum(16 + max(0, self.used[g] - 8) + (4 if self.d[g] and (self.used[g] > 4 or self.sc[g]) else 0) for g in range(self.n))


def resolve_waits(lines, pend):
    out = []
    pend = list(pend)
    later = set(t.split("@")[1].strip() for t in lines if t.startswith("ds_") and "@" in t)
    for t in lines:
        if t.startswith("ds_") and "@" in t:
            later.discard(t.split("@")[1].strip())
        if t.startswith("WAIT"):
            assert t.split()[1] not in later, "wait before its read: " + t
            parts = t.split()
            tag = parts[1]
            extra = " ".join(parts[2:])
            if tag == '*':
                n = 0
            elif tag in pend:
                n = len(pend) - 1 - pend.index(tag)
            else:
                n = None
            if n is None:
                if extra:
                    out.append("s_waitcnt " + extra)
                continue
            assert n <= 15, (n, tag)
            pend = pend[len(pend) - n:] if n else []
            out.append(("s_waitcnt %s lgkmcnt(%d)" % (extra, n)).replace("  ", " "))
            continue
        if t.startswith("ds_"):
            pend.append(t.split("@")[1].strip() if "@" in t else "?")
        out.append(t)
    return out, pend


def kdesc(name, nv, acc, ns=102):
    return """.p2align 6
.amdhsa_kernel %s
  .amdhsa_next_free_vgpr %d
  .amdhsa_next_free_sgpr %d
  .amdhsa_accum_offset %d
  .amdhsa_group_segment_fixed_size 0
  .amdhsa_kernarg_size 96
  .amdhsa_user_sgpr_count 2
  .amdhsa_user_sgpr_kernarg_segment_ptr 1
  .amdhsa_system_sgpr_workgroup_id_x 1
.end_amdhsa_kernel
""" % (name, nv, ns, acc)


def kstart(name):
    return ".globl %s\n.p2align 8\n.type %s,@function\n%s:\n" % (name, name, name)


class Stamps:
    def __init__(self, on, kern):
        self.on, self.kern, self.k = on, kern, 0

    def __call__(self, a):
        if not self.on:
            return
        k = self.k
        self.k += 1
        assert k < 32
        a("s_memrealtime s[100:101]")
        a("s_waitcnt lgkmcnt(0)")
        a("v_writelane_b32 v15, s100, %d" % (2 * k))
        a("s_memtime s[100:101]")
        a("s_waitcnt lgkmcnt(0)")
        a("v_writelane_b32 v15, s100, %d" % (2 * k + 1))

    def flush(self, a):
        if not self.on:
            return
        if os.environ.get("AMP"):
            j, k = [int(x) for x in os.environ["AMP"].split(",")]
            a("v_readlane_b32 s4, v15, %d" % (2 * k))
            a("v_readlane_b32 s5, v15, %d" % (2 * j))
            a("s_memrealtime s[100:101]")
            a("s_sub_u32 s4, s4, s5")
            a("s_lshl_b32 s4, s4, 1")
            a("s_waitcnt lgkmcnt(0)")
            a("s_mov_b32 s6, s100")
            a.label("Lamp")
            a("s_memrealtime s[100:101]")
            a("s_waitcnt lgkmcnt(0)")
            a("s_sub_u32 s5, s100, s6")
            a("s_cmp_lt_u32 s5, s4")
            a("s_cbranch_scc1 Lamp")
            return
        L = a.newlabel("Lst")
        a("s_cmp_lg_u32 s%d, 0" % S_WAVE)
        a("s_cbranch_scc1 %s" % L)
        srd(a, 16, P_WS, 1 * MB, WS_DBG + self.kern * 65536)
        a("s_lshl_b32 s4, s2, 8")
        a("v_mbcnt_lo_u32_b32 v14, -1, 0")
        a("v_mbcnt_hi_u32_b32 v14, -1, v14")
        a("v_lshlrev_b32 v14, 2, v14")
        a("buffer_store_dword v15, v14, s[16:19], s4 offen")
        if os.environ.get("DBGWG"):
            a("s_cmp_lg_u32 s2, %s" % os.environ["DBGWG"])
            a("s_cbranch_scc1 %s" % L)
            srd(a, 16, P_DBG, 256)
            sel = [int(x) for x in os.environ.get("DBGSEL", "0,1,2,3,4,5,6,8,11,12,13,15,16,20").split(",")]
            a("v_readlane_b32 s5, v15, 0")
            for i, k in enumerate(sel):
                a("v_readlane_b32 s4, v15, %d" % (2 * k))
                a("s_sub_u32 s4, s4, s5")
                a("v_mov_b32 v14, s4")
                a("buffer_store_dword v14, off, s[16:19], 0 offset:%d" % (8 + 4 * i))
        a.label(L)


class Col(list):
    def __call__(self, t):
        self.extend(x.strip() for x in t.split("\n") if x.strip())


def signal(a, vt, soffs, va=None):
    va = vt + 2 if va is None else va
    a("v_mov_b32 v%d, 0x40000000" % va)
    a("v_mov_b32 v%d, s%d" % (vt, S_TAG))
    a("v_cmp_eq_u32 vcc, 0, v0")
    a("v_mov_b32 v%d, s%d" % (vt + 1, S_TAG + 1))
    a("v_cndmask_b32_e64 v%d, v%d, 0, vcc" % (va, va))
    for o in soffs:
        a("buffer_store_dwordx2 v[%d:%d], v%d, s[%d:%d], %s offen sc1 ; @signal" % (vt, vt + 1, va, S_FLG, S_FLG + 3, o))


def flag_addr(va, n=16):
    return ["v_and_b32 v%d, %d, v1" % (va, n - 1), "v_lshlrev_b32 v%d, 7, v%d" % (va, va)]


def flag_load(dst, soff, va=None):
    if va is None:
        return "buffer_load_dwordx2 v[%d:%d], off, s[%d:%d], %s sc1" % (dst, dst + 1, S_FLG, S_FLG + 3, soff)
    return "buffer_load_dwordx2 v[%d:%d], v%d, s[%d:%d], %s offen sc1" % (dst, dst + 1, va, S_FLG, S_FLG + 3, soff)


def tag_make(a, part, younger=0):
    L = a.newlabel("Ltag")
    a("s_or_b32 s4, s2, s%d" % S_WAVE)
    a("s_cbranch_scc1 %s" % L)
    a("s_mov_b32 s4, %d" % F_EPOCH)
    if part == 0:
        a(flag_load(22, "s4"))
    else:
        srd(a, 92, P_DBG, 256)
        a("s_waitcnt vmcnt(%d)" % younger)
        a("v_add_u32 v22, 1, v22")
        a("v_or_b32 v23, 0x80000000, v23")
        a("buffer_store_dwordx2 v[22:23], off, s[%d:%d], s4 sc1" % (S_FLG, S_FLG + 3))
        a("buffer_store_dwordx2 v[22:23], off, s[92:95], 0 sc1")
    a.label(L)


def tag_load(a, dst, d=12):
    srd(a, d, P_DBG, 256)
    a("buffer_load_dwordx2 v[%d:%d], off, s[%d:%d], 0 sc1" % (dst, dst + 1, d, d + 3))


def tag_get(a, dst, d=12):
    L, D = a.newlabel("Ltg"), a.newlabel("Lpolld")
    a("s_mov_b32 s5, 0x40000")
    a.label(L)
    a("v_readfirstlane_b32 s%d, v%d" % (S_TAG, dst))
    a("v_readfirstlane_b32 s%d, v%d" % (S_TAG + 1, dst + 1))
    a("s_cmp_lg_u32 s%d, 0" % (S_TAG + 1))
    a("s_cbranch_scc1 %s" % D)
    a("s_sleep 4")
    tag_load(a, dst, d)
    a("s_sub_u32 s5, s5, 1")
    a("s_waitcnt vmcnt(0)")
    a("s_cbranch_scc0 %s ; @poll" % L)
    a.label(D)


class VmQ:
    def __init__(self):
        self.q = []

    def push(self, tag, n):
        self.q += [tag] * n

    def need(self, *tags):
        idx = max([i for i, t in enumerate(self.q) if t in tags], default=-1)
        n = len(self.q) - 1 - idx
        self.q = self.q[idx + 1:]
        return n


def flag_check(a, dst, soff, va=None):
    L, D = a.newlabel("Lpoll"), a.newlabel("Lpolld")
    a("s_mov_b32 s5, 0x40000")
    a.label(L)
    a("v_cmp_ne_u64 vcc, s[%d:%d], v[%d:%d]" % (S_TAG, S_TAG + 1, dst, dst + 1))
    a("s_cbranch_vccz %s" % D)
    a("s_sleep 4")
    a(flag_load(dst, soff, va))
    a("s_sub_u32 s5, s5, 1")
    a("s_waitcnt vmcnt(0)")
    a("s_cbranch_scc0 %s ; @poll" % L)
    a.label(D)


def weave_lines(lines, items, f0=0.0, f1=1.0):
    spots = [i for i in range(1, len(lines)) if lines[i].startswith("v_") and lines[i - 1].startswith("v_") and "vcc" not in lines[i]]
    spots = spots[int(f0 * len(spots)):max(int(f1 * len(spots)), 1)]
    units, cur = [], []
    for x in items:
        cur.append(x)
        if kind(x) == 'd':
            units.append(cur)
            cur = []
    if cur:
        units[-1] += cur
    at = {}
    for k, u in enumerate(units):
        at.setdefault(spots[k * len(spots) // len(units)], []).extend(u)
    out = []
    for i, l in enumerate(lines):
        out += at.get(i, [])
        out.append(l)
    return out


LEAD = int(os.environ.get("LEAD", 2))


class KSeq:
    def __init__(self, sk, nk, tmp, c=1, lead=None):
        self.k, self.ctl, self.nk, self.t = sk, sk + 1, nk, tmp
        lead = LEAD * c if lead is None else lead
        n = 4 * c
        self.c, self.w = c, 32 // n
        self.e = [lead if p < c else (-c if p < c + lead else 0) for p in range(n)] if lead else [0] * n
        self.pat = self.pk([1 + self.e[(p + 1) % n] - self.e[p] for p in range(n)])

    def pk(self, v):
        assert self.nk <= 1 << self.w and self.nk % len(v) == 0
        return sum((x % self.nk) << (self.w * p) for p, x in enumerate(v))

    def wrap(self):
        if self.nk & (self.nk - 1) == 0:
            return ["s_and_b32 s%d, s%d, %d" % (self.k, self.k, self.nk - 1)]
        return ["s_cmp_ge_u32 s%d, %d\ns_cselect_b32 s%d, %d, 0" % (self.k, self.nk, self.t, self.nk),
                "s_sub_u32 s%d, s%d, s%d" % (self.k, self.k, self.t)]

    def init(self, sg, sbase):
        return ["s_and_b32 s%d, %s, 3" % (self.ctl, sg), "s_lshl_b32 s%d, s%d, 3" % (self.ctl, self.ctl),
                "s_or_b32 s%d, s%d, 0x%x" % (self.ctl, self.ctl, self.w << 16), "s_bfe_u32 s%d, 0x%x, s%d" % (self.k, self.pk(self.e), self.ctl),
                "s_add_u32 s%d, s%d, %s" % (self.k, self.k, sbase)] + self.wrap()

    def copy(self, o):
        return ["s_mov_b32 s%d, s%d" % (self.k, o.k), "s_mov_b32 s%d, s%d" % (self.ctl, o.ctl)]

    def step(self):
        return ["s_bfe_u32 s%d, 0x%x, s%d" % (self.t, self.pat, self.ctl), "s_add_u32 s%d, s%d, s%d" % (self.k, self.k, self.t),
                "s_add_u32 s%d, s%d, %d" % (self.ctl, self.ctl, self.w), "s_and_b32 s%d, s%d, 0x%x" % (self.ctl, self.ctl, (self.w << 16) | 31)] + self.wrap()
```

```python
from mblib import *
def kern(name, nb128, ntr, nb64=0):
    a = Asm()
    begin(a, name)
    srd(a, 8, 90, 91, 64 * MB)
    a("s_mul_i32 s4, s29, 16384")
    a("v_lshlrev_b32 v16, 4, v1")
    a("v_add_u32 v16, s4, v16")
    a("v_lshlrev_b32 v17, 4, v1")
    a("v_lshlrev_b32 v18, 3, v1")
    for i in range(16):
        a("buffer_load_dwordx4 v[%d:%d], v16, s[8:11], 0 offen offset:%d" % (20 + 4 * i, 23 + 4 * i, i * 256))
    for j in range(16):
        a("s_add_u32 m0, s4, %d" % (j * 1024))
        a("s_mov_b32 s21, %d" % (j * 1024))
        a("buffer_load_dwordx4 v16, s[8:11], s21 offen lds")
    a("s_waitcnt vmcnt(0)")
    for i in range(128, 256):
        a("v_mov_b32 v%d, 0" % i)
    a("s_mov_b32 s23, 40")
    a("s_barrier")
    a("s_memrealtime s[92:93]")
    a("s_memtime s[94:95]")
    a("s_waitcnt lgkmcnt(0)")
    pre = a.finish()
    L = ["L%s:" % name]
    R = []
    for j in range(nb128):
        t = 20 + 4 * (j % 8)
        R.append((j / max(nb128, 1), "ds_read_b128 v[%d:%d], v17 offset:%d" % (t, t + 3, (j % 64) * 1024)))
    for j in range(ntr + nb64):
        t = 52 + 2 * (j % 16)
        R.append((j / max(ntr + nb64, 1), "%s v[%d:%d], v18 offset:%d" % ("ds_read_b64_tr_b16" if ntr else "ds_read_b64", t, t + 1, (j % 128) * 512)))
    R.sort()
    k = 0
    for i in range(128):
        acc = 128 + 4 * (i % 32)
        A, B = 20 + 4 * ((i + 4) % 8), 52 + 4 * (((i // 8) + 4) % 8)
        L.append("v_mfma_f32_16x16x32_bf16 v[%d:%d], v[%d:%d], v[%d:%d], v[%d:%d]" % (acc, acc + 3, A, A + 3, B, B + 3, acc, acc + 3))
        while k < len(R) and R[k][0] <= (i + 1) / 128:
            L.append(R[k][1]); k += 1
    L += ["s_sub_u32 s23, s23, 1", "s_cmp_lg_u32 s23, 0", "s_cbranch_scc1 L%s" % name]
    b = Asm()
    end(b, name)
    return (name, pre + "\n".join("  " + x for x in L) + "\n" + b.finish(), 256, 163840, 256, 256)
ks = []
for r in range(3):
    for n, x in (("none", (0, 0)), ("b128x64", (64, 0)), ("trx128", (0, 128)), ("b64x128", (0, 0, 128)), ("mix32_64", (32, 64))):
        ks.append(kern("%s_%d" % (n, r), *x))
write("tr1.s", ks)
```

```python
from lib import *
from gemm4 import *

CB = (32 ** -0.5) * math.log2(math.e)
xv, hv, wv = 224, 232, 233
rd = 16
sX, sW, sMh = 46, 47, 50
sRb, sHp = 32, 33
KS = KSeq(48, 16, 34)
T = 240
A0 = 24
XSL, WBASE = 34 * KB, 102 * KB
XCH = 48 * KB


def accq(mi, b): return ('v', A0 + 32 * b + 4 * mi)
def acck(mi, b): return ('v', A0 + 64 + 32 * b + 4 * mi)
def accv(mi, b): return ('v', A0 + 128 + 32 * b + 4 * mi)
def acch(b): return ('v', A0 + 192 + 4 * b)


def make(rh):
    g = Gemm()
    g.name = "p2r%d" % rh
    RX, RW = Ring(3, XSL, 36), Ring(2, 24 * KB, 41)
    RX.regs, RW.regs = list(range(rd, rd + 4)), [rd + 4, rd + 5]
    g.rings = [RX, RW]
    g.xrd, g.wrd = [(rd, rd + 1), (rd + 2, rd + 3)], [rd + 4, rd + 5]
    g.xfr = [(0, 2048 * i) for i in range(8)] + [(1, 0)]
    g.wfr = [(b, p * 8192) for p in range(3) for b in range(2)]
    mf = []
    for b in range(2):
        mf += [(accq(mi, b), mi, b, 'wx') for mi in range(8)]
    for b in range(2):
        mf += [(acck(mi, b), mi, 2 + b, 'wx') for mi in range(8)]
        if rh == 0:
            mf.append((acch(b), 8, 2 + b, 'wx'))
    for b in range(2):
        mf += [(accv(mi, b), mi, 4 + b, 'xw') for mi in range(8)]
        if rh == 1:
            mf.append((acch(b), 8, 4 + b, 'xw'))
    g.cut = 25 - rh
    g.mf = mf
    g.fx, g.fw = 0, 144
    g.chain, g.par = bool(int(os.environ.get('CH', 7)) & 1), [0]
    g.sCnt = 35
    ld = lambda v, s, o, j: "buffer_load_dwordx4 v%d, s[%d:%d], s%d offen offset:%d lds" % (v, s, s + 3, o, 1024 * j)
    g.dma = [
        (RW, 0, [ld(wv + j, 12, sW, j) for j in range(3)], []),
        (RW, 3072, [ld(wv + 3 + j, 12, sW, j) for j in range(3)], []),
        (RX, ('s', sMh), [ld(hv, 8, sX, 0)], []),
        (RX, 0, [ld(xv + j, 8, sX, j) for j in range(4)], []),
        (RX, 4096, [ld(xv + 4 + j, 8, sX, j) for j in range(4)],
         ["s_mul_i32 s%d, s%d, %d" % (sW, KS.k, 64 * 6144)] + KS.step() + ["s_lshl_b32 s%d, s%d, 7" % (sX, KS.k)]),
    ]
    if rh:
        del g.dma[2]
    return g


def xitems(g, s):
    return [x for grp in g.dma[2:] for x in g.group_items(grp, s * XSL)]


def witems(g, s):
    return [x for grp in g.dma[:2] for x in g.group_items(grp, s * 24 * KB)]


def setup(a, g, sidx):
    RX, RW = g.rings
    a("s_and_b32 s4, s2, 1")
    a("s_lshl_b32 s4, s4, 2")
    a("s_and_b32 s5, %s, 3" % sidx)
    a("s_add_u32 s%d, s4, s5" % sRb)
    a("s_bfe_u32 s4, s2, 0x20001")
    a("s_lshl_b32 s4, s4, 2")
    a("s_lshr_b32 s5, %s, 2" % sidx)
    a("s_add_u32 s%d, s4, s5" % sHp)
    a("s_and_b32 s4, s2, 7")
    a("s_lshl_b32 s4, s4, 1")
    a("s_add_u32 s5, s%d, s%d" % (sRb, sHp))
    for x in KS.init("s5", "s4"):
        a(x)
    a("s_lshl_b32 s%d, s%d, 7" % (sX, KS.k))
    a("s_lshl_b32 s%d, s%d, 13" % (RX.sWr, S_WAVE))
    a("s_mul_i32 s%d, s%d, 6144" % (RW.sWr, S_WAVE))
    a("s_add_u32 s%d, s%d, %d" % (RW.sWr, RW.sWr, WBASE))
    a("s_mul_i32 s4, s%d, 7168" % S_WAVE)
    a("s_sub_u32 s%d, %d, s4" % (sMh, 32 * KB))
    lane_setup(a, T)
    a("s_lshl_b32 s4, s%d, 6" % S_WAVE)
    a("s_add_u32 s4, s4, 16")
    a("v_add_u32 v%d, s4, v%d" % (T + 2, T))
    a("v_lshl_add_u32 v%d, v%d, 11, v%d" % (T + 2, T + 2, T + 1))
    for j in range(8):
        a("v_add_u32 v%d, %d, v%d" % (xv + j, 8 * j * 2048 - 1024 * (j & 3), T + 2))
    a("s_lshl_b32 s4, s%d, 14" % S_WAVE)
    a("s_cmp_eq_u32 s%d, 0" % sRb)
    a("s_cselect_b32 s4, 0x40000000, s4")
    a("v_lshl_add_u32 v%d, v%d, 11, v%d" % (T + 2, T, T + 1))
    a("v_add_u32 v%d, s4, v%d" % (hv, T + 2))
    a("v_lshrrev_b32 v%d, 2, v%d" % (T + 2, T))
    a("v_and_b32 v%d, 3, v%d" % (T + 3, T))
    a("v_lshl_add_u32 v%d, v%d, 3, v%d" % (T + 2, T + 2, T + 3))
    a("v_mul_u32_u24 v%d, 6144, v%d" % (T + 2, T + 2))
    a("v_add_u32 v%d, v%d, v%d" % (T + 2, T + 2, T + 1))
    a("s_lshl_b32 s4, s%d, 7" % sHp)
    a("v_add_u32 v%d, s4, v%d" % (T + 2, T + 2))
    a("s_mul_i32 s6, s%d, 6" % S_WAVE)
    for j in range(6):
        a("s_add_u32 s7, s6, %d" % j)
        a("s_bfe_u32 s4, s7, 0x10002")
        a("s_lshl_b32 s4, s4, 5")
        a("s_and_b32 s5, s7, 1")
        a("s_lshl_b32 s5, s5, 4")
        a("s_add_u32 s4, s4, s5")
        a("s_bfe_u32 s5, s7, 0x10001")
        a("s_lshl_b32 s5, s5, 2")
        a("s_add_u32 s4, s4, s5")
        a("s_mul_i32 s4, s4, 6144")
        a("s_lshr_b32 s5, s7, 3")
        a("s_lshl_b32 s5, s5, 11")
        a("s_add_u32 s4, s4, s5")
        a("s_add_u32 s4, s4, %d" % (2048 - 1024 * (j % 3)))
        a("v_add_u32 v%d, s4, v%d" % (wv + j, T + 2))
    a("s_waitcnt lgkmcnt(0)")
    a("s_lshl_b32 s10, s%d, 19" % sRb)
    a("s_add_u32 s8, s%d, s10" % P_BX)
    a("s_addc_u32 s9, s%d, 0" % (P_BX + 1))
    a("s_sub_u32 s8, s8, %d" % (16 * 2048))
    a("s_subb_u32 s9, s9, 0")
    a("s_mov_b32 s10, %d" % (272 * 2048))
    a("s_mov_b32 s11, 0x00020000")
    a("s_sub_u32 s12, s%d, 2048" % P_WQKV)
    a("s_subb_u32 s13, s%d, 0" % (P_WQKV + 1))
    a("s_mov_b32 s14, %d" % (1024 * 6144 + 2048))
    a("s_mov_b32 s15, 0x00020000")


def read_bases(a):
    a("s_lshr_b32 s4, s%d, 1" % S_WAVE)
    a("s_lshl_b32 s4, s4, 14")
    xread_base(a, rd, rd + 1, T, "s4")
    xread_base(a, rd + 2, rd + 3, T, "%d" % (32 * KB))
    wread_base(a, [rd + 4, rd + 5], [0, 1], T, "%d" % WBASE)
    a("s_and_b32 s4, s%d, 1" % S_WAVE)
    a("s_lshl_b32 s4, s4, 6")
    a("v_xor_b32 v%d, s4, v%d" % (rd + 4, rd + 4))
    a("v_xor_b32 v%d, s4, v%d" % (rd + 5, rd + 5))


QP, KPV, KP, VP, S0 = 24, 76, 88, (56, 120), 152
MP, MC, MP0 = 240, 244, 248
vXw, vXr = 252, 253


def pre(a):
    t = 252
    a("v_and_b32 v%d, 15, v1" % (t + 1))
    a("v_lshrrev_b32 v%d, 4, v1" % (t + 2))
    a("v_lshlrev_b32 v%d, 2, v%d" % (t + 2, t + 2))
    a("v_sub_u32 v%d, v%d, v%d" % (t + 1, t + 1, t + 2))
    a("v_mov_b32 v%d, 0xf149f2ca" % (t + 2))
    a("s_lshr_b32 s4, s%d, 1" % S_WAVE)
    a("s_or_b32 s4, s4, s%d" % sRb)
    a("s_cselect_b64 s[6:7], 0, -1")
    for r in range(4):
        a("v_subrev_u32 v%d, %d, v%d" % (t + 3, r, t + 1))
        a("v_and_b32 v%d, 0x80000001, v%d" % (t, t + 3))
        a("v_cmp_ne_u32 vcc, 0, v%d" % t)
        a("v_cndmask_b32 v%d, 0, v%d, vcc" % (MC + r, t + 2))
        a("v_add_u32 v%d, 1, v%d" % (t + 3, t + 3))
        a("v_and_b32 v%d, 0x80000001, v%d" % (t, t + 3))
        a("v_cmp_ne_u32 vcc, 0x80000001, v%d" % t)
        a("v_cndmask_b32 v%d, 0, v%d, vcc" % (MP + r, t + 2))
        a("v_cndmask_b32 v%d, v%d, v%d, s[6:7]" % (MP0 + r, MP + r, t + 2))
    a("s_and_b32 s4, s%d, 1" % S_WAVE)
    a("s_lshl_b32 s4, s4, 12")
    a("s_add_u32 s4, s4, %d" % XCH)
    a("v_add_u32 v%d, s4, v2" % vXw)
    a("s_lshr_b32 s5, s%d, 1" % S_WAVE)
    a("s_lshl_b32 s5, s5, 11")
    a("v_add_u32 v%d, s5, v%d" % (vXr, vXw))
    srd(a, 16, P_WS, 4 * MB, WS_OB)
    a("s_lshl_b32 s57, s%d, 19" % sRb)
    a("s_lshl_b32 s5, s5, 7")
    a("s_add_u32 s57, s57, s5")
    a("s_lshl_b32 s4, s%d, 14" % sHp)
    a("s_add_u32 s57, s57, s4")
    a("s_and_b32 s4, s%d, 1" % S_WAVE)
    a("s_lshl_b32 s4, s4, 13")
    a("s_add_u32 s57, s57, s4")
    a("s_add_u32 s58, s57, 4096")


def pack(g, rh):
    idx = {m[0]: i for i, m in enumerate(g.mf)}
    cvt = lambda d, s: ["v_cvt_pk_bf16_f32 v%d, v%d, v%d" % (d, s, s + 1), "v_cvt_pk_bf16_f32 v%d, v%d, v%d" % (d + 1, s + 2, s + 3)]
    order, epi = [], []

    def add(blocks, L):
        ids = [idx[b] for b in blocks]
        order.extend(ids)
        epi.append((ids, L))
    for mi in range(8):
        s0, s1 = accq(mi, 0)[1], accq(mi, 1)[1]
        add([accq(mi, 0), accq(mi, 1)], ["v_pk_mul_f32 v[%d:%d], v[%d:%d], s[6:7]" % (x, x + 1, x, x + 1) for x in (s0, s0 + 2, s1, s1 + 2)] +
            cvt(s0, s0) + cvt(s0 + 2, s1))
    h = acch(0)[1]
    if rh == 0:
        add([acch(0), acch(1)], cvt(h, h) + cvt(h + 2, h + 4) + ["ds_write_b128 v%d, %s" % (vXw, v4(h))])
    for mi in range(8):
        s0, s1 = acck(mi, 0)[1], acck(mi, 1)[1]
        add([acck(mi, 0), acck(mi, 1)], cvt(s0, s0) + cvt(s0 + 2, s1) +
            (["ds_write_b128 v%d, %s offset:2048" % (vXw, v4(s0))] if rh == 0 and mi == 7 else []))
    if rh == 1:
        add([acch(0), acch(1)], cvt(h, h) + cvt(h + 2, h + 4) + ["ds_write_b128 v%d, %s offset:1024" % (vXw, v4(h))])
    for mi in range(7, -1, -1):
        L = cvt(VP[0] + 2 * (mi + 1), accv(mi, 0)[1]) + cvt(VP[1] + 2 * (mi + 1), accv(mi, 1)[1])
        if rh == 0 and mi == 7:
            L += ["ds_write_b64 v%d, v[%d:%d] offset:%d" % (vXw, VP[b] + 16, VP[b] + 17, 3072 + 8 * b) for b in range(2)]
        add([accv(mi, 0), accv(mi, 1)], L)
    return order, epi


def attend(c):
    from attn4 import rowmax, xmax, aOne
    c("ds_read_b128 %s, v%d" % (v4(KPV), vXr))
    for b in range(2):
        c("ds_read_b64 v[%d:%d], v%d offset:%d" % (VP[b], VP[b] + 1, vXr, 1024 + 8 * b))
    od = list(range(7, -1, -1))
    for mi in od:
        if mi == 0:
            c("s_waitcnt lgkmcnt(0)")
        c(mfma(('v', S0 + 8 * mi), ('v', KP + 4 * (mi - 1) if mi else KPV), ('v', QP + 4 * mi), ('v', MP if mi else MP0)))
        c(mfma(('v', S0 + 8 * mi + 4), ('v', KP + 4 * mi), ('v', QP + 4 * mi), ('v', MC)))
    M = 224
    for mi in od:
        rowmax(c, S0 + 8 * mi, M + 2 * mi, M + 2 * mi + 1)
    xmax(c, [(M + 2 * mi, M + 2 * mi + 1) for mi in od])
    for mi in od:
        for e in range(8):
            c("v_sub_f32 v%d, v%d, v%d" % (S0 + 8 * mi + e, S0 + 8 * mi + e, M + 2 * mi))
        for e in range(8):
            c("v_exp_f32 v%d, v%d" % (S0 + 8 * mi + e, S0 + 8 * mi + e))
        if mi < 7:
            fin(c, mi + 1)
    fin(c, 0)
    for mi in od:
        c("v_rcp_f32 v%d, v%d" % (QP + 4 * mi, QP + 4 * mi))
    for mi in od:
        c("v_mov_b32 v%d, v%d" % (QP + 4 * mi + 1, QP + 4 * mi))
    for mi in od:
        o = S0 + 8 * mi
        for e in range(0, 8, 2):
            c("v_pk_mul_f32 v[%d:%d], v[%d:%d], v[%d:%d]" % (o + e, o + e + 1, o + e, o + e + 1, QP + 4 * mi, QP + 4 * mi + 1))
        for e in range(4):
            c("v_cvt_pk_bf16_f32 v%d, v%d, v%d" % (o + e, o + 2 * e, o + 2 * e + 1))
        c("buffer_store_dwordx4 %s, v2, s[16:19], s%d offen offset:%d%s" % (v4(o), 57 + (mi >> 2), (mi & 3) * 1024, SC1))


def fin(c, mi):
    from attn4 import aOne
    for e in range(4):
        c("v_cvt_pk_bf16_f32 v%d, v%d, v%d" % (KP + 4 * mi + e, S0 + 8 * mi + 2 * e, S0 + 8 * mi + 2 * e + 1))
    c(mfma(('v', QP + 4 * mi), ('a', aOne), ('v', KP + 4 * mi), "0"))
    for b in range(2):
        c(mfma(('v', S0 + 8 * mi + 4 * b), ('v', VP[b] + 2 * mi), ('v', KP + 4 * mi), "0"))
```

```python
from lib import *


class Ring:
    def __init__(self, NS, slot, sbase):
        self.NS, self.slot = NS, slot
        self.sWr, self.sRd, self.sRdD, self.sC = sbase, sbase + 1, sbase + 2, sbase + 3
        self.regs = []

    def init(self):
        return ["s_mov_b32 s%d, 0" % self.sRd,
                "s_mov_b32 s%d, %d" % (self.sC, (-(self.NS - 1) * self.slot) & 0xffffffff),
                "s_mov_b32 s%d, %d" % (self.sC + 1, self.slot)]

    def adv(self, wr):
        sc = []
        if wr:
            sc.append("s_add_u32 s%d, s%d, s%d" % (self.sWr, self.sWr, self.sRdD))
        if self.NS == 2:
            sc.append("s_sub_u32 s%d, 0, s%d" % (self.sRdD, self.sRdD))
        else:
            sc += ["s_add_u32 s%d, s%d, 1" % (self.sRd, self.sRd),
                   "s_cmp_eq_u32 s%d, %d\ns_cselect_b32 s%d, 0, s%d\ns_cselect_b32 s%d, s%d, s%d" % (
                       self.sRd, self.NS, self.sRd, self.sRd, self.sRdD, self.sC, self.sC + 1)]
        return sc, ["v_add_u32 v%d, s%d, v%d" % (r, self.sRdD, r) for r in self.regs]


def feed(sg, chain, g=0):
    nd = 0
    while chain:
        x = chain[0]
        if isinstance(x, int):
            if g + x >= sg.n:
                chain[0] = g + x - sg.n
                if chain[0] == 0:
                    chain.pop(0)
                return nd
            g += x
            chain.pop(0)
            continue
        k = 'm' if x.startswith("v_mfma") else kind(x)
        if k in 'dr' and sg.c[g]:
            g += 1
        while g < sg.n and not ((k == 'm' and not sg.end[g]) or (k != 'm' and sg.room(g, k) and not sg.end[g] and (k not in 'dr' or not sg.c[g]))):
            g += 1
        if g >= sg.n - 1:
            return nd
        chain.pop(0)
        if k == 'm':
            sg.end[g].append(x)
            g += 1
        else:
            sg.put(g, x)
            nd += k == 'd'
    return nd


def place_dma(sg, items, g0, g1):
    nd = sum(1 for x in items if kind(x) == 'd')
    k = 0
    last = g0
    for x in items:
        if kind(x) == 'd':
            want = g0 + (k * (g1 - g0 + 1)) // nd
            k += 1
            if sg.end[last]:
                sg.end[last].append(x)
                continue
            g = sg.place(x, max(want, last), lo=last)
            last = g
        else:
            g = min(last + 1, sg.n - 1) if sg.d[last] else last
            if sg.d[g] or sg.end[g]:
                sg.end[g].append(x)
            else:
                g = sg.place(x, g, lo=g)
                if sg.d[g]:
                    raise RuntimeError("scalar placed before an earlier load")
            last = g
            if "m0" in x and not sg.end[g]:
                last = min(g + 1, sg.n - 1)
                if last == g:
                    sg.end[g].append("s_nop 0")
    return last


class Gemm:
    xlin = False
    woff = 0
    pf = []

    chain = False
    par = None
    fresh = False
    cut = None

    def fxr(self, h, i, p=0):
        return ('a', self.fx + 4 * ((2 * p + h) * len(self.xfr) + i))

    def fwr(self, h, i):
        return ('a', self.fw + 4 * (h * len(self.wfr) + i))

    def part(self, h):
        n = self.cut or len(self.mf) // 2
        return range(n, len(self.mf)) if h else range(n)

    def mfmas(self, h, first=False):
        L = []
        if self.chain:
            for k in self.part(h):
                acc, xi, wi, o = self.mf[k]
                for e in range(2):
                    x, w, c = self.fxr(e, xi, self.par[0]), self.fwr(e, wi), "0" if first and not e else None
                    L.append(mfma(acc, w, x, c) if o == 'wx' else mfma(acc, x, w, c))
            return L
        for acc, xi, wi, o in self.mf:
            x, w = self.fxr(h, xi), self.fwr(h, wi)
            L.append(mfma(acc, w, x, "0" if first else None) if o == 'wx' else mfma(acc, x, w, "0" if first else None))
        return L

    def xread(self, h, xi, p):
        st, imm = self.xfr[xi]
        if self.xlin:
            return "ds_read_b128 %s, v%d offset:%d" % (r4(self.fxr(h, xi, p)), self.xrd[st][0], imm + h * self.xhs)
        return "ds_read_b128 %s, v%d offset:%d" % (r4(self.fxr(h, xi, p)), self.xrd[st][h], imm)

    def wread(self, h, wi):
        nb, imm = self.wfr[wi]
        b = self.fwr(h, wi)[1]
        return ["ds_read_b64_tr_b16 a[%d:%d], v%d offset:%d" % (b + 2 * j, b + 2 * j + 1, self.wrd[nb], self.woff + imm + h * 4096 + j * 2048)
                for j in range(2)]

    def reads(self, h):
        L = []
        seen = set()
        if self.chain:
            if h == 0:
                self.par[0] ^= 1
            wa = {self.mf[k][2] for k in self.part(0)}
            assert not wa & {self.mf[k][2] for k in self.part(1)}
            for k in (range(len(self.mf)) if h == 0 else self.part(1)):
                acc, xi, wi, o = self.mf[k]
                if h == 0 and ('x', xi) not in seen:
                    seen.add(('x', xi))
                    L += [self.xread(e, xi, self.par[0]) for e in range(2)]
                if (wi in wa) == (h == 0) and ('w', wi) not in seen:
                    seen.add(('w', wi))
                    L += self.wread(0, wi) + self.wread(1, wi)
            return L
        for acc, xi, wi, o in self.mf:
            if ('x', xi) not in seen:
                seen.add(('x', xi))
                L.append(self.xread(h, xi, 0))
            if ('w', wi) not in seen:
                seen.add(('w', wi))
                L += self.wread(h, wi)
        return L

    def group_items(self, grp, off=0):
        ring, m0, ins, post = grp
        if isinstance(m0, tuple):
            L = ["s_add_u32 m0, s%d, s%d" % (ring.sWr, m0[1]) + ("\ns_add_u32 m0, m0, %d" % off if off else "")]
        else:
            m0 += off
            L = ["s_add_u32 m0, s%d, %d" % (ring.sWr, m0) if m0 else "s_mov_b32 m0, s%d" % ring.sWr]
        return L + ins + post

    def dma_items(self):
        return [x for g in self.dma for x in self.group_items(g)]

    def issue_seq(self, it):
        return [(g, it - 1 + g[0].NS) for g in self.dma if it - 1 + g[0].NS >= 0]

    def prologue_items(self):
        L = []
        for it in range(-(max(r.NS for r in self.rings) - 1), 1):
            for g, s in self.issue_seq(it):
                L += self.group_items(g, s * g[0].slot)
        return L

    def nprologue(self):
        return sum(1 for x in self.prologue_items() if kind(x) == 'd')

    def vm(self, s, nst):
        q = []
        for it in range(-8, max(s, 1)):
            for g, st in self.issue_seq(it):
                if st < nst:
                    q += [st] * len(g[2])
        idx = max(i for i, st in enumerate(q) if st <= s)
        return len(q) - 1 - idx

    def half(self, a, h, first=False, rd=True, dma=None, adv=False, extra=None, wr=True, rdg=None, dense=False):
        if self.chain:
            if h == 0:
                self.fresh = first
            else:
                first, self.fresh = self.fresh, False
        sg = Seg(self.mfmas(h, first))
        n = sg.n
        lastd = 0
        nadv = sum(len(r.regs) for r in self.rings)
        late = []
        if dma:
            dma = list(dma)
            while dma and kind(dma[-1]) == 's' and "lds" not in dma[-1]:
                late.insert(0, dma.pop())
            if dma:
                lastd = place_dma(sg, dma, 0, n - 2 - ((nadv // 2 + 3) if adv and n > 8 else 0))
        lastr = 0
        if rd and 'noreads' not in GFL:
            R = (rdg or self).reads(h ^ 1)
            g1 = max(len(R) // 2, n - int(os.environ.get('RDE', 11)))
            if dense:
                g1 = len(R) // 2
            lastr = max(sg.stream(R, 0, g1))
        vas, advs = [], []
        if adv:
            for r in self.rings:
                sc, va = r.adv(wr)
                advs += sc
                vas += va
        lim = n - 1 - ((nadv + 1) // 2 if adv else 0)

        def scal(L, g):
            for k, x in enumerate(L):
                need = 4 * x.count("\n")
                q = g
                while q <= lim - (len(L) - k - 1) // 3 and (sg.d[q] or sg.sc[q] or sg.end[q] or sg.used[q] + need > 8):
                    q += 1
                if q <= lim - (len(L) - k - 1) // 3:
                    g = sg.put(q, x)
                elif sg.d[g] or sg.end[g]:
                    sg.end[g].append(x)
                else:
                    g = sg.place(x, g, lo=g)
            return g
        lastm = max([g for g in range(n) if any("m0" in x for x in sg.sc[g] + sg.end[g])], default=-1)
        ga = scal(advs, min(n - 1, lastm + 1))
        scal(late, min(n - 1, lastd + 1) if dma else 0)
        g = max(lastr + 1, ga + 1)
        for x in vas:
            if g < n:
                sg.place(x, g, lo=g)
            else:
                sg.end[n - 1].append(x)
        if extra:
            extra(sg)
        for x in sg.lines():
            a(x)

    def split(self, it):
        n = sum(1 for x in it if kind(x) == 'd')
        cut = cnt = 0
        for i, x in enumerate(it):
            if kind(x) == 'd':
                cnt += 1
                if cnt == (n + 1) // 2:
                    cut = i + 1
        while cut < len(it) and kind(it[cut]) == 's' and "m0" not in it[cut]:
            cut += 1
        return it[:cut], it[cut:]

    def init(self, a, start=None):
        for i, r in enumerate(self.rings):
            for x in r.init():
                a(x)
            if start and start[i]:
                a("s_mov_b32 s%d, %d" % (r.sRd, start[i]))
            if r.NS == 2:
                a("s_mov_b32 s%d, s%d" % (r.sRdD, r.sC))

    def bar(self, a, N):
        a("s_waitcnt vmcnt(%d) lgkmcnt(0)" % min(63, N))
        a("s_barrier")

    def pro(self, a, N, dma=None):
        a("s_waitcnt vmcnt(%d)" % min(63, N))
        a("s_barrier")
        for x in self.reads(0):
            a(x)
        a("s_waitcnt lgkmcnt(0)")
        self.half(a, 0, first=True, adv=True, dma=dma, wr=False)

    def pro2(self, a, nlate, dma, gm):
        a("s_waitcnt vmcnt(%d)" % nlate)
        a("s_barrier")
        for x in self.reads(0):
            a(x)
        a("s_waitcnt lgkmcnt(0)")

        def late(sg):
            R = self.reads(1)
            sg.stream([x for x in R if "b128" in x], 0, gm - 1)
            nd = sum(len(sg.d[g]) for g in range(gm + 1))
            sg.end[gm].append("s_waitcnt vmcnt(%d)\ns_barrier" % nd)
            g = max(sg.stream([x for x in R if "b128" not in x], gm + 1, sg.n - 14)) + 1
            for r in self.rings:
                sc, va = r.adv(False)
                for x in sc:
                    sg.end[g].append(x)
                for x in va:
                    sg.place(x, g + 1, lo=g + 1)
        self.half(a, 0, first=True, rd=False, dma=dma, extra=late)

    def iter(self, a, N, items=None, wr=True, adv=True, after_bar=None, extra=None):
        if N is not None:
            self.bar(a, N)
        if after_bar:
            after_bar()
        d0, d1 = self.split(items or [])
        self.half(a, 1, dma=d0)
        a("s_waitcnt lgkmcnt(0)")
        self.half(a, 0, dma=d1, adv=adv, wr=wr, extra=extra)

    def loop(self, a, N):
        self.bar(a, N)
        a(".p2align 6")
        a.label("L%s_loop" % self.name)

        def cnt_(sg):
            g = sg.n - 3
            assert not any(sg.d[k] or sg.r[k] or any(kind(x) in 'dr' for x in sg.end[k]) for k in range(g, sg.n))
            sg.sc[g].insert(0, "s_waitcnt vmcnt(%d) lgkmcnt(0)\ns_barrier" % N)
            sg.place("s_sub_u32 s%d, s%d, 1" % (self.sCnt, self.sCnt), sg.n - 2, lo=sg.n - 2)
            sg.end[sg.n - 1].append("s_cmp_lg_u32 s%d, 0" % self.sCnt)
        if self.chain:
            self.iter(a, None, self.pf + self.dma_items())
            self.bar(a, N)
        self.iter(a, None, self.pf + self.dma_items(), extra=cnt_)
        a("s_cbranch_scc1 L%s_loop" % self.name)

    def bm(self, a, order, g0, gend=0, N=None, first=False, dma=None, nxt=None, epi=(), st1=(), st2=(), bar=True, mid=None, carry=(), defer=False):
        m0, m1 = self.mfmas(0, first), self.mfmas(1)
        a("s_waitcnt lgkmcnt(0)")
        sg = Seg([m0[i] for i in order[:g0]], False)
        g = max(sg.stream(self.reads(1), 0, max(g0 - 8, len(self.reads(1)) // 2) if not carry else len(self.reads(1)) // 2))
        carry = list(carry)
        feed(sg, carry, 2)
        if st1:
            place_dma(sg, [x for L, b in st1 for x in L], 0, g0 - 2)
        if nxt:
            for r in self.rings:
                sc, va = r.adv(True)
                for x in sc:
                    sg.end[g0 - 1].append(x)
                for x in va:
                    sg.end[g0 - 1].append(x)
        for x in sg.lines():
            a(x)
        a("s_waitcnt %slgkmcnt(0)" % ("" if N is None else "vmcnt(%d) " % N))
        if bar:
            a("s_barrier")
        if mid:
            mid()
        mf, done, start = [], {}, {}
        for i in order[:g0]:
            done[i] = len(mf)
            start[i] = -1
            mf.append(m1[i])
        for k in range(g0, len(order) - gend, 2):
            i, j = order[k], order[k + 1]
            start[i], start[j] = len(mf), len(mf) + 1
            mf += [m0[i], m0[j], m1[i], m1[j]]
            done[i], done[j] = len(mf) - 2, len(mf) - 1
        for h, m in enumerate((m0, m1)):
            for i in order[len(order) - gend:] if gend else []:
                (done if h else start)[i] = len(mf)
                mf.append(m[i])
        sg = Seg(mf, False)
        n = sg.n
        if nxt:
            sg.stream(nxt.reads(0), n - gend, n - 7)
        feed(sg, carry)
        assert not carry
        wrote = {x.split()[1][:-1]: g for g in range(n) for x in sg.c[g]}
        for b in order[g0:]:
            regs = ["v%d" % (self.mf[b][0][1] + e) for e in range(4)] if self.mf[b][0][0] == 'v' else []
            assert all(g < start[b] for g in range(n) for x in sg.c[g] if set(regs) & set(x.replace(",", " ").split()[1:]))
        for k, (L, b) in enumerate(st2):
            g = min(1 + k * (n - gend - 4) // len(st2), start[b] - 1)
            while sg.d[g] or sg.sc[g] or sg.used[g] > 4:
                g += 1
            r = int(L[-1].split("[")[1].split(":")[0])
            assert g < start[b] and all(wrote.get("v%d" % (r + e), -1) < g for e in range(4)), (k, g)
            for x in L:
                sg.put(g, x)
        if dma:
            place_dma(sg, dma, 0, n - 2 - gend)
        g = 0
        rest = []
        for need, L in epi:
            lo = max(done[i] for i in need) + 4
            for x in L:
                g = max(g, lo)
                k = kind(x)
                if k == 's' and g + 1 < n and not rest:
                    g += 1
                    while g < n and (sg.d[g] or sg.end[g] or sg.sc[g]):
                        g += 1
                if k == 'r' and g < n and sg.c[g]:
                    g += 1
                while g < n and not (sg.room(g, k) and (k not in 'dr' or not sg.c[g])):
                    g += 1
                if g >= n or rest:
                    rest.append(x)
                else:
                    sg.put(g, x)
                    if k == 'c':
                        lo = g
        for x in sg.lines() + ([] if defer else rest):
            a(x)
        return rest

    def last2(self, a, epi, dma=None, bar=True, mid=None):
        epi = [(need, list(L)) for need, L in epi]
        done = {}
        for h in range(2):
            a("s_waitcnt lgkmcnt(0)")
            if h and bar:
                a("s_barrier")
            if h and mid:
                mid()
            sg = Seg(self.mfmas(h), False)
            for k in done:
                done[k] = -9
            for e, k in enumerate(self.part(h)):
                done[k] = 2 * e + 1
            if h == 0:
                R = self.reads(1)
                sg.stream(R, 0, len(R) // 2)
            elif dma:
                place_dma(sg, dma, 0, sg.n - 2)
            g = 0
            while epi and all(i in done for i in epi[0][0]):
                need, L = epi[0]
                g = max(g, max(done[i] for i in need) + 5)
                while L:
                    k = 'm' if L[0].startswith("v_mfma") else kind(L[0])
                    if k == 'r' and h == 0:
                        break
                    if k in 'dr' and g < sg.n and sg.c[g]:
                        g += 1
                    while g < sg.n and not (sg.room(g, 'c' if k == 'm' else k) and (k not in 'dr' or not sg.c[g])):
                        g += 1
                    if g >= sg.n:
                        break
                    sg.put(g, L.pop(0))
                if L:
                    break
                epi.pop(0)
            for x in sg.lines():
                a(x)
        for need, L in epi:
            for x in L:
                a(x)

    def tail(self, a, items=None, bar=True, N=None, rd=False):
        a("s_waitcnt %slgkmcnt(0)" % ("" if N is None else "vmcnt(%d) " % N))
        if bar:
            a("s_barrier")
        self.half(a, 1, rd=rd, dma=items)


GFL = set(os.environ.get("GFLAGS", "").split(","))


def lane_setup(a, T):
    a("v_lshrrev_b32 v%d, 3, v1" % T)
    a("v_and_b32 v%d, 6, v%d" % (T + 1, T))
    a("v_and_b32 v%d, 7, v1" % (T + 2))
    a("v_xor_b32 v%d, v%d, v%d" % (T + 1, T + 1, T + 2))
    a("v_lshlrev_b32 v%d, 4, v%d" % (T + 1, T + 1))


def xread_base(a, d0, d1, T, sbase):
    a("v_and_b32 v%d, 15, v1" % T)
    a("v_lshlrev_b32 v%d, 7, v%d" % (T, T))
    a("v_lshrrev_b32 v%d, 4, v1" % (T + 1))
    a("v_and_b32 v%d, 6, v1" % (T + 2))
    a("v_xor_b32 v%d, v%d, v%d" % (T + 1, T + 1, T + 2))
    a("v_lshl_add_u32 v%d, v%d, 4, v%d" % (T, T + 1, T))
    a("v_add_u32 v%d, %s, v%d" % (d0, sbase, T))
    a("v_xor_b32 v%d, 64, v%d" % (d1, d0))


def wread_base(a, regs, nbs, T, sbase):
    a("v_lshrrev_b32 v%d, 2, v1" % T)
    a("v_and_b32 v%d, 6, v%d" % (T + 1, T))
    a("v_lshlrev_b32 v%d, 7, v%d" % (T, T))
    a("v_and_b32 v%d, 1, v1" % (T + 2))
    a("v_lshl_add_u32 v%d, v%d, 3, v%d" % (T, T + 2, T))
    a("v_add_u32 v%d, %s, v%d" % (T, sbase, T))
    a("v_bfe_u32 v%d, v1, 1, 1" % (T + 2))
    a("v_xor_b32 v%d, v%d, v%d" % (T + 1, T + 1, T + 2))
    for r, nb in zip(regs, nbs):
        a("v_xor_b32 v%d, %d, v%d" % (T + 2, 2 * nb, T + 1))
        a("v_lshl_add_u32 v%d, v%d, 4, v%d" % (r, T + 2, T))
```

```python
from lib import *
from gemm4 import *
import proj4, bfront, attn4, oproj, qproj

MFL = set(os.environ.get("MFLAGS", "").split(","))


def gen(stamp=False):
    a = Asm()
    st = Stamps(stamp, 0)
    a("s_cmp_ge_u32 s2, 256")
    a("s_cbranch_scc1 Lend")
    a("s_load_dwordx16 s[64:79], s[0:1], 0")
    a("s_load_dwordx8 s[80:87], s[0:1], 64")
    a("v_lshrrev_b32 v2, 6, v0")
    a("v_and_b32 v1, 63, v0")
    a("v_readfirstlane_b32 s%d, v2" % S_WAVE)
    a("v_lshlrev_b32 v2, 4, v1")
    if 'ipf' in MFL:
        a("s_getpc_b64 s[6:7]")
        a("s_lshr_b32 s4, s2, 3")
        a("s_lshl_b32 s4, s4, 2")
        a("s_add_u32 s4, s4, s%d" % S_WAVE)
        a("s_min_u32 s4, s4, CODE_KB")
        a("s_lshl_b32 s4, s4, 10")
        a("v_add_u32 v3, s4, v2")
        a("global_load_dwordx4 v[4:7], v3, s[6:7]")
    st(a)
    gk, gv = proj4.make('wx'), proj4.make('xw')
    b0, b1 = bfront.make(0), bfront.make(1)
    g3 = qproj.make()
    if 'nost' in MFL:
        t0 = proj4.trickle
        proj4.trickle = lambda k, a, b: [x.replace("s%d," % proj4.sSt, "0x70000000,").replace("s_add_u32 s60, 0x70000000, ", "s_mov_b32 s60, 0x70000000 ; ") for x in t0(k, a, b)]
    NK = [int(x) for x in os.environ.get("NK", "12").split(",")]
    NW = int(os.environ.get("NW", 8))
    TR3 = [int(x) for x in os.environ.get("TR3", "8,0,8,0,8").split(",")]
    assert NW >= 8 and NW + sum(TR3) == 32
    a("s_bfe_u32 s59, s2, 0x30003")
    a("s_lshr_b32 s4, s2, 7")
    a("s_lshl_b32 s4, s4, 3")
    a("s_add_u32 s59, s59, s4")
    a("s_lshr_b32 s4, s2, 3")
    a("s_xor_b32 s4, s4, s2")
    a("s_bitcmp1_b32 s4, 3")
    a("s_cbranch_scc1 Lp2")

    def common(c):
        attn4.ids(c)
        oproj.lanes(c, 24)
        qproj.lanes(c, 24)
    proj4.setup(a, gk, "s59")
    srd(a, S_FLG, P_WS, 0x40000, WS_FLG)
    tag_make(a, 0)
    if 'st0' in MFL:
        st(a)
    GM = int(os.environ.get("GM", 0))
    for x in proj4.xitems(gk, 0) + proj4.witems(gk, 0):
        a(x)
    if 'st0' in MFL:
        st(a)
    c = Col()
    proj4.read_bases(c, gk)
    common(c)
    proj4.out_base(c)
    gk.init(c, [proj4.XS0, 0])
    SU, W0 = os.environ.get("SU", ""), float(os.environ.get("W0", 0.6))
    pre1 = (proj4.xitems(gk, 1) if 'x' in SU else []) + (proj4.witems(gk, 1) if 'w' in SU else [])
    post1 = ([] if 'x' in SU else proj4.xitems(gk, 1)) + ([] if 'w' in SU else proj4.witems(gk, 1))
    for x in weave_lines(c, pre1, W0, 1.0) if pre1 else c:
        a(x)
    tag_make(a, 1, 16 + 8 * len(SU))
    st(a)
    k0 = st.k
    if 'st0' in MFL:
        a("s_waitcnt vmcnt(%d)" % (8 * len(SU)))
        st(a)
    if GM:
        gk.pro2(a, 4, post1 + proj4.xitems(gk, 2), GM)
    else:
        gk.pro(a, 8 * len(SU), dma=post1 + proj4.xitems(gk, 2))
    if 'st0' in MFL:
        st(a)
        a("s_waitcnt vmcnt(8)")
        st(a)
        st.flush(a)
        a("s_endpgm")
    a("s_mov_b32 s%d, 6" % gk.sCnt)
    gk.loop(a, 8)
    gk.half(a, 1, dma=gk.dma_items())
    if 'st2' in MFL:
        st(a)
    order, epi = proj4.pack('k', NK[0])
    rest = gk.bm(a, order, 18, 18, N=8, dma=gk.dma_items(), nxt=gv, epi=epi, defer=True)
    assert all(kind(x) == 'c' for x in rest), rest
    if 'st2' in MFL:
        st(a)
    order, held = proj4.v_order(NK[0])
    sts = [(proj4.trickle('k', k, k + 1), held[proj4.ORDER['k'][k]]) for k in range(NK[0], 32)]
    gv.bm(a, order, 20, 18, N=8, first=True, dma=gv.dma_items(), nxt=gv, st2=sts, carry=rest)
    a("s_add_u32 s%d, s%d, 0x4000" % (proj4.sSt, proj4.sSt))
    a("s_waitcnt lgkmcnt(0)")
    gv.half(a, 0, adv=True)
    st(a)
    a("s_mov_b32 s%d, 4" % gv.sCnt)
    gv.loop(a, 8)
    gv.iter(a, None, proj4.witems(gv, 0) + qproj.witems(g3, 0) + qproj.witems(g3, 1), after_bar=lambda: qproj.setup(a, g3))
    gv.bar(a, 8)
    gv.half(a, 1, dma=qproj.xitems(g3, 0))
    order, epi = proj4.pack('v', NW)
    gv.bm(a, order, 18, epi=epi, dma=qproj.xitems(g3, 1) + qproj.witems(g3, 2) + qproj.xitems(g3, 2), mid=lambda: tag_load(a, 22))
    qk = VmQ()
    for t, n in (('w0', 4), ('w1', 4), ('x0', 8), ('t', 1), ('st', NW), ('x1', 8), ('w2', 4), ('x2', 8)):
        qk.push(t, n)
    a("s_lshl_b32 s34, s%d, 4" % proj4.sN0)
    a("s_add_u32 s34, s34, s%d" % proj4.sM0)
    a("s_lshl_b32 s34, s34, 7")
    a("s_branch Lp3")
    a.label("Lp2")
    if 'st0' in MFL and 'nob' in MFL:
        a("s_endpgm")
    st.k = k0 - 1
    bfront.setup(a, b0, "s59")
    srd(a, S_FLG, P_WS, 0x40000, WS_FLG)
    a("s_cmp_ge_u32 s%d, 2" % S_WAVE)
    a("s_cbranch_scc1 Lp2_r1")
    for rh, g in enumerate((b0, b1)):
        if rh:
            a.label("Lp2_r1")
            st.k = k0 - 1
        nx = 8 if rh else 9
        PFB, PF0 = int(os.environ.get("PFB", 4)), os.environ.get("PF0", "")
        a("s_and_b32 s4, s2, 7")
        a("s_lshl_b32 s4, s4, 4")
        a("s_add_u32 s4, s4, s59")
        a("s_lshl_b32 s4, s4, 2")
        a("s_add_u32 s4, s4, s%d" % S_WAVE)
        a("s_lshl_b32 s51, s4, 13")

        def pf0():
            a("s_lshr_b32 s56, s51, 1")
            srd(a, 52, P_CKV, 2 * MB)
            for i in range(4):
                a("buffer_load_dwordx4 a[192:195], v2, s[52:55], s56 offen offset:%d ; @dummy" % (1024 * i))
            a("s_add_u32 s56, s51, 4096")
            srd(a, 52, P_WUK, 4 * MB)
            for i in range(8):
                a("buffer_load_dwordx4 a[192:195], v2, s[52:55], %s offen offset:%d ; @dummy" % ("s56" if i >= 4 else "s51", 1024 * (i & 3)))
        if PF0 == "a":
            pf0()
        for x in bfront.xitems(g, 0) + bfront.witems(g, 0):
            a(x)
        if PF0 == "b":
            pf0()
        c = Col()
        bfront.read_bases(c)
        common(c)
        bfront.pre(c)
        g.init(c)
        if PFB:
            srd(c, 52, P_WUV, 4 * MB)
            c("s_lshl_b32 s1, s51, 1")
            c("s_mov_b32 s56, s51")
            c("s_mov_b32 s0, 0")
            pf1 = ["buffer_load_dwordx4 a[192:195], v2, s[52:55], s51 offen offset:%d ; @dummy" % (1024 * i) for i in range(PFB)]
            assert PFB == 4
            g.pf = pf1 + ["s_add_u32 s51, s51, 4096", "s_add_u32 s0, s0, 1",
                          "s_cmp_eq_u32 s0, 2\ns_cselect_b32 s52, s%d, s52\ns_cselect_b32 s53, s%d, s53\ns_cselect_b32 s51, s1, s51\n"
                          "s_cselect_b32 s54, %d, s54" % (P_WQ, P_WQ + 1, (8 * MB) if os.environ.get("PFQ", "0") == "1" else 0),
                          "s_cmp_eq_u32 s0, 6\ns_cselect_b32 s52, s%d, s52\ns_cselect_b32 s53, s%d, s53\ns_cselect_b32 s51, s56, s51\n"
                          "s_cselect_b32 s54, %d, s54" % (P_AX, P_AX + 1, (4 * MB) if os.environ.get("PFQ", "0") == "1" else 0),
                          "s_cmp_eq_u32 s0, 8\ns_cselect_b32 s54, 0, s54"]
        pre1 = (bfront.xitems(g, 1) if 'x' in SU else []) + (bfront.witems(g, 1) if 'w' in SU else [])
        post1 = ([] if 'x' in SU else bfront.xitems(g, 1)) + ([] if 'w' in SU else bfront.witems(g, 1))
        for x in weave_lines(c, pre1, W0, 1.0) if pre1 else c:
            a(x)
        st(a)
        g.pro(a, (nx if 'x' in SU else 0) + (6 if 'w' in SU else 0), dma=post1 + bfront.xitems(g, 2))
        if 'st0' in MFL:
            a("s_endpgm")
        if g.chain:
            g.iter(a, nx, g.pf + g.dma_items())
        a("s_mov_b32 s%d, %d" % (g.sCnt, 6 if g.chain else 13))
        g.loop(a, nx)
        if 'st2' in MFL:
            st(a)
            st(a)
        g.iter(a, None, bfront.witems(g, 0), after_bar=lambda: qproj.setup(a, g3))
        g.bar(a, 0)
        a("s_mov_b32 s6, 0x%08x" % f32bits(bfront.CB))
        a("s_mov_b32 s7, s6")
        g.half(a, 1)
        order, epi = bfront.pack(g, rh)
        nd = qproj.witems(g3, 0) + qproj.witems(g3, 1) + qproj.xitems(g3, 0)
        if g.chain:
            g.last2(a, epi, dma=nd, mid=lambda: tag_load(a, 22))
        else:
            g.bm(a, order, 16, epi=epi, dma=nd, mid=lambda: tag_load(a, 22))
        a("s_waitcnt lgkmcnt(0)")
        a("s_barrier")
        st(a)
        if not rh:
            a("s_branch Lp2_at")
    a.label("Lp2_at")
    c = Col()
    bfront.attend(c)
    for x in weave_lines(c, qproj.xitems(g3, 1) + qproj.witems(g3, 2) + qproj.xitems(g3, 2), 0.0, 0.7):
        a(x)
    qb = VmQ()
    for t, n in (('t', 1), ('w0', 4), ('w1', 4), ('x0', 8), ('x1', 8), ('w2', 4), ('x2', 8), ('st', 8)):
        qb.push(t, n)
    a("s_lshl_b32 s34, s%d, 4" % bfront.sRb)
    a("s_add_u32 s34, s34, s%d" % bfront.sHp)
    a("s_lshl_b32 s34, s34, 7")
    a("s_add_u32 s34, s34, %d" % F_OB)
    a("s_mov_b32 s%d, 0x70000000" % proj4.sSt)
    a.label("Lp3")
    st(a)
    qproj.restore(a)
    g3.init(a, [qproj.XS0, 0])
    need = lambda *t: min(qk.need(*t), qb.need(*t))

    def push(t, n):
        qk.push(t, n), qb.push(t, n)
    cum = [NW + sum(TR3[:k]) for k in range(len(TR3) + 1)]
    g3.pro(a, need('w0', 'x0'), dma=proj4.trickle('v', cum[0], cum[1]))
    push('st', TR3[0])
    last = len(TR3) + 1
    for s in range(1, last + 1):
        N = need('w%d' % s, 'x%d' % s, s, *(['st'] if s == last else []))
        g3.iter(a, N, g3.dma_items() + (proj4.trickle('v', cum[s], cum[s + 1]) if s < len(TR3) else []),
                after_bar=(lambda: (tag_get(a, 22, 12), signal(a, 22, ["s34"], 3))) if s == last else None)
        push(s + 2, 12)
        if s < len(TR3):
            push('st', TR3[s])
    if last < 12:
        a("s_mov_b32 s%d, %d" % (g3.sCnt, (12 - last) // (2 if g3.chain else 1)))
        assert (12 - last) % 2 == 0
        g3.loop(a, 12)
    else:
        g3.bar(a, 12)

    def ids():
        a("s_lshr_b32 s34, s%d, 1" % attn4.sHead)
        a("s_lshl_b32 s34, s34, 11")
        for x in flag_addr(3, 8):
            a(x)
    g3.iter(a, None, [flag_load(22, "s34", 3)] + g3.dma_items(), after_bar=ids)

    def go():
        flag_check(a, 22, "s34", 3)
        attn4.kv_setup(a)
        oproj.ids(a)
    it = attn4.kv_prologue_items(0)
    cut = [i for i, x in enumerate(it) if "m0" in x][1]
    g3.iter(a, 12, it[:cut], after_bar=go)
    g3.bar(a, 4)
    a("s_mov_b32 s6, 0x%08x" % f32bits(attn4.CST))
    a("s_mov_b32 s7, s6")
    g3.half(a, 1, dma=it[cut:])
    order, epi = qproj.epilogue()
    if g3.chain:
        g3.last2(a, epi, bar=False)
    else:
        g3.bm(a, order, 16, epi=epi, bar=False)
    st(a)
    attn4.setup1(a)
    oproj.fill_setup(a)
    st(a)
    g6, g7 = oproj.make("p6", oproj.AB), oproj.make("p7", oproj.AA)

    class H:
        q0 = [t for t in (('K', 0), ('K', 1), ('V', 0)) for _ in range(4)]

        @staticmethod
        def after_d2():
            a("s_lshr_b32 s91, s%d, 1" % oproj.sRb)
            a("s_lshl_b32 s91, s91, 11")
            a("s_add_u32 s91, s91, %d" % F_OB)
            for x in flag_addr(14):
                a(x)

        @staticmethod
        def fill():
            return oproj.fill_items()

        @staticmethod
        def pre_e1():
            return [flag_load(12, "s91", 14)]

        @staticmethod
        def at_e1():
            flag_check(a, 12, "s91", 14)
            oproj.ring_start(a)
            for j in range(4):
                a("v_accvgpr_read_b32 v%d, a%d" % (oproj.wv + j, oproj.aSave + j))
            for x in oproj.job_w(False) + oproj.job_x(False):
                a(x)

        @staticmethod
        def e1_items():
            return oproj.stage_items(g6, 0, 'wx')

        @staticmethod
        def e2_items():
            return oproj.stage_items(g6, 1, 'wx')
    attn4.attention(a, st, H)
    st(a)
    gh = oproj.make("ph", oproj.AA, True)
    q = VmQ()
    for s in range(2):
        q.push(s, 8)
    q.push('ctx', 8)
    oproj.read_bases(a, 4)
    g6.init(a, [3])
    c = Col()
    c("s_lshl_b32 s36, s%d, 7" % attn4.sHead)
    c("s_add_u32 s36, s36, %d" % F_CTX)
    attn4.long_blk(c, 37)
    c("s_lshl_b32 s37, s37, 12")
    c("s_add_u32 s37, s37, s36")
    c("s_lshl_b32 s38, s%d, 12" % attn4.sPair)
    c("s_add_u32 s36, s36, s38")
    oproj.flag_pos(c, False, True, 38)
    c("s_lshl_b32 s91, s%d, 12" % oproj.sRb)
    c("s_add_u32 s91, s91, %d" % F_CTX)
    oproj.flag_pos(c, False, False, 39)
    c("s_sub_u32 s39, s39, s91")
    sigc = Col()
    signal(sigc, 6, ["s36", "s37", "s38"])
    pre = sigc[:-3] + ["v_lshlrev_b32 v14, 7, v1", "v_mov_b32 v9, s39", "v_cmp_gt_u32 vcc, 32, v1", "v_cndmask_b32 v14, v9, v14, vcc"]
    for x in c + pre:
        a(x)
    g6.pro(a, q.need(0), dma=oproj.stage_items(g6, 2, 'wx'))
    q.push(2, 8)
    VS = int(os.environ.get("VS", 6))
    for s in range(1, VS):
        N = q.need(1, 'ctx') if s == 1 else q.need(s)
        it = g6.dma_items() if s < 5 else (oproj.job_w(True) if s == 5 else []) + g7.group_items(g7.dma[0])
        if s == 1:
            it = sigc[-3:] + oproj.stage_items(g6, 3, 'wx') + it
            q.push('sig', 3)
            q.push(3, 8)
        if s == 2:
            c = Col()
            oproj.xch_srd(c)
            it = [c[0] + "\n" + c[1]] + c[2:] + it
        if s == VS - 1:
            it = [flag_load(6, "s91", 14)] + it
            q.push('fl', 1)
        q.push(s + 3, 8 if s < 5 else 4)
        if 'st6' in MFL:
            st(a)
        g6.iter(a, N, it)
    a("s_waitcnt vmcnt(%d)" % q.need(VS, 'fl'))
    a("v_cmp_ne_u64 vcc, s[%d:%d], v[6:7]" % (S_TAG, S_TAG + 1))
    a("v_cndmask_b32_e64 v8, 0, 1, vcc")
    a("v_lshlrev_b32 v9, 2, v0")
    a("ds_write_b32 v9, v8")
    a("v_lshlrev_b32 v9, 4, v1")
    a("s_waitcnt lgkmcnt(0)")
    a("s_barrier")
    a("ds_read_b128 v[160:163], v9")
    for x in oproj.job_w(True) if VS == 5 else []:
        a(x)
    a("s_waitcnt lgkmcnt(0)")
    a("v_or3_b32 v160, v160, v161, v162")
    a("v_or_b32 v160, v160, v163")
    a("v_cmp_ne_u32 vcc, 0, v160")
    if 'only7' not in MFL:
        a("s_cbranch_vccnz Lp6_late ; @late")
    if 'st6' in MFL:
        st(a)
    k0 = st.k
    q0 = list(q.q)
    par0 = oproj.PAR[0]
    for late in (False, True):
        q.q = list(q0)
        oproj.PAR[0] = par0
        if late:
            a.label("Lp6_late")
            st.k = k0
        else:
            for x in oproj.job_x(True):
                a(x)
        for s in range(VS, 8):
            if s > VS:
                g6.bar(a, q.need(s))
            it = g7.group_items(g7.dma[0]) if late else g7.dma_items()
            if s == VS and not late:
                for t in range(VS + 2, 7, -1):
                    it = oproj.stage_items(g7, t, 'x') + it
                for t in range(8, VS + 3):
                    q.push(t, 4)
            q.push(s + 3, 4 if late else 8)
            if late and s == 7:
                it += [flag_load(6, "s91", 14)]
            d0, d1 = g6.split(it)
            g6.half(a, 1, dma=d0)
            a("s_waitcnt lgkmcnt(0)")
            g6.half(a, 0, dma=d1, adv=True)
        if late:
            a("s_waitcnt vmcnt(0) lgkmcnt(0)")
            a("s_barrier")
            st(a)
            flag_check(a, 6, "s91", 14)
            st(a)
            for x in oproj.job_x(True):
                a(x)
            it = []
            for s in range(8, 12):
                it += oproj.stage_items(g7, s, 'x' if s < 11 else 'wx')
            g6.half(a, 1, rd=False, dma=it)
            for x in oproj.send_items(oproj.AB, False, 6):
                a(x)
            a("s_waitcnt vmcnt(24)")
            a("s_barrier")
            for x in g7.reads(0):
                a(x)
            a("s_waitcnt lgkmcnt(0)")
            g7.half(a, 0, first=True, adv=True)
        else:
            g6.bar(a, q.need(8))
            st(a)
            st(a)
            g6.half(a, 1, dma=g7.dma_items())
            a("s_waitcnt lgkmcnt(0)")
            it = oproj.send_items(oproj.AB, False, 6)
            nsc = [i for i, x in enumerate(it) if kind(x) == 'd'][0]
            for x in it[:nsc]:
                a(x)
            g7.half(a, 0, first=True, adv=True, extra=lambda sg: place_dma(sg, it[nsc:], 5, 14))
            a("s_branch Lp7")
    a.label("Lp7")
    st(a)
    DL = oproj.DL
    F = 40 - DL
    U = 32 if g7.chain else 33
    a("s_mov_b32 s%d, %d" % (g7.sCnt, (U - 10) // 2 if g7.chain else U - 9))
    if g7.chain:
        g7.iter(a, 16, g7.dma_items())
        assert U % 2 == 0
    g7.loop(a, 16)
    if 'st2' in MFL:
        st(a)
    q = VmQ()
    for s in range(U, U + 3):
        q.push(s, 8)
    E = F + 2 * DL
    finB = []
    gl = oproj.make("l", oproj.AA, lin=True)
    for s in range(U, E):
        tags, it, ab = [s], [], None
        if s == U:
            c = Col()
            oproj.out_off(c, False, 32)
            oproj.out_off(c, True, 34)
            it += oproj.recv_items(False, 6) + c
            ab = lambda: oproj.out_setup(a)
        if s == U + 2:
            tags.append('rcv')
            ab = lambda: oproj.recv_check(a, False, 6)
            finB = oproj.finish(oproj.AB, False, 32)
        if s == E - 1:
            it += oproj.recv_items(True, 6)
        N = q.need(*tags)
        q.push('rcv', sum(kind(x) == 'd' for x in it))
        if s + 3 < F:
            it += g7.dma_items() if s + 3 < 36 else (oproj.to_lin() if s + 3 == 36 else []) + gl.dma_items()
            q.push(s + 3, 8)
        elif s + 3 < E:
            if s + 3 == F:
                it += oproj.to_half()
            if s + 3 == F + DL:
                it += oproj.to_partner()
            it += gh.dma_items()
            q.push(s + 3, 6)
        g1, g0 = (g7 if s - 1 < F else gh), (g7 if s < F else gh)
        if s > U:
            g7.bar(a, N)
        else:
            assert N >= 16
        if ab:
            ab()
        d0, d1 = g7.split(it)
        if s == F:
            snd = oproj.send_items(oproj.AA, True, 36)
            nsc = [i for i, x in enumerate(snd) if kind(x) == 'd'][0]
            d0, d1 = it + snd[:nsc], snd[nsc:]
            q.push('snd', 8)
        L = finB.pop(0) if finB else []

        def finb(sg):
            g = 0
            for x in L[:-1]:
                g = sg.place(x, g, lo=g)
        g1.half(a, 1, dma=d0, rdg=g0, extra=finb)
        a("s_waitcnt lgkmcnt(0)")
        g0.half(a, 0, dma=d1, adv=s < E - 1, extra=lambda sg: sg.end[sg.n - 1].extend(L[-1:]))
        q.push('ob', len(L[-1:]))
        if 'st3' in MFL:
            st(a)
    gh.tail(a, bar=False)
    st(a)
    a("s_waitcnt vmcnt(0)")
    oproj.recv_check(a, True, 6)
    st(a)
    for L in zip(*oproj.finish(oproj.AA, True, 34)):
        for x in L:
            a(x)
    st(a)
    if stamp:
        a("s_waitcnt vmcnt(0)")
    st(a)
    st.flush(a)
    return fin(a)


def fin(a):
    a.label("Lend")
    a("s_endpgm")
    t = a.finish()
    for fl, pat in (('x7rd', "ds_read"), ('x7mf', "v_mfma"), ('x7dma', " lds")):
        if fl in MFL:
            h, r = t.split("Lp7_loop:")
            b, r = r.split("s_cbranch_scc1 Lp7_loop", 1)
            t = h + "Lp7_loop:" + "\n".join(l for l in b.split("\n") if pat not in l) + "s_cbranch_scc1 Lp7_loop" + r
    if 'nobar' in MFL:
        t = t.replace("s_barrier", "s_nop 0")
    if 'nox' in MFL:
        t = "\n".join(l for l in t.split("\n") if not (l.rstrip().endswith(" lds") and "s[8:11]" in l))
    if 'now' in MFL:
        t = "\n".join(l for l in t.split("\n") if not (l.rstrip().endswith(" lds") and "s[12:15]" in l))
    if 'nodma' in MFL:
        t = "\n".join(l for l in t.split("\n") if not l.rstrip().endswith(" lds"))
    return t.replace("CODE_KB", os.environ.get("CODE_KB", "70"))
```

```python
from lib import *
from gemm4 import *

wv = 10
rdx, rdw = 16, 18
sX, sW, sWv, sHo = 70, 71, 79, 88
sRb, sCt, sKh, sTile = 73, 76, 77, 78
T = 24
AB, AA, PB, PA = 32, 96, 160, 192
NS = 4
aSave = 212
DL = int(os.environ.get("DL", 2))


sXb, sWb = 92, 93
KS = {n: (KSeq(0, n, 72), KSeq(30, n, 72)) for n in (8, 28)}


PAR = [0]


def acc(base, mi, ni): return ('v', base + 4 * (4 * mi + ni))


def make(name, base, half=False, lin=False):
    g = Gemm()
    g.name, g.woff = name, 16 * KB
    g.xlin, g.xhs = True, 8192
    R = Ring(NS, 32 * KB, 64)
    R.regs = list(range(rdx, rdw + 4))
    g.rings = [R]
    g.xrd, g.wrd = [(rdx, rdx), (rdx + 1, rdx + 1)], list(range(rdw, rdw + 4))
    g.xfr = [(i >> 1, 1024 * (i & 1)) for i in range(4)]
    g.wfr = [(b, 0) for b in range(4)]
    g.mf = [(acc(base, mi, ni), mi, ni, 'wx') for ni in range(4) for mi in range(2 if half else 4)]
    g.fx, g.fw = 64, 128
    g.chain, g.par = bool(int(os.environ.get('CH', 7)) & 4), PAR
    g.sCnt = 69
    ld = lambda v, s, o, j, f: "buffer_load_dwordx4 v%d, s[%d:%d], s%d offen offset:%d%s lds" % (v, s, s + 3, o, 1024 * j, f)
    g.dma = [
        (R, 16 * KB, [ld(wv + j, 12, sW, j, "") for j in range(4)], ["s_add_u32 s%d, s%d, %d" % (sW, sW, 64 * 2048)]),
        (R, 0, [ld(2, 8, sX, j, SC1L) for j in range(4)], ["s_add_u32 s%d, s%d, %d" % (sX, sX, 16 * KB)]),
    ]
    if not half and not lin:
        kx, kw = KS[8 if base == AB else 28]
        g.dma[0] = g.dma[0][:3] + (kw.step() + ["s_lshl_b32 s72, s%d, 17" % kw.k, "s_add_u32 s%d, s%d, s72" % (sW, sWb)],)
        g.dma[1] = g.dma[1][:3] + (kx.step() + ["s_lshl_b32 s72, s%d, 14" % kx.k, "s_add_u32 s%d, s%d, s72" % (sX, sXb)],)
    if half:
        g.dma[1] = (R, ('s', sHo), [ld(2, 8, sX, j, SC1L) for j in range(2)], ["s_add_u32 s%d, s%d, %d" % (sX, sX, 16 * KB)])
    return g


def to_lin():
    return ["s_add_u32 s%d, s%d, %d" % (sX, sXb, 28 << 14), "s_add_u32 s%d, s%d, %d" % (sW, sWb, 28 << 17)]


FS = 64
aNaN = 244


def fill_setup(a):
    xch_off(a, 90, True, True)
    srd(a, FS, P_WS, 16384, WS_XCH, 90)
    a("s_mov_b32 s90, 0")


def fill_items():
    return ["buffer_store_dwordx4 %s, v2, s[%d:%d], s90 offen offset:%d%s" % (a4(aNaN), FS, FS + 3, 1024 * i, SC1) for i in range(2)] + \
           ["s_add_u32 s90, s90, 2048"]


def recv_check(a, isA, d):
    P = PA if isA else PB
    L, D = a.newlabel("Lrc"), a.newlabel("Lpolld")
    a("s_mov_b32 s72, 0x40000")
    a.label(L)
    t = 4
    for k in range(4):
        a("v_max3_u32 v%d, v%d, v%d, v%d" % (t + k, P + 8 * k, P + 8 * k + 1, P + 8 * k + 2))
    for e in (3, 5):
        for k in range(4):
            a("v_max3_u32 v%d, v%d, v%d, v%d" % (t + k, t + k, P + 8 * k + e, P + 8 * k + e + 1))
    for k in range(4):
        a("v_max_u32 v%d, v%d, v%d" % (t + k, t + k, P + 8 * k + 7))
    a("v_max3_u32 v%d, v%d, v%d, v%d" % (t, t, t + 1, t + 2))
    a("v_max_u32 v%d, v%d, v%d" % (t, t, t + 3))
    a("v_cmp_eq_u32 vcc, -1, v%d" % t)
    a("s_cbranch_vccz %s" % D)
    for x in recv_items(isA, d):
        if kind(x) == 'd':
            a(x)
    a("s_sub_u32 s72, s72, 1")
    a("s_waitcnt vmcnt(0)")
    a("s_cbranch_scc0 %s ; @poll" % L)
    a.label(D)


def to_half():
    return ["s_and_b32 s%d, s%d, 1" % (sHo, S_WAVE), "s_lshl_b32 s%d, s%d, 12" % (sHo, sHo),
            "s_lshr_b32 s72, s%d, 1" % S_WAVE, "s_lshl_b32 s72, s72, 13", "s_add_u32 s%d, s%d, s72" % (sHo, sHo),
            "s_lshl_b32 s72, s%d, 11" % sKh, "s_add_u32 s%d, s%d, s72" % (sHo, sHo), "s_sub_u32 s%d, s%d, s%d" % (sHo, sHo, sWv),
            "s_add_u32 s%d, s%d, s%d" % (sX, sXb, sHo), "s_add_u32 s%d, s%d, %d" % (sX, sX, (32 - DL) << 14),
            "s_add_u32 s%d, s%d, %d" % (sW, sWb, (32 - DL) << 17)]


def to_partner():
    return ["s_sub_u32 s%d, s%d, %d" % (sX, sX, DL << 14), "s_xor_b32 s%d, s%d, %d" % (sX, sX, 1 << 19),
            "s_sub_u32 s%d, s%d, %d" % (sW, sW, DL << 17), "s_xor_b32 s%d, s%d, %d" % (sW, sW, 1 << 22)]


def ids(a):
    a("s_and_b32 s4, s2, 1")
    a("s_lshl_b32 s4, s4, 3")
    a("s_bfe_u32 s5, s2, 0x30003")
    a("s_add_u32 s%d, s4, s5" % sRb)
    a("s_bfe_u32 s4, s2, 0x10001")
    a("s_lshl_b32 s4, s4, 2")
    a("s_lshr_b32 s5, s2, 6")
    a("s_add_u32 s%d, s4, s5" % sCt)
    a("s_bfe_u32 s%d, s2, 0x10002" % sKh)
    a("s_lshl_b32 s%d, s%d, 3" % (sTile, sRb))
    a("s_add_u32 s%d, s%d, s%d" % (sTile, sTile, sCt))
    a("s_lshl_b32 s%d, s%d, 12" % (sWv, S_WAVE))


def ring_start(a):
    a("s_add_u32 s64, s%d, %d" % (sWv, 128 * KB))


def lanes(a, T):
    for i in range(4):
        a("v_accvgpr_write_b32 a%d, -1" % (aNaN + i))
    lane_setup(a, T)
    a("s_and_b32 s4, s%d, 1" % S_WAVE)
    a("s_lshl_b32 s4, s4, 16")
    a("s_lshr_b32 s5, s%d, 1" % S_WAVE)
    a("s_lshl_b32 s5, s5, 7")
    a("s_add_u32 s4, s4, s5")
    a("v_lshl_add_u32 v%d, v%d, 11, v%d" % (T, T, T + 1))
    a("v_add_u32 v%d, s4, v%d" % (T, T))
    for j in range(4):
        a("v_add_u32 v%d, %d, v%d" % (T + 1, j * (8 * 2048 - 1024), T))
        a("v_accvgpr_write_b32 a%d, v%d" % (aSave + j, T + 1))


def stage_items(g, s, what):
    L = []
    for i, w in enumerate("wx"):
        if w in what:
            ring, m0, ins, post = g.dma[i]
            L += ["s_add_u32 m0, s%d, %d" % (sWv, (1 + (3 + s) % NS) * 32 * KB + m0)] + ins + post
    return L


def job_w(isA):
    c = Col()
    srd(c, 12, P_WO if isA else P_BWO, (4096 if isA else 1024) * 2048)
    c("s_lshl_b32 s%d, s%d, %d" % (sWb, sKh, 22 if isA else 20))
    c("s_lshl_b32 s72, s%d, 8" % sCt)
    c("s_add_u32 s%d, s%d, s72" % (sWb, sWb))
    kw = KS[28 if isA else 8][1]
    return list(c) + ["s_add_u32 s72, s%d, s%d" % (sRb, sCt)] + kw.init("s72", "0") + \
        ["s_lshl_b32 s72, s%d, 17" % kw.k, "s_add_u32 s%d, s%d, s72" % (sW, sWb)]


def job_x(isA):
    off = WS_CTX if isA else WS_OB
    L = ["s_add_u32 s8, s%d, %d\ns_addc_u32 s9, s%d, 0" % (P_WS, off, P_WS + 1),
         "s_mov_b32 s10, %d" % ((16 if isA else 4) * MB), "s_mov_b32 s11, 0x00020000",
         "s_lshl_b32 s%d, s%d, 1" % (sXb, sRb), "s_add_u32 s%d, s%d, s%d" % (sXb, sXb, sKh),
         "s_lshl_b32 s%d, s%d, %d" % (sXb, sXb, 19 if isA else 17),
         "s_add_u32 s%d, s%d, s%d" % (sXb, sXb, sWv)]
    kx = KS[28 if isA else 8][0]
    L += ["s_add_u32 s72, s%d, s%d" % (sRb, sCt)] + kx.init("s72", "0") + \
        ["s_lshl_b32 s72, s%d, 14" % kx.k, "s_add_u32 s%d, s%d, s72" % (sX, sXb)]
    return L


def read_bases(a, slot):
    a("s_lshr_b32 s4, s%d, 1" % S_WAVE)
    a("s_lshl_b32 s4, s4, 12")
    a("s_add_u32 s4, s4, %d" % (slot * 32 * KB))
    a("s_lshl_b32 s5, s%d, 11" % sKh)
    a("s_add_u32 s4, s4, s5")
    a("v_add_u32 v%d, s4, v2" % rdx)
    a("v_xor_b32 v%d, 0x800, v%d" % (rdx + 1, rdx))
    a("s_and_b32 s4, s%d, 1" % S_WAVE)
    a("s_lshl_b32 s4, s4, 13")
    a("s_add_u32 s4, s4, %d" % (slot * 32 * KB))
    wread_base(a, list(range(rdw, rdw + 4)), range(4), T, "s4")


def xch_srd(a):
    srd(a, 16, P_WS, 16 * MB, WS_XCH)


def xch_off(a, d, isA, mine):
    a("s_lshl_b32 s%d, s%d, 1" % (d, sTile))
    a("s_add_u32 s%d, s%d, s%d" % (d, d, sKh))
    if not mine:
        a("s_xor_b32 s%d, s%d, 1" % (d, d))
    a("s_lshl_b32 s%d, s%d, 2" % (d, d))
    a("s_add_u32 s%d, s%d, s%d" % (d, d, S_WAVE))
    a("s_lshl_b32 s%d, s%d, 14" % (d, d))
    if not isA:
        a("s_add_u32 s%d, s%d, 8192" % (d, d))


def send_items(base, isA, d):
    c = Col()
    xch_off(c, d, isA, False)
    c("s_add_u32 s%d, s%d, 4096" % (d + 1, d))
    for i in range(8):
        c("buffer_store_dwordx4 %s, v2, s[16:19], s%d offen offset:%d%s" % (v4(base + 32 + 4 * i), d + i // 4, 1024 * (i % 4), SC1))
    return list(c)


def recv_items(isA, d):
    c = Col()
    xch_off(c, d, isA, True)
    c("s_add_u32 s%d, s%d, 4096" % (d + 1, d))
    for i in range(8):
        c("buffer_load_dwordx4 %s, v2, s[16:19], s%d offen offset:%d%s" % (v4((PA if isA else PB) + 4 * i), d + i // 4, 1024 * (i % 4), SC1))
    return list(c)


def flag_pos(a, isA, mine, d):
    a("s_lshl_b32 s%d, s%d, 1" % (d, sTile))
    a("s_add_u32 s%d, s%d, s%d" % (d, d, sKh))
    if not mine:
        a("s_xor_b32 s%d, s%d, 1" % (d, d))
    a("s_lshl_b32 s%d, s%d, 7" % (d, d))
    a("s_add_u32 s%d, s%d, %d" % (d, d, F_XA if isA else F_XB))


def out_setup(a):
    srd(a, 20, P_OUT, 8 * MB)
    a("v_bfe_u32 v%d, v1, 4, 1" % (T + 1))
    a("v_lshrrev_b32 v%d, 5, v1" % (T + 2))
    a("v_lshl_or_b32 v%d, v%d, 1, v%d" % (T + 1, T + 1, T + 2))
    a("v_lshlrev_b32 v%d, 4, v%d" % (T + 1, T + 1))
    a("v_and_b32 v%d, 15, v1" % T)
    a("v_lshl_add_u32 v%d, v%d, 14, v%d" % (T + 2, T, T + 1))
    a("v_lshl_add_u32 v%d, v%d, 12, v%d" % (T + 3, T, T + 1))


def out_off(a, isA, d):
    a("s_lshl_b32 s%d, s%d, 19" % (d, sRb))
    a("s_lshl_b32 s72, s%d, 8" % sCt)
    a("s_add_u32 s%d, s%d, s72" % (d, d))
    a("s_and_b32 s72, s%d, 1" % S_WAVE)
    a("s_lshl_b32 s72, s72, 7")
    a("s_add_u32 s%d, s%d, s72" % (d, d))
    a("s_lshr_b32 s72, s%d, 1" % S_WAVE)
    a("s_lshl_b32 s72, s72, 1")
    a("s_add_u32 s72, s72, s%d" % sKh)
    a("s_lshl_b32 s72, s72, %d" % (12 if isA else 17))
    a("s_add_u32 s%d, s%d, s72" % (d, d))
    if not isA:
        a("s_add_u32 s%d, s%d, 2048" % (d, d))
    a("s_add_u32 s%d, s%d, %d" % (d + 1, d, (64 if isA else 16) * 4096))


def finish(base, isA, d):
    PR = PA if isA else PB
    out = []
    for q in range(4):
        u = PR + 8 * q
        L = ["v_pk_add_f32 v[%d:%d], v[%d:%d], v[%d:%d]" % (u + e, u + e + 1, u + e, u + e + 1, base + 8 * q + e, base + 8 * q + e + 1) for e in range(0, 8, 2)]
        L += ["v_cvt_pk_bf16_f32 v%d, v%d, v%d" % (u + e, u + 2 * e, u + 2 * e + 1) for e in range(4)]
        L += ["v_permlane16_swap_b32 v%d, v%d" % (u, u + 2), "v_permlane16_swap_b32 v%d, v%d" % (u + 1, u + 3)]
        L += ["buffer_store_dwordx4 %s, v%d, s[20:23], s%d offen offset:%d%s" % (v4(u), T + (2 if isA else 3), d + (q >> 1), (q & 1) * 64,
                                                                                os.environ.get("OUTF", ""))]
        out.append(L)
    return out
```

```python
from lib import *
from gemm4 import *
import attn4
from attn4 import Oreg, aQ, vO, CST

xv, wv, rd = 4, 8, 16
aSave = 222
aZ = 236
A0 = 32
sXA, sXB, sW = 26, 27, 28
C3, L3 = [int(x) for x in os.environ.get('KS3', '1,2').split(',')]
KX, KW = KSeq(52, 16, 29, C3, L3), KSeq(54, 16, 56, C3, L3)
XBASE, XS0 = 64 * KB, 1


def make():
    g = Gemm()
    g.name = "p3"
    RX, RW = Ring(3, 32 * KB, 88), Ring(3, 16 * KB, 68)
    RX.regs, RW.regs = [rd, rd + 1], list(range(rd + 2, rd + 6))
    g.rings = [RX, RW]
    g.xrd, g.wrd = [(rd, rd + 1)], list(range(rd + 2, rd + 6))
    g.xfr = [(0, 2048 * i) for i in range(4)]
    g.wfr = [(ni & 3, (ni >> 2) * 8192) for ni in range(8)]
    g.mf = [(('v', A0 + 4 * (8 * mi + ni)), mi, ni, 'wx') for ni in range(8) for mi in range(4)]
    g.fx, g.fw = 0, 64
    g.chain, g.par = bool(int(os.environ.get('CH', 7)) & 2), [0]
    g.sCnt = 35
    ld = lambda v, s, o, j: "buffer_load_dwordx4 v%d, s[%d:%d], s%d offen offset:%d lds" % (v + j, s, s + 3, o, 1024 * j)
    g.dma = [
        (RW, 0, [ld(wv, 20, sW, j) for j in range(4)],
         KW.step() + ["s_lshl_b32 s%d, s%d, 19" % (sW, KW.k)]),
        (RX, 0, [ld(xv, 8, sXA, j) for j in range(4)], []),
        (RX, 4096, [ld(xv, 8, sXB, j) for j in range(4)],
         KX.step() + ["s_lshl_b32 s29, s%d, 7" % KX.k, "s_or_b32 s%d, s30, s29" % sXA, "s_or_b32 s%d, s31, s29" % sXB]),
    ]
    return g


def lanes(a, T):
    for i in range(4):
        a("v_accvgpr_write_b32 a%d, 0" % (aZ + i))
        a("v_accvgpr_write_b32 a%d, v%d" % (attn4.aOne + i, T + 3) if i else "v_mov_b32 v%d, 0x3f803f80\nv_accvgpr_write_b32 a%d, v%d" % (T + 3, attn4.aOne, T + 3))
    lane_setup(a, T)
    a("v_lshlrev_b32 v%d, 2, v%d" % (T + 2, T))
    a("v_add_u32 v%d, s%d, v%d" % (T + 2, S_WAVE, T + 2))
    a("v_lshl_add_u32 v%d, v%d, 11, v%d" % (T + 2, T + 2, T + 1))
    for j in range(4):
        a("v_add_u32 v%d, %d, v%d" % (T + 3, (32 * j) * 2048 - 1024 * j, T + 2))
        a("v_accvgpr_write_b32 a%d, v%d" % (aSave + j, T + 3))
    a("v_lshrrev_b32 v%d, 2, v%d" % (T + 2, T))
    a("v_and_b32 v%d, 3, v%d" % (T + 3, T))
    a("v_lshl_add_u32 v%d, v%d, 3, v%d" % (T + 2, T + 2, T + 3))
    a("s_and_b32 s4, s%d, 1" % S_WAVE)
    a("s_lshl_b32 s4, s4, 18")
    a("s_lshr_b32 s5, s%d, 1" % S_WAVE)
    a("s_lshl_b32 s5, s5, 7")
    a("s_add_u32 s4, s4, s5")
    a("s_lshl_b32 s5, s%d, 8" % attn4.sHead)
    a("s_add_u32 s4, s4, s5")
    a("v_lshl_add_u32 v%d, v%d, 13, v%d" % (T + 2, T + 2, T + 1))
    a("v_add_u32 v%d, s4, v%d" % (T + 2, T + 2))
    for j in range(4):
        a("v_add_u32 v%d, %d, v%d" % (T + 3, (16 * (j & 1) + 4 * (j >> 1)) * 8192 - 1024 * j, T + 2))
        a("v_accvgpr_write_b32 a%d, v%d" % (aSave + 4 + j, T + 3))
    t = T + 4
    a("s_lshl_b32 s4, s%d, 13" % S_WAVE)
    a("s_add_u32 s4, s4, %d" % (XBASE + XS0 * 32 * KB))
    xread_base(a, t, t + 1, T, "s4")
    wread_base(a, [t + 2 + i for i in range(4)], range(4), T, "0")
    for i in range(6):
        a("v_accvgpr_write_b32 a%d, v%d" % (aSave + 8 + i, t + i))


def setup(a, g):
    RX, RW = g.rings
    for i in range(8):
        a("v_accvgpr_read_b32 v%d, a%d" % (xv + i, aSave + i))
    srd(a, 8, P_AX, 2048 * 2048)
    srd(a, 20, P_WQ, 1024 * 8192)
    a("s_and_b32 s4, s2, %d" % (7 if int(os.environ.get("ROT3", 1)) else 0))
    a("s_lshl_b32 s4, s4, 1")
    a("s_lshr_b32 s5, s2, 6")
    a("s_lshr_b32 s30, s2, 4")
    a("s_add_u32 s5, s5, s30")
    for x in KX.init("s5", "s4") + KW.copy(KX):
        a(x)
    a("s_lshl_b32 s29, s%d, 7" % KX.k)
    a("s_lshl_b32 s%d, s%d, 19" % (sW, KW.k))
    a("s_lshl_b32 s30, s%d, 18" % attn4.sPair)
    attn4.long_blk(a, 31)
    a("s_lshl_b32 s31, s31, 18")
    a("s_or_b32 s%d, s30, s29" % sXA)
    a("s_or_b32 s%d, s31, s29" % sXB)
    a("s_lshl_b32 s%d, s%d, 12" % (RW.sWr, S_WAVE))
    a("s_lshl_b32 s%d, s%d, 13" % (RX.sWr, S_WAVE))
    a("s_add_u32 s%d, s%d, %d" % (RX.sWr, RX.sWr, XBASE + XS0 * 32 * KB))


def restore(a):
    for i in range(6):
        a("v_accvgpr_read_b32 v%d, a%d" % (rd + i, aSave + 8 + i))


def xitems(g, s):
    off = (((XS0 + s) % 3) - XS0) * 32 * KB
    return g.group_items(g.dma[1], off) + g.group_items(g.dma[2], off)


def witems(g, s):
    return g.group_items(g.dma[0], s * 16 * KB)


def epilogue():
    order, epi = [], []
    for k in range(16):
        g, ds = (k & 3, k >> 2) if int(os.environ.get('CH', 7)) & 2 else (k >> 2, k & 3)
        if True:
            b = A0 + 4 * (8 * g + 2 * ds)
            idx = [(2 * ds) * 4 + g, (2 * ds + 1) * 4 + g]
            order += idx
            L = ["v_pk_mul_f32 v[%d:%d], v[%d:%d], s[6:7]" % (b + e, b + e + 1, b + e, b + e + 1) for e in range(0, 8, 2)]
            L += ["v_cvt_pk_bf16_f32 v%d, v%d, v%d" % (b + e, b + 2 * e, b + 2 * e + 1) for e in range(4)]
            L += ["v_accvgpr_write_b32 a%d, v%d" % (aQ + 4 * (4 * g + ds) + e, b + e) for e in range(4)]
            zi = {1: 0, 3: 1, 5: 2, 7: 6 if int(os.environ.get('CH', 7)) & 2 else 3, 9: 4, 11: 5, 13: 3 if int(os.environ.get('CH', 7)) & 2 else 6, 15: 7}
            if k & 1:
                z = vO + (16 * zi[k] + 32) % 128
                L.append("v_mfma_f32_32x32x16_bf16 v[%d:%d], a[%d:%d], a[%d:%d], 0" % (z, z + 15, aZ, aZ + 3, aZ, aZ + 3))
            epi.append((idx, L))
    return order, epi
```

```python
from lib import *
from gemm4 import *
import proj4, bfront, attn4, oproj, qproj

MFL = set(os.environ.get("MFLAGS", "").split(","))


def gen(stamp=False):
    a = Asm()
    st = Stamps(stamp, 0)
    a("s_cmp_ge_u32 s2, 256")
    a("s_cbranch_scc1 Lend")
    a("s_load_dwordx16 s[64:79], s[0:1], 0")
    a("s_load_dwordx8 s[80:87], s[0:1], 64")
    a("v_lshrrev_b32 v2, 6, v0")
    a("v_and_b32 v1, 63, v0")
    a("v_readfirstlane_b32 s%d, v2" % S_WAVE)
    a("v_lshlrev_b32 v2, 4, v1")
    if 'ipf' in MFL:
        a("s_getpc_b64 s[6:7]")
        a("s_lshr_b32 s4, s2, 3")
        a("s_lshl_b32 s4, s4, 2")
        a("s_add_u32 s4, s4, s%d" % S_WAVE)
        a("s_min_u32 s4, s4, CODE_KB")
        a("s_lshl_b32 s4, s4, 10")
        a("v_add_u32 v3, s4, v2")
        a("global_load_dwordx4 v[4:7], v3, s[6:7]")
    st(a)
    gk, gv = proj4.make('wx'), proj4.make('xw')
    b0, b1 = bfront.make(0), bfront.make(1)
    g3 = qproj.make()
    if 'nost' in MFL:
        t0 = proj4.trickle
        proj4.trickle = lambda k, a, b: [x.replace("s%d," % proj4.sSt, "0x70000000,").replace("s_add_u32 s60, 0x70000000, ", "s_mov_b32 s60, 0x70000000 ; ") for x in t0(k, a, b)]
    NK = [int(x) for x in os.environ.get("NK", "12").split(",")]
    NW = int(os.environ.get("NW", 8))
    TR3 = [int(x) for x in os.environ.get("TR3", "8,0,8,0,8").split(",")]
    assert NW >= 8 and NW + sum(TR3) == 32
    a("s_bfe_u32 s59, s2, 0x30003")
    a("s_lshr_b32 s4, s2, 7")
    a("s_lshl_b32 s4, s4, 3")
    a("s_add_u32 s59, s59, s4")
    a("s_lshr_b32 s4, s2, 3")
    a("s_xor_b32 s4, s4, s2")
    a("s_bitcmp1_b32 s4, 3")
    a("s_cbranch_scc1 Lp2")

    def common(c):
        attn4.ids(c)
        oproj.lanes(c, 24)
        qproj.lanes(c, 24)
    proj4.setup(a, gk, "s59")
    srd(a, S_FLG, P_WS, 0x40000, WS_FLG)
    tag_make(a, 0)
    if 'st0' in MFL:
        st(a)
    GM = int(os.environ.get("GM", 0))
    for x in proj4.xitems(gk, 0) + proj4.witems(gk, 0):
        a(x)
    if 'st0' in MFL:
        st(a)
    c = Col()
    proj4.read_bases(c, gk)
    common(c)
    proj4.out_base(c)
    gk.init(c, [proj4.XS0, 0])
    SU, W0 = os.environ.get("SU", ""), float(os.environ.get("W0", 0.6))
    pre1 = (proj4.xitems(gk, 1) if 'x' in SU else []) + (proj4.witems(gk, 1) if 'w' in SU else [])
    post1 = ([] if 'x' in SU else proj4.xitems(gk, 1)) + ([] if 'w' in SU else proj4.witems(gk, 1))
    for x in weave_lines(c, pre1, W0, 1.0) if pre1 else c:
        a(x)
    tag_make(a, 1, 16 + 8 * len(SU))
    st(a)
    k0 = st.k
    if 'st0' in MFL:
        a("s_waitcnt vmcnt(%d)" % (8 * len(SU)))
        st(a)
    if GM:
        gk.pro2(a, 4, post1 + proj4.xitems(gk, 2), GM)
    else:
        gk.pro(a, 8 * len(SU), dma=post1 + proj4.xitems(gk, 2))
    if 'st0' in MFL:
        st(a)
        a("s_waitcnt vmcnt(8)")
        st(a)
        st.flush(a)
        a("s_endpgm")
    a("s_mov_b32 s%d, 6" % gk.sCnt)
    gk.loop(a, 8)
    gk.half(a, 1, dma=gk.dma_items())
    if 'st2' in MFL:
        st(a)
    order, epi = proj4.pack('k', NK[0])
    rest = gk.bm(a, order, 18, 18, N=8, dma=gk.dma_items(), nxt=gv, epi=epi, defer=True)
    assert all(kind(x) == 'c' for x in rest), rest
    if 'st2' in MFL:
        st(a)
    order, held = proj4.v_order(NK[0])
    sts = [(proj4.trickle('k', k, k + 1), held[proj4.ORDER['k'][k]]) for k in range(NK[0], 32)]
    gv.bm(a, order, 20, 18, N=8, first=True, dma=gv.dma_items(), nxt=gv, st2=sts, carry=rest)
    a("s_add_u32 s%d, s%d, 0x4000" % (proj4.sSt, proj4.sSt))
    a("s_waitcnt lgkmcnt(0)")
    gv.half(a, 0, adv=True)
    st(a)
    a("s_mov_b32 s%d, 4" % gv.sCnt)
    gv.loop(a, 8)
    gv.iter(a, None, proj4.witems(gv, 0) + qproj.witems(g3, 0) + qproj.witems(g3, 1), after_bar=lambda: qproj.setup(a, g3))
    gv.bar(a, 8)
    gv.half(a, 1, dma=qproj.xitems(g3, 0))
    order, epi = proj4.pack('v', NW)
    gv.bm(a, order, 18, epi=epi, dma=qproj.xitems(g3, 1) + qproj.witems(g3, 2) + qproj.xitems(g3, 2), mid=lambda: tag_load(a, 22))
    qk = VmQ()
    for t, n in (('w0', 4), ('w1', 4), ('x0', 8), ('t', 1), ('st', NW), ('x1', 8), ('w2', 4), ('x2', 8)):
        qk.push(t, n)
    a("s_lshl_b32 s34, s%d, 4" % proj4.sN0)
    a("s_add_u32 s34, s34, s%d" % proj4.sM0)
    a("s_lshl_b32 s34, s34, 7")
    a("s_branch Lp3")
    a.label("Lp2")
    if 'st0' in MFL and 'nob' in MFL:
        a("s_endpgm")
    st.k = k0 - 1
    bfront.setup(a, b0, "s59")
    srd(a, S_FLG, P_WS, 0x40000, WS_FLG)
    a("s_cmp_ge_u32 s%d, 2" % S_WAVE)
    a("s_cbranch_scc1 Lp2_r1")
    for rh, g in enumerate((b0, b1)):
        if rh:
            a.label("Lp2_r1")
            st.k = k0 - 1
        nx = 8 if rh else 9
        PFB, PF0 = int(os.environ.get("PFB", 4)), os.environ.get("PF0", "")
        a("s_and_b32 s4, s2, 7")
        a("s_lshl_b32 s4, s4, 4")
        a("s_add_u32 s4, s4, s59")
        a("s_lshl_b32 s4, s4, 2")
        a("s_add_u32 s4, s4, s%d" % S_WAVE)
        a("s_lshl_b32 s51, s4, 13")

        def pf0():
            a("s_lshr_b32 s56, s51, 1")
            srd(a, 52, P_CKV, 2 * MB)
            for i in range(4):
                a("buffer_load_dwordx4 a[192:195], v2, s[52:55], s56 offen offset:%d ; @dummy" % (1024 * i))
            a("s_add_u32 s56, s51, 4096")
            srd(a, 52, P_WUK, 4 * MB)
            for i in range(8):
                a("buffer_load_dwordx4 a[192:195], v2, s[52:55], %s offen offset:%d ; @dummy" % ("s56" if i >= 4 else "s51", 1024 * (i & 3)))
        if PF0 == "a":
            pf0()
        for x in bfront.xitems(g, 0) + bfront.witems(g, 0):
            a(x)
        if PF0 == "b":
            pf0()
        c = Col()
        bfront.read_bases(c)
        common(c)
        bfront.pre(c)
        g.init(c)
        if PFB:
            srd(c, 52, P_WUV, 4 * MB)
            c("s_lshl_b32 s1, s51, 1")
            c("s_mov_b32 s56, s51")
            c("s_mov_b32 s0, 0")
            pf1 = ["buffer_load_dwordx4 a[192:195], v2, s[52:55], s51 offen offset:%d ; @dummy" % (1024 * i) for i in range(PFB)]
            assert PFB == 4
            g.pf = pf1 + ["s_add_u32 s51, s51, 4096", "s_add_u32 s0, s0, 1",
                          "s_cmp_eq_u32 s0, 2\ns_cselect_b32 s52, s%d, s52\ns_cselect_b32 s53, s%d, s53\ns_cselect_b32 s51, s1, s51\n"
                          "s_cselect_b32 s54, %d, s54" % (P_WQ, P_WQ + 1, (8 * MB) if os.environ.get("PFQ", "0") == "1" else 0),
                          "s_cmp_eq_u32 s0, 6\ns_cselect_b32 s52, s%d, s52\ns_cselect_b32 s53, s%d, s53\ns_cselect_b32 s51, s56, s51\n"
                          "s_cselect_b32 s54, %d, s54" % (P_AX, P_AX + 1, (4 * MB) if os.environ.get("PFQ", "0") == "1" else 0),
                          "s_cmp_eq_u32 s0, 8\ns_cselect_b32 s54, 0, s54"]
        pre1 = (bfront.xitems(g, 1) if 'x' in SU else []) + (bfront.witems(g, 1) if 'w' in SU else [])
        post1 = ([] if 'x' in SU else bfront.xitems(g, 1)) + ([] if 'w' in SU else bfront.witems(g, 1))
        for x in weave_lines(c, pre1, W0, 1.0) if pre1 else c:
            a(x)
        st(a)
        g.pro(a, (nx if 'x' in SU else 0) + (6 if 'w' in SU else 0), dma=post1 + bfront.xitems(g, 2))
        if 'st0' in MFL:
            a("s_endpgm")
        if g.chain:
            g.iter(a, nx, g.pf + g.dma_items())
        a("s_mov_b32 s%d, %d" % (g.sCnt, 6 if g.chain else 13))
        g.loop(a, nx)
        if 'st2' in MFL:
            st(a)
            st(a)
        g.iter(a, None, bfront.witems(g, 0), after_bar=lambda: qproj.setup(a, g3))
        g.bar(a, 0)
        a("s_mov_b32 s6, 0x%08x" % f32bits(bfront.CB))
        a("s_mov_b32 s7, s6")
        g.half(a, 1)
        order, epi = bfront.pack(g, rh)
        nd = qproj.witems(g3, 0) + qproj.witems(g3, 1) + qproj.xitems(g3, 0)
        if g.chain:
            g.last2(a, epi, dma=nd, mid=lambda: tag_load(a, 22))
        else:
            g.bm(a, order, 16, epi=epi, dma=nd, mid=lambda: tag_load(a, 22))
        a("s_waitcnt lgkmcnt(0)")
        a("s_barrier")
        st(a)
        if not rh:
            a("s_branch Lp2_at")
    a.label("Lp2_at")
    c = Col()
    bfront.attend(c)
    for x in weave_lines(c, qproj.xitems(g3, 1) + qproj.witems(g3, 2) + qproj.xitems(g3, 2), 0.0, 0.7):
        a(x)
    qb = VmQ()
    for t, n in (('t', 1), ('w0', 4), ('w1', 4), ('x0', 8), ('x1', 8), ('w2', 4), ('x2', 8), ('st', 8)):
        qb.push(t, n)
    a("s_lshl_b32 s34, s%d, 4" % bfront.sRb)
    a("s_add_u32 s34, s34, s%d" % bfront.sHp)
    a("s_lshl_b32 s34, s34, 7")
    a("s_add_u32 s34, s34, %d" % F_OB)
    a("s_mov_b32 s%d, 0x70000000" % proj4.sSt)
    a.label("Lp3")
    st(a)
    qproj.restore(a)
    g3.init(a, [qproj.XS0, 0])
    need = lambda *t: min(qk.need(*t), qb.need(*t))

    def push(t, n):
        qk.push(t, n), qb.push(t, n)
    cum = [NW + sum(TR3[:k]) for k in range(len(TR3) + 1)]
    g3.pro(a, need('w0', 'x0'), dma=proj4.trickle('v', cum[0], cum[1]))
    push('st', TR3[0])
    last = len(TR3) + 1
    for s in range(1, last + 1):
        N = need('w%d' % s, 'x%d' % s, s, *(['st'] if s == last else []))
        g3.iter(a, N, g3.dma_items() + (proj4.trickle('v', cum[s], cum[s + 1]) if s < len(TR3) else []),
                after_bar=(lambda: (tag_get(a, 22, 12), signal(a, 22, ["s34"], 3))) if s == last else None)
        push(s + 2, 12)
        if s < len(TR3):
            push('st', TR3[s])
    if last < 12:
        a("s_mov_b32 s%d, %d" % (g3.sCnt, (12 - last) // (2 if g3.chain else 1)))
        assert (12 - last) % 2 == 0
        g3.loop(a, 12)
    else:
        g3.bar(a, 12)

    def ids():
        a("s_lshr_b32 s34, s%d, 1" % attn4.sHead)
        a("s_lshl_b32 s34, s34, 11")
        for x in flag_addr(3, 8):
            a(x)
    g3.iter(a, None, [flag_load(22, "s34", 3)] + g3.dma_items(), after_bar=ids)

    def go():
        flag_check(a, 22, "s34", 3)
        attn4.kv_setup(a)
        oproj.ids(a)
    it = attn4.kv_prologue_items(0)
    cut = [i for i, x in enumerate(it) if "m0" in x][1]
    g3.iter(a, 12, it[:cut], after_bar=go)
    g3.bar(a, 4)
    a("s_mov_b32 s6, 0x%08x" % f32bits(attn4.CST))
    a("s_mov_b32 s7, s6")
    g3.half(a, 1, dma=it[cut:])
    order, epi = qproj.epilogue()
    if g3.chain:
        g3.last2(a, epi, bar=False)
    else:
        g3.bm(a, order, 16, epi=epi, bar=False)
    st(a)
    attn4.setup1(a)
    oproj.fill_setup(a)
    st(a)
    g6, g7 = oproj.make("p6", oproj.AB), oproj.make("p7", oproj.AA)

    class H:
        q0 = [t for t in (('K', 0), ('K', 1), ('V', 0)) for _ in range(4)]

        @staticmethod
        def after_d2():
            a("s_lshr_b32 s91, s%d, 1" % oproj.sRb)
            a("s_lshl_b32 s91, s91, 11")
            a("s_add_u32 s91, s91, %d" % F_OB)
            for x in flag_addr(14):
                a(x)

        @staticmethod
        def fill():
            return oproj.fill_items()

        @staticmethod
        def pre_e1():
            return [flag_load(12, "s91", 14)]

        @staticmethod
        def at_e1():
            flag_check(a, 12, "s91", 14)
            oproj.ring_start(a)
            for j in range(4):
                a("v_accvgpr_read_b32 v%d, a%d" % (oproj.wv + j, oproj.aSave + j))
            for x in oproj.job_w(False) + oproj.job_x(False):
                a(x)

        @staticmethod
        def e1_items():
            return oproj.stage_items(g6, 0, 'wx')

        @staticmethod
        def e2_items():
            return oproj.stage_items(g6, 1, 'wx')
    attn4.attention(a, st, H)
    st(a)
    gh = oproj.make("ph", oproj.AA, True)
    q = VmQ()
    for s in range(2):
        q.push(s, 8)
    q.push('ctx', 8)
    oproj.read_bases(a, 4)
    g6.init(a, [3])
    c = Col()
    c("s_lshl_b32 s36, s%d, 7" % attn4.sHead)
    c("s_add_u32 s36, s36, %d" % F_CTX)
    attn4.long_blk(c, 37)
    c("s_lshl_b32 s37, s37, 12")
    c("s_add_u32 s37, s37, s36")
    c("s_lshl_b32 s38, s%d, 12" % attn4.sPair)
    c("s_add_u32 s36, s36, s38")
    oproj.flag_pos(c, False, True, 38)
    c("s_lshl_b32 s91, s%d, 12" % oproj.sRb)
    c("s_add_u32 s91, s91, %d" % F_CTX)
    oproj.flag_pos(c, False, False, 39)
    c("s_sub_u32 s39, s39, s91")
    sigc = Col()
    signal(sigc, 6, ["s36", "s37", "s38"])
    pre = sigc[:-3] + ["v_lshlrev_b32 v14, 7, v1", "v_mov_b32 v9, s39", "v_cmp_gt_u32 vcc, 32, v1", "v_cndmask_b32 v14, v9, v14, vcc"]
    for x in c + pre:
        a(x)
    g6.pro(a, q.need(0), dma=oproj.stage_items(g6, 2, 'wx'))
    q.push(2, 8)
    VS = int(os.environ.get("VS", 6))
    for s in range(1, VS):
        N = q.need(1, 'ctx') if s == 1 else q.need(s)
        it = g6.dma_items() if s < 5 else (oproj.job_w(True) if s == 5 else []) + g7.group_items(g7.dma[0])
        if s == 1:
            it = sigc[-3:] + oproj.stage_items(g6, 3, 'wx') + it
            q.push('sig', 3)
            q.push(3, 8)
        if s == 2:
            c = Col()
            oproj.xch_srd(c)
            it = [c[0] + "\n" + c[1]] + c[2:] + it
        if s == VS - 1:
            it = [flag_load(6, "s91", 14)] + it
            q.push('fl', 1)
        q.push(s + 3, 8 if s < 5 else 4)
        if 'st6' in MFL:
            st(a)
        g6.iter(a, N, it)
    a("s_waitcnt vmcnt(%d)" % q.need(VS, 'fl'))
    a("v_cmp_ne_u64 vcc, s[%d:%d], v[6:7]" % (S_TAG, S_TAG + 1))
    a("v_cndmask_b32_e64 v8, 0, 1, vcc")
    a("v_lshlrev_b32 v9, 2, v0")
    a("ds_write_b32 v9, v8")
    a("v_lshlrev_b32 v9, 4, v1")
    a("s_waitcnt lgkmcnt(0)")
    a("s_barrier")
    a("ds_read_b128 v[160:163], v9")
    for x in oproj.job_w(True) if VS == 5 else []:
        a(x)
    a("s_waitcnt lgkmcnt(0)")
    a("v_or3_b32 v160, v160, v161, v162")
    a("v_or_b32 v160, v160, v163")
    a("v_cmp_ne_u32 vcc, 0, v160")
    if 'only7' not in MFL:
        a("s_cbranch_vccnz Lp6_late ; @late")
    if 'st6' in MFL:
        st(a)
    k0 = st.k
    q0 = list(q.q)
    par0 = oproj.PAR[0]
    for late in (False, True):
        q.q = list(q0)
        oproj.PAR[0] = par0
        if late:
            a.label("Lp6_late")
            st.k = k0
        else:
            for x in oproj.job_x(True):
                a(x)
        for s in range(VS, 8):
            if s > VS:
                g6.bar(a, q.need(s))
            it = g7.group_items(g7.dma[0]) if late else g7.dma_items()
            if s == VS and not late:
                for t in range(VS + 2, 7, -1):
                    it = oproj.stage_items(g7, t, 'x') + it
                for t in range(8, VS + 3):
                    q.push(t, 4)
            q.push(s + 3, 4 if late else 8)
            if late and s == 7:
                it += [flag_load(6, "s91", 14)]
            d0, d1 = g6.split(it)
            g6.half(a, 1, dma=d0)
            a("s_waitcnt lgkmcnt(0)")
            g6.half(a, 0, dma=d1, adv=True)
        if late:
            a("s_waitcnt vmcnt(0) lgkmcnt(0)")
            a("s_barrier")
            st(a)
            flag_check(a, 6, "s91", 14)
            st(a)
            for x in oproj.job_x(True):
                a(x)
            it = []
            for s in range(8, 12):
                it += oproj.stage_items(g7, s, 'x' if s < 11 else 'wx')
            g6.half(a, 1, rd=False, dma=it)
            for x in oproj.send_items(oproj.AB, False, 6):
                a(x)
            a("s_waitcnt vmcnt(24)")
            a("s_barrier")
            for x in g7.reads(0):
                a(x)
            a("s_waitcnt lgkmcnt(0)")
            g7.half(a, 0, first=True, adv=True)
        else:
            g6.bar(a, q.need(8))
            st(a)
            st(a)
            g6.half(a, 1, dma=g7.dma_items())
            a("s_waitcnt lgkmcnt(0)")
            it = oproj.send_items(oproj.AB, False, 6)
            nsc = [i for i, x in enumerate(it) if kind(x) == 'd'][0]
            for x in it[:nsc]:
                a(x)
            g7.half(a, 0, first=True, adv=True, extra=lambda sg: place_dma(sg, it[nsc:], 5, 14))
            a("s_branch Lp7")
    a.label("Lp7")
    st(a)
    DL = oproj.DL
    F = 40 - DL
    U = 32 if g7.chain else 33
    a("s_mov_b32 s%d, %d" % (g7.sCnt, (U - 10) // 2 if g7.chain else U - 9))
    if g7.chain:
        g7.iter(a, 16, g7.dma_items())
        assert U % 2 == 0
    g7.loop(a, 16)
    if 'st2' in MFL:
        st(a)
    q = VmQ()
    for s in range(U, U + 3):
        q.push(s, 8)
    E = F + 2 * DL
    finB = []
    gl = oproj.make("l", oproj.AA, lin=True)
    for s in range(U, E):
        tags, it, ab = [s], [], None
        if s == U:
            c = Col()
            oproj.out_off(c, False, 32)
            oproj.out_off(c, True, 34)
            it += oproj.recv_items(False, 6) + c
            ab = lambda: oproj.out_setup(a)
        if s == U + 2:
            tags.append('rcv')
            ab = lambda: oproj.recv_check(a, False, 6)
            finB = oproj.finish(oproj.AB, False, 32)
        if s == E - 1:
            it += oproj.recv_items(True, 6)
        N = q.need(*tags)
        q.push('rcv', sum(kind(x) == 'd' for x in it))
        if s + 3 < F:
            it += g7.dma_items() if s + 3 < 36 else (oproj.to_lin() if s + 3 == 36 else []) + gl.dma_items()
            q.push(s + 3, 8)
        elif s + 3 < E:
            if s + 3 == F:
                it += oproj.to_half()
            if s + 3 == F + DL:
                it += oproj.to_partner()
            it += gh.dma_items()
            q.push(s + 3, 6)
        g1, g0 = (g7 if s - 1 < F else gh), (g7 if s < F else gh)
        if s > U:
            g7.bar(a, N)
        else:
            assert N >= 16
        if ab:
            ab()
        d0, d1 = g7.split(it)
        if s == F:
            snd = oproj.send_items(oproj.AA, True, 36)
            nsc = [i for i, x in enumerate(snd) if kind(x) == 'd'][0]
            sa = [x for i, x in enumerate(snd[nsc:]) if i % 4 < 2]
            d0, d1 = snd[:nsc] + sa + it, [x for x in snd[nsc:] if x not in sa]
            n_it = sum(kind(x) == 'd' for x in it)
            q.q = q.q[:len(q.q) - n_it] + ['snd'] * 4 + q.q[len(q.q) - n_it:] + ['snd'] * 4
        L = finB.pop(0) if finB else []

        def finb(sg):
            g = 0
            for x in L[:-1]:
                g = sg.place(x, g, lo=g)
        g1.half(a, 1, dma=d0, rdg=g0, extra=finb)
        a("s_waitcnt lgkmcnt(0)")
        g0.half(a, 0, dma=d1, adv=s < E - 1, extra=lambda sg: sg.end[sg.n - 1].extend(L[-1:]))
        q.push('ob', len(L[-1:]))
        if 'st3' in MFL:
            st(a)
    gh.tail(a, bar=False)
    st(a)
    a("s_waitcnt vmcnt(0)")
    oproj.recv_check(a, True, 6)
    st(a)
    for L in zip(*oproj.finish(oproj.AA, True, 34)):
        for x in L:
            a(x)
    st(a)
    if stamp:
        a("s_waitcnt vmcnt(0)")
    st(a)
    st.flush(a)
    return fin(a)


def fin(a):
    a.label("Lend")
    a("s_endpgm")
    t = a.finish()
    for fl, pat in (('x7rd', "ds_read"), ('x7mf', "v_mfma"), ('x7dma', " lds")):
        if fl in MFL:
            h, r = t.split("Lp7_loop:")
            b, r = r.split("s_cbranch_scc1 Lp7_loop", 1)
            t = h + "Lp7_loop:" + "\n".join(l for l in b.split("\n") if pat not in l) + "s_cbranch_scc1 Lp7_loop" + r
    if 'nobar' in MFL:
        t = t.replace("s_barrier", "s_nop 0")
    if 'nox' in MFL:
        t = "\n".join(l for l in t.split("\n") if not (l.rstrip().endswith(" lds") and "s[8:11]" in l))
    if 'now' in MFL:
        t = "\n".join(l for l in t.split("\n") if not (l.rstrip().endswith(" lds") and "s[12:15]" in l))
    if 'nodma' in MFL:
        t = "\n".join(l for l in t.split("\n") if not l.rstrip().endswith(" lds"))
    return t.replace("CODE_KB", os.environ.get("CODE_KB", "70"))
```

```python
from lib import *
from gemm4 import *
import proj4, bfront, attn4, oproj, qproj

MFL = set(os.environ.get("MFLAGS", "").split(","))


def gen(stamp=False):
    a = Asm()
    st = Stamps(stamp, 0)
    a("s_cmp_ge_u32 s2, 256")
    a("s_cbranch_scc1 Lend")
    a("s_load_dwordx16 s[64:79], s[0:1], 0")
    a("s_load_dwordx8 s[80:87], s[0:1], 64")
    a("v_lshrrev_b32 v2, 6, v0")
    a("v_and_b32 v1, 63, v0")
    a("v_readfirstlane_b32 s%d, v2" % S_WAVE)
    a("v_lshlrev_b32 v2, 4, v1")
    if 'ipf' in MFL:
        a("s_getpc_b64 s[6:7]")
        a("s_lshr_b32 s4, s2, 3")
        a("s_lshl_b32 s4, s4, 2")
        a("s_add_u32 s4, s4, s%d" % S_WAVE)
        a("s_min_u32 s4, s4, CODE_KB")
        a("s_lshl_b32 s4, s4, 10")
        a("v_add_u32 v3, s4, v2")
        a("global_load_dwordx4 v[4:7], v3, s[6:7]")
    st(a)
    gk, gv = proj4.make('wx'), proj4.make('xw')
    b0, b1 = bfront.make(0), bfront.make(1)
    g3 = qproj.make()
    if 'nost' in MFL:
        t0 = proj4.trickle
        proj4.trickle = lambda k, a, b: [x.replace("s%d," % proj4.sSt, "0x70000000,").replace("s_add_u32 s60, 0x70000000, ", "s_mov_b32 s60, 0x70000000 ; ") for x in t0(k, a, b)]
    NK = [int(x) for x in os.environ.get("NK", "12").split(",")]
    NW = int(os.environ.get("NW", 8))
    TR3 = [int(x) for x in os.environ.get("TR3", "8,0,8,0,8").split(",")]
    assert NW >= 8 and NW + sum(TR3) == 32
    a("s_bfe_u32 s59, s2, 0x30003")
    a("s_lshr_b32 s4, s2, 7")
    a("s_lshl_b32 s4, s4, 3")
    a("s_add_u32 s59, s59, s4")
    a("s_lshr_b32 s4, s2, 3")
    a("s_xor_b32 s4, s4, s2")
    a("s_bitcmp1_b32 s4, 3")
    a("s_cbranch_scc1 Lp2")

    def common(c):
        attn4.ids(c)
        oproj.lanes(c, 24)
        qproj.lanes(c, 24)
    proj4.setup(a, gk, "s59")
    srd(a, S_FLG, P_WS, 0x40000, WS_FLG)
    tag_make(a, 0)
    if 'st0' in MFL:
        st(a)
    GM = int(os.environ.get("GM", 0))
    for x in proj4.xitems(gk, 0) + proj4.witems(gk, 0):
        a(x)
    if 'st0' in MFL:
        st(a)
    c = Col()
    proj4.read_bases(c, gk)
    common(c)
    proj4.out_base(c)
    gk.init(c, [proj4.XS0, 0])
    SU, W0 = os.environ.get("SU", ""), float(os.environ.get("W0", 0.6))
    pre1 = (proj4.xitems(gk, 1) if 'x' in SU else []) + (proj4.witems(gk, 1) if 'w' in SU else [])
    post1 = ([] if 'x' in SU else proj4.xitems(gk, 1)) + ([] if 'w' in SU else proj4.witems(gk, 1))
    for x in weave_lines(c, pre1, W0, 1.0) if pre1 else c:
        a(x)
    tag_make(a, 1, 16 + 8 * len(SU))
    st(a)
    k0 = st.k
    if 'st0' in MFL:
        a("s_waitcnt vmcnt(%d)" % (8 * len(SU)))
        st(a)
    if GM:
        gk.pro2(a, 4, post1 + proj4.xitems(gk, 2), GM)
    else:
        gk.pro(a, 8 * len(SU), dma=post1 + proj4.xitems(gk, 2))
    if 'st0' in MFL:
        st(a)
        a("s_waitcnt vmcnt(8)")
        st(a)
        st.flush(a)
        a("s_endpgm")
    a("s_mov_b32 s%d, 6" % gk.sCnt)
    gk.loop(a, 8)
    gk.half(a, 1, dma=gk.dma_items())
    if 'st2' in MFL:
        st(a)
    order, epi = proj4.pack('k', NK[0])
    rest = gk.bm(a, order, 18, 18, N=8, dma=gk.dma_items(), nxt=gv, epi=epi, defer=True)
    assert all(kind(x) == 'c' for x in rest), rest
    if 'st2' in MFL:
        st(a)
    order, held = proj4.v_order(NK[0])
    sts = [(proj4.trickle('k', k, k + 1), held[proj4.ORDER['k'][k]]) for k in range(NK[0], 32)]
    gv.bm(a, order, 20, 18, N=8, first=True, dma=gv.dma_items(), nxt=gv, st2=sts, carry=rest)
    a("s_add_u32 s%d, s%d, 0x4000" % (proj4.sSt, proj4.sSt))
    a("s_waitcnt lgkmcnt(0)")
    gv.half(a, 0, adv=True)
    st(a)
    a("s_mov_b32 s%d, 4" % gv.sCnt)
    gv.loop(a, 8)
    gv.iter(a, None, proj4.witems(gv, 0) + qproj.witems(g3, 0) + qproj.witems(g3, 1), after_bar=lambda: qproj.setup(a, g3))
    gv.bar(a, 8)
    gv.half(a, 1, dma=qproj.xitems(g3, 0))
    order, epi = proj4.pack('v', NW)
    gv.bm(a, order, 18, epi=epi, dma=qproj.xitems(g3, 1) + qproj.witems(g3, 2) + qproj.xitems(g3, 2), mid=lambda: tag_load(a, 22))
    qk = VmQ()
    for t, n in (('w0', 4), ('w1', 4), ('x0', 8), ('t', 1), ('st', NW), ('x1', 8), ('w2', 4), ('x2', 8)):
        qk.push(t, n)
    a("s_lshl_b32 s34, s%d, 4" % proj4.sN0)
    a("s_add_u32 s34, s34, s%d" % proj4.sM0)
    a("s_lshl_b32 s34, s34, 7")
    a("s_branch Lp3")
    a.label("Lp2")
    if 'st0' in MFL and 'nob' in MFL:
        a("s_endpgm")
    st.k = k0 - 1
    bfront.setup(a, b0, "s59")
    srd(a, S_FLG, P_WS, 0x40000, WS_FLG)
    a("s_cmp_ge_u32 s%d, 2" % S_WAVE)
    a("s_cbranch_scc1 Lp2_r1")
    for rh, g in enumerate((b0, b1)):
        if rh:
            a.label("Lp2_r1")
            st.k = k0 - 1
        nx = 8 if rh else 9
        PFB, PF0 = int(os.environ.get("PFB", 4)), os.environ.get("PF0", "")
        a("s_and_b32 s4, s2, 7")
        a("s_lshl_b32 s4, s4, 4")
        a("s_add_u32 s4, s4, s59")
        a("s_lshl_b32 s4, s4, 2")
        a("s_add_u32 s4, s4, s%d" % S_WAVE)
        a("s_lshl_b32 s51, s4, 13")

        def pf0():
            a("s_lshr_b32 s56, s51, 1")
            srd(a, 52, P_CKV, 2 * MB)
            for i in range(4):
                a("buffer_load_dwordx4 a[192:195], v2, s[52:55], s56 offen offset:%d ; @dummy" % (1024 * i))
            a("s_add_u32 s56, s51, 4096")
            srd(a, 52, P_WUK, 4 * MB)
            for i in range(8):
                a("buffer_load_dwordx4 a[192:195], v2, s[52:55], %s offen offset:%d ; @dummy" % ("s56" if i >= 4 else "s51", 1024 * (i & 3)))
        if PF0 == "a":
            pf0()
        for x in bfront.xitems(g, 0) + bfront.witems(g, 0):
            a(x)
        if PF0 == "b":
            pf0()
        c = Col()
        bfront.read_bases(c)
        common(c)
        bfront.pre(c)
        g.init(c)
        if PFB:
            srd(c, 52, P_WUV, 4 * MB)
            c("s_lshl_b32 s1, s51, 1")
            c("s_mov_b32 s56, s51")
            c("s_mov_b32 s0, 0")
            pf1 = ["buffer_load_dwordx4 a[192:195], v2, s[52:55], s51 offen offset:%d ; @dummy" % (1024 * i) for i in range(PFB)]
            assert PFB == 4
            g.pf = pf1 + ["s_add_u32 s51, s51, 4096", "s_add_u32 s0, s0, 1",
                          "s_cmp_eq_u32 s0, 2\ns_cselect_b32 s52, s%d, s52\ns_cselect_b32 s53, s%d, s53\ns_cselect_b32 s51, s1, s51\n"
                          "s_cselect_b32 s54, %d, s54" % (P_WQ, P_WQ + 1, (8 * MB) if os.environ.get("PFQ", "0") == "1" else 0),
                          "s_cmp_eq_u32 s0, 6\ns_cselect_b32 s52, s%d, s52\ns_cselect_b32 s53, s%d, s53\ns_cselect_b32 s51, s56, s51\n"
                          "s_cselect_b32 s54, %d, s54" % (P_AX, P_AX + 1, (4 * MB) if os.environ.get("PFQ", "0") == "1" else 0),
                          "s_cmp_eq_u32 s0, 8\ns_cselect_b32 s54, 0, s54"]
        pre1 = (bfront.xitems(g, 1) if 'x' in SU else []) + (bfront.witems(g, 1) if 'w' in SU else [])
        post1 = ([] if 'x' in SU else bfront.xitems(g, 1)) + ([] if 'w' in SU else bfront.witems(g, 1))
        for x in weave_lines(c, pre1, W0, 1.0) if pre1 else c:
            a(x)
        st(a)
        g.pro(a, (nx if 'x' in SU else 0) + (6 if 'w' in SU else 0), dma=post1 + bfront.xitems(g, 2))
        if 'st0' in MFL:
            a("s_endpgm")
        if g.chain:
            g.iter(a, nx, g.pf + g.dma_items())
        a("s_mov_b32 s%d, %d" % (g.sCnt, 6 if g.chain else 13))
        g.loop(a, nx)
        if 'st2' in MFL:
            st(a)
            st(a)
        g.iter(a, None, bfront.witems(g, 0), after_bar=lambda: qproj.setup(a, g3))
        g.bar(a, 0)
        a("s_mov_b32 s6, 0x%08x" % f32bits(bfront.CB))
        a("s_mov_b32 s7, s6")
        g.half(a, 1)
        order, epi = bfront.pack(g, rh)
        nd = qproj.witems(g3, 0) + qproj.witems(g3, 1) + qproj.xitems(g3, 0)
        if g.chain:
            g.last2(a, epi, dma=nd, mid=lambda: tag_load(a, 22))
        else:
            g.bm(a, order, 16, epi=epi, dma=nd, mid=lambda: tag_load(a, 22))
        a("s_waitcnt lgkmcnt(0)")
        a("s_barrier")
        st(a)
        if not rh:
            a("s_branch Lp2_at")
    a.label("Lp2_at")
    c = Col()
    bfront.attend(c)
    for x in weave_lines(c, qproj.xitems(g3, 1) + qproj.witems(g3, 2) + qproj.xitems(g3, 2), 0.0, 0.7):
        a(x)
    qb = VmQ()
    for t, n in (('t', 1), ('w0', 4), ('w1', 4), ('x0', 8), ('x1', 8), ('w2', 4), ('x2', 8), ('st', 8)):
        qb.push(t, n)
    a("s_lshl_b32 s34, s%d, 4" % bfront.sRb)
    a("s_add_u32 s34, s34, s%d" % bfront.sHp)
    a("s_lshl_b32 s34, s34, 7")
    a("s_add_u32 s34, s34, %d" % F_OB)
    a("s_mov_b32 s%d, 0x70000000" % proj4.sSt)
    a.label("Lp3")
    st(a)
    qproj.restore(a)
    g3.init(a, [qproj.XS0, 0])
    need = lambda *t: min(qk.need(*t), qb.need(*t))

    def push(t, n):
        qk.push(t, n), qb.push(t, n)
    cum = [NW + sum(TR3[:k]) for k in range(len(TR3) + 1)]
    g3.pro(a, need('w0', 'x0'), dma=proj4.trickle('v', cum[0], cum[1]))
    push('st', TR3[0])
    last = len(TR3) + 1
    for s in range(1, last + 1):
        N = need('w%d' % s, 'x%d' % s, s, *(['st'] if s == last else []))
        g3.iter(a, N, g3.dma_items() + (proj4.trickle('v', cum[s], cum[s + 1]) if s < len(TR3) else []),
                after_bar=(lambda: (tag_get(a, 22, 12), signal(a, 22, ["s34"], 3))) if s == last else None)
        push(s + 2, 12)
        if s < len(TR3):
            push('st', TR3[s])
    if last < 12:
        a("s_mov_b32 s%d, %d" % (g3.sCnt, (12 - last) // (2 if g3.chain else 1)))
        assert (12 - last) % 2 == 0
        g3.loop(a, 12)
    else:
        g3.bar(a, 12)

    def ids():
        a("s_lshr_b32 s34, s%d, 1" % attn4.sHead)
        a("s_lshl_b32 s34, s34, 11")
        for x in flag_addr(3, 8):
            a(x)
    g3.iter(a, None, [flag_load(22, "s34", 3)] + g3.dma_items(), after_bar=ids)

    def go():
        flag_check(a, 22, "s34", 3)
        attn4.kv_setup(a)
        oproj.ids(a)
    it = attn4.kv_prologue_items(0)
    cut = [i for i, x in enumerate(it) if "m0" in x][1]
    g3.iter(a, 12, it[:cut], after_bar=go)
    g3.bar(a, 4)
    a("s_mov_b32 s6, 0x%08x" % f32bits(attn4.CST))
    a("s_mov_b32 s7, s6")
    g3.half(a, 1, dma=it[cut:])
    order, epi = qproj.epilogue()
    if g3.chain:
        g3.last2(a, epi, bar=False)
    else:
        g3.bm(a, order, 16, epi=epi, bar=False)
    st(a)
    attn4.setup1(a)
    oproj.fill_setup(a)
    st(a)
    g6, g7 = oproj.make("p6", oproj.AB), oproj.make("p7", oproj.AA)

    class H:
        q0 = [t for t in (('K', 0), ('K', 1), ('V', 0)) for _ in range(4)]

        @staticmethod
        def after_d2():
            a("s_lshr_b32 s91, s%d, 1" % oproj.sRb)
            a("s_lshl_b32 s91, s91, 11")
            a("s_add_u32 s91, s91, %d" % F_OB)
            for x in flag_addr(14):
                a(x)

        @staticmethod
        def fill():
            return oproj.fill_items()

        @staticmethod
        def pre_e1():
            return [flag_load(12, "s91", 14)]

        @staticmethod
        def at_e1():
            flag_check(a, 12, "s91", 14)
            oproj.ring_start(a)
            for j in range(4):
                a("v_accvgpr_read_b32 v%d, a%d" % (oproj.wv + j, oproj.aSave + j))
            for x in oproj.job_w(False) + oproj.job_x(False):
                a(x)

        @staticmethod
        def e1_items():
            return oproj.stage_items(g6, 0, 'wx')

        @staticmethod
        def e2_items():
            return oproj.stage_items(g6, 1, 'wx')
    attn4.attention(a, st, H)
    st(a)
    gh = oproj.make("ph", oproj.AA, True)
    q = VmQ()
    for s in range(2):
        q.push(s, 8)
    q.push('ctx', 8)
    oproj.read_bases(a, 4)
    g6.init(a, [3])
    c = Col()
    c("s_lshl_b32 s36, s%d, 7" % attn4.sHead)
    c("s_add_u32 s36, s36, %d" % F_CTX)
    attn4.long_blk(c, 37)
    c("s_lshl_b32 s37, s37, 12")
    c("s_add_u32 s37, s37, s36")
    c("s_lshl_b32 s38, s%d, 12" % attn4.sPair)
    c("s_add_u32 s36, s36, s38")
    oproj.flag_pos(c, False, True, 38)
    c("s_lshl_b32 s91, s%d, 12" % oproj.sRb)
    c("s_add_u32 s91, s91, %d" % F_CTX)
    oproj.flag_pos(c, False, False, 39)
    c("s_sub_u32 s39, s39, s91")
    sigc = Col()
    signal(sigc, 6, ["s36", "s37", "s38"])
    pre = sigc[:-3] + ["v_lshlrev_b32 v14, 7, v1", "v_mov_b32 v9, s39", "v_cmp_gt_u32 vcc, 32, v1", "v_cndmask_b32 v14, v9, v14, vcc"]
    for x in c + pre:
        a(x)
    g6.pro(a, q.need(0), dma=oproj.stage_items(g6, 2, 'wx'))
    q.push(2, 8)
    VS = int(os.environ.get("VS", 6))
    for s in range(1, VS):
        N = q.need(1, 'ctx') if s == 1 else q.need(s)
        it = g6.dma_items() if s < 5 else (oproj.job_w(True) if s == 5 else []) + g7.group_items(g7.dma[0])
        if s == 1:
            it = sigc[-3:] + oproj.stage_items(g6, 3, 'wx') + it
            q.push('sig', 3)
            q.push(3, 8)
        if s == 2:
            c = Col()
            oproj.xch_srd(c)
            it = [c[0] + "\n" + c[1]] + c[2:] + it
        if s == VS - 1:
            it = [flag_load(6, "s91", 14)] + it
            q.push('fl', 1)
        q.push(s + 3, 8 if s < 5 else 4)
        if 'st6' in MFL:
            st(a)
        g6.iter(a, N, it)
    a("s_waitcnt vmcnt(%d)" % q.need(VS, 'fl'))
    a("v_cmp_ne_u64 vcc, s[%d:%d], v[6:7]" % (S_TAG, S_TAG + 1))
    a("v_cndmask_b32_e64 v8, 0, 1, vcc")
    a("v_lshlrev_b32 v9, 2, v0")
    a("ds_write_b32 v9, v8")
    a("v_lshlrev_b32 v9, 4, v1")
    a("s_waitcnt lgkmcnt(0)")
    a("s_barrier")
    a("ds_read_b128 v[160:163], v9")
    for x in oproj.job_w(True) if VS == 5 else []:
        a(x)
    a("s_waitcnt lgkmcnt(0)")
    a("v_or3_b32 v160, v160, v161, v162")
    a("v_or_b32 v160, v160, v163")
    a("v_cmp_ne_u32 vcc, 0, v160")
    if 'only7' not in MFL:
        a("s_cbranch_vccnz Lp6_late ; @late")
    if 'st6' in MFL:
        st(a)
    k0 = st.k
    q0 = list(q.q)
    par0 = oproj.PAR[0]
    for late in (False, True):
        q.q = list(q0)
        oproj.PAR[0] = par0
        if late:
            a.label("Lp6_late")
            st.k = k0
        else:
            for x in oproj.job_x(True):
                a(x)
        for s in range(VS, 8):
            if s > VS:
                g6.bar(a, q.need(s))
            it = g7.group_items(g7.dma[0]) if late else g7.dma_items()
            if s == VS and not late:
                for t in range(VS + 2, 7, -1):
                    it = oproj.stage_items(g7, t, 'x') + it
                for t in range(8, VS + 3):
                    q.push(t, 4)
            q.push(s + 3, 4 if late else 8)
            if late and s == 7:
                it += [flag_load(6, "s91", 14)]
            d0, d1 = g6.split(it)
            g6.half(a, 1, dma=d0)
            a("s_waitcnt lgkmcnt(0)")
            g6.half(a, 0, dma=d1, adv=True)
        if late:
            a("s_waitcnt vmcnt(0) lgkmcnt(0)")
            a("s_barrier")
            st(a)
            flag_check(a, 6, "s91", 14)
            st(a)
            for x in oproj.job_x(True):
                a(x)
            it = []
            for s in range(8, 12):
                it += oproj.stage_items(g7, s, 'x' if s < 11 else 'wx')
            g6.half(a, 1, rd=False, dma=it)
            for x in oproj.send_pack(oproj.AB) + oproj.send_items(oproj.AB, False, 6):
                a(x)
            a("s_waitcnt vmcnt(%d)" % (20 if oproj.XB else 24))
            a("s_barrier")
            for x in g7.reads(0):
                a(x)
            a("s_waitcnt lgkmcnt(0)")
            g7.half(a, 0, first=True, adv=True)
        else:
            g6.bar(a, q.need(8))
            st(a)
            st(a)
            g6.half(a, 1, dma=g7.dma_items())
            a("s_waitcnt lgkmcnt(0)")
            it = oproj.send_items(oproj.AB, False, 6)
            nsc = [i for i, x in enumerate(it) if kind(x) == 'd'][0]
            for x in it[:nsc] + oproj.send_pack(oproj.AB):
                a(x)
            g7.half(a, 0, first=True, adv=True, extra=lambda sg: place_dma(sg, it[nsc:], 5, 14))
            a("s_branch Lp7")
    a.label("Lp7")
    st(a)
    DL = oproj.DL
    F = 40 - DL
    U = 32 if g7.chain else 33
    a("s_mov_b32 s%d, %d" % (g7.sCnt, (U - 10) // 2 if g7.chain else U - 9))
    if g7.chain:
        g7.iter(a, 16, g7.dma_items())
        assert U % 2 == 0
    g7.loop(a, 16)
    if 'st2' in MFL:
        st(a)
    q = VmQ()
    for s in range(U, U + 3):
        q.push(s, 8)
    E = F + 2 * DL
    finB, held = [], []
    gl = oproj.make("l", oproj.AA, lin=True)
    for s in range(U, E):
        tags, it, ab = [s], [], None
        if s == U:
            c = Col()
            oproj.out_off(c, False, 32)
            oproj.out_off(c, True, 34)
            it += oproj.recv_items(False, 6) + c
            ab = lambda: oproj.out_setup(a)
        if s == U + 2:
            tags.append('rcv')
            ab = lambda: oproj.recv_check(a, False, 6)
            finB = oproj.finish(oproj.AB, False, 32)
        if s == E - 1:
            it += oproj.recv_items(True, 6)
        N = q.need(*tags)
        q.push('rcv', sum(kind(x) == 'd' for x in it))
        if s + 3 < F:
            it += g7.dma_items() if s + 3 < 36 else (oproj.to_lin() if s + 3 == 36 else []) + gl.dma_items()
            q.push(s + 3, 8)
        elif s + 3 < E:
            if s + 3 == F:
                it += oproj.to_half()
            if s + 3 == F + DL:
                it += oproj.to_partner()
            it += gh.dma_items()
            q.push(s + 3, 6)
        g1, g0 = (g7 if s - 1 < F else gh), (g7 if s < F else gh)
        if s > U:
            g7.bar(a, N)
        else:
            assert N >= 16
        if ab:
            ab()
        d0, d1 = g7.split(it)
        if s == F:
            snd = oproj.send_items(oproj.AA, True, 36)
            nsc = [i for i, x in enumerate(snd) if kind(x) == 'd'][0]
            d0, d1 = it + snd[:nsc], snd[nsc:]
            q.push('snd', 4 if oproj.XB else 8)
        L = finB.pop(0) if finB else []

        def finb(sg):
            g = 0
            for x in L[:-1]:
                g = sg.place(x, g, lo=g)
        g1.half(a, 1, dma=d0, rdg=g0, extra=finb)
        a("s_waitcnt lgkmcnt(0)")
        for x in oproj.send_pack(oproj.AA) if s == F else []:
            a(x)
        held += L[-1:]
        OBM = os.environ.get("OBM", "b")
        out = [] if (finB and OBM == "b") or OBM == "e" else list(held)
        held = [x for x in held if x not in out]
        g0.half(a, 0, dma=d1, adv=s < E - 1, extra=lambda sg: sg.end[sg.n - 1].extend(out))
        q.push('ob', len(out))
        if 'st3' in MFL:
            st(a)
    gh.tail(a, bar=False)
    st(a)
    a("s_waitcnt vmcnt(0)")
    for x in held:
        a(x)
    oproj.recv_check(a, True, 6)
    st(a)
    for L in zip(*oproj.finish(oproj.AA, True, 34)):
        for x in L:
            a(x)
    st(a)
    if stamp:
        a("s_waitcnt vmcnt(0)")
    st(a)
    st.flush(a)
    return fin(a)


def fin(a):
    a.label("Lend")
    a("s_endpgm")
    t = a.finish()
    for fl, pat in (('x7rd', "ds_read"), ('x7mf', "v_mfma"), ('x7dma', " lds")):
        if fl in MFL:
            h, r = t.split("Lp7_loop:")
            b, r = r.split("s_cbranch_scc1 Lp7_loop", 1)
            t = h + "Lp7_loop:" + "\n".join(l for l in b.split("\n") if pat not in l) + "s_cbranch_scc1 Lp7_loop" + r
    if 'nobar' in MFL:
        t = t.replace("s_barrier", "s_nop 0")
    if 'nox' in MFL:
        t = "\n".join(l for l in t.split("\n") if not (l.rstrip().endswith(" lds") and "s[8:11]" in l))
    if 'now' in MFL:
        t = "\n".join(l for l in t.split("\n") if not (l.rstrip().endswith(" lds") and "s[12:15]" in l))
    if 'nodma' in MFL:
        t = "\n".join(l for l in t.split("\n") if not l.rstrip().endswith(" lds"))
    return t.replace("CODE_KB", os.environ.get("CODE_KB", "70"))
```

```python
from lib import *
from gemm4 import *

wv = 10
rdx, rdw = 16, 18
sX, sW, sWv, sHo = 70, 71, 79, 88
sRb, sCt, sKh, sTile = 73, 76, 77, 78
T = 24
AB, AA, PB, PA = 32, 96, 160, 192
NS = 4
aSave = 212
DL = int(os.environ.get("DL", 2))


sXb, sWb = 92, 93
KS = {n: (KSeq(0, n, 72), KSeq(30, n, 72)) for n in (8, 28)}


PAR = [0]
XB_ = int(os.environ.get('XB16', 1))


def acc(base, mi, ni): return ('v', base + 4 * (4 * mi + ni))


def make(name, base, half=False, lin=False):
    g = Gemm()
    g.name, g.woff = name, 16 * KB
    g.xlin, g.xhs = True, 8192
    R = Ring(NS, 32 * KB, 64)
    R.regs = list(range(rdx, rdw + 4))
    g.rings = [R]
    g.xrd, g.wrd = [(rdx, rdx), (rdx + 1, rdx + 1)], list(range(rdw, rdw + 4))
    g.xfr = [(i >> 1, 1024 * (i & 1)) for i in range(4)]
    g.wfr = [(b, 0) for b in range(4)]
    g.mf = [(acc(base, mi, ni), mi, ni, 'wx') for ni in range(4) for mi in range(2 if half else 4)]
    g.fx, g.fw = 64, 128
    g.chain, g.par = bool(int(os.environ.get('CH', 7)) & 4), PAR
    g.sCnt = 69
    ld = lambda v, s, o, j, f: "buffer_load_dwordx4 v%d, s[%d:%d], s%d offen offset:%d%s lds" % (v, s, s + 3, o, 1024 * j, f)
    g.dma = [
        (R, 16 * KB, [ld(wv + j, 12, sW, j, "") for j in range(4)], ["s_add_u32 s%d, s%d, %d" % (sW, sW, 64 * 2048)]),
        (R, 0, [ld(2, 8, sX, j, SC1L) for j in range(4)], ["s_add_u32 s%d, s%d, %d" % (sX, sX, 16 * KB)]),
    ]
    if not half and not lin:
        kx, kw = KS[8 if base == AB else 28]
        g.dma[0] = g.dma[0][:3] + (kw.step() + ["s_lshl_b32 s72, s%d, 17" % kw.k, "s_add_u32 s%d, s%d, s72" % (sW, sWb)],)
        g.dma[1] = g.dma[1][:3] + (kx.step() + ["s_lshl_b32 s72, s%d, 14" % kx.k, "s_add_u32 s%d, s%d, s72" % (sX, sXb)],)
    if half:
        g.dma[1] = (R, ('s', sHo), [ld(2, 8, sX, j, SC1L) for j in range(2)], ["s_add_u32 s%d, s%d, %d" % (sX, sX, 16 * KB)])
    return g


def to_lin():
    return ["s_add_u32 s%d, s%d, %d" % (sX, sXb, 28 << 14), "s_add_u32 s%d, s%d, %d" % (sW, sWb, 28 << 17)]


FS = 64
aNaN = 244


def fill_setup(a):
    xch_off(a, 90, True, True)
    srd(a, FS, P_WS, 8192 if XB_ else 16384, WS_XCH, 90)
    a("s_mov_b32 s90, 0")


def fill_items():
    return ["buffer_store_dwordx4 %s, v2, s[%d:%d], s90 offen offset:%d%s" % (a4(aNaN), FS, FS + 3, 1024 * i, SC1) for i in range(2)] + \
           ["s_add_u32 s90, s90, 2048"]


def recv_check(a, isA, d):
    P = PA if isA else PB
    L, D = a.newlabel("Lrc"), a.newlabel("Lpolld")
    a("s_mov_b32 s72, 0x40000")
    a.label(L)
    t = 4
    K = range(2, 4) if XB else range(4)
    for k in K:
        a("v_max3_u32 v%d, v%d, v%d, v%d" % (t + k, P + 8 * k, P + 8 * k + 1, P + 8 * k + 2))
    for e in (3, 5):
        for k in K:
            a("v_max3_u32 v%d, v%d, v%d, v%d" % (t + k, t + k, P + 8 * k + e, P + 8 * k + e + 1))
    for k in K:
        a("v_max_u32 v%d, v%d, v%d" % (t + k, t + k, P + 8 * k + 7))
    if XB:
        a("v_max_u32 v%d, v%d, v%d" % (t, t + 2, t + 3))
    else:
        a("v_max3_u32 v%d, v%d, v%d, v%d" % (t, t, t + 1, t + 2))
        a("v_max_u32 v%d, v%d, v%d" % (t, t, t + 3))
    a("v_cmp_eq_u32 vcc, -1, v%d" % t)
    a("s_cbranch_vccz %s" % D)
    for x in recv_items(isA, d):
        if kind(x) == 'd':
            a(x)
    a("s_sub_u32 s72, s72, 1")
    a("s_waitcnt vmcnt(0)")
    a("s_cbranch_scc0 %s ; @poll" % L)
    a.label(D)


def to_half():
    return ["s_and_b32 s%d, s%d, 1" % (sHo, S_WAVE), "s_lshl_b32 s%d, s%d, 12" % (sHo, sHo),
            "s_lshr_b32 s72, s%d, 1" % S_WAVE, "s_lshl_b32 s72, s72, 13", "s_add_u32 s%d, s%d, s72" % (sHo, sHo),
            "s_lshl_b32 s72, s%d, 11" % sKh, "s_add_u32 s%d, s%d, s72" % (sHo, sHo), "s_sub_u32 s%d, s%d, s%d" % (sHo, sHo, sWv),
            "s_add_u32 s%d, s%d, s%d" % (sX, sXb, sHo), "s_add_u32 s%d, s%d, %d" % (sX, sX, (32 - DL) << 14),
            "s_add_u32 s%d, s%d, %d" % (sW, sWb, (32 - DL) << 17)]


def to_partner():
    return ["s_sub_u32 s%d, s%d, %d" % (sX, sX, DL << 14), "s_xor_b32 s%d, s%d, %d" % (sX, sX, 1 << 19),
            "s_sub_u32 s%d, s%d, %d" % (sW, sW, DL << 17), "s_xor_b32 s%d, s%d, %d" % (sW, sW, 1 << 22)]


def ids(a):
    a("s_and_b32 s4, s2, 1")
    a("s_lshl_b32 s4, s4, 3")
    a("s_bfe_u32 s5, s2, 0x30003")
    a("s_add_u32 s%d, s4, s5" % sRb)
    a("s_bfe_u32 s4, s2, 0x10001")
    a("s_lshl_b32 s4, s4, 2")
    a("s_lshr_b32 s5, s2, 6")
    a("s_add_u32 s%d, s4, s5" % sCt)
    a("s_bfe_u32 s%d, s2, 0x10002" % sKh)
    a("s_lshl_b32 s%d, s%d, 3" % (sTile, sRb))
    a("s_add_u32 s%d, s%d, s%d" % (sTile, sTile, sCt))
    a("s_lshl_b32 s%d, s%d, 12" % (sWv, S_WAVE))


def ring_start(a):
    a("s_add_u32 s64, s%d, %d" % (sWv, 128 * KB))


def lanes(a, T):
    for i in range(4):
        a("v_accvgpr_write_b32 a%d, -1" % (aNaN + i))
    lane_setup(a, T)
    a("s_and_b32 s4, s%d, 1" % S_WAVE)
    a("s_lshl_b32 s4, s4, 16")
    a("s_lshr_b32 s5, s%d, 1" % S_WAVE)
    a("s_lshl_b32 s5, s5, 7")
    a("s_add_u32 s4, s4, s5")
    a("v_lshl_add_u32 v%d, v%d, 11, v%d" % (T, T, T + 1))
    a("v_add_u32 v%d, s4, v%d" % (T, T))
    for j in range(4):
        a("v_add_u32 v%d, %d, v%d" % (T + 1, j * (8 * 2048 - 1024), T))
        a("v_accvgpr_write_b32 a%d, v%d" % (aSave + j, T + 1))


def stage_items(g, s, what):
    L = []
    for i, w in enumerate("wx"):
        if w in what:
            ring, m0, ins, post = g.dma[i]
            L += ["s_add_u32 m0, s%d, %d" % (sWv, (1 + (3 + s) % NS) * 32 * KB + m0)] + ins + post
    return L


def job_w(isA):
    c = Col()
    srd(c, 12, P_WO if isA else P_BWO, (4096 if isA else 1024) * 2048)
    c("s_lshl_b32 s%d, s%d, %d" % (sWb, sKh, 22 if isA else 20))
    c("s_lshl_b32 s72, s%d, 8" % sCt)
    c("s_add_u32 s%d, s%d, s72" % (sWb, sWb))
    kw = KS[28 if isA else 8][1]
    return list(c) + ["s_add_u32 s72, s%d, s%d" % (sRb, sCt)] + kw.init("s72", "0") + \
        ["s_lshl_b32 s72, s%d, 17" % kw.k, "s_add_u32 s%d, s%d, s72" % (sW, sWb)]


def job_x(isA):
    off = WS_CTX if isA else WS_OB
    L = ["s_add_u32 s8, s%d, %d\ns_addc_u32 s9, s%d, 0" % (P_WS, off, P_WS + 1),
         "s_mov_b32 s10, %d" % ((16 if isA else 4) * MB), "s_mov_b32 s11, 0x00020000",
         "s_lshl_b32 s%d, s%d, 1" % (sXb, sRb), "s_add_u32 s%d, s%d, s%d" % (sXb, sXb, sKh),
         "s_lshl_b32 s%d, s%d, %d" % (sXb, sXb, 19 if isA else 17),
         "s_add_u32 s%d, s%d, s%d" % (sXb, sXb, sWv)]
    kx = KS[28 if isA else 8][0]
    L += ["s_add_u32 s72, s%d, s%d" % (sRb, sCt)] + kx.init("s72", "0") + \
        ["s_lshl_b32 s72, s%d, 14" % kx.k, "s_add_u32 s%d, s%d, s72" % (sX, sXb)]
    return L


def read_bases(a, slot):
    a("s_lshr_b32 s4, s%d, 1" % S_WAVE)
    a("s_lshl_b32 s4, s4, 12")
    a("s_add_u32 s4, s4, %d" % (slot * 32 * KB))
    a("s_lshl_b32 s5, s%d, 11" % sKh)
    a("s_add_u32 s4, s4, s5")
    a("v_add_u32 v%d, s4, v2" % rdx)
    a("v_xor_b32 v%d, 0x800, v%d" % (rdx + 1, rdx))
    a("s_and_b32 s4, s%d, 1" % S_WAVE)
    a("s_lshl_b32 s4, s4, 13")
    a("s_add_u32 s4, s4, %d" % (slot * 32 * KB))
    wread_base(a, list(range(rdw, rdw + 4)), range(4), T, "s4")


def xch_srd(a):
    srd(a, 16, P_WS, 16 * MB, WS_XCH)


def xch_off(a, d, isA, mine):
    a("s_lshl_b32 s%d, s%d, 1" % (d, sTile))
    a("s_add_u32 s%d, s%d, s%d" % (d, d, sKh))
    if not mine:
        a("s_xor_b32 s%d, s%d, 1" % (d, d))
    a("s_lshl_b32 s%d, s%d, 2" % (d, d))
    a("s_add_u32 s%d, s%d, s%d" % (d, d, S_WAVE))
    a("s_lshl_b32 s%d, s%d, 14" % (d, d))
    if not isA:
        a("s_add_u32 s%d, s%d, %d" % (d, d, 4096 if XB_ else 8192))


XB = int(os.environ.get("XB16", 1))


def send_pack(base):
    b = base + 32
    return ["v_cvt_pk_bf16_f32 v%d, v%d, v%d" % (b + e, b + 2 * e, b + 2 * e + 1) for e in range(16)] if XB else []


def send_items(base, isA, d):
    c = Col()
    xch_off(c, d, isA, False)
    c("s_add_u32 s%d, s%d, 4096" % (d + 1, d))
    for i in range(4 if XB else 8):
        c("buffer_store_dwordx4 %s, v2, s[16:19], s%d offen offset:%d%s" % (v4(base + 32 + 4 * i), d + i // 4, 1024 * (i % 4), SC1))
    return list(c)


def recv_items(isA, d):
    c = Col()
    xch_off(c, d, isA, True)
    c("s_add_u32 s%d, s%d, 4096" % (d + 1, d))
    for i in range(4 if XB else 8):
        c("buffer_load_dwordx4 %s, v2, s[16:19], s%d offen offset:%d%s" % (v4((PA if isA else PB) + (16 if XB else 0) + 4 * i), d + i // 4, 1024 * (i % 4), SC1))
    return list(c)


def flag_pos(a, isA, mine, d):
    a("s_lshl_b32 s%d, s%d, 1" % (d, sTile))
    a("s_add_u32 s%d, s%d, s%d" % (d, d, sKh))
    if not mine:
        a("s_xor_b32 s%d, s%d, 1" % (d, d))
    a("s_lshl_b32 s%d, s%d, 7" % (d, d))
    a("s_add_u32 s%d, s%d, %d" % (d, d, F_XA if isA else F_XB))


def out_setup(a):
    srd(a, 20, P_OUT, 8 * MB)
    a("v_bfe_u32 v%d, v1, 4, 1" % (T + 1))
    a("v_lshrrev_b32 v%d, 5, v1" % (T + 2))
    a("v_lshl_or_b32 v%d, v%d, 1, v%d" % (T + 1, T + 1, T + 2))
    a("v_lshlrev_b32 v%d, 4, v%d" % (T + 1, T + 1))
    a("v_and_b32 v%d, 15, v1" % T)
    a("v_lshl_add_u32 v%d, v%d, 14, v%d" % (T + 2, T, T + 1))
    a("v_lshl_add_u32 v%d, v%d, 12, v%d" % (T + 3, T, T + 1))


def out_off(a, isA, d):
    a("s_lshl_b32 s%d, s%d, 19" % (d, sRb))
    a("s_lshl_b32 s72, s%d, 8" % sCt)
    a("s_add_u32 s%d, s%d, s72" % (d, d))
    a("s_and_b32 s72, s%d, 1" % S_WAVE)
    a("s_lshl_b32 s72, s72, 7")
    a("s_add_u32 s%d, s%d, s72" % (d, d))
    a("s_lshr_b32 s72, s%d, 1" % S_WAVE)
    a("s_lshl_b32 s72, s72, 1")
    a("s_add_u32 s72, s72, s%d" % sKh)
    a("s_lshl_b32 s72, s72, %d" % (12 if isA else 17))
    a("s_add_u32 s%d, s%d, s72" % (d, d))
    if not isA:
        a("s_add_u32 s%d, s%d, 2048" % (d, d))
    a("s_add_u32 s%d, s%d, %d" % (d + 1, d, (64 if isA else 16) * 4096))


def finish(base, isA, d):
    PR = PA if isA else PB
    out = []
    for q in range(4):
        u = PR + 8 * q
        L = []
        if XB:
            u = base + 32 + 8 * q
            for e in range(4):
                L += ["v_lshlrev_b32 v%d, 16, v%d" % (u + 2 * e, PR + 16 + 4 * q + e), "v_and_b32 v%d, 0xffff0000, v%d" % (u + 2 * e + 1, PR + 16 + 4 * q + e)]
        L += ["v_pk_add_f32 v[%d:%d], v[%d:%d], v[%d:%d]" % (u + e, u + e + 1, u + e, u + e + 1, base + 8 * q + e, base + 8 * q + e + 1) for e in range(0, 8, 2)]
        L += ["v_cvt_pk_bf16_f32 v%d, v%d, v%d" % (u + e, u + 2 * e, u + 2 * e + 1) for e in range(4)]
        L += ["v_permlane16_swap_b32 v%d, v%d" % (u, u + 2), "v_permlane16_swap_b32 v%d, v%d" % (u + 1, u + 3)]
        L += ["buffer_store_dwordx4 %s, v%d, s[20:23], s%d offen offset:%d%s" % (v4(u), T + (2 if isA else 3), d + (q >> 1), (q & 1) * 64,
                                                                                os.environ.get("OUTF", ""))]
        out.append(L)
    return out
```
